```python
import torch

def _softmax(x, axis=-1):
    return torch.softmax(x, dim=axis)

def _gelu(x):
    return torch.nn.functional.gelu(x, approximate='tanh')

def _silu(x):
    return torch.nn.functional.silu(x)

def _sigmoid(x):
    return torch.sigmoid(x)

def _layernorm(x, axis=-1, eps=1e-05):
    m = x.mean(dim=axis, keepdim=True)
    v = x.var(dim=axis, keepdim=True, unbiased=False)
    return (x - m) / torch.sqrt(v + eps)

def _scatter_add(tgt, idx, src, axis=0):
    return tgt.clone().index_add_(axis, idx, src)

def _segment_sum(src, seg, n):
    out = torch.zeros((n,) + src.shape[1:], dtype=src.dtype)
    return out.index_add_(0, seg, src)

def _pad(x, pw):
    flat = tuple((v for pair in reversed(pw) for v in pair))
    return torch.nn.functional.pad(x, flat)
kernel_name = 'concat_heads__memory_aug_recurrent_mem_tr__sliding_block__prompt'

def setup_inputs():

    _w = lambda a: (lambda t: t.to(torch.bfloat16) if t.is_floating_point() else t)(torch.as_tensor(a))

    def _A_setup():
        B, S, Dm = (1, 2048, 640)
        H, Dh = (32, 192)
        M, seg = (8, 32)
        seg = min(seg, S)
        S = S // seg * seg
        return {'x': _w((lambda *s: torch.randn(*s, dtype=torch.bfloat16) * 0.05)(B, S, Dm)), 'mem0': _w((lambda *s: torch.randn(*s, dtype=torch.bfloat16) * 1.6)(B, M, Dm)), 'Wq': _w((lambda *s: torch.randn(*s, dtype=torch.bfloat16) * 0.8)(Dm, H, Dh) * Dm ** (-0.5)), 'Wk': _w((lambda *s: torch.randn(*s, dtype=torch.bfloat16) * 0.8)(Dm, H, Dh) * Dm ** (-0.5)), 'Wv': _w((lambda *s: torch.randn(*s, dtype=torch.bfloat16) * 1.6)(Dm, H, Dh) * Dm ** (-0.5)), 'Wo': _w((lambda *s: torch.randn(*s, dtype=torch.bfloat16) * 1.6)(H, Dh, Dm) * (H * Dh) ** (-0.5)), 'seg_len': seg}
    _A_in = _A_setup()

    def _B_setup():
        B, S, D = (1, 2048, 640)
        return {'x': _w((lambda *s: torch.randn(*s, dtype=torch.bfloat16) * 0.2)(B, S, D)), 'wqkv': _w((lambda *s: torch.randn(*s, dtype=torch.bfloat16) * 0.2)(D, 3 * D)), 'wo': _w((lambda *s: torch.randn(*s, dtype=torch.bfloat16) * 0.05)(D, D))}
    _B_in = _B_setup()
    return {'A_x': _A_in['x'], 'A_mem0': _A_in['mem0'], 'A_Wq': _A_in['Wq'], 'A_Wk': _A_in['Wk'], 'A_Wv': _A_in['Wv'], 'A_Wo': _A_in['Wo'], 'A_seg_len': _A_in['seg_len'], 'B_x': _B_in['x'], 'B_wqkv': _B_in['wqkv'], 'B_wo': _B_in['wo']}

def reference(A_x, A_mem0, A_Wq, A_Wk, A_Wv, A_Wo, A_seg_len, B_x, B_wqkv, B_wo):

    def _A_ref(x, mem0, Wq, Wk, Wv, Wo, seg_len):
        B, S, Dm = x.shape
        H, Dh = (Wq.shape[1], Wq.shape[2])
        M = mem0.shape[1]
        scale = Dh ** (-0.5)
        n_seg = S // seg_len
        L = M + seg_len
        idx = torch.arange(L)
        mask = (idx[:, None] < M) | (idx[:, None] >= idx[None, :])
        mem = mem0
        outs = []
        for s in range(n_seg):
            xs = x[:, s * seg_len:(s + 1) * seg_len, :].clone()
            h = torch.concatenate([mem, xs], axis=1)
            q = torch.einsum('btd,dhe->bhte', h, Wq)
            k = torch.einsum('btd,dhe->bhte', h, Wk)
            v = torch.einsum('btd,dhe->bhte', h, Wv)
            scores = torch.einsum('bhqe,bhke->bhqk', q, k) * scale
            scores = torch.where(mask[None, None], scores, -1000000000.0)
            p = _softmax(scores, axis=-1)
            o = torch.einsum('bhqk,bhke->bhqe', p, v)
            o = torch.einsum('bhte,hed->btd', o, Wo)
            mem = o[:, :M, :].clone()
            outs.append(o[:, M:, :])
        return torch.concatenate(outs, axis=1)

    def _B_ref(x, wqkv, wo):
        B, S, D = x.shape
        H = 32
        Dh = D // H
        W = 256
        qkv = (lambda x, *d: x.permute(*d))((x @ wqkv).reshape(B, S, 3, H, Dh), 2, 0, 3, 1, 4)
        q, k, v = (qkv[0], qkv[1], qkv[2])
        scores = torch.einsum('bhqd,bhkd->bhqk', q, k) * Dh ** (-0.5)
        idx = torch.arange(S)
        mask = (idx[:, None] - idx[None, :] >= 0) & (idx[:, None] - idx[None, :] < W)
        scores = torch.where(mask[None, None], scores, -1000000000.0)
        p = _softmax(scores, axis=-1)
        o = torch.einsum('bhqk,bhkd->bhqd', p, v)
        return (lambda x, *d: x.permute(*d))(o, 0, 2, 1, 3).reshape(B, S, D) @ wo
    a = _A_ref(A_x, A_mem0, A_Wq, A_Wk, A_Wv, A_Wo, A_seg_len)
    b = _B_ref(B_x, B_wqkv, B_wo)
    return torch.concatenate([a, b], axis=-1)
```

```python
class Asm:
    def __init__(self):
        self.lines = []
        self.uid = 0
    def __call__(self, s):
        for ln in s.split("\n"):
            ln = ln.strip()
            if ln:
                self.lines.append(("" if ln.endswith(":") else "    ") + ln)
    def label(self, name):
        self.lines.append(name + ":")
    def newlabel(self, base="L"):
        self.uid += 1
        return f"{base}_{self.uid}"
    def c(self, s):
        self.lines.append("    ; " + s)
    def text(self):
        return "\n".join(self.lines) + "\n"

def v(a, n=1):
    return f"v{a}" if n == 1 else f"v[{a}:{a+n-1}]"
def a(x, n=1):
    return f"a{x}" if n == 1 else f"a[{x}:{x+n-1}]"
def s(x, n=1):
    return f"s{x}" if n == 1 else f"s[{x}:{x+n-1}]"
def reg(x, n=1):
    return v(x, n) if x < 256 else a(x - 256, n)

def kernel_header(name):
    return f""".globl {name}
.p2align 8
.type {name},@function
{name}:
"""
def kernel_desc(name, vgpr=512, accum=256, sgpr=102):
    return f""".amdhsa_kernel {name}
  .amdhsa_next_free_vgpr {vgpr}
  .amdhsa_next_free_sgpr {sgpr}
  .amdhsa_accum_offset {accum}
  .amdhsa_group_segment_fixed_size 0
  .amdhsa_kernarg_size 104
  .amdhsa_user_sgpr_count 2
  .amdhsa_user_sgpr_kernarg_segment_ptr 1
  .amdhsa_system_sgpr_workgroup_id_x 1
  .amdhsa_float_denorm_mode_32 3
.end_amdhsa_kernel
"""
```

```python
from asmlib import *
from layout import *

KA = dict(A_x=0, mem0=8, Wq=16, Wk=24, Wv=32, Wo=40, seg=48, B_x=56, wqkv=64, wo=72, out=80, dbg=88, ws=96)
W_BYTES = 640*6144*2
X_BYTES = 2048*640*2

S_WS = 4; S_W1 = 8; S_X = 12; S_W2 = 16
S_WAVE = 20; S_HEAD = 21
V_LANE = 1

def srd_finish(A, base, nbytes):
    A(f"s_and_b32 {s(base+1)}, {s(base+1)}, 0xffff")
    A(f"s_mov_b32 {s(base+2)}, {nbytes}")
    A(f"s_mov_b32 {s(base+3)}, 0x20000")

def prologue(A):
    A(f"s_load_dwordx2 {s(S_WS,2)}, s[0:1], {KA['ws']}")
    A(f"v_lshrrev_b32 v2, 6, v0")
    A(f"v_and_b32 v{V_LANE}, 63, v0")
    A(f"v_readfirstlane_b32 {s(S_WAVE)}, v2")
    A(f"s_mov_b32 s100, 60000")
    A("s_waitcnt lgkmcnt(0)")
    srd_finish(A, S_WS, WS_SIZE)

def mul_const(A, dst, src, const, stmp):
    A(f"s_mov_b32 {s(stmp)}, {const}")
    A(f"v_mul_lo_u32 {v(dst)}, {v(src)}, {s(stmp)}")

def div24(A, q, r, u, stmp):
    A(f"v_mul_u32_u24 {v(q)}, 2731, {v(u)}")
    A(f"v_lshrrev_b32 {v(q)}, 16, {v(q)}")
    A(f"v_mul_u32_u24 {v(r)}, 24, {v(q)}")
    A(f"v_sub_u32 {v(r)}, {v(u)}, {v(r)}")

def stamp(A, idx, cond_wg=0, stmp=90):
    lab = A.newlabel("st")
    A(f"s_cmp_lg_u32 s2, {cond_wg}")
    A(f"s_cbranch_scc1 {lab}")
    A(f"s_cmp_lg_u32 {s(S_WAVE)}, 0")
    A(f"s_cbranch_scc1 {lab}")
    A(f"s_load_dwordx2 {s(stmp,2)}, s[0:1], {KA['dbg']}")
    A(f"s_memrealtime {s(stmp+2,2)}")
    A(f"s_memtime {s(stmp+4,2)}")
    A("s_waitcnt lgkmcnt(0)")
    A(f"v_mov_b32 v252, {s(stmp+2)}")
    A(f"v_mov_b32 v253, {s(stmp+4)}")
    A(f"v_mov_b32 v255, {idx*8}")
    A(f"global_store_dwordx2 v255, v[252:253], {s(stmp,2)}")
    A.label(lab)

SPIN_MAX = 60000
S_BUD = 100
def flag_load(A, vdst, vzero, s_off):
    A(f"buffer_load_dword {v(vdst)}, {v(vzero)}, {s(S_WS,4)}, {s(s_off)} offen sc1")

def flag_wait(A, vflag, vzero, s_off, s_need, s_tmp, s_cnt, sleep=2):
    ok = A.newlabel("fw_ok"); lp = A.newlabel("fw_lp")
    A.label(lp)
    A(f"v_cmp_gt_u32 vcc, {s(s_need)}, {v(vflag)}")
    A(f"s_cbranch_vccz {ok}")
    A(f"s_cmp_eq_u32 {s(S_BUD)}, 0")
    A(f"s_cbranch_scc1 {ok}")
    A(f"s_sub_u32 {s(S_BUD)}, {s(S_BUD)}, 1")
    if sleep: A(f"s_sleep {sleep}")
    flag_load(A, vflag, vzero, s_off)
    A("s_waitcnt vmcnt(0)")
    A(f"s_branch {lp}")
    A.label(ok)

def publish(A, s_val, s_off, vt=98):
    lab = A.newlabel("pf")
    A(f"s_cmp_lg_u32 {s(S_WAVE)}, 0")
    A(f"s_cbranch_scc1 {lab}")
    A(f"v_mov_b32 {v(vt)}, {s(s_val)}")
    A(f"v_mov_b32 {v(vt+1)}, 0")
    A(f"s_mov_b64 exec, 1")
    A(f"buffer_store_dword {v(vt)}, {v(vt+1)}, {s(S_WS,4)}, {s(s_off)} offen sc0 sc1")
    A(f"s_mov_b64 exec, -1")
    A.label(lab)
```

```python
import re
R_RANGE = re.compile(r'\b([vas])\[(\d+):(\d+)\]')
R_ONE = re.compile(r'\b([vas])(\d+)\b')
def regs(tok):
    tok = tok.strip()
    out = set()
    m = R_RANGE.search(tok)
    if m:
        for i in range(int(m.group(2)), int(m.group(3))+1): out.add((m.group(1), i))
        return out
    m = R_ONE.search(tok)
    if m: out.add((m.group(1), int(m.group(2))))
    if 'vcc' in tok: out.add(('s','vcc'))
    if tok.startswith('exec'): out.add(('s','exec'))
    if tok == 'm0': out.add(('s','m0'))
    return out
TRANS = ('v_exp_','v_log_','v_rcp_','v_rsq_','v_sqrt_','v_sin_','v_cos_')
def parse(line):
    line = line.split(';')[0].strip()
    if not line or line.endswith(':') or line.startswith('.'): return None
    p = line.split(None,1)
    op = p[0]; ops = [x.strip() for x in (p[1].split(',') if len(p)>1 else [])]
    if ops: ops[-1] = ops[-1].split()[0] if ops[-1].split() else ops[-1]
    d = dict(op=op, w=set(), r=set(), kind='other', n=1)
    if op == 's_nop': d['n'] = int(ops[0],0)+1; return d
    if op.startswith('v_mfma') or op.startswith('v_smfmac'):
        d['kind']='mfma'; d['w']=regs(ops[0]); d['A']=regs(ops[1])|regs(ops[2])
        if op.startswith('v_smfmac'): d['C']=regs(ops[0]); d['A'] |= regs(ops[3])
        else: d['C']=regs(ops[3])
        d['r']=d['A']|d['C']; d['pass']= 8 if '32x32' in op else 4
        return d
    if op.startswith('v_'):
        d['kind']='valu'
        if op.startswith('v_cmp'):
            d['w']=regs(ops[0]); d['r']=set().union(*[regs(o) for o in ops[1:]])
        elif op.startswith('v_permlane') and 'swap' in op:
            d['w']=regs(ops[0])|regs(ops[1]); d['r']=set(d['w']); d['perm']=True
        elif op.startswith('v_readfirstlane') or op.startswith('v_readlane'):
            d['w']=regs(ops[0]); d['r']=set().union(*[regs(o) for o in ops[1:]]); d['rl']=True
        else:
            d['w']=regs(ops[0]); d['r']=set().union(*[regs(o) for o in ops[1:]]) if len(ops)>1 else set()
            if op.startswith('v_fmac') or op.startswith('v_dot2c'): d['r'] |= d['w']
            if op.startswith('v_cndmask') and len(ops)==3: d['r'].add(('s','vcc'))
            if '_co_' in op: d['w'] |= regs(ops[1])
        if 'dpp' in op or 'row_' in line: d['dpp']=True
        if op.startswith(TRANS): d['trans']=True
        if op.startswith('v_dot'): d['dot']=True
        return d
    if op.startswith('ds_'):
        d['kind']='mem'
        if 'read' in op or 'permute' in op or 'swizzle' in op: d['w']=regs(ops[0]); d['r']=set().union(*[regs(o) for o in ops[1:]])
        else: d['r']=set().union(*[regs(o) for o in ops])
        return d
    if op.startswith('buffer_') or op.startswith('global_'):
        d['kind']='mem'; d['vmem']=True
        if 'load' in op and ' lds' not in line and 'lds' not in op:
            d['w']=regs(ops[0]); d['r']=set().union(*[regs(o) for o in ops[1:]])
        else:
            d['r']=set().union(*[regs(o) for o in ops]) if ops else set()
            if ' lds' in line or 'lds' in op: d['r'].add(('s','m0')); d['ldsdma']=True
            if 'store' in op and ('x4' in op or 'x3' in op):
                d['wide']= regs(ops[0]) if op.startswith('buffer_') else regs(ops[1])
        return d
    if op.startswith('s_'):
        d['kind']='salu'
        if ops and not op.startswith(('s_cmp','s_cbranch','s_branch','s_waitcnt','s_barrier','s_sleep','s_setprio','s_endpgm')):
            d['w']=regs(ops[0]); d['r']=set().union(*[regs(o) for o in ops[1:]]) if len(ops)>1 else set()
        return d
    return d
def check(text, verbose=True):
    lines = text.split('\n'); ins = []
    for i,l in enumerate(lines):
        p = parse(l)
        if p: p['ln']=i+1; p['txt']=l.strip(); ins.append(p)
    probs = []
    for i,c in enumerate(ins):
        dist = 0; mdist = 0
        for j in range(i-1, max(-1,i-24), -1):
            p = ins[j]
            need = 0; why=''
            if p['op'] in ('s_branch','s_endpgm','s_setpc_b64'): break
            vw = {x for x in p['w'] if x[0] in 'va'}; sw = {x for x in p['w'] if x[0]=='s'}
            if p['kind']=='valu':
                if c['kind']=='mfma' and vw & c['r']: need,why=2,'valu->mfma'
                if c.get('perm') and vw & c['r']: need,why=2,'valu->permlane'
                if c.get('dpp') and vw & c['r']: need,why=2,'valu->dpp'
                if c.get('rl') and vw & c['r']: need,why=1,'valu->readlane'
                if p.get('trans') and c['kind'] in('valu',) and not c.get('trans') and vw & c['r']: need,why=max(need,1),'trans->valu'
                if p.get('dot') and c['kind']in('valu','mem','mfma') and c['op']!=p['op'] and vw & (c['r']|c['w']): need,why=3,'dot->other'
                if sw and c['kind']=='valu' and sw & c['r']: need,why=max(need,2),'valu sgpr->valu'
                if sw and c.get('vmem') and sw & c['r']: need,why=5,'valu sgpr->vmem'
                if ('s','exec') in sw and c['kind']=='mfma': need,why=4,'valu exec->mfma'
            if p['kind']=='mfma':
                P=p['pass']
                if c['kind']=='mfma':
                    if p['w'] & c['A']: need,why={4:8,8:12}[P],'mfma->mfma AB'
                    elif p['w'] & c['C'] and p['w']!=c['C']: need,why={4:6,8:10}[P],'mfma->mfma C overlap'
                    elif p['w'] & c['C'] and p['pass']!=c['pass']: need,why={4:6,8:10}[P],'mfma->mfma C shape'
                    elif p['w'] & c['w'] and not (p['w'] & c['C']): need,why={4:8,8:12}[P],'mfma->mfma WAW(conservative)'
                elif c['kind'] in('valu','mem'):
                    if p['w'] & (c['r']|c['w']): need,why={4:8,8:12}[P],'mfma->valu/mem'
                    elif c['kind']=='valu' and p['C'] & c['w']: need,why={4:3,8:7}[P],'mfma C WAR'
            if p.get('wide') and c['kind']=='valu' and p['wide'] & c['w']: need,why=max(need,2),'wide store WAR'
            if p['kind']=='salu' and ('s','m0') in p['w'] and c.get('ldsdma'): need,why=max(need,1),'m0->lds dma'
            have = mdist if p['kind']=='mfma' else dist
            if need > have:
                probs.append((c['ln'], why, need, have, p['txt'], c['txt']))
            dist += p['n']
            mdist += (3 if p['pass']==4 else 6) if p['kind']=='mfma' else p['n']
            if dist >= 12: break
    if verbose:
        for q in probs[:40]: print("HAZARD line %d %s need %d have %d\n   %s\n   %s" % q)
        print("hazard problems:", len(probs))
    return probs
if __name__ == "__main__":
    import sys
    check(open(sys.argv[1]).read())
```

```python
NSEG=64; NH=32
WS_K   = 0
WS_V   = WS_K + NSEG*NH*12288
WS_U   = WS_V + NSEG*NH*12288
WS_Z   = WS_U + NSEG*40*32*1024
WS_P   = WS_Z + NSEG*40*8*1024
WS_KM  = WS_P + NSEG*2*40*1024
WS_MB  = WS_KM + NSEG*NH*3072
WS_SIZE = 268435456
def emap(ks, g, sig):
    if ks < 4:
        return 48*ks + 16*(sig>>2) + 4*g + (sig&3)
    return 48*(2*(ks-4) + (g>>1)) + 32 + 8*(g&1) + sig
if __name__ == "__main__":
    print(hex(WS_V),hex(WS_U),hex(WS_Z),hex(WS_P),hex(WS_KM),hex(WS_MB))
    assert sorted(emap(k,g,s) for k in range(6) for g in range(4) for s in range(8))==list(range(192))

MB_Z = WS_MB
MB_P = MB_Z + 2*327680
MB_L = MB_P + 2*20480
MB_R = MB_L + 4*10240
MB_X = MB_R + 64*2*20480
POISON_END = (MB_X + 1024 + 4095)//4096*4096
FLAGS = POISON_END
FL_K = FLAGS; FL_V = FLAGS+128; FL_U = FLAGS+256; FL_KM = FLAGS+384; FL_Z = FLAGS+512; FL_Q = FLAGS+640
FL_B = FLAGS+768; FL_CNT = FLAGS+896
FLAGS_END = FLAGS + 1024
WS_OB = (FLAGS_END + 4095)//4096*4096
WS_SCR = WS_OB + 4*1024*1024
```

```python
from common import *
import role_kv as kv
from role_kv import XF, XB, V_XSRC, S_SEG, S_XOFF, S_M0X, S_T
from role_chain import f32bits
import math
L_RING = 81920; L_QB = L_RING + 12*4096
ACC = 32
SC = 100
KR = 172
QF = 196; D0 = 200; D1 = 204; MKC = 208; MKW = 212
V_L16 = 216; V_E0 = 217; V_E1 = 218; V_O0 = 219; V_BB = 220
T0 = 232
S_RB = 30; S_QT = 31; S_C = 32; S_FLO = 33; S_OD = 34; S_SL = 35; S_IT = 36; S_T2 = 37; S_MG0 = 50; S_MG2 = 52; S_MN2 = 54

def gemm(A, buf, swap):
    def mm(k, tau):
        acc = v(ACC+4*tau,4); w_ = a(4*k,4); x_ = v(XF+(k%3)*8+tau*4,4)
        c = "0" if k == 0 else acc
        A(f"v_mfma_f32_16x16x32_bf16 {acc}, {x_ if swap else w_}, {w_ if swap else x_}, {c}")
    for k in range(20):
        if k < 10: A(f"s_add_u32 m0, {s(S_M0X)}, {(1-buf)*40960 + k*1024 - k*128}")
        if k+2 < 20:
            kv.xread(A, buf, k+2); A("s_waitcnt lgkmcnt(4)")
        else: A(f"s_waitcnt lgkmcnt({2*(19-k)})")
        mm(k, 0)
        if k < 10: A(f"buffer_load_dwordx4 {v(V_XSRC)}, {s(S_X,4)}, {s(S_XOFF)} offen offset:{k*128} lds")
        mm(k, 1)

def epilogue(A, blk, w):
    P = T0
    for tau in range(2):
        A(f"v_cvt_pk_bf16_f32 {v(P+2*tau)}, {v(ACC+4*tau)}, {v(ACC+4*tau+1)}")
        A(f"v_cvt_pk_bf16_f32 {v(P+2*tau+1)}, {v(ACC+4*tau+2)}, {v(ACC+4*tau+3)}")
    if w == 0:
        for tau in range(2): A(f"ds_write_b64 {v(V_E0)}, {v(P+2*tau,2)} offset:{(2*blk+tau)*1024}")
    elif w in (1, 3):
        A(f"v_add_u32 {v(P+4)}, {s(S_RB)}, {v(V_E0)}")
        for tau in range(2): A(f"ds_write_b64 {v(P+4)}, {v(P+2*tau,2)} offset:{tau*(1024 if w == 1 else 8)}")
    else:
        A(f"v_mov_b32 {v(P+4)}, {s(S_RB)}")
        A(f"v_mov_b32 {v(P+5)}, {L_QB + 2*blk*1024}")
        A(f"v_cndmask_b32 {v(P+5)}, {v(P+4)}, {v(P+5)}, {s(S_MG0,2)}")
        A(f"v_add_u32 {v(P+5)}, {v(P+5)}, {v(V_E0)}")
        A(f"v_add_u32 {v(P+4)}, {v(P+4)}, {v(V_E1)}")
        A(f"s_mov_b64 exec, {s(S_MN2,2)}")
        for tau in range(2): A(f"ds_write_b64 {v(P+5)}, {v(P+2*tau,2)} offset:{tau*1024}")
        A(f"s_mov_b64 exec, {s(S_MG2,2)}")
        for tau in range(2):
            for r in range(4):
                op = "ds_write_b16_d16_hi" if r & 1 else "ds_write_b16"
                A(f"{op} {v(P+4)}, {v(P+2*tau+(r>>1))} offset:{r*16 + tau*8}")
        A("s_mov_b64 exec, -1")

def attention(A, odd):
    for j in range(9):
        A(f"s_lshl_b32 {s(S_T)}, {s(S_SL)}, 12")
        A(f"v_add_u32 {v(V_BB+j)}, {s(S_T)}, {v(V_BB+9)}")
        A(f"s_add_u32 {s(S_SL)}, {s(S_SL)}, 1")
        A(f"s_cmp_eq_u32 {s(S_SL)}, 12")
        A(f"s_cselect_b32 {s(S_SL)}, 0, {s(S_SL)}")
    A(f"ds_read_b128 {v(QF,4)}, {v(V_BB+10)}")
    tiles = [t for t in range(18) if t != (0 if odd else 17)]
    first, last = tiles[0], tiles[-1]
    def krd(i):
        t = tiles[i]
        A(f"ds_read_b128 {v(KR+4*(i%6),4)}, {v(V_BB+t//2)} offset:{(t&1)*1024}")
    for i in range(5): krd(i)
    m, t1 = T0, T0+1
    for i, t in enumerate(tiles):
        if i+5 < 17:
            krd(i+5); A("s_waitcnt lgkmcnt(5)")
        else: A(f"s_waitcnt lgkmcnt({16-i})")
        c = v(MKW,4) if t == first else (v(MKC,4) if t == last else "0")
        A(f"v_mfma_f32_16x16x32_bf16 {v(SC+4*t,4)}, {v(KR+4*(i%6),4)}, {v(QF,4)}, {c}")
        if i >= 3:
            tt = tiles[i-3]
            if i == 3: A(f"v_max3_f32 {v(m)}, {v(SC+4*tt)}, {v(SC+4*tt+1)}, {v(SC+4*tt+2)}"); A(f"v_mov_b32 {v(t1)}, {v(SC+4*tt+3)}")
            else:
                A(f"v_max3_f32 {v(m)}, {v(m)}, {v(SC+4*tt)}, {v(SC+4*tt+1)}")
                A(f"v_max3_f32 {v(t1)}, {v(t1)}, {v(SC+4*tt+2)}, {v(SC+4*tt+3)}")
    def vrd(j):
        for f in range(2): A(f"ds_read_b128 {v(KR+8*(j%3)+4*f,4)}, {v(V_BB+j)} offset:{2048+f*1024}")
    for j in range(3): vrd(j)
    for i in range(14, 17):
        tt = tiles[i]
        if i == 16: A("s_nop 1")
        A(f"v_max3_f32 {v(m)}, {v(m)}, {v(SC+4*tt)}, {v(SC+4*tt+1)}")
        A(f"v_max3_f32 {v(t1)}, {v(t1)}, {v(SC+4*tt+2)}, {v(SC+4*tt+3)}")
    A(f"v_max_f32 {v(m)}, {v(m)}, {v(t1)}")
    for wh in (16, 32):
        A(f"v_mov_b32 {v(t1)}, {v(m)}"); A("s_nop 1"); A(f"v_permlane{wh}_swap_b32 {v(m)}, {v(t1)}"); A(f"v_max_f32 {v(m)}, {v(m)}, {v(t1)}")
    A(f"v_mul_f32 {v(m)}, {s(S_C)}, {v(m)}")
    def pv(j):
        L = [f"s_waitcnt lgkmcnt({min(4, 2*(8-j))})"]
        for f, d in ((0, D0), (1, D1)):
            L.append(f"v_mfma_f32_16x16x32_bf16 {v(d,4)}, {v(KR+8*(j%3)+4*f,4)}, {v(SC+8*j,4)}, {'0' if j==0 else v(d,4)}")
        return L
    for j in range(9):
        regs = [SC+4*t+r for t in (2*j, 2*j+1) if t in tiles for r in range(4)]
        for r in regs: A(f"v_fma_f32 {v(r)}, {v(r)}, {s(S_C)}, -{v(m)}")
        if j > 0:
            for l in pv(j-1): A(l)
            if j+2 < 9: vrd(j+2)
        for r in regs: A(f"v_exp_f32 {v(r)}, {v(r)}")
        if len(regs) == 4: A("s_nop 0")
        for i in range(4):
            t = 2*j + (i >> 1)
            if t in tiles: A(f"v_cvt_pk_bf16_f32 {v(SC+8*j+i)}, {v(SC+8*j+2*i)}, {v(SC+8*j+2*i+1)}")
            else: A(f"v_mov_b32 {v(SC+8*j+i)}, 0")
    A("s_nop 1")
    for l in pv(8): A(l)
    A("s_nop 7")
    A(f"v_mov_b32 {v(m)}, {v(D1)}"); A(f"v_mov_b32 {v(t1)}, {v(D1)}"); A("s_nop 1")
    A(f"v_permlane16_swap_b32 {v(m)}, {v(t1)}")
    A(f"v_rcp_f32 {v(t1)}, {v(t1)}")
    A("s_nop 0")
    for i in range(8): A(f"v_mul_f32 {v(D0+i)}, {v(D0+i)}, {v(t1)}")
    for i in range(4): A(f"v_cvt_pk_bf16_f32 {v(D0+i)}, {v(D0+2*i)}, {v(D0+2*i+1)}")
    A(f"buffer_store_dwordx2 {v(D0,2)}, {v(V_O0)}, {s(S_WS,4)}, {s(S_OD)} offen sc0 sc1")
    A(f"s_mov_b64 exec, {s(S_MG0,2)}")
    A(f"buffer_store_dwordx2 {v(D0+2,2)}, {v(V_O0)}, {s(S_WS,4)}, {s(S_OD)} offen offset:32 sc0 sc1")
    A("s_mov_b64 exec, -1")

def role_b(A, flags=False):
    A.c("================ role B ================")
    A(f"s_load_dwordx2 {s(S_W1,2)}, s[0:1], {KA['wqkv']}")
    A(f"s_load_dwordx2 {s(S_X,2)}, s[0:1], {KA['B_x']}")
    n_, g_, t_, u_ = T0, T0+1, T0+2, T0+3
    A(f"v_and_b32 {v(t_)}, 31, {v(V_LANE)}")
    A(f"v_lshlrev_b32 {v(u_)}, 2, {v(t_)}")
    A(f"v_mov_b32 v10, 0x7ffffff0")
    for lo, add in ((24, 2560-96), (22, None), (20, 2560+32-80), (18, 1280+32-72), (16, 32-64), (8, 1280-32), (0, 0)):
        pass
    A(f"v_add_u32 v11, {2560-96}, {v(u_)}")
    for hi, add in ((24, None), (22, 2560+32-80), (20, 1280+32-72), (18, 32-64), (16, 1280-32), (8, 0)):
        if add is None: A(f"v_mov_b32 v12, v10")
        else: A(f"v_add_u32 v12, {add & 0xffffffff}, {v(u_)}")
        A(f"v_cmp_gt_u32 vcc, {hi}, {v(t_)}")
        A("s_nop 1")
        A(f"v_cndmask_b32 v11, v11, v12, vcc")
    A(f"v_lshrrev_b32 v12, 5, {v(V_LANE)}")
    A(f"v_mul_u32_u24 v12, 3840, v12")
    A(f"v_add_u32 v11, v11, v12")
    A(f"s_mul_i32 s30, {s(S_HEAD)}, 40")
    A(f"s_mul_i32 s31, {s(S_WAVE)}, {160*3840}")
    A(f"s_add_u32 s30, s30, s31")
    A(f"s_mul_i32 s31, {s(S_WAVE)}, {160*128}")
    A("s_waitcnt lgkmcnt(0)")
    srd_finish(A, S_W1, 640*1920*2); srd_finish(A, S_X, X_BYTES)
    lp = A.newlabel("B_wl")
    A("s_mov_b32 s32, 0")
    A.label(lp)
    for j in range(8):
        A(f"s_add_u32 m0, s31, {j*256}")
        A(f"s_add_u32 s33, s30, {j*2*3840}")
        A(f"buffer_load_dword v11, {s(S_W1,4)}, s33 offen lds")
    A("s_waitcnt vmcnt(40)")
    A(f"s_add_u32 s31, s31, 2048"); A(f"s_add_u32 s30, s30, {16*3840}")
    A("s_add_u32 s32, s32, 1"); A("s_cmp_lt_u32 s32, 10"); A(f"s_cbranch_scc1 {lp}")
    A(f"v_and_b32 {v(n_)}, 15, {v(V_LANE)}")
    A(f"v_lshrrev_b32 {v(g_)}, 4, {v(V_LANE)}")
    A(f"v_bfe_u32 {v(t_)}, {v(V_LANE)}, 2, 2")
    A(f"v_lshl_add_u32 {v(t_)}, {v(g_)}, 3, {v(t_)}")
    A(f"v_and_b32 {v(u_)}, 3, {v(V_LANE)}")
    A(f"v_lshlrev_b32 {v(u_)}, 3, {v(u_)}")
    A(f"v_lshl_add_u32 v10, {v(t_)}, 7, {v(u_)}")
    A(f"s_lshl_b32 {s(S_T)}, {s(S_WAVE)}, 5")
    A(f"v_add_u32 v10, {s(S_T)}, v10")
    A(f"v_add_u32 v12, 40960, v10")
    A("s_waitcnt vmcnt(0)")
    A("s_barrier")
    for k in range(20):
        for h in range(2):
            A(f"ds_read_b64_tr_b16 {a(4*k+2*h,2)}, {'v10' if k < 10 else 'v12'} offset:{(k%10)*4096 + h*512}")
        if k % 6 == 5: A("s_waitcnt lgkmcnt(0)")
    A("s_waitcnt lgkmcnt(0)")
    A("s_barrier")
    if flags: init_sync(A)
    kv.setup_x_stream(A)
    A(f"s_mov_b32 {s(S_XOFF)}, 0")
    kv.XSRD = S_X; kv.XFL = ""
    kv.issue_x(A, 0)
    A(f"v_lshlrev_b32 {v(V_L16)}, 4, {v(V_LANE)}")
    for i in range(12): A(f"v_mov_b32 {v(SC+i)}, 0")
    A(f"v_cmp_eq_u32 vcc, 1, {v(g_)}")
    A(f"v_mov_b32 {v(t_)}, 0xf149")
    A(f"v_mov_b32 {v(u_)}, 0x3f80")
    A(f"v_cndmask_b32 {v(SC+2)}, 0, {v(t_)}, vcc")
    A(f"v_cndmask_b32 {v(SC+14)}, 0, {v(u_)}, vcc")
    A(f"v_mov_b32 {v(SC+12)}, 0"); A(f"v_mov_b32 {v(SC+13)}, 0"); A(f"v_mov_b32 {v(SC+15)}, 0")
    A(f"v_and_b32 {v(t_)}, 3, {v(n_)}")
    A(f"v_cmp_eq_u32 vcc, 0, {v(t_)}")
    A(f"v_cmp_lt_u32 {s(S_MG0,2)}, 3, {v(n_)}")
    A(f"v_mov_b32 {v(u_)}, 0x3f803f80")
    A(f"s_and_b64 vcc, vcc, {s(S_MG0,2)}")
    A("s_nop 1")
    for i in range(4): A(f"v_cndmask_b32 {v(SC+8+i)}, 0, {v(u_)}, vcc")
    A(f"s_mul_i32 {s(S_T)}, {s(S_WAVE)}, {3*4096}")
    A(f"s_add_u32 {s(S_T)}, {s(S_T)}, {L_RING}")
    A(f"v_add_u32 {v(t_)}, {s(S_T)}, {v(V_L16)}")
    for b in range(3):
        A(f"ds_write_b128 {v(t_)}, {v(SC,4)} offset:{b*4096}")
        A(f"ds_write_b128 {v(t_)}, {v(SC,4)} offset:{b*4096+1024}")
        A(f"ds_write_b128 {v(t_)}, {v(SC+4,4)} offset:{b*4096+2048}")
        A(f"ds_write_b128 {v(t_)}, {v(SC+8,4)} offset:{b*4096+3072}")
    A(f"s_lshl_b32 {s(S_T)}, {s(S_WAVE)}, 10")
    A(f"s_add_u32 {s(S_T)}, {s(S_T)}, {L_QB}")
    A(f"v_add_u32 {v(V_BB+10)}, {s(S_T)}, {v(V_L16)}")
    A(f"ds_write_b128 {v(V_BB+10)}, {v(SC+12,4)}")
    A(f"v_add_u32 {v(V_BB+9)}, {L_RING}, {v(V_L16)}")
    A(f"s_mov_b64 {s(S_MG0,2)}, 0xffff")
    A(f"s_mov_b32 {s(S_MG2)}, 0"); A(f"s_mov_b32 {s(S_MG2+1)}, 0xffff")
    A(f"s_mov_b32 {s(S_MN2)}, -1"); A(f"s_mov_b32 {s(S_MN2+1)}, 0xffff0000")
    A(f"v_lshlrev_b32 {v(t_)}, 2, {v(g_)}")
    A(f"v_mov_b32 {v(u_)}, {f32bits(-1e30)}")
    for r in range(4):
        A(f"v_add_u32 v10, {r}, {v(t_)}")
        A(f"v_cmp_gt_u32 vcc, v10, {v(n_)}")
        A("s_nop 1")
        A(f"v_cndmask_b32 {v(MKC+r)}, 0, {v(u_)}, vcc")
        A(f"v_cndmask_b32 {v(MKW+r)}, {v(u_)}, {v(SC+4)}, vcc")
    A(f"v_lshlrev_b32 v10, 4, {v(n_)}")
    A(f"v_lshrrev_b32 v11, 1, {v(g_)}")
    A(f"v_lshl_add_u32 v10, v11, 8, v10")
    A(f"v_add_u32 v10, 8, v10")
    A(f"s_mov_b32 {s(S_T)}, {L_QB}")
    A(f"s_cmp_eq_u32 {s(S_WAVE)}, 1"); A(f"s_cselect_b32 {s(S_T)}, 0, {s(S_T)}")
    A(f"s_cmp_eq_u32 {s(S_WAVE)}, 3"); A(f"s_cselect_b32 {s(S_T)}, 2048, {s(S_T)}")
    A(f"v_add_u32 {v(V_E0)}, {s(S_T)}, {v(V_L16)}")
    A(f"s_cmp_eq_u32 {s(S_WAVE)}, 2"); A(f"s_cselect_b64 vcc, -1, 0")
    A(f"v_cndmask_b32 {v(V_E0)}, {v(V_E0)}, v10, vcc")
    A(f"v_lshrrev_b32 v10, 2, {v(n_)}")
    A(f"v_lshlrev_b32 v10, 8, v10")
    A(f"v_and_b32 v11, 3, {v(n_)}")
    A(f"v_lshl_add_u32 v10, v11, 1, v10")
    A(f"v_add_u32 {v(V_E1)}, 3072, v10")
    A(f"s_lshl_b32 {s(S_T)}, {s(S_WAVE)}, 4")
    A(f"v_add_u32 v10, {s(S_T)}, {v(n_)}")
    A(f"v_mul_u32_u24 v10, 1280, v10")
    A(f"v_lshl_add_u32 {v(V_O0)}, {v(g_)}, 3, v10")
    A(f"s_mul_i32 {s(S_OD)}, {s(S_HEAD)}, 40")
    A(f"s_add_u32 {s(S_OD)}, {s(S_OD)}, {WS_OB}")
    A(f"s_mov_b32 {s(S_C)}, {f32bits(20**-0.5*math.log2(math.e))}")
    A(f"s_lshl_b32 {s(S_FLO)}, {s(S_HEAD)}, 2")
    A(f"s_add_u32 {s(S_FLO)}, {s(S_FLO)}, {FL_B}")
    A(f"s_mov_b32 {s(S_RB)}, {L_RING}")
    A(f"s_lshr_b32 {s(S_QT)}, {s(S_WAVE)}, 1")
    A(f"s_add_u32 {s(S_QT)}, {s(S_QT)}, 4")
    A(f"s_mov_b32 {s(S_IT)}, 0")
    A("s_waitcnt lgkmcnt(0)")
    loop = A.newlabel("B_loop")
    A.label(loop)
    for blk in range(2):
        A("s_waitcnt vmcnt(0)")
        A("s_barrier")
        for k in range(2): kv.xread(A, blk, k)
        if flags and blk == 0: publish(A, S_IT, S_FLO, vt=T0)
        A(f"s_add_u32 {s(S_XOFF)}, {s(S_XOFF)}, {32*1280}")
        l3 = A.newlabel("B_g3"); l2 = A.newlabel("B_e2"); l1 = A.newlabel("B_e1"); le = A.newlabel("B_ee")
        A(f"s_cmp_eq_u32 {s(S_WAVE)}, 3"); A(f"s_cbranch_scc1 {l3}")
        gemm(A, blk, False)
        A("s_nop 5")
        A(f"s_cmp_eq_u32 {s(S_WAVE)}, 2"); A(f"s_cbranch_scc1 {l2}")
        A(f"s_cmp_eq_u32 {s(S_WAVE)}, 1"); A(f"s_cbranch_scc1 {l1}")
        epilogue(A, blk, 0); A(f"s_branch {le}")
        A.label(l1); epilogue(A, blk, 1); A(f"s_branch {le}")
        A.label(l2); epilogue(A, blk, 2); A(f"s_branch {le}")
        A.label(l3); gemm(A, blk, True); A("s_nop 7"); epilogue(A, blk, 3)
        A.label(le)
        A(f"s_add_u32 {s(S_RB)}, {s(S_RB)}, 4096")
    A(f"s_cmp_eq_u32 {s(S_RB)}, {L_RING+12*4096}")
    A(f"s_cselect_b32 {s(S_RB)}, {L_RING}, {s(S_RB)}")
    A("s_waitcnt lgkmcnt(0)")
    A("s_barrier")
    A(f"s_mov_b32 {s(S_SL)}, {s(S_QT)}")
    lo = A.newlabel("B_odd"); ld = A.newlabel("B_ad")
    A(f"s_bitcmp1_b32 {s(S_WAVE)}, 0"); A(f"s_cbranch_scc1 {lo}")
    attention(A, False); A(f"s_branch {ld}")
    A.label(lo); attention(A, True)
    A.label(ld)
    A(f"s_add_u32 {s(S_QT)}, {s(S_QT)}, 2")
    A(f"s_cmp_ge_u32 {s(S_QT)}, 12")
    A(f"s_cselect_b32 {s(S_T)}, 12, 0")
    A(f"s_sub_u32 {s(S_QT)}, {s(S_QT)}, {s(S_T)}")
    A(f"s_add_u32 {s(S_OD)}, {s(S_OD)}, {64*1280}")
    A(f"s_add_u32 {s(S_IT)}, {s(S_IT)}, 1")
    A(f"s_cmp_lt_u32 {s(S_IT)}, 32")
    A(f"s_cbranch_scc1 {loop}")
    A("s_waitcnt vmcnt(0)")
    if flags:
        A("s_barrier")
        publish(A, S_IT, S_FLO, vt=T0)

S_J = 30; S_OS = 31; S_NEED = 32; S_CNT = 33; S_FB = 34
V_FA = 100; V_FV = 101; V_OS = 102; PK = 104
def role_b3(A, flags=False):
    A.c("================ role B3 ================")
    A(f"s_load_dwordx2 {s(S_W1,2)}, s[0:1], {KA['wo']}")
    A(f"s_load_dwordx2 {s(S_W2,2)}, s[0:1], {KA['out']}")
    A(f"v_lshrrev_b32 v10, 4, {v(V_LANE)}")
    A(f"v_mul_u32_u24 v11, 1280, v10")
    A(f"v_and_b32 v12, 15, {v(V_LANE)}")
    A(f"v_lshl_add_u32 v11, v12, 4, v11")
    A(f"s_lshl_b32 s35, {s(S_J)}, 8")
    A(f"s_mul_i32 s36, {s(S_WAVE)}, {160*1280}")
    A(f"s_add_u32 s35, s35, s36")
    A(f"s_mul_i32 s36, {s(S_WAVE)}, {160*256}")
    A("s_waitcnt lgkmcnt(0)")
    srd_finish(A, S_W1, 640*640*2); srd_finish(A, S_W2, 2048*1280*2)
    for j in range(40):
        A(f"s_add_u32 m0, s36, {j*1024}")
        A(f"s_add_u32 s37, s35, {j*4*1280}")
        A(f"buffer_load_dwordx4 v11, {s(S_W1,4)}, s37 offen lds")
    A(f"v_bfe_u32 v13, {v(V_LANE)}, 2, 2")
    A(f"v_lshl_add_u32 v13, v10, 3, v13")
    A(f"v_and_b32 v14, 3, {v(V_LANE)}")
    A(f"v_lshlrev_b32 v14, 3, v14")
    A(f"v_lshl_add_u32 v13, v13, 8, v14")
    A(f"s_lshl_b32 {s(S_T)}, {s(S_WAVE)}, 6")
    A(f"v_add_u32 v13, {s(S_T)}, v13")
    A("s_waitcnt vmcnt(0)")
    A("s_barrier")
    for k in range(20):
        if k and k % 7 == 0: A(f"v_add_u32 v13, {7*8192}, v13")
        for t in range(2):
            for h in range(2):
                A(f"ds_read_b64_tr_b16 {a((t*20+k)*4+2*h,2)}, v13 offset:{(k%7)*8192 + h*1024 + t*32}")
        if k % 3 == 2: A("s_waitcnt lgkmcnt(0)")
    A("s_waitcnt lgkmcnt(0)")
    A("s_barrier")
    if flags: init_sync(A)
    kv.setup_x_stream(A)
    A(f"v_mul_u32_u24 {v(V_OS)}, 2560, v12")
    A(f"v_and_b32 v13, 1, v10")
    A(f"v_lshl_add_u32 {v(V_OS)}, v13, 5, {v(V_OS)}")
    A(f"v_lshrrev_b32 v13, 1, v10")
    A(f"v_lshl_add_u32 {v(V_OS)}, v13, 4, {v(V_OS)}")
    A(f"s_lshl_b32 {s(S_OS)}, {s(S_J)}, 8")
    A(f"s_lshl_b32 {s(S_T)}, {s(S_WAVE)}, 6")
    A(f"s_add_u32 {s(S_OS)}, {s(S_OS)}, {s(S_T)}")
    A(f"s_add_u32 {s(S_OS)}, {s(S_OS)}, 1280")
    A(f"v_and_b32 {v(V_FA)}, 31, {v(V_LANE)}")
    A(f"v_lshlrev_b32 {v(V_FA)}, 2, {v(V_FA)}")
    A(f"v_mov_b32 {v(V_FV)}, 0")
    A(f"s_mov_b32 {s(S_FB)}, {FL_B}")
    A(f"s_mov_b32 {s(S_XOFF)}, {WS_OB}")
    A(f"s_mov_b32 {s(S_SEG)}, 0")
    kv.XSRD = S_WS; kv.XFL = "sc1"
    def fw():
        if flags: flag_wait(A, V_FV, V_FA, S_FB, S_NEED, S_T, S_CNT)
    A(f"s_mov_b32 {s(S_NEED)}, 1")
    fw()
    kv.issue_x(A, 0)
    loop = A.newlabel("B3_loop")
    A.label(loop)
    for par in range(2):
        A("s_waitcnt vmcnt(0)")
        A("s_barrier")
        for k in range(2): kv.xread(A, par, k)
        A(f"s_add_u32 {s(S_XOFF)}, {s(S_XOFF)}, {32*1280}")
        if par == 1:
            A(f"s_add_u32 {s(S_NEED)}, {s(S_NEED)}, 1")
            A(f"s_min_u32 {s(S_NEED)}, {s(S_NEED)}, 32")
            fw()
        for k in range(20):
            if k < 10: A(f"s_add_u32 m0, {s(S_M0X)}, {(1-par)*40960 + k*1024 - k*128}")
            if k+2 < 20:
                kv.xread(A, par, k+2); A("s_waitcnt lgkmcnt(4)")
            else: A(f"s_waitcnt lgkmcnt({2*(19-k)})")
            for t in range(2):
                for tau in range(2):
                    acc = v(ACC+8*tau+4*t,4)
                    A(f"v_mfma_f32_16x16x32_bf16 {acc}, {a((t*20+k)*4,4)}, {v(XF+(k%3)*8+tau*4,4)}, {'0' if k==0 else acc}")
                if k < 10 and t == 0: A(f"buffer_load_dwordx4 {v(V_XSRC)}, {s(S_WS,4)}, {s(S_XOFF)} offen offset:{k*128} sc1 lds")
        A("s_nop 4")
        for tau in range(2):
            for i in range(4): A(f"v_cvt_pk_bf16_f32 {v(PK+4*tau+i)}, {v(ACC+8*tau+2*i)}, {v(ACC+8*tau+2*i+1)}")
        A(f"s_add_u32 {s(S_T)}, {s(S_OS)}, {16*2560}")
        for tau in range(2):
            A(f"v_permlane16_swap_b32 {v(PK+4*tau)}, {v(PK+4*tau+2)}")
            A(f"v_permlane16_swap_b32 {v(PK+4*tau+1)}, {v(PK+4*tau+3)}")
            A(f"buffer_store_dwordx4 {v(PK+4*tau,4)}, {v(V_OS)}, {s(S_W2,4)}, {s(S_OS if tau == 0 else S_T)} offen")
        A(f"s_add_u32 {s(S_OS)}, {s(S_OS)}, {32*2560}")
        A(f"s_add_u32 {s(S_SEG)}, {s(S_SEG)}, 1")
    A(f"s_cmp_lt_u32 {s(S_SEG)}, {NSEG}")
    A(f"s_cbranch_scc1 {loop}")
    A("s_waitcnt vmcnt(0)")
    kv.XSRD = S_X; kv.XFL = ""
```

```python
from common import *
from sched import *
from role_kv import load_w_rows384
from role_u import load_wo
import math, struct
STAMP = False
DELAY0 = 3
PBMODE = 0
DELAYL = 0
DROP = 0
DELAYLV = 0
ZPRE = 1
DELAYZV = 2
DELAYZS = 2
PBSTEP = 4
VCAP = 2
DELAYBS = 0
TSTEP = 30
ORDER = 1
DELAYB = 0
NSTEP = 64

def f32bits(x): return struct.unpack("<I", struct.pack("<f", x))[0]

S_STEP=22; S_GRP=23; S_C=24; S_FAST=25; S_T=26; S_T2=27; S_CNT=28; S_DEAD=29
S_Z=30; S_ZN=31; S_P=32; S_PN=33; S_L=34; S_LN=35; S_RR=36; S_RW=37; S_US=38; S_US2=39
S_KS=44; S_EXP=45; S_OLO=46; S_OHI=47; S_SC=48; S_KD=49
S_MA=50; S_MB=52
S_MU=54; S_MK=55; S_FLO=56; S_FLI=57; S_T3=58; S_T4=43; S_PST=59; S_PSM=60; S_PLX=61; S_PLM=62; S_ZL=63; S_ZL2=64; S_EXN=67; S_M3=68; S_G3=65
S_TS=70
V_ZERO=0; V_IDX=2; V_L16=3; V_HI=4; V_WL=5; V_PW=6; V_T7=7; V_TRA=8; V_TRB=18; V_PLD=10; V_PM=11
V_FINR=12; V_TW=13; V_FINRM=14; V_UR=15; V_RW=16; V_KR=17; V_UH=17; V_UHR=18; V_GA=19
AF=20; ACC=60; TMP=76; XS=100; V_POI=120; V_ZH=124; V_NEED=124; V_ZS4=125; V_FLA=125; V_ZS2=126; V_FL=127
V_NEEDV=110; V_FLAV=111; V_G3W=9
L_MEM=98304; HI=L_MEM
S_LK=108544; S_LU=133120; S_LQ=149504; S_LKM=152576; S_LRED=155648; S_LSX=159744
V_LU=108544; V_LVX=133120; V_LRED=136192

ORD_S = [t*10+k for k in range(10) for t in range(2)] + list(range(20,40)) + [t*10+k for k in range(10) for t in (4,5)]
ORD_V = [t*10+k for k in range(10) for t in (0,1)] + list(range(20,60))
CUR_ORD = ORD_S
def wfrag(f):
    p = CUR_ORD.index(f)
    if p % 5 == 4: return ("lds", p//5)
    r = p - p//5
    return ("reg", 256 + 8*r if r < 32 else 128 + 8*(r-32))
def wdest(f, q):
    kind, x = wfrag(f)
    return reg(x + 2*q, 2) if kind == "reg" else v(AF + 8*x + 2*q, 2)

STUBS = []
def dual_text(A, lines):
    sl = A.newlabel("ds_s"); en = A.newlabel("ds_e")
    STUBS.append([sl + ":"] + [l + (" sc0 sc1" if l.startswith("buffer_store") else "") for l in lines] + [f"s_branch {en}"])
    return "\n".join([f"s_cmp_eq_u32 {s(S_FAST)}, 0", f"s_cbranch_scc1 {sl}"] + lines + [en + ":"])
def dual(A, lines): A(dual_text(A, lines))
def flush_stubs(A):
    for st in STUBS:
        for l in st: A(l)
    STUBS.clear()

def tick(A, k):
    if not STAMP or STAMP == 3: return
    if STAMP == 2:
        A(f"s_memrealtime {s(88,2)}")
        A("s_waitcnt lgkmcnt(0)")
        A(f"s_cmp_eq_u32 {s(S_STEP)}, {TSTEP + (1 if k >= 4 else 0)}")
        A(f"s_cselect_b32 {s(S_TS+k)}, {s(88)}, {s(S_TS+k)}")
        return
    A(f"s_memtime {s(88,2)}")
    A("s_waitcnt lgkmcnt(0)")
    A(f"s_sub_u32 {s(87)}, {s(88)}, {s(86)}")
    A(f"s_add_u32 {s(S_TS+k)}, {s(S_TS+k)}, {s(87)}")
    A(f"s_mov_b32 {s(86)}, {s(88)}")

def retry(A, lab, ctr=15):
    rt = A.newlabel("rt"); ok = A.newlabel("ok")
    A(f"s_cbranch_vccnz {rt}")
    A.label(ok)
    STUBS.append([rt + ":"] + ([f"s_add_u32 {s(S_TS+ctr)}, {s(S_TS+ctr)}, 1"] if STAMP else []) +
                 [f"s_sub_u32 {s(S_CNT)}, {s(S_CNT)}, 1", f"s_cbranch_scc0 {lab}", f"s_mov_b32 {s(S_CNT)}, 0", f"s_branch {ok}"])

def maxtree(regs_, t):
    L = []; r = list(regs_)
    L.append(f"v_max3_u32 {v(t)}, {v(r[0])}, {v(r[1])}, {v(r[2])}"); r = r[3:]
    while len(r) >= 2:
        L.append(f"v_max3_u32 {v(t)}, {v(t)}, {v(r[0])}, {v(r[1])}"); r = r[2:]
    if r: L.append(f"v_max_u32 {v(t)}, {v(t)}, {v(r[0])}")
    return L

def post(sa, out=None):
    o = sa if out is None else out
    return [f"v_add_f32 {v(sa)}, {v(sa)}, {v(sa+1)}", f"v_add_f32 {v(sa+2)}, {v(sa+2)}, {v(sa+3)}",
            f"v_cvt_pk_bf16_f32 {v(o)}, {v(sa)}, {v(sa+2)}"]
def post_s(sa, off, tag):
    return post(sa) + [ds(tag, f"ds_write_b32 {v(V_PW)}, {v(sa)} offset:{off}")]
def post_v(sa, off, tag):
    return post(sa) + [ds(tag, f"ds_write_b16 {v(V_PW)}, {v(sa)} offset:{off}"), ds(tag, f"ds_write_b16_d16_hi {v(V_PW)}, {v(sa)} offset:{off+4}")]
def zero(sa): return [f"v_mov_b64 {v(sa,2)}, 0", f"v_mov_b64 {v(sa+2,2)}, 0"]
def wl_read(j):
    r = TMP + 8*(j % 3)
    return [ds(f"W{j}", f"ds_read_b128 {v(r,4)}, {v(V_WL)} offset:{j*2048}"),
            ds(f"W{j}", f"ds_read_b128 {v(r+4,4)}, {v(V_WL)} offset:{j*2048+1024}")]
def smf(f, acc, afrag):
    kind, x = wfrag(f)
    it = []
    if kind == "lds":
        it.append(need(f"W{x}")); b = v(TMP + 8*(x % 3), 8)
    else: b = reg(x, 8)
    it.append(f"v_smfmac_f32_16x16x64_bf16 {v(acc,4)}, {v(afrag,4)}, {b}, {v(V_IDX)}")
    return it
def refill_tasks():
    return [[5*j+4, 5*(j+3)+4-5, wl_read(j+3)] for j in range(9)]

def setup_common(A, isV):
    LU = V_LU if isV else S_LU; LRED = V_LRED if isV else S_LRED
    t0, t1, t2 = 112, 113, 114
    A(f"v_mov_b32 {v(V_ZERO)}, 0")
    A(f"v_and_b32 {v(t0)}, 15, {v(V_LANE)}")
    A(f"v_lshrrev_b32 {v(t1)}, 4, {v(V_LANE)}")
    A(f"v_mov_b32 {v(V_IDX)}, 0x4444")
    A(f"v_mov_b32 {v(t2)}, 0xeeee")
    A(f"v_and_b32 {v(V_L16)}, 1, {v(V_LANE)}")
    A(f"v_cmp_eq_u32 vcc, 1, {v(V_L16)}")
    A("s_nop 1")
    A(f"v_cndmask_b32 {v(V_IDX)}, {v(V_IDX)}, {v(t2)}, vcc")
    A(f"v_lshlrev_b32 {v(V_L16)}, 4, {v(V_LANE)}")
    A(f"v_add_u32 {v(V_HI)}, {HI}, {v(V_L16)}")
    A(f"s_mul_i32 {s(S_T)}, {s(S_WAVE)}, 24576")
    A(f"v_add_u32 {v(V_WL)}, {s(S_T)}, {v(V_L16)}")
    if isV:
        A(f"v_and_b32 {v(t2)}, 7, {v(t0)}")
        A(f"v_lshlrev_b32 {v(t2)}, 5, {v(t2)}")
        A(f"v_lshl_add_u32 {v(t2)}, {v(t1)}, 3, {v(t2)}")
        A(f"v_lshrrev_b32 {v(V_PW)}, 3, {v(t0)}")
        A(f"v_lshl_add_u32 {v(t2)}, {v(V_PW)}, 1, {v(t2)}")
    else:
        A(f"v_lshlrev_b32 {v(t2)}, 2, {v(t1)}")
        A(f"v_lshl_add_u32 {v(t2)}, {v(t0)}, 4, {v(t2)}")
    A(f"s_mul_i32 {s(S_T)}, {s(S_WAVE)}, 768")
    A(f"s_add_u32 {s(S_T)}, {s(S_T)}, {V_LVX if isV else S_LQ}")
    A(f"v_add_u32 {v(V_PW)}, {s(S_T)}, {v(t2)}")
    A(f"v_and_b32 {v(t2)}, 7, {v(t0)}")
    A(f"v_lshl_add_u32 {v(V_PLD)}, {v(t1)}, 3, {v(t2)}")
    A(f"v_lshlrev_b32 {v(V_PLD)}, 4, {v(V_PLD)}")
    A(f"v_lshl_add_u32 {v(V_FINR)}, {v(t1)}, 4, {v(t2)}")
    A(f"v_lshlrev_b32 {v(V_FINR)}, 4, {v(V_FINR)}")
    if isV:
        A(f"s_and_b32 {s(S_T)}, {s(S_C)}, 1")
        A(f"s_lshl_b32 {s(S_T)}, {s(S_T)}, 7")
        A(f"v_add_u32 {v(V_ZH)}, {s(S_T)}, {v(V_FINR)}")
        A(f"v_lshrrev_b32 {v(V_UH)}, 3, {v(t0)}")
        A(f"v_lshl_add_u32 {v(V_UH)}, {v(V_UH)}, 10, {v(V_ZH)}")
        A(f"s_mul_i32 {s(S_T)}, {s(S_WAVE)}, 6144")
        A(f"s_add_u32 {s(S_T)}, {s(S_T)}, {LU+4096}")
        A(f"v_add_u32 {v(V_UHR)}, {s(S_T)}, {v(V_FINR)}")
        A(f"v_lshrrev_b32 {v(V_RW)}, 3, {v(t0)}")
        A(f"v_lshl_add_u32 {v(V_FINR)}, {v(V_RW)}, 10, {v(V_FINR)}")
    A(f"v_add_u32 {v(V_FINR)}, {LRED}, {v(V_FINR)}")
    A(f"s_mul_i32 {s(S_MU)}, {s(S_WAVE)}, {6144 if isV else 4096}")
    A(f"s_add_u32 {s(S_MU)}, {s(S_MU)}, {LU}")
    A(f"v_add_u32 {v(V_UR)}, {s(S_MU)}, {v(V_L16)}")
    if isV:
        A(f"s_mul_i32 {s(S_T)}, {s(S_WAVE)}, 2048")
        A(f"s_add_u32 {s(S_T)}, {s(S_T)}, {LRED}")
        A(f"v_add_u32 {v(V_RW)}, {s(S_T)}, {v(V_L16)}")
    A(f"v_lshrrev_b32 {v(V_FINRM)}, 1, {v(t1)}")
    A(f"s_lshl_b32 {s(S_T)}, {s(S_C)}, 1")
    A(f"v_add_u32 {v(V_FINRM)}, {s(S_T)}, {v(V_FINRM)}")
    if isV:
        A(f"s_add_u32 {s(S_T)}, {s(S_C)}, {64-16}")
        A(f"v_mov_b32 {v(V_TW)}, {s(S_T)}")
        A(f"v_cmp_lt_u32 vcc, 7, {v(t0)}")
        A("s_nop 1")
        A(f"v_cndmask_b32 {v(V_FINRM)}, {v(V_FINRM)}, {v(V_TW)}, vcc")
        A(f"v_lshrrev_b32 {v(V_TW)}, 3, {v(t0)}")
        A(f"v_lshl_add_u32 {v(V_TW)}, {v(V_TW)}, 9, {v(V_PLD)}")
    A(f"v_lshlrev_b32 {v(V_FINRM)}, 7, {v(V_FINRM)}")
    A(f"v_lshl_add_u32 {v(V_FINRM)}, {v(t2)}, 4, {v(V_FINRM)}")
    A(f"v_and_b32 {v(t2)}, 1, {v(t1)}")
    A(f"v_lshl_add_u32 {v(V_FINRM)}, {v(t2)}, 3, {v(V_FINRM)}")
    A(f"s_mov_b32 {s(S_MA)}, 0x00ff00ff")
    A(f"s_mov_b32 {s(S_MA+1)}, 0x00ff00ff")
    A(f"s_mov_b32 {s(S_MB)}, {'0xffffffff' if isV else '0x00ff00ff'}")
    A(f"s_mov_b32 {s(S_MB+1)}, {'0x00ff00ff' if isV else '0'}")
    A(f"s_lshl_b32 {s(S_T)}, {s(S_WAVE)}, 10")
    A(f"v_add_u32 {v(V_T7)}, {s(S_T)}, {v(V_L16)}")
    if not isV: A(f"v_add_u32 {v(126)}, {HI}, {v(V_T7)}")
    A(f"s_lshr_b32 {s(S_G3)}, {s(S_WAVE)}, 1")
    A(f"s_add_u32 {s(S_G3)}, {s(S_G3)}, 8")
    A(f"s_sub_u32 {s(S_G3)}, {s(S_G3)}, {s(S_WAVE)}")
    A(f"s_lshl_b32 {s(S_G3)}, {s(S_G3)}, 10")
    A(f"s_and_b32 {s(S_T2)}, {s(S_WAVE)}, 1")
    A(f"s_sub_u32 {s(S_M3)}, {s(S_T2)}, 1")
    A(f"s_sub_u32 {s(S_M3+1)}, 0, {s(S_T2)}")
    A(f"v_and_b32 {v(V_GA)}, 7, {v(V_LANE)}")
    A(f"v_lshlrev_b32 {v(V_GA)}, 5, {v(V_GA)}")
    A(f"v_lshl_add_u32 {v(V_GA)}, {v(t1)}, 8, {v(V_GA)}")
    A(f"v_bfe_u32 {v(115)}, {v(V_LANE)}, 3, 1")
    A(f"v_lshl_add_u32 {v(V_GA)}, {v(115)}, 4, {v(V_GA)}")
    A(f"s_add_u32 {s(S_T)}, {s(S_T)}, {HI}")
    A(f"v_add_u32 {v(V_GA)}, {s(S_T)}, {v(V_GA)}")
    A(f"v_add_u32 {v(V_G3W)}, {s(S_G3)}, {v(V_GA)}")
    for i in range(4): A(f"v_mov_b32 {v(V_POI+i)}, -1")
    r_, c_ = 115, 116
    A(f"v_bfe_u32 {v(r_)}, {v(V_LANE)}, 2, 2")
    A(f"v_and_b32 {v(c_)}, 1, {v(V_LANE)}")
    A(f"v_lshlrev_b32 {v(c_)}, 3, {v(c_)}")
    if not isV:
        A(f"v_add_u32 {v(c_)}, {S_LQ}, {v(c_)}")
        A(f"v_lshl_add_u32 {v(V_TRA)}, {v(t1)}, 2, {v(r_)}")
        A(f"v_lshl_add_u32 {v(V_TRA)}, {v(V_TRA)}, 4, {v(c_)}")
        A(f"v_lshrrev_b32 {v(t2)}, 1, {v(t1)}")
        A(f"v_mul_u32_u24 {v(t2)}, 48, {v(t2)}")
        A(f"v_and_b32 {v(V_TRB)}, 1, {v(t1)}")
        A(f"v_lshl_add_u32 {v(V_TRB)}, {v(V_TRB)}, 3, {v(t2)}")
        A(f"v_add_u32 {v(V_TRB)}, {v(V_TRB)}, {v(r_)}")
        A(f"v_lshl_add_u32 {v(V_TRB)}, {v(V_TRB)}, 4, {v(c_)}")
        A(f"v_lshlrev_b32 {v(V_PM)}, 4, {v(t0)}")
        A(f"v_lshl_add_u32 {v(V_PM)}, {v(t1)}, 3, {v(V_PM)}")
        A(f"s_sub_u32 {s(S_T)}, {s(S_WAVE)}, 1")
        A(f"s_and_b32 {s(S_T)}, {s(S_T)}, 3")
        A(f"s_mul_i32 {s(S_T2)}, {s(S_T)}, 6144")
        A(f"s_add_u32 {s(S_T2)}, {s(S_T2)}, {S_LK}")
        A(f"v_add_u32 {v(V_KR)}, {s(S_T2)}, {v(V_L16)}")
        A(f"s_mov_b32 {s(S_KD)}, 12288")
        A(f"s_mul_i32 {s(S_MK)}, {s(S_WAVE)}, 3072")
        A(f"s_mul_i32 {s(S_KS)}, {s(S_HEAD)}, 12288")
        A(f"s_add_u32 {s(S_KS)}, {s(S_KS)}, {s(S_MK)}")
        A(f"s_add_u32 {s(S_KS)}, {s(S_KS)}, {WS_K}")
        A(f"s_add_u32 {s(S_MK)}, {s(S_MK)}, {S_LK}")
        A(f"s_lshr_b32 {s(S_PST)}, {s(S_HEAD)}, 1")
        A(f"s_lshl_b32 {s(S_PST)}, {s(S_PST)}, 10")
        A(f"s_and_b32 {s(S_PSM)}, {s(S_HEAD)}, 1")
        A(f"s_lshl_b32 {s(S_PSM)}, {s(S_PSM)}, 7")
        A(f"s_add_u32 {s(S_PST)}, {s(S_PST)}, {s(S_PSM)}")
        A(f"s_lshl_b32 {s(S_PSM)}, {s(S_HEAD)}, 7")
        A(f"s_add_u32 {s(S_PSM)}, {s(S_PSM)}, 16384")
    else:
        A(f"v_lshl_add_u32 {v(t2)}, {v(t1)}, 3, {v(r_)}")
        A(f"v_and_b32 {v(c_)}, 3, {v(V_LANE)}")
        A(f"v_lshlrev_b32 {v(c_)}, 3, {v(c_)}")
        A(f"v_lshl_add_u32 {v(V_TRA)}, {v(t2)}, 5, {v(c_)}")
        A(f"v_add_u32 {v(V_TRA)}, {V_LVX}, {v(V_TRA)}")
        A(f"v_lshlrev_b32 {v(V_ZS4)}, 13, {v(t1)}")
        A(f"v_and_b32 {v(t2)}, 1, {v(t1)}")
        A(f"v_lshlrev_b32 {v(V_ZS2)}, 13, {v(t2)}")
        A(f"v_lshrrev_b32 {v(t2)}, 1, {v(t1)}")
        A(f"v_lshl_add_u32 {v(V_ZS2)}, {v(t2)}, 3, {v(V_ZS2)}")
        A(f"s_mul_i32 {s(S_T)}, {s(S_WAVE)}, {10*8192}")
        A(f"s_lshl_b32 {s(S_T2)}, {s(S_HEAD)}, 8")
        A(f"s_add_u32 {s(S_T)}, {s(S_T)}, {s(S_T2)}")
        A(f"v_lshl_add_u32 {v(t2)}, {v(t0)}, 4, {s(S_T)}")
        A(f"v_add_u32 {v(V_ZS4)}, {v(V_ZS4)}, {v(t2)}")
        A(f"v_add_u32 {v(V_ZS2)}, {v(V_ZS2)}, {v(t2)}")
        A(f"v_add_u32 {v(V_ZS2)}, {8*8192}, {v(V_ZS2)}")
    A(f"s_mov_b32 {s(S_Z)}, {MB_Z}")
    A(f"s_mov_b32 {s(S_ZN)}, {MB_Z+327680}")
    A(f"s_mov_b32 {s(S_P)}, {MB_P}")
    A(f"s_mov_b32 {s(S_PN)}, {MB_P+20480}")
    A(f"s_mul_i32 {s(S_T)}, {s(S_GRP)}, 10240")
    A(f"s_add_u32 {s(S_L)}, {s(S_T)}, {MB_L}")
    A(f"s_add_u32 {s(S_LN)}, {s(S_T)}, {MB_L+20480}")
    if isV:
        A(f"s_mul_i32 {s(S_T2)}, {s(S_C)}, 768")
        A(f"s_add_u32 {s(S_T2)}, {s(S_T2)}, {MB_R + 8192 - 16*768}")
    else:
        A(f"s_mul_i32 {s(S_T2)}, {s(S_C)}, 512")
        A(f"s_add_u32 {s(S_T2)}, {s(S_T2)}, {MB_R}")
    A(f"s_mul_i32 {s(S_T)}, {s(S_GRP)}, 20480")
    A(f"s_add_u32 {s(S_RW)}, {s(S_T2)}, {s(S_T)}")
    A(f"s_add_u32 {s(S_RR)}, {s(S_T2)}, 20480")
    A(f"s_sub_u32 {s(S_RR)}, {s(S_RR)}, {s(S_T)}")
    A(f"s_lshl_b32 {s(S_T)}, {s(S_GRP)}, 2")
    A(f"s_add_u32 {s(S_T)}, {s(S_T)}, {s(S_WAVE)}")
    A(f"s_lshl_b32 {s(S_PLX)}, {s(S_T)}, 11")
    A(f"s_lshl_b32 {s(S_PLM)}, {s(S_T)}, 9")
    A(f"s_add_u32 {s(S_PLM)}, {s(S_PLM)}, 16384")
    A(f"s_lshl_b32 {s(S_ZL)}, {s(S_T)}, 10")
    A(f"s_lshl_b32 {s(S_US)}, {s(S_T)}, 12")
    A(f"s_add_u32 {s(S_US)}, {s(S_US)}, {WS_U}")
    if isV:
        A(f"s_sub_u32 {s(S_T2)}, {s(S_C)}, 16")
        A(f"s_lshr_b32 {s(S_T2)}, {s(S_T2)}, 1")
        A(f"s_add_u32 {s(S_T2)}, {s(S_T2)}, 32")
        A(f"s_lshl_b32 {s(S_T3)}, {s(S_T2)}, 13")
        A(f"s_add_u32 {s(S_ZL2)}, {s(S_ZL)}, {s(S_T3)}")
        A(f"s_lshl_b32 {s(S_T3)}, {s(S_T2)}, 15")
        A(f"s_add_u32 {s(S_US2)}, {s(S_US)}, {s(S_T3)}")
    A(f"s_lshl_b32 {s(S_T3)}, {s(S_C)}, 13")
    A(f"s_add_u32 {s(S_ZL)}, {s(S_ZL)}, {s(S_T3)}")
    A(f"s_lshl_b32 {s(S_T3)}, {s(S_C)}, 15")
    A(f"s_add_u32 {s(S_US)}, {s(S_US)}, {s(S_T3)}")
    vfa = V_FLAV if isV else V_FLA; vne = V_NEEDV if isV else V_NEED
    A(f"s_lshl_b32 {s(S_T)}, {s(S_T)}, 4")
    A(f"v_and_b32 {v(t2)}, 3, {v(V_LANE)}")
    A(f"v_lshl_add_u32 {v(vfa)}, {v(t2)}, 2, {s(S_T)}")
    A(f"v_add_u32 {v(vfa)}, {FL_U-FLAGS}, {v(vfa)}")
    A(f"v_mov_b32 {v(vne)}, 1")
    if not isV:
        A(f"s_lshl_b32 {s(S_T)}, {s(S_HEAD)}, 2")
        A(f"v_mov_b32 {v(t2)}, {s(S_T)}")
        A(f"v_cmp_lt_u32 vcc, 31, {v(V_LANE)}")
        A("s_nop 1")
        A(f"v_cndmask_b32 {v(vfa)}, {v(vfa)}, {v(t2)}, vcc")
        A(f"v_mov_b32 {v(t2)}, 2")
        A(f"v_cndmask_b32 {v(vne)}, {v(vne)}, {v(t2)}, vcc")
    A(f"s_mov_b32 {s(S_FLI)}, {FLAGS}")
    A(f"s_lshl_b32 {s(S_FLO)}, {s(S_HEAD)}, 2")
    A(f"s_add_u32 {s(S_FLO)}, {s(S_FLO)}, {FL_Z if isV else FL_KM}")
    A(f"v_mov_b32 {v(V_FL)}, 0")
    A(f"s_mov_b32 {s(S_OLO)}, 0x00003f80")
    A(f"s_mov_b32 {s(S_OHI)}, 0x3f800000")
    A(f"s_mov_b32 {s(S_SC)}, {f32bits(192**-0.5*math.log2(math.e))}")
    A(f"s_mov_b32 {s(S_STEP)}, 0")
    A(f"s_mov_b32 {s(S_CNT)}, {SPIN_MAX}")
    A(f"s_mov_b32 {s(S_EXP)}, {WS_SCR}")
    if isV: A(f"s_mov_b32 {s(S_EXN)}, {WS_Z}")
    else:
        A(f"s_mul_i32 {s(S_EXN)}, {s(S_HEAD)}, 3072")
        A(f"s_add_u32 {s(S_EXN)}, {s(S_EXN)}, {WS_KM}")
    if STAMP:
        for k in range(16): A(f"s_mov_b32 {s(S_TS+k)}, 0")

def lane_flag_wait(A, isV):
    vfa = V_FLAV if isV else V_FLA; vne = V_NEEDV if isV else V_NEED
    ok = A.newlabel("cf_ok"); lp = A.newlabel("cf_lp"); sl = A.newlabel("cf_sl")
    ld = f"buffer_load_dword {v(V_FL)}, {v(vfa)}, {s(S_WS,4)}, {s(S_FLI)} offen sc1"
    STUBS.append([sl + ":", f"s_sub_u32 {s(S_CNT)}, {s(S_CNT)}, 1", f"s_cbranch_scc1 {sl}_d", ld, "s_waitcnt vmcnt(0)", f"s_branch {lp}",
                  sl + "_d:", f"s_mov_b32 {s(S_CNT)}, 0", f"s_branch {ok}"])
    return "\n".join([lp + ":", f"v_cmp_gt_u32 vcc, {v(vne)}, {v(V_FL)}", f"s_cbranch_vccnz {sl}", ok + ":",
                       f"v_add_u32 {v(vne)}, 1, {v(vne)}", f"v_min_u32 {v(vne)}, {NSEG}, {v(vne)}", ld])

def phaseB_items(A, isV, cls, flags):
    L = []
    if flags:
        if cls == 0:
            B = Asm(); B.uid = A.uid
            B(f"s_sub_u32 {s(S_T)}, {s(S_STEP)}, 1")
            B(f"s_max_i32 {s(S_T)}, {s(S_T)}, 0")
            B(f"v_mov_b32 v56, {s(S_T)}")
            B("s_mov_b64 exec, 1")
            B(f"buffer_store_dword v56, {v(V_ZERO)}, {s(S_WS,4)}, {s(S_FLO)} offen sc0 sc1")
            B("s_mov_b64 exec, -1")
            B("s_nop 3")
            L.append("\n".join(B.lines))
        L.append(lane_flag_wait(A, isV))
    if isV:
        L.append(f"s_add_u32 {s(S_T2)}, {s(S_EXP)}, {4*8192}")
        L.append(f"buffer_store_dwordx4 {v(XS,4)}, {v(V_ZS4)}, {s(S_WS,4)}, {s(S_EXP)} offen sc0 sc1")
        L.append(f"buffer_store_dwordx4 {v(XS+4,4)}, {v(V_ZS4)}, {s(S_WS,4)}, {s(S_T2)} offen sc0 sc1")
        L.append(f"buffer_store_dwordx2 {v(XS+8,2)}, {v(V_ZS2)}, {s(S_WS,4)}, {s(S_EXP)} offen sc0 sc1")
    L.append(f"s_mov_b32 m0, {s(S_MU)}")
    L.append(f"s_mov_b32 {s(S_T4)}, {s(S_T4)}")
    for j in range(4):
        L.append(f"buffer_load_dwordx4 {v(V_L16)}, {s(S_WS,4)}, {s(S_US)} offen offset:{j*1024} sc1 lds")
    if isV:
        L.append(f"s_add_u32 m0, {s(S_MU)}, 4096")
        L.append(f"s_add_u32 {s(S_T4)}, {s(S_US2)}, 1024")
        L.append(f"buffer_load_dwordx4 {v(V_UH)}, {s(S_WS,4)}, {s(S_US2)} offen sc1 lds")
        L.append(f"buffer_load_dwordx4 {v(V_UH)}, {s(S_WS,4)}, {s(S_T4)} offen offset:1024 sc1 lds")
        L.append(f"s_add_u32 {s(S_T2)}, {s(S_ZN)}, {4*8192}\n" + dual_text(A, [
            f"buffer_store_dwordx4 {v(V_POI,4)}, {v(V_ZS4)}, {s(S_WS,4)}, {s(S_ZN)} offen",
            f"buffer_store_dwordx4 {v(V_POI,4)}, {v(V_ZS4)}, {s(S_WS,4)}, {s(S_T2)} offen",
            f"buffer_store_dwordx2 {v(V_POI,2)}, {v(V_ZS2)}, {s(S_WS,4)}, {s(S_ZN)} offen"]))
    else:
        L += [f"s_add_u32 {s(S_MK)}, {s(S_MK)}, {s(S_KD)}", f"s_mov_b32 m0, {s(S_MK)}", f"s_add_u32 {s(S_KS)}, {s(S_KS)}, {NH*12288}"]
        for j in range(3):
            L.append(f"buffer_load_dwordx4 {v(V_L16)}, {s(S_WS,4)}, {s(S_KS)} offen offset:{j*1024} sc1 lds")
        if cls == 0:
            L.append(f"s_add_u32 {s(S_T)}, {s(S_PN)}, {s(S_PST)}\ns_add_u32 {s(S_T2)}, {s(S_PN)}, {s(S_PSM)}\n" +
                     dual_text(A, [f"s_mov_b64 exec, {s(S_MA,2)}",
                                   f"buffer_store_dwordx4 {v(V_POI,4)}, {v(V_L16)}, {s(S_WS,4)}, {s(S_T)} offen",
                                   f"s_mov_b64 exec, {s(S_MB,2)}",
                                   f"buffer_store_dwordx2 {v(V_POI,2)}, {v(V_PM)}, {s(S_WS,4)}, {s(S_T2)} offen",
                                   "s_mov_b64 exec, -1"]))
    return L

def km_export(E, tmp):
    return [ds("KX", f"ds_read_b128 {v(tmp,4)}, {v(126)} offset:{S_LKM-HI-1024}"),
            f"s_sub_u32 {s(S_T3)}, {s(S_EXP)}, 1024",
            need("KX"),
            f"buffer_store_dwordx4 {v(tmp,4)}, {v(V_T7)}, {s(S_WS,4)}, {s(S_T3)} offen sc0 sc1"]

def qk_tr(isq, ks, dst, tag):
    b = 0 if isq else 3072
    if ks < 4: vb, o0, o1 = V_TRA, 48*ks*16, (48*ks+16)*16
    else: vb, o0, o1 = V_TRB, (96*(ks-4)+32)*16, (96*(ks-4)+36)*16
    return [ds(tag, f"ds_read_b64_tr_b16 {v(dst,2)}, {v(vb)} offset:{b+o0}"),
            ds(tag, f"ds_read_b64_tr_b16 {v(dst+2,2)}, {v(vb)} offset:{b+o1}")]

def xlane(op, r, t, which):
    return [f"v_mov_b32 {v(t)}, {v(r)}", "s_nop 1", f"v_permlane{which}_swap_b32 {v(r)}, {v(t)}", f"{op} {v(r)}, {v(r)}, {v(t)}"]

def pb_tasks(items, e, d, span):
    if PBMODE == 0: return [[e, d, items]]
    if PBMODE == 1:
        STUBS.clear()
        return [[e, d, [it for it in items if isinstance(it, str) and 'buffer_' not in it]]]
    if DROP & 1: items = [it for it in items if not (isinstance(it, str) and it.endswith(" lds"))]
    if DROP & 2: items = [it for it in items if not (isinstance(it, str) and it.startswith("buffer_store") and "sc1" in it)]
    groups = []; cur = []
    for it in items:
        cur.append(it)
        if isinstance(it, str) and 'buffer_' in it: groups.append(cur); cur = []
    if cur: groups.append(cur)
    n = len(groups); out = []
    for i, g in enumerate(groups):
        st = e + i*PBSTEP
        out.append([st, st+PBSTEP+1, g])
    return out

def s_stage(A, E, cls, flags):
    S0, S1, S2, S3 = ACC, ACC+4, ACC+8, ACC+12
    accs = [S0, S1, S2, S3, S0, S1]
    ard = lambda k: ds(f"A{k}", f"ds_read_b128 {v(AF+4*k,4)}, {v(V_HI)} offset:{k*1024}")
    for k in range(3): E(ard(k))
    main = []
    for f in ORD_S:
        t, k = divmod(f, 10)
        main.append(([need(f"A{k}")] if t == 0 else []) + smf(f, accs[t], AF+4*k))
    T = refill_tasks() + [[k-3, max(k-1, 2*k-5), [ard(k)]] for k in range(3, 10)]
    pb = phaseB_items(A, False, cls, flags)
    if cls != 0:
        kx = km_export(E, XS+16)
        T.append([7, 12, kx[:2]])
        if PBMODE != 1 and not (DROP & 2): T.append([16, 20, kx[2:]])
    T += pb_tasks(pb, 3, 22, 56)
    T.append([0, 28, zero(S3)])
    T.append([21, 31, post_s(S0, 0, "qw") + post_s(S1, 256, "qw")])
    T.append([32, 36, post_s(S2, 512, "qw")])
    T.append([22, 38, zero(S0) + zero(S1)])
    T.append([37, 38, [need("qw"), "s_barrier"]])
    T.append([42, 58, post_s(S3, 3072, "kw")])
    if cls == 12:
        SA = XS+16
        R = {0: (XS, XS+4), 1: (XS+8, XS+12), 2: (AF, AF+4), 3: (AF+8, AF+12), 4: (XS, XS+4), 5: (XS+8, XS+12)}
        def rd(ks): return qk_tr(True, ks, R[ks][0], f"X{ks}") + [ds(f"X{ks}", f"ds_read_b128 {v(R[ks][1],4)}, {v(V_KR)} offset:{ks*1024}")]
        def mm(ks, first=False): return [need(f"X{ks}"), f"v_mfma_f32_16x16x32_bf16 {v(SA,4)}, {v(R[ks][1],4)}, {v(R[ks][0],4)}, {'0' if first else v(SA,4)}"]
        T.append([38, 42, rd(0)])
        T.append([38, 45, rd(1)])
        T.append([45, 49, mm(0, True) + rd(4)])
        T.append([44, 48, rd(2)])
        T.append([48, 52, mm(1) + rd(5)])
        T.append([48, 54, rd(3)])
        T.append([52, 54, mm(2)])
        T.append([54, 55, mm(4)])
        T.append([55, 56, mm(5)])
        T.append([56, 57, mm(3)])
    if cls == 0:
        for ks in range(5): T.append([38, 45+2*ks, qk_tr(True, ks, XS+4*ks, f"m{ks}")])
        T.append([42, 58, qk_tr(True, 5, AF, "m5")])
    schedule(E, main, T, maxn=4)
    if cls == 12:
        E(ds("sx", f"ds_write_b128 {v(126)}, {v(XS+16,4)} offset:{S_LSX-HI-1024}"))
        A(f"v_add_u32 {v(V_KR)}, {s(S_KD)}, {v(V_KR)}")
        A("s_nop 2")
    else:
        A("s_nop 4")
    pa = post_s(S0, 3072+256, "kw"); pb_ = post_s(S1, 3072+512, "kw")
    for it in pa + pb_: E(it)
    A(f"s_sub_u32 {s(S_KD)}, 0, {s(S_KD)}")
    E.drain()
    A("s_barrier")

def dppadd(r): return f"v_add_f32_dpp {v(r)}, {v(r)}, {v(r)} row_ror:8 row_mask:0xf bank_mask:0xf"

def s_tail(A, E):
    QF, KF, SXA, SM, t0, t1 = AF, TMP, 44, 52, 56, 57
    mx, sx, nm, al = 58, 59, 60, 61
    E(ds("sx", f"ds_read_b128 {v(SXA,4)}, {v(V_HI)} offset:{S_LSX-HI}"))
    E(ds("sx", f"ds_read_b128 {v(SXA+4,4)}, {v(V_HI)} offset:{S_LSX-HI+1024}"))
    for ks in range(6):
        for it in qk_tr(False, ks, KF+4*ks, f"m{ks}"): E(it)
    X = [need("sx"),
         f"v_max3_f32 {v(mx)}, {v(SXA)}, {v(SXA+1)}, {v(SXA+2)}",
         f"v_max3_f32 {v(t1)}, {v(SXA+3)}, {v(SXA+4)}, {v(SXA+5)}",
         f"v_max3_f32 {v(mx)}, {v(mx)}, {v(SXA+6)}, {v(SXA+7)}",
         f"v_max_f32 {v(mx)}, {v(mx)}, {v(t1)}"]
    X += xlane("v_max_f32", mx, t0, 16) + xlane("v_max_f32", mx, t0, 32)
    X += [f"v_mul_f32 {v(nm)}, {s(S_SC)}, {v(mx)}"]
    X += [f"v_fma_f32 {v(SXA+i)}, {v(SXA+i)}, {s(S_SC)}, -{v(nm)}" for i in range(8)]
    X += [f"v_exp_f32 {v(SXA+i)}, {v(SXA+i)}" for i in range(8)]
    X += [f"v_add_f32 {v(sx)}, {v(SXA)}, {v(SXA+1)}", f"v_add_f32 {v(t1)}, {v(SXA+2)}, {v(SXA+3)}",
          f"v_add_f32 {v(t0)}, {v(SXA+4)}, {v(SXA+5)}", f"v_add_f32 {v(al)}, {v(SXA+6)}, {v(SXA+7)}",
          f"v_add_f32 {v(sx)}, {v(sx)}, {v(t1)}", f"v_add_f32 {v(t0)}, {v(t0)}, {v(al)}", f"v_add_f32 {v(sx)}, {v(sx)}, {v(t0)}"]
    X += xlane("v_add_f32", sx, t0, 16) + xlane("v_add_f32", sx, t0, 32)
    main = [[]] + [[need(f"m{ks}"), f"v_mfma_f32_16x16x32_bf16 {v(SM,4)}, {v(KF+4*ks,4)}, {v(XS+4*ks if ks < 5 else AF,4)}, {'0' if ks==0 else v(SM,4)}"] for ks in range(6)]
    for it in X[:9]: E(it)
    schedule(E, main, [[0, 99, X[9:]]], cap=2, maxn=4)
    m = 62
    A(f"v_max3_f32 {v(m)}, {v(SM)}, {v(SM+1)}, {v(SM+2)}")
    A(f"v_max3_f32 {v(m)}, {v(m)}, {v(SM+3)}, {v(mx)}")
    for l in xlane("v_max_f32", m, t0, 16): A(l)
    A(f"v_mul_f32 {v(m)}, {s(S_SC)}, {v(m)}")
    A(f"v_sub_f32 {v(al)}, {v(nm)}, {v(m)}")
    for i in range(4): A(f"v_fma_f32 {v(SM+i)}, {v(SM+i)}, {s(S_SC)}, -{v(m)}")
    A(f"v_exp_f32 {v(al)}, {v(al)}")
    for i in range(4): A(f"v_exp_f32 {v(SM+i)}, {v(SM+i)}")
    A("s_waitcnt vmcnt(0)")
    A(f"v_add_f32 {v(t1)}, {v(SM)}, {v(SM+1)}")
    A(f"v_add_f32 {v(m)}, {v(SM+2)}, {v(SM+3)}")
    A(f"v_add_f32 {v(m)}, {v(m)}, {v(t1)}")
    for l in xlane("v_add_f32", m, t0, 16): A(l)
    A(f"v_fma_f32 {v(m)}, {v(al)}, {v(sx)}, {v(m)}")
    A(f"v_rcp_f32 {v(m)}, {v(m)}")
    A(f"s_add_u32 {s(S_T)}, {s(S_P)}, {s(S_PST)}")
    A(f"v_mul_f32 {v(al)}, {v(al)}, {v(m)}")
    for i in range(4): A(f"v_mul_f32 {v(SM+i)}, {v(SM+i)}, {v(m)}")
    for i in range(8): A(f"v_mul_f32 {v(SXA+i)}, {v(SXA+i)}, {v(al)}")
    A(f"s_add_u32 {s(S_T2)}, {s(S_P)}, {s(S_PSM)}")
    for i in range(4): A(f"v_cvt_pk_bf16_f32 {v(64+i)}, {v(SXA+2*i)}, {v(SXA+2*i+1)}")
    for i in range(2): A(f"v_cvt_pk_bf16_f32 {v(SM+i)}, {v(SM+2*i)}, {v(SM+2*i+1)}")
    dual(A, [f"s_mov_b64 exec, {s(S_MA,2)}",
             f"buffer_store_dwordx4 {v(64,4)}, {v(V_L16)}, {s(S_WS,4)}, {s(S_T)} offen",
             f"s_mov_b64 exec, {s(S_MB,2)}",
             f"buffer_store_dwordx2 {v(SM,2)}, {v(V_PM)}, {s(S_WS,4)}, {s(S_T2)} offen",
             "s_mov_b64 exec, -1"])

def v_stage(A, E, cls, flags):
    S = [ACC, ACC+4, ACC+8, ACC+12, 112, 116]
    ard = lambda k: ds(f"A{k}", f"ds_read_b128 {v(AF+4*k,4)}, {v(V_HI)} offset:{k*1024}")
    for k in range(3): E(ard(k))
    main = []
    for f in ORD_V[:30]:
        t, k = divmod(f, 10)
        main.append(([need(f"A{k}")] if t == 0 else []) + smf(f, S[t], AF+4*k))
    RT = refill_tasks()
    T = [t for t in RT if t[0] < 29] + [[k-3, max(k-1, 2*k-5), [ard(k)]] for k in range(3, 10)]
    PB = pb_tasks(phaseB_items(A, True, cls, flags), 3, 24, 58)
    T += [t for t in PB if t[0] < 28]
    T.append([0, 20, zero(S[3]) + zero(S[4]) + zero(S[5])])
    T.append([21, 99, post_v(S[0], 0, "vw") + post_v(S[1], 256, "vw") + zero(S[0])])
    schedule(E, main, T, maxn=4)
    for l in zero(S[1]) + zero(AF+12) + zero(AF+16): A(l)
    A("s_nop 1")
    for it in post_v(S[2], 512, "vw"): E(it)
    for it in RT[5][2]: E(it)
    for l in zero(AF+20) + zero(AF+24) + zero(S[2]): A(l)
    E.need("vw")
    A("s_barrier")
    for kk in range(3):
        for h in range(2):
            E(ds(f"B{kk}", f"ds_read_b64_tr_b16 {v(AF+4*kk+2*h,2)}, {v(V_TRA)} offset:{(32*kk+4*h)*32}"))
    SS = [S[3], S[4], S[5], S[0], S[1], S[2], AF+12, AF+16, AF+20, AF+24]
    sa = lambda t: SS[t]
    main = []
    for t in range(10):
        for kk in range(3):
            main.append(([need(f"B{kk}")] if t == 0 else []) + smf(30 + 3*t + kk, sa(t), AF+4*kk))
    T = [[t[0]-30, t[1]-30, t[2]] for t in RT if t[0] > 29]
    T += [[max(t[0]-30, 0), max(t[1]-30, 2), t[2]] for t in PB if t[0] >= 28]
    def fin(t):
        L = post(sa(t), XS+t)
        if t in (3, 7):
            q = XS + t - 3
            L += ["s_nop 0"]
            L += [f"v_permlane32_swap_b32 {v(q)}, {v(q+2)}", f"v_permlane32_swap_b32 {v(q+1)}, {v(q+3)}", "s_nop 1",
                  f"v_permlane16_swap_b32 {v(q)}, {v(q+1)}", f"v_permlane16_swap_b32 {v(q+2)}, {v(q+3)}"]
            L += [f"s_add_u32 {s(S_T)}, {s(S_Z)}, {(t//4)*4*8192}\n" + dual_text(A, [f"buffer_store_dwordx4 {v(q,4)}, {v(V_ZS4)}, {s(S_WS,4)}, {s(S_T)} offen"])]
        if t == 9:
            L += ["s_nop 1", f"v_permlane16_swap_b32 {v(XS+8)}, {v(XS+9)}"]
            L += [dual_text(A, [f"buffer_store_dwordx2 {v(XS+8,2)}, {v(V_ZS2)}, {s(S_WS,4)}, {s(S_Z)} offen"])]
        return L
    chain = []
    for t in range(8):
        T.append([3*t+2+3, 40+t, fin(t)])
    schedule(E, main, T, cap=VCAP, maxn=5)
    for it in fin(8): E(it)
    A("s_nop 3")
    for it in fin(9): E(it)

def reduce_stage(A, E, isV, cls):
    PF, ZF, mt = AF, 32, 56
    UL = [76,80,84,88,92,96,60,64] if isV else [100,104,108,112]
    D = [68, 72]; DO = [40, 44]
    nt = 2 if isV else 1
    if not (cls == 0 and not isV): A("s_waitcnt vmcnt(6)" if isV else "s_waitcnt vmcnt(3)")
    for j in range(4): E(ds("U", f"ds_read_b128 {v(UL[j],4)}, {v(V_UR)} offset:{j*1024}"))
    if isV:
        for j in range(4): E(ds("U", f"ds_read_b128 {v(UL[4+j],4)}, {v(V_UHR)} offset:{(j>>1)*1024+(j&1)*128}"))
    A(f"s_add_u32 {s(S_T)}, {s(S_P)}, {s(S_PLX)}")
    A(f"s_add_u32 {s(S_T2)}, {s(S_P)}, {s(S_PLM)}")
    A(f"s_add_u32 {s(S_T3)}, {s(S_Z)}, {s(S_ZL)}")
    if isV: A(f"s_add_u32 {s(S_T4)}, {s(S_Z)}, {s(S_ZL2)}")
    for l in zero(PF+8) + (zero(ZF+4) if isV else []): A(l)
    if not isV:
        A("s_barrier")
        if DELAYBS: A(f"s_sleep {DELAYBS}")
    elif DELAYB: A(f"s_sleep {DELAYB}")
    if STAMP == 1: tick(A, 8)
    lab = A.newlabel("GB")
    A.label(lab)
    A(f"buffer_load_dwordx4 {v(ZF,4)}, {v(V_L16)}, {s(S_WS,4)}, {s(S_T3)} offen sc1")
    for j in range(2):
        A(f"buffer_load_dwordx4 {v(PF+4*j,4)}, {v(V_L16)}, {s(S_WS,4)}, {s(S_T)} offen offset:{j*1024} sc1")
    A(f"s_mov_b64 exec, {s(S_MA,2)}")
    if isV: A(f"buffer_load_dwordx4 {v(ZF+4,4)}, {v(V_ZH)}, {s(S_WS,4)}, {s(S_T4)} offen sc1")
    A(f"buffer_load_dwordx4 {v(PF+8,4)}, {v(V_PLD)}, {s(S_WS,4)}, {s(S_T2)} offen sc1")
    A("s_mov_b64 exec, -1")
    A("s_waitcnt vmcnt(0) lgkmcnt(0)"); E.reset()
    if STAMP == 1: tick(A, 7)
    main = []
    def mm(d, a_, b_, first): return [f"v_mfma_f32_16x16x32_bf16 {v(d,4)}, {v(a_,4)}, {v(b_,4)}, {'0' if first else v(d,4)}"]
    for j in range(2):
        for t in range(nt): main.append(mm(DO[t], UL[4*t+2*j+1], PF+4*j, j == 0))
    for j in range(3):
        for t in range(nt): main.append(mm(D[t], UL[4*t+2*j] if j < 2 else ZF+4*t, PF+4*j, j == 0))
    X = maxtree(list(range(PF, PF+12)) + list(range(ZF, ZF+4*nt)), mt) + [f"v_cmp_eq_u32 vcc, -1, {v(mt)}"]
    schedule(E, main, [[0, 99, X]])
    retry(A, lab, 11)
    A("s_nop 6" if not isV else "s_nop 3")
    for t in range(nt):
        for i in range(4):
            A(f"v_add_f32_dpp {v(D[t]+i)}, {v(DO[t]+i)}, {v(D[t]+i)} row_ror:8 row_mask:0xf bank_mask:0xf")
        if isV: E(ds("r", f"ds_write_b128 {v(V_RW)}, {v(D[t],4)} offset:{t*1024}"))
        else: E(ds("r", f"ds_write_b128 {v(126)}, {v(D[t],4)} offset:{S_LRED-HI}"))
    E.drain()
    A("s_barrier")

def preload(A, E):
    for j in range(3):
        for it in wl_read(j): E(it)
    for k in range(3):
        for l in zero(ACC+4*k): A(l)

def gatherA(A, E, isV, cls, lab):
    mt = 72
    vtw = V_TW if isV else V_PLD
    def advance():
        A(f"s_add_u32 {s(S_STEP)}, {s(S_STEP)}, 1")
        for x, y in ((S_Z,S_ZN),(S_P,S_PN),(S_L,S_LN)):
            A(f"s_mov_b32 {s(S_T)}, {s(x)}"); A(f"s_mov_b32 {s(x)}, {s(y)}"); A(f"s_mov_b32 {s(y)}, {s(S_T)}")
        A(f"s_add_u32 {s(S_US)}, {s(S_US)}, {40*32768}")
        if isV: A(f"s_add_u32 {s(S_US2)}, {s(S_US2)}, {40*32768}")
        A(f"s_mov_b32 {s(S_EXP)}, {s(S_EXN)}")
        A(f"s_add_u32 {s(S_EXN)}, {s(S_EXN)}, {327680 if isV else NH*3072}")
        preload(A, E)
    if cls == 0:
        st = 2048 if isV else 1024
        for w in range(4): E(ds("f", f"ds_read_b128 {v(AF+4*w,4)}, {v(V_FINR)} offset:{w*st}"))
        E.drain()
        for i in range(4): A(f"v_add_f32 {v(AF+i)}, {v(AF+i)}, {v(AF+4+i)}")
        for i in range(4): A(f"v_add_f32 {v(AF+8+i)}, {v(AF+8+i)}, {v(AF+12+i)}")
        for i in range(4): A(f"v_add_f32 {v(AF+i)}, {v(AF+i)}, {v(AF+8+i)}")
        A(f"s_mov_b64 exec, {s(S_MB if isV else S_MA,2)}")
        A(f"buffer_store_dwordx4 {v(AF,4)}, {v(vtw)}, {s(S_WS,4)}, {s(S_RW)} offen sc0 sc1")
        A("s_mov_b64 exec, -1")
        tick(A, 3)
        advance()
        if DELAY0: A(f"s_sleep {DELAY0}")
        A(f"s_mov_b64 exec, {s(S_MB if isV else S_MA,2)}")
        labt = A.newlabel("GT")
        A.label(labt)
        A(f"buffer_load_dwordx4 {v(AF+4,4)}, {v(vtw)}, {s(S_WS,4)}, {s(S_RR)} offen sc1")
        A("s_waitcnt vmcnt(0)")
        for l in maxtree(range(AF+4, AF+8), mt): A(l)
        for i in range(4): A(f"v_add_f32 {v(AF+8+i)}, {v(AF+i)}, {v(AF+4+i)}")
        A(f"v_cmp_eq_u32 vcc, -1, {v(mt)}")
        for i in range(2): A(f"v_cvt_pk_bf16_f32 {v(AF+8+i)}, {v(AF+8+2*i)}, {v(AF+9+2*i)}")
        retry(A, labt, 13)
        dual(A, [f"buffer_store_dwordx2 {v(AF+8,2)}, {v(V_FINRM)}, {s(S_WS,4)}, {s(S_L)} offen",
                 f"buffer_store_dwordx2 {v(V_POI,2)}, {v(V_FINRM)}, {s(S_WS,4)}, {s(S_LN)} offen"])
        A("s_mov_b64 exec, -1")
        A(f"s_add_u32 {s(S_RR)}, {s(S_RR)}, 40960")
        A(f"s_add_u32 {s(S_RW)}, {s(S_RW)}, 40960")
    else:
        tick(A, 3)
        advance()
    A("s_barrier")
    tick(A, 4)
    if (DELAYLV if isV else DELAYL): A(f"s_sleep {DELAYLV if isV else DELAYL}")
    G = AF + 12
    A(f"s_add_u32 {s(S_T)}, {s(S_L)}, 4096")
    A(f"s_add_u32 {s(S_T2)}, {s(S_L)}, {s(S_G3)}")
    A(f"v_mov_b64 {v(G+8,2)}, 0"); A(f"v_mov_b64 {v(G+10,2)}, 0")
    if STAMP == 1: tick(A, 8)
    A.label(lab)
    A(f"buffer_load_dwordx4 {v(G,4)}, {v(V_T7)}, {s(S_WS,4)}, {s(S_L)} offen sc1")
    A(f"buffer_load_dwordx4 {v(G+4,4)}, {v(V_T7)}, {s(S_WS,4)}, {s(S_T)} offen sc1")
    A(f"s_mov_b64 exec, {s(S_M3,2)}")
    A(f"buffer_load_dwordx4 {v(G+8,4)}, {v(V_T7)}, {s(S_WS,4)}, {s(S_T2)} offen sc1")
    return lab

def gatherA2(A, E, lab):
    G = AF + 12; mt = 72
    A("s_waitcnt vmcnt(0)")
    if STAMP == 1: tick(A, 9)
    E(ds("g", f"ds_write_b128 {v(V_G3W)}, {v(G+8,4)}"))
    A("s_mov_b64 exec, -1")
    E(ds("g", f"ds_write_b128 {v(V_GA)}, {v(G,4)}"))
    E(ds("g", f"ds_write_b128 {v(V_GA)}, {v(G+4,4)} offset:4096"))
    for l in maxtree(range(G, G+12), mt): A(l)
    A(f"v_cmp_eq_u32 vcc, -1, {v(mt)}")
    retry(A, lab, 12)
    tick(A, 5)
    E.drain()

def chain_loop(A, isV, cls, flags):
    E = Emit(A)
    top = A.newlabel("CH_top"); fin = A.newlabel("CH_fin"); ent = A.newlabel("CH_ent"); galab = A.newlabel("GAx")
    preload(A, E); E.drain()
    if STAMP:
        A(f"s_memtime {s(88,2)}"); A(f"s_memrealtime {s(90,2)}"); A("s_waitcnt lgkmcnt(0)"); A(f"s_mov_b32 {s(86)}, {s(88)}"); A(f"s_mov_b32 {s(87)}, {s(90)}")
    A(f"s_branch {ent}")
    A.label(top)
    gatherA2(A, E, galab)
    A.label(ent)
    A("s_barrier")
    tick(A, 6)
    if STAMP in (1, 3):
        rs = A.newlabel("rs"); rb = A.newlabel("rb")
        A(f"s_cmp_eq_u32 {s(S_STEP)}, 8"); A(f"s_cbranch_scc1 {rs}"); A.label(rb)
        STUBS.append([rs + ":", f"s_memtime {s(88,2)}", f"s_memrealtime {s(90,2)}", "s_waitcnt lgkmcnt(0)", f"s_mov_b32 {s(86)}, {s(88)}", f"s_mov_b32 {s(87)}, {s(90)}"] +
                     [f"s_mov_b32 {s(S_TS+k)}, 0" for k in range(16)] + [f"s_branch {rb}"])
    if STAMP == 2:
        A(f"s_memrealtime {s(88,2)}"); A("s_waitcnt lgkmcnt(0)")
        A(f"s_cmp_eq_u32 {s(S_STEP)}, {TSTEP}"); A(f"s_cselect_b32 {s(S_TS+7)}, {s(88)}, {s(S_TS+7)}")
    if isV: v_stage(A, E, cls, flags)
    else: s_stage(A, E, cls, flags)
    tick(A, 0)
    A(f"s_cmp_eq_u32 {s(S_STEP)}, {NSTEP-1}")
    A(f"s_cbranch_scc1 {fin}")
    if not isV and cls == 0: s_tail(A, E)
    tick(A, 1)
    reduce_stage(A, E, isV, cls)
    tick(A, 2)
    gatherA(A, E, isV, cls, galab)
    A(f"s_branch {top}")
    flush_stubs(A)
    A.label(fin)
    E.reset()
    if STAMP == 3:
        A(f"s_memtime {s(88,2)}"); A(f"s_memrealtime {s(90,2)}"); A("s_waitcnt lgkmcnt(0)")
        A(f"s_sub_u32 {s(S_TS)}, {s(88)}, {s(86)}"); A(f"s_sub_u32 {s(S_TS+1)}, {s(90)}, {s(87)}")
    A(f"s_mov_b32 {s(S_EXP)}, {s(S_EXN)}")
    if isV:
        A(f"s_add_u32 {s(S_T2)}, {s(S_EXP)}, {4*8192}")
        A(f"buffer_store_dwordx4 {v(XS,4)}, {v(V_ZS4)}, {s(S_WS,4)}, {s(S_EXP)} offen sc0 sc1")
        A(f"buffer_store_dwordx4 {v(XS+4,4)}, {v(V_ZS4)}, {s(S_WS,4)}, {s(S_T2)} offen sc0 sc1")
        A(f"buffer_store_dwordx2 {v(XS+8,2)}, {v(V_ZS2)}, {s(S_WS,4)}, {s(S_EXP)} offen sc0 sc1")
    elif cls != 0:
        for it in km_export(E, XS+16): E(it)
    A("s_waitcnt vmcnt(0)")
    A("s_barrier")
    if flags and cls == 0:
        A(f"v_mov_b32 v56, {NSEG}")
        A("s_mov_b64 exec, 1")
        A(f"buffer_store_dword v56, {v(V_ZERO)}, {s(S_WS,4)}, {s(S_FLO)} offen sc0 sc1")
        A("s_mov_b64 exec, -1")
    if STAMP:
        A(f"s_lshl_b32 {s(S_T)}, {s(S_GRP)}, 5")
        A(f"s_add_u32 {s(S_T)}, {s(S_T)}, {s(S_C)}")
        A(f"s_lshl_b32 {s(S_T)}, {s(S_T)}, 2")
        A(f"s_add_u32 {s(S_T)}, {s(S_T)}, {s(S_WAVE)}")
        A(f"s_lshl_b32 {s(S_T)}, {s(S_T)}, 6")
        A(f"s_add_u32 {s(S_T)}, {s(S_T)}, {WS_SCR + 1048576}")
        for k in range(16):
            A(f"v_mov_b32 v21, {s(S_TS+k) if k != 14 else s(S_FAST)}")
            A(f"buffer_store_dword v21, {v(V_ZERO)}, {s(S_WS,4)}, {s(S_T)} offen offset:{4*k}")
        A("s_waitcnt vmcnt(0)")

def role_chain(A, isV, end_label, flags=False):
    global CUR_ORD
    CUR_ORD = ORD_V if isV else ORD_S
    A.c("================ role chain %s ================" % ("V" if isV else "S"))
    A(f"s_load_dwordx2 {s(S_W1,2)}, s[0:1], {KA['Wv' if isV else 'Wq']}")
    A(f"s_load_dwordx2 {s(S_W2,2)}, s[0:1], {KA['Wo' if isV else 'Wk']}")
    A(f"s_load_dwordx2 {s(S_X,2)}, s[0:1], {KA['mem0']}")
    A(f"s_and_b32 {s(S_HEAD)}, {s(S_C)}, 15")
    A(f"s_lshl_b32 {s(S_T)}, {s(S_GRP)}, 4")
    A(f"s_add_u32 {s(S_HEAD)}, {s(S_HEAD)}, {s(S_T)}")
    A(f"s_getreg_b32 {s(S_FAST)}, hwreg(HW_REG_XCC_ID, 0, 4)")
    A(f"s_lshl_b32 {s(S_T)}, {s(S_GRP)}, 5")
    A(f"s_add_u32 {s(S_T)}, {s(S_T)}, {s(S_C)}")
    A(f"s_lshl_b32 {s(S_T)}, {s(S_T)}, 2")
    A(f"s_add_u32 {s(S_T)}, {s(S_T)}, {MB_X}")
    publish(A, S_FAST, S_T)
    A("s_waitcnt lgkmcnt(0)")
    srd_finish(A, S_W1, W_BYTES); srd_finish(A, S_W2, W_BYTES); srd_finish(A, S_X, 10240)
    A(f"s_mul_i32 s66, {s(S_HEAD)}, 384")
    A("s_waitcnt vmcnt(0)")
    if not isV:
        load_w_rows384(A, [S_W1, S_W2], 66, lambda c, kk, t, half: wdest(((c//10)*3+t)*10 + c%10, 2*kk+half), rowmap="sparse", vt=116)
    else:
        load_w_rows384(A, [S_W1], 66, lambda c, kk, t, half: wdest(t*10 + c, 2*kk+half), rowmap="sparse", vt=116)
        A(f"s_mul_i32 s66, {s(S_HEAD)}, 245760")
        load_wo(A, S_W2, 66, lambda c, t, half: wdest(30 + 3*t + c//2, 2*(c&1)+half), sparse=True, vt=116)
    A(f"s_mul_i32 {s(S_T)}, {s(S_WAVE)}, 24576")
    A(f"v_lshl_add_u32 {v(V_WL)}, {v(V_LANE)}, 4, {s(S_T)}")
    for j in range(12):
        A(f"ds_write_b128 {v(V_WL)}, {v(AF+8*j,4)} offset:{j*2048}")
        A(f"ds_write_b128 {v(V_WL)}, {v(AF+8*j+4,4)} offset:{j*2048+1024}")
    A("s_waitcnt lgkmcnt(0)")
    setup_common(A, isV)
    A(f"v_and_b32 v20, 31, {v(V_LANE)}")
    A(f"v_lshlrev_b32 v20, 2, v20")
    A(f"s_lshl_b32 {s(S_T)}, {s(S_GRP)}, 7")
    A(f"s_add_u32 {s(S_T)}, {s(S_T)}, {MB_X}")
    lab = A.newlabel("XH")
    A.label(lab)
    A(f"buffer_load_dword v21, v20, {s(S_WS,4)}, {s(S_T)} offen sc1")
    A("s_waitcnt vmcnt(0)")
    A("v_cmp_eq_u32 vcc, -1, v21")
    retry(A, lab)
    jx = A.newlabel("XJ"); A(f"s_branch {jx}"); flush_stubs(A); A.label(jx)
    A(f"v_cmp_ne_u32 vcc, {s(S_FAST)}, v21")
    A("s_cmp_eq_u64 vcc, 0")
    A(f"s_cselect_b32 {s(S_FAST)}, 1, 0")
    A(f"v_bfe_u32 v20, {v(V_LANE)}, 1, 3")
    A(f"v_mul_u32_u24 v20, 1280, v20")
    A(f"v_lshrrev_b32 v21, 4, {v(V_LANE)}")
    A(f"v_lshl_add_u32 v20, v21, 5, v20")
    A(f"v_and_b32 v21, 1, {v(V_LANE)}")
    A(f"v_lshl_add_u32 v20, v21, 4, v20")
    A(f"s_lshl_b32 {s(S_T)}, {s(S_WAVE)}, 7")
    A(f"s_lshl_b32 {s(S_T2)}, {s(S_WAVE)}, 10")
    for j in range(3):
        sk = A.newlabel("m0s")
        if j == 2:
            A(f"s_cmp_ge_u32 {s(S_WAVE)}, 2"); A(f"s_cbranch_scc1 {sk}")
        A(f"s_add_u32 m0, {s(S_T2)}, {L_MEM + j*4096 - j*512}")
        A("s_nop 0")
        A(f"buffer_load_dwordx4 v20, {s(S_X,4)}, {s(S_T)} offen offset:{j*512} lds")
        if j == 2: A.label(sk)
    if not isV:
        if flags:
            A(f"s_lshl_b32 {s(S_T)}, {s(S_HEAD)}, 2")
            A(f"s_add_u32 {s(S_T)}, {s(S_T)}, {FL_K}")
            A(f"s_mov_b32 {s(S_T2)}, 1")
            flag_wait(A, V_FL, V_ZERO, S_T, S_T2, S_T3, S_T4)
            A(f"v_mov_b32 {v(V_FL)}, 0")
        A(f"s_mov_b32 m0, {s(S_MK)}")
        A("s_nop 0")
        for j in range(3):
            A(f"buffer_load_dwordx4 {v(V_L16)}, {s(S_WS,4)}, {s(S_KS)} offen offset:{j*1024} sc1 lds")
    A("s_waitcnt vmcnt(0)")
    A("s_barrier")
    classes = [0, 123] if isV else [0, 12, 3]
    labs = {c: A.newlabel("CLS") for c in classes}
    A(f"s_cmp_eq_u32 {s(S_WAVE)}, 0")
    A(f"s_cbranch_scc1 {labs[0]}")
    if not isV:
        A(f"s_cmp_eq_u32 {s(S_WAVE)}, 3")
        A(f"s_cbranch_scc1 {labs[3]}")
    for c in reversed(classes) if isV else [12, 3, 0]:
        A.label(labs[c])
        chain_loop(A, isV, c, flags)
        A(f"s_branch {end_label}")
```

```python
from common import *
V_L16 = 2; V_OST = 3; V_Z = 4; V_FA = 5; V_FU = 6; V_FP = 7; V_P2 = 8
PF = 12
ZF = 44
D = 76
S_ID = 22; S_SEGC = 23; S_CB = 24; S_T = 26; S_T2 = 27; S_NEED = 28; S_CNT = 29; S_US = 30; S_PS = 31; S_ZS = 32; S_OS = 33; S_M0 = 34; S_FB = 35; S_STR = 36
NTASK = 640

def lanes_wait(A, vfl, s_need):
    pass

def wait_flags(A, vaddr, vfl):
    flag_wait(A, vfl, vaddr, S_FB, S_NEED, S_T, S_CNT, sleep=4)

def decode(A, s_id):
    A(f"s_mul_i32 {s(S_SEGC)}, {s(s_id)}, 6554")
    A(f"s_lshr_b32 {s(S_SEGC)}, {s(S_SEGC)}, 16")
    A(f"s_mul_i32 {s(S_T)}, {s(S_SEGC)}, 10")
    A(f"s_sub_u32 {s(S_CB)}, {s(s_id)}, {s(S_T)}")
    A(f"s_lshl_b32 {s(S_CB)}, {s(S_CB)}, 2")
    A(f"s_add_u32 {s(S_CB)}, {s(S_CB)}, {s(S_WAVE)}")

def issue_u(A, base, flags):
    decode(A, S_T2)
    if flags:
        A(f"s_add_u32 {s(S_NEED)}, {s(S_SEGC)}, 1")
        A(f"s_min_u32 {s(S_NEED)}, {s(S_NEED)}, {NSEG}")
        wait_flags(A, V_FA, V_FU)
    A(f"s_mul_i32 {s(S_US)}, {s(S_SEGC)}, {40*32768}")
    A(f"s_lshl_b32 {s(S_T)}, {s(S_CB)}, 15")
    A(f"s_add_u32 {s(S_US)}, {s(S_US)}, {s(S_T)}")
    A(f"s_add_u32 {s(S_US)}, {s(S_US)}, {WS_U}")
    for h in range(32):
        if h and h % 4 == 0: A(f"s_add_u32 {s(S_US)}, {s(S_US)}, 4096")
        A(f"buffer_load_dwordx4 {a(base+4*h,4)}, {v(V_L16)}, {s(S_WS,4)}, {s(S_US)} offen offset:{(h%4)*1024} sc1")

def role_f(A, flags=False):
    A.c("================ role F ================")
    A(f"s_load_dwordx2 {s(S_W2,2)}, s[0:1], {KA['out']}")
    A(f"v_lshlrev_b32 {v(V_L16)}, 4, {v(V_LANE)}")
    A(f"v_add_u32 {v(V_P2)}, 40960, {v(V_L16)}")
    A(f"v_and_b32 v9, 31, {v(V_LANE)}")
    A(f"v_mul_u32_u24 v9, 2560, v9")
    A(f"v_lshrrev_b32 v10, 5, {v(V_LANE)}")
    A(f"v_lshl_add_u32 {v(V_OST)}, v10, 4, v9")
    A(f"v_mov_b32 {v(V_Z)}, 0")
    A(f"v_and_b32 v9, 31, {v(V_LANE)}")
    A(f"v_lshlrev_b32 v9, 2, v9")
    A(f"v_add_u32 {v(V_FA)}, {FL_U-FLAGS}, v9")
    A(f"v_lshlrev_b32 v11, 2, {v(V_LANE)}")
    A(f"v_add_u32 v11, {FL_Z-FLAGS}, v11")
    assert FL_Q == FL_Z + 128
    A(f"v_mov_b32 {v(V_FU)}, 0"); A(f"v_mov_b32 {v(V_FP)}, 0")
    A(f"s_mov_b32 {s(S_FB)}, {FLAGS}")
    A(f"s_mul_i32 {s(S_M0)}, {s(S_WAVE)}, 20480")
    A("s_waitcnt lgkmcnt(0)")
    srd_finish(A, S_W2, 2048*1280*2)
    A(f"s_mov_b32 {s(S_T2)}, {s(S_ID)}")
    issue_u(A, 0, flags)
    loop = A.newlabel("F_loop"); done = A.newlabel("F_done")
    A.label(loop)
    for par in range(2):
        A(f"s_mov_b32 {s(S_T2)}, {s(S_ID)}")
        decode(A, S_T2)
        if flags:
            A(f"s_add_u32 {s(S_NEED)}, {s(S_SEGC)}, 1")
            wait_flags(A, 11, V_FP)
        A(f"s_mul_i32 {s(S_PS)}, {s(S_SEGC)}, 81920")
        A(f"s_add_u32 {s(S_PS)}, {s(S_PS)}, {s(S_M0)}")
        A(f"s_add_u32 {s(S_PS)}, {s(S_PS)}, {WS_P}")
        A(f"s_mul_i32 {s(S_ZS)}, {s(S_SEGC)}, 327680")
        A(f"s_lshl_b32 {s(S_T)}, {s(S_CB)}, 13")
        A(f"s_add_u32 {s(S_ZS)}, {s(S_ZS)}, {s(S_T)}")
        A(f"s_add_u32 {s(S_ZS)}, {s(S_ZS)}, {WS_Z}")
        A(f"s_mul_i32 {s(S_OS)}, {s(S_SEGC)}, {32*2560}")
        A(f"s_lshl_b32 {s(S_T)}, {s(S_CB)}, 5")
        A(f"s_add_u32 {s(S_OS)}, {s(S_OS)}, {s(S_T)}")
        A("s_barrier")
        for j in range(20):
            if j % 4 == 0:
                A(f"s_add_u32 m0, {s(S_M0)}, {j*1024}")
                A(f"s_add_u32 {s(S_T)}, {s(S_PS)}, {j*1024}")
            A(f"buffer_load_dwordx4 {v(V_L16)}, {s(S_WS,4)}, {s(S_T)} offen offset:{(j%4)*1024} sc1 lds")
        for j in range(8):
            if j == 4: A(f"s_add_u32 {s(S_ZS)}, {s(S_ZS)}, 4096")
            A(f"buffer_load_dwordx4 {v(ZF+4*j,4)}, {v(V_L16)}, {s(S_WS,4)}, {s(S_ZS)} offen offset:{(j%4)*1024} sc1")
        A(f"s_add_u32 {s(S_T2)}, {s(S_ID)}, {s(S_STR)}")
        A(f"s_min_u32 {s(S_T2)}, {s(S_T2)}, {NTASK-1}")
        if flags:
            pass
        issue_u(A, 128*(1-par), flags)
        A("s_waitcnt vmcnt(32)")
        A("s_barrier")
        def rd(j):
            sl = j % 4
            A(f"ds_read_b128 {v(PF+sl*8,4)}, {v(V_L16)} offset:{j*1024}")
            A(f"ds_read_b128 {v(PF+sl*8+4,4)}, {v(V_P2)} offset:{j*1024}")
        for j in range(3): rd(j)
        for j in range(40):
            if j+3 < 40:
                rd(j+3); A("s_waitcnt lgkmcnt(6)")
            else: A(f"s_waitcnt lgkmcnt({2*(39-j)})")
            a_ = a(128*par+4*j,4) if j < 32 else v(ZF+4*(j-32),4)
            for q in range(2):
                A(f"v_mfma_f32_16x16x32_bf16 {v(D+4*q,4)}, {a_}, {v(PF+(j%4)*8+4*q,4)}, {'0' if j==0 else v(D+4*q,4)}")
        A("s_nop 7")
        A(f"v_cvt_pk_bf16_f32 {v(D+8)}, {v(D)}, {v(D+1)}")
        A(f"v_cvt_pk_bf16_f32 {v(D+9)}, {v(D+2)}, {v(D+3)}")
        A(f"v_cvt_pk_bf16_f32 {v(D+10)}, {v(D+4)}, {v(D+5)}")
        A(f"v_cvt_pk_bf16_f32 {v(D+11)}, {v(D+6)}, {v(D+7)}")
        A("s_nop 1")
        A(f"v_permlane16_swap_b32 {v(D+8)}, {v(D+10)}")
        A(f"v_permlane16_swap_b32 {v(D+9)}, {v(D+11)}")
        A(f"buffer_store_dwordx4 {v(D+8,4)}, {v(V_OST)}, {s(S_W2,4)}, {s(S_OS)} offen")
        A(f"s_add_u32 {s(S_ID)}, {s(S_ID)}, {s(S_STR)}")
        A(f"s_cmp_ge_u32 {s(S_ID)}, {NTASK}")
        A(f"s_cbranch_scc1 {done}")
    A(f"s_branch {loop}")
    A.label(done)
    A("s_waitcnt vmcnt(0)")
```

```python
from common import *
INIT_WGS = 208
def role_init(A):
    n = POISON_END - WS_MB
    A(f"s_load_dwordx2 {s(S_WS,2)}, s[0:1], {KA['ws']}")
    A("v_lshlrev_b32 v1, 4, v0")
    A("s_lshl_b32 s20, s2, 14")
    A(f"s_add_u32 s20, s20, {WS_MB}")
    for i in range(4): A(f"v_mov_b32 v{4+i}, -1")
    A("s_waitcnt lgkmcnt(0)")
    srd_finish(A, S_WS, POISON_END)
    for j in range(4):
        A(f"s_add_u32 s21, s20, {j*4096}")
        A(f"buffer_store_dwordx4 v[4:7], v1, {s(S_WS,4)}, s21 offen")
    lab = A.newlabel("ini")
    A("s_cmp_lg_u32 s2, 0")
    A(f"s_cbranch_scc1 {lab}")
    A(f"s_mov_b32 s6, {FLAGS_END}")
    A("v_mov_b32 v4, 0")
    A("v_lshlrev_b32 v1, 2, v0")
    A(f"s_mov_b32 s21, {FLAGS}")
    A(f"buffer_store_dword v4, v1, {s(S_WS,4)}, s21 offen")
    A.label(lab)
    A("s_waitcnt vmcnt(0)")
    assert n <= INIT_WGS*16384
```

```python
from common import *
STAMP=False
EXP=2

def load_w_rows384(A, srds, s_colbyte, dest_of, rowmap="dense", tiles=None, pfx="lw", vt=200, st=40, after_read=None):
    NS = 5; CH = 24576
    if isinstance(srds, int): srds = [srds]
    nchunk = 10*len(srds)
    vo = [vt, vt+1, vt+2]; vb0 = vt+3; vb1 = vt+4; t0 = vt+5; t1 = vt+6; t2 = vt+7
    sOff = st; sT = st+1; sM = st+2
    A.c("---- weight load: DMA source offsets")
    for j in range(3):
        A(f"v_add_u32 {v(t0)}, {64*j}, {v(V_LANE)}")
        div24(A, t1, t2, t0, sT)
        A(f"v_mul_u32_u24 {v(t1)}, 12288, {v(t1)}")
        A(f"v_lshl_add_u32 {v(vo[j])}, {v(t2)}, 4, {v(t1)}")
    A(f"s_mul_i32 {s(sT)}, {s(S_WAVE)}, {16*12288}")
    A(f"s_add_u32 {s(sOff)}, {s(s_colbyte)}, {s(sT)}")
    A(f"s_mul_i32 {s(sM)}, {s(S_WAVE)}, 6144")
    A(f"v_lshrrev_b32 {v(t0)}, 4, {v(V_LANE)}")
    A(f"v_bfe_u32 {v(t1)}, {v(V_LANE)}, 2, 2")
    if rowmap == "dense":
        A(f"v_lshl_add_u32 {v(t0)}, {v(t0)}, 3, {v(t1)}")
    else:
        A(f"v_lshrrev_b32 {v(t2)}, 1, {v(t0)}")
        A(f"v_and_b32 {v(t0)}, 1, {v(t0)}")
        A(f"v_lshlrev_b32 {v(t0)}, 2, {v(t0)}")
        A(f"v_lshl_add_u32 {v(t0)}, {v(t2)}, 4, {v(t0)}")
        A(f"v_lshrrev_b32 {v(t2)}, 1, {v(t1)}")
        A(f"v_lshl_add_u32 {v(t0)}, {v(t2)}, 3, {v(t0)}")
        A(f"v_and_b32 {v(t1)}, 1, {v(t1)}")
        A(f"v_add_u32 {v(t0)}, {v(t0)}, {v(t1)}")
    A(f"v_mul_u32_u24 {v(t0)}, 384, {v(t0)}")
    A(f"v_and_b32 {v(t1)}, 3, {v(V_LANE)}")
    A(f"v_lshl_add_u32 {v(t0)}, {v(t1)}, 3, {v(t0)}")
    A(f"s_mul_i32 {s(sT)}, {s(S_WAVE)}, 96")
    A(f"v_add_u32 {v(vb0)}, {s(sT)}, {v(t0)}")
    A(f"v_add_u32 {v(vb1)}, {2*CH+CH}, {v(vb0)}")
    def issue(c):
        slot = c % NS
        for j in range(6):
            A(f"s_add_u32 m0, {s(sM)}, {slot*CH + j*1024}")
            A(f"s_add_u32 {s(sT)}, {s(sOff)}, {(c%10)*64*12288 + (j//3)*8*12288}")
            A(f"buffer_load_dwordx4 {v(vo[j%3])}, {s(srds[c//10],4)}, {s(sT)} offen lds")
    for c in range(min(NS-1, nchunk)):
        issue(c)
    for c in range(nchunk):
        later = min(nchunk-1, c+NS-2) - c
        A(f"s_waitcnt vmcnt({6*later})")
        A("s_barrier")
        if c+NS-1 < nchunk:
            issue(c+NS-1)
        slot = c % NS
        vb = vb0 if slot < 3 else vb1
        sb = (slot if slot < 3 else slot-3)*CH
        n = 0
        for kk in range(2):
            for t in range(3):
                for half in range(2):
                    if rowmap == "dense":
                        off = kk*32*384 + half*4*384 + t*32
                    else:
                        off = kk*32*384 + half*2*384 + t*32
                    A(f"ds_read_b64_tr_b16 {dest_of(c,kk,t,half)}, {v(vb)} offset:{sb+off}")
                    n += 1
        A("s_waitcnt lgkmcnt(0)")
        if after_read: after_read(c)
    A("s_barrier")

XF = 8
ACC = 32
PK = 80
V_XSRC = 2; V_XRD = 3; V_ST0 = 4; V_ST1 = 5
S_SEG = 22; S_XOFF = 23; S_DST = 24; S_M0X = 25; S_T = 26; S_FLAG = 27; S_NSEG = 28

def wreg(t, k):
    return (t*20 + k)*4

def setup_x_stream(A):
    A(f"v_lshrrev_b32 v6, 3, {v(V_LANE)}")
    A(f"s_and_b32 {s(S_T)}, {s(S_WAVE)}, 1")
    A(f"s_lshl_b32 {s(S_T)}, {s(S_T)}, 2")
    A(f"v_lshrrev_b32 v7, 4, {v(V_LANE)}")
    A(f"v_add_u32 v7, {s(S_T)}, v7")
    A(f"v_and_b32 {v(V_XSRC)}, 7, {v(V_LANE)}")
    A(f"v_xor_b32 v7, v7, {v(V_XSRC)}")
    A(f"v_mul_u32_u24 v6, 1280, v6")
    A(f"v_lshl_add_u32 v6, v7, 4, v6")
    A(f"s_mul_i32 {s(S_T)}, {s(S_WAVE)}, {8*1280}")
    A(f"v_add_u32 {v(V_XSRC)}, {s(S_T)}, v6")
    A(f"s_mul_i32 {s(S_M0X)}, {s(S_WAVE)}, 10240")
    A(f"v_and_b32 v6, 15, {v(V_LANE)}")
    A(f"v_lshrrev_b32 v7, 1, v6")
    A(f"v_lshrrev_b32 {v(V_XRD)}, 4, {v(V_LANE)}")
    A(f"v_xor_b32 v7, v7, {v(V_XRD)}")
    A(f"v_lshlrev_b32 v7, 4, v7")
    A(f"v_lshrrev_b32 {v(V_XRD)}, 3, v6")
    A(f"v_mul_u32_u24 {v(V_XRD)}, 10240, {v(V_XRD)}")
    A(f"v_and_b32 v6, 7, v6")
    A(f"v_lshl_add_u32 v6, v6, 7, v7")
    A(f"v_add_u32 {v(V_XRD)}, {v(V_XRD)}, v6")
    A(f"v_xor_b32 {v(XB+1)}, 64, {v(V_XRD)}")
    A(f"v_mov_b32 {v(XB)}, {v(V_XRD)}")
    A(f"v_add_u32 {v(XB+2)}, 40960, {v(XB)}")
    A(f"v_add_u32 {v(XB+3)}, 40960, {v(XB+1)}")

XB = 92
XSRD = S_X; XFL = ""
def x_dma(A, buf, j, nop=True):
    A(f"s_add_u32 m0, {s(S_M0X)}, {buf*40960 + j*1024 - j*128}")
    if nop: A("s_nop 0")
    A(f"buffer_load_dwordx4 {v(V_XSRC)}, {s(XSRD,4)}, {s(S_XOFF)} offen offset:{j*128} {XFL} lds")

def issue_x(A, buf):
    for j in range(10):
        x_dma(A, buf, j)

def xread(A, buf, k):
    sl = k % 3
    for tau in range(2):
        A(f"ds_read_b128 {v(XF+sl*8+tau*4,4)}, {v(XB+buf*2+(k&1))} offset:{tau*20480+(k>>1)*1024}")

def kv_epilogue(accset, srd, sflags):
    L = []
    ac = lambda t, tau: ACC + accset*24 + (t*2+tau)*4
    for tau in range(2):
        for t in range(2):
            L.append(f"v_cvt_pk_bf16_f32 {v(PK+tau*4+t*2)}, {v(ac(t,tau))}, {v(ac(t,tau)+1)}")
            L.append(f"v_cvt_pk_bf16_f32 {v(PK+tau*4+t*2+1)}, {v(ac(t,tau)+2)}, {v(ac(t,tau)+3)}")
    for tau in range(2):
        L.append(f"v_cvt_pk_bf16_f32 {v(PK+8+tau*2)}, {v(ac(2,tau))}, {v(ac(2,tau)+1)}")
        L.append(f"v_cvt_pk_bf16_f32 {v(PK+8+tau*2+1)}, {v(ac(2,tau)+2)}, {v(ac(2,tau)+3)}")
    L.append(f"buffer_store_dwordx4 {v(PK,4)}, {v(V_ST0)}, {s(srd,4)}, {s(S_DST)} offen {sflags}")
    L.append(f"buffer_store_dwordx4 {v(PK+4,4)}, {v(V_ST0+2)}, {s(srd,4)}, {s(S_DST)} offen {sflags}")
    L.append(f"v_permlane16_swap_b32 {v(PK+8)}, {v(PK+10)}")
    L.append(f"v_permlane16_swap_b32 {v(PK+9)}, {v(PK+11)}")
    L.append(f"buffer_store_dwordx4 {v(PK+8,4)}, {v(V_ST1)}, {s(srd,4)}, {s(S_DST)} offen {sflags}")
    return L

def setup_kv_store(A):
    A(f"s_lshl_b32 {s(S_T)}, {s(S_WAVE)}, 10")
    A(f"v_lshl_add_u32 {v(V_ST0)}, {v(V_LANE)}, 4, {s(S_T)}")
    A(f"v_lshrrev_b32 v7, 4, {v(V_LANE)}")
    A(f"v_and_b32 v6, 1, v7")
    A(f"v_mul_u32_u24 v6, 6144, v6")
    A(f"v_lshrrev_b32 v7, 1, v7")
    A(f"v_lshl_add_u32 v6, v7, 8, v6")
    A(f"v_and_b32 v7, 15, {v(V_LANE)}")
    A(f"v_lshl_add_u32 v6, v7, 4, v6")
    A(f"s_lshr_b32 {s(S_T)}, {s(S_WAVE)}, 1")
    A(f"s_lshl_b32 {s(S_T)}, {s(S_T)}, 10")
    A(f"s_add_u32 {s(S_T)}, {s(S_T)}, 4096")
    A(f"v_add_u32 v6, {s(S_T)}, v6")
    A(f"s_and_b32 {s(S_T)}, {s(S_WAVE)}, 1")
    A(f"s_lshl_b32 {s(S_T)}, {s(S_T)}, 9")
    A(f"v_add_u32 {v(V_ST1)}, {s(S_T)}, v6")

def role_kv(A, flags=False):
    global V_XRD
    A.c("================ role K/V ================")
    srd_finish(A, S_W1, W_BYTES)
    A(f"s_load_dwordx2 {s(S_X,2)}, s[0:1], {KA['A_x']}")
    A(f"s_mul_i32 s30, {s(S_HEAD)}, 384")
    A(f"s_mul_i32 {s(S_T)}, {s(S_HEAD)}, 12288")
    A(f"s_add_u32 {s(S_DST)}, {s(S_DST)}, {s(S_T)}")
    A("s_waitcnt lgkmcnt(0)")
    srd_finish(A, S_X, X_BYTES)
    if STAMP: stamp(A,0)
    load_w_rows384(A, S_W1, 30, lambda c, kk, t, half: a(wreg(t, 2*c+kk)+2*half, 2))
    if STAMP: stamp(A,1)
    if flags: init_sync(A)
    setup_x_stream(A)
    setup_kv_store(A)
    A(f"v_add_u32 v6, 6144, {v(V_ST0)}")
    A(f"v_add_u32 v7, 0, {v(V_LANE)}")
    A(f"s_mov_b32 {s(S_XOFF)}, 0")
    A(f"s_mov_b32 {s(S_SEG)}, 0")
    issue_x(A, 0)
    A(f"s_sub_u32 {s(S_DST)}, {s(S_DST)}, {NH*12288}")
    loop = A.newlabel("KV_loop");
    A.label(loop)
    for par in range(2):
        A("s_waitcnt vmcnt(0)")
        A("s_barrier")
        for k in range(2):
            xread(A, par, k)
        fill = []
        skip = A.newlabel("KV_skip")
        if par == 0:
            A(f"s_cmp_eq_u32 {s(S_SEG)}, 0")
            A(f"s_cbranch_scc1 {skip}")
        if flags:
            publish_flag(A)
        A("s_nop 4")
        for ins in kv_epilogue(1-par, S_WS, "sc0 sc1"):
            if "permlane" in ins and PK+8 == int(ins.split()[1][1:-1]): A("s_nop 1")
            A(ins)
        A.label(skip)
        A(f"s_add_u32 {s(S_DST)}, {s(S_DST)}, {NH*12288}")
        A(f"s_add_u32 {s(S_XOFF)}, {s(S_XOFF)}, {32*1280}")
        if EXP == 0:
            issue_x(A, 1-par)
            gemm_seg(A, par)
        elif EXP == 1:
            gemm_seg(A, par)
        elif EXP == 2:
            gemm_seg(A, par, dma=1-par)
        A(f"s_add_u32 {s(S_SEG)}, {s(S_SEG)}, 1")
    A(f"s_cmp_lt_u32 {s(S_SEG)}, {NSEG}")
    A(f"s_cbranch_scc1 {loop}")
    A("s_waitcnt vmcnt(0)")
    A("s_barrier")
    if flags: publish_flag(A)
    A("s_nop 7")
    for ins in kv_epilogue(1, S_WS, "sc0 sc1"):
        if "permlane" in ins and PK+8 == int(ins.split()[1][1:-1]): A("s_nop 1")
        A(ins)
    A("s_waitcnt vmcnt(0)")
    if STAMP: stamp(A,2)
    if flags:
        A("s_barrier")
        A(f"s_add_u32 {s(S_SEG)}, {s(S_SEG)}, 1")
        publish_flag(A)

def gemm_seg(A, par, dma=None, accset=None):
    if accset is None: accset = par
    for k in range(20):
        if dma is not None and k < 10:
            A(f"s_add_u32 m0, {s(S_M0X)}, {dma*40960 + k*1024 - k*128}")
        if k+2 < 20:
            xread(A, par, k+2)
            A("s_waitcnt lgkmcnt(4)")
        elif k+1 < 20:
            A("s_waitcnt lgkmcnt(2)")
        else:
            A("s_waitcnt lgkmcnt(0)")
        sl = k % 3
        for t in range(3):
            for tau in range(2):
                acc = ACC + accset*24 + (t*2+tau)*4
                c = "0" if k == 0 else v(acc,4)
                A(f"v_mfma_f32_16x16x32_bf16 {v(acc,4)}, {a(wreg(t,k),4)}, {v(XF+sl*8+tau*4,4)}, {c}")
                if dma is not None and k < 10 and t == 1 and tau == 0:
                    A(f"buffer_load_dwordx4 {v(V_XSRC)}, {s(XSRD,4)}, {s(S_XOFF)} offen offset:{k*128} {XFL} lds")

def publish_flag(A):
    lab = A.newlabel("pf")
    A(f"s_cmp_lg_u32 {s(S_WAVE)}, 0")
    A(f"s_cbranch_scc1 {lab}")
    A(f"s_sub_u32 {s(S_T)}, {s(S_SEG)}, 1")
    A(f"v_mov_b32 v98, {s(S_T)}")
    A(f"v_mov_b32 v99, 0")
    A(f"s_mov_b64 exec, 1")
    A(f"buffer_store_dword v98, v99, {s(S_WS,4)}, {s(S_FLAG)} offen sc0 sc1")
    A(f"s_mov_b64 exec, -1")
    A.label(lab)
```

```python
from common import *
import role_kv as kv
from role_kv import XF, ACC, PK, V_ST0, V_ST1, S_SEG, S_XOFF, S_M0X, S_T, wreg
from role_chain import f32bits
import math
L_Q = 81920; L_KM = L_Q + 12288
KF = 100
QF = 148
MF = 172
SC = 196
MK = 208
V_TRA = 212; V_TRB = 213; V_L16 = 214; V_QW0 = 215; V_QW1 = 216; V_QW2 = 217; V_QR = 218; V_PM = 219; V_FL = 220; V_Z = 221; V_FA = 222
T0 = 224
S_KS = 30; S_KMS = 31; S_PD = 32; S_PDM = 33; S_C = 34; S_NEED = 35; S_CNT = 36; S_FLO = 37; S_FKM = 38; S_FK = 39; S_MB = 50

def xlane(A, op, r, t, which):
    A(f"v_mov_b32 {v(t)}, {v(r)}"); A("s_nop 1"); A(f"v_permlane{which}_swap_b32 {v(r)}, {v(t)}"); A(f"{op} {v(r)}, {v(r)}, {v(t)}")

def attention(A, qt):
    for ks in range(6):
        A(f"ds_read_b128 {v(QF+4*ks,4)}, {v(V_QR)} offset:{ks*1024}")
    for ks in range(6):
        if ks < 4: vb, o0, o1 = V_TRA, 48*ks*16, (48*ks+16)*16
        else: vb, o0, o1 = V_TRB, (96*(ks-4)+32)*16, (96*(ks-4)+36)*16
        if ks == 4: A("s_waitcnt lgkmcnt(8)")
        A(f"ds_read_b64_tr_b16 {v(MF+4*ks,2)}, {v(vb)} offset:{o0}")
        A(f"ds_read_b64_tr_b16 {v(MF+4*ks+2,2)}, {v(vb)} offset:{o1}")
    nt = 1 + qt
    for ks in range(6):
        for t in range(nt):
            c = (v(MK,4) if t == qt else "0") if ks == 0 else v(SC+4+4*t,4)
            A(f"v_mfma_f32_16x16x32_bf16 {v(SC+4+4*t,4)}, {v(KF+(t*6+ks)*4,4)}, {v(QF+4*ks,4)}, {c}")
    A("s_waitcnt lgkmcnt(0)")
    for ks in range(6):
        A(f"v_mfma_f32_16x16x32_bf16 {v(SC,4)}, {v(MF+4*ks,4)}, {v(QF+4*ks,4)}, {'0' if ks==0 else v(SC,4)}")
    n = 4 + 4*nt
    m, t0, sm = T0, T0+1, T0+2
    A(f"v_max3_f32 {v(m)}, {v(SC+4)}, {v(SC+5)}, {v(SC+6)}")
    if nt == 2:
        A(f"v_max3_f32 {v(m)}, {v(m)}, {v(SC+8)}, {v(SC+9)}")
        A(f"v_max3_f32 {v(m)}, {v(m)}, {v(SC+10)}, {v(SC+11)}")
    A("s_nop 6")
    A(f"v_max3_f32 {v(m)}, {v(m)}, {v(SC+7)}, {v(SC)}")
    A(f"v_max3_f32 {v(t0)}, {v(SC+1)}, {v(SC+2)}, {v(SC+3)}")
    A(f"v_max_f32 {v(m)}, {v(m)}, {v(t0)}")
    xlane(A, "v_max_f32", m, t0, 16); xlane(A, "v_max_f32", m, t0, 32)
    A(f"v_mul_f32 {v(m)}, {s(S_C)}, {v(m)}")
    for i in range(n): A(f"v_fma_f32 {v(SC+i)}, {v(SC+i)}, {s(S_C)}, -{v(m)}")
    for i in range(n): A(f"v_exp_f32 {v(SC+i)}, {v(SC+i)}")
    A(f"v_add_f32 {v(sm)}, {v(SC)}, {v(SC+1)}")
    A(f"v_add_f32 {v(t0)}, {v(SC+2)}, {v(SC+3)}")
    A(f"v_add_f32 {v(sm)}, {v(sm)}, {v(t0)}")
    A(f"v_mul_f32 {v(sm)}, 0.5, {v(sm)}")
    for i in range(4, n): A(f"v_add_f32 {v(sm)}, {v(sm)}, {v(SC+i)}")
    xlane(A, "v_add_f32", sm, t0, 16); xlane(A, "v_add_f32", sm, t0, 32)
    A(f"v_rcp_f32 {v(sm)}, {v(sm)}")
    A("s_nop 0")
    for i in range(n): A(f"v_mul_f32 {v(SC+i)}, {v(SC+i)}, {v(sm)}")
    o = T0+4
    for i in range(2): A(f"v_cvt_pk_bf16_f32 {v(o+4+i)}, {v(SC+2*i)}, {v(SC+2*i+1)}")
    for i in range(2*nt): A(f"v_cvt_pk_bf16_f32 {v(o+i)}, {v(SC+4+2*i)}, {v(SC+5+2*i)}")
    if nt == 1: A(f"v_mov_b64 {v(o+2,2)}, 0")
    A(f"buffer_store_dwordx4 {v(o,4)}, {v(V_L16)}, {s(S_WS,4)}, {s(S_PD)} offen sc0 sc1")
    A(f"s_mov_b64 exec, {s(S_MB,2)}")
    A(f"buffer_store_dwordx2 {v(o+4,2)}, {v(V_PM)}, {s(S_WS,4)}, {s(S_PDM)} offen sc0 sc1")
    A("s_mov_b64 exec, -1")

def role_q(A, flags=False):
    A.c("================ role Q ================")
    A(f"s_load_dwordx2 {s(S_W1,2)}, s[0:1], {KA['Wq']}")
    A(f"s_load_dwordx2 {s(S_X,2)}, s[0:1], {KA['A_x']}")
    A(f"s_mul_i32 s30, {s(S_HEAD)}, 384")
    A("s_waitcnt lgkmcnt(0)")
    srd_finish(A, S_W1, W_BYTES); srd_finish(A, S_X, X_BYTES)
    kv.load_w_rows384(A, S_W1, 30, lambda c, kk, t, half: a(wreg(t, 2*c+kk)+2*half, 2))
    if flags: init_sync(A)
    kv.setup_x_stream(A)
    kv.setup_kv_store(A)
    A(f"v_add_u32 {v(V_QW0)}, {L_Q}, {v(V_ST0)}")
    A(f"v_add_u32 {v(V_QW2)}, {L_Q}, {v(V_ST1)}")
    A(f"v_lshlrev_b32 {v(V_L16)}, 4, {v(V_LANE)}")
    A(f"s_and_b32 {s(S_T)}, {s(S_WAVE)}, 1")
    A(f"s_mul_i32 {s(S_PD)}, {s(S_T)}, 40960")
    A(f"s_mul_i32 {s(S_T)}, {s(S_T)}, 6144")
    A(f"s_add_u32 {s(S_T)}, {s(S_T)}, {L_Q}")
    A(f"v_add_u32 {v(V_QR)}, {s(S_T)}, {v(V_L16)}")
    n_, g_, r_, c_, t_ = T0, T0+1, T0+2, T0+3, T0+4
    A(f"v_and_b32 {v(n_)}, 15, {v(V_LANE)}")
    A(f"v_lshrrev_b32 {v(g_)}, 4, {v(V_LANE)}")
    A(f"v_bfe_u32 {v(r_)}, {v(V_LANE)}, 2, 2")
    A(f"v_and_b32 {v(c_)}, 1, {v(V_LANE)}")
    A(f"v_lshlrev_b32 {v(c_)}, 3, {v(c_)}")
    A(f"v_add_u32 {v(c_)}, {L_KM}, {v(c_)}")
    A(f"v_lshl_add_u32 {v(V_TRA)}, {v(g_)}, 2, {v(r_)}")
    A(f"v_lshl_add_u32 {v(V_TRA)}, {v(V_TRA)}, 4, {v(c_)}")
    A(f"v_lshrrev_b32 {v(t_)}, 1, {v(g_)}")
    A(f"v_mul_u32_u24 {v(t_)}, 48, {v(t_)}")
    A(f"v_and_b32 {v(V_TRB)}, 1, {v(g_)}")
    A(f"v_lshl_add_u32 {v(V_TRB)}, {v(V_TRB)}, 3, {v(t_)}")
    A(f"v_add_u32 {v(V_TRB)}, {v(V_TRB)}, {v(r_)}")
    A(f"v_lshl_add_u32 {v(V_TRB)}, {v(V_TRB)}, 4, {v(c_)}")
    A(f"v_lshlrev_b32 {v(V_PM)}, 4, {v(n_)}")
    A(f"v_lshl_add_u32 {v(V_PM)}, {v(g_)}, 3, {v(V_PM)}")
    A(f"v_lshlrev_b32 {v(t_)}, 2, {v(g_)}")
    A(f"v_mov_b32 {v(c_)}, {f32bits(-1e30)}")
    for r in range(4):
        A(f"v_add_u32 {v(r_)}, {r}, {v(t_)}")
        A(f"v_cmp_gt_u32 vcc, {v(r_)}, {v(n_)}")
        A("s_nop 1")
        A(f"v_cndmask_b32 {v(MK+r)}, 0, {v(c_)}, vcc")
    A(f"s_mov_b32 {s(S_MB)}, -1"); A(f"s_mov_b32 {s(S_MB+1)}, 0")
    A(f"v_mov_b32 {v(V_Z)}, 0"); A(f"v_mov_b32 {v(V_FL)}, 0"); A(f"v_mov_b32 {v(V_FA)}, 0")
    A(f"s_mov_b32 {s(S_C)}, {f32bits(192**-0.5*math.log2(math.e))}")
    A(f"s_mul_i32 {s(S_KS)}, {s(S_HEAD)}, 12288")
    A(f"s_add_u32 {s(S_KS)}, {s(S_KS)}, {WS_K}")
    A(f"s_mul_i32 {s(S_KMS)}, {s(S_HEAD)}, 3072")
    A(f"s_add_u32 {s(S_KMS)}, {s(S_KMS)}, {WS_KM}")
    A(f"s_add_u32 {s(S_PD)}, {s(S_PD)}, {WS_P}")
    A(f"s_lshl_b32 {s(S_T)}, {s(S_HEAD)}, 8")
    A(f"s_add_u32 {s(S_PDM)}, {s(S_PD)}, {s(S_T)}")
    A(f"s_add_u32 {s(S_PDM)}, {s(S_PDM)}, {32*1024}")
    A(f"s_lshl_b32 {s(S_T)}, {s(S_HEAD)}, 10")
    A(f"s_add_u32 {s(S_PD)}, {s(S_PD)}, {s(S_T)}")
    A(f"s_lshl_b32 {s(S_T)}, {s(S_HEAD)}, 2")
    A(f"s_add_u32 {s(S_FLO)}, {s(S_T)}, {FL_Q}")
    A(f"s_add_u32 {s(S_FKM)}, {s(S_T)}, {FL_KM}")
    A(f"s_add_u32 {s(S_FK)}, {s(S_T)}, {FL_K}")
    A(f"s_mov_b32 {s(S_XOFF)}, 0")
    A(f"s_mov_b32 {s(S_SEG)}, 0")
    kv.issue_x(A, 0)
    loop = A.newlabel("Q_loop")
    A.label(loop)
    for par in range(2):
        A("s_waitcnt vmcnt(0)")
        A("s_barrier")
        for k in range(2): kv.xread(A, par, k)
        if flags: publish(A, S_SEG, S_FLO, vt=T0)
        A(f"s_add_u32 {s(S_NEED)}, {s(S_SEG)}, 1")
        sk = A.newlabel("Q_nok")
        A(f"s_cmp_ge_u32 {s(S_WAVE)}, 2"); A(f"s_cbranch_scc1 {sk}")
        if flags: flag_wait(A, V_FA, V_Z, S_FK, S_NEED, S_T, S_CNT)
        for f in range(12):
            if f % 4 == 0: A(f"s_add_u32 {s(S_T)}, {s(S_KS)}, {f*1024}")
            A(f"buffer_load_dwordx4 {v(KF+4*f,4)}, {v(V_L16)}, {s(S_WS,4)}, {s(S_T)} offen offset:{(f%4)*1024} sc1")
        A.label(sk)
        A(f"s_add_u32 {s(S_XOFF)}, {s(S_XOFF)}, {32*1280}")
        kv.gemm_seg(A, par, dma=1-par, accset=0)
        sk = A.newlabel("Q_nom")
        A(f"s_cmp_lg_u32 {s(S_WAVE)}, 3"); A(f"s_cbranch_scc1 {sk}")
        if flags: flag_wait(A, V_FL, V_Z, S_FKM, S_NEED, S_T, S_CNT)
        A(f"s_mov_b32 m0, {L_KM}")
        A("s_nop 0")
        for j in range(3):
            A(f"buffer_load_dwordx4 {v(V_L16)}, {s(S_WS,4)}, {s(S_KMS)} offen offset:{j*1024} sc1 lds")
        A.label(sk)
        A("s_nop 7")
        for ins in kv.kv_epilogue(0, S_WS, ""):
            if ins.startswith("buffer_store"):
                d = ins.split()[1].rstrip(",")
                ins = {v(PK,4): f"ds_write_b128 {v(V_QW0)}, {d}", v(PK+4,4): f"ds_write_b128 {v(V_QW0)}, {d} offset:6144", v(PK+8,4): f"ds_write_b128 {v(V_QW2)}, {d}"}[d]
            A(ins)
        sk = A.newlabel("Q_w3");
        A(f"s_cmp_lg_u32 {s(S_WAVE)}, 3"); A(f"s_cbranch_scc1 {sk}")
        A("s_waitcnt vmcnt(0)")
        A.label(sk)
        A("s_waitcnt vmcnt(10) lgkmcnt(0)")
        A("s_barrier")
        l0 = A.newlabel("Q_a0"); l1 = A.newlabel("Q_done")
        A(f"s_cmp_ge_u32 {s(S_WAVE)}, 2"); A(f"s_cbranch_scc1 {l1}")
        A(f"s_cmp_eq_u32 {s(S_WAVE)}, 0"); A(f"s_cbranch_scc1 {l0}")
        attention(A, 1)
        A(f"s_branch {l1}")
        A.label(l0)
        attention(A, 0)
        A.label(l1)
        A(f"s_add_u32 {s(S_KS)}, {s(S_KS)}, {NH*12288}")
        A(f"s_add_u32 {s(S_KMS)}, {s(S_KMS)}, {NH*3072}")
        A(f"s_add_u32 {s(S_PD)}, {s(S_PD)}, 81920")
        A(f"s_add_u32 {s(S_PDM)}, {s(S_PDM)}, 81920")
        A(f"s_add_u32 {s(S_SEG)}, {s(S_SEG)}, 1")
    A(f"s_cmp_lt_u32 {s(S_SEG)}, {NSEG}")
    A(f"s_cbranch_scc1 {loop}")
    A("s_waitcnt vmcnt(0)")
    if flags:
        A("s_barrier")
        publish(A, S_SEG, S_FLO, vt=T0)
```

```python
from common import *
STAMP=False

def load_wo(A, srd, s_base, dest_of, sparse=False, vt=200, st=40, after_read=None):
    NS = 3; CH = 40960
    vo = vt; vbA = vt+1; vbB = vt+2; t0 = vt+5; t1 = vt+6; t2 = vt+7; vb2 = vt+3; vb3 = vt+4
    sOff = st; sT = st+1; sM = st+2; sOff2 = st+3
    A(f"v_lshlrev_b32 {v(vo)}, 4, {v(V_LANE)}")
    A(f"s_mul_i32 {s(sM)}, {s(S_WAVE)}, 10240")
    A(f"s_add_u32 {s(sOff)}, {s(s_base)}, {s(sM)}")
    A(f"s_lshr_b32 {s(sT)}, {s(S_WAVE)}, 1")
    A(f"s_mul_i32 {s(sT)}, {s(sT)}, {32*1280}")
    A(f"s_add_u32 {s(sOff2)}, {s(sOff)}, {s(sT)}")
    A(f"v_lshrrev_b32 {v(t0)}, 4, {v(V_LANE)}")
    A(f"v_bfe_u32 {v(t1)}, {v(V_LANE)}, 2, 2")
    A(f"v_and_b32 {v(t2)}, 3, {v(V_LANE)}")
    A(f"v_lshlrev_b32 {v(t2)}, 3, {v(t2)}")
    A(f"s_mul_i32 {s(sT)}, {s(S_WAVE)}, 320")
    A(f"v_add_u32 {v(t2)}, {s(sT)}, {v(t2)}")
    if not sparse:
        A(f"v_lshl_add_u32 {v(vbA)}, {v(t0)}, 2, {v(t1)}")
        A(f"v_lshl_add_u32 {v(vbB)}, {v(t0)}, 3, {v(t1)}")
        A(f"v_mul_u32_u24 {v(vbA)}, 1280, {v(vbA)}")
        A(f"v_mul_u32_u24 {v(vbB)}, 1280, {v(vbB)}")
        A(f"v_add_u32 {v(vbA)}, {v(vbA)}, {v(t2)}")
        A(f"v_add_u32 {v(vbB)}, {v(vbB)}, {v(t2)}")
    else:
        A(f"v_lshrrev_b32 {v(vbA)}, 1, {v(t0)}")
        A(f"v_and_b32 {v(t0)}, 1, {v(t0)}")
        A(f"v_lshlrev_b32 {v(t0)}, 2, {v(t0)}")
        A(f"v_lshl_add_u32 {v(t0)}, {v(vbA)}, 4, {v(t0)}")
        A(f"v_lshrrev_b32 {v(vbA)}, 1, {v(t1)}")
        A(f"v_lshl_add_u32 {v(t0)}, {v(vbA)}, 3, {v(t0)}")
        A(f"v_and_b32 {v(t1)}, 1, {v(t1)}")
        A(f"v_add_u32 {v(t0)}, {v(t0)}, {v(t1)}")
        A(f"v_mul_u32_u24 {v(vbA)}, 1280, {v(t0)}")
        A(f"v_add_u32 {v(vbA)}, {v(vbA)}, {v(t2)}")
        A(f"v_mov_b32 {v(vbB)}, {v(vbA)}")
    def issue(c):
        slot = c % NS
        if sparse: src, so = 32*c*1280, sOff
        elif c < 4: src, so = 48*c*1280, sOff
        else: src, so = (96*(c-4)+32)*1280, sOff2
        A(f"s_add_u32 {s(sT)}, {s(so)}, {src}")
        for j in range(10):
            if j % 4 == 0:
                A(f"s_add_u32 m0, {s(sM)}, {slot*CH + j*1024}")
                if j: A(f"s_add_u32 {s(sT)}, {s(sT)}, 4096")
                else: A("s_nop 0")
            A(f"buffer_load_dwordx4 {v(vo)}, {s(srd,4)}, {s(sT)} offen offset:{(j%4)*1024} lds")
    for c in range(NS-1): issue(c)
    for c in range(6):
        later = min(5, c+NS-2) - c
        A(f"s_waitcnt vmcnt({10*later})")
        A("s_barrier")
        if c+NS-1 < 6: issue(c+NS-1)
        slot = c % NS
        vb = vbA if (c < 4) else vbB
        A(f"v_add_u32 {v(vb2)}, {slot*CH}, {v(vb)}")
        for t in range(10):
            for half in range(2):
                if sparse: off = half*2*1280
                else: off = half*(16*1280 if c < 4 else 4*1280)
                A(f"ds_read_b64_tr_b16 {dest_of(c,t,half)}, {v(vb2)} offset:{off + t*32}")
            if t == 6: A("s_waitcnt lgkmcnt(0)")
        A("s_waitcnt lgkmcnt(0)")
        if after_read: after_read(c)
    A("s_barrier")

VF = 8
ACC = 56
PK = 72
V_SRC = 2; V_RD = 3; V_ST = 4; V_FL = 5; V_Z = 6
S_SEG = 22; S_SRC = 23; S_DST = 24; S_M0 = 25; S_T = 26; S_FLAG = 27; S_FIN = 28; S_NEED = 29; S_CNT = 30; S_D2 = 31

def wreg(t, ks): return (t*6+ks)*4

def v_dma(A, buf):
    A(f"s_add_u32 m0, {s(S_M0)}, {buf*12288}")
    A("s_nop 0")
    for j in range(3):
        A(f"buffer_load_dwordx4 {v(V_SRC)}, {s(S_WS,4)}, {s(S_SRC)} offen offset:{j*1024} sc1 lds")

def epi(T, st):
    ac = ACC + st*8; pk = PK + st*4
    L = [f"v_cvt_pk_bf16_f32 {v(pk)}, {v(ac)}, {v(ac+1)}", f"v_cvt_pk_bf16_f32 {v(pk+1)}, {v(ac+2)}, {v(ac+3)}",
         f"v_cvt_pk_bf16_f32 {v(pk+2)}, {v(ac+4)}, {v(ac+5)}", f"v_cvt_pk_bf16_f32 {v(pk+3)}, {v(ac+6)}, {v(ac+7)}",
         f"s_add_u32 {s(S_D2)}, {s(S_DST)}, {T*32768}",
         f"buffer_store_dwordx4 {v(pk,4)}, {v(V_ST)}, {s(S_WS,4)}, {s(S_D2)} offen sc0 sc1"]
    return L

def role_u(A, flags=False):
    A.c("================ role U ================")
    A(f"s_load_dwordx2 {s(S_W1,2)}, s[0:1], {KA['Wo']}")
    A(f"s_mul_i32 s32, {s(S_HEAD)}, 245760")
    A("s_waitcnt lgkmcnt(0)")
    srd_finish(A, S_W1, W_BYTES)
    if STAMP: stamp(A,0)
    load_wo(A, S_W1, 32, lambda c, t, half: a(wreg(t, c)+2*half, 2))
    if STAMP: stamp(A,1)
    if flags: init_sync(A)
    A(f"s_mul_i32 {s(S_M0)}, {s(S_WAVE)}, 3072")
    A(f"v_lshlrev_b32 {v(V_RD)}, 4, {v(V_LANE)}")
    A(f"v_add_u32 {v(V_SRC)}, {s(S_M0)}, {v(V_RD)}")
    A(f"s_mul_i32 {s(S_T)}, {s(S_WAVE)}, {10*32768}")
    A(f"v_add_u32 {v(V_ST)}, {s(S_T)}, {v(V_RD)}")
    A(f"v_mov_b32 {v(V_Z)}, 0")
    A(f"s_mul_i32 {s(S_SRC)}, {s(S_HEAD)}, 12288")
    A(f"s_add_u32 {s(S_SRC)}, {s(S_SRC)}, {WS_V}")
    A(f"s_lshl_b32 {s(S_DST)}, {s(S_HEAD)}, 10")
    A(f"s_add_u32 {s(S_DST)}, {s(S_DST)}, {WS_U - 40*32768}")
    A(f"s_mov_b32 {s(S_SEG)}, 0")
    if flags:
        A(f"v_mov_b32 {v(V_FL)}, 0")
        A(f"s_mov_b32 {s(S_NEED)}, 1")
        flag_wait(A, V_FL, V_Z, S_FIN, S_NEED, S_T, S_CNT)
    v_dma(A, 0)
    loop = A.newlabel("U_loop")
    A("s_waitcnt vmcnt(0)")
    A.label(loop)
    for par in range(2):
        A("s_waitcnt vmcnt(9)")
        A("s_barrier")
        for ks in range(6):
            for tau in range(2):
                A(f"ds_read_b128 {v(VF+(ks*2+tau)*4,4)}, {v(V_RD)} offset:{par*12288 + (tau*6+ks)*1024}")
        skip = A.newlabel("U_skip")
        if par == 0:
            A(f"s_cmp_eq_u32 {s(S_SEG)}, 0")
            A(f"s_cbranch_scc1 {skip}")
        if flags:
            A(f"s_sub_u32 {s(S_T)}, {s(S_SEG)}, 1")
            publish(A, S_T, S_FLAG)
        for ins in epi(9, 1): A(ins)
        A.label(skip)
        A(f"s_add_u32 {s(S_DST)}, {s(S_DST)}, {40*32768}")
        A(f"s_add_u32 {s(S_SRC)}, {s(S_SRC)}, {NH*12288}")
        if flags:
            A(f"s_add_u32 {s(S_NEED)}, {s(S_SEG)}, 2")
            A(f"s_min_u32 {s(S_NEED)}, {s(S_NEED)}, {NSEG}")
            flag_wait(A, V_FL, V_Z, S_FIN, S_NEED, S_T, S_CNT)
            flag_load(A, V_FL, V_Z, S_FIN)
        v_dma(A, 1-par)
        for T in range(10):
            st = T & 1
            fill = epi(T-1, 1-st) if T > 0 else []
            n = 0
            for ks in range(6):
                if T == 0:
                    A(f"s_waitcnt lgkmcnt({10-2*ks})")
                for tau in range(2):
                    acc = ACC + st*8 + tau*4
                    c = "0" if ks == 0 else v(acc,4)
                    A(f"v_mfma_f32_16x16x32_bf16 {v(acc,4)}, {v(VF+(ks*2+tau)*4,4)}, {a(wreg(T,ks),4)}, {c}")
                    n += 1
                    if n >= 4 and fill: A(fill.pop(0))
        A(f"s_add_u32 {s(S_SEG)}, {s(S_SEG)}, 1")
    A(f"s_cmp_lt_u32 {s(S_SEG)}, {NSEG}")
    A(f"s_cbranch_scc1 {loop}")
    A("s_nop 7")
    for ins in epi(9, 1): A(ins)
    A("s_waitcnt vmcnt(0)")
    if STAMP: stamp(A,2)
    if flags:
        A("s_barrier")
        publish(A, S_SEG, S_FLAG)
```

```python
class Emit:
    def __init__(self, A):
        self.A = A; self.q = []
    def reset(self): self.q = []
    def __call__(self, it):
        if isinstance(it, str):
            if it.startswith("ds_"): raise ValueError("untagged ds op " + it)
            self.A(it)
        elif isinstance(it, (list, tuple)) and it[0] == "ds":
            self.A(it[2]); self.q.append(it[1])
        elif isinstance(it, (list, tuple)) and it[0] == "need":
            self.need(it[1])
        else: raise ValueError(it)
    def need(self, tag):
        idx = [i for i, t in enumerate(self.q) if t == tag]
        if not idx: return
        n = len(self.q) - 1 - idx[-1]
        n = min(n, 15)
        self.A(f"s_waitcnt lgkmcnt({n})")
        self.q = self.q[len(self.q)-n:] if n else []
    def drain(self):
        self.A("s_waitcnt lgkmcnt(0)"); self.q = []

def ds(tag, text): return ("ds", tag, text)
def need(tag): return ("need", tag)

def vcost(it):
    if isinstance(it, tuple): return 0
    c = 0
    for ln in it.split("\n"):
        ln = ln.strip()
        if ln.startswith("v_mfma") or ln.startswith("v_smfmac"): c += 0
        elif ln.startswith("v_permlane") or ln.startswith(("v_exp","v_rcp","v_log","v_rsq")): c += 2
        elif ln.startswith("v_"): c += 1
        elif ln.startswith("s_nop"): c += int(ln.split()[1]) + 1
    return c

def kind(it):
    if isinstance(it, tuple): return "need" if it[0] == "need" else "ds"
    if "\n" in it: return "block"
    if it.startswith(("v_mfma", "v_smfmac")): return "mfma"
    if it.startswith("buffer_"): return "ds"
    if it.startswith("v_"): return "valu"
    if it.startswith("s_nop"): return "valu"
    return "salu"

def schedule(E, main, tasks, cap=None, maxn=None):
    tasks = [[e, d, list(items)] for e, d, items in tasks]
    main = [list(m) for m in main]
    debt = 0
    def fill(i, dense):
        nonlocal debt
        nv = (cap if cap is not None else (2 if dense else 1)) - debt; debt = 0
        slots = 3
        def heads(ks): return sorted([t for t in tasks if t[2] and t[0] <= i and kind(t[2][0]) in ks], key=lambda t: t[1])
        took_ds = False
        while True:
            h = heads(("need",))
            if h: E(h[0][2].pop(0)); continue
            h = heads(("mfma",))
            if h:
                E(h[0][2].pop(0)); slots = 3; took_ds = False; nv = max(nv, 0) + 1; continue
            room = slots - min(max(nv, 0), 1 if heads(("valu",)) else 0)
            h = heads(("block",)) if (slots == 3) else []
            h2 = heads(("ds",)) if (not took_ds and slots >= 2) else []
            c = sorted(h + h2, key=lambda t: t[1])
            if c:
                it = c[0][2].pop(0); E(it)
                if kind(it) == "block": slots = 0; nv = 0
                else: slots -= 2; took_ds = True
                continue
            h = heads(("salu",)) if room >= 1 else []
            if h: E(h[0][2].pop(0)); slots -= 1; continue
            break
        while nv > 0 and slots > 0:
            h = heads(("valu",))
            if not h: break
            it = h[0][2].pop(0); E(it); c = vcost(it); nv -= c; slots -= c
        if nv < 0: debt = -nv
    for i, m in enumerate(main):
        for t in sorted(tasks, key=lambda t: t[1]):
            if t[1] <= i:
                assert t[0] < i or not t[2], f"task earliest {t[0]} deadline {t[1]} infeasible"
                for it in t[2]: E(it)
                t[2] = []
        for it in m: E(it)
        if i+1 < len(main):
            while main[i+1] and kind(main[i+1][0]) == "need" and any(tg == main[i+1][0][1] for tg in E.q):
                E(main[i+1].pop(0))
        last = m[-1] if m else ""
        fill(i, not (isinstance(last, str) and "smfmac" in last))
    for t in sorted(tasks, key=lambda t: t[1]):
        for it in t[2]: E(it)
```

```python
from common import *
import role_kv, role_u, role_chain, role_init, role_q, role_f, role_b, hazard, sys
NAME = "concat_heads__memory_aug_recurrent_mem_tr__sliding_block__prompt"
out = sys.argv[1]
rc = role_chain
rc.PBMODE = 2; rc.DELAYL = 4; rc.DELAYLV = 2; rc.DELAYB = 5; rc.DELAYBS = 2; rc.DELAY0 = 4
TS = 0
for kv in sys.argv[2:]:
    k, x = kv.split('=')
    if k == "TS": TS = int(x)
    else: setattr(rc, k, int(x))
NF = 27
ref = open("cdna_kernels/" + NAME + ".s.ref").read().split("\n")
head = [l for l in ref if l.startswith(";") and "@launch" not in l and "Override launch" not in l and "grid=ceil" not in l]
MAIN = NAME + "_kernel"
hdr = "\n".join(head) + "\n"
hdr += f"; @launch kernel=init_kernel grid=({role_init.INIT_WGS},1,1) block=(256,1,1) lds=0\n"
hdr += f"; @launch kernel={MAIN} grid=(256,1,1) block=(256,1,1) lds=163840\n"
hdr += ".amdgcn_target \"amdgcn-amd-amdhsa--gfx950\"\n.text\n"
A = Asm()
A(f"s_cmp_ge_u32 s2, {role_init.INIT_WGS}"); A("s_cbranch_scc1 L_end_i")
role_init.role_init(A)
A.label("L_end_i"); A("s_endpgm")
body = kernel_header("init_kernel") + A.text()

def tstamp(A, k):
    if not TS: return
    lab = A.newlabel("ts")
    A(f"s_cmp_lg_u32 {s(S_WAVE)}, 0"); A(f"s_cbranch_scc1 {lab}")
    A("s_memrealtime s[92:93]"); A("s_lshl_b32 s94, s2, 4"); A(f"s_add_u32 s94, s94, {WS_SCR + 2097152 + 4*k}")
    A("s_waitcnt lgkmcnt(0)"); A("v_mov_b32 v252, s92"); A("v_mov_b32 v253, 0")
    A(f"buffer_store_dword v252, v253, {s(S_WS,4)}, s94 offen"); A("s_waitcnt vmcnt(0)")
    A.label(lab)

A = Asm(); A.uid = 100
A("s_cmp_ge_u32 s2, 256"); A("s_cbranch_scc1 L_exit")
prologue(A)
tstamp(A, 0)
A("s_and_b32 s23, s2, 7"); A("s_lshr_b32 s24, s2, 3")
A("s_cmp_ge_u32 s23, 2"); A("s_cbranch_scc1 L_bulk")
A("s_cmp_ge_u32 s24, 16"); A("s_cbranch_scc1 L_chV")
rc.role_chain(A, False, "L_end", flags=True)
A.label("L_exit"); A("s_endpgm")
A.label("L_chV")
rc.role_chain(A, True, "L_end", flags=True)
A.label("L_bulk")
A("s_mul_i32 s25, s24, 6"); A("s_add_u32 s25, s25, s23"); A("s_sub_u32 s25, s25, 2")
A(f"s_and_b32 {s(S_HEAD)}, s25, 31")
A("s_cmp_ge_u32 s25, 64"); A("s_cbranch_scc1 L_notkv")
A(f"s_load_dwordx2 s[8:9], s[0:1], {KA['Wk']}")
A(f"s_load_dwordx2 s[10:11], s[0:1], {KA['Wv']}")
A(f"s_lshl_b32 s3, {s(S_HEAD)}, 2")
A("s_waitcnt lgkmcnt(0)")
A("s_cmp_ge_u32 s25, 32")
A("s_cselect_b32 s8, s10, s8"); A("s_cselect_b32 s9, s11, s9")
A(f"s_cselect_b32 {s(role_kv.S_DST)}, {WS_V}, {WS_K}")
A(f"s_cselect_b32 {s(role_kv.S_FLAG)}, {FL_V-FL_K}, 0")
A(f"s_add_u32 s3, s3, {FL_K}")
A(f"s_add_u32 {s(role_kv.S_FLAG)}, {s(role_kv.S_FLAG)}, s3")
role_kv.role_kv(A, flags=True)
A("s_branch L_end")
A.label("L_notkv")
A("s_cmp_ge_u32 s25, 96"); A("s_cbranch_scc1 L_notu")
A(f"s_lshl_b32 s3, {s(S_HEAD)}, 2")
A(f"s_add_u32 {s(role_u.S_FLAG)}, s3, {FL_U}"); A(f"s_add_u32 {s(role_u.S_FIN)}, s3, {FL_V}")
role_u.role_u(A, flags=True)
A("s_branch L_end")
A.label("L_notu")
A("s_cmp_ge_u32 s25, 128"); A("s_cbranch_scc1 L_notq")
role_q.role_q(A, flags=True)
A("s_branch L_end")
A.label("L_notq")
A("s_cmp_ge_u32 s25, 160"); A("s_cbranch_scc1 L_notb")
role_b.role_b(A, flags=True)
A("s_branch L_end")
A.label("L_notb")
A("s_cmp_ge_u32 s25, 165"); A("s_cbranch_scc1 L_f")
A(f"s_sub_u32 {s(role_b.S_J)}, s25, 160")
role_b.role_b3(A, flags=True)
A("s_branch L_end")
A.label("L_f")
A(f"s_sub_u32 {s(role_f.S_ID)}, s25, 165"); A(f"s_mov_b32 {s(role_f.S_STR)}, {NF}")
role_f.role_f(A, flags=True)
A.label("L_end")
tstamp(A, 1)
A("s_endpgm")
body += kernel_header(MAIN) + A.text()
txt = hdr + body + '.section .rodata,"a"\n.p2align 6\n' + kernel_desc("init_kernel", 16, 16, 32) + ".p2align 6\n" + kernel_desc(MAIN)
open(out, "w").write(txt)
print(len(txt), "bytes")
hazard.check(txt)
```

```python
from asmlib import *
from layout import *

KA = dict(A_x=0, mem0=8, Wq=16, Wk=24, Wv=32, Wo=40, seg=48, B_x=56, wqkv=64, wo=72, out=80, dbg=88, ws=96)
W_BYTES = 640*6144*2
X_BYTES = 2048*640*2

S_WS = 4; S_W1 = 8; S_X = 12; S_W2 = 16
S_WAVE = 20; S_HEAD = 21
V_LANE = 1
S_DBG = 98
NF = 27

def srd_finish(A, base, nbytes):
    A(f"s_and_b32 {s(base+1)}, {s(base+1)}, 0xffff")
    A(f"s_mov_b32 {s(base+2)}, {nbytes}")
    A(f"s_mov_b32 {s(base+3)}, 0x20000")

def prologue(A):
    A(f"s_load_dwordx2 {s(S_WS,2)}, s[0:1], {KA['ws']}")
    A(f"v_lshrrev_b32 v2, 6, v0")
    A(f"v_and_b32 v{V_LANE}, 63, v0")
    A(f"v_readfirstlane_b32 {s(S_WAVE)}, v2")
    A(f"s_load_dwordx2 {s(S_DBG,2)}, s[0:1], {KA['dbg']}")
    A(f"s_mov_b32 s100, 60000")
    A("s_waitcnt lgkmcnt(0)")
    srd_finish(A, S_WS, WS_SIZE)

def mul_const(A, dst, src, const, stmp):
    A(f"s_mov_b32 {s(stmp)}, {const}")
    A(f"v_mul_lo_u32 {v(dst)}, {v(src)}, {s(stmp)}")

def div24(A, q, r, u, stmp):
    A(f"v_mul_u32_u24 {v(q)}, 2731, {v(u)}")
    A(f"v_lshrrev_b32 {v(q)}, 16, {v(q)}")
    A(f"v_mul_u32_u24 {v(r)}, 24, {v(q)}")
    A(f"v_sub_u32 {v(r)}, {v(u)}, {v(r)}")

def stamp(A, idx, cond_wg=0, stmp=90):
    lab = A.newlabel("st")
    A(f"s_cmp_lg_u32 s2, {cond_wg}")
    A(f"s_cbranch_scc1 {lab}")
    A(f"s_cmp_lg_u32 {s(S_WAVE)}, 0")
    A(f"s_cbranch_scc1 {lab}")
    A(f"s_load_dwordx2 {s(stmp,2)}, s[0:1], {KA['dbg']}")
    A(f"s_memrealtime {s(stmp+2,2)}")
    A(f"s_memtime {s(stmp+4,2)}")
    A("s_waitcnt lgkmcnt(0)")
    A(f"v_mov_b32 v252, {s(stmp+2)}")
    A(f"v_mov_b32 v253, {s(stmp+4)}")
    A(f"v_mov_b32 v255, {idx*8}")
    A(f"global_store_dwordx2 v255, v[252:253], {s(stmp,2)}")
    A.label(lab)

SPIN_MAX = 60000
S_BUD = 100
def flag_load(A, vdst, vzero, s_off):
    A(f"buffer_load_dword {v(vdst)}, {v(vzero)}, {s(S_WS,4)}, {s(s_off)} offen sc1")

def flag_wait(A, vflag, vzero, s_off, s_need, s_tmp, s_cnt, sleep=2):
    ok = A.newlabel("fw_ok"); lp = A.newlabel("fw_lp")
    A.label(lp)
    A(f"v_cmp_gt_u32 vcc, {s(s_need)}, {v(vflag)}")
    A(f"s_cbranch_vccz {ok}")
    A(f"s_cmp_eq_u32 {s(S_BUD)}, 0")
    A(f"s_cbranch_scc1 {ok}")
    A(f"s_sub_u32 {s(S_BUD)}, {s(S_BUD)}, 1")
    if sleep: A(f"s_sleep {sleep}")
    flag_load(A, vflag, vzero, s_off)
    A("s_waitcnt vmcnt(0)")
    A(f"s_branch {lp}")
    A.label(ok)

def publish(A, s_val, s_off, vt=98):
    lab = A.newlabel("pf")
    A(f"s_cmp_lg_u32 {s(S_WAVE)}, 0")
    A(f"s_cbranch_scc1 {lab}")
    A(f"v_mov_b32 {v(vt)}, {s(s_val)}")
    A(f"v_mov_b32 {v(vt+1)}, 0")
    A(f"s_mov_b64 exec, 1")
    A(f"buffer_store_dword {v(vt)}, {v(vt+1)}, {s(S_WS,4)}, {s(s_off)} offen sc0 sc1")
    A(f"s_mov_b64 exec, -1")
    A.label(lab)

def init_load(A, vd, vz):
    A(f"v_mov_b32 {v(vz)}, 0")
    A(f"global_load_dword {v(vd)}, {v(vz)}, {s(S_DBG,2)} sc1")

def init_wait(A, vd, vz):
    ok = A.newlabel("iw_ok"); lp = A.newlabel("iw_lp")
    A.label(lp)
    A(f"v_cmp_gt_u32 vcc, {NF}, {v(vd)}")
    A(f"s_cbranch_vccz {ok}")
    A(f"s_cmp_eq_u32 {s(S_BUD)}, 0")
    A(f"s_cbranch_scc1 {ok}")
    A(f"s_sub_u32 {s(S_BUD)}, {s(S_BUD)}, 1")
    A("s_sleep 2")
    A(f"global_load_dword {v(vd)}, {v(vz)}, {s(S_DBG,2)} sc1")
    A("s_waitcnt vmcnt(0)")
    A(f"s_branch {lp}")
    A.label(ok)

def init_sync(A, vd=250, vz=251):
    init_load(A, vd, vz); A("s_waitcnt vmcnt(0)"); init_wait(A, vd, vz)
```

```python
from common import *
from sched import *
from role_kv import load_w_rows384
from role_u import load_wo
import math, struct
STAMP = False
DELAY0 = 3
PBMODE = 0
DELAYL = 0
DROP = 0
DELAYLV = 0
ZPRE = 1
DELAYZV = 2
DELAYZS = 2
PBSTEP = 4
VCAP = 2
DELAYBS = 0
TSTEP = 30
ORDER = 1
DELAYB = 0
NSTEP = 64

def f32bits(x): return struct.unpack("<I", struct.pack("<f", x))[0]

S_STEP=22; S_GRP=23; S_C=24; S_FAST=25; S_T=26; S_T2=27; S_CNT=28; S_DEAD=29
S_Z=30; S_ZN=31; S_P=32; S_PN=33; S_L=34; S_LN=35; S_RR=36; S_RW=37; S_US=38; S_US2=39
S_KS=44; S_EXP=45; S_OLO=46; S_OHI=47; S_SC=48; S_KD=49
S_MA=50; S_MB=52
S_MU=54; S_MK=55; S_FLO=56; S_FLI=57; S_T3=58; S_T4=43; S_PST=59; S_PSM=60; S_PLX=61; S_PLM=62; S_ZL=63; S_ZL2=64; S_EXN=67; S_M3=68; S_G3=65
S_TS=70
V_ZERO=0; V_IDX=2; V_L16=3; V_HI=4; V_WL=5; V_PW=6; V_T7=7; V_TRA=8; V_TRB=18; V_PLD=10; V_PM=11
V_FINR=12; V_TW=13; V_FINRM=14; V_UR=15; V_RW=16; V_KR=17; V_UH=17; V_UHR=18; V_GA=19
AF=20; ACC=60; TMP=76; XS=100; V_POI=120; V_ZH=124; V_NEED=124; V_ZS4=125; V_FLA=125; V_ZS2=126; V_FL=127
V_NEEDV=110; V_FLAV=111; V_G3W=9
L_MEM=98304; HI=L_MEM
S_LK=108544; S_LU=133120; S_LQ=149504; S_LKM=152576; S_LRED=155648; S_LSX=159744
V_LU=108544; V_LVX=133120; V_LRED=136192

ORD_S = [t*10+k for k in range(10) for t in range(2)] + list(range(20,40)) + [t*10+k for k in range(10) for t in (4,5)]
ORD_V = [t*10+k for k in range(10) for t in (0,1)] + list(range(20,60))
CUR_ORD = ORD_S
def wfrag(f):
    p = CUR_ORD.index(f)
    if p % 5 == 4: return ("lds", p//5)
    r = p - p//5
    return ("reg", 256 + 8*r if r < 32 else 128 + 8*(r-32))
def wdest(f, q):
    kind, x = wfrag(f)
    return reg(x + 2*q, 2) if kind == "reg" else v(AF + 8*x + 2*q, 2)

STUBS = []
def dual_text(A, lines):
    sl = A.newlabel("ds_s"); en = A.newlabel("ds_e")
    STUBS.append([sl + ":"] + [l + (" sc0 sc1" if l.startswith("buffer_store") else "") for l in lines] + [f"s_branch {en}"])
    return "\n".join([f"s_cmp_eq_u32 {s(S_FAST)}, 0", f"s_cbranch_scc1 {sl}"] + lines + [en + ":"])
def dual(A, lines): A(dual_text(A, lines))
def flush_stubs(A):
    for st in STUBS:
        for l in st: A(l)
    STUBS.clear()

def tick(A, k):
    if not STAMP or STAMP == 3: return
    if STAMP == 2:
        A(f"s_memrealtime {s(88,2)}")
        A("s_waitcnt lgkmcnt(0)")
        A(f"s_cmp_eq_u32 {s(S_STEP)}, {TSTEP + (1 if k >= 4 else 0)}")
        A(f"s_cselect_b32 {s(S_TS+k)}, {s(88)}, {s(S_TS+k)}")
        return
    A(f"s_memtime {s(88,2)}")
    A("s_waitcnt lgkmcnt(0)")
    A(f"s_sub_u32 {s(87)}, {s(88)}, {s(86)}")
    A(f"s_add_u32 {s(S_TS+k)}, {s(S_TS+k)}, {s(87)}")
    A(f"s_mov_b32 {s(86)}, {s(88)}")

def retry(A, lab, ctr=15):
    rt = A.newlabel("rt"); ok = A.newlabel("ok")
    A(f"s_cbranch_vccnz {rt}")
    A.label(ok)
    STUBS.append([rt + ":"] + ([f"s_add_u32 {s(S_TS+ctr)}, {s(S_TS+ctr)}, 1"] if STAMP else []) +
                 [f"s_sub_u32 {s(S_CNT)}, {s(S_CNT)}, 1", f"s_cbranch_scc0 {lab}", f"s_mov_b32 {s(S_CNT)}, 0", f"s_branch {ok}"])

def maxtree(regs_, t):
    L = []; r = list(regs_)
    L.append(f"v_max3_u32 {v(t)}, {v(r[0])}, {v(r[1])}, {v(r[2])}"); r = r[3:]
    while len(r) >= 2:
        L.append(f"v_max3_u32 {v(t)}, {v(t)}, {v(r[0])}, {v(r[1])}"); r = r[2:]
    if r: L.append(f"v_max_u32 {v(t)}, {v(t)}, {v(r[0])}")
    return L

def post(sa, out=None):
    o = sa if out is None else out
    return [f"v_add_f32 {v(sa)}, {v(sa)}, {v(sa+1)}", f"v_add_f32 {v(sa+2)}, {v(sa+2)}, {v(sa+3)}",
            f"v_cvt_pk_bf16_f32 {v(o)}, {v(sa)}, {v(sa+2)}"]
def post_s(sa, off, tag):
    return post(sa) + [ds(tag, f"ds_write_b32 {v(V_PW)}, {v(sa)} offset:{off}")]
def post_v(sa, off, tag):
    return post(sa) + [ds(tag, f"ds_write_b16 {v(V_PW)}, {v(sa)} offset:{off}"), ds(tag, f"ds_write_b16_d16_hi {v(V_PW)}, {v(sa)} offset:{off+4}")]
def zero(sa): return [f"v_mov_b64 {v(sa,2)}, 0", f"v_mov_b64 {v(sa+2,2)}, 0"]
def wl_read(j):
    r = TMP + 8*(j % 3)
    return [ds(f"W{j}", f"ds_read_b128 {v(r,4)}, {v(V_WL)} offset:{j*2048}"),
            ds(f"W{j}", f"ds_read_b128 {v(r+4,4)}, {v(V_WL)} offset:{j*2048+1024}")]
def smf(f, acc, afrag):
    kind, x = wfrag(f)
    it = []
    if kind == "lds":
        it.append(need(f"W{x}")); b = v(TMP + 8*(x % 3), 8)
    else: b = reg(x, 8)
    it.append(f"v_smfmac_f32_16x16x64_bf16 {v(acc,4)}, {v(afrag,4)}, {b}, {v(V_IDX)}")
    return it
def refill_tasks():
    return [[5*j+4, 5*(j+3)+4-5, wl_read(j+3)] for j in range(9)]

def setup_common(A, isV):
    LU = V_LU if isV else S_LU; LRED = V_LRED if isV else S_LRED
    t0, t1, t2 = 112, 113, 114
    A(f"v_mov_b32 {v(V_ZERO)}, 0")
    A(f"v_and_b32 {v(t0)}, 15, {v(V_LANE)}")
    A(f"v_lshrrev_b32 {v(t1)}, 4, {v(V_LANE)}")
    A(f"v_mov_b32 {v(V_IDX)}, 0x4444")
    A(f"v_mov_b32 {v(t2)}, 0xeeee")
    A(f"v_and_b32 {v(V_L16)}, 1, {v(V_LANE)}")
    A(f"v_cmp_eq_u32 vcc, 1, {v(V_L16)}")
    A("s_nop 1")
    A(f"v_cndmask_b32 {v(V_IDX)}, {v(V_IDX)}, {v(t2)}, vcc")
    A(f"v_lshlrev_b32 {v(V_L16)}, 4, {v(V_LANE)}")
    A(f"v_add_u32 {v(V_HI)}, {HI}, {v(V_L16)}")
    A(f"s_mul_i32 {s(S_T)}, {s(S_WAVE)}, 24576")
    A(f"v_add_u32 {v(V_WL)}, {s(S_T)}, {v(V_L16)}")
    if isV:
        A(f"v_and_b32 {v(t2)}, 7, {v(t0)}")
        A(f"v_lshlrev_b32 {v(t2)}, 5, {v(t2)}")
        A(f"v_lshl_add_u32 {v(t2)}, {v(t1)}, 3, {v(t2)}")
        A(f"v_lshrrev_b32 {v(V_PW)}, 3, {v(t0)}")
        A(f"v_lshl_add_u32 {v(t2)}, {v(V_PW)}, 1, {v(t2)}")
    else:
        A(f"v_lshlrev_b32 {v(t2)}, 2, {v(t1)}")
        A(f"v_lshl_add_u32 {v(t2)}, {v(t0)}, 4, {v(t2)}")
    A(f"s_mul_i32 {s(S_T)}, {s(S_WAVE)}, 768")
    A(f"s_add_u32 {s(S_T)}, {s(S_T)}, {V_LVX if isV else S_LQ}")
    A(f"v_add_u32 {v(V_PW)}, {s(S_T)}, {v(t2)}")
    A(f"v_and_b32 {v(t2)}, 7, {v(t0)}")
    A(f"v_lshl_add_u32 {v(V_PLD)}, {v(t1)}, 3, {v(t2)}")
    A(f"v_lshlrev_b32 {v(V_PLD)}, 4, {v(V_PLD)}")
    A(f"v_lshl_add_u32 {v(V_FINR)}, {v(t1)}, 4, {v(t2)}")
    A(f"v_lshlrev_b32 {v(V_FINR)}, 4, {v(V_FINR)}")
    if isV:
        A(f"s_and_b32 {s(S_T)}, {s(S_C)}, 1")
        A(f"s_lshl_b32 {s(S_T)}, {s(S_T)}, 7")
        A(f"v_add_u32 {v(V_ZH)}, {s(S_T)}, {v(V_FINR)}")
        A(f"v_lshrrev_b32 {v(V_UH)}, 3, {v(t0)}")
        A(f"v_lshl_add_u32 {v(V_UH)}, {v(V_UH)}, 10, {v(V_ZH)}")
        A(f"s_mul_i32 {s(S_T)}, {s(S_WAVE)}, 6144")
        A(f"s_add_u32 {s(S_T)}, {s(S_T)}, {LU+4096}")
        A(f"v_add_u32 {v(V_UHR)}, {s(S_T)}, {v(V_FINR)}")
        A(f"v_lshrrev_b32 {v(V_RW)}, 3, {v(t0)}")
        A(f"v_lshl_add_u32 {v(V_FINR)}, {v(V_RW)}, 10, {v(V_FINR)}")
    A(f"v_add_u32 {v(V_FINR)}, {LRED}, {v(V_FINR)}")
    A(f"s_mul_i32 {s(S_MU)}, {s(S_WAVE)}, {6144 if isV else 4096}")
    A(f"s_add_u32 {s(S_MU)}, {s(S_MU)}, {LU}")
    A(f"v_add_u32 {v(V_UR)}, {s(S_MU)}, {v(V_L16)}")
    if isV:
        A(f"s_mul_i32 {s(S_T)}, {s(S_WAVE)}, 2048")
        A(f"s_add_u32 {s(S_T)}, {s(S_T)}, {LRED}")
        A(f"v_add_u32 {v(V_RW)}, {s(S_T)}, {v(V_L16)}")
    A(f"v_lshrrev_b32 {v(V_FINRM)}, 1, {v(t1)}")
    A(f"s_lshl_b32 {s(S_T)}, {s(S_C)}, 1")
    A(f"v_add_u32 {v(V_FINRM)}, {s(S_T)}, {v(V_FINRM)}")
    if isV:
        A(f"s_add_u32 {s(S_T)}, {s(S_C)}, {64-16}")
        A(f"v_mov_b32 {v(V_TW)}, {s(S_T)}")
        A(f"v_cmp_lt_u32 vcc, 7, {v(t0)}")
        A("s_nop 1")
        A(f"v_cndmask_b32 {v(V_FINRM)}, {v(V_FINRM)}, {v(V_TW)}, vcc")
        A(f"v_lshrrev_b32 {v(V_TW)}, 3, {v(t0)}")
        A(f"v_lshl_add_u32 {v(V_TW)}, {v(V_TW)}, 9, {v(V_PLD)}")
    A(f"v_lshlrev_b32 {v(V_FINRM)}, 7, {v(V_FINRM)}")
    A(f"v_lshl_add_u32 {v(V_FINRM)}, {v(t2)}, 4, {v(V_FINRM)}")
    A(f"v_and_b32 {v(t2)}, 1, {v(t1)}")
    A(f"v_lshl_add_u32 {v(V_FINRM)}, {v(t2)}, 3, {v(V_FINRM)}")
    A(f"s_mov_b32 {s(S_MA)}, 0x00ff00ff")
    A(f"s_mov_b32 {s(S_MA+1)}, 0x00ff00ff")
    A(f"s_mov_b32 {s(S_MB)}, {'0xffffffff' if isV else '0x00ff00ff'}")
    A(f"s_mov_b32 {s(S_MB+1)}, {'0x00ff00ff' if isV else '0'}")
    A(f"s_lshl_b32 {s(S_T)}, {s(S_WAVE)}, 10")
    A(f"v_add_u32 {v(V_T7)}, {s(S_T)}, {v(V_L16)}")
    if not isV: A(f"v_add_u32 {v(126)}, {HI}, {v(V_T7)}")
    A(f"s_lshr_b32 {s(S_G3)}, {s(S_WAVE)}, 1")
    A(f"s_add_u32 {s(S_G3)}, {s(S_G3)}, 8")
    A(f"s_sub_u32 {s(S_G3)}, {s(S_G3)}, {s(S_WAVE)}")
    A(f"s_lshl_b32 {s(S_G3)}, {s(S_G3)}, 10")
    A(f"s_and_b32 {s(S_T2)}, {s(S_WAVE)}, 1")
    A(f"s_sub_u32 {s(S_M3)}, {s(S_T2)}, 1")
    A(f"s_sub_u32 {s(S_M3+1)}, 0, {s(S_T2)}")
    A(f"v_and_b32 {v(V_GA)}, 7, {v(V_LANE)}")
    A(f"v_lshlrev_b32 {v(V_GA)}, 5, {v(V_GA)}")
    A(f"v_lshl_add_u32 {v(V_GA)}, {v(t1)}, 8, {v(V_GA)}")
    A(f"v_bfe_u32 {v(115)}, {v(V_LANE)}, 3, 1")
    A(f"v_lshl_add_u32 {v(V_GA)}, {v(115)}, 4, {v(V_GA)}")
    A(f"s_add_u32 {s(S_T)}, {s(S_T)}, {HI}")
    A(f"v_add_u32 {v(V_GA)}, {s(S_T)}, {v(V_GA)}")
    A(f"v_add_u32 {v(V_G3W)}, {s(S_G3)}, {v(V_GA)}")
    for i in range(4): A(f"v_mov_b32 {v(V_POI+i)}, -1")
    r_, c_ = 115, 116
    A(f"v_bfe_u32 {v(r_)}, {v(V_LANE)}, 2, 2")
    A(f"v_and_b32 {v(c_)}, 1, {v(V_LANE)}")
    A(f"v_lshlrev_b32 {v(c_)}, 3, {v(c_)}")
    if not isV:
        A(f"v_add_u32 {v(c_)}, {S_LQ}, {v(c_)}")
        A(f"v_lshl_add_u32 {v(V_TRA)}, {v(t1)}, 2, {v(r_)}")
        A(f"v_lshl_add_u32 {v(V_TRA)}, {v(V_TRA)}, 4, {v(c_)}")
        A(f"v_lshrrev_b32 {v(t2)}, 1, {v(t1)}")
        A(f"v_mul_u32_u24 {v(t2)}, 48, {v(t2)}")
        A(f"v_and_b32 {v(V_TRB)}, 1, {v(t1)}")
        A(f"v_lshl_add_u32 {v(V_TRB)}, {v(V_TRB)}, 3, {v(t2)}")
        A(f"v_add_u32 {v(V_TRB)}, {v(V_TRB)}, {v(r_)}")
        A(f"v_lshl_add_u32 {v(V_TRB)}, {v(V_TRB)}, 4, {v(c_)}")
        A(f"v_lshlrev_b32 {v(V_PM)}, 4, {v(t0)}")
        A(f"v_lshl_add_u32 {v(V_PM)}, {v(t1)}, 3, {v(V_PM)}")
        A(f"s_sub_u32 {s(S_T)}, {s(S_WAVE)}, 1")
        A(f"s_and_b32 {s(S_T)}, {s(S_T)}, 3")
        A(f"s_mul_i32 {s(S_T2)}, {s(S_T)}, 6144")
        A(f"s_add_u32 {s(S_T2)}, {s(S_T2)}, {S_LK}")
        A(f"v_add_u32 {v(V_KR)}, {s(S_T2)}, {v(V_L16)}")
        A(f"s_mov_b32 {s(S_KD)}, 12288")
        A(f"s_mul_i32 {s(S_MK)}, {s(S_WAVE)}, 3072")
        A(f"s_mul_i32 {s(S_KS)}, {s(S_HEAD)}, 12288")
        A(f"s_add_u32 {s(S_KS)}, {s(S_KS)}, {s(S_MK)}")
        A(f"s_add_u32 {s(S_KS)}, {s(S_KS)}, {WS_K}")
        A(f"s_add_u32 {s(S_MK)}, {s(S_MK)}, {S_LK}")
        A(f"s_lshr_b32 {s(S_PST)}, {s(S_HEAD)}, 1")
        A(f"s_lshl_b32 {s(S_PST)}, {s(S_PST)}, 10")
        A(f"s_and_b32 {s(S_PSM)}, {s(S_HEAD)}, 1")
        A(f"s_lshl_b32 {s(S_PSM)}, {s(S_PSM)}, 7")
        A(f"s_add_u32 {s(S_PST)}, {s(S_PST)}, {s(S_PSM)}")
        A(f"s_lshl_b32 {s(S_PSM)}, {s(S_HEAD)}, 7")
        A(f"s_add_u32 {s(S_PSM)}, {s(S_PSM)}, 16384")
    else:
        A(f"v_lshl_add_u32 {v(t2)}, {v(t1)}, 3, {v(r_)}")
        A(f"v_and_b32 {v(c_)}, 3, {v(V_LANE)}")
        A(f"v_lshlrev_b32 {v(c_)}, 3, {v(c_)}")
        A(f"v_lshl_add_u32 {v(V_TRA)}, {v(t2)}, 5, {v(c_)}")
        A(f"v_add_u32 {v(V_TRA)}, {V_LVX}, {v(V_TRA)}")
        A(f"v_lshlrev_b32 {v(V_ZS4)}, 13, {v(t1)}")
        A(f"v_and_b32 {v(t2)}, 1, {v(t1)}")
        A(f"v_lshlrev_b32 {v(V_ZS2)}, 13, {v(t2)}")
        A(f"v_lshrrev_b32 {v(t2)}, 1, {v(t1)}")
        A(f"v_lshl_add_u32 {v(V_ZS2)}, {v(t2)}, 3, {v(V_ZS2)}")
        A(f"s_mul_i32 {s(S_T)}, {s(S_WAVE)}, {10*8192}")
        A(f"s_lshl_b32 {s(S_T2)}, {s(S_HEAD)}, 8")
        A(f"s_add_u32 {s(S_T)}, {s(S_T)}, {s(S_T2)}")
        A(f"v_lshl_add_u32 {v(t2)}, {v(t0)}, 4, {s(S_T)}")
        A(f"v_add_u32 {v(V_ZS4)}, {v(V_ZS4)}, {v(t2)}")
        A(f"v_add_u32 {v(V_ZS2)}, {v(V_ZS2)}, {v(t2)}")
        A(f"v_add_u32 {v(V_ZS2)}, {8*8192}, {v(V_ZS2)}")
    A(f"s_mov_b32 {s(S_Z)}, {MB_Z}")
    A(f"s_mov_b32 {s(S_ZN)}, {MB_Z+327680}")
    A(f"s_mov_b32 {s(S_P)}, {MB_P}")
    A(f"s_mov_b32 {s(S_PN)}, {MB_P+20480}")
    A(f"s_mul_i32 {s(S_T)}, {s(S_GRP)}, 10240")
    A(f"s_add_u32 {s(S_L)}, {s(S_T)}, {MB_L}")
    A(f"s_add_u32 {s(S_LN)}, {s(S_T)}, {MB_L+20480}")
    if isV:
        A(f"s_mul_i32 {s(S_T2)}, {s(S_C)}, 768")
        A(f"s_add_u32 {s(S_T2)}, {s(S_T2)}, {MB_R + 8192 - 16*768}")
    else:
        A(f"s_mul_i32 {s(S_T2)}, {s(S_C)}, 512")
        A(f"s_add_u32 {s(S_T2)}, {s(S_T2)}, {MB_R}")
    A(f"s_mul_i32 {s(S_T)}, {s(S_GRP)}, 20480")
    A(f"s_add_u32 {s(S_RW)}, {s(S_T2)}, {s(S_T)}")
    A(f"s_add_u32 {s(S_RR)}, {s(S_T2)}, 20480")
    A(f"s_sub_u32 {s(S_RR)}, {s(S_RR)}, {s(S_T)}")
    A(f"s_lshl_b32 {s(S_T)}, {s(S_GRP)}, 2")
    A(f"s_add_u32 {s(S_T)}, {s(S_T)}, {s(S_WAVE)}")
    A(f"s_lshl_b32 {s(S_PLX)}, {s(S_T)}, 11")
    A(f"s_lshl_b32 {s(S_PLM)}, {s(S_T)}, 9")
    A(f"s_add_u32 {s(S_PLM)}, {s(S_PLM)}, 16384")
    A(f"s_lshl_b32 {s(S_ZL)}, {s(S_T)}, 10")
    A(f"s_lshl_b32 {s(S_US)}, {s(S_T)}, 12")
    A(f"s_add_u32 {s(S_US)}, {s(S_US)}, {WS_U}")
    if isV:
        A(f"s_sub_u32 {s(S_T2)}, {s(S_C)}, 16")
        A(f"s_lshr_b32 {s(S_T2)}, {s(S_T2)}, 1")
        A(f"s_add_u32 {s(S_T2)}, {s(S_T2)}, 32")
        A(f"s_lshl_b32 {s(S_T3)}, {s(S_T2)}, 13")
        A(f"s_add_u32 {s(S_ZL2)}, {s(S_ZL)}, {s(S_T3)}")
        A(f"s_lshl_b32 {s(S_T3)}, {s(S_T2)}, 15")
        A(f"s_add_u32 {s(S_US2)}, {s(S_US)}, {s(S_T3)}")
    A(f"s_lshl_b32 {s(S_T3)}, {s(S_C)}, 13")
    A(f"s_add_u32 {s(S_ZL)}, {s(S_ZL)}, {s(S_T3)}")
    A(f"s_lshl_b32 {s(S_T3)}, {s(S_C)}, 15")
    A(f"s_add_u32 {s(S_US)}, {s(S_US)}, {s(S_T3)}")
    vfa = V_FLAV if isV else V_FLA; vne = V_NEEDV if isV else V_NEED
    A(f"s_lshl_b32 {s(S_T)}, {s(S_T)}, 4")
    A(f"v_and_b32 {v(t2)}, 3, {v(V_LANE)}")
    A(f"v_lshl_add_u32 {v(vfa)}, {v(t2)}, 2, {s(S_T)}")
    A(f"v_add_u32 {v(vfa)}, {FL_U-FLAGS}, {v(vfa)}")
    A(f"v_mov_b32 {v(vne)}, 1")
    if not isV:
        A(f"s_lshl_b32 {s(S_T)}, {s(S_HEAD)}, 2")
        A(f"v_mov_b32 {v(t2)}, {s(S_T)}")
        A(f"v_cmp_lt_u32 vcc, 31, {v(V_LANE)}")
        A("s_nop 1")
        A(f"v_cndmask_b32 {v(vfa)}, {v(vfa)}, {v(t2)}, vcc")
        A(f"v_mov_b32 {v(t2)}, 2")
        A(f"v_cndmask_b32 {v(vne)}, {v(vne)}, {v(t2)}, vcc")
    A(f"s_mov_b32 {s(S_FLI)}, {FLAGS}")
    A(f"s_lshl_b32 {s(S_FLO)}, {s(S_HEAD)}, 2")
    A(f"s_add_u32 {s(S_FLO)}, {s(S_FLO)}, {FL_Z if isV else FL_KM}")
    A(f"v_mov_b32 {v(V_FL)}, 0")
    A(f"s_mov_b32 {s(S_OLO)}, 0x00003f80")
    A(f"s_mov_b32 {s(S_OHI)}, 0x3f800000")
    A(f"s_mov_b32 {s(S_SC)}, {f32bits(192**-0.5*math.log2(math.e))}")
    A(f"s_mov_b32 {s(S_STEP)}, 0")
    A(f"s_mov_b32 {s(S_CNT)}, {SPIN_MAX}")
    A(f"s_mov_b32 {s(S_EXP)}, {WS_SCR}")
    if isV: A(f"s_mov_b32 {s(S_EXN)}, {WS_Z}")
    else:
        A(f"s_mul_i32 {s(S_EXN)}, {s(S_HEAD)}, 3072")
        A(f"s_add_u32 {s(S_EXN)}, {s(S_EXN)}, {WS_KM}")
    if STAMP:
        for k in range(16): A(f"s_mov_b32 {s(S_TS+k)}, 0")

def lane_flag_wait(A, isV):
    vfa = V_FLAV if isV else V_FLA; vne = V_NEEDV if isV else V_NEED
    ok = A.newlabel("cf_ok"); lp = A.newlabel("cf_lp"); sl = A.newlabel("cf_sl")
    ld = f"buffer_load_dword {v(V_FL)}, {v(vfa)}, {s(S_WS,4)}, {s(S_FLI)} offen sc1"
    STUBS.append([sl + ":", f"s_sub_u32 {s(S_CNT)}, {s(S_CNT)}, 1", f"s_cbranch_scc1 {sl}_d", ld, "s_waitcnt vmcnt(0)", f"s_branch {lp}",
                  sl + "_d:", f"s_mov_b32 {s(S_CNT)}, 0", f"s_branch {ok}"])
    return "\n".join([lp + ":", f"v_cmp_gt_u32 vcc, {v(vne)}, {v(V_FL)}", f"s_cbranch_vccnz {sl}", ok + ":",
                       f"v_add_u32 {v(vne)}, 1, {v(vne)}", f"v_min_u32 {v(vne)}, {NSEG}, {v(vne)}", ld])

def phaseB_items(A, isV, cls, flags):
    L = []
    if flags:
        if cls == 0:
            B = Asm(); B.uid = A.uid
            B(f"s_sub_u32 {s(S_T)}, {s(S_STEP)}, 1")
            B(f"s_max_i32 {s(S_T)}, {s(S_T)}, 0")
            B(f"v_mov_b32 v56, {s(S_T)}")
            B("s_mov_b64 exec, 1")
            B(f"buffer_store_dword v56, {v(V_ZERO)}, {s(S_WS,4)}, {s(S_FLO)} offen sc0 sc1")
            B("s_mov_b64 exec, -1")
            B("s_nop 3")
            L.append("\n".join(B.lines))
        L.append(lane_flag_wait(A, isV))
    if isV:
        L.append(f"s_add_u32 {s(S_T2)}, {s(S_EXP)}, {4*8192}")
        L.append(f"buffer_store_dwordx4 {v(XS,4)}, {v(V_ZS4)}, {s(S_WS,4)}, {s(S_EXP)} offen sc0 sc1")
        L.append(f"buffer_store_dwordx4 {v(XS+4,4)}, {v(V_ZS4)}, {s(S_WS,4)}, {s(S_T2)} offen sc0 sc1")
        L.append(f"buffer_store_dwordx2 {v(XS+8,2)}, {v(V_ZS2)}, {s(S_WS,4)}, {s(S_EXP)} offen sc0 sc1")
    L.append(f"s_mov_b32 m0, {s(S_MU)}")
    L.append(f"s_mov_b32 {s(S_T4)}, {s(S_T4)}")
    for j in range(4):
        L.append(f"buffer_load_dwordx4 {v(V_L16)}, {s(S_WS,4)}, {s(S_US)} offen offset:{j*1024} sc1 lds")
    if isV:
        L.append(f"s_add_u32 m0, {s(S_MU)}, 4096")
        L.append(f"s_add_u32 {s(S_T4)}, {s(S_US2)}, 1024")
        L.append(f"buffer_load_dwordx4 {v(V_UH)}, {s(S_WS,4)}, {s(S_US2)} offen sc1 lds")
        L.append(f"buffer_load_dwordx4 {v(V_UH)}, {s(S_WS,4)}, {s(S_T4)} offen offset:1024 sc1 lds")
        L.append(f"s_add_u32 {s(S_T2)}, {s(S_ZN)}, {4*8192}\n" + dual_text(A, [
            f"buffer_store_dwordx4 {v(V_POI,4)}, {v(V_ZS4)}, {s(S_WS,4)}, {s(S_ZN)} offen",
            f"buffer_store_dwordx4 {v(V_POI,4)}, {v(V_ZS4)}, {s(S_WS,4)}, {s(S_T2)} offen",
            f"buffer_store_dwordx2 {v(V_POI,2)}, {v(V_ZS2)}, {s(S_WS,4)}, {s(S_ZN)} offen"]))
    else:
        L += [f"s_add_u32 {s(S_MK)}, {s(S_MK)}, {s(S_KD)}", f"s_mov_b32 m0, {s(S_MK)}", f"s_add_u32 {s(S_KS)}, {s(S_KS)}, {NH*12288}"]
        for j in range(3):
            L.append(f"buffer_load_dwordx4 {v(V_L16)}, {s(S_WS,4)}, {s(S_KS)} offen offset:{j*1024} sc1 lds")
        if cls == 0:
            L.append(f"s_add_u32 {s(S_T)}, {s(S_PN)}, {s(S_PST)}\ns_add_u32 {s(S_T2)}, {s(S_PN)}, {s(S_PSM)}\n" +
                     dual_text(A, [f"s_mov_b64 exec, {s(S_MA,2)}",
                                   f"buffer_store_dwordx4 {v(V_POI,4)}, {v(V_L16)}, {s(S_WS,4)}, {s(S_T)} offen",
                                   f"s_mov_b64 exec, {s(S_MB,2)}",
                                   f"buffer_store_dwordx2 {v(V_POI,2)}, {v(V_PM)}, {s(S_WS,4)}, {s(S_T2)} offen",
                                   "s_mov_b64 exec, -1"]))
    return L

def km_export(E, tmp):
    return [ds("KX", f"ds_read_b128 {v(tmp,4)}, {v(126)} offset:{S_LKM-HI-1024}"),
            f"s_sub_u32 {s(S_T3)}, {s(S_EXP)}, 1024",
            need("KX"),
            f"buffer_store_dwordx4 {v(tmp,4)}, {v(V_T7)}, {s(S_WS,4)}, {s(S_T3)} offen sc0 sc1"]

def qk_tr(isq, ks, dst, tag):
    b = 0 if isq else 3072
    if ks < 4: vb, o0, o1 = V_TRA, 48*ks*16, (48*ks+16)*16
    else: vb, o0, o1 = V_TRB, (96*(ks-4)+32)*16, (96*(ks-4)+36)*16
    return [ds(tag, f"ds_read_b64_tr_b16 {v(dst,2)}, {v(vb)} offset:{b+o0}"),
            ds(tag, f"ds_read_b64_tr_b16 {v(dst+2,2)}, {v(vb)} offset:{b+o1}")]

def xlane(op, r, t, which):
    return [f"v_mov_b32 {v(t)}, {v(r)}", "s_nop 1", f"v_permlane{which}_swap_b32 {v(r)}, {v(t)}", f"{op} {v(r)}, {v(r)}, {v(t)}"]

def pb_tasks(items, e, d, span):
    if PBMODE == 0: return [[e, d, items]]
    if PBMODE == 1:
        STUBS.clear()
        return [[e, d, [it for it in items if isinstance(it, str) and 'buffer_' not in it]]]
    if DROP & 1: items = [it for it in items if not (isinstance(it, str) and it.endswith(" lds"))]
    if DROP & 2: items = [it for it in items if not (isinstance(it, str) and it.startswith("buffer_store") and "sc1" in it)]
    groups = []; cur = []
    for it in items:
        cur.append(it)
        if isinstance(it, str) and 'buffer_' in it: groups.append(cur); cur = []
    if cur: groups.append(cur)
    n = len(groups); out = []
    for i, g in enumerate(groups):
        st = e + i*PBSTEP
        out.append([st, st+PBSTEP+1, g])
    return out

def s_stage(A, E, cls, flags):
    S0, S1, S2, S3 = ACC, ACC+4, ACC+8, ACC+12
    accs = [S0, S1, S2, S3, S0, S1]
    ard = lambda k: ds(f"A{k}", f"ds_read_b128 {v(AF+4*k,4)}, {v(V_HI)} offset:{k*1024}")
    for k in range(3): E(ard(k))
    main = []
    for f in ORD_S:
        t, k = divmod(f, 10)
        main.append(([need(f"A{k}")] if t == 0 else []) + smf(f, accs[t], AF+4*k))
    T = refill_tasks() + [[k-3, max(k-1, 2*k-5), [ard(k)]] for k in range(3, 10)]
    pb = phaseB_items(A, False, cls, flags)
    if cls != 0:
        kx = km_export(E, XS+16)
        T.append([7, 12, kx[:2]])
        if PBMODE != 1 and not (DROP & 2): T.append([16, 20, kx[2:]])
    T += pb_tasks(pb, 3, 22, 56)
    T.append([0, 28, zero(S3)])
    T.append([21, 31, post_s(S0, 0, "qw") + post_s(S1, 256, "qw")])
    T.append([32, 36, post_s(S2, 512, "qw")])
    T.append([22, 38, zero(S0) + zero(S1)])
    T.append([37, 38, [need("qw"), "s_barrier"]])
    T.append([42, 58, post_s(S3, 3072, "kw")])
    if cls == 12:
        SA = XS+16
        R = {0: (XS, XS+4), 1: (XS+8, XS+12), 2: (AF, AF+4), 3: (AF+8, AF+12), 4: (XS, XS+4), 5: (XS+8, XS+12)}
        def rd(ks): return qk_tr(True, ks, R[ks][0], f"X{ks}") + [ds(f"X{ks}", f"ds_read_b128 {v(R[ks][1],4)}, {v(V_KR)} offset:{ks*1024}")]
        def mm(ks, first=False): return [need(f"X{ks}"), f"v_mfma_f32_16x16x32_bf16 {v(SA,4)}, {v(R[ks][1],4)}, {v(R[ks][0],4)}, {'0' if first else v(SA,4)}"]
        T.append([38, 42, rd(0)])
        T.append([38, 45, rd(1)])
        T.append([45, 49, mm(0, True) + rd(4)])
        T.append([44, 48, rd(2)])
        T.append([48, 52, mm(1) + rd(5)])
        T.append([48, 54, rd(3)])
        T.append([52, 54, mm(2)])
        T.append([54, 55, mm(4)])
        T.append([55, 56, mm(5)])
        T.append([56, 57, mm(3)])
    if cls == 0:
        for ks in range(5): T.append([38, 45+2*ks, qk_tr(True, ks, XS+4*ks, f"m{ks}")])
        T.append([42, 58, qk_tr(True, 5, AF, "m5")])
    schedule(E, main, T, maxn=4)
    if cls == 12:
        E(ds("sx", f"ds_write_b128 {v(126)}, {v(XS+16,4)} offset:{S_LSX-HI-1024}"))
        A(f"v_add_u32 {v(V_KR)}, {s(S_KD)}, {v(V_KR)}")
        A("s_nop 2")
    else:
        A("s_nop 4")
    pa = post_s(S0, 3072+256, "kw"); pb_ = post_s(S1, 3072+512, "kw")
    for it in pa + pb_: E(it)
    A(f"s_sub_u32 {s(S_KD)}, 0, {s(S_KD)}")
    E.drain()
    A("s_barrier")

def dppadd(r): return f"v_add_f32_dpp {v(r)}, {v(r)}, {v(r)} row_ror:8 row_mask:0xf bank_mask:0xf"

def s_tail(A, E):
    QF, KF, SXA, SM, t0, t1 = AF, TMP, 44, 52, 56, 57
    mx, sx, nm, al = 58, 59, 60, 61
    E(ds("sx", f"ds_read_b128 {v(SXA,4)}, {v(V_HI)} offset:{S_LSX-HI}"))
    E(ds("sx", f"ds_read_b128 {v(SXA+4,4)}, {v(V_HI)} offset:{S_LSX-HI+1024}"))
    for ks in range(6):
        for it in qk_tr(False, ks, KF+4*ks, f"m{ks}"): E(it)
    X = [need("sx"),
         f"v_max3_f32 {v(mx)}, {v(SXA)}, {v(SXA+1)}, {v(SXA+2)}",
         f"v_max3_f32 {v(t1)}, {v(SXA+3)}, {v(SXA+4)}, {v(SXA+5)}",
         f"v_max3_f32 {v(mx)}, {v(mx)}, {v(SXA+6)}, {v(SXA+7)}",
         f"v_max_f32 {v(mx)}, {v(mx)}, {v(t1)}"]
    X += xlane("v_max_f32", mx, t0, 16) + xlane("v_max_f32", mx, t0, 32)
    X += [f"v_mul_f32 {v(nm)}, {s(S_SC)}, {v(mx)}"]
    X += [f"v_fma_f32 {v(SXA+i)}, {v(SXA+i)}, {s(S_SC)}, -{v(nm)}" for i in range(8)]
    X += [f"v_exp_f32 {v(SXA+i)}, {v(SXA+i)}" for i in range(8)]
    X += [f"v_add_f32 {v(sx)}, {v(SXA)}, {v(SXA+1)}", f"v_add_f32 {v(t1)}, {v(SXA+2)}, {v(SXA+3)}",
          f"v_add_f32 {v(t0)}, {v(SXA+4)}, {v(SXA+5)}", f"v_add_f32 {v(al)}, {v(SXA+6)}, {v(SXA+7)}",
          f"v_add_f32 {v(sx)}, {v(sx)}, {v(t1)}", f"v_add_f32 {v(t0)}, {v(t0)}, {v(al)}", f"v_add_f32 {v(sx)}, {v(sx)}, {v(t0)}"]
    X += xlane("v_add_f32", sx, t0, 16) + xlane("v_add_f32", sx, t0, 32)
    main = [[]] + [[need(f"m{ks}"), f"v_mfma_f32_16x16x32_bf16 {v(SM,4)}, {v(KF+4*ks,4)}, {v(XS+4*ks if ks < 5 else AF,4)}, {'0' if ks==0 else v(SM,4)}"] for ks in range(6)]
    for it in X[:9]: E(it)
    schedule(E, main, [[0, 99, X[9:]]], cap=2, maxn=4)
    m = 62
    A(f"v_max3_f32 {v(m)}, {v(SM)}, {v(SM+1)}, {v(SM+2)}")
    A(f"v_max3_f32 {v(m)}, {v(m)}, {v(SM+3)}, {v(mx)}")
    for l in xlane("v_max_f32", m, t0, 16): A(l)
    A(f"v_mul_f32 {v(m)}, {s(S_SC)}, {v(m)}")
    A(f"v_sub_f32 {v(al)}, {v(nm)}, {v(m)}")
    for i in range(4): A(f"v_fma_f32 {v(SM+i)}, {v(SM+i)}, {s(S_SC)}, -{v(m)}")
    A(f"v_exp_f32 {v(al)}, {v(al)}")
    for i in range(4): A(f"v_exp_f32 {v(SM+i)}, {v(SM+i)}")
    A("s_waitcnt vmcnt(0)")
    A(f"v_add_f32 {v(t1)}, {v(SM)}, {v(SM+1)}")
    A(f"v_add_f32 {v(m)}, {v(SM+2)}, {v(SM+3)}")
    A(f"v_add_f32 {v(m)}, {v(m)}, {v(t1)}")
    for l in xlane("v_add_f32", m, t0, 16): A(l)
    A(f"v_fma_f32 {v(m)}, {v(al)}, {v(sx)}, {v(m)}")
    A(f"v_rcp_f32 {v(m)}, {v(m)}")
    A(f"s_add_u32 {s(S_T)}, {s(S_P)}, {s(S_PST)}")
    A(f"v_mul_f32 {v(al)}, {v(al)}, {v(m)}")
    for i in range(4): A(f"v_mul_f32 {v(SM+i)}, {v(SM+i)}, {v(m)}")
    for i in range(8): A(f"v_mul_f32 {v(SXA+i)}, {v(SXA+i)}, {v(al)}")
    A(f"s_add_u32 {s(S_T2)}, {s(S_P)}, {s(S_PSM)}")
    for i in range(4): A(f"v_cvt_pk_bf16_f32 {v(64+i)}, {v(SXA+2*i)}, {v(SXA+2*i+1)}")
    for i in range(2): A(f"v_cvt_pk_bf16_f32 {v(SM+i)}, {v(SM+2*i)}, {v(SM+2*i+1)}")
    dual(A, [f"s_mov_b64 exec, {s(S_MA,2)}",
             f"buffer_store_dwordx4 {v(64,4)}, {v(V_L16)}, {s(S_WS,4)}, {s(S_T)} offen",
             f"s_mov_b64 exec, {s(S_MB,2)}",
             f"buffer_store_dwordx2 {v(SM,2)}, {v(V_PM)}, {s(S_WS,4)}, {s(S_T2)} offen",
             "s_mov_b64 exec, -1"])

def v_stage(A, E, cls, flags):
    S = [ACC, ACC+4, ACC+8, ACC+12, 112, 116]
    ard = lambda k: ds(f"A{k}", f"ds_read_b128 {v(AF+4*k,4)}, {v(V_HI)} offset:{k*1024}")
    for k in range(3): E(ard(k))
    main = []
    for f in ORD_V[:30]:
        t, k = divmod(f, 10)
        main.append(([need(f"A{k}")] if t == 0 else []) + smf(f, S[t], AF+4*k))
    RT = refill_tasks()
    T = [t for t in RT if t[0] < 29] + [[k-3, max(k-1, 2*k-5), [ard(k)]] for k in range(3, 10)]
    PB = pb_tasks(phaseB_items(A, True, cls, flags), 3, 24, 58)
    T += [t for t in PB if t[0] < 28]
    T.append([0, 20, zero(S[3]) + zero(S[4]) + zero(S[5])])
    T.append([21, 99, post_v(S[0], 0, "vw") + post_v(S[1], 256, "vw") + zero(S[0])])
    schedule(E, main, T, maxn=4)
    for l in zero(S[1]) + zero(AF+12) + zero(AF+16): A(l)
    A("s_nop 1")
    for it in post_v(S[2], 512, "vw"): E(it)
    for it in RT[5][2]: E(it)
    for l in zero(AF+20) + zero(AF+24) + zero(S[2]): A(l)
    E.need("vw")
    A("s_barrier")
    for kk in range(3):
        for h in range(2):
            E(ds(f"B{kk}", f"ds_read_b64_tr_b16 {v(AF+4*kk+2*h,2)}, {v(V_TRA)} offset:{(32*kk+4*h)*32}"))
    SS = [S[3], S[4], S[5], S[0], S[1], S[2], AF+12, AF+16, AF+20, AF+24]
    sa = lambda t: SS[t]
    main = []
    for t in range(10):
        for kk in range(3):
            main.append(([need(f"B{kk}")] if t == 0 else []) + smf(30 + 3*t + kk, sa(t), AF+4*kk))
    T = [[t[0]-30, t[1]-30, t[2]] for t in RT if t[0] > 29]
    T += [[max(t[0]-30, 0), max(t[1]-30, 2), t[2]] for t in PB if t[0] >= 28]
    def fin(t):
        L = post(sa(t), XS+t)
        if t in (3, 7):
            q = XS + t - 3
            L += ["s_nop 0"]
            L += [f"v_permlane32_swap_b32 {v(q)}, {v(q+2)}", f"v_permlane32_swap_b32 {v(q+1)}, {v(q+3)}", "s_nop 1",
                  f"v_permlane16_swap_b32 {v(q)}, {v(q+1)}", f"v_permlane16_swap_b32 {v(q+2)}, {v(q+3)}"]
            L += [f"s_add_u32 {s(S_T)}, {s(S_Z)}, {(t//4)*4*8192}\n" + dual_text(A, [f"buffer_store_dwordx4 {v(q,4)}, {v(V_ZS4)}, {s(S_WS,4)}, {s(S_T)} offen"])]
        if t == 9:
            L += ["s_nop 1", f"v_permlane16_swap_b32 {v(XS+8)}, {v(XS+9)}"]
            L += [dual_text(A, [f"buffer_store_dwordx2 {v(XS+8,2)}, {v(V_ZS2)}, {s(S_WS,4)}, {s(S_Z)} offen"])]
        return L
    chain = []
    for t in range(8):
        T.append([3*t+2+3, 40+t, fin(t)])
    schedule(E, main, T, cap=VCAP, maxn=5)
    for it in fin(8): E(it)
    A("s_nop 3")
    for it in fin(9): E(it)

def reduce_stage(A, E, isV, cls):
    PF, ZF, mt = AF, 32, 56
    UL = [76,80,84,88,92,96,60,64] if isV else [100,104,108,112]
    D = [68, 72]; DO = [40, 44]
    nt = 2 if isV else 1
    if not (cls == 0 and not isV): A("s_waitcnt vmcnt(6)" if isV else "s_waitcnt vmcnt(3)")
    for j in range(4): E(ds("U", f"ds_read_b128 {v(UL[j],4)}, {v(V_UR)} offset:{j*1024}"))
    if isV:
        for j in range(4): E(ds("U", f"ds_read_b128 {v(UL[4+j],4)}, {v(V_UHR)} offset:{(j>>1)*1024+(j&1)*128}"))
    A(f"s_add_u32 {s(S_T)}, {s(S_P)}, {s(S_PLX)}")
    A(f"s_add_u32 {s(S_T2)}, {s(S_P)}, {s(S_PLM)}")
    A(f"s_add_u32 {s(S_T3)}, {s(S_Z)}, {s(S_ZL)}")
    if isV: A(f"s_add_u32 {s(S_T4)}, {s(S_Z)}, {s(S_ZL2)}")
    for l in zero(PF+8) + (zero(ZF+4) if isV else []): A(l)
    if not isV:
        A("s_barrier")
        if DELAYBS: A(f"s_sleep {DELAYBS}")
    elif DELAYB: A(f"s_sleep {DELAYB}")
    if STAMP == 1: tick(A, 8)
    lab = A.newlabel("GB")
    A.label(lab)
    A(f"buffer_load_dwordx4 {v(ZF,4)}, {v(V_L16)}, {s(S_WS,4)}, {s(S_T3)} offen sc1")
    for j in range(2):
        A(f"buffer_load_dwordx4 {v(PF+4*j,4)}, {v(V_L16)}, {s(S_WS,4)}, {s(S_T)} offen offset:{j*1024} sc1")
    A(f"s_mov_b64 exec, {s(S_MA,2)}")
    if isV: A(f"buffer_load_dwordx4 {v(ZF+4,4)}, {v(V_ZH)}, {s(S_WS,4)}, {s(S_T4)} offen sc1")
    A(f"buffer_load_dwordx4 {v(PF+8,4)}, {v(V_PLD)}, {s(S_WS,4)}, {s(S_T2)} offen sc1")
    A("s_mov_b64 exec, -1")
    A("s_waitcnt vmcnt(0) lgkmcnt(0)"); E.reset()
    if STAMP == 1: tick(A, 7)
    main = []
    def mm(d, a_, b_, first): return [f"v_mfma_f32_16x16x32_bf16 {v(d,4)}, {v(a_,4)}, {v(b_,4)}, {'0' if first else v(d,4)}"]
    for j in range(2):
        for t in range(nt): main.append(mm(DO[t], UL[4*t+2*j+1], PF+4*j, j == 0))
    for j in range(3):
        for t in range(nt): main.append(mm(D[t], UL[4*t+2*j] if j < 2 else ZF+4*t, PF+4*j, j == 0))
    X = maxtree(list(range(PF, PF+12)) + list(range(ZF, ZF+4*nt)), mt) + [f"v_cmp_eq_u32 vcc, -1, {v(mt)}"]
    schedule(E, main, [[0, 99, X]])
    retry(A, lab, 11)
    A("s_nop 6" if not isV else "s_nop 3")
    for t in range(nt):
        for i in range(4):
            A(f"v_add_f32_dpp {v(D[t]+i)}, {v(DO[t]+i)}, {v(D[t]+i)} row_ror:8 row_mask:0xf bank_mask:0xf")
        if isV: E(ds("r", f"ds_write_b128 {v(V_RW)}, {v(D[t],4)} offset:{t*1024}"))
        else: E(ds("r", f"ds_write_b128 {v(126)}, {v(D[t],4)} offset:{S_LRED-HI}"))
    E.drain()
    A("s_barrier")

def preload(A, E):
    for j in range(3):
        for it in wl_read(j): E(it)
    for k in range(3):
        for l in zero(ACC+4*k): A(l)

def gatherA(A, E, isV, cls, lab):
    mt = 72
    vtw = V_TW if isV else V_PLD
    def advance():
        A(f"s_add_u32 {s(S_STEP)}, {s(S_STEP)}, 1")
        for x, y in ((S_Z,S_ZN),(S_P,S_PN),(S_L,S_LN)):
            A(f"s_mov_b32 {s(S_T)}, {s(x)}"); A(f"s_mov_b32 {s(x)}, {s(y)}"); A(f"s_mov_b32 {s(y)}, {s(S_T)}")
        A(f"s_add_u32 {s(S_US)}, {s(S_US)}, {40*32768}")
        if isV: A(f"s_add_u32 {s(S_US2)}, {s(S_US2)}, {40*32768}")
        A(f"s_mov_b32 {s(S_EXP)}, {s(S_EXN)}")
        A(f"s_add_u32 {s(S_EXN)}, {s(S_EXN)}, {327680 if isV else NH*3072}")
        preload(A, E)
    if cls == 0:
        st = 2048 if isV else 1024
        for w in range(4): E(ds("f", f"ds_read_b128 {v(AF+4*w,4)}, {v(V_FINR)} offset:{w*st}"))
        E.drain()
        for i in range(4): A(f"v_add_f32 {v(AF+i)}, {v(AF+i)}, {v(AF+4+i)}")
        for i in range(4): A(f"v_add_f32 {v(AF+8+i)}, {v(AF+8+i)}, {v(AF+12+i)}")
        for i in range(4): A(f"v_add_f32 {v(AF+i)}, {v(AF+i)}, {v(AF+8+i)}")
        A(f"s_mov_b64 exec, {s(S_MB if isV else S_MA,2)}")
        A(f"buffer_store_dwordx4 {v(AF,4)}, {v(vtw)}, {s(S_WS,4)}, {s(S_RW)} offen sc0 sc1")
        A("s_mov_b64 exec, -1")
        tick(A, 3)
        advance()
        if DELAY0: A(f"s_sleep {DELAY0}")
        A(f"s_mov_b64 exec, {s(S_MB if isV else S_MA,2)}")
        labt = A.newlabel("GT")
        A.label(labt)
        A(f"buffer_load_dwordx4 {v(AF+4,4)}, {v(vtw)}, {s(S_WS,4)}, {s(S_RR)} offen sc1")
        A("s_waitcnt vmcnt(0)")
        for l in maxtree(range(AF+4, AF+8), mt): A(l)
        for i in range(4): A(f"v_add_f32 {v(AF+8+i)}, {v(AF+i)}, {v(AF+4+i)}")
        A(f"v_cmp_eq_u32 vcc, -1, {v(mt)}")
        for i in range(2): A(f"v_cvt_pk_bf16_f32 {v(AF+8+i)}, {v(AF+8+2*i)}, {v(AF+9+2*i)}")
        retry(A, labt, 13)
        dual(A, [f"buffer_store_dwordx2 {v(AF+8,2)}, {v(V_FINRM)}, {s(S_WS,4)}, {s(S_L)} offen",
                 f"buffer_store_dwordx2 {v(V_POI,2)}, {v(V_FINRM)}, {s(S_WS,4)}, {s(S_LN)} offen"])
        A("s_mov_b64 exec, -1")
        A(f"s_add_u32 {s(S_RR)}, {s(S_RR)}, 40960")
        A(f"s_add_u32 {s(S_RW)}, {s(S_RW)}, 40960")
    else:
        tick(A, 3)
        advance()
    A("s_barrier")
    tick(A, 4)
    if (DELAYLV if isV else DELAYL): A(f"s_sleep {DELAYLV if isV else DELAYL}")
    G = AF + 12
    A(f"s_add_u32 {s(S_T)}, {s(S_L)}, 4096")
    A(f"s_add_u32 {s(S_T2)}, {s(S_L)}, {s(S_G3)}")
    A(f"v_mov_b64 {v(G+8,2)}, 0"); A(f"v_mov_b64 {v(G+10,2)}, 0")
    if STAMP == 1: tick(A, 8)
    A.label(lab)
    A(f"buffer_load_dwordx4 {v(G,4)}, {v(V_T7)}, {s(S_WS,4)}, {s(S_L)} offen sc1")
    A(f"buffer_load_dwordx4 {v(G+4,4)}, {v(V_T7)}, {s(S_WS,4)}, {s(S_T)} offen sc1")
    A(f"s_mov_b64 exec, {s(S_M3,2)}")
    A(f"buffer_load_dwordx4 {v(G+8,4)}, {v(V_T7)}, {s(S_WS,4)}, {s(S_T2)} offen sc1")
    return lab

def gatherA2(A, E, lab):
    G = AF + 12; mt = 72
    A("s_waitcnt vmcnt(0)")
    if STAMP == 1: tick(A, 9)
    E(ds("g", f"ds_write_b128 {v(V_G3W)}, {v(G+8,4)}"))
    A("s_mov_b64 exec, -1")
    E(ds("g", f"ds_write_b128 {v(V_GA)}, {v(G,4)}"))
    E(ds("g", f"ds_write_b128 {v(V_GA)}, {v(G+4,4)} offset:4096"))
    for l in maxtree(range(G, G+12), mt): A(l)
    A(f"v_cmp_eq_u32 vcc, -1, {v(mt)}")
    retry(A, lab, 12)
    tick(A, 5)
    E.drain()

def chain_loop(A, isV, cls, flags):
    E = Emit(A)
    top = A.newlabel("CH_top"); fin = A.newlabel("CH_fin"); ent = A.newlabel("CH_ent"); galab = A.newlabel("GAx")
    preload(A, E); E.drain()
    if STAMP:
        A(f"s_memtime {s(88,2)}"); A(f"s_memrealtime {s(90,2)}"); A("s_waitcnt lgkmcnt(0)"); A(f"s_mov_b32 {s(86)}, {s(88)}"); A(f"s_mov_b32 {s(87)}, {s(90)}")
    A(f"s_branch {ent}")
    A.label(top)
    gatherA2(A, E, galab)
    A.label(ent)
    A("s_barrier")
    tick(A, 6)
    if STAMP in (1, 3):
        rs = A.newlabel("rs"); rb = A.newlabel("rb")
        A(f"s_cmp_eq_u32 {s(S_STEP)}, 8"); A(f"s_cbranch_scc1 {rs}"); A.label(rb)
        STUBS.append([rs + ":", f"s_memtime {s(88,2)}", f"s_memrealtime {s(90,2)}", "s_waitcnt lgkmcnt(0)", f"s_mov_b32 {s(86)}, {s(88)}", f"s_mov_b32 {s(87)}, {s(90)}"] +
                     [f"s_mov_b32 {s(S_TS+k)}, 0" for k in range(16)] + [f"s_branch {rb}"])
    if STAMP == 2:
        A(f"s_memrealtime {s(88,2)}"); A("s_waitcnt lgkmcnt(0)")
        A(f"s_cmp_eq_u32 {s(S_STEP)}, {TSTEP}"); A(f"s_cselect_b32 {s(S_TS+7)}, {s(88)}, {s(S_TS+7)}")
    if isV: v_stage(A, E, cls, flags)
    else: s_stage(A, E, cls, flags)
    tick(A, 0)
    A(f"s_cmp_eq_u32 {s(S_STEP)}, {NSTEP-1}")
    A(f"s_cbranch_scc1 {fin}")
    if not isV and cls == 0: s_tail(A, E)
    tick(A, 1)
    reduce_stage(A, E, isV, cls)
    tick(A, 2)
    gatherA(A, E, isV, cls, galab)
    A(f"s_branch {top}")
    flush_stubs(A)
    A.label(fin)
    E.reset()
    if STAMP == 3:
        A(f"s_memtime {s(88,2)}"); A(f"s_memrealtime {s(90,2)}"); A("s_waitcnt lgkmcnt(0)")
        A(f"s_sub_u32 {s(S_TS)}, {s(88)}, {s(86)}"); A(f"s_sub_u32 {s(S_TS+1)}, {s(90)}, {s(87)}")
    A(f"s_mov_b32 {s(S_EXP)}, {s(S_EXN)}")
    if isV:
        A(f"s_add_u32 {s(S_T2)}, {s(S_EXP)}, {4*8192}")
        A(f"buffer_store_dwordx4 {v(XS,4)}, {v(V_ZS4)}, {s(S_WS,4)}, {s(S_EXP)} offen sc0 sc1")
        A(f"buffer_store_dwordx4 {v(XS+4,4)}, {v(V_ZS4)}, {s(S_WS,4)}, {s(S_T2)} offen sc0 sc1")
        A(f"buffer_store_dwordx2 {v(XS+8,2)}, {v(V_ZS2)}, {s(S_WS,4)}, {s(S_EXP)} offen sc0 sc1")
    elif cls != 0:
        for it in km_export(E, XS+16): E(it)
    A("s_waitcnt vmcnt(0)")
    A("s_barrier")
    if flags and cls == 0:
        A(f"v_mov_b32 v56, {NSEG}")
        A("s_mov_b64 exec, 1")
        A(f"buffer_store_dword v56, {v(V_ZERO)}, {s(S_WS,4)}, {s(S_FLO)} offen sc0 sc1")
        A("s_mov_b64 exec, -1")
    if STAMP:
        A(f"s_lshl_b32 {s(S_T)}, {s(S_GRP)}, 5")
        A(f"s_add_u32 {s(S_T)}, {s(S_T)}, {s(S_C)}")
        A(f"s_lshl_b32 {s(S_T)}, {s(S_T)}, 2")
        A(f"s_add_u32 {s(S_T)}, {s(S_T)}, {s(S_WAVE)}")
        A(f"s_lshl_b32 {s(S_T)}, {s(S_T)}, 6")
        A(f"s_add_u32 {s(S_T)}, {s(S_T)}, {WS_SCR + 1048576}")
        for k in range(16):
            A(f"v_mov_b32 v21, {s(S_TS+k) if k != 14 else s(S_FAST)}")
            A(f"buffer_store_dword v21, {v(V_ZERO)}, {s(S_WS,4)}, {s(S_T)} offen offset:{4*k}")
        A("s_waitcnt vmcnt(0)")

def role_chain(A, isV, end_label, flags=False):
    global CUR_ORD
    CUR_ORD = ORD_V if isV else ORD_S
    A.c("================ role chain %s ================" % ("V" if isV else "S"))
    A(f"s_load_dwordx2 {s(S_W1,2)}, s[0:1], {KA['Wv' if isV else 'Wq']}")
    A(f"s_load_dwordx2 {s(S_W2,2)}, s[0:1], {KA['Wo' if isV else 'Wk']}")
    A(f"s_load_dwordx2 {s(S_X,2)}, s[0:1], {KA['mem0']}")
    A(f"s_and_b32 {s(S_HEAD)}, {s(S_C)}, 15")
    A(f"s_lshl_b32 {s(S_T)}, {s(S_GRP)}, 4")
    A(f"s_add_u32 {s(S_HEAD)}, {s(S_HEAD)}, {s(S_T)}")
    A(f"s_getreg_b32 {s(S_FAST)}, hwreg(HW_REG_XCC_ID, 0, 4)")
    A(f"s_lshl_b32 {s(S_T)}, {s(S_GRP)}, 5")
    A(f"s_add_u32 {s(S_T)}, {s(S_T)}, {s(S_C)}")
    A(f"s_lshl_b32 {s(S_T)}, {s(S_T)}, 2")
    A(f"s_add_u32 {s(S_T2)}, {s(S_T)}, {MB_X}")
    if not flags: publish(A, S_FAST, S_T2)
    A("s_waitcnt lgkmcnt(0)")
    srd_finish(A, S_W1, W_BYTES); srd_finish(A, S_W2, W_BYTES); srd_finish(A, S_X, 10240)
    A(f"s_mul_i32 s66, {s(S_HEAD)}, 384")
    A("s_waitcnt vmcnt(0)")
    def hook(c1, c2):
        def f(c):
            if not flags: return
            if c == c1: init_load(A, 124, 125)
            if c == c2:
                init_wait(A, 124, 125)
                publish(A, S_FAST, S_T2, vt=126)
        return f
    if not isV:
        load_w_rows384(A, [S_W1, S_W2], 66, lambda c, kk, t, half: wdest(((c//10)*3+t)*10 + c%10, 2*kk+half), rowmap="sparse", vt=116, after_read=hook(8, 14))
    else:
        load_w_rows384(A, [S_W1], 66, lambda c, kk, t, half: wdest(t*10 + c, 2*kk+half), rowmap="sparse", vt=116, after_read=hook(8, -1))
        A(f"s_mul_i32 s66, {s(S_HEAD)}, 245760")
        load_wo(A, S_W2, 66, lambda c, t, half: wdest(30 + 3*t + c//2, 2*(c&1)+half), sparse=True, vt=116, after_read=hook(-1, 1))
    A(f"s_mul_i32 {s(S_T)}, {s(S_WAVE)}, 24576")
    A(f"v_lshl_add_u32 {v(V_WL)}, {v(V_LANE)}, 4, {s(S_T)}")
    for j in range(12):
        A(f"ds_write_b128 {v(V_WL)}, {v(AF+8*j,4)} offset:{j*2048}")
        A(f"ds_write_b128 {v(V_WL)}, {v(AF+8*j+4,4)} offset:{j*2048+1024}")
    A("s_waitcnt lgkmcnt(0)")
    setup_common(A, isV)
    A(f"v_and_b32 v20, 31, {v(V_LANE)}")
    A(f"v_lshlrev_b32 v20, 2, v20")
    A(f"s_lshl_b32 {s(S_T)}, {s(S_GRP)}, 7")
    A(f"s_add_u32 {s(S_T)}, {s(S_T)}, {MB_X}")
    lab = A.newlabel("XH")
    A.label(lab)
    A(f"buffer_load_dword v21, v20, {s(S_WS,4)}, {s(S_T)} offen sc1")
    A("s_waitcnt vmcnt(0)")
    A("v_cmp_eq_u32 vcc, -1, v21")
    retry(A, lab)
    jx = A.newlabel("XJ"); A(f"s_branch {jx}"); flush_stubs(A); A.label(jx)
    A(f"v_cmp_ne_u32 vcc, {s(S_FAST)}, v21")
    A("s_cmp_eq_u64 vcc, 0")
    A(f"s_cselect_b32 {s(S_FAST)}, 1, 0")
    A(f"v_bfe_u32 v20, {v(V_LANE)}, 1, 3")
    A(f"v_mul_u32_u24 v20, 1280, v20")
    A(f"v_lshrrev_b32 v21, 4, {v(V_LANE)}")
    A(f"v_lshl_add_u32 v20, v21, 5, v20")
    A(f"v_and_b32 v21, 1, {v(V_LANE)}")
    A(f"v_lshl_add_u32 v20, v21, 4, v20")
    A(f"s_lshl_b32 {s(S_T)}, {s(S_WAVE)}, 7")
    A(f"s_lshl_b32 {s(S_T2)}, {s(S_WAVE)}, 10")
    for j in range(3):
        sk = A.newlabel("m0s")
        if j == 2:
            A(f"s_cmp_ge_u32 {s(S_WAVE)}, 2"); A(f"s_cbranch_scc1 {sk}")
        A(f"s_add_u32 m0, {s(S_T2)}, {L_MEM + j*4096 - j*512}")
        A("s_nop 0")
        A(f"buffer_load_dwordx4 v20, {s(S_X,4)}, {s(S_T)} offen offset:{j*512} lds")
        if j == 2: A.label(sk)
    if not isV:
        if flags:
            A(f"s_lshl_b32 {s(S_T)}, {s(S_HEAD)}, 2")
            A(f"s_add_u32 {s(S_T)}, {s(S_T)}, {FL_K}")
            A(f"s_mov_b32 {s(S_T2)}, 1")
            flag_wait(A, V_FL, V_ZERO, S_T, S_T2, S_T3, S_T4)
            A(f"v_mov_b32 {v(V_FL)}, 0")
        A(f"s_mov_b32 m0, {s(S_MK)}")
        A("s_nop 0")
        for j in range(3):
            A(f"buffer_load_dwordx4 {v(V_L16)}, {s(S_WS,4)}, {s(S_KS)} offen offset:{j*1024} sc1 lds")
    A("s_waitcnt vmcnt(0)")
    A("s_barrier")
    classes = [0, 123] if isV else [0, 12, 3]
    labs = {c: A.newlabel("CLS") for c in classes}
    A(f"s_cmp_eq_u32 {s(S_WAVE)}, 0")
    A(f"s_cbranch_scc1 {labs[0]}")
    if not isV:
        A(f"s_cmp_eq_u32 {s(S_WAVE)}, 3")
        A(f"s_cbranch_scc1 {labs[3]}")
    for c in reversed(classes) if isV else [12, 3, 0]:
        A.label(labs[c])
        chain_loop(A, isV, c, flags)
        A(f"s_branch {end_label}")
```

```python
from common import *
V_L16 = 2; V_OST = 3; V_Z = 4; V_FA = 5; V_FU = 6; V_FP = 7; V_P2 = 8
PF = 12
ZF = 44
D = 76
S_ID = 22; S_SEGC = 23; S_CB = 24; S_T = 26; S_T2 = 27; S_NEED = 28; S_CNT = 29; S_US = 30; S_PS = 31; S_ZS = 32; S_OS = 33; S_M0 = 34; S_FB = 35; S_STR = 36
NTASK = 640

def lanes_wait(A, vfl, s_need):
    pass

def wait_flags(A, vaddr, vfl):
    flag_wait(A, vfl, vaddr, S_FB, S_NEED, S_T, S_CNT, sleep=4)

def decode(A, s_id):
    A(f"s_mul_i32 {s(S_SEGC)}, {s(s_id)}, 6554")
    A(f"s_lshr_b32 {s(S_SEGC)}, {s(S_SEGC)}, 16")
    A(f"s_mul_i32 {s(S_T)}, {s(S_SEGC)}, 10")
    A(f"s_sub_u32 {s(S_CB)}, {s(s_id)}, {s(S_T)}")
    A(f"s_lshl_b32 {s(S_CB)}, {s(S_CB)}, 2")
    A(f"s_add_u32 {s(S_CB)}, {s(S_CB)}, {s(S_WAVE)}")

def issue_u(A, base, flags):
    decode(A, S_T2)
    if flags:
        A(f"s_add_u32 {s(S_NEED)}, {s(S_SEGC)}, 1")
        A(f"s_min_u32 {s(S_NEED)}, {s(S_NEED)}, {NSEG}")
        wait_flags(A, V_FA, V_FU)
    A(f"s_mul_i32 {s(S_US)}, {s(S_SEGC)}, {40*32768}")
    A(f"s_lshl_b32 {s(S_T)}, {s(S_CB)}, 15")
    A(f"s_add_u32 {s(S_US)}, {s(S_US)}, {s(S_T)}")
    A(f"s_add_u32 {s(S_US)}, {s(S_US)}, {WS_U}")
    for h in range(32):
        if h and h % 4 == 0: A(f"s_add_u32 {s(S_US)}, {s(S_US)}, 4096")
        A(f"buffer_load_dwordx4 {a(base+4*h,4)}, {v(V_L16)}, {s(S_WS,4)}, {s(S_US)} offen offset:{(h%4)*1024} sc1")

def self_init(A):
    npg = (POISON_END - WS_MB + 4095)//4096
    for i in range(4): A(f"v_mov_b32 {v(PF+i)}, -1")
    A(f"s_lshl_b32 {s(S_T)}, {s(S_WAVE)}, 10")
    A(f"v_add_u32 {v(PF+4)}, {s(S_T)}, {v(V_L16)}")
    A(f"s_lshl_b32 {s(S_T)}, {s(S_ID)}, 12")
    A(f"s_add_u32 {s(S_T)}, {s(S_T)}, {WS_MB}")
    lp = A.newlabel("F_po")
    A.label(lp)
    A(f"buffer_store_dwordx4 {v(PF,4)}, {v(PF+4)}, {s(S_WS,4)}, {s(S_T)} offen sc0 sc1")
    A(f"s_add_u32 {s(S_T)}, {s(S_T)}, {NF*4096}")
    A(f"s_cmp_lt_u32 {s(S_T)}, {POISON_END}")
    A(f"s_cbranch_scc1 {lp}")
    sk = A.newlabel("F_nz")
    A(f"s_cmp_lg_u32 {s(S_ID)}, 0"); A(f"s_cbranch_scc1 {sk}")
    A(f"v_lshrrev_b32 {v(PF+4)}, 2, {v(PF+4)}")
    A(f"s_mov_b32 {s(S_T)}, {FLAGS}")
    A(f"buffer_store_dword {v(V_Z)}, {v(PF+4)}, {s(S_WS,4)}, {s(S_T)} offen sc0 sc1")
    A.label(sk)
    A("s_waitcnt vmcnt(0)")
    A("s_barrier")
    sk = A.newlabel("F_na")
    A(f"s_cmp_lg_u32 {s(S_WAVE)}, 0"); A(f"s_cbranch_scc1 {sk}")
    A(f"v_mov_b32 {v(PF)}, 1")
    A("s_mov_b64 exec, 1")
    A(f"global_atomic_add {v(V_Z)}, {v(PF)}, {s(S_DBG,2)} sc1")
    A("s_mov_b64 exec, -1")
    A.label(sk)
    init_sync(A, PF+5, PF+6)
    assert POISON_END % 4096 == 0 and FLAGS == POISON_END

def role_f(A, flags=False):
    A.c("================ role F ================")
    A(f"s_load_dwordx2 {s(S_W2,2)}, s[0:1], {KA['out']}")
    A(f"v_lshlrev_b32 {v(V_L16)}, 4, {v(V_LANE)}")
    A(f"v_add_u32 {v(V_P2)}, 40960, {v(V_L16)}")
    A(f"v_and_b32 v9, 31, {v(V_LANE)}")
    A(f"v_mul_u32_u24 v9, 2560, v9")
    A(f"v_lshrrev_b32 v10, 5, {v(V_LANE)}")
    A(f"v_lshl_add_u32 {v(V_OST)}, v10, 4, v9")
    A(f"v_mov_b32 {v(V_Z)}, 0")
    A(f"v_and_b32 v9, 31, {v(V_LANE)}")
    A(f"v_lshlrev_b32 v9, 2, v9")
    A(f"v_add_u32 {v(V_FA)}, {FL_U-FLAGS}, v9")
    A(f"v_lshlrev_b32 v11, 2, {v(V_LANE)}")
    A(f"v_add_u32 v11, {FL_Z-FLAGS}, v11")
    assert FL_Q == FL_Z + 128
    A(f"v_mov_b32 {v(V_FU)}, 0"); A(f"v_mov_b32 {v(V_FP)}, 0")
    A(f"s_mov_b32 {s(S_FB)}, {FLAGS}")
    A(f"s_mul_i32 {s(S_M0)}, {s(S_WAVE)}, 20480")
    A("s_waitcnt lgkmcnt(0)")
    srd_finish(A, S_W2, 2048*1280*2)
    if flags: self_init(A)
    A(f"s_mov_b32 {s(S_T2)}, {s(S_ID)}")
    issue_u(A, 0, flags)
    loop = A.newlabel("F_loop"); done = A.newlabel("F_done")
    A.label(loop)
    for par in range(2):
        A(f"s_mov_b32 {s(S_T2)}, {s(S_ID)}")
        decode(A, S_T2)
        if flags:
            A(f"s_add_u32 {s(S_NEED)}, {s(S_SEGC)}, 1")
            wait_flags(A, 11, V_FP)
        A(f"s_mul_i32 {s(S_PS)}, {s(S_SEGC)}, 81920")
        A(f"s_add_u32 {s(S_PS)}, {s(S_PS)}, {s(S_M0)}")
        A(f"s_add_u32 {s(S_PS)}, {s(S_PS)}, {WS_P}")
        A(f"s_mul_i32 {s(S_ZS)}, {s(S_SEGC)}, 327680")
        A(f"s_lshl_b32 {s(S_T)}, {s(S_CB)}, 13")
        A(f"s_add_u32 {s(S_ZS)}, {s(S_ZS)}, {s(S_T)}")
        A(f"s_add_u32 {s(S_ZS)}, {s(S_ZS)}, {WS_Z}")
        A(f"s_mul_i32 {s(S_OS)}, {s(S_SEGC)}, {32*2560}")
        A(f"s_lshl_b32 {s(S_T)}, {s(S_CB)}, 5")
        A(f"s_add_u32 {s(S_OS)}, {s(S_OS)}, {s(S_T)}")
        A("s_barrier")
        for j in range(20):
            if j % 4 == 0:
                A(f"s_add_u32 m0, {s(S_M0)}, {j*1024}")
                A(f"s_add_u32 {s(S_T)}, {s(S_PS)}, {j*1024}")
            A(f"buffer_load_dwordx4 {v(V_L16)}, {s(S_WS,4)}, {s(S_T)} offen offset:{(j%4)*1024} sc1 lds")
        for j in range(8):
            if j == 4: A(f"s_add_u32 {s(S_ZS)}, {s(S_ZS)}, 4096")
            A(f"buffer_load_dwordx4 {v(ZF+4*j,4)}, {v(V_L16)}, {s(S_WS,4)}, {s(S_ZS)} offen offset:{(j%4)*1024} sc1")
        A(f"s_add_u32 {s(S_T2)}, {s(S_ID)}, {s(S_STR)}")
        A(f"s_min_u32 {s(S_T2)}, {s(S_T2)}, {NTASK-1}")
        if flags:
            pass
        issue_u(A, 128*(1-par), flags)
        A("s_waitcnt vmcnt(32)")
        A("s_barrier")
        def rd(j):
            sl = j % 4
            A(f"ds_read_b128 {v(PF+sl*8,4)}, {v(V_L16)} offset:{j*1024}")
            A(f"ds_read_b128 {v(PF+sl*8+4,4)}, {v(V_P2)} offset:{j*1024}")
        for j in range(3): rd(j)
        for j in range(40):
            if j+3 < 40:
                rd(j+3); A("s_waitcnt lgkmcnt(6)")
            else: A(f"s_waitcnt lgkmcnt({2*(39-j)})")
            a_ = a(128*par+4*j,4) if j < 32 else v(ZF+4*(j-32),4)
            for q in range(2):
                A(f"v_mfma_f32_16x16x32_bf16 {v(D+4*q,4)}, {a_}, {v(PF+(j%4)*8+4*q,4)}, {'0' if j==0 else v(D+4*q,4)}")
        A("s_nop 7")
        A(f"v_cvt_pk_bf16_f32 {v(D+8)}, {v(D)}, {v(D+1)}")
        A(f"v_cvt_pk_bf16_f32 {v(D+9)}, {v(D+2)}, {v(D+3)}")
        A(f"v_cvt_pk_bf16_f32 {v(D+10)}, {v(D+4)}, {v(D+5)}")
        A(f"v_cvt_pk_bf16_f32 {v(D+11)}, {v(D+6)}, {v(D+7)}")
        A("s_nop 1")
        A(f"v_permlane16_swap_b32 {v(D+8)}, {v(D+10)}")
        A(f"v_permlane16_swap_b32 {v(D+9)}, {v(D+11)}")
        A(f"buffer_store_dwordx4 {v(D+8,4)}, {v(V_OST)}, {s(S_W2,4)}, {s(S_OS)} offen")
        A(f"s_add_u32 {s(S_ID)}, {s(S_ID)}, {s(S_STR)}")
        A(f"s_cmp_ge_u32 {s(S_ID)}, {NTASK}")
        A(f"s_cbranch_scc1 {done}")
    A(f"s_branch {loop}")
    A.label(done)
    A("s_waitcnt vmcnt(0)")
```

```python
from common import *
import role_kv, role_u, role_chain, role_init, role_q, role_f, role_b, hazard, sys
NAME = "concat_heads__memory_aug_recurrent_mem_tr__sliding_block__prompt"
out = sys.argv[1]
rc = role_chain
rc.PBMODE = 2; rc.DELAYL = 4; rc.DELAYLV = 2; rc.DELAYB = 5; rc.DELAYBS = 2; rc.DELAY0 = 4
TS = 0; DBGT = 0
for kv in sys.argv[2:]:
    k, x = kv.split('=')
    if k == "TS": TS = int(x)
    elif k == "DBGT": DBGT = int(x)
    else: setattr(rc, k, int(x))
ref = open("cdna_kernels/" + NAME + ".s.ref").read().split("\n")
head = [l for l in ref if l.startswith(";") and "@launch" not in l and "Override launch" not in l and "grid=ceil" not in l]
MAIN = NAME + "_kernel"
hdr = "\n".join(head) + "\n"
hdr += f"; @launch grid=(256,1,1) block=(256,1,1) lds=163840\n"
hdr += ".amdgcn_target \"amdgcn-amd-amdhsa--gfx950\"\n.text\n"
body = ""

def tstamp(A, k):
    if not TS: return
    lab = A.newlabel("ts")
    A(f"s_cmp_lg_u32 {s(S_WAVE)}, 0"); A(f"s_cbranch_scc1 {lab}")
    A("s_memrealtime s[92:93]"); A("s_lshl_b32 s94, s2, 4"); A(f"s_add_u32 s94, s94, {WS_SCR + 2097152 + 4*k}")
    A("s_waitcnt lgkmcnt(0)"); A("v_mov_b32 v252, s92"); A("v_mov_b32 v253, 0")
    A(f"buffer_store_dword v252, v253, {s(S_WS,4)}, s94 offen"); A("s_waitcnt vmcnt(0)")
    A.label(lab)

A = Asm(); A.uid = 100
A("s_cmp_ge_u32 s2, 256"); A("s_cbranch_scc1 L_exit")
prologue(A)
tstamp(A, 0)
if DBGT: A("s_memrealtime s[96:97]"); A("s_waitcnt lgkmcnt(0)")
A("s_and_b32 s23, s2, 7"); A("s_lshr_b32 s24, s2, 3")
A("s_cmp_ge_u32 s23, 2"); A("s_cbranch_scc1 L_bulk")
A("s_cmp_ge_u32 s24, 16"); A("s_cbranch_scc1 L_chV")
rc.role_chain(A, False, "L_end", flags=True)
A.label("L_exit"); A("s_endpgm")
A.label("L_chV")
rc.role_chain(A, True, "L_end", flags=True)
A.label("L_bulk")
A("s_mul_i32 s25, s24, 6"); A("s_add_u32 s25, s25, s23"); A("s_sub_u32 s25, s25, 2")
A(f"s_and_b32 {s(S_HEAD)}, s25, 31")
A("s_cmp_ge_u32 s25, 64"); A("s_cbranch_scc1 L_notkv")
A(f"s_load_dwordx2 s[8:9], s[0:1], {KA['Wk']}")
A(f"s_load_dwordx2 s[10:11], s[0:1], {KA['Wv']}")
A(f"s_lshl_b32 s3, {s(S_HEAD)}, 2")
A("s_waitcnt lgkmcnt(0)")
A("s_cmp_ge_u32 s25, 32")
A("s_cselect_b32 s8, s10, s8"); A("s_cselect_b32 s9, s11, s9")
A(f"s_cselect_b32 {s(role_kv.S_DST)}, {WS_V}, {WS_K}")
A(f"s_cselect_b32 {s(role_kv.S_FLAG)}, {FL_V-FL_K}, 0")
A(f"s_add_u32 s3, s3, {FL_K}")
A(f"s_add_u32 {s(role_kv.S_FLAG)}, {s(role_kv.S_FLAG)}, s3")
role_kv.role_kv(A, flags=True)
A("s_branch L_end")
A.label("L_notkv")
A("s_cmp_ge_u32 s25, 96"); A("s_cbranch_scc1 L_notu")
A(f"s_lshl_b32 s3, {s(S_HEAD)}, 2")
A(f"s_add_u32 {s(role_u.S_FLAG)}, s3, {FL_U}"); A(f"s_add_u32 {s(role_u.S_FIN)}, s3, {FL_V}")
role_u.role_u(A, flags=True)
A("s_branch L_end")
A.label("L_notu")
A("s_cmp_ge_u32 s25, 128"); A("s_cbranch_scc1 L_notq")
role_q.role_q(A, flags=True)
A("s_branch L_end")
A.label("L_notq")
A("s_cmp_ge_u32 s25, 160"); A("s_cbranch_scc1 L_notb")
role_b.role_b(A, flags=True)
A("s_branch L_end")
A.label("L_notb")
A("s_cmp_ge_u32 s25, 165"); A("s_cbranch_scc1 L_f")
A(f"s_sub_u32 {s(role_b.S_J)}, s25, 160")
role_b.role_b3(A, flags=True)
A("s_branch L_end")
A.label("L_f")
A(f"s_sub_u32 {s(role_f.S_ID)}, s25, 165"); A(f"s_mov_b32 {s(role_f.S_STR)}, {NF}")
role_f.role_f(A, flags=True)
A.label("L_end")
tstamp(A, 1)
if DBGT:
    for k, wg in enumerate((0, 128, 2, 58, 98+0, 170+2, 218, 255)):
        lab = A.newlabel("dt")
        A(f"s_cmp_lg_u32 s2, {wg}"); A(f"s_cbranch_scc1 {lab}")
        A("s_memrealtime s[92:93]"); A("s_waitcnt lgkmcnt(0)"); A("s_sub_u32 s92, s92, s96")
        A("v_mov_b32 v252, s92"); A(f"v_mov_b32 v253, {4*(k+1)}")
        A(f"global_store_dword v253, v252, {s(S_DBG,2)}"); A("s_waitcnt vmcnt(0)")
        A.label(lab)
A("s_endpgm")
body += kernel_header(MAIN) + A.text()
txt = hdr + body + '.section .rodata,"a"\n.p2align 6\n' + kernel_desc(MAIN)
open(out, "w").write(txt)
print(len(txt), "bytes")
hazard.check(txt)
```

```python
from asmlib import *
from layout import *

KA = dict(A_x=0, mem0=8, Wq=16, Wk=24, Wv=32, Wo=40, seg=48, B_x=56, wqkv=64, wo=72, out=80, dbg=88, ws=96)
W_BYTES = 640*6144*2
X_BYTES = 2048*640*2

S_WS = 4; S_W1 = 8; S_X = 12; S_W2 = 16
S_WAVE = 20; S_HEAD = 21
V_LANE = 1
S_DBG = 98
NF = 27

def srd_finish(A, base, nbytes):
    A(f"s_and_b32 {s(base+1)}, {s(base+1)}, 0xffff")
    A(f"s_mov_b32 {s(base+2)}, {nbytes}")
    A(f"s_mov_b32 {s(base+3)}, 0x20000")

def prologue(A):
    A(f"s_load_dwordx2 {s(S_WS,2)}, s[0:1], {KA['ws']}")
    A(f"v_lshrrev_b32 v2, 6, v0")
    A(f"v_and_b32 v{V_LANE}, 63, v0")
    A(f"v_readfirstlane_b32 {s(S_WAVE)}, v2")
    A(f"s_load_dwordx2 {s(S_DBG,2)}, s[0:1], {KA['dbg']}")
    A(f"s_mov_b32 s100, 60000")
    A("s_waitcnt lgkmcnt(0)")
    srd_finish(A, S_WS, WS_SIZE)

def mul_const(A, dst, src, const, stmp):
    A(f"s_mov_b32 {s(stmp)}, {const}")
    A(f"v_mul_lo_u32 {v(dst)}, {v(src)}, {s(stmp)}")

def div24(A, q, r, u, stmp):
    A(f"v_mul_u32_u24 {v(q)}, 2731, {v(u)}")
    A(f"v_lshrrev_b32 {v(q)}, 16, {v(q)}")
    A(f"v_mul_u32_u24 {v(r)}, 24, {v(q)}")
    A(f"v_sub_u32 {v(r)}, {v(u)}, {v(r)}")

def stamp(A, idx, cond_wg=0, stmp=90):
    lab = A.newlabel("st")
    A(f"s_cmp_lg_u32 s2, {cond_wg}")
    A(f"s_cbranch_scc1 {lab}")
    A(f"s_cmp_lg_u32 {s(S_WAVE)}, 0")
    A(f"s_cbranch_scc1 {lab}")
    A(f"s_load_dwordx2 {s(stmp,2)}, s[0:1], {KA['dbg']}")
    A(f"s_memrealtime {s(stmp+2,2)}")
    A(f"s_memtime {s(stmp+4,2)}")
    A("s_waitcnt lgkmcnt(0)")
    A(f"v_mov_b32 v252, {s(stmp+2)}")
    A(f"v_mov_b32 v253, {s(stmp+4)}")
    A(f"v_mov_b32 v255, {idx*8}")
    A(f"global_store_dwordx2 v255, v[252:253], {s(stmp,2)}")
    A.label(lab)

SPIN_MAX = 60000
S_BUD = 100
def flag_load(A, vdst, vzero, s_off):
    A(f"buffer_load_dword {v(vdst)}, {v(vzero)}, {s(S_WS,4)}, {s(s_off)} offen sc1")

def flag_wait(A, vflag, vzero, s_off, s_need, s_tmp, s_cnt, sleep=2):
    ok = A.newlabel("fw_ok"); lp = A.newlabel("fw_lp")
    A.label(lp)
    A(f"v_cmp_gt_u32 vcc, {s(s_need)}, {v(vflag)}")
    A(f"s_cbranch_vccz {ok}")
    A(f"s_cmp_eq_u32 {s(S_BUD)}, 0")
    A(f"s_cbranch_scc1 {ok}")
    A(f"s_sub_u32 {s(S_BUD)}, {s(S_BUD)}, 1")
    if sleep: A(f"s_sleep {sleep}")
    flag_load(A, vflag, vzero, s_off)
    A("s_waitcnt vmcnt(0)")
    A(f"s_branch {lp}")
    A.label(ok)

def publish(A, s_val, s_off, vt=98):
    lab = A.newlabel("pf")
    A(f"s_cmp_lg_u32 {s(S_WAVE)}, 0")
    A(f"s_cbranch_scc1 {lab}")
    A(f"v_mov_b32 {v(vt)}, {s(s_val)}")
    A(f"v_mov_b32 {v(vt+1)}, 0")
    A(f"s_mov_b64 exec, 1")
    A(f"buffer_store_dword {v(vt)}, {v(vt+1)}, {s(S_WS,4)}, {s(s_off)} offen sc0 sc1")
    A(f"s_mov_b64 exec, -1")
    A.label(lab)

def init_load(A, vd, vz):
    A(f"v_mov_b32 {v(vz)}, 0")
    A(f"global_load_dword {v(vd)}, {v(vz)}, {s(S_DBG,2)} sc1")

def init_wait(A, vd, vz):
    ok = A.newlabel("iw_ok"); lp = A.newlabel("iw_lp")
    A.label(lp)
    A(f"v_cmp_gt_u32 vcc, {NF}, {v(vd)}")
    A(f"s_cbranch_vccz {ok}")
    A(f"s_cmp_eq_u32 {s(S_BUD)}, 0")
    A(f"s_cbranch_scc1 {ok}")
    A(f"s_sub_u32 {s(S_BUD)}, {s(S_BUD)}, 1")
    A("s_sleep 2")
    A(f"global_load_dword {v(vd)}, {v(vz)}, {s(S_DBG,2)} sc1")
    A("s_waitcnt vmcnt(0)")
    A(f"s_branch {lp}")
    A.label(ok)

def init_sync(A, vd=250, vz=251):
    tstamp(A, 2)
    init_load(A, vd, vz); A("s_waitcnt vmcnt(0)"); init_wait(A, vd, vz)

KST = 0
def ktick(A, k):
    if not KST: return
    A("s_memtime s[88:89]"); A("s_waitcnt lgkmcnt(0)")
    A("s_sub_u32 s87, s88, s86"); A(f"s_add_u32 s{70+k}, s{70+k}, s87"); A("s_mov_b32 s86, s88")
def kinit(A):
    if not KST: return
    for k in range(8): A(f"s_mov_b32 s{70+k}, 0")
    A("s_memtime s[88:89]"); A("s_waitcnt lgkmcnt(0)"); A("s_mov_b32 s86, s88")
def kdump(A):
    if not KST: return
    A(f"s_lshl_b32 s94, s2, 2"); A(f"s_add_u32 s94, s94, {s(S_WAVE)}"); A("s_lshl_b32 s94, s94, 5"); A(f"s_add_u32 s94, s94, {WS_SCR + 3*1048576}")
    A("v_mov_b32 v253, 0")
    for k in range(8):
        A(f"v_mov_b32 v252, s{70+k}"); A(f"buffer_store_dword v252, v253, {s(S_WS,4)}, s94 offen offset:{4*k}")
    A("s_waitcnt vmcnt(0)")

def arrive(A, s_off, vt=98):
    lab = A.newlabel("ar")
    A(f"s_cmp_lg_u32 {s(S_WAVE)}, 0")
    A(f"s_cbranch_scc1 {lab}")
    A(f"v_mov_b32 {v(vt)}, 1")
    A(f"v_mov_b32 {v(vt+1)}, 0")
    A(f"s_mov_b64 exec, 1")
    A(f"buffer_atomic_add {v(vt)}, {v(vt+1)}, {s(S_WS,4)}, {s(s_off)} offen sc1")
    A(f"s_mov_b64 exec, -1")
    A.label(lab)

TS = 0
def tstamp(A, k):
    if not TS: return
    lab = A.newlabel("ts")
    A(f"s_cmp_lg_u32 {s(S_WAVE)}, 0"); A(f"s_cbranch_scc1 {lab}")
    A("s_memrealtime s[92:93]"); A("s_lshl_b32 s94, s2, 4"); A(f"s_add_u32 s94, s94, {WS_SCR + 2097152 + 4*k}")
    A("s_waitcnt lgkmcnt(0)"); A("v_mov_b32 v118, s92"); A("v_mov_b32 v119, 0")
    A(f"buffer_store_dword v118, v119, {s(S_WS,4)}, s94 offen"); A("s_waitcnt vmcnt(0)")
    A.label(lab)

def arrive_last(A, s_off, delta, n, vt=98):
    lab = A.newlabel("al")
    A(f"s_cmp_lg_u32 {s(S_WAVE)}, 0")
    A(f"s_cbranch_scc1 {lab}")
    A(f"v_mov_b32 {v(vt)}, 1")
    A(f"v_mov_b32 {v(vt+1)}, 0")
    A(f"v_mov_b32 {v(vt+2)}, {delta}")
    A(f"s_mov_b64 exec, 1")
    A(f"buffer_atomic_add {v(vt)}, {v(vt+1)}, {s(S_WS,4)}, {s(s_off)} offen sc0 sc1")
    A("s_waitcnt vmcnt(0)")
    A(f"v_cmp_eq_u32 vcc, {n-1}, {v(vt)}")
    A(f"s_cbranch_vccz {lab}_x")
    A(f"buffer_store_dword {v(vt)}, {v(vt+2)}, {s(S_WS,4)}, {s(s_off)} offen sc0 sc1")
    A.label(lab + "_x")
    A(f"s_mov_b64 exec, -1")
    A.label(lab)
```

```python
NSEG=64; NH=32
WS_K   = 0
WS_V   = WS_K + NSEG*NH*12288
WS_U   = WS_V + NSEG*NH*12288
WS_Z   = WS_U + NSEG*40*32*1024
WS_P   = WS_Z + NSEG*40*8*1024
WS_KM  = WS_P + NSEG*2*40*1024
WS_MB  = WS_KM + NSEG*NH*3072
WS_SIZE = 268435456
def emap(ks, g, sig):
    if ks < 4:
        return 48*ks + 16*(sig>>2) + 4*g + (sig&3)
    return 48*(2*(ks-4) + (g>>1)) + 32 + 8*(g&1) + sig
if __name__ == "__main__":
    print(hex(WS_V),hex(WS_U),hex(WS_Z),hex(WS_P),hex(WS_KM),hex(WS_MB))
    assert sorted(emap(k,g,s) for k in range(6) for g in range(4) for s in range(8))==list(range(192))

MB_Z = WS_MB
MB_P = MB_Z + 3*327680
MB_L = MB_P + 3*20480
MB_R = MB_L + 4*10240
MB_X = MB_R + 64*2*20480
MB_H = MB_X + 256
MB_RH = MB_X + 1024
POISON_END = (MB_X + 1024 + 16384 + 4095)//4096*4096
FLAGS = POISON_END
FL_K = FLAGS; FL_V = FL_K + 4096; FL_KM = FL_V + 4096
CN_U = FL_KM + 4096
CN_Z = CN_U + 8192
CN_Q = CN_Z + 8192
RD_Q = CN_Q + 8192
CN_B = RD_Q + 8192
RD_B = CN_B + 4096
FLAGS_END = RD_B + 4096
WS_OB = (FLAGS_END + 4095)//4096*4096
WS_SCR = WS_OB + 4*1024*1024
```

```python
from common import *
import role_kv as kv
from role_kv import XF, XB, V_XSRC, S_SEG, S_XOFF, S_M0X, S_T
from role_chain import f32bits
import math
L_RING = 81920; L_QB = L_RING + 12*4096
ACC = 32
SC = 100
KR = 172
QF = 196; D0 = 200; D1 = 204; MKC = 208; MKW = 212
V_L16 = 216; V_E0 = 217; V_E1 = 218; V_O0 = 219; V_BB = 220
T0 = 232
S_RB = 30; S_QT = 31; S_C = 32; S_FLO = 33; S_OD = 34; S_SL = 35; S_IT = 36; S_T2 = 37; S_MG0 = 50; S_MG2 = 52; S_MN2 = 54

def gemm(A, buf, swap):
    def mm(k, tau):
        acc = v(ACC+4*tau,4); w_ = a(4*k,4); x_ = v(XF+(k%3)*8+tau*4,4)
        c = "0" if k == 0 else acc
        A(f"v_mfma_f32_16x16x32_bf16 {acc}, {x_ if swap else w_}, {w_ if swap else x_}, {c}")
    for k in range(20):
        if k < 10: A(f"s_add_u32 m0, {s(S_M0X)}, {(1-buf)*40960 + k*1024 - k*128}")
        if k+2 < 20:
            kv.xread(A, buf, k+2); A("s_waitcnt lgkmcnt(4)")
        else: A(f"s_waitcnt lgkmcnt({2*(19-k)})")
        mm(k, 0)
        if k < 10: A(f"buffer_load_dwordx4 {v(V_XSRC)}, {s(S_X,4)}, {s(S_XOFF)} offen offset:{k*128} lds")
        if k == 11: kv.issue_pf(A)
        mm(k, 1)

def epilogue(A, blk, w):
    P = T0
    for tau in range(2):
        A(f"v_cvt_pk_bf16_f32 {v(P+2*tau)}, {v(ACC+4*tau)}, {v(ACC+4*tau+1)}")
        A(f"v_cvt_pk_bf16_f32 {v(P+2*tau+1)}, {v(ACC+4*tau+2)}, {v(ACC+4*tau+3)}")
    if w == 0:
        for tau in range(2): A(f"ds_write_b64 {v(V_E0)}, {v(P+2*tau,2)} offset:{(2*blk+tau)*1024}")
    elif w in (1, 3):
        A(f"v_add_u32 {v(P+4)}, {s(S_RB)}, {v(V_E0)}")
        for tau in range(2): A(f"ds_write_b64 {v(P+4)}, {v(P+2*tau,2)} offset:{tau*(1024 if w == 1 else 8)}")
    else:
        A(f"v_mov_b32 {v(P+4)}, {s(S_RB)}")
        A(f"v_mov_b32 {v(P+5)}, {L_QB + 2*blk*1024}")
        A(f"v_cndmask_b32 {v(P+5)}, {v(P+4)}, {v(P+5)}, {s(S_MG0,2)}")
        A(f"v_add_u32 {v(P+5)}, {v(P+5)}, {v(V_E0)}")
        A(f"v_add_u32 {v(P+4)}, {v(P+4)}, {v(V_E1)}")
        A(f"s_mov_b64 exec, {s(S_MN2,2)}")
        for tau in range(2): A(f"ds_write_b64 {v(P+5)}, {v(P+2*tau,2)} offset:{tau*1024}")
        A(f"s_mov_b64 exec, {s(S_MG2,2)}")
        for tau in range(2):
            for r in range(4):
                op = "ds_write_b16_d16_hi" if r & 1 else "ds_write_b16"
                A(f"{op} {v(P+4)}, {v(P+2*tau+(r>>1))} offset:{r*16 + tau*8}")
        A("s_mov_b64 exec, -1")

def attention(A, odd):
    for j in range(9):
        A(f"s_lshl_b32 {s(S_T)}, {s(S_SL)}, 12")
        A(f"v_add_u32 {v(V_BB+j)}, {s(S_T)}, {v(V_BB+9)}")
        A(f"s_add_u32 {s(S_SL)}, {s(S_SL)}, 1")
        A(f"s_cmp_eq_u32 {s(S_SL)}, 12")
        A(f"s_cselect_b32 {s(S_SL)}, 0, {s(S_SL)}")
    A(f"ds_read_b128 {v(QF,4)}, {v(V_BB+10)}")
    tiles = [t for t in range(18) if t != (0 if odd else 17)]
    first, last = tiles[0], tiles[-1]
    def krd(i):
        t = tiles[i]
        A(f"ds_read_b128 {v(KR+4*(i%6),4)}, {v(V_BB+t//2)} offset:{(t&1)*1024}")
    for i in range(5): krd(i)
    m, t1 = T0, T0+1
    for i, t in enumerate(tiles):
        if i+5 < 17:
            krd(i+5); A("s_waitcnt lgkmcnt(5)")
        else: A(f"s_waitcnt lgkmcnt({16-i})")
        c = v(MKW,4) if t == first else (v(MKC,4) if t == last else "0")
        A(f"v_mfma_f32_16x16x32_bf16 {v(SC+4*t,4)}, {v(KR+4*(i%6),4)}, {v(QF,4)}, {c}")
        if i >= 3:
            tt = tiles[i-3]
            if i == 3: A(f"v_max3_f32 {v(m)}, {v(SC+4*tt)}, {v(SC+4*tt+1)}, {v(SC+4*tt+2)}"); A(f"v_mov_b32 {v(t1)}, {v(SC+4*tt+3)}")
            else:
                A(f"v_max3_f32 {v(m)}, {v(m)}, {v(SC+4*tt)}, {v(SC+4*tt+1)}")
                A(f"v_max3_f32 {v(t1)}, {v(t1)}, {v(SC+4*tt+2)}, {v(SC+4*tt+3)}")
    def vrd(j):
        for f in range(2): A(f"ds_read_b128 {v(KR+8*(j%3)+4*f,4)}, {v(V_BB+j)} offset:{2048+f*1024}")
    for j in range(3): vrd(j)
    for i in range(14, 17):
        tt = tiles[i]
        if i == 16: A("s_nop 1")
        A(f"v_max3_f32 {v(m)}, {v(m)}, {v(SC+4*tt)}, {v(SC+4*tt+1)}")
        A(f"v_max3_f32 {v(t1)}, {v(t1)}, {v(SC+4*tt+2)}, {v(SC+4*tt+3)}")
    A(f"v_max_f32 {v(m)}, {v(m)}, {v(t1)}")
    for wh in (16, 32):
        A(f"v_mov_b32 {v(t1)}, {v(m)}"); A("s_nop 1"); A(f"v_permlane{wh}_swap_b32 {v(m)}, {v(t1)}"); A(f"v_max_f32 {v(m)}, {v(m)}, {v(t1)}")
    A(f"v_mul_f32 {v(m)}, {s(S_C)}, {v(m)}")
    def pv(j):
        L = [f"s_waitcnt lgkmcnt({min(4, 2*(8-j))})"]
        for f, d in ((0, D0), (1, D1)):
            L.append(f"v_mfma_f32_16x16x32_bf16 {v(d,4)}, {v(KR+8*(j%3)+4*f,4)}, {v(SC+8*j,4)}, {'0' if j==0 else v(d,4)}")
        return L
    for j in range(9):
        regs = [SC+4*t+r for t in (2*j, 2*j+1) if t in tiles for r in range(4)]
        for r in regs: A(f"v_fma_f32 {v(r)}, {v(r)}, {s(S_C)}, -{v(m)}")
        if j > 0:
            for l in pv(j-1): A(l)
            if j+2 < 9: vrd(j+2)
        for r in regs: A(f"v_exp_f32 {v(r)}, {v(r)}")
        if len(regs) == 4: A("s_nop 0")
        for i in range(4):
            t = 2*j + (i >> 1)
            if t in tiles: A(f"v_cvt_pk_bf16_f32 {v(SC+8*j+i)}, {v(SC+8*j+2*i)}, {v(SC+8*j+2*i+1)}")
            else: A(f"v_mov_b32 {v(SC+8*j+i)}, 0")
    A("s_nop 1")
    for l in pv(8): A(l)
    A("s_nop 7")
    A(f"v_mov_b32 {v(m)}, {v(D1)}"); A(f"v_mov_b32 {v(t1)}, {v(D1)}"); A("s_nop 1")
    A(f"v_permlane16_swap_b32 {v(m)}, {v(t1)}")
    A(f"v_rcp_f32 {v(t1)}, {v(t1)}")
    A("s_nop 0")
    for i in range(8): A(f"v_mul_f32 {v(D0+i)}, {v(D0+i)}, {v(t1)}")
    for i in range(4): A(f"v_cvt_pk_bf16_f32 {v(D0+i)}, {v(D0+2*i)}, {v(D0+2*i+1)}")
    A(f"buffer_store_dwordx2 {v(D0,2)}, {v(V_O0)}, {s(S_WS,4)}, {s(S_OD)} offen sc0 sc1")
    A(f"s_mov_b64 exec, {s(S_MG0,2)}")
    A(f"buffer_store_dwordx2 {v(D0+2,2)}, {v(V_O0)}, {s(S_WS,4)}, {s(S_OD)} offen offset:32 sc0 sc1")
    A("s_mov_b64 exec, -1")

def role_b(A, flags=False):
    A.c("================ role B ================")
    A(f"s_load_dwordx2 {s(S_W1,2)}, s[0:1], {KA['wqkv']}")
    A(f"s_load_dwordx2 {s(S_X,2)}, s[0:1], {KA['B_x']}")
    n_, g_, t_, u_ = T0, T0+1, T0+2, T0+3
    A(f"v_and_b32 {v(t_)}, 31, {v(V_LANE)}")
    A(f"v_lshlrev_b32 {v(u_)}, 2, {v(t_)}")
    A(f"v_mov_b32 v10, 0x7ffffff0")
    for lo, add in ((24, 2560-96), (22, None), (20, 2560+32-80), (18, 1280+32-72), (16, 32-64), (8, 1280-32), (0, 0)):
        pass
    A(f"v_add_u32 v11, {2560-96}, {v(u_)}")
    for hi, add in ((24, None), (22, 2560+32-80), (20, 1280+32-72), (18, 32-64), (16, 1280-32), (8, 0)):
        if add is None: A(f"v_mov_b32 v12, v10")
        else: A(f"v_add_u32 v12, {add & 0xffffffff}, {v(u_)}")
        A(f"v_cmp_gt_u32 vcc, {hi}, {v(t_)}")
        A("s_nop 1")
        A(f"v_cndmask_b32 v11, v11, v12, vcc")
    A(f"v_lshrrev_b32 v12, 5, {v(V_LANE)}")
    A(f"v_mul_u32_u24 v12, 3840, v12")
    A(f"v_add_u32 v11, v11, v12")
    A(f"s_mul_i32 s30, {s(S_HEAD)}, 40")
    A(f"s_mul_i32 s31, {s(S_WAVE)}, {160*3840}")
    A(f"s_add_u32 s30, s30, s31")
    A(f"s_mul_i32 s31, {s(S_WAVE)}, {160*128}")
    A("s_waitcnt lgkmcnt(0)")
    srd_finish(A, S_W1, 640*1920*2); srd_finish(A, S_X, X_BYTES)
    lp = A.newlabel("B_wl")
    A("s_mov_b32 s32, 0")
    A.label(lp)
    for j in range(8):
        A(f"s_add_u32 m0, s31, {j*256}")
        A(f"s_add_u32 s33, s30, {j*2*3840}")
        A(f"buffer_load_dword v11, {s(S_W1,4)}, s33 offen lds")
    A("s_waitcnt vmcnt(40)")
    A(f"s_add_u32 s31, s31, 2048"); A(f"s_add_u32 s30, s30, {16*3840}")
    A("s_add_u32 s32, s32, 1"); A("s_cmp_lt_u32 s32, 10"); A(f"s_cbranch_scc1 {lp}")
    A(f"v_and_b32 {v(n_)}, 15, {v(V_LANE)}")
    A(f"v_lshrrev_b32 {v(g_)}, 4, {v(V_LANE)}")
    A(f"v_bfe_u32 {v(t_)}, {v(V_LANE)}, 2, 2")
    A(f"v_lshl_add_u32 {v(t_)}, {v(g_)}, 3, {v(t_)}")
    A(f"v_and_b32 {v(u_)}, 3, {v(V_LANE)}")
    A(f"v_lshlrev_b32 {v(u_)}, 3, {v(u_)}")
    A(f"v_lshl_add_u32 v10, {v(t_)}, 7, {v(u_)}")
    A(f"s_lshl_b32 {s(S_T)}, {s(S_WAVE)}, 5")
    A(f"v_add_u32 v10, {s(S_T)}, v10")
    A(f"v_add_u32 v12, 40960, v10")
    A("s_waitcnt vmcnt(0)")
    A("s_barrier")
    for k in range(20):
        for h in range(2):
            A(f"ds_read_b64_tr_b16 {a(4*k+2*h,2)}, {'v10' if k < 10 else 'v12'} offset:{(k%10)*4096 + h*512}")
        if k % 6 == 5: A("s_waitcnt lgkmcnt(0)")
    A("s_waitcnt lgkmcnt(0)")
    A("s_barrier")
    if flags: init_sync(A)
    kv.setup_x_stream(A)
    A(f"s_mov_b32 {s(S_XOFF)}, 0")
    kv.XSRD = S_X; kv.XFL = ""
    kv.setup_pf(A)
    kv.issue_x(A, 0)
    kv.first_pf(A)
    A(f"v_lshlrev_b32 {v(V_L16)}, 4, {v(V_LANE)}")
    for i in range(12): A(f"v_mov_b32 {v(SC+i)}, 0")
    A(f"v_cmp_eq_u32 vcc, 1, {v(g_)}")
    A(f"v_mov_b32 {v(t_)}, 0xf149")
    A(f"v_mov_b32 {v(u_)}, 0x3f80")
    A(f"v_cndmask_b32 {v(SC+2)}, 0, {v(t_)}, vcc")
    A(f"v_cndmask_b32 {v(SC+14)}, 0, {v(u_)}, vcc")
    A(f"v_mov_b32 {v(SC+12)}, 0"); A(f"v_mov_b32 {v(SC+13)}, 0"); A(f"v_mov_b32 {v(SC+15)}, 0")
    A(f"v_and_b32 {v(t_)}, 3, {v(n_)}")
    A(f"v_cmp_eq_u32 vcc, 0, {v(t_)}")
    A(f"v_cmp_lt_u32 {s(S_MG0,2)}, 3, {v(n_)}")
    A(f"v_mov_b32 {v(u_)}, 0x3f803f80")
    A(f"s_and_b64 vcc, vcc, {s(S_MG0,2)}")
    A("s_nop 1")
    for i in range(4): A(f"v_cndmask_b32 {v(SC+8+i)}, 0, {v(u_)}, vcc")
    A(f"s_mul_i32 {s(S_T)}, {s(S_WAVE)}, {3*4096}")
    A(f"s_add_u32 {s(S_T)}, {s(S_T)}, {L_RING}")
    A(f"v_add_u32 {v(t_)}, {s(S_T)}, {v(V_L16)}")
    for b in range(3):
        A(f"ds_write_b128 {v(t_)}, {v(SC,4)} offset:{b*4096}")
        A(f"ds_write_b128 {v(t_)}, {v(SC,4)} offset:{b*4096+1024}")
        A(f"ds_write_b128 {v(t_)}, {v(SC+4,4)} offset:{b*4096+2048}")
        A(f"ds_write_b128 {v(t_)}, {v(SC+8,4)} offset:{b*4096+3072}")
    A(f"s_lshl_b32 {s(S_T)}, {s(S_WAVE)}, 10")
    A(f"s_add_u32 {s(S_T)}, {s(S_T)}, {L_QB}")
    A(f"v_add_u32 {v(V_BB+10)}, {s(S_T)}, {v(V_L16)}")
    A(f"ds_write_b128 {v(V_BB+10)}, {v(SC+12,4)}")
    A(f"v_add_u32 {v(V_BB+9)}, {L_RING}, {v(V_L16)}")
    A(f"s_mov_b64 {s(S_MG0,2)}, 0xffff")
    A(f"s_mov_b32 {s(S_MG2)}, 0"); A(f"s_mov_b32 {s(S_MG2+1)}, 0xffff")
    A(f"s_mov_b32 {s(S_MN2)}, -1"); A(f"s_mov_b32 {s(S_MN2+1)}, 0xffff0000")
    A(f"v_lshlrev_b32 {v(t_)}, 2, {v(g_)}")
    A(f"v_mov_b32 {v(u_)}, {f32bits(-1e30)}")
    for r in range(4):
        A(f"v_add_u32 v10, {r}, {v(t_)}")
        A(f"v_cmp_gt_u32 vcc, v10, {v(n_)}")
        A("s_nop 1")
        A(f"v_cndmask_b32 {v(MKC+r)}, 0, {v(u_)}, vcc")
        A(f"v_cndmask_b32 {v(MKW+r)}, {v(u_)}, {v(SC+4)}, vcc")
    A(f"v_lshlrev_b32 v10, 4, {v(n_)}")
    A(f"v_lshrrev_b32 v11, 1, {v(g_)}")
    A(f"v_lshl_add_u32 v10, v11, 8, v10")
    A(f"v_add_u32 v10, 8, v10")
    A(f"s_mov_b32 {s(S_T)}, {L_QB}")
    A(f"s_cmp_eq_u32 {s(S_WAVE)}, 1"); A(f"s_cselect_b32 {s(S_T)}, 0, {s(S_T)}")
    A(f"s_cmp_eq_u32 {s(S_WAVE)}, 3"); A(f"s_cselect_b32 {s(S_T)}, 2048, {s(S_T)}")
    A(f"v_add_u32 {v(V_E0)}, {s(S_T)}, {v(V_L16)}")
    A(f"s_cmp_eq_u32 {s(S_WAVE)}, 2"); A(f"s_cselect_b64 vcc, -1, 0")
    A(f"v_cndmask_b32 {v(V_E0)}, {v(V_E0)}, v10, vcc")
    A(f"v_lshrrev_b32 v10, 2, {v(n_)}")
    A(f"v_lshlrev_b32 v10, 8, v10")
    A(f"v_and_b32 v11, 3, {v(n_)}")
    A(f"v_lshl_add_u32 v10, v11, 1, v10")
    A(f"v_add_u32 {v(V_E1)}, 3072, v10")
    A(f"s_lshl_b32 {s(S_T)}, {s(S_WAVE)}, 4")
    A(f"v_add_u32 v10, {s(S_T)}, {v(n_)}")
    A(f"v_mul_u32_u24 v10, 1280, v10")
    A(f"v_lshl_add_u32 {v(V_O0)}, {v(g_)}, 3, v10")
    A(f"s_mul_i32 {s(S_OD)}, {s(S_HEAD)}, 40")
    A(f"s_add_u32 {s(S_OD)}, {s(S_OD)}, {WS_OB}")
    A(f"s_mov_b32 {s(S_C)}, {f32bits(20**-0.5*math.log2(math.e))}")
    A(f"s_mov_b32 {s(S_FLO)}, {CN_B}")
    A(f"s_mov_b32 {s(S_RB)}, {L_RING}")
    A(f"s_lshr_b32 {s(S_QT)}, {s(S_WAVE)}, 1")
    A(f"s_add_u32 {s(S_QT)}, {s(S_QT)}, 4")
    A(f"s_mov_b32 {s(S_IT)}, 0")
    A("s_waitcnt lgkmcnt(0)")
    loop = A.newlabel("B_loop")
    A.label(loop)
    for blk in range(2):
        A("s_waitcnt vmcnt(0)" if blk == 0 else "s_waitcnt vmcnt(1)")
        A("s_barrier")
        for k in range(2): kv.xread(A, blk, k)
        if flags and blk == 0:
            l2 = A.newlabel("B_s0")
            A(f"s_cmp_eq_u32 {s(S_IT)}, 0"); A(f"s_cbranch_scc1 {l2}")
            arrive_last(A, S_FLO, RD_B-CN_B, 32, vt=T0)
            A(f"s_add_u32 {s(S_FLO)}, {s(S_FLO)}, 128")
            A.label(l2)
        A(f"s_add_u32 {s(S_XOFF)}, {s(S_XOFF)}, {32*1280}")
        l3 = A.newlabel("B_g3"); l2 = A.newlabel("B_e2"); l1 = A.newlabel("B_e1"); le = A.newlabel("B_ee")
        A(f"s_cmp_eq_u32 {s(S_WAVE)}, 3"); A(f"s_cbranch_scc1 {l3}")
        gemm(A, blk, False)
        A("s_nop 5")
        A(f"s_cmp_eq_u32 {s(S_WAVE)}, 2"); A(f"s_cbranch_scc1 {l2}")
        A(f"s_cmp_eq_u32 {s(S_WAVE)}, 1"); A(f"s_cbranch_scc1 {l1}")
        epilogue(A, blk, 0); A(f"s_branch {le}")
        A.label(l1); epilogue(A, blk, 1); A(f"s_branch {le}")
        A.label(l2); epilogue(A, blk, 2); A(f"s_branch {le}")
        A.label(l3); gemm(A, blk, True); A("s_nop 7"); epilogue(A, blk, 3)
        A.label(le)
        A(f"s_add_u32 {s(S_RB)}, {s(S_RB)}, 4096")
    A(f"s_cmp_eq_u32 {s(S_RB)}, {L_RING+12*4096}")
    A(f"s_cselect_b32 {s(S_RB)}, {L_RING}, {s(S_RB)}")
    A("s_waitcnt lgkmcnt(0)")
    A("s_barrier")
    A(f"s_mov_b32 {s(S_SL)}, {s(S_QT)}")
    lo = A.newlabel("B_odd"); ld = A.newlabel("B_ad")
    A(f"s_bitcmp1_b32 {s(S_WAVE)}, 0"); A(f"s_cbranch_scc1 {lo}")
    attention(A, False); A(f"s_branch {ld}")
    A.label(lo); attention(A, True)
    A.label(ld)
    A(f"s_add_u32 {s(S_QT)}, {s(S_QT)}, 2")
    A(f"s_cmp_ge_u32 {s(S_QT)}, 12")
    A(f"s_cselect_b32 {s(S_T)}, 12, 0")
    A(f"s_sub_u32 {s(S_QT)}, {s(S_QT)}, {s(S_T)}")
    A(f"s_add_u32 {s(S_OD)}, {s(S_OD)}, {64*1280}")
    A(f"s_add_u32 {s(S_IT)}, {s(S_IT)}, 1")
    A(f"s_cmp_lt_u32 {s(S_IT)}, 32")
    A(f"s_cbranch_scc1 {loop}")
    A("s_waitcnt vmcnt(0)")
    if flags:
        A("s_barrier")
        arrive_last(A, S_FLO, RD_B-CN_B, 32, vt=T0)

S_J = 30; S_OS = 31; S_NEED = 32; S_CNT = 33; S_FB = 34
V_FA = 100; V_FV = 101; V_OS = 102; PK = 104
def role_b3(A, flags=False):
    A.c("================ role B3 ================")
    A(f"s_load_dwordx2 {s(S_W1,2)}, s[0:1], {KA['wo']}")
    A(f"s_load_dwordx2 {s(S_W2,2)}, s[0:1], {KA['out']}")
    A(f"v_lshrrev_b32 v10, 4, {v(V_LANE)}")
    A(f"v_mul_u32_u24 v11, 1280, v10")
    A(f"v_and_b32 v12, 15, {v(V_LANE)}")
    A(f"v_lshl_add_u32 v11, v12, 4, v11")
    A(f"s_lshl_b32 s35, {s(S_J)}, 8")
    A(f"s_mul_i32 s36, {s(S_WAVE)}, {160*1280}")
    A(f"s_add_u32 s35, s35, s36")
    A(f"s_mul_i32 s36, {s(S_WAVE)}, {160*256}")
    A("s_waitcnt lgkmcnt(0)")
    srd_finish(A, S_W1, 640*640*2); srd_finish(A, S_W2, 2048*1280*2)
    for j in range(40):
        A(f"s_add_u32 m0, s36, {j*1024}")
        A(f"s_add_u32 s37, s35, {j*4*1280}")
        A(f"buffer_load_dwordx4 v11, {s(S_W1,4)}, s37 offen lds")
    A(f"v_bfe_u32 v13, {v(V_LANE)}, 2, 2")
    A(f"v_lshl_add_u32 v13, v10, 3, v13")
    A(f"v_and_b32 v14, 3, {v(V_LANE)}")
    A(f"v_lshlrev_b32 v14, 3, v14")
    A(f"v_lshl_add_u32 v13, v13, 8, v14")
    A(f"s_lshl_b32 {s(S_T)}, {s(S_WAVE)}, 6")
    A(f"v_add_u32 v13, {s(S_T)}, v13")
    A("s_waitcnt vmcnt(0)")
    A("s_barrier")
    for k in range(20):
        if k and k % 7 == 0: A(f"v_add_u32 v13, {7*8192}, v13")
        for t in range(2):
            for h in range(2):
                A(f"ds_read_b64_tr_b16 {a((t*20+k)*4+2*h,2)}, v13 offset:{(k%7)*8192 + h*1024 + t*32}")
        if k % 3 == 2: A("s_waitcnt lgkmcnt(0)")
    A("s_waitcnt lgkmcnt(0)")
    A("s_barrier")
    if flags: init_sync(A)
    kv.setup_x_stream(A)
    A(f"v_mul_u32_u24 {v(V_OS)}, 2560, v12")
    A(f"v_and_b32 v13, 1, v10")
    A(f"v_lshl_add_u32 {v(V_OS)}, v13, 5, {v(V_OS)}")
    A(f"v_lshrrev_b32 v13, 1, v10")
    A(f"v_lshl_add_u32 {v(V_OS)}, v13, 4, {v(V_OS)}")
    A(f"s_lshl_b32 {s(S_OS)}, {s(S_J)}, 8")
    A(f"s_lshl_b32 {s(S_T)}, {s(S_WAVE)}, 6")
    A(f"s_add_u32 {s(S_OS)}, {s(S_OS)}, {s(S_T)}")
    A(f"s_add_u32 {s(S_OS)}, {s(S_OS)}, 1280")
    A(f"v_mov_b32 {v(V_FA)}, 0")
    A(f"s_mov_b32 {s(S_FB)}, {RD_B}")
    A(f"s_mov_b32 {s(S_XOFF)}, {WS_OB}")
    A(f"s_mov_b32 {s(S_SEG)}, 0")
    kv.XSRD = S_WS; kv.XFL = "sc1"
    def fw():
        if flags:
            A(f"v_mov_b32 {v(V_FV)}, 0")
            flag_wait(A, V_FV, V_FA, S_FB, S_NEED, S_T, S_CNT, sleep=8)
    A(f"s_mov_b32 {s(S_NEED)}, 1")
    fw()
    kv.issue_x(A, 0)
    loop = A.newlabel("B3_loop")
    A.label(loop)
    for par in range(2):
        A("s_waitcnt vmcnt(0)")
        A("s_barrier")
        for k in range(2): kv.xread(A, par, k)
        A(f"s_add_u32 {s(S_XOFF)}, {s(S_XOFF)}, {32*1280}")
        if par == 1:
            A(f"s_add_u32 {s(S_FB)}, {s(S_FB)}, 128")
            A(f"s_min_u32 {s(S_FB)}, {s(S_FB)}, {RD_B + 31*128}")
            fw()
        for k in range(20):
            if k < 10: A(f"s_add_u32 m0, {s(S_M0X)}, {(1-par)*40960 + k*1024 - k*128}")
            if k+2 < 20:
                kv.xread(A, par, k+2); A("s_waitcnt lgkmcnt(4)")
            else: A(f"s_waitcnt lgkmcnt({2*(19-k)})")
            for t in range(2):
                for tau in range(2):
                    acc = v(ACC+8*tau+4*t,4)
                    A(f"v_mfma_f32_16x16x32_bf16 {acc}, {a((t*20+k)*4,4)}, {v(XF+(k%3)*8+tau*4,4)}, {'0' if k==0 else acc}")
                if k < 10 and t == 0: A(f"buffer_load_dwordx4 {v(V_XSRC)}, {s(S_WS,4)}, {s(S_XOFF)} offen offset:{k*128} sc1 lds")
        A("s_nop 4")
        for tau in range(2):
            for i in range(4): A(f"v_cvt_pk_bf16_f32 {v(PK+4*tau+i)}, {v(ACC+8*tau+2*i)}, {v(ACC+8*tau+2*i+1)}")
        A(f"s_add_u32 {s(S_T)}, {s(S_OS)}, {16*2560}")
        for tau in range(2):
            A(f"v_permlane16_swap_b32 {v(PK+4*tau)}, {v(PK+4*tau+2)}")
            A(f"v_permlane16_swap_b32 {v(PK+4*tau+1)}, {v(PK+4*tau+3)}")
            A(f"buffer_store_dwordx4 {v(PK+4*tau,4)}, {v(V_OS)}, {s(S_W2,4)}, {s(S_OS if tau == 0 else S_T)} offen")
        A(f"s_add_u32 {s(S_OS)}, {s(S_OS)}, {32*2560}")
        A(f"s_add_u32 {s(S_SEG)}, {s(S_SEG)}, 1")
    A(f"s_cmp_lt_u32 {s(S_SEG)}, {NSEG}")
    A(f"s_cbranch_scc1 {loop}")
    A("s_waitcnt vmcnt(0)")
    kv.XSRD = S_X; kv.XFL = ""
```

```python
from common import *
from sched import *
from role_kv import load_w_rows384
from role_u import load_wo
import math, struct
STAMP = False
DELAY0 = 3
PBMODE = 0
DELAYL = 0
WDEL = 9
DROP = 0
DELAYLV = 0
ZPRE = 1
DELAYZV = 2
DELAYZS = 2
PBSTEP = 4
VCAP = 2
DELAYBS = 0
TSTEP = 30
ORDER = 1
DELAYB = 0
NSTEP = 64

def f32bits(x): return struct.unpack("<I", struct.pack("<f", x))[0]

S_STEP=22; S_GRP=23; S_C=24; S_FAST=25; S_T=26; S_T2=27; S_CNT=28; S_DEAD=29
S_Z=30; S_ZN=31; S_P=32; S_PN=33; S_L=34; S_LN=35; S_RR=36; S_RW=37; S_US=38; S_US2=39
S_KS=44; S_EXP=45; S_ZP=46; S_PP=47; S_SC=48; S_KNOWN=49; S_KMX=67; S_ARR=57; S_KN=42
S_MA=50; S_MB=52
S_MU=54; S_MK=55; S_FLO=56; S_T3=58; S_T4=43; S_PST=59; S_PSM=60; S_PLX=61; S_PLM=62; S_ZL=63; S_ZL2=64; S_M3=68; S_G3=65
S_TS=70
V_ZERO=0; V_IDX=2; V_L16=3; V_HI=4; V_WL=5; V_PW=6; V_T7=7; V_TRA=8; V_TRB=18; V_PLD=10; V_PM=11
V_FINR=12; V_TW=13; V_FINRM=14; V_UR=15; V_RW=16; V_KR=17; V_UH=17; V_UHR=18; V_GA=19
AF=20; ACC=60; TMP=76; XS=100; V_POI=120; V_ZH=124; V_FK=111; V_ZS4=125; V_ZS2=126; V_FL=127
V_G3W=9; V_FKS=124; V_TMP1=125; V_TMPV=11
L_MEM=98304; HI=L_MEM
S_LK=108544; S_LU=133120; S_LQ=149504; S_LKM=152576; S_LRED=155648; S_LSX=159744
V_LU=108544; V_LVX=133120; V_LRED=136192

ORD_S = [t*10+k for k in range(10) for t in range(2)] + list(range(20,40)) + [t*10+k for k in range(10) for t in (4,5)]
ORD_V = [t*10+k for k in range(10) for t in (0,1)] + list(range(20,60))
CUR_ORD = ORD_S
def wfrag(f):
    p = CUR_ORD.index(f)
    if p % 5 == 4: return ("lds", p//5)
    r = p - p//5
    return ("reg", 256 + 8*r if r < 32 else 128 + 8*(r-32))
def wdest(f, q):
    kind, x = wfrag(f)
    return reg(x + 2*q, 2) if kind == "reg" else v(AF + 8*x + 2*q, 2)

STUBS = []
def dual_text(A, lines):
    sl = A.newlabel("ds_s"); en = A.newlabel("ds_e")
    STUBS.append([sl + ":"] + [l + (" sc0 sc1" if l.startswith("buffer_store") else "") for l in lines] + [f"s_branch {en}"])
    return "\n".join([f"s_cmp_eq_u32 {s(S_FAST)}, 0", f"s_cbranch_scc1 {sl}"] + lines + [en + ":"])
def dual(A, lines): A(dual_text(A, lines))
def flush_stubs(A):
    for st in STUBS:
        for l in st: A(l)
    STUBS.clear()

def tick(A, k):
    if not STAMP or STAMP == 3: return
    if STAMP == 2:
        A(f"s_memrealtime {s(88,2)}")
        A("s_waitcnt lgkmcnt(0)")
        A(f"s_cmp_eq_u32 {s(S_STEP)}, {TSTEP + (1 if k >= 4 else 0)}")
        A(f"s_cselect_b32 {s(S_TS+k)}, {s(88)}, {s(S_TS+k)}")
        return
    A(f"s_memtime {s(88,2)}")
    A("s_waitcnt lgkmcnt(0)")
    A(f"s_sub_u32 {s(87)}, {s(88)}, {s(86)}")
    A(f"s_add_u32 {s(S_TS+k)}, {s(S_TS+k)}, {s(87)}")
    A(f"s_mov_b32 {s(86)}, {s(88)}")

def loop_top(A, lab, ctr=15):
    A.label(lab)
    if STAMP: A(f"s_add_u32 {s(S_TS+ctr)}, {s(S_TS+ctr)}, 1")
    A(f"s_sub_u32 {s(S_CNT)}, {s(S_CNT)}, 1")
    A(f"s_cbranch_scc1 {lab}_dead")
def retry(A, lab, ctr=15):
    A(f"s_cbranch_vccnz {lab}")
    A.label(lab + "_ok")
    STUBS.append([lab + "_dead:", f"s_mov_b32 {s(S_CNT)}, 0", "s_mov_b64 exec, -1" if ctr in (11, 12, 15) else "s_nop 0", f"s_branch {lab}_ok"])

def maxtree(regs_, t):
    L = []; r = list(regs_)
    L.append(f"v_max3_u32 {v(t)}, {v(r[0])}, {v(r[1])}, {v(r[2])}"); r = r[3:]
    while len(r) >= 2:
        L.append(f"v_max3_u32 {v(t)}, {v(t)}, {v(r[0])}, {v(r[1])}"); r = r[2:]
    if r: L.append(f"v_max_u32 {v(t)}, {v(t)}, {v(r[0])}")
    return L

def post(sa, out=None):
    o = sa if out is None else out
    return [f"v_add_f32 {v(sa)}, {v(sa)}, {v(sa+1)}", f"v_add_f32 {v(sa+2)}, {v(sa+2)}, {v(sa+3)}",
            f"v_cvt_pk_bf16_f32 {v(o)}, {v(sa)}, {v(sa+2)}"]
def post_s(sa, off, tag):
    return post(sa) + [ds(tag, f"ds_write_b32 {v(V_PW)}, {v(sa)} offset:{off}")]
def post_v(sa, off, tag):
    return post(sa) + [ds(tag, f"ds_write_b16 {v(V_PW)}, {v(sa)} offset:{off}"), ds(tag, f"ds_write_b16_d16_hi {v(V_PW)}, {v(sa)} offset:{off+4}")]
def zero(sa): return [f"v_mov_b64 {v(sa,2)}, 0", f"v_mov_b64 {v(sa+2,2)}, 0"]
def wl_read(j):
    r = TMP + 8*(j % 3)
    return [ds(f"W{j}", f"ds_read_b128 {v(r,4)}, {v(V_WL)} offset:{j*2048}"),
            ds(f"W{j}", f"ds_read_b128 {v(r+4,4)}, {v(V_WL)} offset:{j*2048+1024}")]
def smf(f, acc, afrag):
    kind, x = wfrag(f)
    it = []
    if kind == "lds":
        it.append(need(f"W{x}")); b = v(TMP + 8*(x % 3), 8)
    else: b = reg(x, 8)
    it.append(f"v_smfmac_f32_16x16x64_bf16 {v(acc,4)}, {v(afrag,4)}, {b}, {v(V_IDX)}")
    return it
def refill_tasks():
    return [[5*j+4, 5*(j+3)+4-5, wl_read(j+3)] for j in range(9)]

def setup_common(A, isV):
    LU = V_LU if isV else S_LU; LRED = V_LRED if isV else S_LRED
    t0, t1, t2 = 112, 113, 114
    A(f"v_mov_b32 {v(V_ZERO)}, 0")
    A(f"v_and_b32 {v(t0)}, 15, {v(V_LANE)}")
    A(f"v_lshrrev_b32 {v(t1)}, 4, {v(V_LANE)}")
    A(f"v_mov_b32 {v(V_IDX)}, 0x4444")
    A(f"v_mov_b32 {v(t2)}, 0xeeee")
    A(f"v_and_b32 {v(V_L16)}, 1, {v(V_LANE)}")
    A(f"v_cmp_eq_u32 vcc, 1, {v(V_L16)}")
    A("s_nop 1")
    A(f"v_cndmask_b32 {v(V_IDX)}, {v(V_IDX)}, {v(t2)}, vcc")
    A(f"v_lshlrev_b32 {v(V_L16)}, 4, {v(V_LANE)}")
    A(f"v_add_u32 {v(V_HI)}, {HI}, {v(V_L16)}")
    A(f"s_mul_i32 {s(S_T)}, {s(S_WAVE)}, 24576")
    A(f"v_add_u32 {v(V_WL)}, {s(S_T)}, {v(V_L16)}")
    if isV:
        A(f"v_and_b32 {v(t2)}, 7, {v(t0)}")
        A(f"v_lshlrev_b32 {v(t2)}, 5, {v(t2)}")
        A(f"v_lshl_add_u32 {v(t2)}, {v(t1)}, 3, {v(t2)}")
        A(f"v_lshrrev_b32 {v(V_PW)}, 3, {v(t0)}")
        A(f"v_lshl_add_u32 {v(t2)}, {v(V_PW)}, 1, {v(t2)}")
    else:
        A(f"v_lshlrev_b32 {v(t2)}, 2, {v(t1)}")
        A(f"v_lshl_add_u32 {v(t2)}, {v(t0)}, 4, {v(t2)}")
    A(f"s_mul_i32 {s(S_T)}, {s(S_WAVE)}, 768")
    A(f"s_add_u32 {s(S_T)}, {s(S_T)}, {V_LVX if isV else S_LQ}")
    A(f"v_add_u32 {v(V_PW)}, {s(S_T)}, {v(t2)}")
    A(f"v_and_b32 {v(t2)}, 7, {v(t0)}")
    A(f"v_lshl_add_u32 {v(V_PLD)}, {v(t1)}, 3, {v(t2)}")
    A(f"v_lshlrev_b32 {v(V_PLD)}, 4, {v(V_PLD)}")
    A(f"v_lshl_add_u32 {v(V_FINR)}, {v(t1)}, 4, {v(t2)}")
    A(f"v_lshlrev_b32 {v(V_FINR)}, 4, {v(V_FINR)}")
    if isV:
        A(f"s_and_b32 {s(S_T)}, {s(S_C)}, 1")
        A(f"s_lshl_b32 {s(S_T)}, {s(S_T)}, 7")
        A(f"v_add_u32 {v(V_ZH)}, {s(S_T)}, {v(V_FINR)}")
        A(f"v_lshrrev_b32 {v(V_UH)}, 3, {v(t0)}")
        A(f"v_mul_u32_u24 {v(V_UH)}, 40960, {v(V_UH)}")
        A(f"v_add_u32 {v(V_UH)}, {v(V_UH)}, {v(V_ZH)}")
        A(f"s_mul_i32 {s(S_T)}, {s(S_WAVE)}, 6144")
        A(f"s_add_u32 {s(S_T)}, {s(S_T)}, {LU+4096}")
        A(f"v_add_u32 {v(V_UHR)}, {s(S_T)}, {v(V_FINR)}")
        A(f"v_lshrrev_b32 {v(V_RW)}, 3, {v(t0)}")
        A(f"v_lshl_add_u32 {v(V_FINR)}, {v(V_RW)}, 10, {v(V_FINR)}")
    A(f"v_add_u32 {v(V_FINR)}, {LRED}, {v(V_FINR)}")
    A(f"s_mul_i32 {s(S_MU)}, {s(S_WAVE)}, {6144 if isV else 4096}")
    A(f"s_add_u32 {s(S_MU)}, {s(S_MU)}, {LU}")
    A(f"v_add_u32 {v(V_UR)}, {s(S_MU)}, {v(V_L16)}")
    if isV:
        A(f"s_mul_i32 {s(S_T)}, {s(S_WAVE)}, 2048")
        A(f"s_add_u32 {s(S_T)}, {s(S_T)}, {LRED}")
        A(f"v_add_u32 {v(V_RW)}, {s(S_T)}, {v(V_L16)}")
    A(f"v_lshrrev_b32 {v(V_FINRM)}, 1, {v(t1)}")
    A(f"s_lshl_b32 {s(S_T)}, {s(S_C)}, 1")
    A(f"v_add_u32 {v(V_FINRM)}, {s(S_T)}, {v(V_FINRM)}")
    if isV:
        A(f"s_add_u32 {s(S_T)}, {s(S_C)}, {64-16}")
        A(f"v_mov_b32 {v(V_TW)}, {s(S_T)}")
        A(f"v_cmp_lt_u32 vcc, 7, {v(t0)}")
        A("s_nop 1")
        A(f"v_cndmask_b32 {v(V_FINRM)}, {v(V_FINRM)}, {v(V_TW)}, vcc")
        A(f"v_lshrrev_b32 {v(V_TW)}, 3, {v(t0)}")
        A(f"v_lshl_add_u32 {v(V_TW)}, {v(V_TW)}, 9, {v(V_PLD)}")
    A(f"v_lshlrev_b32 {v(V_FINRM)}, 7, {v(V_FINRM)}")
    A(f"v_lshl_add_u32 {v(V_FINRM)}, {v(t2)}, 4, {v(V_FINRM)}")
    A(f"v_and_b32 {v(t2)}, 1, {v(t1)}")
    A(f"v_lshl_add_u32 {v(V_FINRM)}, {v(t2)}, 3, {v(V_FINRM)}")
    A(f"s_mov_b32 {s(S_MA)}, 0x00ff00ff")
    A(f"s_mov_b32 {s(S_MA+1)}, 0x00ff00ff")
    A(f"s_mov_b32 {s(S_MB)}, {'0xffffffff' if isV else '0x00ff00ff'}")
    A(f"s_mov_b32 {s(S_MB+1)}, {'0x00ff00ff' if isV else '0'}")
    A(f"s_lshl_b32 {s(S_T)}, {s(S_WAVE)}, 10")
    A(f"v_add_u32 {v(V_T7)}, {s(S_T)}, {v(V_L16)}")
    if not isV: A(f"v_add_u32 {v(126)}, {HI}, {v(V_T7)}")
    A(f"s_lshr_b32 {s(S_G3)}, {s(S_WAVE)}, 1")
    A(f"s_add_u32 {s(S_G3)}, {s(S_G3)}, 8")
    A(f"s_sub_u32 {s(S_G3)}, {s(S_G3)}, {s(S_WAVE)}")
    A(f"s_lshl_b32 {s(S_G3)}, {s(S_G3)}, 10")
    A(f"s_and_b32 {s(S_T2)}, {s(S_WAVE)}, 1")
    A(f"s_sub_u32 {s(S_M3)}, {s(S_T2)}, 1")
    A(f"s_sub_u32 {s(S_M3+1)}, 0, {s(S_T2)}")
    A(f"v_and_b32 {v(V_GA)}, 7, {v(V_LANE)}")
    A(f"v_lshlrev_b32 {v(V_GA)}, 5, {v(V_GA)}")
    A(f"v_lshl_add_u32 {v(V_GA)}, {v(t1)}, 8, {v(V_GA)}")
    A(f"v_bfe_u32 {v(115)}, {v(V_LANE)}, 3, 1")
    A(f"v_lshl_add_u32 {v(V_GA)}, {v(115)}, 4, {v(V_GA)}")
    A(f"s_add_u32 {s(S_T)}, {s(S_T)}, {HI}")
    A(f"v_add_u32 {v(V_GA)}, {s(S_T)}, {v(V_GA)}")
    A(f"v_add_u32 {v(V_G3W)}, {s(S_G3)}, {v(V_GA)}")
    for i in range(4): A(f"v_mov_b32 {v(V_POI+i)}, -1")
    r_, c_ = 115, 116
    A(f"v_bfe_u32 {v(r_)}, {v(V_LANE)}, 2, 2")
    A(f"v_and_b32 {v(c_)}, 1, {v(V_LANE)}")
    A(f"v_lshlrev_b32 {v(c_)}, 3, {v(c_)}")
    if not isV:
        A(f"v_add_u32 {v(c_)}, {S_LQ}, {v(c_)}")
        A(f"v_lshl_add_u32 {v(V_TRA)}, {v(t1)}, 2, {v(r_)}")
        A(f"v_lshl_add_u32 {v(V_TRA)}, {v(V_TRA)}, 4, {v(c_)}")
        A(f"v_lshrrev_b32 {v(t2)}, 1, {v(t1)}")
        A(f"v_mul_u32_u24 {v(t2)}, 48, {v(t2)}")
        A(f"v_and_b32 {v(V_TRB)}, 1, {v(t1)}")
        A(f"v_lshl_add_u32 {v(V_TRB)}, {v(V_TRB)}, 3, {v(t2)}")
        A(f"v_add_u32 {v(V_TRB)}, {v(V_TRB)}, {v(r_)}")
        A(f"v_lshl_add_u32 {v(V_TRB)}, {v(V_TRB)}, 4, {v(c_)}")
        A(f"v_lshlrev_b32 {v(V_PM)}, 4, {v(t0)}")
        A(f"v_lshl_add_u32 {v(V_PM)}, {v(t1)}, 3, {v(V_PM)}")
        A(f"s_sub_u32 {s(S_T)}, {s(S_WAVE)}, 1")
        A(f"s_and_b32 {s(S_T)}, {s(S_T)}, 3")
        A(f"s_mul_i32 {s(S_T2)}, {s(S_T)}, 6144")
        A(f"s_add_u32 {s(S_T2)}, {s(S_T2)}, {S_LK}")
        A(f"v_add_u32 {v(V_KR)}, {s(S_T2)}, {v(V_L16)}")
        A(f"s_lshl_b32 {s(S_MK)}, {s(S_T)}, 12")
        A(f"s_mul_i32 {s(S_KS)}, {s(S_HEAD)}, 12288")
        A(f"s_add_u32 {s(S_KS)}, {s(S_KS)}, {s(S_MK)}")
        A(f"s_add_u32 {s(S_KS)}, {s(S_KS)}, {WS_K}")
        A(f"s_add_u32 {s(S_MK)}, {s(S_MK)}, {S_LK}")
        A(f"s_lshr_b32 {s(S_PST)}, {s(S_HEAD)}, 1")
        A(f"s_lshl_b32 {s(S_PST)}, {s(S_PST)}, 10")
        A(f"s_and_b32 {s(S_PSM)}, {s(S_HEAD)}, 1")
        A(f"s_lshl_b32 {s(S_PSM)}, {s(S_PSM)}, 7")
        A(f"s_add_u32 {s(S_PST)}, {s(S_PST)}, {s(S_PSM)}")
        A(f"s_lshl_b32 {s(S_PSM)}, {s(S_HEAD)}, 7")
        A(f"s_add_u32 {s(S_PSM)}, {s(S_PSM)}, 16384")
    else:
        A(f"v_lshl_add_u32 {v(t2)}, {v(t1)}, 3, {v(r_)}")
        A(f"v_and_b32 {v(c_)}, 3, {v(V_LANE)}")
        A(f"v_lshlrev_b32 {v(c_)}, 3, {v(c_)}")
        A(f"v_lshl_add_u32 {v(V_TRA)}, {v(t2)}, 5, {v(c_)}")
        A(f"v_add_u32 {v(V_TRA)}, {V_LVX}, {v(V_TRA)}")
        A(f"v_lshlrev_b32 {v(V_ZS4)}, 13, {v(t1)}")
        A(f"v_and_b32 {v(t2)}, 1, {v(t1)}")
        A(f"v_lshlrev_b32 {v(V_ZS2)}, 13, {v(t2)}")
        A(f"v_lshrrev_b32 {v(t2)}, 1, {v(t1)}")
        A(f"v_lshl_add_u32 {v(V_ZS2)}, {v(t2)}, 3, {v(V_ZS2)}")
        A(f"s_mul_i32 {s(S_T)}, {s(S_WAVE)}, {10*8192}")
        A(f"s_lshl_b32 {s(S_T2)}, {s(S_HEAD)}, 8")
        A(f"s_add_u32 {s(S_T)}, {s(S_T)}, {s(S_T2)}")
        A(f"v_lshl_add_u32 {v(t2)}, {v(t0)}, 4, {s(S_T)}")
        A(f"v_add_u32 {v(V_ZS4)}, {v(V_ZS4)}, {v(t2)}")
        A(f"v_add_u32 {v(V_ZS2)}, {v(V_ZS2)}, {v(t2)}")
        A(f"v_add_u32 {v(V_ZS2)}, {8*8192}, {v(V_ZS2)}")
    A(f"s_mov_b32 {s(S_Z)}, {MB_Z}")
    A(f"s_mov_b32 {s(S_ZN)}, {MB_Z+327680}")
    A(f"s_mov_b32 {s(S_P)}, {MB_P}")
    A(f"s_mov_b32 {s(S_PN)}, {MB_P+20480}")
    A(f"s_mov_b32 {s(S_ZP)}, {MB_Z+2*327680}")
    A(f"s_mov_b32 {s(S_PP)}, {MB_P+2*20480}")
    A(f"s_mul_i32 {s(S_T)}, {s(S_GRP)}, 10240")
    A(f"s_add_u32 {s(S_L)}, {s(S_T)}, {MB_L}")
    A(f"s_add_u32 {s(S_LN)}, {s(S_T)}, {MB_L+20480}")
    if isV:
        A(f"s_mul_i32 {s(S_T2)}, {s(S_C)}, 768")
        A(f"s_add_u32 {s(S_T2)}, {s(S_T2)}, {MB_R + 8192 - 16*768}")
    else:
        A(f"s_mul_i32 {s(S_T2)}, {s(S_C)}, 512")
        A(f"s_add_u32 {s(S_T2)}, {s(S_T2)}, {MB_R}")
    A(f"s_mul_i32 {s(S_T)}, {s(S_GRP)}, 20480")
    A(f"s_add_u32 {s(S_RW)}, {s(S_T2)}, {s(S_T)}")
    A(f"s_add_u32 {s(S_RR)}, {s(S_T2)}, 20480")
    A(f"s_sub_u32 {s(S_RR)}, {s(S_RR)}, {s(S_T)}")
    A(f"s_lshl_b32 {s(S_T)}, {s(S_GRP)}, 2")
    A(f"s_add_u32 {s(S_T)}, {s(S_T)}, {s(S_WAVE)}")
    A(f"s_lshl_b32 {s(S_PLX)}, {s(S_T)}, 11")
    A(f"s_lshl_b32 {s(S_PLM)}, {s(S_T)}, 9")
    A(f"s_add_u32 {s(S_PLM)}, {s(S_PLM)}, 16384")
    A(f"s_lshl_b32 {s(S_ZL)}, {s(S_T)}, 10")
    A(f"s_mul_i32 {s(S_US)}, {s(S_T)}, {4*40960}")
    A(f"s_add_u32 {s(S_US)}, {s(S_US)}, {WS_U}")
    if isV:
        A(f"s_sub_u32 {s(S_T2)}, {s(S_C)}, 16")
        A(f"s_lshr_b32 {s(S_T2)}, {s(S_T2)}, 1")
        A(f"s_add_u32 {s(S_T2)}, {s(S_T2)}, 32")
        A(f"s_lshl_b32 {s(S_T3)}, {s(S_T2)}, 13")
        A(f"s_add_u32 {s(S_ZL2)}, {s(S_ZL)}, {s(S_T3)}")
        A(f"s_lshl_b32 {s(S_T3)}, {s(S_T2)}, 10")
        A(f"s_add_u32 {s(S_US2)}, {s(S_US)}, {s(S_T3)}")
    A(f"s_lshl_b32 {s(S_T3)}, {s(S_C)}, 13")
    A(f"s_add_u32 {s(S_ZL)}, {s(S_ZL)}, {s(S_T3)}")
    A(f"s_lshl_b32 {s(S_T3)}, {s(S_C)}, 10")
    A(f"s_add_u32 {s(S_US)}, {s(S_US)}, {s(S_T3)}")
    A(f"s_mov_b32 {s(S_ARR)}, {CN_Z - 256}")
    A(f"s_lshl_b32 {s(S_FLO)}, {s(S_HEAD)}, 7")
    A(f"s_mov_b32 {s(S_KNOWN)}, 0")
    A(f"s_mov_b32 {s(S_KN)}, 1")
    A(f"v_mov_b32 {v(V_FL)}, 0")
    if not isV: A(f"v_mov_b32 {v(V_FKS)}, 0")
    A(f"s_mov_b32 {s(S_SC)}, {f32bits(192**-0.5*math.log2(math.e))}")
    A(f"s_mov_b32 {s(S_STEP)}, 0")
    A(f"s_mov_b32 {s(S_CNT)}, {SPIN_MAX + 1000 if SPIN_MAX else 0}")
    A(f"s_mov_b32 {s(S_EXP)}, {WS_Z}")
    A(f"s_mul_i32 {s(S_KMX)}, {s(S_HEAD)}, 3072")
    A(f"s_add_u32 {s(S_KMX)}, {s(S_KMX)}, {WS_KM - 1024}")
    if STAMP:
        for k in range(16): A(f"s_mov_b32 {s(S_TS+k)}, 0")

LOOKA = 8
def spin(lines_load, cond, ok):
    pass

def u_check(A, seg_off):
    sl = A.newlabel("uc_s"); ok = A.newlabel("uc_ok"); lp = A.newlabel("uc_lp"); g1 = A.newlabel("uc_g")
    A(f"s_add_u32 {s(S_T3)}, {s(S_STEP)}, {seg_off}")
    A(f"s_cmp_ge_u32 {s(S_T3)}, {s(S_KNOWN)}")
    A(f"s_cbranch_scc1 {sl}")
    A.label(ok)
    ld = f"buffer_load_dword {v(V_FL)}, {v(V_ZERO)}, {s(S_WS,4)}, {s(S_T4)} offen sc1"
    STUBS.append([sl + ":",
        f"s_add_u32 {s(S_KNOWN)}, {s(S_T3)}, {LOOKA}", f"s_min_u32 {s(S_KNOWN)}, {s(S_KNOWN)}, {NSEG-1}",
        f"s_lshl_b32 {s(S_T4)}, {s(S_KNOWN)}, 7", f"s_add_u32 {s(S_T4)}, {s(S_T4)}, {CN_U}", f"s_add_u32 {s(S_KNOWN)}, {s(S_KNOWN)}, 1",
        ld, "s_waitcnt vmcnt(0)", f"v_cmp_gt_u32 vcc, 32, {v(V_FL)}", f"s_cbranch_vccz {ok}",
        f"s_add_u32 {s(S_KNOWN)}, {s(S_T3)}, 1", f"s_min_u32 {s(S_T3)}, {s(S_T3)}, {NSEG-1}",
        f"s_lshl_b32 {s(S_T4)}, {s(S_T3)}, 7", f"s_add_u32 {s(S_T4)}, {s(S_T4)}, {CN_U}",
        lp + ":", ld, "s_waitcnt vmcnt(0)", f"v_cmp_gt_u32 vcc, 32, {v(V_FL)}", f"s_cbranch_vccz {ok}",
        f"s_sub_u32 {s(S_CNT)}, {s(S_CNT)}, 1", f"s_cbranch_scc0 {lp}", f"s_mov_b32 {s(S_CNT)}, 0", f"s_branch {ok}"])

def k_check(A):
    sl = A.newlabel("kc_s"); ok = A.newlabel("kc_ok"); lp = A.newlabel("kc_lp")
    A.label(lp)
    A(f"v_cmp_gt_u32 vcc, {s(S_KN)}, {v(V_FKS)}")
    A(f"s_cbranch_vccnz {sl}")
    A.label(ok)
    STUBS.append([sl + ":", f"s_sub_u32 {s(S_CNT)}, {s(S_CNT)}, 1", f"s_cbranch_scc1 {sl}_d", f"s_add_u32 {s(S_T3)}, {s(S_FLO)}, {FL_K}",
                  f"buffer_load_dword {v(V_FKS)}, {v(V_ZERO)}, {s(S_WS,4)}, {s(S_T3)} offen sc1", "s_waitcnt vmcnt(0)", f"s_branch {lp}",
                  sl + "_d:", f"s_mov_b32 {s(S_CNT)}, 0", f"s_branch {ok}"])

def k_dma(A):
    A(f"s_mov_b32 m0, {s(S_MK)}")
    A("s_nop 0")
    for j in range(4):
        A(f"buffer_load_dwordx4 {v(V_L16)}, {s(S_WS,4)}, {s(S_KS)} offen offset:{j*1024} sc1 lds")
    A(f"s_add_u32 {s(S_KS)}, {s(S_KS)}, {NH*12288}")
    A(f"s_add_u32 {s(S_KN)}, {s(S_KN)}, 1")
    A(f"s_min_u32 {s(S_KN)}, {s(S_KN)}, {NSEG}")

def phaseB_items(A, isV, cls, flags):
    L = [f"s_mov_b32 m0, {s(S_MU)}"]
    for j in range(4):
        L.append(f"s_add_u32 {s(S_T4)}, {s(S_US)}, {j*(40960-1024)}")
        L.append(f"buffer_load_dwordx4 {v(V_L16)}, {s(S_WS,4)}, {s(S_T4)} offen offset:{j*1024} sc1 lds")
    if isV:
        L.append(f"s_add_u32 m0, {s(S_MU)}, 4096")
        L.append(f"s_add_u32 {s(S_T4)}, {s(S_US2)}, {2*40960-1024}")
        L.append(f"buffer_load_dwordx4 {v(V_UH)}, {s(S_WS,4)}, {s(S_US2)} offen sc1 lds")
        L.append(f"buffer_load_dwordx4 {v(V_UH)}, {s(S_WS,4)}, {s(S_T4)} offen offset:1024 sc1 lds")
    if flags and cls == 0:
        if isV:
            an = A.newlabel("an"); ab = A.newlabel("ab")
            STUBS.append([an + ":", f"s_cmp_lt_u32 {s(S_STEP)}, 2", f"s_cbranch_scc1 {ab}", f"v_mov_b32 {v(V_TMPV)}, 32", "s_mov_b64 exec, 1",
                          f"buffer_atomic_add {v(V_TMPV)}, {v(V_ZERO)}, {s(S_WS,4)}, {s(S_ARR)} offen sc1", "s_mov_b64 exec, -1", f"s_branch {ab}"])
            L.append("\n".join([f"s_cmp_eq_u32 {s(S_C)}, 16", f"s_cbranch_scc1 {an}", ab + ":"]))
        else:
            L += [f"s_add_u32 {s(S_T)}, {s(S_FLO)}, {FL_KM}", f"v_mov_b32 {v(V_FL)}, {s(S_STEP)}"]
            L.append("\n".join(["s_mov_b64 exec, 1", f"buffer_store_dword {v(V_FL)}, {v(V_ZERO)}, {s(S_WS,4)}, {s(S_T)} offen sc0 sc1", "s_mov_b64 exec, -1"]))
    return L

def km_export(A, E, tmp):
    E(ds("KX", f"ds_read_b128 {v(tmp,4)}, {v(126)} offset:{S_LKM-HI-1024}"))
    E(need("KX"))
    A(f"buffer_store_dwordx4 {v(tmp,4)}, {v(V_T7)}, {s(S_WS,4)}, {s(S_KMX)} offen sc0 sc1")

ZF = 48
def z_poison(A):
    A(f"s_add_u32 {s(S_T2)}, {s(S_ZP)}, {4*8192}")
    dual(A, [f"buffer_store_dwordx4 {v(V_POI,4)}, {v(V_ZS4)}, {s(S_WS,4)}, {s(S_ZP)} offen",
             f"buffer_store_dwordx4 {v(V_POI,4)}, {v(V_ZS4)}, {s(S_WS,4)}, {s(S_T2)} offen",
             f"buffer_store_dwordx2 {v(V_POI,2)}, {v(V_ZS2)}, {s(S_WS,4)}, {s(S_ZP)} offen"])
def p_poison(A, slot):
    A(f"s_add_u32 {s(S_T)}, {s(slot)}, {s(S_PST)}"); A(f"s_add_u32 {s(S_T2)}, {s(slot)}, {s(S_PSM)}")
    dual(A, [f"s_mov_b64 exec, {s(S_MA,2)}",
             f"buffer_store_dwordx4 {v(V_POI,4)}, {v(V_L16)}, {s(S_WS,4)}, {s(S_T)} offen",
             f"s_mov_b64 exec, {s(S_MB,2)}",
             f"buffer_store_dwordx2 {v(V_POI,2)}, {v(V_PM)}, {s(S_WS,4)}, {s(S_T2)} offen",
             "s_mov_b64 exec, -1"])
def z_export(A, isV, zf, woff):
    A(f"s_add_u32 {s(S_T)}, {s(S_EXP)}, {s(S_ZL)}")
    if woff: A(f"s_sub_u32 {s(S_T)}, {s(S_T)}, {s(woff)}")
    A(f"buffer_store_dwordx4 {v(zf,4)}, {v(V_L16)}, {s(S_WS,4)}, {s(S_T)} offen sc0 sc1")
    if isV:
        A(f"s_add_u32 {s(S_T)}, {s(S_EXP)}, {s(S_ZL2)}")
        if woff: A(f"s_sub_u32 {s(S_T)}, {s(S_T)}, {s(woff)}")
        A(f"s_mov_b64 exec, {s(S_MA,2)}")
        A(f"buffer_store_dwordx4 {v(zf+4,4)}, {v(V_ZH)}, {s(S_WS,4)}, {s(S_T)} offen sc0 sc1")
        A("s_mov_b64 exec, -1")
def window(A, E, isV, cls, flags):
    LZ = (V_LVX if isV else S_LK + 12288) - HI
    last = A.newlabel("wz")
    if WDEL: A(f"s_sleep {WDEL}")
    z_export(A, isV, ZF, None)
    if cls != 3:
        A(f"s_cmp_lg_u32 {s(S_WAVE)}, {3 if isV else 1}"); A(f"s_cbranch_scc1 {last}")
        for t in range(2 if isV else 1): E(ds("zs", f"ds_read_b128 {v(AF+4*t,4)}, {v(V_HI)} offset:{LZ+t*1024}"))
        E(need("zs"))
        A(f"s_lshl_b32 {s(S_T2)}, {s(S_WAVE)}, 10")
        z_export(A, isV, AF, S_T2)
        A.label(last)
    if flags:
        u_check(A, 1)
        if not isV: k_check(A)

def qk_tr(isq, ks, dst, tag):
    b = 0 if isq else 3072
    if ks < 4: vb, o0, o1 = V_TRA, 48*ks*16, (48*ks+16)*16
    else: vb, o0, o1 = V_TRB, (96*(ks-4)+32)*16, (96*(ks-4)+36)*16
    return [ds(tag, f"ds_read_b64_tr_b16 {v(dst,2)}, {v(vb)} offset:{b+o0}"),
            ds(tag, f"ds_read_b64_tr_b16 {v(dst+2,2)}, {v(vb)} offset:{b+o1}")]

def xlane(op, r, t, which):
    return [f"v_mov_b32 {v(t)}, {v(r)}", "s_nop 1", f"v_permlane{which}_swap_b32 {v(r)}, {v(t)}", f"{op} {v(r)}, {v(r)}, {v(t)}"]

def pb_tasks(items, e, d, span):
    if PBMODE == 0: return [[e, d, items]]
    if PBMODE == 1:
        STUBS.clear()
        return [[e, d, [it for it in items if isinstance(it, str) and 'buffer_' not in it]]]
    if DROP & 1: items = [it for it in items if not (isinstance(it, str) and it.endswith(" lds"))]
    if DROP & 2: items = [it for it in items if not (isinstance(it, str) and it.startswith("buffer_store") and "sc1" in it)]
    groups = []; cur = []
    for it in items:
        cur.append(it)
        if isinstance(it, str) and 'buffer_' in it: groups.append(cur); cur = []
    if cur: groups.append(cur)
    n = len(groups); out = []
    for i, g in enumerate(groups):
        st = e + i*PBSTEP
        out.append([st, st+PBSTEP+1, g])
    return out

def s_stage(A, E, cls, flags):
    S0, S1, S2, S3 = ACC, ACC+4, ACC+8, ACC+12
    accs = [S0, S1, S2, S3, S0, S1]
    ard = lambda k: ds(f"A{k}", f"ds_read_b128 {v(AF+4*k,4)}, {v(V_HI)} offset:{k*1024}")
    for k in range(3): E(ard(k))
    main = []
    for f in ORD_S:
        t, k = divmod(f, 10)
        main.append(([need(f"A{k}")] if t == 0 else []) + smf(f, accs[t], AF+4*k))
    T = refill_tasks() + [[k-3, max(k-1, 2*k-5), [ard(k)]] for k in range(3, 10)]
    pb = phaseB_items(A, False, cls, flags)
    T += pb_tasks(pb, 3, 22, 56)
    T.append([0, 28, zero(S3)])
    T.append([21, 31, post_s(S0, 0, "qw") + post_s(S1, 256, "qw")])
    T.append([32, 36, post_s(S2, 512, "qw")])
    T.append([22, 38, zero(S0) + zero(S1)])
    T.append([37, 38, [need("qw"), "s_barrier"]])
    T.append([42, 58, post_s(S3, 3072, "kw")])
    if cls == 12:
        SA = XS+16
        R = {0: (XS, XS+4), 1: (XS+8, XS+12), 2: (AF, AF+4), 3: (AF+8, AF+12), 4: (XS, XS+4), 5: (XS+8, XS+12)}
        def rd(ks): return qk_tr(True, ks, R[ks][0], f"X{ks}") + [ds(f"X{ks}", f"ds_read_b128 {v(R[ks][1],4)}, {v(V_KR)} offset:{ks*1024}")]
        def mm(ks, first=False): return [need(f"X{ks}"), f"v_mfma_f32_16x16x32_bf16 {v(SA,4)}, {v(R[ks][1],4)}, {v(R[ks][0],4)}, {'0' if first else v(SA,4)}"]
        T.append([38, 42, rd(0)])
        T.append([38, 45, rd(1)])
        T.append([45, 49, mm(0, True) + rd(4)])
        T.append([44, 48, rd(2)])
        T.append([48, 52, mm(1) + rd(5)])
        T.append([48, 54, rd(3)])
        T.append([52, 54, mm(2)])
        T.append([54, 55, mm(4)])
        T.append([55, 56, mm(5)])
        T.append([56, 57, mm(3)])
    if cls == 0:
        for ks in range(5): T.append([38, 45+2*ks, qk_tr(True, ks, XS+4*ks, f"m{ks}")])
        T.append([42, 58, qk_tr(True, 5, AF, "m5")])
    schedule(E, main, T, maxn=4)
    if cls == 12:
        E(ds("sx", f"ds_write_b128 {v(126)}, {v(XS+16,4)} offset:{S_LSX-HI-1024}"))
        A("s_nop 3")
    else:
        A("s_nop 4")
    pa = post_s(S0, 3072+256, "kw"); pb_ = post_s(S1, 3072+512, "kw")
    for it in pa + pb_: E(it)
    E.drain()
    A("s_barrier")

def dppadd(r): return f"v_add_f32_dpp {v(r)}, {v(r)}, {v(r)} row_ror:8 row_mask:0xf bank_mask:0xf"

def s_tail(A, E):
    QF, KF, SXA, SM, t0, t1 = AF, TMP, 44, 52, 56, 57
    mx, sx, nm, al = 58, 59, 60, 61
    E(ds("sx", f"ds_read_b128 {v(SXA,4)}, {v(V_HI)} offset:{S_LSX-HI}"))
    E(ds("sx", f"ds_read_b128 {v(SXA+4,4)}, {v(V_HI)} offset:{S_LSX-HI+1024}"))
    for ks in range(6):
        for it in qk_tr(False, ks, KF+4*ks, f"m{ks}"): E(it)
    X = [need("sx"),
         f"v_max3_f32 {v(mx)}, {v(SXA)}, {v(SXA+1)}, {v(SXA+2)}",
         f"v_max3_f32 {v(t1)}, {v(SXA+3)}, {v(SXA+4)}, {v(SXA+5)}",
         f"v_max3_f32 {v(mx)}, {v(mx)}, {v(SXA+6)}, {v(SXA+7)}",
         f"v_max_f32 {v(mx)}, {v(mx)}, {v(t1)}"]
    X += xlane("v_max_f32", mx, t0, 16) + xlane("v_max_f32", mx, t0, 32)
    X += [f"v_mul_f32 {v(nm)}, {s(S_SC)}, {v(mx)}"]
    X += [f"v_fma_f32 {v(SXA+i)}, {v(SXA+i)}, {s(S_SC)}, -{v(nm)}" for i in range(8)]
    X += [f"v_exp_f32 {v(SXA+i)}, {v(SXA+i)}" for i in range(8)]
    X += [f"v_add_f32 {v(sx)}, {v(SXA)}, {v(SXA+1)}", f"v_add_f32 {v(t1)}, {v(SXA+2)}, {v(SXA+3)}",
          f"v_add_f32 {v(t0)}, {v(SXA+4)}, {v(SXA+5)}", f"v_add_f32 {v(al)}, {v(SXA+6)}, {v(SXA+7)}",
          f"v_add_f32 {v(sx)}, {v(sx)}, {v(t1)}", f"v_add_f32 {v(t0)}, {v(t0)}, {v(al)}", f"v_add_f32 {v(sx)}, {v(sx)}, {v(t0)}"]
    X += xlane("v_add_f32", sx, t0, 16) + xlane("v_add_f32", sx, t0, 32)
    main = [[]] + [[need(f"m{ks}"), f"v_mfma_f32_16x16x32_bf16 {v(SM,4)}, {v(KF+4*ks,4)}, {v(XS+4*ks if ks < 5 else AF,4)}, {'0' if ks==0 else v(SM,4)}"] for ks in range(6)]
    for it in X[:9]: E(it)
    schedule(E, main, [[0, 99, X[9:]]], cap=2, maxn=4)
    m = 62
    A(f"v_max3_f32 {v(m)}, {v(SM)}, {v(SM+1)}, {v(SM+2)}")
    A(f"v_max3_f32 {v(m)}, {v(m)}, {v(SM+3)}, {v(mx)}")
    for l in xlane("v_max_f32", m, t0, 16): A(l)
    A(f"v_mul_f32 {v(m)}, {s(S_SC)}, {v(m)}")
    A(f"v_sub_f32 {v(al)}, {v(nm)}, {v(m)}")
    for i in range(4): A(f"v_fma_f32 {v(SM+i)}, {v(SM+i)}, {s(S_SC)}, -{v(m)}")
    A(f"v_exp_f32 {v(al)}, {v(al)}")
    for i in range(4): A(f"v_exp_f32 {v(SM+i)}, {v(SM+i)}")
    A("s_waitcnt vmcnt(0)")
    A(f"v_add_f32 {v(t1)}, {v(SM)}, {v(SM+1)}")
    A(f"v_add_f32 {v(m)}, {v(SM+2)}, {v(SM+3)}")
    A(f"v_add_f32 {v(m)}, {v(m)}, {v(t1)}")
    for l in xlane("v_add_f32", m, t0, 16): A(l)
    A(f"v_fma_f32 {v(m)}, {v(al)}, {v(sx)}, {v(m)}")
    A(f"v_rcp_f32 {v(m)}, {v(m)}")
    A(f"s_add_u32 {s(S_T)}, {s(S_P)}, {s(S_PST)}")
    A(f"v_mul_f32 {v(al)}, {v(al)}, {v(m)}")
    for i in range(4): A(f"v_mul_f32 {v(SM+i)}, {v(SM+i)}, {v(m)}")
    for i in range(8): A(f"v_mul_f32 {v(SXA+i)}, {v(SXA+i)}, {v(al)}")
    A(f"s_add_u32 {s(S_T2)}, {s(S_P)}, {s(S_PSM)}")
    for i in range(4): A(f"v_cvt_pk_bf16_f32 {v(64+i)}, {v(SXA+2*i)}, {v(SXA+2*i+1)}")
    for i in range(2): A(f"v_cvt_pk_bf16_f32 {v(SM+i)}, {v(SM+2*i)}, {v(SM+2*i+1)}")
    dual(A, [f"s_mov_b64 exec, {s(S_MA,2)}",
             f"buffer_store_dwordx4 {v(64,4)}, {v(V_L16)}, {s(S_WS,4)}, {s(S_T)} offen",
             f"s_mov_b64 exec, {s(S_MB,2)}",
             f"buffer_store_dwordx2 {v(SM,2)}, {v(V_PM)}, {s(S_WS,4)}, {s(S_T2)} offen",
             "s_mov_b64 exec, -1"])

def v_stage(A, E, cls, flags):
    S = [ACC, ACC+4, ACC+8, ACC+12, 112, 116]
    ard = lambda k: ds(f"A{k}", f"ds_read_b128 {v(AF+4*k,4)}, {v(V_HI)} offset:{k*1024}")
    for k in range(3): E(ard(k))
    main = []
    for f in ORD_V[:30]:
        t, k = divmod(f, 10)
        main.append(([need(f"A{k}")] if t == 0 else []) + smf(f, S[t], AF+4*k))
    RT = refill_tasks()
    T = [t for t in RT if t[0] < 29] + [[k-3, max(k-1, 2*k-5), [ard(k)]] for k in range(3, 10)]
    PB = pb_tasks(phaseB_items(A, True, cls, flags), 3, 24, 58)
    T += [t for t in PB if t[0] < 28]
    T.append([0, 20, zero(S[3]) + zero(S[4]) + zero(S[5])])
    T.append([21, 99, post_v(S[0], 0, "vw") + post_v(S[1], 256, "vw") + zero(S[0])])
    schedule(E, main, T, maxn=4)
    for l in zero(S[1]) + zero(AF+12) + zero(AF+16): A(l)
    A("s_nop 1")
    for it in post_v(S[2], 512, "vw"): E(it)
    for it in RT[5][2]: E(it)
    for l in zero(AF+20) + zero(AF+24) + zero(S[2]): A(l)
    E.need("vw")
    A("s_barrier")
    for kk in range(3):
        for h in range(2):
            E(ds(f"B{kk}", f"ds_read_b64_tr_b16 {v(AF+4*kk+2*h,2)}, {v(V_TRA)} offset:{(32*kk+4*h)*32}"))
    SS = [S[3], S[4], S[5], S[0], S[1], S[2], AF+12, AF+16, AF+20, AF+24]
    sa = lambda t: SS[t]
    main = []
    for t in range(10):
        for kk in range(3):
            main.append(([need(f"B{kk}")] if t == 0 else []) + smf(30 + 3*t + kk, sa(t), AF+4*kk))
    T = [[t[0]-30, t[1]-30, t[2]] for t in RT if t[0] > 29]
    T += [[max(t[0]-30, 0), max(t[1]-30, 2), t[2]] for t in PB if t[0] >= 28]
    def fin(t):
        L = post(sa(t), XS+t)
        if t in (3, 7):
            q = XS + t - 3
            L += ["s_nop 0"]
            L += [f"v_permlane32_swap_b32 {v(q)}, {v(q+2)}", f"v_permlane32_swap_b32 {v(q+1)}, {v(q+3)}", "s_nop 1",
                  f"v_permlane16_swap_b32 {v(q)}, {v(q+1)}", f"v_permlane16_swap_b32 {v(q+2)}, {v(q+3)}"]
            L += [f"s_add_u32 {s(S_T)}, {s(S_Z)}, {(t//4)*4*8192}\n" + dual_text(A, [f"buffer_store_dwordx4 {v(q,4)}, {v(V_ZS4)}, {s(S_WS,4)}, {s(S_T)} offen"])]
        if t == 9:
            L += ["s_nop 1", f"v_permlane16_swap_b32 {v(XS+8)}, {v(XS+9)}"]
            L += [dual_text(A, [f"buffer_store_dwordx2 {v(XS+8,2)}, {v(V_ZS2)}, {s(S_WS,4)}, {s(S_Z)} offen"])]
        return L
    chain = []
    for t in range(8):
        T.append([3*t+2+3, 40+t, fin(t)])
    schedule(E, main, T, cap=VCAP, maxn=5)
    for it in fin(8): E(it)
    A("s_nop 3")
    for it in fin(9): E(it)

def reduce_stage(A, E, isV, cls, flags):
    PF, mt = AF, 56
    UL = [76,80,84,88,92,96,60,64] if isV else [100,104,108,112]
    D = [68, 72]; DO = [40, 44]
    nt = 2 if isV else 1
    if not (cls == 0 and not isV): A("s_waitcnt vmcnt(3)" if isV else "s_waitcnt vmcnt(0)")
    if isV: z_poison(A)
    elif cls != 0:
        k_dma(A)
        km_export(A, E, AF)
    for j in range(4): E(ds("U", f"ds_read_b128 {v(UL[j],4)}, {v(V_UR)} offset:{j*1024}"))
    if isV:
        for j in range(4): E(ds("U", f"ds_read_b128 {v(UL[4+j],4)}, {v(V_UHR)} offset:{(j>>1)*1024+(j&1)*128}"))
    A(f"s_add_u32 {s(S_T)}, {s(S_P)}, {s(S_PLX)}")
    A(f"s_add_u32 {s(S_T2)}, {s(S_P)}, {s(S_PLM)}")
    A(f"s_add_u32 {s(S_T3)}, {s(S_Z)}, {s(S_ZL)}")
    if isV: A(f"s_add_u32 {s(S_T4)}, {s(S_Z)}, {s(S_ZL2)}")
    for l in zero(PF+8) + (zero(ZF+4) if isV else []): A(l)
    if not isV:
        A("s_barrier")
        if DELAYBS: A(f"s_sleep {DELAYBS}")
    elif DELAYB: A(f"s_sleep {DELAYB}")
    if STAMP == 1: tick(A, 8)
    lab = A.newlabel("GB")
    loop_top(A, lab, 11)
    A(f"buffer_load_dwordx4 {v(ZF,4)}, {v(V_L16)}, {s(S_WS,4)}, {s(S_T3)} offen sc1")
    for j in range(2):
        A(f"buffer_load_dwordx4 {v(PF+4*j,4)}, {v(V_L16)}, {s(S_WS,4)}, {s(S_T)} offen offset:{j*1024} sc1")
    A(f"s_mov_b64 exec, {s(S_MA,2)}")
    if isV: A(f"buffer_load_dwordx4 {v(ZF+4,4)}, {v(V_ZH)}, {s(S_WS,4)}, {s(S_T4)} offen sc1")
    A(f"buffer_load_dwordx4 {v(PF+8,4)}, {v(V_PLD)}, {s(S_WS,4)}, {s(S_T2)} offen sc1")
    A("s_mov_b64 exec, -1")
    A("s_waitcnt vmcnt(0) lgkmcnt(0)"); E.reset()
    if STAMP == 1: tick(A, 7)
    main = []
    def mm(d, a_, b_, first): return [f"v_mfma_f32_16x16x32_bf16 {v(d,4)}, {v(a_,4)}, {v(b_,4)}, {'0' if first else v(d,4)}"]
    for j in range(2):
        for t in range(nt): main.append(mm(DO[t], UL[4*t+2*j+1], PF+4*j, j == 0))
    for j in range(3):
        for t in range(nt): main.append(mm(D[t], UL[4*t+2*j] if j < 2 else ZF+4*t, PF+4*j, j == 0))
    X = maxtree(list(range(PF, PF+12)) + list(range(ZF, ZF+4*nt)), mt) + [f"v_cmp_eq_u32 vcc, -1, {v(mt)}"]
    T = [[0, 99, X]]
    if cls == 0:
        LZ = (V_LVX if isV else S_LK + 12288) - HI
        T.append([1, 98, [ds("zs", f"ds_write_b128 {v(V_HI)}, {v(ZF+4*t,4)} offset:{LZ+t*1024}") for t in range(nt)]])
    schedule(E, main, T)
    retry(A, lab, 11)
    A("s_nop 6" if not isV else "s_nop 3")
    for t in range(nt):
        for i in range(4):
            A(f"v_add_f32_dpp {v(D[t]+i)}, {v(DO[t]+i)}, {v(D[t]+i)} row_ror:8 row_mask:0xf bank_mask:0xf")
        if isV: E(ds("r", f"ds_write_b128 {v(V_RW)}, {v(D[t],4)} offset:{t*1024}"))
        else: E(ds("r", f"ds_write_b128 {v(126)}, {v(D[t],4)} offset:{S_LRED-HI}"))
    E.drain()
    A("s_barrier")

def preload(A, E):
    for j in range(3):
        for it in wl_read(j): E(it)
    for k in range(3):
        for l in zero(ACC+4*k): A(l)

def gatherA(A, E, isV, cls, lab, flags):
    mt = 72
    vtw = V_TW if isV else V_PLD
    def advance():
        A(f"s_add_u32 {s(S_STEP)}, {s(S_STEP)}, 1")
        for c_, n_, p_ in ((S_Z,S_ZN,S_ZP),(S_P,S_PN,S_PP)):
            A(f"s_mov_b32 {s(S_T)}, {s(c_)}"); A(f"s_mov_b32 {s(c_)}, {s(n_)}"); A(f"s_mov_b32 {s(n_)}, {s(p_)}"); A(f"s_mov_b32 {s(p_)}, {s(S_T)}")
        A(f"s_mov_b32 {s(S_T)}, {s(S_L)}"); A(f"s_mov_b32 {s(S_L)}, {s(S_LN)}"); A(f"s_mov_b32 {s(S_LN)}, {s(S_T)}")
        A(f"s_add_u32 {s(S_US)}, {s(S_US)}, {40*32768}")
        if isV: A(f"s_add_u32 {s(S_US2)}, {s(S_US2)}, {40*32768}")
        A(f"s_add_u32 {s(S_EXP)}, {s(S_EXP)}, 327680")
        A(f"s_add_u32 {s(S_ARR)}, {s(S_ARR)}, 128")
        if not isV: A(f"s_add_u32 {s(S_KMX)}, {s(S_KMX)}, {NH*3072}")
        preload(A, E)
    if cls == 0:
        st = 2048 if isV else 1024
        for w in range(4): E(ds("f", f"ds_read_b128 {v(AF+4*w,4)}, {v(V_FINR)} offset:{w*st}"))
        E.drain()
        for i in range(4): A(f"v_add_f32 {v(AF+i)}, {v(AF+i)}, {v(AF+4+i)}")
        for i in range(4): A(f"v_add_f32 {v(AF+8+i)}, {v(AF+8+i)}, {v(AF+12+i)}")
        for i in range(4): A(f"v_add_f32 {v(AF+i)}, {v(AF+i)}, {v(AF+8+i)}")
        A(f"s_mov_b64 exec, {s(S_MB if isV else S_MA,2)}")
        A(f"buffer_store_dwordx4 {v(AF,4)}, {v(vtw)}, {s(S_WS,4)}, {s(S_RW)} offen sc0 sc1")
        A("s_mov_b64 exec, -1")
        tick(A, 3)
        advance()
        if DELAY0: A(f"s_sleep {DELAY0}")
        A(f"s_mov_b64 exec, {s(S_MB if isV else S_MA,2)}")
        labt = A.newlabel("GT")
        loop_top(A, labt, 13)
        A(f"buffer_load_dwordx4 {v(AF+4,4)}, {v(vtw)}, {s(S_WS,4)}, {s(S_RR)} offen sc1")
        A("s_waitcnt vmcnt(0)")
        for l in maxtree(range(AF+4, AF+8), mt): A(l)
        for i in range(4): A(f"v_add_f32 {v(AF+8+i)}, {v(AF+i)}, {v(AF+4+i)}")
        A(f"v_cmp_eq_u32 vcc, -1, {v(mt)}")
        for i in range(2): A(f"v_cvt_pk_bf16_f32 {v(AF+8+i)}, {v(AF+8+2*i)}, {v(AF+9+2*i)}")
        retry(A, labt, 13)
        dual(A, [f"buffer_store_dwordx2 {v(AF+8,2)}, {v(V_FINRM)}, {s(S_WS,4)}, {s(S_L)} offen",
                 f"buffer_store_dwordx2 {v(V_POI,2)}, {v(V_FINRM)}, {s(S_WS,4)}, {s(S_LN)} offen"])
        A("s_mov_b64 exec, -1")
        if not isV: p_poison(A, S_PN)
        A(f"s_add_u32 {s(S_RR)}, {s(S_RR)}, 40960")
        A(f"s_add_u32 {s(S_RW)}, {s(S_RW)}, 40960")
    else:
        tick(A, 3)
        window(A, E, isV, cls, flags)
        advance()
    A("s_barrier")
    tick(A, 4)
    if (DELAYLV if isV else DELAYL): A(f"s_sleep {DELAYLV if isV else DELAYL}")
    G = AF + 12
    A(f"s_add_u32 {s(S_T)}, {s(S_L)}, 4096")
    A(f"s_add_u32 {s(S_T2)}, {s(S_L)}, {s(S_G3)}")
    A(f"v_mov_b64 {v(G+8,2)}, 0"); A(f"v_mov_b64 {v(G+10,2)}, 0")
    if STAMP == 1: tick(A, 8)
    loop_top(A, lab, 12)
    A(f"buffer_load_dwordx4 {v(G,4)}, {v(V_T7)}, {s(S_WS,4)}, {s(S_L)} offen sc1")
    A(f"buffer_load_dwordx4 {v(G+4,4)}, {v(V_T7)}, {s(S_WS,4)}, {s(S_T)} offen sc1")
    A(f"s_mov_b64 exec, {s(S_M3,2)}")
    A(f"buffer_load_dwordx4 {v(G+8,4)}, {v(V_T7)}, {s(S_WS,4)}, {s(S_T2)} offen sc1")
    return lab

def gatherA2(A, E, lab):
    G = AF + 12; mt = 72
    A("s_waitcnt vmcnt(0)")
    if STAMP == 1: tick(A, 9)
    A("s_mov_b64 exec, -1")
    mtree = maxtree(range(G, G+12), mt)
    E(ds("g", f"ds_write_b128 {v(V_GA)}, {v(G,4)}"))
    for l in mtree: A(l)
    A(f"v_cmp_eq_u32 vcc, -1, {v(mt)}")
    retry(A, lab, 12)
    E(ds("g", f"ds_write_b128 {v(V_GA)}, {v(G+4,4)} offset:4096"))
    A(f"s_mov_b64 exec, {s(S_M3,2)}")
    E(ds("g", f"ds_write_b128 {v(V_G3W)}, {v(G+8,4)}"))
    A("s_mov_b64 exec, -1")
    tick(A, 5)
    E.drain()

def chain_loop(A, isV, cls, flags):
    E = Emit(A)
    top = A.newlabel("CH_top"); fin = A.newlabel("CH_fin"); ent = A.newlabel("CH_ent"); galab = A.newlabel("GAx")
    preload(A, E); E.drain()
    if STAMP:
        A(f"s_memtime {s(88,2)}"); A(f"s_memrealtime {s(90,2)}"); A("s_waitcnt lgkmcnt(0)"); A(f"s_mov_b32 {s(86)}, {s(88)}"); A(f"s_mov_b32 {s(87)}, {s(90)}")
    A(f"s_branch {ent}")
    A.label(top)
    gatherA2(A, E, galab)
    A.label(ent)
    A("s_barrier")
    tick(A, 6)
    if STAMP in (1, 3):
        rs = A.newlabel("rs"); rb = A.newlabel("rb")
        A(f"s_cmp_eq_u32 {s(S_STEP)}, 8"); A(f"s_cbranch_scc1 {rs}"); A.label(rb)
        B = Asm(); B.uid = A.uid + 50000; tstamp(B, 3)
        STUBS.append([rs + ":"] + B.lines + [f"s_memtime {s(88,2)}", f"s_memrealtime {s(90,2)}", "s_waitcnt lgkmcnt(0)", f"s_mov_b32 {s(86)}, {s(88)}", f"s_mov_b32 {s(87)}, {s(90)}"] +
                     [f"s_mov_b32 {s(S_TS+k)}, 0" for k in range(16)] + [f"s_branch {rb}"])
    if STAMP == 2:
        A(f"s_memrealtime {s(88,2)}"); A("s_waitcnt lgkmcnt(0)")
        A(f"s_cmp_eq_u32 {s(S_STEP)}, {TSTEP}"); A(f"s_cselect_b32 {s(S_TS+7)}, {s(88)}, {s(S_TS+7)}")
    if isV: v_stage(A, E, cls, flags)
    else: s_stage(A, E, cls, flags)
    tick(A, 0)
    A(f"s_cmp_eq_u32 {s(S_STEP)}, {NSTEP-1}")
    A(f"s_cbranch_scc1 {fin}")
    if not isV and cls == 0: s_tail(A, E)
    tick(A, 1)
    reduce_stage(A, E, isV, cls, flags)
    tick(A, 2)
    gatherA(A, E, isV, cls, galab, flags)
    A(f"s_branch {top}")
    flush_stubs(A)
    A.label(fin)
    E.reset()
    if STAMP == 3:
        A(f"s_memtime {s(88,2)}"); A(f"s_memrealtime {s(90,2)}"); A("s_waitcnt lgkmcnt(0)")
        A(f"s_sub_u32 {s(S_TS)}, {s(88)}, {s(86)}"); A(f"s_sub_u32 {s(S_TS+1)}, {s(90)}, {s(87)}")
    if isV:
        A(f"s_add_u32 {s(S_T2)}, {s(S_EXP)}, {4*8192}")
        A(f"buffer_store_dwordx4 {v(XS,4)}, {v(V_ZS4)}, {s(S_WS,4)}, {s(S_EXP)} offen sc0 sc1")
        A(f"buffer_store_dwordx4 {v(XS+4,4)}, {v(V_ZS4)}, {s(S_WS,4)}, {s(S_T2)} offen sc0 sc1")
        A(f"buffer_store_dwordx2 {v(XS+8,2)}, {v(V_ZS2)}, {s(S_WS,4)}, {s(S_EXP)} offen sc0 sc1")
    elif cls != 0:
        km_export(A, E, XS)
    A("s_waitcnt vmcnt(0)")
    A("s_barrier")
    if flags and cls == 0:
        A(f"v_mov_b32 v56, 1"); A(f"v_mov_b32 v57, {NSEG}")
        A(f"s_add_u32 {s(S_T)}, {s(S_FLO)}, {FL_KM}")
        A("s_mov_b64 exec, 1")
        if not isV: A(f"buffer_store_dword v57, {v(V_ZERO)}, {s(S_WS,4)}, {s(S_T)} offen sc0 sc1")
        A(f"buffer_atomic_add v56, {v(V_ZERO)}, {s(S_WS,4)}, {s(S_ARR)} offen offset:128 sc1")
        A(f"buffer_atomic_add v56, {v(V_ZERO)}, {s(S_WS,4)}, {s(S_ARR)} offen offset:256 sc1")
        A("s_mov_b64 exec, -1")
    if STAMP:
        A(f"s_lshl_b32 {s(S_T)}, {s(S_GRP)}, 5")
        A(f"s_add_u32 {s(S_T)}, {s(S_T)}, {s(S_C)}")
        A(f"s_lshl_b32 {s(S_T)}, {s(S_T)}, 2")
        A(f"s_add_u32 {s(S_T)}, {s(S_T)}, {s(S_WAVE)}")
        A(f"s_lshl_b32 {s(S_T)}, {s(S_T)}, 6")
        A(f"s_add_u32 {s(S_T)}, {s(S_T)}, {WS_SCR + 1048576}")
        for k in range(16):
            A(f"v_mov_b32 v21, {s(S_TS+k) if k != 14 else s(S_FAST)}")
            A(f"buffer_store_dword v21, {v(V_ZERO)}, {s(S_WS,4)}, {s(S_T)} offen offset:{4*k}")
        A("s_waitcnt vmcnt(0)")

def role_chain(A, isV, end_label, flags=False):
    global CUR_ORD
    CUR_ORD = ORD_V if isV else ORD_S
    A.c("================ role chain %s ================" % ("V" if isV else "S"))
    A(f"s_load_dwordx2 {s(S_W1,2)}, s[0:1], {KA['Wv' if isV else 'Wq']}")
    A(f"s_load_dwordx2 {s(S_W2,2)}, s[0:1], {KA['Wo' if isV else 'Wk']}")
    A(f"s_load_dwordx2 {s(S_X,2)}, s[0:1], {KA['mem0']}")
    A(f"s_and_b32 {s(S_HEAD)}, {s(S_C)}, 15")
    A(f"s_lshl_b32 {s(S_T)}, {s(S_GRP)}, 4")
    A(f"s_add_u32 {s(S_HEAD)}, {s(S_HEAD)}, {s(S_T)}")
    A(f"s_getreg_b32 {s(S_FAST)}, hwreg(HW_REG_XCC_ID, 0, 4)")
    A(f"s_lshl_b32 {s(S_T)}, {s(S_GRP)}, 5")
    A(f"s_add_u32 {s(S_T)}, {s(S_T)}, {s(S_C)}")
    A(f"s_lshl_b32 {s(S_T)}, {s(S_T)}, 2")
    A(f"s_add_u32 {s(S_T2)}, {s(S_T)}, {MB_X}")
    if not flags: publish(A, S_FAST, S_T2)
    A("s_waitcnt lgkmcnt(0)")
    srd_finish(A, S_W1, W_BYTES); srd_finish(A, S_W2, W_BYTES); srd_finish(A, S_X, 10240)
    A(f"s_mul_i32 s66, {s(S_HEAD)}, 384")
    A("s_waitcnt vmcnt(0)")
    def hook(c1, c2):
        def f(c):
            if not flags: return
            if c == c1: init_load(A, 124, 125)
            if c == c2:
                init_wait(A, 124, 125)
                publish(A, S_FAST, S_T2, vt=126)
        return f
    if not isV:
        load_w_rows384(A, [S_W1, S_W2], 66, lambda c, kk, t, half: wdest(((c//10)*3+t)*10 + c%10, 2*kk+half), rowmap="sparse", vt=116, after_read=hook(8, 14))
    else:
        load_w_rows384(A, [S_W1], 66, lambda c, kk, t, half: wdest(t*10 + c, 2*kk+half), rowmap="sparse", vt=116, after_read=hook(8, -1))
        A(f"s_mul_i32 s66, {s(S_HEAD)}, 245760")
        load_wo(A, S_W2, 66, lambda c, t, half: wdest(30 + 3*t + c//2, 2*(c&1)+half), sparse=True, vt=116, after_read=hook(-1, 1))
    A(f"s_mul_i32 {s(S_T)}, {s(S_WAVE)}, 24576")
    A(f"v_lshl_add_u32 {v(V_WL)}, {v(V_LANE)}, 4, {s(S_T)}")
    for j in range(12):
        A(f"ds_write_b128 {v(V_WL)}, {v(AF+8*j,4)} offset:{j*2048}")
        A(f"ds_write_b128 {v(V_WL)}, {v(AF+8*j+4,4)} offset:{j*2048+1024}")
    A("s_waitcnt lgkmcnt(0)")
    tstamp(A, 2)
    setup_common(A, isV)
    A(f"v_and_b32 v20, 31, {v(V_LANE)}")
    A(f"v_lshlrev_b32 v20, 2, v20")
    A(f"s_lshl_b32 {s(S_T)}, {s(S_GRP)}, 7")
    A(f"s_add_u32 {s(S_T)}, {s(S_T)}, {MB_X}")
    lab = A.newlabel("XH")
    loop_top(A, lab)
    A(f"buffer_load_dword v21, v20, {s(S_WS,4)}, {s(S_T)} offen sc1")
    A("s_waitcnt vmcnt(0)")
    A("v_cmp_eq_u32 vcc, -1, v21")
    retry(A, lab)
    jx = A.newlabel("XJ"); A(f"s_branch {jx}"); flush_stubs(A); A.label(jx)
    A(f"v_cmp_ne_u32 vcc, {s(S_FAST)}, v21")
    A("s_cmp_eq_u64 vcc, 0")
    A(f"s_cselect_b32 {s(S_FAST)}, 1, 0")
    A(f"v_bfe_u32 v20, {v(V_LANE)}, 1, 3")
    A(f"v_mul_u32_u24 v20, 1280, v20")
    A(f"v_lshrrev_b32 v21, 4, {v(V_LANE)}")
    A(f"v_lshl_add_u32 v20, v21, 5, v20")
    A(f"v_and_b32 v21, 1, {v(V_LANE)}")
    A(f"v_lshl_add_u32 v20, v21, 4, v20")
    A(f"s_lshl_b32 {s(S_T)}, {s(S_WAVE)}, 7")
    A(f"s_lshl_b32 {s(S_T2)}, {s(S_WAVE)}, 10")
    for j in range(3):
        sk = A.newlabel("m0s")
        if j == 2:
            A(f"s_cmp_ge_u32 {s(S_WAVE)}, 2"); A(f"s_cbranch_scc1 {sk}")
        A(f"s_add_u32 m0, {s(S_T2)}, {L_MEM + j*4096 - j*512}")
        A("s_nop 0")
        A(f"buffer_load_dwordx4 v20, {s(S_X,4)}, {s(S_T)} offen offset:{j*512} lds")
        if j == 2: A.label(sk)
    if not isV:
        sk = A.newlabel("k0s")
        A(f"s_cmp_eq_u32 {s(S_WAVE)}, 0"); A(f"s_cbranch_scc1 {sk}")
        if flags: k_check(A)
        k_dma(A)
        if flags: k_check(A)
        A.label(sk)
    if flags: u_check(A, 0)
    A("s_waitcnt vmcnt(0)")
    jx = A.newlabel("XJ"); A(f"s_branch {jx}"); flush_stubs(A); A.label(jx)
    A("s_barrier")
    classes = [0, 123] if isV else [0, 12, 3]
    labs = {c: A.newlabel("CLS") for c in classes}
    A(f"s_cmp_eq_u32 {s(S_WAVE)}, 0")
    A(f"s_cbranch_scc1 {labs[0]}")
    if not isV:
        A(f"s_cmp_eq_u32 {s(S_WAVE)}, 3")
        A(f"s_cbranch_scc1 {labs[3]}")
    for c in reversed(classes) if isV else [12, 3, 0]:
        A.label(labs[c])
        chain_loop(A, isV, c, flags)
        A(f"s_branch {end_label}")
```

```python
from common import *
V_L16 = 2; V_OST = 3; V_Z = 4; V_FA = 5; V_FU = 6; V_FP = 7; V_P2 = 8
PF = 12
ZF = 44
D = 76
S_ID = 22; S_SEGC = 23; S_CB = 24; S_T = 26; S_T2 = 27; S_NEED = 28; S_CNT = 29; S_US = 30; S_PS = 31; S_ZS = 32; S_OS = 33; S_M0 = 34; S_FB = 35; S_STR = 36
NTASK = 640
WARM = 1

def lanes_wait(A, vfl, s_need):
    pass

def wait_cnt(A, base, need, s_known):
    sk = A.newlabel("F_kn")
    A(f"s_cmp_lt_u32 {s(S_SEGC)}, {s(s_known)}"); A(f"s_cbranch_scc1 {sk}")
    A(f"s_lshl_b32 {s(S_FB)}, {s(S_SEGC)}, 7")
    A(f"s_add_u32 {s(S_FB)}, {s(S_FB)}, {base}")
    A(f"s_mov_b32 {s(S_NEED)}, {need}")
    A(f"v_mov_b32 {v(V_FU)}, 0")
    flag_wait(A, V_FU, V_Z, S_FB, S_NEED, S_T, S_CNT, sleep=6)
    A(f"s_add_u32 {s(s_known)}, {s(S_SEGC)}, 1")
    A.label(sk)

def decode(A, s_id):
    A(f"s_mul_i32 {s(S_SEGC)}, {s(s_id)}, 6554")
    A(f"s_lshr_b32 {s(S_SEGC)}, {s(S_SEGC)}, 16")
    A(f"s_mul_i32 {s(S_T)}, {s(S_SEGC)}, 10")
    A(f"s_sub_u32 {s(S_CB)}, {s(s_id)}, {s(S_T)}")
    A(f"s_lshl_b32 {s(S_CB)}, {s(S_CB)}, 2")
    A(f"s_add_u32 {s(S_CB)}, {s(S_CB)}, {s(S_WAVE)}")

def issue_u(A, base, flags):
    decode(A, S_T2)
    if flags: wait_cnt(A, CN_U, 32, 37)
    A(f"s_mul_i32 {s(S_US)}, {s(S_SEGC)}, {40*32768}")
    A(f"s_lshl_b32 {s(S_T)}, {s(S_CB)}, 10")
    A(f"s_add_u32 {s(S_US)}, {s(S_US)}, {s(S_T)}")
    A(f"s_add_u32 {s(S_US)}, {s(S_US)}, {WS_U}")
    for h in range(32):
        if h: A(f"s_add_u32 {s(S_US)}, {s(S_US)}, 40960")
        A(f"buffer_load_dwordx4 {a(base+4*h,4)}, {v(V_L16)}, {s(S_WS,4)}, {s(S_US)} offen sc1")

def warm(A):
    A(f"s_load_dwordx2 {s(S_X,2)}, s[0:1], {KA['A_x']}")
    A(f"s_load_dwordx2 {s(S_W1,2)}, s[0:1], {KA['B_x']}")
    A(f"s_lshl_b32 {s(S_T)}, {s(S_ID)}, 2")
    A(f"s_add_u32 {s(S_T)}, {s(S_T)}, {s(S_WAVE)}")
    A(f"s_lshl_b32 {s(S_T)}, {s(S_T)}, 13")
    A(f"v_lshlrev_b32 {v(PF+16)}, 7, {v(V_LANE)}")
    A("s_waitcnt lgkmcnt(0)")
    srd_finish(A, S_X, X_BYTES); srd_finish(A, S_W1, X_BYTES)
    for j in range(3 if WARM == 1 else 1):
        A(f"buffer_load_dword {v(PF+17)}, {v(PF+16)}, {s(S_X,4)}, {s(S_T)} offen")
        if WARM == 1: A(f"buffer_load_dword {v(PF+18)}, {v(PF+16)}, {s(S_W1,4)}, {s(S_T)} offen")
        A(f"s_add_u32 {s(S_T)}, {s(S_T)}, {NF*4*8192}")
    assert 3*NF*4*8192 >= X_BYTES

def self_init(A):
    npg = (POISON_END - WS_MB + 4095)//4096
    for i in range(4): A(f"v_mov_b32 {v(PF+i)}, -1")
    A(f"s_lshl_b32 {s(S_T)}, {s(S_WAVE)}, 10")
    A(f"v_add_u32 {v(PF+4)}, {s(S_T)}, {v(V_L16)}")
    A(f"s_lshl_b32 {s(S_T)}, {s(S_ID)}, 12")
    A(f"s_add_u32 {s(S_T)}, {s(S_T)}, {WS_MB}")
    lp = A.newlabel("F_po")
    A.label(lp)
    A(f"buffer_store_dwordx4 {v(PF,4)}, {v(PF+4)}, {s(S_WS,4)}, {s(S_T)} offen sc0 sc1")
    A(f"s_add_u32 {s(S_T)}, {s(S_T)}, {NF*4096}")
    A(f"s_cmp_lt_u32 {s(S_T)}, {POISON_END}")
    A(f"s_cbranch_scc1 {lp}")
    sk = A.newlabel("F_nz")
    A(f"s_cmp_ge_u32 {s(S_ID)}, {(FLAGS_END-FLAGS)//4096}"); A(f"s_cbranch_scc1 {sk}")
    for i in range(4): A(f"v_mov_b32 {v(PF+8+i)}, 0")
    A(f"s_lshl_b32 {s(S_T)}, {s(S_ID)}, 12")
    A(f"s_add_u32 {s(S_T)}, {s(S_T)}, {FLAGS}")
    A(f"buffer_store_dwordx4 {v(PF+8,4)}, {v(PF+4)}, {s(S_WS,4)}, {s(S_T)} offen sc0 sc1")
    A.label(sk)
    A("s_waitcnt vmcnt(0)")
    A("s_barrier")
    sk = A.newlabel("F_na")
    A(f"s_cmp_lg_u32 {s(S_WAVE)}, 0"); A(f"s_cbranch_scc1 {sk}")
    A(f"v_mov_b32 {v(PF)}, 1")
    A("s_mov_b64 exec, 1")
    A(f"global_atomic_add {v(V_Z)}, {v(PF)}, {s(S_DBG,2)} sc1")
    A("s_mov_b64 exec, -1")
    A.label(sk)
    init_sync(A, PF+5, PF+6)
    assert POISON_END % 4096 == 0 and FLAGS == POISON_END

def role_f(A, flags=False):
    A.c("================ role F ================")
    A(f"s_load_dwordx2 {s(S_W2,2)}, s[0:1], {KA['out']}")
    A(f"v_lshlrev_b32 {v(V_L16)}, 4, {v(V_LANE)}")
    A(f"v_add_u32 {v(V_P2)}, 40960, {v(V_L16)}")
    A(f"v_and_b32 v9, 31, {v(V_LANE)}")
    A(f"v_mul_u32_u24 v9, 2560, v9")
    A(f"v_lshrrev_b32 v10, 5, {v(V_LANE)}")
    A(f"v_lshl_add_u32 {v(V_OST)}, v10, 4, v9")
    A(f"v_mov_b32 {v(V_Z)}, 0")
    A("s_mov_b32 s37, 0"); A("s_mov_b32 s38, 0"); A("s_mov_b32 s39, 0")
    A(f"s_mul_i32 {s(S_M0)}, {s(S_WAVE)}, 20480")
    A("s_waitcnt lgkmcnt(0)")
    srd_finish(A, S_W2, 2048*1280*2)
    if flags and WARM: warm(A)
    if flags: self_init(A)
    A(f"s_mov_b32 {s(S_T2)}, {s(S_ID)}")
    issue_u(A, 0, flags)
    loop = A.newlabel("F_loop"); done = A.newlabel("F_done")
    A.label(loop)
    for par in range(2):
        A(f"s_mov_b32 {s(S_T2)}, {s(S_ID)}")
        decode(A, S_T2)
        if flags:
            wait_cnt(A, RD_Q, 1, 38)
            wait_cnt(A, CN_Z, 64, 39)
        A(f"s_mul_i32 {s(S_PS)}, {s(S_SEGC)}, 81920")
        A(f"s_add_u32 {s(S_PS)}, {s(S_PS)}, {s(S_M0)}")
        A(f"s_add_u32 {s(S_PS)}, {s(S_PS)}, {WS_P}")
        A(f"s_mul_i32 {s(S_ZS)}, {s(S_SEGC)}, 327680")
        A(f"s_lshl_b32 {s(S_T)}, {s(S_CB)}, 13")
        A(f"s_add_u32 {s(S_ZS)}, {s(S_ZS)}, {s(S_T)}")
        A(f"s_add_u32 {s(S_ZS)}, {s(S_ZS)}, {WS_Z}")
        A(f"s_mul_i32 {s(S_OS)}, {s(S_SEGC)}, {32*2560}")
        A(f"s_lshl_b32 {s(S_T)}, {s(S_CB)}, 5")
        A(f"s_add_u32 {s(S_OS)}, {s(S_OS)}, {s(S_T)}")
        A("s_barrier")
        for j in range(20):
            if j % 4 == 0:
                A(f"s_add_u32 m0, {s(S_M0)}, {j*1024}")
                A(f"s_add_u32 {s(S_T)}, {s(S_PS)}, {j*1024}")
            A(f"buffer_load_dwordx4 {v(V_L16)}, {s(S_WS,4)}, {s(S_T)} offen offset:{(j%4)*1024} sc1 lds")
        for j in range(8):
            if j == 4: A(f"s_add_u32 {s(S_ZS)}, {s(S_ZS)}, 4096")
            A(f"buffer_load_dwordx4 {v(ZF+4*j,4)}, {v(V_L16)}, {s(S_WS,4)}, {s(S_ZS)} offen offset:{(j%4)*1024} sc1")
        A(f"s_add_u32 {s(S_T2)}, {s(S_ID)}, {s(S_STR)}")
        A(f"s_min_u32 {s(S_T2)}, {s(S_T2)}, {NTASK-1}")
        if flags:
            pass
        issue_u(A, 128*(1-par), flags)
        A("s_waitcnt vmcnt(32)")
        A("s_barrier")
        def rd(j):
            sl = j % 4
            A(f"ds_read_b128 {v(PF+sl*8,4)}, {v(V_L16)} offset:{j*1024}")
            A(f"ds_read_b128 {v(PF+sl*8+4,4)}, {v(V_P2)} offset:{j*1024}")
        for j in range(3): rd(j)
        for j in range(40):
            if j+3 < 40:
                rd(j+3); A("s_waitcnt lgkmcnt(6)")
            else: A(f"s_waitcnt lgkmcnt({2*(39-j)})")
            a_ = a(128*par+4*j,4) if j < 32 else v(ZF+4*(j-32),4)
            for q in range(2):
                A(f"v_mfma_f32_16x16x32_bf16 {v(D+4*q,4)}, {a_}, {v(PF+(j%4)*8+4*q,4)}, {'0' if j==0 else v(D+4*q,4)}")
        A("s_nop 7")
        A(f"v_cvt_pk_bf16_f32 {v(D+8)}, {v(D)}, {v(D+1)}")
        A(f"v_cvt_pk_bf16_f32 {v(D+9)}, {v(D+2)}, {v(D+3)}")
        A(f"v_cvt_pk_bf16_f32 {v(D+10)}, {v(D+4)}, {v(D+5)}")
        A(f"v_cvt_pk_bf16_f32 {v(D+11)}, {v(D+6)}, {v(D+7)}")
        A("s_nop 1")
        A(f"v_permlane16_swap_b32 {v(D+8)}, {v(D+10)}")
        A(f"v_permlane16_swap_b32 {v(D+9)}, {v(D+11)}")
        A(f"buffer_store_dwordx4 {v(D+8,4)}, {v(V_OST)}, {s(S_W2,4)}, {s(S_OS)} offen")
        A(f"s_add_u32 {s(S_ID)}, {s(S_ID)}, {s(S_STR)}")
        A(f"s_cmp_ge_u32 {s(S_ID)}, {NTASK}")
        A(f"s_cbranch_scc1 {done}")
    A(f"s_branch {loop}")
    A.label(done)
    A("s_waitcnt vmcnt(0)")
```

```python
from common import *
import common
STAMP=False
EXP=2

def load_w_rows384(A, srds, s_colbyte, dest_of, rowmap="dense", tiles=None, pfx="lw", vt=200, st=40, after_read=None):
    NS = 5; CH = 24576
    if isinstance(srds, int): srds = [srds]
    nchunk = 10*len(srds)
    vo = [vt, vt+1, vt+2]; vb0 = vt+3; vb1 = vt+4; t0 = vt+5; t1 = vt+6; t2 = vt+7
    sOff = st; sT = st+1; sM = st+2
    A.c("---- weight load: DMA source offsets")
    for j in range(3):
        A(f"v_add_u32 {v(t0)}, {64*j}, {v(V_LANE)}")
        div24(A, t1, t2, t0, sT)
        A(f"v_mul_u32_u24 {v(t1)}, 12288, {v(t1)}")
        A(f"v_lshl_add_u32 {v(vo[j])}, {v(t2)}, 4, {v(t1)}")
    A(f"s_mul_i32 {s(sT)}, {s(S_WAVE)}, {16*12288}")
    A(f"s_add_u32 {s(sOff)}, {s(s_colbyte)}, {s(sT)}")
    A(f"s_mul_i32 {s(sM)}, {s(S_WAVE)}, 6144")
    A(f"v_lshrrev_b32 {v(t0)}, 4, {v(V_LANE)}")
    A(f"v_bfe_u32 {v(t1)}, {v(V_LANE)}, 2, 2")
    if rowmap == "dense":
        A(f"v_lshl_add_u32 {v(t0)}, {v(t0)}, 3, {v(t1)}")
    else:
        A(f"v_lshrrev_b32 {v(t2)}, 1, {v(t0)}")
        A(f"v_and_b32 {v(t0)}, 1, {v(t0)}")
        A(f"v_lshlrev_b32 {v(t0)}, 2, {v(t0)}")
        A(f"v_lshl_add_u32 {v(t0)}, {v(t2)}, 4, {v(t0)}")
        A(f"v_lshrrev_b32 {v(t2)}, 1, {v(t1)}")
        A(f"v_lshl_add_u32 {v(t0)}, {v(t2)}, 3, {v(t0)}")
        A(f"v_and_b32 {v(t1)}, 1, {v(t1)}")
        A(f"v_add_u32 {v(t0)}, {v(t0)}, {v(t1)}")
    A(f"v_mul_u32_u24 {v(t0)}, 384, {v(t0)}")
    A(f"v_and_b32 {v(t1)}, 3, {v(V_LANE)}")
    A(f"v_lshl_add_u32 {v(t0)}, {v(t1)}, 3, {v(t0)}")
    A(f"s_mul_i32 {s(sT)}, {s(S_WAVE)}, 96")
    A(f"v_add_u32 {v(vb0)}, {s(sT)}, {v(t0)}")
    A(f"v_add_u32 {v(vb1)}, {2*CH+CH}, {v(vb0)}")
    def issue(c):
        slot = c % NS
        for j in range(6):
            A(f"s_add_u32 m0, {s(sM)}, {slot*CH + j*1024}")
            A(f"s_add_u32 {s(sT)}, {s(sOff)}, {(c%10)*64*12288 + (j//3)*8*12288}")
            A(f"buffer_load_dwordx4 {v(vo[j%3])}, {s(srds[c//10],4)}, {s(sT)} offen lds")
    for c in range(min(NS-1, nchunk)):
        issue(c)
    for c in range(nchunk):
        later = min(nchunk-1, c+NS-2) - c
        A(f"s_waitcnt vmcnt({6*later})")
        A("s_barrier")
        if c+NS-1 < nchunk:
            issue(c+NS-1)
        slot = c % NS
        vb = vb0 if slot < 3 else vb1
        sb = (slot if slot < 3 else slot-3)*CH
        n = 0
        for kk in range(2):
            for t in range(3):
                for half in range(2):
                    if rowmap == "dense":
                        off = kk*32*384 + half*4*384 + t*32
                    else:
                        off = kk*32*384 + half*2*384 + t*32
                    A(f"ds_read_b64_tr_b16 {dest_of(c,kk,t,half)}, {v(vb)} offset:{sb+off}")
                    n += 1
        A("s_waitcnt lgkmcnt(0)")
        if after_read: after_read(c)
    A("s_barrier")

XF = 8
ACC = 32
PK = 80
V_XSRC = 2; V_XRD = 3; V_ST0 = 4; V_ST1 = 5
S_SEG = 22; S_XOFF = 23; S_DST = 24; S_M0X = 25; S_T = 26; S_FLAG = 27; S_NSEG = 28

def wreg(t, k):
    return (t*20 + k)*4

def setup_x_stream(A):
    A(f"v_lshrrev_b32 v6, 3, {v(V_LANE)}")
    A(f"s_and_b32 {s(S_T)}, {s(S_WAVE)}, 1")
    A(f"s_lshl_b32 {s(S_T)}, {s(S_T)}, 2")
    A(f"v_lshrrev_b32 v7, 4, {v(V_LANE)}")
    A(f"v_add_u32 v7, {s(S_T)}, v7")
    A(f"v_and_b32 {v(V_XSRC)}, 7, {v(V_LANE)}")
    A(f"v_xor_b32 v7, v7, {v(V_XSRC)}")
    A(f"v_mul_u32_u24 v6, 1280, v6")
    A(f"v_lshl_add_u32 v6, v7, 4, v6")
    A(f"s_mul_i32 {s(S_T)}, {s(S_WAVE)}, {8*1280}")
    A(f"v_add_u32 {v(V_XSRC)}, {s(S_T)}, v6")
    A(f"s_mul_i32 {s(S_M0X)}, {s(S_WAVE)}, 10240")
    A(f"v_and_b32 v6, 15, {v(V_LANE)}")
    A(f"v_lshrrev_b32 v7, 1, v6")
    A(f"v_lshrrev_b32 {v(V_XRD)}, 4, {v(V_LANE)}")
    A(f"v_xor_b32 v7, v7, {v(V_XRD)}")
    A(f"v_lshlrev_b32 v7, 4, v7")
    A(f"v_lshrrev_b32 {v(V_XRD)}, 3, v6")
    A(f"v_mul_u32_u24 {v(V_XRD)}, 10240, {v(V_XRD)}")
    A(f"v_and_b32 v6, 7, v6")
    A(f"v_lshl_add_u32 v6, v6, 7, v7")
    A(f"v_add_u32 {v(V_XRD)}, {v(V_XRD)}, v6")
    A(f"v_xor_b32 {v(XB+1)}, 64, {v(V_XRD)}")
    A(f"v_mov_b32 {v(XB)}, {v(V_XRD)}")
    A(f"v_add_u32 {v(XB+2)}, 40960, {v(XB)}")
    A(f"v_add_u32 {v(XB+3)}, 40960, {v(XB+1)}")

XB = 92
V_PFO = 96; V_PFD = 97; PFD = 3
def setup_pf(A):
    A(f"s_mul_i32 {s(S_T)}, {s(S_HEAD)}, 13108")
    A(f"s_lshr_b32 {s(S_T)}, {s(S_T)}, 16")
    A(f"s_mul_i32 {s(S_T)}, {s(S_T)}, 5")
    A(f"s_sub_u32 {s(S_T)}, {s(S_HEAD)}, {s(S_T)}")
    A(f"s_lshl_b32 {s(S_T)}, {s(S_T)}, 2")
    A(f"s_add_u32 {s(S_T)}, {s(S_T)}, {s(S_WAVE)}")
    A(f"s_lshl_b32 {s(S_T)}, {s(S_T)}, 11")
    A(f"s_add_u32 {s(S_T)}, {s(S_T)}, {PFD*40960}")
    A(f"v_lshl_add_u32 {v(V_PFO)}, {v(V_LANE)}, 7, {s(S_T)}")
def first_pf(A):
    A(f"v_subrev_u32 {v(V_PFO)}, {(PFD-1)*40960}, {v(V_PFO)}")
    for d in range(PFD):
        issue_pf(A)
        if d < PFD-1: A(f"v_add_u32 {v(V_PFO)}, 40960, {v(V_PFO)}")
def issue_pf(A):
    A("s_mov_b64 exec, 0xffff")
    A(f"buffer_load_dword {v(V_PFD)}, {v(V_PFO)}, {s(S_X,4)}, {s(S_XOFF)} offen")
    A("s_mov_b64 exec, -1")

XSRD = S_X; XFL = ""
def x_dma(A, buf, j, nop=True):
    A(f"s_add_u32 m0, {s(S_M0X)}, {buf*40960 + j*1024 - j*128}")
    if nop: A("s_nop 0")
    A(f"buffer_load_dwordx4 {v(V_XSRC)}, {s(XSRD,4)}, {s(S_XOFF)} offen offset:{j*128} {XFL} lds")

def issue_x(A, buf):
    for j in range(10):
        x_dma(A, buf, j)

def xread(A, buf, k):
    sl = k % 3
    for tau in range(2):
        A(f"ds_read_b128 {v(XF+sl*8+tau*4,4)}, {v(XB+buf*2+(k&1))} offset:{tau*20480+(k>>1)*1024}")

def kv_epilogue(accset, srd, sflags):
    L = []
    ac = lambda t, tau: ACC + accset*24 + (t*2+tau)*4
    for tau in range(2):
        for t in range(2):
            L.append(f"v_cvt_pk_bf16_f32 {v(PK+tau*4+t*2)}, {v(ac(t,tau))}, {v(ac(t,tau)+1)}")
            L.append(f"v_cvt_pk_bf16_f32 {v(PK+tau*4+t*2+1)}, {v(ac(t,tau)+2)}, {v(ac(t,tau)+3)}")
    for tau in range(2):
        L.append(f"v_cvt_pk_bf16_f32 {v(PK+8+tau*2)}, {v(ac(2,tau))}, {v(ac(2,tau)+1)}")
        L.append(f"v_cvt_pk_bf16_f32 {v(PK+8+tau*2+1)}, {v(ac(2,tau)+2)}, {v(ac(2,tau)+3)}")
    L.append(f"buffer_store_dwordx4 {v(PK,4)}, {v(V_ST0)}, {s(srd,4)}, {s(S_DST)} offen {sflags}")
    L.append(f"buffer_store_dwordx4 {v(PK+4,4)}, {v(V_ST0+2)}, {s(srd,4)}, {s(S_DST)} offen {sflags}")
    L.append(f"v_permlane16_swap_b32 {v(PK+8)}, {v(PK+10)}")
    L.append(f"v_permlane16_swap_b32 {v(PK+9)}, {v(PK+11)}")
    L.append(f"buffer_store_dwordx4 {v(PK+8,4)}, {v(V_ST1)}, {s(srd,4)}, {s(S_DST)} offen {sflags}")
    return L

def setup_kv_store(A):
    A(f"s_lshl_b32 {s(S_T)}, {s(S_WAVE)}, 10")
    A(f"v_lshl_add_u32 {v(V_ST0)}, {v(V_LANE)}, 4, {s(S_T)}")
    A(f"v_lshrrev_b32 v7, 4, {v(V_LANE)}")
    A(f"v_and_b32 v6, 1, v7")
    A(f"v_mul_u32_u24 v6, 6144, v6")
    A(f"v_lshrrev_b32 v7, 1, v7")
    A(f"v_lshl_add_u32 v6, v7, 8, v6")
    A(f"v_and_b32 v7, 15, {v(V_LANE)}")
    A(f"v_lshl_add_u32 v6, v7, 4, v6")
    A(f"s_lshr_b32 {s(S_T)}, {s(S_WAVE)}, 1")
    A(f"s_lshl_b32 {s(S_T)}, {s(S_T)}, 10")
    A(f"s_add_u32 {s(S_T)}, {s(S_T)}, 4096")
    A(f"v_add_u32 v6, {s(S_T)}, v6")
    A(f"s_and_b32 {s(S_T)}, {s(S_WAVE)}, 1")
    A(f"s_lshl_b32 {s(S_T)}, {s(S_T)}, 9")
    A(f"v_add_u32 {v(V_ST1)}, {s(S_T)}, v6")

def role_kv(A, flags=False):
    global V_XRD
    A.c("================ role K/V ================")
    srd_finish(A, S_W1, W_BYTES)
    A(f"s_load_dwordx2 {s(S_X,2)}, s[0:1], {KA['A_x']}")
    A(f"s_mul_i32 s30, {s(S_HEAD)}, 384")
    A(f"s_mul_i32 {s(S_T)}, {s(S_HEAD)}, 12288")
    A(f"s_add_u32 {s(S_DST)}, {s(S_DST)}, {s(S_T)}")
    A("s_waitcnt lgkmcnt(0)")
    srd_finish(A, S_X, X_BYTES)
    if STAMP: stamp(A,0)
    load_w_rows384(A, S_W1, 30, lambda c, kk, t, half: a(wreg(t, 2*c+kk)+2*half, 2))
    if STAMP: stamp(A,1)
    if flags: init_sync(A)
    setup_x_stream(A)
    setup_kv_store(A)
    setup_pf(A)
    A(f"v_add_u32 v6, 6144, {v(V_ST0)}")
    A(f"v_add_u32 v7, 0, {v(V_LANE)}")
    A(f"s_mov_b32 {s(S_XOFF)}, 0")
    A(f"s_mov_b32 {s(S_SEG)}, 0")
    issue_x(A, 0)
    A(f"s_sub_u32 {s(S_DST)}, {s(S_DST)}, {NH*12288}")
    loop = A.newlabel("KV_loop")
    first_pf(A)
    kinit(A)
    A.label(loop)
    for par in range(2):
        ktick(A, 0)
        if common.KST: A("s_waitcnt vmcnt(11)"); ktick(A, 1)
        A("s_waitcnt vmcnt(1)")
        ktick(A, 2)
        A("s_barrier")
        ktick(A, 3)
        for k in range(2):
            xread(A, par, k)
        fill = []
        skip = A.newlabel("KV_skip")
        if par == 0:
            A(f"s_cmp_eq_u32 {s(S_SEG)}, 0")
            A(f"s_cbranch_scc1 {skip}")
        if flags:
            publish_flag(A)
        A("s_nop 4")
        for ins in kv_epilogue(1-par, S_WS, "sc0 sc1"):
            if "permlane" in ins and PK+8 == int(ins.split()[1][1:-1]): A("s_nop 1")
            A(ins)
        A.label(skip)
        A(f"s_add_u32 {s(S_DST)}, {s(S_DST)}, {NH*12288}")
        A(f"s_add_u32 {s(S_XOFF)}, {s(S_XOFF)}, {32*1280}")
        if EXP == 0:
            issue_x(A, 1-par)
            gemm_seg(A, par)
        elif EXP == 1:
            gemm_seg(A, par)
        elif EXP == 2:
            gemm_seg(A, par, dma=1-par)
        A(f"s_add_u32 {s(S_SEG)}, {s(S_SEG)}, 1")
    A(f"s_cmp_lt_u32 {s(S_SEG)}, {NSEG}")
    A(f"s_cbranch_scc1 {loop}")
    A("s_waitcnt vmcnt(0)")
    A("s_barrier")
    if flags: publish_flag(A)
    A("s_nop 7")
    for ins in kv_epilogue(1, S_WS, "sc0 sc1"):
        if "permlane" in ins and PK+8 == int(ins.split()[1][1:-1]): A("s_nop 1")
        A(ins)
    A("s_waitcnt vmcnt(0)")
    kdump(A)
    if flags:
        A("s_barrier")
        A(f"s_add_u32 {s(S_SEG)}, {s(S_SEG)}, 1")
        publish_flag(A)

def gemm_seg(A, par, dma=None, accset=None):
    if accset is None: accset = par
    for k in range(20):
        if dma is not None and k < 10:
            A(f"s_add_u32 m0, {s(S_M0X)}, {dma*40960 + k*1024 - k*128}")
        if k+2 < 20:
            xread(A, par, k+2)
            A("s_waitcnt lgkmcnt(4)")
        elif k+1 < 20:
            A("s_waitcnt lgkmcnt(2)")
        else:
            A("s_waitcnt lgkmcnt(0)")
        sl = k % 3
        for t in range(3):
            for tau in range(2):
                acc = ACC + accset*24 + (t*2+tau)*4
                c = "0" if k == 0 else v(acc,4)
                A(f"v_mfma_f32_16x16x32_bf16 {v(acc,4)}, {a(wreg(t,k),4)}, {v(XF+sl*8+tau*4,4)}, {c}")
                if dma is not None and k == 11 and t == 1 and tau == 0: issue_pf(A)
                if dma is not None and k < 10 and t == 1 and tau == 0:
                    A(f"buffer_load_dwordx4 {v(V_XSRC)}, {s(XSRD,4)}, {s(S_XOFF)} offen offset:{k*128} {XFL} lds")

def publish_flag(A):
    lab = A.newlabel("pf")
    A(f"s_cmp_lg_u32 {s(S_WAVE)}, 0")
    A(f"s_cbranch_scc1 {lab}")
    A(f"s_sub_u32 {s(S_T)}, {s(S_SEG)}, 1")
    A(f"v_mov_b32 v98, {s(S_T)}")
    A(f"v_mov_b32 v99, 0")
    A(f"s_mov_b64 exec, 1")
    A(f"buffer_store_dword v98, v99, {s(S_WS,4)}, {s(S_FLAG)} offen sc0 sc1")
    A(f"s_mov_b64 exec, -1")
    A.label(lab)
```

```python
from common import *
import role_kv as kv
from role_kv import XF, ACC, PK, V_ST0, V_ST1, S_SEG, S_XOFF, S_M0X, S_T, wreg
from role_chain import f32bits
import math
L_Q = 81920; L_KM = L_Q + 12288
KF = 100
QF = 148
MF = 172
SC = 196
MK = 208
V_TRA = 212; V_TRB = 213; V_L16 = 214; V_QW0 = 215; V_QW1 = 216; V_QW2 = 217; V_QR = 218; V_PM = 219; V_FL = 220; V_Z = 221; V_FA = 222
T0 = 224
S_KS = 30; S_KMS = 31; S_PD = 32; S_PDM = 33; S_C = 34; S_NEED = 35; S_CNT = 36; S_FLO = 37; S_FKM = 38; S_FK = 39; S_MB = 50

def xlane(A, op, r, t, which):
    A(f"v_mov_b32 {v(t)}, {v(r)}"); A("s_nop 1"); A(f"v_permlane{which}_swap_b32 {v(r)}, {v(t)}"); A(f"{op} {v(r)}, {v(r)}, {v(t)}")

def attention(A, qt):
    for ks in range(6):
        A(f"ds_read_b128 {v(QF+4*ks,4)}, {v(V_QR)} offset:{ks*1024}")
    for ks in range(6):
        if ks < 4: vb, o0, o1 = V_TRA, 48*ks*16, (48*ks+16)*16
        else: vb, o0, o1 = V_TRB, (96*(ks-4)+32)*16, (96*(ks-4)+36)*16
        if ks == 4: A("s_waitcnt lgkmcnt(8)")
        A(f"ds_read_b64_tr_b16 {v(MF+4*ks,2)}, {v(vb)} offset:{o0}")
        A(f"ds_read_b64_tr_b16 {v(MF+4*ks+2,2)}, {v(vb)} offset:{o1}")
    nt = 1 + qt
    for ks in range(6):
        for t in range(nt):
            c = (v(MK,4) if t == qt else "0") if ks == 0 else v(SC+4+4*t,4)
            A(f"v_mfma_f32_16x16x32_bf16 {v(SC+4+4*t,4)}, {v(KF+(t*6+ks)*4,4)}, {v(QF+4*ks,4)}, {c}")
    A("s_waitcnt lgkmcnt(0)")
    for ks in range(6):
        A(f"v_mfma_f32_16x16x32_bf16 {v(SC,4)}, {v(MF+4*ks,4)}, {v(QF+4*ks,4)}, {'0' if ks==0 else v(SC,4)}")
    n = 4 + 4*nt
    m, t0, sm = T0, T0+1, T0+2
    A(f"v_max3_f32 {v(m)}, {v(SC+4)}, {v(SC+5)}, {v(SC+6)}")
    if nt == 2:
        A(f"v_max3_f32 {v(m)}, {v(m)}, {v(SC+8)}, {v(SC+9)}")
        A(f"v_max3_f32 {v(m)}, {v(m)}, {v(SC+10)}, {v(SC+11)}")
    A("s_nop 6")
    A(f"v_max3_f32 {v(m)}, {v(m)}, {v(SC+7)}, {v(SC)}")
    A(f"v_max3_f32 {v(t0)}, {v(SC+1)}, {v(SC+2)}, {v(SC+3)}")
    A(f"v_max_f32 {v(m)}, {v(m)}, {v(t0)}")
    xlane(A, "v_max_f32", m, t0, 16); xlane(A, "v_max_f32", m, t0, 32)
    A(f"v_mul_f32 {v(m)}, {s(S_C)}, {v(m)}")
    for i in range(n): A(f"v_fma_f32 {v(SC+i)}, {v(SC+i)}, {s(S_C)}, -{v(m)}")
    for i in range(n): A(f"v_exp_f32 {v(SC+i)}, {v(SC+i)}")
    A(f"v_add_f32 {v(sm)}, {v(SC)}, {v(SC+1)}")
    A(f"v_add_f32 {v(t0)}, {v(SC+2)}, {v(SC+3)}")
    A(f"v_add_f32 {v(sm)}, {v(sm)}, {v(t0)}")
    A(f"v_mul_f32 {v(sm)}, 0.5, {v(sm)}")
    for i in range(4, n): A(f"v_add_f32 {v(sm)}, {v(sm)}, {v(SC+i)}")
    xlane(A, "v_add_f32", sm, t0, 16); xlane(A, "v_add_f32", sm, t0, 32)
    A(f"v_rcp_f32 {v(sm)}, {v(sm)}")
    A("s_nop 0")
    for i in range(n): A(f"v_mul_f32 {v(SC+i)}, {v(SC+i)}, {v(sm)}")
    o = T0+4
    for i in range(2): A(f"v_cvt_pk_bf16_f32 {v(o+4+i)}, {v(SC+2*i)}, {v(SC+2*i+1)}")
    for i in range(2*nt): A(f"v_cvt_pk_bf16_f32 {v(o+i)}, {v(SC+4+2*i)}, {v(SC+5+2*i)}")
    if nt == 1: A(f"v_mov_b64 {v(o+2,2)}, 0")
    A(f"buffer_store_dwordx4 {v(o,4)}, {v(V_L16)}, {s(S_WS,4)}, {s(S_PD)} offen sc0 sc1")
    A(f"s_mov_b64 exec, {s(S_MB,2)}")
    A(f"buffer_store_dwordx2 {v(o+4,2)}, {v(V_PM)}, {s(S_WS,4)}, {s(S_PDM)} offen sc0 sc1")
    A("s_mov_b64 exec, -1")

def role_q(A, flags=False):
    A.c("================ role Q ================")
    A(f"s_load_dwordx2 {s(S_W1,2)}, s[0:1], {KA['Wq']}")
    A(f"s_load_dwordx2 {s(S_X,2)}, s[0:1], {KA['A_x']}")
    A(f"s_mul_i32 s30, {s(S_HEAD)}, 384")
    A("s_waitcnt lgkmcnt(0)")
    srd_finish(A, S_W1, W_BYTES); srd_finish(A, S_X, X_BYTES)
    if flags:
        init_sync(A)
        A(f"s_lshl_b32 {s(S_FK)}, {s(S_HEAD)}, 7"); A(f"s_add_u32 {s(S_FK)}, {s(S_FK)}, {FL_K}")
        A(f"s_mov_b32 {s(S_NEED)}, 1"); A("v_mov_b32 v250, 0")
        flag_wait(A, 250, 251, S_FK, S_NEED, S_T, S_CNT, sleep=16)
    kv.load_w_rows384(A, S_W1, 30, lambda c, kk, t, half: a(wreg(t, 2*c+kk)+2*half, 2))
    kv.setup_x_stream(A)
    kv.setup_kv_store(A)
    kv.setup_pf(A)
    A(f"v_add_u32 {v(V_QW0)}, {L_Q}, {v(V_ST0)}")
    A(f"v_add_u32 {v(V_QW2)}, {L_Q}, {v(V_ST1)}")
    A(f"v_lshlrev_b32 {v(V_L16)}, 4, {v(V_LANE)}")
    A(f"s_and_b32 {s(S_T)}, {s(S_WAVE)}, 1")
    A(f"s_mul_i32 {s(S_PD)}, {s(S_T)}, 40960")
    A(f"s_mul_i32 {s(S_T)}, {s(S_T)}, 6144")
    A(f"s_add_u32 {s(S_T)}, {s(S_T)}, {L_Q}")
    A(f"v_add_u32 {v(V_QR)}, {s(S_T)}, {v(V_L16)}")
    n_, g_, r_, c_, t_ = T0, T0+1, T0+2, T0+3, T0+4
    A(f"v_and_b32 {v(n_)}, 15, {v(V_LANE)}")
    A(f"v_lshrrev_b32 {v(g_)}, 4, {v(V_LANE)}")
    A(f"v_bfe_u32 {v(r_)}, {v(V_LANE)}, 2, 2")
    A(f"v_and_b32 {v(c_)}, 1, {v(V_LANE)}")
    A(f"v_lshlrev_b32 {v(c_)}, 3, {v(c_)}")
    A(f"v_add_u32 {v(c_)}, {L_KM}, {v(c_)}")
    A(f"v_lshl_add_u32 {v(V_TRA)}, {v(g_)}, 2, {v(r_)}")
    A(f"v_lshl_add_u32 {v(V_TRA)}, {v(V_TRA)}, 4, {v(c_)}")
    A(f"v_lshrrev_b32 {v(t_)}, 1, {v(g_)}")
    A(f"v_mul_u32_u24 {v(t_)}, 48, {v(t_)}")
    A(f"v_and_b32 {v(V_TRB)}, 1, {v(g_)}")
    A(f"v_lshl_add_u32 {v(V_TRB)}, {v(V_TRB)}, 3, {v(t_)}")
    A(f"v_add_u32 {v(V_TRB)}, {v(V_TRB)}, {v(r_)}")
    A(f"v_lshl_add_u32 {v(V_TRB)}, {v(V_TRB)}, 4, {v(c_)}")
    A(f"v_lshlrev_b32 {v(V_PM)}, 4, {v(n_)}")
    A(f"v_lshl_add_u32 {v(V_PM)}, {v(g_)}, 3, {v(V_PM)}")
    A(f"v_lshlrev_b32 {v(t_)}, 2, {v(g_)}")
    A(f"v_mov_b32 {v(c_)}, {f32bits(-1e30)}")
    for r in range(4):
        A(f"v_add_u32 {v(r_)}, {r}, {v(t_)}")
        A(f"v_cmp_gt_u32 vcc, {v(r_)}, {v(n_)}")
        A("s_nop 1")
        A(f"v_cndmask_b32 {v(MK+r)}, 0, {v(c_)}, vcc")
    A(f"s_mov_b32 {s(S_MB)}, -1"); A(f"s_mov_b32 {s(S_MB+1)}, 0")
    A(f"v_mov_b32 {v(V_Z)}, 0"); A(f"v_mov_b32 {v(V_FL)}, 0"); A(f"v_mov_b32 {v(V_FA)}, 0")
    A(f"s_mov_b32 {s(S_C)}, {f32bits(192**-0.5*math.log2(math.e))}")
    A(f"s_mul_i32 {s(S_KS)}, {s(S_HEAD)}, 12288")
    A(f"s_add_u32 {s(S_KS)}, {s(S_KS)}, {WS_K}")
    A(f"s_mul_i32 {s(S_KMS)}, {s(S_HEAD)}, 3072")
    A(f"s_add_u32 {s(S_KMS)}, {s(S_KMS)}, {WS_KM}")
    A(f"s_add_u32 {s(S_PD)}, {s(S_PD)}, {WS_P}")
    A(f"s_lshl_b32 {s(S_T)}, {s(S_HEAD)}, 8")
    A(f"s_add_u32 {s(S_PDM)}, {s(S_PD)}, {s(S_T)}")
    A(f"s_add_u32 {s(S_PDM)}, {s(S_PDM)}, {32*1024}")
    A(f"s_lshl_b32 {s(S_T)}, {s(S_HEAD)}, 10")
    A(f"s_add_u32 {s(S_PD)}, {s(S_PD)}, {s(S_T)}")
    A(f"s_lshl_b32 {s(S_T)}, {s(S_HEAD)}, 7")
    A(f"s_mov_b32 {s(S_FLO)}, {CN_Q}")
    A(f"s_add_u32 {s(S_FKM)}, {s(S_T)}, {FL_KM}")
    A(f"s_add_u32 {s(S_FK)}, {s(S_T)}, {FL_K}")
    A(f"s_mov_b32 {s(S_XOFF)}, 0")
    A(f"s_mov_b32 {s(S_SEG)}, 0")
    kv.issue_x(A, 0)
    kv.first_pf(A)
    loop = A.newlabel("Q_loop")
    A.label(loop)
    for par in range(2):
        A("s_waitcnt vmcnt(0)")
        A("s_barrier")
        for k in range(2): kv.xread(A, par, k)
        if flags:
            l2 = A.newlabel("Q_s0")
            if par == 0: A(f"s_cmp_eq_u32 {s(S_SEG)}, 0"); A(f"s_cbranch_scc1 {l2}")
            arrive_last(A, S_FLO, RD_Q-CN_Q, 32, vt=T0)
            A(f"s_add_u32 {s(S_FLO)}, {s(S_FLO)}, 128")
            A.label(l2)
        A(f"s_add_u32 {s(S_NEED)}, {s(S_SEG)}, 1")
        sk = A.newlabel("Q_nok")
        A(f"s_cmp_ge_u32 {s(S_WAVE)}, 2"); A(f"s_cbranch_scc1 {sk}")
        if flags: flag_wait(A, V_FA, V_Z, S_FK, S_NEED, S_T, S_CNT)
        for f in range(12):
            if f % 4 == 0: A(f"s_add_u32 {s(S_T)}, {s(S_KS)}, {f*1024}")
            A(f"buffer_load_dwordx4 {v(KF+4*f,4)}, {v(V_L16)}, {s(S_WS,4)}, {s(S_T)} offen offset:{(f%4)*1024} sc1")
        A.label(sk)
        A(f"s_add_u32 {s(S_XOFF)}, {s(S_XOFF)}, {32*1280}")
        kv.gemm_seg(A, par, dma=1-par, accset=0)
        sk = A.newlabel("Q_nom")
        A(f"s_cmp_lg_u32 {s(S_WAVE)}, 3"); A(f"s_cbranch_scc1 {sk}")
        if flags: flag_wait(A, V_FL, V_Z, S_FKM, S_NEED, S_T, S_CNT)
        A(f"s_mov_b32 m0, {L_KM}")
        A("s_nop 0")
        for j in range(3):
            A(f"buffer_load_dwordx4 {v(V_L16)}, {s(S_WS,4)}, {s(S_KMS)} offen offset:{j*1024} sc1 lds")
        A.label(sk)
        A("s_nop 7")
        for ins in kv.kv_epilogue(0, S_WS, ""):
            if ins.startswith("buffer_store"):
                d = ins.split()[1].rstrip(",")
                ins = {v(PK,4): f"ds_write_b128 {v(V_QW0)}, {d}", v(PK+4,4): f"ds_write_b128 {v(V_QW0)}, {d} offset:6144", v(PK+8,4): f"ds_write_b128 {v(V_QW2)}, {d}"}[d]
            A(ins)
        sk = A.newlabel("Q_w3");
        A(f"s_cmp_lg_u32 {s(S_WAVE)}, 3"); A(f"s_cbranch_scc1 {sk}")
        A("s_waitcnt vmcnt(0)")
        A.label(sk)
        A("s_waitcnt vmcnt(11) lgkmcnt(0)")
        A("s_barrier")
        l0 = A.newlabel("Q_a0"); l1 = A.newlabel("Q_done")
        A(f"s_cmp_ge_u32 {s(S_WAVE)}, 2"); A(f"s_cbranch_scc1 {l1}")
        A(f"s_cmp_eq_u32 {s(S_WAVE)}, 0"); A(f"s_cbranch_scc1 {l0}")
        attention(A, 1)
        A(f"s_branch {l1}")
        A.label(l0)
        attention(A, 0)
        A.label(l1)
        A(f"s_add_u32 {s(S_KS)}, {s(S_KS)}, {NH*12288}")
        A(f"s_add_u32 {s(S_KMS)}, {s(S_KMS)}, {NH*3072}")
        A(f"s_add_u32 {s(S_PD)}, {s(S_PD)}, 81920")
        A(f"s_add_u32 {s(S_PDM)}, {s(S_PDM)}, 81920")
        A(f"s_add_u32 {s(S_SEG)}, {s(S_SEG)}, 1")
    A(f"s_cmp_lt_u32 {s(S_SEG)}, {NSEG}")
    A(f"s_cbranch_scc1 {loop}")
    A("s_waitcnt vmcnt(0)")
    if flags:
        A("s_barrier")
        arrive_last(A, S_FLO, RD_Q-CN_Q, 32, vt=T0)
```

```python
from common import *
STAMP=False

def load_wo(A, srd, s_base, dest_of, sparse=False, vt=200, st=40, after_read=None):
    NS = 3; CH = 40960
    vo = vt; vbA = vt+1; vbB = vt+2; t0 = vt+5; t1 = vt+6; t2 = vt+7; vb2 = vt+3; vb3 = vt+4
    sOff = st; sT = st+1; sM = st+2; sOff2 = st+3
    A(f"v_lshlrev_b32 {v(vo)}, 4, {v(V_LANE)}")
    A(f"s_mul_i32 {s(sM)}, {s(S_WAVE)}, 10240")
    A(f"s_add_u32 {s(sOff)}, {s(s_base)}, {s(sM)}")
    A(f"s_lshr_b32 {s(sT)}, {s(S_WAVE)}, 1")
    A(f"s_mul_i32 {s(sT)}, {s(sT)}, {32*1280}")
    A(f"s_add_u32 {s(sOff2)}, {s(sOff)}, {s(sT)}")
    A(f"v_lshrrev_b32 {v(t0)}, 4, {v(V_LANE)}")
    A(f"v_bfe_u32 {v(t1)}, {v(V_LANE)}, 2, 2")
    A(f"v_and_b32 {v(t2)}, 3, {v(V_LANE)}")
    A(f"v_lshlrev_b32 {v(t2)}, 3, {v(t2)}")
    A(f"s_mul_i32 {s(sT)}, {s(S_WAVE)}, 320")
    A(f"v_add_u32 {v(t2)}, {s(sT)}, {v(t2)}")
    if not sparse:
        A(f"v_lshl_add_u32 {v(vbA)}, {v(t0)}, 2, {v(t1)}")
        A(f"v_lshl_add_u32 {v(vbB)}, {v(t0)}, 3, {v(t1)}")
        A(f"v_mul_u32_u24 {v(vbA)}, 1280, {v(vbA)}")
        A(f"v_mul_u32_u24 {v(vbB)}, 1280, {v(vbB)}")
        A(f"v_add_u32 {v(vbA)}, {v(vbA)}, {v(t2)}")
        A(f"v_add_u32 {v(vbB)}, {v(vbB)}, {v(t2)}")
    else:
        A(f"v_lshrrev_b32 {v(vbA)}, 1, {v(t0)}")
        A(f"v_and_b32 {v(t0)}, 1, {v(t0)}")
        A(f"v_lshlrev_b32 {v(t0)}, 2, {v(t0)}")
        A(f"v_lshl_add_u32 {v(t0)}, {v(vbA)}, 4, {v(t0)}")
        A(f"v_lshrrev_b32 {v(vbA)}, 1, {v(t1)}")
        A(f"v_lshl_add_u32 {v(t0)}, {v(vbA)}, 3, {v(t0)}")
        A(f"v_and_b32 {v(t1)}, 1, {v(t1)}")
        A(f"v_add_u32 {v(t0)}, {v(t0)}, {v(t1)}")
        A(f"v_mul_u32_u24 {v(vbA)}, 1280, {v(t0)}")
        A(f"v_add_u32 {v(vbA)}, {v(vbA)}, {v(t2)}")
        A(f"v_mov_b32 {v(vbB)}, {v(vbA)}")
    def issue(c):
        slot = c % NS
        if sparse: src, so = 32*c*1280, sOff
        elif c < 4: src, so = 48*c*1280, sOff
        else: src, so = (96*(c-4)+32)*1280, sOff2
        A(f"s_add_u32 {s(sT)}, {s(so)}, {src}")
        for j in range(10):
            if j % 4 == 0:
                A(f"s_add_u32 m0, {s(sM)}, {slot*CH + j*1024}")
                if j: A(f"s_add_u32 {s(sT)}, {s(sT)}, 4096")
                else: A("s_nop 0")
            A(f"buffer_load_dwordx4 {v(vo)}, {s(srd,4)}, {s(sT)} offen offset:{(j%4)*1024} lds")
    for c in range(NS-1): issue(c)
    for c in range(6):
        later = min(5, c+NS-2) - c
        A(f"s_waitcnt vmcnt({10*later})")
        A("s_barrier")
        if c+NS-1 < 6: issue(c+NS-1)
        slot = c % NS
        vb = vbA if (c < 4) else vbB
        A(f"v_add_u32 {v(vb2)}, {slot*CH}, {v(vb)}")
        for t in range(10):
            for half in range(2):
                if sparse: off = half*2*1280
                else: off = half*(16*1280 if c < 4 else 4*1280)
                A(f"ds_read_b64_tr_b16 {dest_of(c,t,half)}, {v(vb2)} offset:{off + t*32}")
            if t == 6: A("s_waitcnt lgkmcnt(0)")
        A("s_waitcnt lgkmcnt(0)")
        if after_read: after_read(c)
    A("s_barrier")

VF = 8
ACC = 56
PK = 72
V_SRC = 2; V_RD = 3; V_ST = 4; V_FL = 5; V_Z = 6
S_SEG = 22; S_SRC = 23; S_DST = 24; S_M0 = 25; S_T = 26; S_FLAG = 27; S_FIN = 28; S_NEED = 29; S_CNT = 30; S_D2 = 31

def wreg(t, ks): return (t*6+ks)*4

def v_dma(A, buf):
    A(f"s_add_u32 m0, {s(S_M0)}, {buf*12288}")
    A("s_nop 0")
    for j in range(3):
        A(f"buffer_load_dwordx4 {v(V_SRC)}, {s(S_WS,4)}, {s(S_SRC)} offen offset:{j*1024} sc1 lds")

def epi(T, st):
    ac = ACC + st*8; pk = PK + st*4
    L = [f"v_cvt_pk_bf16_f32 {v(pk)}, {v(ac)}, {v(ac+1)}", f"v_cvt_pk_bf16_f32 {v(pk+1)}, {v(ac+2)}, {v(ac+3)}",
         f"v_cvt_pk_bf16_f32 {v(pk+2)}, {v(ac+4)}, {v(ac+5)}", f"v_cvt_pk_bf16_f32 {v(pk+3)}, {v(ac+6)}, {v(ac+7)}",
         f"s_add_u32 {s(S_D2)}, {s(S_DST)}, {T*1024}",
         f"buffer_store_dwordx4 {v(pk,4)}, {v(V_ST)}, {s(S_WS,4)}, {s(S_D2)} offen sc0 sc1"]
    return L

def role_u(A, flags=False):
    A.c("================ role U ================")
    A(f"s_load_dwordx2 {s(S_W1,2)}, s[0:1], {KA['Wo']}")
    A(f"s_mul_i32 s32, {s(S_HEAD)}, 245760")
    A("s_waitcnt lgkmcnt(0)")
    srd_finish(A, S_W1, W_BYTES)
    if STAMP: stamp(A,0)
    load_wo(A, S_W1, 32, lambda c, t, half: a(wreg(t, c)+2*half, 2))
    if STAMP: stamp(A,1)
    if flags: init_sync(A)
    A(f"s_mul_i32 {s(S_M0)}, {s(S_WAVE)}, 3072")
    A(f"v_lshlrev_b32 {v(V_RD)}, 4, {v(V_LANE)}")
    A(f"v_add_u32 {v(V_SRC)}, {s(S_M0)}, {v(V_RD)}")
    A(f"s_mul_i32 {s(S_T)}, {s(S_WAVE)}, {10*1024}")
    A(f"v_add_u32 {v(V_ST)}, {s(S_T)}, {v(V_RD)}")
    A(f"v_mov_b32 {v(V_Z)}, 0")
    A(f"s_mul_i32 {s(S_SRC)}, {s(S_HEAD)}, 12288")
    A(f"s_add_u32 {s(S_SRC)}, {s(S_SRC)}, {WS_V}")
    A(f"s_mul_i32 {s(S_DST)}, {s(S_HEAD)}, 40960")
    A(f"s_add_u32 {s(S_DST)}, {s(S_DST)}, {WS_U - 40*32768}")
    A(f"s_mov_b32 {s(S_SEG)}, 0")
    if flags:
        A(f"v_mov_b32 {v(V_FL)}, 0")
        A(f"s_mov_b32 {s(S_NEED)}, 1")
        flag_wait(A, V_FL, V_Z, S_FIN, S_NEED, S_T, S_CNT)
    v_dma(A, 0)
    loop = A.newlabel("U_loop")
    A("s_waitcnt vmcnt(0)")
    A.label(loop)
    for par in range(2):
        A("s_waitcnt vmcnt(9)")
        A("s_barrier")
        for ks in range(6):
            for tau in range(2):
                A(f"ds_read_b128 {v(VF+(ks*2+tau)*4,4)}, {v(V_RD)} offset:{par*12288 + (tau*6+ks)*1024}")
        skip = A.newlabel("U_skip")
        if par == 0:
            A(f"s_cmp_eq_u32 {s(S_SEG)}, 0")
            A(f"s_cbranch_scc1 {skip}")
        if flags:
            l2 = A.newlabel("U_s2")
            A(f"s_cmp_lt_u32 {s(S_SEG)}, 2"); A(f"s_cbranch_scc1 {l2}")
            arrive(A, S_FLAG)
            A(f"s_add_u32 {s(S_FLAG)}, {s(S_FLAG)}, 128")
            A.label(l2)
        for ins in epi(9, 1): A(ins)
        A.label(skip)
        A(f"s_add_u32 {s(S_DST)}, {s(S_DST)}, {40*32768}")
        A(f"s_add_u32 {s(S_SRC)}, {s(S_SRC)}, {NH*12288}")
        if flags:
            A(f"s_add_u32 {s(S_NEED)}, {s(S_SEG)}, 2")
            A(f"s_min_u32 {s(S_NEED)}, {s(S_NEED)}, {NSEG}")
            flag_wait(A, V_FL, V_Z, S_FIN, S_NEED, S_T, S_CNT)
            flag_load(A, V_FL, V_Z, S_FIN)
        v_dma(A, 1-par)
        for T in range(10):
            st = T & 1
            fill = epi(T-1, 1-st) if T > 0 else []
            n = 0
            for ks in range(6):
                if T == 0:
                    A(f"s_waitcnt lgkmcnt({10-2*ks})")
                for tau in range(2):
                    acc = ACC + st*8 + tau*4
                    c = "0" if ks == 0 else v(acc,4)
                    A(f"v_mfma_f32_16x16x32_bf16 {v(acc,4)}, {v(VF+(ks*2+tau)*4,4)}, {a(wreg(T,ks),4)}, {c}")
                    n += 1
                    if n >= 4 and fill: A(fill.pop(0))
        A(f"s_add_u32 {s(S_SEG)}, {s(S_SEG)}, 1")
    A(f"s_cmp_lt_u32 {s(S_SEG)}, {NSEG}")
    A(f"s_cbranch_scc1 {loop}")
    A("s_nop 7")
    for ins in epi(9, 1): A(ins)
    A("s_waitcnt vmcnt(0)")
    if STAMP: stamp(A,2)
    if flags:
        A("s_barrier")
        arrive(A, S_FLAG)
        A(f"s_add_u32 {s(S_FLAG)}, {s(S_FLAG)}, 128")
        arrive(A, S_FLAG)
```

```python
from common import *
import common
import role_kv, role_u, role_chain, role_init, role_q, role_f, role_b, hazard, sys
NAME = "concat_heads__memory_aug_recurrent_mem_tr__sliding_block__prompt"
out = sys.argv[1]
rc = role_chain
rc.PBMODE = 2; rc.DELAYL = 3; rc.DELAYLV = 3; rc.DELAYB = 8; rc.DELAYBS = 3; rc.DELAY0 = 5
TS = 0; DBGT = 0; OFF = ''; BUD = None; PLAIN = 0; UX = 0
for kv in sys.argv[2:]:
    k, x = kv.split('=')
    if k == "TS": TS = int(x)
    elif k == "DBGT": DBGT = int(x)
    elif k == "OFF": OFF = x
    elif k == "UX": UX = int(x)
    elif k == "KST": common.KST = int(x)
    elif k == "BUD": BUD = int(x)
    elif k == "PLAIN": PLAIN = int(x)
    else: setattr(rc, k, int(x))
ref = open("cdna_kernels/" + NAME + ".s.ref").read().split("\n")
head = [l for l in ref if l.startswith(";") and "@launch" not in l and "Override launch" not in l and "grid=ceil" not in l]
MAIN = NAME + "_kernel"
hdr = "\n".join(head) + "\n"
hdr += f"; @launch grid=(256,1,1) block=(256,1,1) lds=163840\n"
hdr += ".amdgcn_target \"amdgcn-amd-amdhsa--gfx950\"\n.text\n"
body = ""

common.TS = TS
A = Asm(); A.uid = 100
A("s_cmp_ge_u32 s2, 256"); A("s_cbranch_scc1 L_exit")
prologue(A)
tstamp(A, 0)
if DBGT: A("s_memrealtime s[96:97]"); A("s_waitcnt lgkmcnt(0)")
A("s_and_b32 s23, s2, 7"); A("s_lshr_b32 s24, s2, 3")
if BUD is not None: A(f"s_mov_b32 s100, {BUD}"); rc.SPIN_MAX = BUD
A("s_cmp_ge_u32 s23, 2"); A("s_cbranch_scc1 L_bulk")
if "C" in OFF: A("s_branch L_end")
A("s_cmp_ge_u32 s24, 16"); A("s_cbranch_scc1 L_chV")
rc.role_chain(A, False, "L_end", flags=True)
A.label("L_exit"); A("s_endpgm")
A.label("L_chV")
rc.role_chain(A, True, "L_end", flags=True)
A.label("L_bulk")
A("s_mul_i32 s25, s24, 6"); A("s_add_u32 s25, s25, s23"); A("s_sub_u32 s25, s25, 2")
A(f"s_and_b32 {s(S_HEAD)}, s25, 31")
A("s_cmp_ge_u32 s25, 64"); A("s_cbranch_scc1 L_notkv")
A(f"s_load_dwordx2 s[8:9], s[0:1], {KA['Wk']}")
A(f"s_load_dwordx2 s[10:11], s[0:1], {KA['Wv']}")
A(f"s_lshl_b32 s3, {s(S_HEAD)}, 7")
A("s_waitcnt lgkmcnt(0)")
A("s_cmp_ge_u32 s25, 32")
A("s_cselect_b32 s8, s10, s8"); A("s_cselect_b32 s9, s11, s9")
A(f"s_cselect_b32 {s(role_kv.S_DST)}, {WS_V}, {WS_K}")
A(f"s_cselect_b32 {s(role_kv.S_FLAG)}, {FL_V-FL_K}, 0")
A(f"s_add_u32 s3, s3, {FL_K}")
A(f"s_add_u32 {s(role_kv.S_FLAG)}, {s(role_kv.S_FLAG)}, s3")
if "K" not in OFF: role_kv.role_kv(A, flags=True)
A("s_branch L_end")
A.label("L_notkv")
A("s_cmp_ge_u32 s25, 96"); A("s_cbranch_scc1 L_notu")
A(f"s_lshl_b32 s3, {s(S_HEAD)}, 7")
A(f"s_mov_b32 {s(role_u.S_FLAG)}, {CN_U}"); A(f"s_add_u32 {s(role_u.S_FIN)}, s3, {FL_V}")
n0 = len(A.lines)
if "U" not in OFF: role_u.role_u(A, flags=True)
if UX:
    i0 = [i for i, l in enumerate(A.lines) if l.startswith("U_loop")][0]
    def keep(l):
        if UX & 1 and "buffer_store_dwordx4" in l: return False
        if UX & 2 and l.rstrip().endswith(" lds"): return False
        if UX & 4 and ("buffer_load_dword " in l or "buffer_store_dword " in l): return False
        if UX & 8 and "v_mfma" in l: return False
        return True
    A.lines = A.lines[:i0] + [l for l in A.lines[i0:] if keep(l)]
A("s_branch L_end")
A.label("L_notu")
A("s_cmp_ge_u32 s25, 128"); A("s_cbranch_scc1 L_notq")
if "Q" not in OFF: role_q.role_q(A, flags=True)
A("s_branch L_end")
A.label("L_notq")
A("s_cmp_ge_u32 s25, 160"); A("s_cbranch_scc1 L_notb")
if "B" not in OFF: role_b.role_b(A, flags=True)
A("s_branch L_end")
A.label("L_notb")
A("s_cmp_ge_u32 s25, 165"); A("s_cbranch_scc1 L_f")
A(f"s_sub_u32 {s(role_b.S_J)}, s25, 160")
if "3" not in OFF: role_b.role_b3(A, flags=True)
A("s_branch L_end")
A.label("L_f")
A(f"s_sub_u32 {s(role_f.S_ID)}, s25, 165"); A(f"s_mov_b32 {s(role_f.S_STR)}, {NF}")
if "F" not in OFF: role_f.role_f(A, flags=True)
A.label("L_end")
tstamp(A, 1)
if DBGT:
    for k, wg in enumerate((0, 128, 2, 58, 98+0, 170+2, 218, 255)):
        lab = A.newlabel("dt")
        A(f"s_cmp_lg_u32 s2, {wg}"); A(f"s_cbranch_scc1 {lab}")
        A("s_memrealtime s[92:93]"); A("s_waitcnt lgkmcnt(0)"); A("s_sub_u32 s92, s92, s96")
        A("v_mov_b32 v252, s92"); A(f"v_mov_b32 v253, {4*(k+1)}")
        A(f"global_store_dword v253, v252, {s(S_DBG,2)}"); A("s_waitcnt vmcnt(0)")
        A.label(lab)
A("s_endpgm")
body += kernel_header(MAIN) + A.text()
txt = hdr + body + '.section .rodata,"a"\n.p2align 6\n' + kernel_desc(MAIN)
if PLAIN: txt = txt.replace(" sc0 sc1", "")
open(out, "w").write(txt)
print(len(txt), "bytes")
hazard.check(txt)
```

```python
from asmlib import *
from layout import *

KA = dict(A_x=0, mem0=8, Wq=16, Wk=24, Wv=32, Wo=40, seg=48, B_x=56, wqkv=64, wo=72, out=80, dbg=88, ws=96)
W_BYTES = 640*6144*2
X_BYTES = 2048*640*2

S_WS = 4; S_W1 = 8; S_X = 12; S_W2 = 16
S_WAVE = 20; S_HEAD = 21
V_LANE = 1
S_DBG = 98
NF = 27

def srd_finish(A, base, nbytes):
    A(f"s_and_b32 {s(base+1)}, {s(base+1)}, 0xffff")
    A(f"s_mov_b32 {s(base+2)}, {nbytes}")
    A(f"s_mov_b32 {s(base+3)}, 0x20000")

def prologue(A):
    A(f"s_load_dwordx2 {s(S_WS,2)}, s[0:1], {KA['ws']}")
    A(f"v_lshrrev_b32 v2, 6, v0")
    A(f"v_and_b32 v{V_LANE}, 63, v0")
    A(f"v_readfirstlane_b32 {s(S_WAVE)}, v2")
    A(f"s_load_dwordx2 {s(S_DBG,2)}, s[0:1], {KA['dbg']}")
    A(f"s_mov_b32 s100, 60000")
    A("s_waitcnt lgkmcnt(0)")
    srd_finish(A, S_WS, WS_SIZE)

def mul_const(A, dst, src, const, stmp):
    A(f"s_mov_b32 {s(stmp)}, {const}")
    A(f"v_mul_lo_u32 {v(dst)}, {v(src)}, {s(stmp)}")

def div24(A, q, r, u, stmp):
    A(f"v_mul_u32_u24 {v(q)}, 2731, {v(u)}")
    A(f"v_lshrrev_b32 {v(q)}, 16, {v(q)}")
    A(f"v_mul_u32_u24 {v(r)}, 24, {v(q)}")
    A(f"v_sub_u32 {v(r)}, {v(u)}, {v(r)}")

def stamp(A, idx, cond_wg=0, stmp=90):
    lab = A.newlabel("st")
    A(f"s_cmp_lg_u32 s2, {cond_wg}")
    A(f"s_cbranch_scc1 {lab}")
    A(f"s_cmp_lg_u32 {s(S_WAVE)}, 0")
    A(f"s_cbranch_scc1 {lab}")
    A(f"s_load_dwordx2 {s(stmp,2)}, s[0:1], {KA['dbg']}")
    A(f"s_memrealtime {s(stmp+2,2)}")
    A(f"s_memtime {s(stmp+4,2)}")
    A("s_waitcnt lgkmcnt(0)")
    A(f"v_mov_b32 v252, {s(stmp+2)}")
    A(f"v_mov_b32 v253, {s(stmp+4)}")
    A(f"v_mov_b32 v255, {idx*8}")
    A(f"global_store_dwordx2 v255, v[252:253], {s(stmp,2)}")
    A.label(lab)

SPIN_MAX = 60000
S_BUD = 100
def flag_load(A, vdst, vzero, s_off):
    A(f"buffer_load_dword {v(vdst)}, {v(vzero)}, {s(S_WS,4)}, {s(s_off)} offen sc1")

def flag_wait(A, vflag, vzero, s_off, s_need, s_tmp, s_cnt, sleep=2):
    ok = A.newlabel("fw_ok"); lp = A.newlabel("fw_lp")
    A.label(lp)
    A(f"v_cmp_gt_u32 vcc, {s(s_need)}, {v(vflag)}")
    A(f"s_cbranch_vccz {ok}")
    A(f"s_cmp_eq_u32 {s(S_BUD)}, 0")
    A(f"s_cbranch_scc1 {ok}")
    A(f"s_sub_u32 {s(S_BUD)}, {s(S_BUD)}, 1")
    if sleep: A(f"s_sleep {sleep}")
    flag_load(A, vflag, vzero, s_off)
    A("s_waitcnt vmcnt(0)")
    A(f"s_branch {lp}")
    A.label(ok)

def publish(A, s_val, s_off, vt=98):
    lab = A.newlabel("pf")
    A(f"s_cmp_lg_u32 {s(S_WAVE)}, 0")
    A(f"s_cbranch_scc1 {lab}")
    A(f"v_mov_b32 {v(vt)}, {s(s_val)}")
    A(f"v_mov_b32 {v(vt+1)}, 0")
    A(f"s_mov_b64 exec, 1")
    A(f"buffer_store_dword {v(vt)}, {v(vt+1)}, {s(S_WS,4)}, {s(s_off)} offen sc0 sc1")
    A(f"s_mov_b64 exec, -1")
    A.label(lab)

def init_load(A, vd, vz):
    A(f"v_mov_b32 {v(vz)}, 0")
    A(f"global_load_dword {v(vd)}, {v(vz)}, {s(S_DBG,2)} sc1")

def init_wait(A, vd, vz):
    ok = A.newlabel("iw_ok"); lp = A.newlabel("iw_lp")
    A.label(lp)
    A(f"v_cmp_gt_u32 vcc, {NF}, {v(vd)}")
    A(f"s_cbranch_vccz {ok}")
    A(f"s_cmp_eq_u32 {s(S_BUD)}, 0")
    A(f"s_cbranch_scc1 {ok}")
    A(f"s_sub_u32 {s(S_BUD)}, {s(S_BUD)}, 1")
    A("s_sleep 2")
    A(f"global_load_dword {v(vd)}, {v(vz)}, {s(S_DBG,2)} sc1")
    A("s_waitcnt vmcnt(0)")
    A(f"s_branch {lp}")
    A.label(ok)

def init_sync(A, vd=250, vz=251):
    tstamp(A, 2)
    init_load(A, vd, vz); A("s_waitcnt vmcnt(0)"); init_wait(A, vd, vz)

KST = 0
def ktick(A, k):
    if not KST: return
    A("s_memtime s[88:89]"); A("s_waitcnt lgkmcnt(0)")
    A("s_sub_u32 s87, s88, s86"); A(f"s_add_u32 s{70+k}, s{70+k}, s87"); A("s_mov_b32 s86, s88")
def kinit(A):
    if not KST: return
    for k in range(8): A(f"s_mov_b32 s{70+k}, 0")
    A("s_memtime s[88:89]"); A("s_waitcnt lgkmcnt(0)"); A("s_mov_b32 s86, s88")
def kdump(A):
    if not KST: return
    A(f"s_lshl_b32 s94, s2, 2"); A(f"s_add_u32 s94, s94, {s(S_WAVE)}"); A("s_lshl_b32 s94, s94, 5"); A(f"s_add_u32 s94, s94, {WS_SCR + 3*1048576}")
    A("v_mov_b32 v253, 0")
    for k in range(8):
        A(f"v_mov_b32 v252, s{70+k}"); A(f"buffer_store_dword v252, v253, {s(S_WS,4)}, s94 offen offset:{4*k}")
    A("s_waitcnt vmcnt(0)")

def arrive(A, s_off, vt=98):
    lab = A.newlabel("ar")
    A(f"s_cmp_lg_u32 {s(S_WAVE)}, 0")
    A(f"s_cbranch_scc1 {lab}")
    A(f"v_mov_b32 {v(vt)}, 1")
    A(f"v_mov_b32 {v(vt+1)}, 0")
    A(f"s_mov_b64 exec, 1")
    A(f"buffer_atomic_add {v(vt)}, {v(vt+1)}, {s(S_WS,4)}, {s(s_off)} offen sc1")
    A(f"s_mov_b64 exec, -1")
    A.label(lab)

TS = 0
def tstamp(A, k):
    if not TS: return
    lab = A.newlabel("ts")
    A(f"s_cmp_lg_u32 {s(S_WAVE)}, 0"); A(f"s_cbranch_scc1 {lab}")
    A("s_memrealtime s[92:93]"); A("s_lshl_b32 s94, s2, 4"); A(f"s_add_u32 s94, s94, {WS_SCR + 2097152 + 4*k}")
    A("s_waitcnt lgkmcnt(0)"); A("v_mov_b32 v118, s92"); A("v_mov_b32 v119, 0")
    A(f"buffer_store_dword v118, v119, {s(S_WS,4)}, s94 offen"); A("s_waitcnt vmcnt(0)")
    A.label(lab)

def arrive_last(A, s_off, delta, n, vt=98):
    lab = A.newlabel("al")
    A(f"s_cmp_lg_u32 {s(S_WAVE)}, 0")
    A(f"s_cbranch_scc1 {lab}")
    A(f"v_mov_b32 {v(vt)}, 1")
    A(f"v_mov_b32 {v(vt+1)}, 0")
    A(f"v_mov_b32 {v(vt+2)}, {delta}")
    A(f"s_mov_b64 exec, 1")
    A(f"buffer_atomic_add {v(vt)}, {v(vt+1)}, {s(S_WS,4)}, {s(s_off)} offen sc0 sc1")
    A("s_waitcnt vmcnt(0)")
    A(f"v_cmp_eq_u32 vcc, {n-1}, {v(vt)}")
    A(f"s_cbranch_vccz {lab}_x")
    A(f"buffer_store_dword {v(vt)}, {v(vt+2)}, {s(S_WS,4)}, {s(s_off)} offen sc0 sc1")
    A.label(lab + "_x")
    A(f"s_mov_b64 exec, -1")
    A.label(lab)

KSTART = 4
def wait_k_started(A, s_head, s0=88):
    init_sync(A)
    A(f"s_lshl_b32 {s(s0)}, {s(s_head)}, 7"); A(f"s_add_u32 {s(s0)}, {s(s0)}, {FL_K}")
    A(f"s_mov_b32 {s(s0+1)}, {KSTART}"); A("v_mov_b32 v250, 0")
    flag_wait(A, 250, 251, s0, s0+1, 0, 0, sleep=16)

WFL = ''
```

```python
from common import *
import role_kv as kv
from role_kv import XF, XB, V_XSRC, S_SEG, S_XOFF, S_M0X, S_T
from role_chain import f32bits
import math
LATE = 1
OUTF = 'nt'
L_RING = 81920; L_QB = L_RING + 12*4096
ACC = 32
SC = 100
KR = 172
QF = 196; D0 = 200; D1 = 204; MKC = 208; MKW = 212
V_L16 = 216; V_E0 = 217; V_E1 = 218; V_O0 = 219; V_BB = 220
T0 = 232
S_RB = 30; S_QT = 31; S_C = 32; S_FLO = 33; S_OD = 34; S_SL = 35; S_IT = 36; S_T2 = 37; S_MG0 = 50; S_MG2 = 52; S_MN2 = 54

def gemm(A, buf, swap):
    def mm(k, tau):
        acc = v(ACC+4*tau,4); w_ = a(4*k,4); x_ = v(XF+(k%3)*8+tau*4,4)
        c = "0" if k == 0 else acc
        A(f"v_mfma_f32_16x16x32_bf16 {acc}, {x_ if swap else w_}, {w_ if swap else x_}, {c}")
    for k in range(20):
        if k < 10: A(f"s_add_u32 m0, {s(S_M0X)}, {(1-buf)*40960 + k*1024 - k*128}")
        if k+2 < 20:
            kv.xread(A, buf, k+2); A("s_waitcnt lgkmcnt(4)")
        else: A(f"s_waitcnt lgkmcnt({2*(19-k)})")
        mm(k, 0)
        if k < 10: A(f"buffer_load_dwordx4 {v(V_XSRC)}, {s(S_X,4)}, {s(S_XOFF)} offen offset:{k*128} lds")
        if k == 11: kv.issue_pf(A)
        mm(k, 1)

def epilogue(A, blk, w):
    P = T0
    for tau in range(2):
        A(f"v_cvt_pk_bf16_f32 {v(P+2*tau)}, {v(ACC+4*tau)}, {v(ACC+4*tau+1)}")
        A(f"v_cvt_pk_bf16_f32 {v(P+2*tau+1)}, {v(ACC+4*tau+2)}, {v(ACC+4*tau+3)}")
    if w == 0:
        for tau in range(2): A(f"ds_write_b64 {v(V_E0)}, {v(P+2*tau,2)} offset:{(2*blk+tau)*1024}")
    elif w in (1, 3):
        A(f"v_add_u32 {v(P+4)}, {s(S_RB)}, {v(V_E0)}")
        for tau in range(2): A(f"ds_write_b64 {v(P+4)}, {v(P+2*tau,2)} offset:{tau*(1024 if w == 1 else 8)}")
    else:
        A(f"v_mov_b32 {v(P+4)}, {s(S_RB)}")
        A(f"v_mov_b32 {v(P+5)}, {L_QB + 2*blk*1024}")
        A(f"v_cndmask_b32 {v(P+5)}, {v(P+4)}, {v(P+5)}, {s(S_MG0,2)}")
        A(f"v_add_u32 {v(P+5)}, {v(P+5)}, {v(V_E0)}")
        A(f"v_add_u32 {v(P+4)}, {v(P+4)}, {v(V_E1)}")
        A(f"s_mov_b64 exec, {s(S_MN2,2)}")
        for tau in range(2): A(f"ds_write_b64 {v(P+5)}, {v(P+2*tau,2)} offset:{tau*1024}")
        A(f"s_mov_b64 exec, {s(S_MG2,2)}")
        for tau in range(2):
            for r in range(4):
                op = "ds_write_b16_d16_hi" if r & 1 else "ds_write_b16"
                A(f"{op} {v(P+4)}, {v(P+2*tau+(r>>1))} offset:{r*16 + tau*8}")
        A("s_mov_b64 exec, -1")

def attention(A, odd):
    for j in range(9):
        A(f"s_lshl_b32 {s(S_T)}, {s(S_SL)}, 12")
        A(f"v_add_u32 {v(V_BB+j)}, {s(S_T)}, {v(V_BB+9)}")
        A(f"s_add_u32 {s(S_SL)}, {s(S_SL)}, 1")
        A(f"s_cmp_eq_u32 {s(S_SL)}, 12")
        A(f"s_cselect_b32 {s(S_SL)}, 0, {s(S_SL)}")
    A(f"ds_read_b128 {v(QF,4)}, {v(V_BB+10)}")
    tiles = [t for t in range(18) if t != (0 if odd else 17)]
    first, last = tiles[0], tiles[-1]
    def krd(i):
        t = tiles[i]
        A(f"ds_read_b128 {v(KR+4*(i%6),4)}, {v(V_BB+t//2)} offset:{(t&1)*1024}")
    for i in range(5): krd(i)
    m, t1 = T0, T0+1
    for i, t in enumerate(tiles):
        if i+5 < 17:
            krd(i+5); A("s_waitcnt lgkmcnt(5)")
        else: A(f"s_waitcnt lgkmcnt({16-i})")
        c = v(MKW,4) if t == first else (v(MKC,4) if t == last else "0")
        A(f"v_mfma_f32_16x16x32_bf16 {v(SC+4*t,4)}, {v(KR+4*(i%6),4)}, {v(QF,4)}, {c}")
        if i >= 3:
            tt = tiles[i-3]
            if i == 3: A(f"v_max3_f32 {v(m)}, {v(SC+4*tt)}, {v(SC+4*tt+1)}, {v(SC+4*tt+2)}"); A(f"v_mov_b32 {v(t1)}, {v(SC+4*tt+3)}")
            else:
                A(f"v_max3_f32 {v(m)}, {v(m)}, {v(SC+4*tt)}, {v(SC+4*tt+1)}")
                A(f"v_max3_f32 {v(t1)}, {v(t1)}, {v(SC+4*tt+2)}, {v(SC+4*tt+3)}")
    def vrd(j):
        for f in range(2): A(f"ds_read_b128 {v(KR+8*(j%3)+4*f,4)}, {v(V_BB+j)} offset:{2048+f*1024}")
    for j in range(3): vrd(j)
    for i in range(14, 17):
        tt = tiles[i]
        if i == 16: A("s_nop 1")
        A(f"v_max3_f32 {v(m)}, {v(m)}, {v(SC+4*tt)}, {v(SC+4*tt+1)}")
        A(f"v_max3_f32 {v(t1)}, {v(t1)}, {v(SC+4*tt+2)}, {v(SC+4*tt+3)}")
    A(f"v_max_f32 {v(m)}, {v(m)}, {v(t1)}")
    for wh in (16, 32):
        A(f"v_mov_b32 {v(t1)}, {v(m)}"); A("s_nop 1"); A(f"v_permlane{wh}_swap_b32 {v(m)}, {v(t1)}"); A(f"v_max_f32 {v(m)}, {v(m)}, {v(t1)}")
    A(f"v_mul_f32 {v(m)}, {s(S_C)}, {v(m)}")
    def pv(j):
        L = [f"s_waitcnt lgkmcnt({min(4, 2*(8-j))})"]
        for f, d in ((0, D0), (1, D1)):
            L.append(f"v_mfma_f32_16x16x32_bf16 {v(d,4)}, {v(KR+8*(j%3)+4*f,4)}, {v(SC+8*j,4)}, {'0' if j==0 else v(d,4)}")
        return L
    for j in range(9):
        regs = [SC+4*t+r for t in (2*j, 2*j+1) if t in tiles for r in range(4)]
        for r in regs: A(f"v_fma_f32 {v(r)}, {v(r)}, {s(S_C)}, -{v(m)}")
        if j > 0:
            for l in pv(j-1): A(l)
            if j+2 < 9: vrd(j+2)
        for r in regs: A(f"v_exp_f32 {v(r)}, {v(r)}")
        if len(regs) == 4: A("s_nop 0")
        for i in range(4):
            t = 2*j + (i >> 1)
            if t in tiles: A(f"v_cvt_pk_bf16_f32 {v(SC+8*j+i)}, {v(SC+8*j+2*i)}, {v(SC+8*j+2*i+1)}")
            else: A(f"v_mov_b32 {v(SC+8*j+i)}, 0")
    A("s_nop 1")
    for l in pv(8): A(l)
    A("s_nop 7")
    A(f"v_mov_b32 {v(m)}, {v(D1)}"); A(f"v_mov_b32 {v(t1)}, {v(D1)}"); A("s_nop 1")
    A(f"v_permlane16_swap_b32 {v(m)}, {v(t1)}")
    A(f"v_rcp_f32 {v(t1)}, {v(t1)}")
    A("s_nop 0")
    for i in range(8): A(f"v_mul_f32 {v(D0+i)}, {v(D0+i)}, {v(t1)}")
    for i in range(4): A(f"v_cvt_pk_bf16_f32 {v(D0+i)}, {v(D0+2*i)}, {v(D0+2*i+1)}")
    A(f"buffer_store_dwordx2 {v(D0,2)}, {v(V_O0)}, {s(S_WS,4)}, {s(S_OD)} offen sc0 sc1")
    A(f"s_mov_b64 exec, {s(S_MG0,2)}")
    A(f"buffer_store_dwordx2 {v(D0+2,2)}, {v(V_O0)}, {s(S_WS,4)}, {s(S_OD)} offen offset:32 sc0 sc1")
    A("s_mov_b64 exec, -1")

def role_b(A, flags=False):
    A.c("================ role B ================")
    if flags and LATE: wait_k_started(A, S_HEAD)
    A(f"s_load_dwordx2 {s(S_W1,2)}, s[0:1], {KA['wqkv']}")
    A(f"s_load_dwordx2 {s(S_X,2)}, s[0:1], {KA['B_x']}")
    n_, g_, t_, u_ = T0, T0+1, T0+2, T0+3
    A(f"v_and_b32 {v(t_)}, 31, {v(V_LANE)}")
    A(f"v_lshlrev_b32 {v(u_)}, 2, {v(t_)}")
    A(f"v_mov_b32 v10, 0x7ffffff0")
    for lo, add in ((24, 2560-96), (22, None), (20, 2560+32-80), (18, 1280+32-72), (16, 32-64), (8, 1280-32), (0, 0)):
        pass
    A(f"v_add_u32 v11, {2560-96}, {v(u_)}")
    for hi, add in ((24, None), (22, 2560+32-80), (20, 1280+32-72), (18, 32-64), (16, 1280-32), (8, 0)):
        if add is None: A(f"v_mov_b32 v12, v10")
        else: A(f"v_add_u32 v12, {add & 0xffffffff}, {v(u_)}")
        A(f"v_cmp_gt_u32 vcc, {hi}, {v(t_)}")
        A("s_nop 1")
        A(f"v_cndmask_b32 v11, v11, v12, vcc")
    A(f"v_lshrrev_b32 v12, 5, {v(V_LANE)}")
    A(f"v_mul_u32_u24 v12, 3840, v12")
    A(f"v_add_u32 v11, v11, v12")
    A(f"s_mul_i32 s30, {s(S_HEAD)}, 40")
    A(f"s_mul_i32 s31, {s(S_WAVE)}, {160*3840}")
    A(f"s_add_u32 s30, s30, s31")
    A(f"s_mul_i32 s31, {s(S_WAVE)}, {160*128}")
    A("s_waitcnt lgkmcnt(0)")
    srd_finish(A, S_W1, 640*1920*2); srd_finish(A, S_X, X_BYTES)
    lp = A.newlabel("B_wl")
    A("s_mov_b32 s32, 0")
    A.label(lp)
    for j in range(8):
        A(f"s_add_u32 m0, s31, {j*256}")
        A(f"s_add_u32 s33, s30, {j*2*3840}")
        A(f"buffer_load_dword v11, {s(S_W1,4)}, s33 offen lds")
    A("s_waitcnt vmcnt(40)")
    A(f"s_add_u32 s31, s31, 2048"); A(f"s_add_u32 s30, s30, {16*3840}")
    A("s_add_u32 s32, s32, 1"); A("s_cmp_lt_u32 s32, 10"); A(f"s_cbranch_scc1 {lp}")
    A(f"v_and_b32 {v(n_)}, 15, {v(V_LANE)}")
    A(f"v_lshrrev_b32 {v(g_)}, 4, {v(V_LANE)}")
    A(f"v_bfe_u32 {v(t_)}, {v(V_LANE)}, 2, 2")
    A(f"v_lshl_add_u32 {v(t_)}, {v(g_)}, 3, {v(t_)}")
    A(f"v_and_b32 {v(u_)}, 3, {v(V_LANE)}")
    A(f"v_lshlrev_b32 {v(u_)}, 3, {v(u_)}")
    A(f"v_lshl_add_u32 v10, {v(t_)}, 7, {v(u_)}")
    A(f"s_lshl_b32 {s(S_T)}, {s(S_WAVE)}, 5")
    A(f"v_add_u32 v10, {s(S_T)}, v10")
    A(f"v_add_u32 v12, 40960, v10")
    A("s_waitcnt vmcnt(0)")
    A("s_barrier")
    for k in range(20):
        for h in range(2):
            A(f"ds_read_b64_tr_b16 {a(4*k+2*h,2)}, {'v10' if k < 10 else 'v12'} offset:{(k%10)*4096 + h*512}")
        if k % 6 == 5: A("s_waitcnt lgkmcnt(0)")
    A("s_waitcnt lgkmcnt(0)")
    A("s_barrier")
    if flags and not LATE: init_sync(A)
    kv.setup_x_stream(A)
    A(f"s_mov_b32 {s(S_XOFF)}, 0")
    kv.XSRD = S_X; kv.XFL = ""
    kv.setup_pf(A)
    kv.issue_x(A, 0)
    kv.first_pf(A)
    A(f"v_lshlrev_b32 {v(V_L16)}, 4, {v(V_LANE)}")
    for i in range(12): A(f"v_mov_b32 {v(SC+i)}, 0")
    A(f"v_cmp_eq_u32 vcc, 1, {v(g_)}")
    A(f"v_mov_b32 {v(t_)}, 0xf149")
    A(f"v_mov_b32 {v(u_)}, 0x3f80")
    A(f"v_cndmask_b32 {v(SC+2)}, 0, {v(t_)}, vcc")
    A(f"v_cndmask_b32 {v(SC+14)}, 0, {v(u_)}, vcc")
    A(f"v_mov_b32 {v(SC+12)}, 0"); A(f"v_mov_b32 {v(SC+13)}, 0"); A(f"v_mov_b32 {v(SC+15)}, 0")
    A(f"v_and_b32 {v(t_)}, 3, {v(n_)}")
    A(f"v_cmp_eq_u32 vcc, 0, {v(t_)}")
    A(f"v_cmp_lt_u32 {s(S_MG0,2)}, 3, {v(n_)}")
    A(f"v_mov_b32 {v(u_)}, 0x3f803f80")
    A(f"s_and_b64 vcc, vcc, {s(S_MG0,2)}")
    A("s_nop 1")
    for i in range(4): A(f"v_cndmask_b32 {v(SC+8+i)}, 0, {v(u_)}, vcc")
    A(f"s_mul_i32 {s(S_T)}, {s(S_WAVE)}, {3*4096}")
    A(f"s_add_u32 {s(S_T)}, {s(S_T)}, {L_RING}")
    A(f"v_add_u32 {v(t_)}, {s(S_T)}, {v(V_L16)}")
    for b in range(3):
        A(f"ds_write_b128 {v(t_)}, {v(SC,4)} offset:{b*4096}")
        A(f"ds_write_b128 {v(t_)}, {v(SC,4)} offset:{b*4096+1024}")
        A(f"ds_write_b128 {v(t_)}, {v(SC+4,4)} offset:{b*4096+2048}")
        A(f"ds_write_b128 {v(t_)}, {v(SC+8,4)} offset:{b*4096+3072}")
    A(f"s_lshl_b32 {s(S_T)}, {s(S_WAVE)}, 10")
    A(f"s_add_u32 {s(S_T)}, {s(S_T)}, {L_QB}")
    A(f"v_add_u32 {v(V_BB+10)}, {s(S_T)}, {v(V_L16)}")
    A(f"ds_write_b128 {v(V_BB+10)}, {v(SC+12,4)}")
    A(f"v_add_u32 {v(V_BB+9)}, {L_RING}, {v(V_L16)}")
    A(f"s_mov_b64 {s(S_MG0,2)}, 0xffff")
    A(f"s_mov_b32 {s(S_MG2)}, 0"); A(f"s_mov_b32 {s(S_MG2+1)}, 0xffff")
    A(f"s_mov_b32 {s(S_MN2)}, -1"); A(f"s_mov_b32 {s(S_MN2+1)}, 0xffff0000")
    A(f"v_lshlrev_b32 {v(t_)}, 2, {v(g_)}")
    A(f"v_mov_b32 {v(u_)}, {f32bits(-1e30)}")
    for r in range(4):
        A(f"v_add_u32 v10, {r}, {v(t_)}")
        A(f"v_cmp_gt_u32 vcc, v10, {v(n_)}")
        A("s_nop 1")
        A(f"v_cndmask_b32 {v(MKC+r)}, 0, {v(u_)}, vcc")
        A(f"v_cndmask_b32 {v(MKW+r)}, {v(u_)}, {v(SC+4)}, vcc")
    A(f"v_lshlrev_b32 v10, 4, {v(n_)}")
    A(f"v_lshrrev_b32 v11, 1, {v(g_)}")
    A(f"v_lshl_add_u32 v10, v11, 8, v10")
    A(f"v_add_u32 v10, 8, v10")
    A(f"s_mov_b32 {s(S_T)}, {L_QB}")
    A(f"s_cmp_eq_u32 {s(S_WAVE)}, 1"); A(f"s_cselect_b32 {s(S_T)}, 0, {s(S_T)}")
    A(f"s_cmp_eq_u32 {s(S_WAVE)}, 3"); A(f"s_cselect_b32 {s(S_T)}, 2048, {s(S_T)}")
    A(f"v_add_u32 {v(V_E0)}, {s(S_T)}, {v(V_L16)}")
    A(f"s_cmp_eq_u32 {s(S_WAVE)}, 2"); A(f"s_cselect_b64 vcc, -1, 0")
    A(f"v_cndmask_b32 {v(V_E0)}, {v(V_E0)}, v10, vcc")
    A(f"v_lshrrev_b32 v10, 2, {v(n_)}")
    A(f"v_lshlrev_b32 v10, 8, v10")
    A(f"v_and_b32 v11, 3, {v(n_)}")
    A(f"v_lshl_add_u32 v10, v11, 1, v10")
    A(f"v_add_u32 {v(V_E1)}, 3072, v10")
    A(f"s_lshl_b32 {s(S_T)}, {s(S_WAVE)}, 4")
    A(f"v_add_u32 v10, {s(S_T)}, {v(n_)}")
    A(f"v_mul_u32_u24 v10, 1280, v10")
    A(f"v_lshl_add_u32 {v(V_O0)}, {v(g_)}, 3, v10")
    A(f"s_mul_i32 {s(S_OD)}, {s(S_HEAD)}, 40")
    A(f"s_add_u32 {s(S_OD)}, {s(S_OD)}, {WS_OB}")
    A(f"s_mov_b32 {s(S_C)}, {f32bits(20**-0.5*math.log2(math.e))}")
    A(f"s_mov_b32 {s(S_FLO)}, {CN_B}")
    A(f"s_mov_b32 {s(S_RB)}, {L_RING}")
    A(f"s_lshr_b32 {s(S_QT)}, {s(S_WAVE)}, 1")
    A(f"s_add_u32 {s(S_QT)}, {s(S_QT)}, 4")
    A(f"s_mov_b32 {s(S_IT)}, 0")
    A("s_waitcnt lgkmcnt(0)")
    loop = A.newlabel("B_loop")
    A.label(loop)
    for blk in range(2):
        A("s_waitcnt vmcnt(0)" if blk == 0 else "s_waitcnt vmcnt(1)")
        A("s_barrier")
        for k in range(2): kv.xread(A, blk, k)
        if flags and blk == 0:
            l2 = A.newlabel("B_s0")
            A(f"s_cmp_eq_u32 {s(S_IT)}, 0"); A(f"s_cbranch_scc1 {l2}")
            arrive_last(A, S_FLO, RD_B-CN_B, 32, vt=T0)
            A(f"s_add_u32 {s(S_FLO)}, {s(S_FLO)}, 128")
            A.label(l2)
        A(f"s_add_u32 {s(S_XOFF)}, {s(S_XOFF)}, {32*1280}")
        l3 = A.newlabel("B_g3"); l2 = A.newlabel("B_e2"); l1 = A.newlabel("B_e1"); le = A.newlabel("B_ee")
        A(f"s_cmp_eq_u32 {s(S_WAVE)}, 3"); A(f"s_cbranch_scc1 {l3}")
        gemm(A, blk, False)
        A("s_nop 5")
        A(f"s_cmp_eq_u32 {s(S_WAVE)}, 2"); A(f"s_cbranch_scc1 {l2}")
        A(f"s_cmp_eq_u32 {s(S_WAVE)}, 1"); A(f"s_cbranch_scc1 {l1}")
        epilogue(A, blk, 0); A(f"s_branch {le}")
        A.label(l1); epilogue(A, blk, 1); A(f"s_branch {le}")
        A.label(l2); epilogue(A, blk, 2); A(f"s_branch {le}")
        A.label(l3); gemm(A, blk, True); A("s_nop 7"); epilogue(A, blk, 3)
        A.label(le)
        A(f"s_add_u32 {s(S_RB)}, {s(S_RB)}, 4096")
    A(f"s_cmp_eq_u32 {s(S_RB)}, {L_RING+12*4096}")
    A(f"s_cselect_b32 {s(S_RB)}, {L_RING}, {s(S_RB)}")
    A("s_waitcnt lgkmcnt(0)")
    A("s_barrier")
    A(f"s_mov_b32 {s(S_SL)}, {s(S_QT)}")
    lo = A.newlabel("B_odd"); ld = A.newlabel("B_ad")
    A(f"s_bitcmp1_b32 {s(S_WAVE)}, 0"); A(f"s_cbranch_scc1 {lo}")
    attention(A, False); A(f"s_branch {ld}")
    A.label(lo); attention(A, True)
    A.label(ld)
    A(f"s_add_u32 {s(S_QT)}, {s(S_QT)}, 2")
    A(f"s_cmp_ge_u32 {s(S_QT)}, 12")
    A(f"s_cselect_b32 {s(S_T)}, 12, 0")
    A(f"s_sub_u32 {s(S_QT)}, {s(S_QT)}, {s(S_T)}")
    A(f"s_add_u32 {s(S_OD)}, {s(S_OD)}, {64*1280}")
    A(f"s_add_u32 {s(S_IT)}, {s(S_IT)}, 1")
    A(f"s_cmp_lt_u32 {s(S_IT)}, 32")
    A(f"s_cbranch_scc1 {loop}")
    A("s_waitcnt vmcnt(0)")
    if flags:
        A("s_barrier")
        arrive_last(A, S_FLO, RD_B-CN_B, 32, vt=T0)

S_J = 30; S_OS = 31; S_NEED = 32; S_CNT = 33; S_FB = 34
V_FA = 100; V_FV = 101; V_OS = 102; PK = 104
def role_b3(A, flags=False):
    A.c("================ role B3 ================")
    if flags and LATE: wait_k_started(A, S_J)
    A(f"s_load_dwordx2 {s(S_W1,2)}, s[0:1], {KA['wo']}")
    A(f"s_load_dwordx2 {s(S_W2,2)}, s[0:1], {KA['out']}")
    A(f"v_lshrrev_b32 v10, 4, {v(V_LANE)}")
    A(f"v_mul_u32_u24 v11, 1280, v10")
    A(f"v_and_b32 v12, 15, {v(V_LANE)}")
    A(f"v_lshl_add_u32 v11, v12, 4, v11")
    A(f"s_lshl_b32 s35, {s(S_J)}, 8")
    A(f"s_mul_i32 s36, {s(S_WAVE)}, {160*1280}")
    A(f"s_add_u32 s35, s35, s36")
    A(f"s_mul_i32 s36, {s(S_WAVE)}, {160*256}")
    A("s_waitcnt lgkmcnt(0)")
    srd_finish(A, S_W1, 640*640*2); srd_finish(A, S_W2, 2048*1280*2)
    for j in range(40):
        A(f"s_add_u32 m0, s36, {j*1024}")
        A(f"s_add_u32 s37, s35, {j*4*1280}")
        A(f"buffer_load_dwordx4 v11, {s(S_W1,4)}, s37 offen lds")
    A(f"v_bfe_u32 v13, {v(V_LANE)}, 2, 2")
    A(f"v_lshl_add_u32 v13, v10, 3, v13")
    A(f"v_and_b32 v14, 3, {v(V_LANE)}")
    A(f"v_lshlrev_b32 v14, 3, v14")
    A(f"v_lshl_add_u32 v13, v13, 8, v14")
    A(f"s_lshl_b32 {s(S_T)}, {s(S_WAVE)}, 6")
    A(f"v_add_u32 v13, {s(S_T)}, v13")
    A("s_waitcnt vmcnt(0)")
    A("s_barrier")
    for k in range(20):
        if k and k % 7 == 0: A(f"v_add_u32 v13, {7*8192}, v13")
        for t in range(2):
            for h in range(2):
                A(f"ds_read_b64_tr_b16 {a((t*20+k)*4+2*h,2)}, v13 offset:{(k%7)*8192 + h*1024 + t*32}")
        if k % 3 == 2: A("s_waitcnt lgkmcnt(0)")
    A("s_waitcnt lgkmcnt(0)")
    A("s_barrier")
    if flags and not LATE: init_sync(A)
    kv.setup_x_stream(A)
    A(f"v_mul_u32_u24 {v(V_OS)}, 2560, v12")
    A(f"v_and_b32 v13, 1, v10")
    A(f"v_lshl_add_u32 {v(V_OS)}, v13, 5, {v(V_OS)}")
    A(f"v_lshrrev_b32 v13, 1, v10")
    A(f"v_lshl_add_u32 {v(V_OS)}, v13, 4, {v(V_OS)}")
    A(f"s_lshl_b32 {s(S_OS)}, {s(S_J)}, 8")
    A(f"s_lshl_b32 {s(S_T)}, {s(S_WAVE)}, 6")
    A(f"s_add_u32 {s(S_OS)}, {s(S_OS)}, {s(S_T)}")
    A(f"s_add_u32 {s(S_OS)}, {s(S_OS)}, 1280")
    A(f"v_mov_b32 {v(V_FA)}, 0")
    A(f"s_mov_b32 {s(S_FB)}, {RD_B}")
    A(f"s_mov_b32 {s(S_XOFF)}, {WS_OB}")
    A(f"s_mov_b32 {s(S_SEG)}, 0")
    kv.XSRD = S_WS; kv.XFL = "sc1"
    def fw():
        if flags:
            A(f"v_mov_b32 {v(V_FV)}, 0")
            flag_wait(A, V_FV, V_FA, S_FB, S_NEED, S_T, S_CNT, sleep=8)
    A(f"s_mov_b32 {s(S_NEED)}, 1")
    fw()
    kv.issue_x(A, 0)
    loop = A.newlabel("B3_loop")
    A.label(loop)
    for par in range(2):
        A("s_waitcnt vmcnt(0)")
        A("s_barrier")
        for k in range(2): kv.xread(A, par, k)
        A(f"s_add_u32 {s(S_XOFF)}, {s(S_XOFF)}, {32*1280}")
        if par == 1:
            A(f"s_add_u32 {s(S_FB)}, {s(S_FB)}, 128")
            A(f"s_min_u32 {s(S_FB)}, {s(S_FB)}, {RD_B + 31*128}")
            fw()
        for k in range(20):
            if k < 10: A(f"s_add_u32 m0, {s(S_M0X)}, {(1-par)*40960 + k*1024 - k*128}")
            if k+2 < 20:
                kv.xread(A, par, k+2); A("s_waitcnt lgkmcnt(4)")
            else: A(f"s_waitcnt lgkmcnt({2*(19-k)})")
            for t in range(2):
                for tau in range(2):
                    acc = v(ACC+8*tau+4*t,4)
                    A(f"v_mfma_f32_16x16x32_bf16 {acc}, {a((t*20+k)*4,4)}, {v(XF+(k%3)*8+tau*4,4)}, {'0' if k==0 else acc}")
                if k < 10 and t == 0: A(f"buffer_load_dwordx4 {v(V_XSRC)}, {s(S_WS,4)}, {s(S_XOFF)} offen offset:{k*128} sc1 lds")
        A("s_nop 4")
        for tau in range(2):
            for i in range(4): A(f"v_cvt_pk_bf16_f32 {v(PK+4*tau+i)}, {v(ACC+8*tau+2*i)}, {v(ACC+8*tau+2*i+1)}")
        A(f"s_add_u32 {s(S_T)}, {s(S_OS)}, {16*2560}")
        for tau in range(2):
            A(f"v_permlane16_swap_b32 {v(PK+4*tau)}, {v(PK+4*tau+2)}")
            A(f"v_permlane16_swap_b32 {v(PK+4*tau+1)}, {v(PK+4*tau+3)}")
            A(f"buffer_store_dwordx4 {v(PK+4*tau,4)}, {v(V_OS)}, {s(S_W2,4)}, {s(S_OS if tau == 0 else S_T)} offen {OUTF}")
        A(f"s_add_u32 {s(S_OS)}, {s(S_OS)}, {32*2560}")
        A(f"s_add_u32 {s(S_SEG)}, {s(S_SEG)}, 1")
    A(f"s_cmp_lt_u32 {s(S_SEG)}, {NSEG}")
    A(f"s_cbranch_scc1 {loop}")
    A("s_waitcnt vmcnt(0)")
    kv.XSRD = S_X; kv.XFL = ""
```

```python
from common import *
from sched import *
from role_kv import load_w_rows384
from role_u import load_wo
import math, struct
STAMP = False
DELAY0 = 3
PBMODE = 0
DELAYL = 0
TB = 44
TA = 135
XLATE = 30
TICKC = 363
XDELTA = 130
CVADJ = 150
DBVADJ = 2
CWAIT = 2100
TWSTEP = 28
S_TD = 98
PBSTEP0 = 10
PROBEW = 3
GIDX = 57
GIDXV = 3
DFAILB = 18
WIDE = 1
POLLW = 3
DELAY0V = 2
HBIDX = 44
XHINT = 1
DELAYH = 0
TAILW = 0
KMW = 0
RFIRST = 0
ZPRE2 = 1
HINTB = 0
HINTA = 0
HGAP = 1
PL_X = 'G'; PL_M = 'W'; K2W = 1; PL_P = 'T'; PL_K = 'T'
PBSTEPV = 4
PBSTG = 0
VAR = 1
SPEC = 1
WDEL = 9
DROP = 0
DELAYLV = 0
ZPRE = 1
DELAYZV = 2
DELAYZS = 2
PBSTEP = 4
VCAP = 2
DELAYBS = 0
TSTEP = 30
ORDER = 1
DELAYB = 0
NSTEP = 64

def f32bits(x): return struct.unpack("<I", struct.pack("<f", x))[0]

S_STEP=22; S_GRP=23; S_C=24; S_FAST=25; S_T=26; S_T2=27; S_CNT=28; S_DEAD=29
S_Z=30; S_ZN=31; S_P=32; S_PN=33; S_L=34; S_LN=35; S_RR=36; S_RW=37; S_US=38; S_US2=39
S_KS=44; S_EXP=45; S_ZP=46; S_PP=47; S_SC=48; S_KNOWN=49; S_KMX=67; S_ARR=57; S_KN=42
S_MA=50; S_MB=52
S_MU=54; S_MK=55; S_FLO=56; S_T3=58; S_T4=43; S_PST=59; S_PSM=60; S_PLX=61; S_PLM=62; S_ZL=63; S_ZL2=64; S_M3=68; S_G3=65
S_OLO = 40; S_OHI = 41; S_TGT = 66; S_EXN = 29; S_KMY = 39
S_TS=70
V_ZERO=0; V_IDX=2; V_L16=3; V_HI=4; V_WL=5; V_PW=6; V_T7=7; V_TRA=8; V_TRB=18; V_PLD=10; V_PM=11
V_FINR=12; V_TW=13; V_FINRM=14; V_UR=15; V_RW=16; V_KR=17; V_UH=17; V_UHR=18; V_GA=19
AF=20; ACC=60; TMP=76; XS=100; V_POI=120; V_ZH=124; V_FK=111; V_ZS4=125; V_ZS2=126; V_FL=127
V_G3W=9; V_SXR=13; V_PX=16; V_FKS=124; V_TMP1=125; V_TMPV=11
L_MEM=98304; HI=L_MEM
S_LK=114688; S_LU=143360; S_LQ=108544; S_LKM=111616; S_LRED=126976; S_LSX=159744
V_LU=108544; V_LVX=133120; V_LRED=136192

ORD_S = [t*10+k for k in range(10) for t in range(2)] + list(range(20,40)) + [t*10+k for k in range(10) for t in (4,5)]
ORD_V = [t*10+k for k in range(10) for t in (0,1)] + list(range(20,60))
CUR_ORD = ORD_S
def wfrag(f):
    p = CUR_ORD.index(f)
    if p % 5 == 4: return ("lds", p//5)
    r = p - p//5
    return ("reg", 256 + 8*r if r < 32 else 128 + 8*(r-32))
def wdest(f, q):
    kind, x = wfrag(f)
    return reg(x + 2*q, 2) if kind == "reg" else v(AF + 8*x + 2*q, 2)

STUBS = []
def dual_text(A, lines):
    sl = A.newlabel("ds_s"); en = A.newlabel("ds_e")
    STUBS.append([sl + ":"] + [l + (" sc0 sc1" if l.startswith("buffer_store") else "") for l in lines] + [f"s_branch {en}"])
    return "\n".join([f"s_cmp_eq_u32 {s(S_FAST)}, 0", f"s_cbranch_scc1 {sl}"] + lines + [en + ":"])
def dual(A, lines): A(dual_text(A, lines))
def flush_stubs(A):
    for st in STUBS:
        for l in st: A(l)
    STUBS.clear()

def tick(A, k):
    if not STAMP or STAMP == 3: return
    if STAMP == 2:
        A(f"s_memrealtime {s(88,2)}")
        A("s_waitcnt lgkmcnt(0)")
        A(f"s_cmp_eq_u32 {s(S_STEP)}, {TSTEP + (1 if k >= 4 else 0)}")
        A(f"s_cselect_b32 {s(S_TS+k)}, {s(88)}, {s(S_TS+k)}")
        return
    A(f"s_memtime {s(88,2)}")
    A("s_waitcnt lgkmcnt(0)")
    A(f"s_sub_u32 {s(87)}, {s(88)}, {s(86)}")
    A(f"s_add_u32 {s(S_TS+k)}, {s(S_TS+k)}, {s(87)}")
    A(f"s_mov_b32 {s(86)}, {s(88)}")

TRACE = 0
def tr(A, k):
    if TRACE == 2: A(f"s_memrealtime {s(70+2*k,2)}")
    elif TRACE: A(f"s_memtime {s(70+2*k,2)}")
def trace_task():
    if not TRACE: return []
    L = [f"v_writelane_b32 {v(V_TRC)}, {s(70+2*k)}, {k}" for k in range(10)]
    L += [f"s_lshl_b32 s94, {s(S_STEP)}, 8", "s_add_u32 s94, s94, s95"]
    L.append("\n".join(["s_mov_b64 exec, 0x3ff", f"buffer_store_dword {v(V_TRC)}, {v(V_L16)}, {s(S_WS,4)}, s94 offen", "s_mov_b64 exec, -1"]))
    return [[1, 18, L]]
V_TRC = 125; V_TRA4 = 110
S_HP = 90; S_HN = 91; V_HA = 118
def hint_store(A, off, vt):
    A(f"s_add_u32 {s(S_HN)}, {s(S_STEP)}, 1")
    A(f"s_lshl_b32 {s(S_T)}, {s(S_C)}, 2")
    A(f"s_add_u32 {s(S_T)}, {s(S_T)}, {s(S_HP)}")
    A(f"v_mov_b32 {v(vt)}, {s(S_HN)}")
    dual(A, ["s_mov_b64 exec, 1", f"buffer_store_dword {v(vt)}, {v(V_ZERO)}, {s(S_WS,4)}, {s(S_T)} offen offset:{off}", "s_mov_b64 exec, -1"])
S_XW = 100; S_XR = 99
def hint_first(A, off, nw, va, a_, cross=False):
    A(f"s_add_u32 {s(S_HN)}, {s(S_STEP)}, 1")
    A(f"v_and_b32 {v(va)}, {nw-1}, {v(V_LANE)}")
    A(f"v_lshlrev_b32 {v(va)}, 2, {v(va)}")
    if cross and nw == 1: A(f"v_mov_b32 {v(va)}, {s(S_XR)}")
    elif cross: A(f"v_writelane_b32 {v(va)}, {s(S_XR)}, 32"); nw = 33
    A(f"s_mov_b64 exec, {hex((1<<nw)-1)}" if nw <= 32 else "s_mov_b32 exec_hi, 1")
    A(f"buffer_load_dword {v(a_)}, {v(va)}, {s(S_WS,4)}, {s(S_HP)} offen offset:{off} sc1")
def hint_poll(A, off, nw, va, a_, b_, ctr, cross=False, first=True):
    lp = A.newlabel("HP"); dn = A.newlabel("HPd")
    ld = lambda r: f"buffer_load_dword {v(r)}, {v(va)}, {s(S_WS,4)}, {s(S_HP)} offen offset:{off} sc1"
    if first:
        hint_first(A, off, nw, va, a_, cross)
        if HGAP: A(f"s_sleep {HGAP}")
    else:
        A(f"s_mov_b64 exec, {hex((1<<nw)-1)}" if (not cross or nw == 1) else "s_mov_b32 exec_hi, 1")
    A(ld(b_))
    A.label(lp)
    A("s_waitcnt vmcnt(1)")
    A(f"v_cmp_gt_i32 vcc, {s(S_HN)}, {v(a_)}")
    A(f"s_cbranch_vccz {dn}")
    A(ld(a_))
    A("s_waitcnt vmcnt(1)")
    A(f"v_cmp_gt_i32 vcc, {s(S_HN)}, {v(b_)}")
    A(f"s_cbranch_vccz {dn}")
    A(ld(b_))
    if STAMP: A(f"s_add_u32 {s(S_TS+ctr)}, {s(S_TS+ctr)}, 1")
    A(f"s_sub_u32 {s(S_CNT)}, {s(S_CNT)}, 1")
    A(f"s_cbranch_scc0 {lp}")
    A(f"s_mov_b32 {s(S_CNT)}, 0")
    A.label(dn)
    A("s_mov_b64 exec, -1")
def gate(A, off, nw, va, a_, b_, ctr, younger, d_pass, d_fail, cross=False):
    fl = A.newlabel("GTf"); bk = A.newlabel("GTb")
    A(f"s_waitcnt vmcnt({younger})")
    A(f"s_mov_b64 exec, {hex((1<<nw)-1)}")
    A(f"v_cmp_gt_i32 vcc, {s(S_HN)}, {v(a_)}")
    A("s_mov_b64 exec, -1")
    A(f"s_cbranch_vccnz {fl}")
    if d_pass: A(f"s_sleep {d_pass}")
    A.label(bk)
    B = Asm(); B.uid = A.uid + 600000; A.uid += 10
    B.label(fl)
    hint_poll(B, off, nw, va, a_, b_, ctr, cross=cross)
    if d_fail: B(f"s_sleep {d_fail}")
    B(f"s_branch {bk}")
    STUBS.append(B.lines)
def first_text(A, off, nw, va, a_):
    B = Asm(); hint_first(B, off, nw, va, a_); B("s_mov_b64 exec, -1")
    L = [l.strip() for l in B.lines]
    return L[:3] + ["\n".join(L[3:])]
def RTMP(): return 76 if not (TRACE or STAMP) else 92
def ts_hint_store(A, E, vt):
    r = RTMP()
    A(f"s_memrealtime {s(r,2)}")
    A(f"s_add_u32 {s(S_HN)}, {s(S_STEP)}, 1")
    A(f"s_lshl_b32 {s(S_HN)}, {s(S_HN)}, 24")
    A(f"s_lshl_b32 {s(S_T)}, {s(S_C)}, 2")
    A(f"s_add_u32 {s(S_T)}, {s(S_T)}, {s(S_HP)}")
    E.drain()
    A(f"s_and_b32 {s(r)}, {s(r)}, 0xffffff")
    A(f"s_or_b32 {s(r)}, {s(r)}, {s(S_HN)}")
    A(f"v_mov_b32 {v(vt)}, {s(r)}")
    dual(A, ["s_mov_b64 exec, 1", f"buffer_store_dword {v(vt)}, {v(V_ZERO)}, {s(S_WS,4)}, {s(S_T)} offen", "s_mov_b64 exec, -1"])
def ts_wait(A, E, s_t, ticks):
    r = RTMP(); lp = A.newlabel("TW")
    A(f"s_memrealtime {s(r,2)}"); A("s_waitcnt lgkmcnt(0)"); E.reset()
    A(f"s_add_u32 {s(r+1)}, {s(s_t)}, {ticks}")
    A(f"s_sub_u32 {s(r+1)}, {s(r+1)}, {s(r)}")
    A(f"s_and_b32 {s(r+1)}, {s(r+1)}, 0xffffff")
    A(f"s_cmp_gt_u32 {s(r+1)}, 200"); A(f"s_cselect_b32 {s(r+1)}, 0, {s(r+1)}")
    A(f"s_mul_i32 {s(r+1)}, {s(r+1)}, {TICKC}")
    A.label(lp)
    A(f"s_sub_u32 {s(r+1)}, {s(r+1)}, {44*16}")
    A(f"s_cmp_gt_i32 {s(r+1)}, 0")
    A(f"s_cbranch_scc1 {lp}")
def xstore(A):
    if HINTB != 6: A(f"s_add_u32 {s(S_HN)}, {s(S_STEP)}, 1")
    A(f"v_lshrrev_b32 {v(59)}, 2, {v(V_L16)}")
    A(f"s_cmp_eq_u32 {s(S_C)}, 16")
    A(f"v_mov_b32 {v(57)}, {s(S_HN if HINTB != 6 else S_TD)}")
    A("s_cselect_b32 exec_lo, -1, 0"); A("s_mov_b32 exec_hi, 0")
    A(f"buffer_store_dword {v(57)}, {v(59)}, {s(S_WS,4)}, {s(S_XW)} offen sc0 sc1")
    A("s_mov_b64 exec, -1")
def ts_poll(A, va, a_, b_, ctr):
    lp = A.newlabel("HP"); dn = A.newlabel("HPd"); d2 = A.newlabel("HPe")
    ld = lambda r: f"buffer_load_dword {v(r)}, {v(va)}, {s(S_WS,4)}, {s(S_HP)} offen sc1"
    A(f"s_add_u32 {s(S_HN)}, {s(S_STEP)}, 1")
    A(f"s_lshl_b32 {s(S_HN)}, {s(S_HN)}, 24")
    A(f"v_and_b32 {v(va)}, 15, {v(V_LANE)}")
    A(f"v_lshlrev_b32 {v(va)}, 2, {v(va)}")
    A("s_mov_b64 exec, 0xffff")
    A.label(lp)
    A(ld(a_))
    if STAMP: A(f"s_add_u32 {s(S_TS+ctr)}, {s(S_TS+ctr)}, 1")
    A(f"s_sub_u32 {s(S_CNT)}, {s(S_CNT)}, 1")
    A(f"s_cbranch_scc1 {d2}")
    A("s_waitcnt vmcnt(0)")
    A(f"v_cmp_gt_i32 vcc, {s(S_HN)}, {v(a_)}")
    A(f"s_cbranch_vccnz {lp}")
    A.label(dn)
    STUBS.append([d2 + ":", f"s_mov_b32 {s(S_CNT)}, 0", "s_waitcnt vmcnt(0)", f"s_branch {dn}"])
    for sh in (1, 2, 4, 8):
        A("s_nop 1")
        A(f"v_max_i32_dpp {v(a_)}, {v(a_)}, {v(a_)} row_ror:{sh} row_mask:0xf bank_mask:0xf")
    A("s_nop 0")
    A(f"v_readfirstlane_b32 {s(S_TD)}, {v(a_)}")
    A("s_mov_b64 exec, -1")
def wait_poison(A, extra=0, fin=False):
    key = f"{v(V_POI,2)}, {v(V_FINRM)}" if fin else f"{v(V_POI,2)}, "
    idx = max(i for i, l in enumerate(A.lines) if "buffer_store" in l and (key in l))
    n = sum(1 for l in A.lines[idx+1:] if l.strip().startswith("buffer_"))
    return f"s_waitcnt vmcnt({max(n - extra, 0)})"
def loop_top(A, lab, ctr=15):
    A.label(lab)
    if STAMP: A(f"s_add_u32 {s(S_TS+ctr)}, {s(S_TS+ctr)}, 1")
    A(f"s_sub_u32 {s(S_CNT)}, {s(S_CNT)}, 1")
    A(f"s_cbranch_scc1 {lab}_dead")
def retry(A, lab, ctr=15):
    A(f"s_cbranch_vccnz {lab}")
    A.label(lab + "_ok")
    STUBS.append([lab + "_dead:", f"s_mov_b32 {s(S_CNT)}, 0", "s_mov_b64 exec, -1" if ctr in (11, 12, 15) else "s_nop 0", f"s_branch {lab}_ok"])

def mp_init(A, masks, base=0):
    for i, m in enumerate(masks): A(f"s_mov_b64 {s(FPS[base+i],2)}, {m}")
def mp_issue(A, loads, base=0):
    for i, (r, ld) in enumerate(loads):
        A(f"s_mov_b64 exec, {s(FPS[base+i],2)}"); A(ld)
    A("s_mov_b64 exec, -1")
def mp_check(loads, mt, base=0):
    L = []
    for i, (r, _) in enumerate(loads):
        L += [f"v_max_u32 {v(mt+i)}, {v(r)}, {v(r+2)}"]
    L += [f"v_cmp_eq_u32 {s(FPS[base+i],2)}, -1, {v(mt+i)}" for i in range(len(loads))]
    return L
def mp_close(A, n, lab, base=0):
    A(f"s_or_b64 vcc, {s(FPS[base],2)}, {s(FPS[base+1],2)}")
    for i in range(2, n): A(f"s_or_b64 vcc, vcc, {s(FPS[base+i],2)}")
    A(f"s_cbranch_scc1 {lab}")
    A.label(lab + "_ok")
    STUBS.append([lab + "_dead:", f"s_mov_b32 {s(S_CNT)}, 0", f"s_branch {lab}_ok"])
FPS = [12, 14, 16, 18, 8, 96]

def maxtree(regs_, t):
    L = []; r = list(regs_)
    L.append(f"v_max3_u32 {v(t)}, {v(r[0])}, {v(r[1])}, {v(r[2])}"); r = r[3:]
    while len(r) >= 2:
        L.append(f"v_max3_u32 {v(t)}, {v(t)}, {v(r[0])}, {v(r[1])}"); r = r[2:]
    if r: L.append(f"v_max_u32 {v(t)}, {v(t)}, {v(r[0])}")
    return L

def post(sa, out=None):
    o = sa if out is None else out
    return [f"v_add_f32 {v(sa)}, {v(sa)}, {v(sa+1)}", f"v_add_f32 {v(sa+2)}, {v(sa+2)}, {v(sa+3)}",
            f"v_cvt_pk_bf16_f32 {v(o)}, {v(sa)}, {v(sa+2)}"]
def post_s(sa, off, tag):
    return post(sa) + [ds(tag, f"ds_write_b32 {v(V_PW)}, {v(sa)} offset:{off}")]
def post_v(sa, off, tag):
    return post(sa) + [ds(tag, f"ds_write_b16 {v(V_PW)}, {v(sa)} offset:{off}"), ds(tag, f"ds_write_b16_d16_hi {v(V_PW)}, {v(sa)} offset:{off+4}")]
def zero(sa): return [f"v_mov_b64 {v(sa,2)}, 0", f"v_mov_b64 {v(sa+2,2)}, 0"]
def wl_read(j):
    r = TMP + 8*(j % 3)
    return [ds(f"W{j}", f"ds_read_b128 {v(r,4)}, {v(V_WL)} offset:{j*2048}"),
            ds(f"W{j}", f"ds_read_b128 {v(r+4,4)}, {v(V_WL)} offset:{j*2048+1024}")]
def smf(f, acc, afrag):
    kind, x = wfrag(f)
    it = []
    if kind == "lds":
        it.append(need(f"W{x}")); b = v(TMP + 8*(x % 3), 8)
    else: b = reg(x, 8)
    it.append(f"v_smfmac_f32_16x16x64_bf16 {v(acc,4)}, {v(afrag,4)}, {b}, {v(V_IDX)}")
    return it
def refill_tasks():
    return [[5*j+4, 5*(j+3)+4-5, wl_read(j+3)] for j in range(9)]

def setup_common(A, isV):
    LU = V_LU if isV else S_LU; LRED = V_LRED if isV else S_LRED
    t0, t1, t2 = 112, 113, 114
    A(f"v_mov_b32 {v(V_ZERO)}, 0")
    A(f"v_and_b32 {v(t0)}, 15, {v(V_LANE)}")
    A(f"v_lshrrev_b32 {v(t1)}, 4, {v(V_LANE)}")
    A(f"v_mov_b32 {v(V_IDX)}, 0x4444")
    A(f"v_mov_b32 {v(t2)}, 0xeeee")
    A(f"v_and_b32 {v(V_L16)}, 1, {v(V_LANE)}")
    A(f"v_cmp_eq_u32 vcc, 1, {v(V_L16)}")
    A("s_nop 1")
    A(f"v_cndmask_b32 {v(V_IDX)}, {v(V_IDX)}, {v(t2)}, vcc")
    A(f"v_lshlrev_b32 {v(V_L16)}, 4, {v(V_LANE)}")
    A(f"v_add_u32 {v(V_HI)}, {HI}, {v(V_L16)}")
    A(f"s_mul_i32 {s(S_T)}, {s(S_WAVE)}, 24576")
    A(f"v_add_u32 {v(V_WL)}, {s(S_T)}, {v(V_L16)}")
    if isV:
        A(f"v_and_b32 {v(t2)}, 7, {v(t0)}")
        A(f"v_lshlrev_b32 {v(t2)}, 5, {v(t2)}")
        A(f"v_lshl_add_u32 {v(t2)}, {v(t1)}, 3, {v(t2)}")
        A(f"v_lshrrev_b32 {v(V_PW)}, 3, {v(t0)}")
        A(f"v_lshl_add_u32 {v(t2)}, {v(V_PW)}, 1, {v(t2)}")
    else:
        A(f"v_lshlrev_b32 {v(t2)}, 2, {v(t1)}")
        A(f"v_lshl_add_u32 {v(t2)}, {v(t0)}, 4, {v(t2)}")
    A(f"s_mul_i32 {s(S_T)}, {s(S_WAVE)}, 768")
    A(f"s_add_u32 {s(S_T)}, {s(S_T)}, {V_LVX if isV else S_LQ}")
    A(f"v_add_u32 {v(V_PW)}, {s(S_T)}, {v(t2)}")
    A(f"v_and_b32 {v(t2)}, 7, {v(t0)}")
    A(f"v_lshl_add_u32 {v(V_PLD)}, {v(t1)}, 3, {v(t2)}")
    A(f"v_lshlrev_b32 {v(V_PLD)}, 4, {v(V_PLD)}")
    A(f"v_lshl_add_u32 {v(V_FINR)}, {v(t1)}, 4, {v(t2)}")
    A(f"v_lshlrev_b32 {v(V_FINR)}, 4, {v(V_FINR)}")
    if isV:
        A(f"s_and_b32 {s(S_T)}, {s(S_C)}, 1")
        A(f"s_lshl_b32 {s(S_T)}, {s(S_T)}, 7")
        A(f"v_add_u32 {v(V_ZH)}, {s(S_T)}, {v(V_FINR)}")
        A(f"v_lshrrev_b32 {v(V_UH)}, 3, {v(t0)}")
        A(f"v_mul_u32_u24 {v(V_UH)}, 40960, {v(V_UH)}")
        A(f"v_add_u32 {v(V_UH)}, {v(V_UH)}, {v(V_ZH)}")
        A(f"s_mul_i32 {s(S_T)}, {s(S_WAVE)}, 6144")
        A(f"s_add_u32 {s(S_T)}, {s(S_T)}, {LU+4096}")
        A(f"v_add_u32 {v(V_UHR)}, {s(S_T)}, {v(V_FINR)}")
        A(f"v_mov_b32 {v(V_FINR)}, {v(V_L16)}")
    A(f"v_add_u32 {v(V_FINR)}, {LRED}, {v(V_FINR)}")
    A(f"s_mul_i32 {s(S_MU)}, {s(S_WAVE)}, {6144 if isV else 4096}")
    A(f"s_add_u32 {s(S_MU)}, {s(S_MU)}, {LU}")
    A(f"v_add_u32 {v(V_UR)}, {s(S_MU)}, {v(V_L16)}")
    if isV:
        A(f"s_mul_i32 {s(S_T)}, {s(S_WAVE)}, 1024")
        A(f"s_add_u32 {s(S_T)}, {s(S_T)}, {LRED}")
        A(f"v_add_u32 {v(V_RW)}, {s(S_T)}, {v(V_L16)}")
    A(f"v_lshrrev_b32 {v(V_FINRM)}, 1, {v(t1)}")
    A(f"s_lshl_b32 {s(S_T)}, {s(S_C)}, 1")
    A(f"v_add_u32 {v(V_FINRM)}, {s(S_T)}, {v(V_FINRM)}")
    if isV:
        A(f"s_add_u32 {s(S_T)}, {s(S_C)}, {64-16}")
        A(f"v_mov_b32 {v(V_TW)}, {s(S_T)}")
        A(f"v_cmp_lt_u32 vcc, 7, {v(t0)}")
        A("s_nop 1")
        A(f"v_cndmask_b32 {v(V_FINRM)}, {v(V_FINRM)}, {v(V_TW)}, vcc")
        A(f"v_lshrrev_b32 {v(V_TW)}, 3, {v(t0)}")
        A(f"v_lshl_add_u32 {v(V_TW)}, {v(V_TW)}, 9, {v(V_PLD)}")
    A(f"v_lshlrev_b32 {v(V_FINRM)}, 7, {v(V_FINRM)}")
    A(f"v_lshl_add_u32 {v(V_FINRM)}, {v(t2)}, 4, {v(V_FINRM)}")
    A(f"v_and_b32 {v(t2)}, 1, {v(t1)}")
    A(f"v_lshl_add_u32 {v(V_FINRM)}, {v(t2)}, 3, {v(V_FINRM)}")
    A(f"s_mov_b32 {s(S_MA)}, 0x00ff00ff")
    A(f"s_mov_b32 {s(S_MA+1)}, 0x00ff00ff")
    A(f"s_mov_b32 {s(S_MB)}, {'0xffffffff' if isV else '0x00ff00ff'}")
    A(f"s_mov_b32 {s(S_MB+1)}, {'0x00ff00ff' if isV else '0'}")
    A(f"s_lshl_b32 {s(S_T)}, {s(S_WAVE)}, 10")
    A(f"v_add_u32 {v(V_T7)}, {s(S_T)}, {v(V_L16)}")
    if not isV: A(f"v_add_u32 {v(126)}, {HI}, {v(V_T7)}")
    A(f"s_lshr_b32 {s(S_G3)}, {s(S_WAVE)}, 1")
    A(f"s_add_u32 {s(S_G3)}, {s(S_G3)}, 8")
    A(f"s_sub_u32 {s(S_G3)}, {s(S_G3)}, {s(S_WAVE)}")
    A(f"s_lshl_b32 {s(S_G3)}, {s(S_G3)}, 10")
    A(f"s_and_b32 {s(S_T2)}, {s(S_WAVE)}, 1")
    A(f"s_sub_u32 {s(S_M3)}, {s(S_T2)}, 1")
    A(f"s_sub_u32 {s(S_M3+1)}, 0, {s(S_T2)}")
    A(f"v_and_b32 {v(V_GA)}, 7, {v(V_LANE)}")
    A(f"v_lshlrev_b32 {v(V_GA)}, 5, {v(V_GA)}")
    A(f"v_lshl_add_u32 {v(V_GA)}, {v(t1)}, 8, {v(V_GA)}")
    A(f"v_bfe_u32 {v(115)}, {v(V_LANE)}, 3, 1")
    A(f"v_lshl_add_u32 {v(V_GA)}, {v(115)}, 4, {v(V_GA)}")
    A(f"s_add_u32 {s(S_T)}, {s(S_T)}, {HI}")
    A(f"v_add_u32 {v(V_GA)}, {s(S_T)}, {v(V_GA)}")
    A(f"v_add_u32 {v(V_G3W)}, {s(S_G3)}, {v(V_GA)}")
    for i in range(4): A(f"v_mov_b32 {v(V_POI+i)}, -1")
    r_, c_ = 115, 116
    A(f"v_bfe_u32 {v(r_)}, {v(V_LANE)}, 2, 2")
    A(f"v_and_b32 {v(c_)}, 1, {v(V_LANE)}")
    A(f"v_lshlrev_b32 {v(c_)}, 3, {v(c_)}")
    if not isV:
        A(f"v_add_u32 {v(c_)}, {S_LQ}, {v(c_)}")
        A(f"v_lshl_add_u32 {v(V_TRA)}, {v(t1)}, 2, {v(r_)}")
        A(f"v_lshl_add_u32 {v(V_TRA)}, {v(V_TRA)}, 4, {v(c_)}")
        A(f"v_lshrrev_b32 {v(t2)}, 1, {v(t1)}")
        A(f"v_mul_u32_u24 {v(t2)}, 48, {v(t2)}")
        A(f"v_and_b32 {v(V_TRB)}, 1, {v(t1)}")
        A(f"v_lshl_add_u32 {v(V_TRB)}, {v(V_TRB)}, 3, {v(t2)}")
        A(f"v_add_u32 {v(V_TRB)}, {v(V_TRB)}, {v(r_)}")
        A(f"v_lshl_add_u32 {v(V_TRB)}, {v(V_TRB)}, 4, {v(c_)}")
        A(f"v_and_b32 {v(t2)}, 7, {v(t0)}")
        A(f"v_lshl_add_u32 {v(t2)}, {v(t1)}, 4, {v(t2)}")
        A(f"v_lshlrev_b32 {v(t2)}, 4, {v(t2)}")
        A(f"v_lshrrev_b32 {v(V_PX)}, 3, {v(t0)}")
        A(f"v_lshl_add_u32 {v(V_SXR)}, {v(V_PX)}, 10, {v(t2)}")
        A(f"v_add_u32 {v(V_SXR)}, {S_LSX}, {v(V_SXR)}")
        A(f"v_lshl_add_u32 {v(V_PX)}, {v(V_PX)}, 3, {v(t2)}")
        A(f"v_lshlrev_b32 {v(V_PM)}, 4, {v(t0)}")
        A(f"v_lshl_add_u32 {v(V_PM)}, {v(t1)}, 3, {v(V_PM)}")
        A(f"s_sub_u32 {s(S_T)}, {s(S_WAVE)}, 1")
        A(f"s_and_b32 {s(S_T)}, {s(S_T)}, 3")
        A(f"s_mul_i32 {s(S_T2)}, {s(S_T)}, 6144")
        A(f"s_add_u32 {s(S_T2)}, {s(S_T2)}, {S_LK}")
        A(f"v_add_u32 {v(V_KR)}, {s(S_T2)}, {v(V_L16)}")
        A(f"s_mul_i32 {s(S_MK)}, {s(S_T)}, {6144 if K2W else 4096}")
        A(f"s_mul_i32 {s(S_KS)}, {s(S_HEAD)}, 12288")
        A(f"s_add_u32 {s(S_KS)}, {s(S_KS)}, {s(S_MK)}")
        A(f"s_add_u32 {s(S_KS)}, {s(S_KS)}, {WS_K}")
        A(f"s_add_u32 {s(S_MK)}, {s(S_MK)}, {S_LK}")
        A(f"s_lshr_b32 {s(S_PST)}, {s(S_HEAD)}, 1")
        A(f"s_lshl_b32 {s(S_PST)}, {s(S_PST)}, 10")
        A(f"s_and_b32 {s(S_PSM)}, {s(S_HEAD)}, 1")
        A(f"s_lshl_b32 {s(S_PSM)}, {s(S_PSM)}, 7")
        A(f"s_add_u32 {s(S_PST)}, {s(S_PST)}, {s(S_PSM)}")
        A(f"s_lshl_b32 {s(S_PSM)}, {s(S_HEAD)}, 7")
        A(f"s_add_u32 {s(S_PSM)}, {s(S_PSM)}, 16384")
    else:
        A(f"v_lshl_add_u32 {v(t2)}, {v(t1)}, 3, {v(r_)}")
        A(f"v_and_b32 {v(c_)}, 3, {v(V_LANE)}")
        A(f"v_lshlrev_b32 {v(c_)}, 3, {v(c_)}")
        A(f"v_lshl_add_u32 {v(V_TRA)}, {v(t2)}, 5, {v(c_)}")
        A(f"v_add_u32 {v(V_TRA)}, {V_LVX}, {v(V_TRA)}")
        A(f"v_lshlrev_b32 {v(V_ZS4)}, 13, {v(t1)}")
        A(f"v_and_b32 {v(t2)}, 1, {v(t1)}")
        A(f"v_lshlrev_b32 {v(V_ZS2)}, 13, {v(t2)}")
        A(f"v_lshrrev_b32 {v(t2)}, 1, {v(t1)}")
        A(f"v_lshl_add_u32 {v(V_ZS2)}, {v(t2)}, 3, {v(V_ZS2)}")
        A(f"s_mul_i32 {s(S_T)}, {s(S_WAVE)}, {10*8192}")
        A(f"s_lshl_b32 {s(S_T2)}, {s(S_HEAD)}, 8")
        A(f"s_add_u32 {s(S_T)}, {s(S_T)}, {s(S_T2)}")
        A(f"v_lshl_add_u32 {v(t2)}, {v(t0)}, 4, {s(S_T)}")
        A(f"v_add_u32 {v(V_ZS4)}, {v(V_ZS4)}, {v(t2)}")
        A(f"v_add_u32 {v(V_ZS2)}, {v(V_ZS2)}, {v(t2)}")
        A(f"v_add_u32 {v(V_ZS2)}, {8*8192}, {v(V_ZS2)}")
    A(f"s_mov_b32 {s(S_Z)}, {MB_Z}")
    A(f"s_mov_b32 {s(S_ZN)}, {MB_Z+327680}")
    A(f"s_mov_b32 {s(S_P)}, {MB_P}")
    A(f"s_mov_b32 {s(S_PN)}, {MB_P+20480}")
    A(f"s_mov_b32 {s(S_ZP)}, {MB_Z+2*327680}")
    A(f"s_mov_b32 {s(S_PP)}, {MB_P+2*20480}")
    A(f"s_mul_i32 {s(S_T)}, {s(S_GRP)}, 10240")
    A(f"s_add_u32 {s(S_L)}, {s(S_T)}, {MB_L}")
    A(f"s_add_u32 {s(S_LN)}, {s(S_T)}, {MB_L+20480}")
    if isV:
        A(f"s_mul_i32 {s(S_T2)}, {s(S_C)}, 768")
        A(f"s_add_u32 {s(S_T2)}, {s(S_T2)}, {MB_R + 8192 - 16*768}")
    else:
        A(f"s_mul_i32 {s(S_T2)}, {s(S_C)}, 512")
        A(f"s_add_u32 {s(S_T2)}, {s(S_T2)}, {MB_R}")
    A(f"s_mul_i32 {s(S_T)}, {s(S_GRP)}, 20480")
    A(f"s_add_u32 {s(S_RW)}, {s(S_T2)}, {s(S_T)}")
    A(f"s_add_u32 {s(S_RR)}, {s(S_T2)}, 20480")
    A(f"s_sub_u32 {s(S_RR)}, {s(S_RR)}, {s(S_T)}")
    if VAR == 1:
        A(f"s_mul_i32 {s(S_T)}, {s(S_GRP)}, 10240")
        A(f"s_add_u32 {s(S_RW)}, {s(S_T)}, {MB_R}")
        A(f"s_sub_u32 {s(S_RR)}, {MB_R + 10240}, {s(S_T)}")
        A(f"s_mov_b32 {s(S_OLO)}, 0x00003f80"); A(f"s_mov_b32 {s(S_OHI)}, 0x3f800000"); A(f"s_mov_b32 {s(S_TGT)}, 0")
    A(f"s_lshl_b32 {s(S_T)}, {s(S_GRP)}, 2")
    A(f"s_add_u32 {s(S_T)}, {s(S_T)}, {s(S_WAVE)}")
    A(f"s_lshl_b32 {s(S_PLX)}, {s(S_T)}, 11")
    A(f"s_lshl_b32 {s(S_PLM)}, {s(S_T)}, 9")
    A(f"s_add_u32 {s(S_PLM)}, {s(S_PLM)}, 16384")
    A(f"s_lshl_b32 {s(S_ZL)}, {s(S_T)}, 10")
    A(f"s_mul_i32 {s(S_US)}, {s(S_T)}, {4*40960}")
    A(f"s_add_u32 {s(S_US)}, {s(S_US)}, {WS_U}")
    if isV:
        A(f"s_sub_u32 {s(S_T2)}, {s(S_C)}, 16")
        A(f"s_lshr_b32 {s(S_T2)}, {s(S_T2)}, 1")
        A(f"s_add_u32 {s(S_T2)}, {s(S_T2)}, 32")
        A(f"s_lshl_b32 {s(S_T3)}, {s(S_T2)}, 13")
        A(f"s_add_u32 {s(S_ZL2)}, {s(S_ZL)}, {s(S_T3)}")
        A(f"s_lshl_b32 {s(S_T3)}, {s(S_T2)}, 10")
        A(f"s_add_u32 {s(S_US2)}, {s(S_US)}, {s(S_T3)}")
    A(f"s_lshl_b32 {s(S_T3)}, {s(S_C)}, 13")
    A(f"s_add_u32 {s(S_ZL)}, {s(S_ZL)}, {s(S_T3)}")
    A(f"s_lshl_b32 {s(S_T3)}, {s(S_C)}, 10")
    A(f"s_add_u32 {s(S_US)}, {s(S_US)}, {s(S_T3)}")
    A(f"s_mov_b32 {s(S_ARR)}, {CN_Z - 256}")
    A(f"s_lshl_b32 {s(S_HP)}, {s(S_GRP)}, 8")
    A(f"s_add_u32 {s(S_HP)}, {s(S_HP)}, {MB_H}")
    A(f"s_lshl_b32 {s(S_T2)}, {s(S_GRP)}, 7")
    A(f"s_add_u32 {s(S_XW)}, {s(S_T2)}, {MB_RH}")
    A(f"s_sub_u32 {s(S_XR)}, {MB_RH + 128 - 128}, {s(S_T2)}")
    A(f"s_sub_u32 {s(S_XR)}, {s(S_XR)}, {s(S_HP)}")
    A(f"s_lshl_b32 {s(S_FLO)}, {s(S_HEAD)}, 7")
    A(f"s_mov_b32 {s(S_KNOWN)}, 0")
    A(f"s_mov_b32 {s(S_KN)}, 1")
    A(f"v_mov_b32 {v(V_FL)}, 0")
    if not isV: A(f"v_mov_b32 {v(V_FKS)}, 0")
    A(f"s_mov_b32 {s(S_SC)}, {f32bits(192**-0.5*math.log2(math.e))}")
    A(f"s_mov_b32 {s(S_STEP)}, 0")
    A(f"s_mov_b32 {s(S_CNT)}, {SPIN_MAX + 1000 if SPIN_MAX else 0}")
    A(f"s_mov_b32 {s(S_EXP)}, {WS_Z if (VAR == 2 or PL_X != 'S') else WS_SCR}")
    A(f"s_mov_b32 {s(S_EXN)}, {WS_Z}")
    A(f"s_mul_i32 {s(S_KMX)}, {s(S_HEAD)}, 3072")
    A(f"s_add_u32 {s(S_KMX)}, {s(S_KMX)}, {WS_KM - 1024}")
    if not isV: A(f"s_mov_b32 {s(S_KMY)}, {WS_SCR}")
    if STAMP:
        for k in range(16): A(f"s_mov_b32 {s(S_TS+k)}, 0")

LOOKA = 8
def spin(lines_load, cond, ok):
    pass

def u_check(A, seg_off):
    sl = A.newlabel("uc_s"); ok = A.newlabel("uc_ok"); lp = A.newlabel("uc_lp"); g1 = A.newlabel("uc_g")
    A(f"s_add_u32 {s(S_T3)}, {s(S_STEP)}, {seg_off}")
    A(f"s_cmp_ge_u32 {s(S_T3)}, {s(S_KNOWN)}")
    A(f"s_cbranch_scc1 {sl}")
    A.label(ok)
    ld = f"buffer_load_dword {v(V_FL)}, {v(V_ZERO)}, {s(S_WS,4)}, {s(S_T4)} offen sc1"
    STUBS.append([sl + ":",
        f"s_add_u32 {s(S_KNOWN)}, {s(S_T3)}, {LOOKA}", f"s_min_u32 {s(S_KNOWN)}, {s(S_KNOWN)}, {NSEG-1}",
        f"s_lshl_b32 {s(S_T4)}, {s(S_KNOWN)}, 7", f"s_add_u32 {s(S_T4)}, {s(S_T4)}, {CN_U}", f"s_add_u32 {s(S_KNOWN)}, {s(S_KNOWN)}, 1",
        ld, "s_waitcnt vmcnt(0)", f"v_cmp_gt_u32 vcc, 32, {v(V_FL)}", f"s_cbranch_vccz {ok}",
        f"s_add_u32 {s(S_KNOWN)}, {s(S_T3)}, 1", f"s_min_u32 {s(S_T3)}, {s(S_T3)}, {NSEG-1}",
        f"s_lshl_b32 {s(S_T4)}, {s(S_T3)}, 7", f"s_add_u32 {s(S_T4)}, {s(S_T4)}, {CN_U}",
        lp + ":", ld, "s_waitcnt vmcnt(0)", f"v_cmp_gt_u32 vcc, 32, {v(V_FL)}", f"s_cbranch_vccz {ok}",
        f"s_sub_u32 {s(S_CNT)}, {s(S_CNT)}, 1", f"s_cbranch_scc0 {lp}", f"s_mov_b32 {s(S_CNT)}, 0", f"s_branch {ok}"])

def k_check(A):
    sl = A.newlabel("kc_s"); ok = A.newlabel("kc_ok"); lp = A.newlabel("kc_lp")
    A.label(lp)
    A(f"v_cmp_gt_u32 vcc, {s(S_KN)}, {v(V_FKS)}")
    A(f"s_cbranch_vccnz {sl}")
    A.label(ok)
    STUBS.append([sl + ":", f"s_sub_u32 {s(S_CNT)}, {s(S_CNT)}, 1", f"s_cbranch_scc1 {sl}_d", f"s_add_u32 {s(S_T3)}, {s(S_FLO)}, {FL_K}",
                  f"buffer_load_dword {v(V_FKS)}, {v(V_ZERO)}, {s(S_WS,4)}, {s(S_T3)} offen sc1", "s_waitcnt vmcnt(0)", f"s_branch {lp}",
                  sl + "_d:", f"s_mov_b32 {s(S_CNT)}, 0", f"s_branch {ok}"])

def k_dma(A, cls=12):
    if K2W:
        if cls == 12:
            A(f"s_mov_b32 m0, {s(S_MK)}")
            A(f"s_add_u32 {s(S_T)}, {s(S_KS)}, 3072")
            for j in range(3):
                A(f"buffer_load_dwordx4 {v(V_L16)}, {s(S_WS,4)}, {s(S_KS)} offen offset:{j*1024} sc1 lds")
            A(f"s_add_u32 m0, {s(S_MK)}, 3072")
            A("s_nop 0")
            for j in range(3):
                A(f"buffer_load_dwordx4 {v(V_L16)}, {s(S_WS,4)}, {s(S_T)} offen offset:{j*1024} sc1 lds")
    else:
        A(f"s_mov_b32 m0, {s(S_MK)}")
        A("s_nop 0")
        for j in range(4):
            A(f"buffer_load_dwordx4 {v(V_L16)}, {s(S_WS,4)}, {s(S_KS)} offen offset:{j*1024} sc1 lds")
    A(f"s_add_u32 {s(S_KS)}, {s(S_KS)}, {NH*12288}")
    A(f"s_add_u32 {s(S_KN)}, {s(S_KN)}, 1")
    A(f"s_min_u32 {s(S_KN)}, {s(S_KN)}, {NSEG}")

def phaseB_items(A, isV, cls, flags):
    L = [f"s_mov_b32 m0, {s(S_MU)}"]
    for j in range(4):
        L.append(f"s_add_u32 {s(S_T4)}, {s(S_US)}, {j*(40960-1024)}")
        L.append(f"buffer_load_dwordx4 {v(V_L16)}, {s(S_WS,4)}, {s(S_T4)} offen offset:{j*1024} sc1 lds")
    if isV:
        L.append(f"s_add_u32 m0, {s(S_MU)}, 4096")
        L.append(f"s_add_u32 {s(S_T4)}, {s(S_US2)}, {2*40960-1024}")
        L.append(f"buffer_load_dwordx4 {v(V_UH)}, {s(S_WS,4)}, {s(S_US2)} offen sc1 lds")
        L.append(f"buffer_load_dwordx4 {v(V_UH)}, {s(S_WS,4)}, {s(S_T4)} offen offset:1024 sc1 lds")
    if flags and cls == 0:
        if isV:
            an = A.newlabel("an"); ab = A.newlabel("ab")
            STUBS.append([an + ":", f"s_cmp_lt_u32 {s(S_STEP)}, 2", f"s_cbranch_scc1 {ab}", f"v_mov_b32 {v(V_TMPV)}, 32", "s_mov_b64 exec, 1",
                          f"buffer_atomic_add {v(V_TMPV)}, {v(V_ZERO)}, {s(S_WS,4)}, {s(S_ARR)} offen sc1", "s_mov_b64 exec, -1", f"s_branch {ab}"])
            L.append("\n".join([f"s_cmp_eq_u32 {s(S_C)}, 16", f"s_cbranch_scc1 {an}", ab + ":"]))
        else:
            L += [f"s_add_u32 {s(S_T)}, {s(S_FLO)}, {FL_KM}", f"s_sub_u32 {s(S_T2)}, {s(S_STEP)}, 0", f"s_max_i32 {s(S_T2)}, {s(S_T2)}, 0", f"v_mov_b32 {v(V_FL)}, {s(S_T2)}"]
            L.append("\n".join(["s_mov_b64 exec, 1", f"buffer_store_dword {v(V_FL)}, {v(V_ZERO)}, {s(S_WS,4)}, {s(S_T)} offen sc0 sc1", "s_mov_b64 exec, -1"]))
    return L

def km_export(A, E, tmp):
    E(ds("KX", f"ds_read_b128 {v(tmp,4)}, {v(126)} offset:{S_LKM-HI-1024}"))
    E(need("KX"))
    A(f"buffer_store_dwordx4 {v(tmp,4)}, {v(V_T7)}, {s(S_WS,4)}, {s(S_KMX)} offen sc0 sc1")

ZF = 48
def z_poison(A):
    A(f"s_add_u32 {s(S_T2)}, {s(S_ZP)}, {4*8192}")
    dual(A, [f"buffer_store_dwordx4 {v(V_POI,4)}, {v(V_ZS4)}, {s(S_WS,4)}, {s(S_ZP)} offen",
             f"buffer_store_dwordx4 {v(V_POI,4)}, {v(V_ZS4)}, {s(S_WS,4)}, {s(S_T2)} offen",
             f"buffer_store_dwordx2 {v(V_POI,2)}, {v(V_ZS2)}, {s(S_WS,4)}, {s(S_ZP)} offen"])
def p_poison(A, slot):
    A(f"s_add_u32 {s(S_T)}, {s(slot)}, {s(S_PST)}"); A(f"s_add_u32 {s(S_T2)}, {s(slot)}, {s(S_PSM)}")
    dual(A, [f"s_mov_b64 exec, {s(S_MA,2)}",
             f"buffer_store_dwordx4 {v(V_POI,4)}, {v(V_L16)}, {s(S_WS,4)}, {s(S_T)} offen",
             f"s_mov_b64 exec, {s(S_MB,2)}",
             f"buffer_store_dwordx2 {v(V_POI,2)}, {v(V_PM)}, {s(S_WS,4)}, {s(S_T2)} offen",
             "s_mov_b64 exec, -1"])
def z_export(A, isV, zf, woff):
    A(f"s_add_u32 {s(S_T)}, {s(S_EXP)}, {s(S_ZL)}")
    if woff: A(f"s_sub_u32 {s(S_T)}, {s(S_T)}, {s(woff)}")
    A(f"buffer_store_dwordx4 {v(zf,4)}, {v(V_L16)}, {s(S_WS,4)}, {s(S_T)} offen sc0 sc1")
    if isV:
        A(f"s_add_u32 {s(S_T)}, {s(S_EXP)}, {s(S_ZL2)}")
        if woff: A(f"s_sub_u32 {s(S_T)}, {s(S_T)}, {s(woff)}")
        A(f"s_mov_b64 exec, {s(S_MA,2)}")
        A(f"buffer_store_dwordx4 {v(zf+4,4)}, {v(V_ZH)}, {s(S_WS,4)}, {s(S_T)} offen sc0 sc1")
        A("s_mov_b64 exec, -1")
def window(A, E, isV, cls, flags):
    LZ = (V_LVX if isV else S_LK + 12288) - HI
    last = A.newlabel("wz")
    if WDEL: A(f"s_sleep {WDEL}")
    z_export(A, isV, ZF, None)
    if cls != 3:
        A(f"s_cmp_lg_u32 {s(S_WAVE)}, {3 if isV else 1}"); A(f"s_cbranch_scc1 {last}")
        for t in range(2 if isV else 1): E(ds("zs", f"ds_read_b128 {v(AF+4*t,4)}, {v(V_HI)} offset:{LZ+t*1024}"))
        E(need("zs"))
        A(f"s_lshl_b32 {s(S_T2)}, {s(S_WAVE)}, 10")
        z_export(A, isV, AF, S_T2)
        A.label(last)
    if flags:
        u_check(A, 1)
        if not isV: k_check(A)

def qk_tr(isq, ks, dst, tag):
    b = 0 if isq else 3072
    if ks < 4: vb, o0, o1 = V_TRA, 48*ks*16, (48*ks+16)*16
    else: vb, o0, o1 = V_TRB, (96*(ks-4)+32)*16, (96*(ks-4)+36)*16
    return [ds(tag, f"ds_read_b64_tr_b16 {v(dst,2)}, {v(vb)} offset:{b+o0}"),
            ds(tag, f"ds_read_b64_tr_b16 {v(dst+2,2)}, {v(vb)} offset:{b+o1}")]

def xlane(op, r, t, which):
    return [f"v_mov_b32 {v(t)}, {v(r)}", "s_nop 1", f"v_permlane{which}_swap_b32 {v(r)}, {v(t)}", f"{op} {v(r)}, {v(r)}, {v(t)}"]

def pb_tasks(items, e, d, span, step=4):
    if PBMODE == 0: return [[e, d, items]]
    if PBMODE == 1:
        STUBS.clear()
        return [[e, d, [it for it in items if isinstance(it, str) and 'buffer_' not in it]]]
    if DROP & 1: items = [it for it in items if not (isinstance(it, str) and it.endswith(" lds"))]
    if DROP & 2: items = [it for it in items if not (isinstance(it, str) and it.startswith("buffer_store") and "sc1" in it)]
    groups = []; cur = []
    for it in items:
        cur.append(it)
        if isinstance(it, str) and 'buffer_' in it: groups.append(cur); cur = []
    if cur: groups.append(cur)
    n = len(groups); out = []
    for i, g in enumerate(groups):
        st = e + i*step
        out.append([st, st+step, g])
    return out

def s_stage(A, E, cls, flags):
    S0, S1, S2, S3 = ACC, ACC+4, ACC+8, ACC+12
    accs = [S0, S1, S2, S3, S0, S1]
    ard = lambda k: ds(f"A{k}", f"ds_read_b128 {v(AF+4*k,4)}, {v(V_HI)} offset:{k*1024}")
    for k in range(3): E(ard(k))
    main = []
    for f in ORD_S:
        t, k = divmod(f, 10)
        main.append(([need(f"A{k}")] if t == 0 else []) + smf(f, accs[t], AF+4*k))
    T = refill_tasks() + [[max(k-3, 4 if (k >= 7 and PL_X == 'S') else 0), max(k-1, 2*k-5), [ard(k)]] for k in range(3, 10)]
    pb = phaseB_items(A, False, cls, flags)
    if PL_K == 'S' and cls != 0:
        pb += [f"s_xor_b32 {s(S_MK)}, {s(S_MK)}, {S_LK ^ (S_LK + 16384)}", f"s_mov_b32 m0, {s(S_MK)}", f"s_add_u32 {s(S_KN)}, {s(S_KN)}, 1"]
        pb += [f"buffer_load_dwordx4 {v(V_L16)}, {s(S_WS,4)}, {s(S_KS)} offen offset:{j*1024} sc1 lds" for j in range(4)]
        pb += [f"s_add_u32 {s(S_KS)}, {s(S_KS)}, {NH*12288}", f"s_min_u32 {s(S_KN)}, {s(S_KN)}, {NSEG}"]
    T += pb_tasks(pb, 2 + PBSTG*{0:0,12:1,3:2}[cls], 22, 56, PBSTEP if cls else PBSTEP0)
    T.append([0, 28, zero(S3)])
    if HINTB == 4 and cls == 3: T.append([GIDX-3, GIDX+1, first_text(A, 0, 16, XS, XS+1)])
    if HINTB in (3, 4) and cls == 0:
        B = Asm(); B.uid = A.uid + 500000; A.uid += 10
        hint_store(B, 0, V_TMP1 if not TRACE else 127)
        T.append([HBIDX-3, HBIDX+1, [l.strip() for l in B.lines[:4]] + ["\n".join(B.lines[4:])]])
    T += stage_side(A, False, cls)
    T += trace_task()
    T.append([21, 33, post_s(S0, 0, "qw") + post_s(S1, 256, "qw") + zero(S0) + zero(S1)])
    T.append([32, 36, post_s(S2, 512, "qw")])
    T.append([37, 38, [need("qw"), "s_barrier"]])
    T.append([42, 58, post_s(S3, 3072, "kw")])
    if cls == 12:
        SA = XS+16
        R = {0: (XS, XS+4), 1: (XS+8, XS+12), 2: (AF, AF+4), 3: (AF+8, AF+12), 4: (XS, XS+4), 5: (XS+8, XS+12)}
        def rd(ks): return qk_tr(True, ks, R[ks][0], f"X{ks}") + [ds(f"X{ks}", f"ds_read_b128 {v(R[ks][1],4)}, {v(V_KR)} offset:{ks*1024}")]
        def mm(ks, first=False): return [need(f"X{ks}"), f"v_mfma_f32_16x16x32_bf16 {v(SA,4)}, {v(R[ks][1],4)}, {v(R[ks][0],4)}, {'0' if first else v(SA,4)}"]
        T.append([38, 42, rd(0)])
        T.append([38, 45, rd(1)])
        T.append([45, 49, mm(0, True) + rd(4)])
        T.append([44, 48, rd(2)])
        T.append([48, 52, mm(1) + rd(5)])
        T.append([48, 54, rd(3)])
        T.append([52, 54, mm(2)])
        T.append([54, 55, mm(4)])
        T.append([55, 56, mm(5)])
        T.append([56, 57, mm(3)])
    if cls == 0:
        for ks in range(5): T.append([38, 45+2*ks, qk_tr(True, ks, XS+4*ks, f"m{ks}")])
        T.append([42, 58, qk_tr(True, 5, AF, "m5")])
    schedule(E, main, T, maxn=4)
    if cls == 12:
        E(ds("sx", f"ds_write_b128 {v(126)}, {v(XS+16,4)} offset:{S_LSX-HI-1024}"))
        if VAR == 1: A(f"v_xor_b32 {v(V_KR)}, {S_LK ^ (S_LK + 16384)}, {v(V_KR)}")
        A("s_nop 3")
    else:
        A("s_nop 4")
    pa = post_s(S0, 3072+256, "kw"); pb_ = post_s(S1, 3072+512, "kw")
    for it in pa + pb_: E(it)
    if HINTB == 5 and cls == 0: hint_store(A, 0, 68)
    if HINTB == 6 and cls == 0: ts_hint_store(A, E, 68)
    tr(A, 1)
    E.drain()
    A("s_barrier")

def dppadd(r): return f"v_add_f32_dpp {v(r)}, {v(r)}, {v(r)} row_ror:8 row_mask:0xf bank_mask:0xf"

def s_tail(A, E):
    KF, SX, SM, t0, t1 = TMP, 44, 52, 56, 57
    mx, sm, m = 58, 59, 62
    dpp = " row_ror:8 row_mask:0xf bank_mask:0xf"
    E(ds("sx", f"ds_read_b128 {v(SX,4)}, {v(V_SXR)}"))
    for ks in range(6):
        for it in qk_tr(False, ks, KF+4*ks, f"m{ks}"): E(it)
    if HINTB == 2: hint_store(A, 0, 60)
    X = [need("sx"),
         f"v_max3_f32 {v(mx)}, {v(SX)}, {v(SX+1)}, {v(SX+2)}",
         f"v_max_f32 {v(mx)}, {v(mx)}, {v(SX+3)}", "s_nop 1",
         f"v_max_f32_dpp {v(mx)}, {v(mx)}, {v(mx)}" + dpp]
    X += xlane("v_max_f32", mx, t0, 16) + xlane("v_max_f32", mx, t0, 32)
    main = [[]] + [[need(f"m{ks}"), f"v_mfma_f32_16x16x32_bf16 {v(SM,4)}, {v(KF+4*ks,4)}, {v(XS+4*ks if ks < 5 else AF,4)}, {'0' if ks==0 else v(SM,4)}"] for ks in range(6)]
    for it in X[:9]: E(it)
    schedule(E, main, [[0, 99, X[9:]]])
    A(f"s_add_u32 {s(S_T)}, {s(S_P)}, {s(S_PST)}")
    A(f"s_add_u32 {s(S_T2)}, {s(S_P)}, {s(S_PSM)}")
    A("s_waitcnt vmcnt(0)" if TAILW or VAR == 2 else wait_poison(A))
    tr(A, 9)
    A("s_nop 4")
    A(f"v_max3_f32 {v(m)}, {v(SM)}, {v(SM+1)}, {v(SM+2)}")
    A(f"v_max3_f32 {v(m)}, {v(m)}, {v(SM+3)}, {v(mx)}")
    for l in xlane("v_max_f32", m, t0, 16): A(l)
    A(f"v_mul_f32 {v(m)}, {s(S_SC)}, {v(m)}")
    R = [SX, SX+1, SX+2, SX+3, SM, SM+1, SM+2, SM+3]
    for r in R: A(f"v_fma_f32 {v(r)}, {v(r)}, {s(S_SC)}, -{v(m)}")
    for r in R: A(f"v_exp_f32 {v(r)}, {v(r)}")
    A(f"v_add_f32 {v(sm)}, {v(SX)}, {v(SX+1)}")
    A(f"v_add_f32 {v(t0)}, {v(SX+2)}, {v(SX+3)}")
    A(f"v_add_f32 {v(t1)}, {v(SM)}, {v(SM+1)}")
    A(f"v_add_f32 {v(m)}, {v(SM+2)}, {v(SM+3)}")
    A(f"v_add_f32 {v(sm)}, {v(sm)}, {v(t0)}")
    A(f"v_add_f32 {v(t1)}, {v(t1)}, {v(m)}")
    A(f"v_fmac_f32 {v(sm)}, 0x3e800000, {v(t1)}")
    A("s_nop 1")
    A(f"v_add_f32_dpp {v(sm)}, {v(sm)}, {v(sm)}" + dpp)
    for l in xlane("v_add_f32", sm, t0, 16) + xlane("v_add_f32", sm, t0, 32): A(l)
    A(f"v_rcp_f32 {v(sm)}, {v(sm)}")
    A(f"s_cmp_eq_u32 {s(S_FAST)}, 0")
    for r in R[:4]: A(f"v_mul_f32 {v(r)}, {v(r)}, {v(sm)}")
    for i in range(2): A(f"v_cvt_pk_bf16_f32 {v(64+i)}, {v(SX+2*i)}, {v(SX+2*i+1)}")
    dual(A, [f"buffer_store_dwordx2 {v(64,2)}, {v(V_PX)}, {s(S_WS,4)}, {s(S_T)} offen"])
    for r in R[4:]: A(f"v_mul_f32 {v(r)}, {v(r)}, {v(sm)}")
    for i in range(2): A(f"v_cvt_pk_bf16_f32 {v(SM+i)}, {v(SM+2*i)}, {v(SM+2*i+1)}")
    dual(A, [f"s_mov_b64 exec, {s(S_MB,2)}",
             f"buffer_store_dwordx2 {v(SM,2)}, {v(V_PM)}, {s(S_WS,4)}, {s(S_T2)} offen",
             "s_mov_b64 exec, -1"])
    if HINTB == 1: hint_store(A, 0, 56)

def v_stage(A, E, cls, flags):
    S = [ACC, ACC+4, ACC+8, ACC+12, 112, 116]
    ard = lambda k: ds(f"A{k}", f"ds_read_b128 {v(AF+4*k,4)}, {v(V_HI)} offset:{k*1024}")
    for k in range(3): E(ard(k))
    main = []
    for f in ORD_V[:30]:
        t, k = divmod(f, 10)
        main.append(([need(f"A{k}")] if t == 0 else []) + smf(f, S[t], AF+4*k))
    RT = refill_tasks()
    T = [t for t in RT if t[0] < 29] + [[max(k-3, 4 if (k >= 7 and PL_X == 'S') else 0), max(k-1, 2*k-5), [ard(k)]] for k in range(3, 10)]
    PB = pb_tasks(phaseB_items(A, True, cls, flags), 2 + PBSTG*{0:0,12:1,3:2}[cls], 24, 58, PBSTEPV)
    T += [t for t in PB if t[0] < 28]
    T.append([0, 20, zero(S[3]) + zero(S[4]) + zero(S[5])])
    T += stage_side(A, True, cls)
    T += trace_task()
    T.append([21, 99, post_v(S[0], 0, "vw") + post_v(S[1], 256, "vw") + zero(S[0])])
    schedule(E, main, T, maxn=4)
    for l in zero(S[1]) + zero(AF+12) + zero(AF+16): A(l)
    A("s_nop 1")
    for it in post_v(S[2], 512, "vw"): E(it)
    for it in RT[5][2]: E(it)
    for l in zero(AF+20) + zero(AF+24) + zero(S[2]): A(l)
    E.need("vw")
    A("s_barrier")
    for kk in range(3):
        for h in range(2):
            E(ds(f"B{kk}", f"ds_read_b64_tr_b16 {v(AF+4*kk+2*h,2)}, {v(V_TRA)} offset:{(32*kk+4*h)*32}"))
    SS = [S[3], S[4], S[5], S[0], S[1], S[2], AF+12, AF+16, AF+20, AF+24]
    sa = lambda t: SS[t]
    main = []
    for t in range(10):
        for kk in range(3):
            main.append(([need(f"B{kk}")] if t == 0 else []) + smf(30 + 3*t + kk, sa(t), AF+4*kk))
    T = [[t[0]-30, t[1]-30, t[2]] for t in RT if t[0] > 29]
    T += [[max(t[0]-30, 0), max(t[1]-30, 2), t[2]] for t in PB if t[0] >= 28]
    if HINTB == 4 and cls == 3: T.append([max(GIDXV-3, 0), GIDXV+1, first_text(A, 0, 16, 110, 11 if TRACE else 111)])
    def fin(t):
        L = post(sa(t), XS+t)
        if t in (3, 7):
            q = XS + t - 3
            L += ["s_nop 0"]
            L += [f"v_permlane32_swap_b32 {v(q)}, {v(q+2)}", f"v_permlane32_swap_b32 {v(q+1)}, {v(q+3)}", "s_nop 1",
                  f"v_permlane16_swap_b32 {v(q)}, {v(q+1)}", f"v_permlane16_swap_b32 {v(q+2)}, {v(q+3)}"]
            L += [f"s_add_u32 {s(S_T)}, {s(S_Z)}, {(t//4)*4*8192}\n" + dual_text(A, [f"buffer_store_dwordx4 {v(q,4)}, {v(V_ZS4)}, {s(S_WS,4)}, {s(S_T)} offen"])]
        if t == 9:
            L += ["s_nop 1", f"v_permlane16_swap_b32 {v(XS+8)}, {v(XS+9)}"]
            L += [dual_text(A, [f"buffer_store_dwordx2 {v(XS+8,2)}, {v(V_ZS2)}, {s(S_WS,4)}, {s(S_Z)} offen"])]
        return L
    chain = []
    for t in range(8):
        T.append([3*t+2+3, 40+t, fin(t)])
    schedule(E, main, T, cap=VCAP, maxn=5)
    for it in fin(8): E(it)
    A(wait_poison(A, fin=True) if (cls == 0 and VAR == 1) else "s_nop 0")
    A("s_nop 2")
    for it in fin(9): E(it)
    tr(A, 1)

S_A1 = 10
def reduce_stage(A, E, isV, cls, flags):
    PF, mt = AF, 56
    UL = [76,80,84,88,92,96,60,64] if isV else [100,104,108,112]
    D = [68, 72]; DO = [40, 44]
    nt = 2 if isV else 1
    if VAR == 1 and PL_K == 'T' and not isV: side_ops(A, E, isV, cls, flags, 'T')
    A(f"s_add_u32 {s(S_T)}, {s(S_P)}, {s(S_PLX)}")
    A(f"s_add_u32 {s(S_T2)}, {s(S_P)}, {s(S_PLM)}")
    A(f"s_add_u32 {s(S_T3)}, {s(S_Z)}, {s(S_ZL)}")
    if isV: A(f"s_add_u32 {s(S_T4)}, {s(S_Z)}, {s(S_ZL2)}")
    for l in zero(PF+8) + (zero(ZF+4) if isV else []): A(l)
    if PL_K == 'B' and not isV and cls != 0: A(f"s_xor_b32 {s(S_MK)}, {s(S_MK)}, {S_LK ^ (S_LK + 16384)}")
    mp_init(A, ["-1", "-1", s(S_MA,2), "-1"] + ([s(S_MA,2)] if isV else []))
    zl = [(ZF, f"buffer_load_dwordx4 {v(ZF,4)}, {v(V_L16)}, {s(S_WS,4)}, {s(S_T3)} offen sc1")]
    if isV: zl.append((ZF+4, f"buffer_load_dwordx4 {v(ZF+4,4)}, {v(V_ZH)}, {s(S_WS,4)}, {s(S_T4)} offen sc1"))
    def u_reads():
        for j in range(4): E(ds("U", f"ds_read_b128 {v(UL[j],4)}, {v(V_UR)} offset:{j*1024}"))
        if isV:
            for j in range(4): E(ds("U", f"ds_read_b128 {v(UL[4+j],4)}, {v(V_UHR)} offset:{(j>>1)*1024+(j&1)*128}"))
    def zpoi():
        A(f"s_add_u32 {s(S_A1)}, {s(S_ZP)}, {4*8192}")
        dual(A, [f"buffer_store_dwordx4 {v(V_POI,4)}, {v(V_ZS4)}, {s(S_WS,4)}, {s(S_ZP)} offen",
                 f"buffer_store_dwordx4 {v(V_POI,4)}, {v(V_ZS4)}, {s(S_WS,4)}, {s(S_A1)} offen",
                 f"buffer_store_dwordx2 {v(V_POI,2)}, {v(V_ZS2)}, {s(S_WS,4)}, {s(S_ZP)} offen"])
    prew = False
    early = ZPRE2 == 4 and (isV or cls != 0)
    def z_early():
        mp_issue(A, zl, 3)
        mp_init(A, ["0"] * len(zl), 3)
    if early and cls != 3:
        if isV: zpoi()
        d = DELAYZV if isV else DELAYZS
        if d: A(f"s_sleep {d}")
        z_early()
        A(f"s_waitcnt vmcnt({len(zl) + (5 if isV else 0)})")
        u_reads()
    tr(A, 2)
    if HINTB == 6:
        if cls == 3:
            ts_poll(A, 57, 58, 59, 10)
            if XHINT and isV: xstore(A)
            if early:
                u_reads(); z_early()
                if isV: zpoi()
            ts_wait(A, E, S_TD, TB)
        if cls == 0 and not isV and DELAYBS: A(f"s_sleep {DELAYBS}")
        A("s_barrier")
    elif HINTB == 4:
        if cls == 3:
            if isV: gate(A, 0, 16, 110, 11 if TRACE else 111, 59, 10, 3 if GIDXV < 12 else 2, DELAYB, DFAILB)
            else: gate(A, 0, 16, XS, XS+1, XS+2, 10, 0, 0, DFAILB)
        if cls == 0 and not isV and DELAYBS: A(f"s_sleep {DELAYBS}")
        A("s_barrier")
    elif HINTB:
        if cls == (0 if HINTB == 1 else 3):
            hint_poll(A, 0, 16, 57, 58, 59, 10)
            if HINTA == 4:
                A(f"s_memtime {s(FPS[5],2)}"); A("s_waitcnt lgkmcnt(0)"); E.reset()
                A(f"s_add_u32 {s(S_TD)}, {s(FPS[5])}, {CWAIT - (CVADJ if isV else 0)}")
            db = DELAYB - (DBVADJ if isV else 0)
            if db > 0: A(f"s_sleep {db}")
        if cls == 0 and not isV and DELAYBS: A(f"s_sleep {DELAYBS}")
        A("s_barrier")
    elif not isV:
        A("s_barrier")
        if DELAYBS: A(f"s_sleep {DELAYBS}")
    elif DELAYB: A(f"s_sleep {DELAYB}")
    if STAMP == 1: tick(A, 8)
    tr(A, 3)
    gl = [(PF+4*j, f"buffer_load_dwordx4 {v(PF+4*j,4)}, {v(V_L16)}, {s(S_WS,4)}, {s(S_T)} offen offset:{j*1024} sc1") for j in range(2)]
    gl.append((PF+8, f"buffer_load_dwordx4 {v(PF+8,4)}, {v(V_PLD)}, {s(S_WS,4)}, {s(S_T2)} offen sc1"))
    gl += zl
    lab = A.newlabel("GB")
    loop_top(A, lab, 11)
    mp_issue(A, gl)
    nz = 0
    if XHINT and cls == 3 and isV and HINTB != 6:
        xstore(A); nz += 1
    if not early:
        A(f"s_waitcnt vmcnt({len(gl)+nz})")
        u_reads()
        if isV: zpoi(); nz += 3
    if PL_K == 'B' and not isV and cls != 0:
        A(f"s_mov_b32 m0, {s(S_MK)}")
        A("s_nop 0")
        for j in range(4): A(f"buffer_load_dwordx4 {v(V_L16)}, {s(S_WS,4)}, {s(S_KS)} offen offset:{j*1024} sc1 lds")
        nz += 4
    if XHINT == 2 and cls == 3:
        hint_first(A, 128, 1, 57, 58, True); A("s_mov_b64 exec, -1"); nz += 1
    A(f"s_waitcnt vmcnt({nz}) lgkmcnt(0)"); E.reset()
    if STAMP == 1: tick(A, 7)
    main = []
    def mm(d, a_, b_, first): return [f"v_mfma_f32_16x16x32_bf16 {v(d,4)}, {v(a_,4)}, {v(b_,4)}, {'0' if first else v(d,4)}"]
    for t in range(nt):
        for j in range(2): main.append(mm(DO[t], UL[4*t+2*j+1], PF+4*j, j == 0))
        for j in range(3): main.append(mm(D[t], UL[4*t+2*j] if j < 2 else ZF+4*t, PF+4*j, j == 0))
    X = mp_check(gl, 32)
    T = [[0, 99, X]]
    if cls == 0 and VAR == 2:
        LZ = (V_LVX if isV else S_LK + 12288) - HI
        T.append([1, 98, [ds("zs", f"ds_write_b128 {v(V_HI)}, {v(ZF+4*t,4)} offset:{LZ+t*1024}") for t in range(nt)]])
    schedule(E, main[:5], T)
    mp_close(A, len(gl), lab)
    tr(A, 4)
    if PL_K == 'B' and not isV and cls != 0:
        A(f"s_add_u32 {s(S_KS)}, {s(S_KS)}, {NH*12288}"); A(f"s_add_u32 {s(S_KN)}, {s(S_KN)}, 1"); A(f"s_min_u32 {s(S_KN)}, {s(S_KN)}, {NSEG}")
    add0 = [f"v_add_f32_dpp {v(D[0]+i)}, {v(DO[0]+i)}, {v(D[0]+i)} row_ror:8 row_mask:0xf bank_mask:0xf" for i in range(4)]
    for k_, m_ in enumerate(main[5:]):
        A(m_[0])
        if k_ >= 3:
            A(add0.pop(0)); A(add0.pop(0))
    if HINTA == 2 and cls == 0: hint_store(A, 128, 57)
    if HINTA == 5 and cls == 3 and XHINT:
        A(f"v_mov_b32 {v(57)}, {s(S_XR)}"); A("s_mov_b64 exec, 1")
        A(f"buffer_load_dword {v(58)}, {v(57)}, {s(S_WS,4)}, {s(S_HP)} offen offset:128 sc1"); A("s_mov_b64 exec, -1")
    if HINTA in (2, 3, 4) and cls == 3 and XHINT == 1:
        hint_first(A, 128, 32 if HINTA == 2 else 1, 57, 58, True); A("s_mov_b64 exec, -1")
    A("s_nop 3" if not isV else "s_nop 0")
    for l in add0: A(l)
    if isV:
        A("s_nop 4")
        for i in range(4):
            A(f"v_add_f32_dpp {v(D[0]+i)}, {v(D[1]+i)}, {v(DO[1]+i)} row_ror:8 row_mask:0xf bank_mask:0xc")
    E(ds("r", f"ds_write_b128 {v(V_RW if isV else 126)}, {v(D[0],4)} offset:{0 if isV else S_LRED-HI}"))
    E.drain()
    A("s_barrier")

def preload(A, E, z=True):
    for j in range(3):
        for it in wl_read(j): E(it)
    for k in range(3 if z else 0):
        for l in zero(ACC+4*k): A(l)

def gatherA(A, E, isV, cls, lab, flags):
    mt = 72
    vtw = V_TW if isV else V_PLD
    def advance():
        A(f"s_add_u32 {s(S_STEP)}, {s(S_STEP)}, 1")
        for c_, n_, p_ in ((S_Z,S_ZN,S_ZP),(S_P,S_PN,S_PP)):
            A(f"s_mov_b32 {s(S_T)}, {s(c_)}"); A(f"s_mov_b32 {s(c_)}, {s(n_)}"); A(f"s_mov_b32 {s(n_)}, {s(p_)}"); A(f"s_mov_b32 {s(p_)}, {s(S_T)}")
        A(f"s_mov_b32 {s(S_T)}, {s(S_L)}"); A(f"s_mov_b32 {s(S_L)}, {s(S_LN)}"); A(f"s_mov_b32 {s(S_LN)}, {s(S_T)}")
        A(f"s_add_u32 {s(S_US)}, {s(S_US)}, {40*32768}")
        if isV: A(f"s_add_u32 {s(S_US2)}, {s(S_US2)}, {40*32768}")
        A(f"s_add_u32 {s(S_EXP)}, {s(S_EXP)}, 327680")
        A(f"s_add_u32 {s(S_ARR)}, {s(S_ARR)}, 128")
        if not isV: A(f"s_add_u32 {s(S_KMX)}, {s(S_KMX)}, {NH*3072}")
        preload(A, E)
    if cls == 0:
        st = 1024
        for w in range(4): E(ds("f", f"ds_read_b128 {v(AF+4*w,4)}, {v(V_FINR)} offset:{w*st}"))
        E.drain()
        for i in range(4): A(f"v_add_f32 {v(AF+i)}, {v(AF+i)}, {v(AF+4+i)}")
        for i in range(4): A(f"v_add_f32 {v(AF+8+i)}, {v(AF+8+i)}, {v(AF+12+i)}")
        for i in range(4): A(f"v_add_f32 {v(AF+i)}, {v(AF+i)}, {v(AF+8+i)}")
        A(f"s_mov_b64 exec, {s(S_MB if isV else S_MA,2)}")
        A(f"buffer_store_dwordx4 {v(AF,4)}, {v(vtw)}, {s(S_WS,4)}, {s(S_RW)} offen sc0 sc1")
        A("s_mov_b64 exec, -1")
        tick(A, 3)
        advance()
        if DELAY0: A(f"s_sleep {DELAY0}")
        A(f"s_mov_b64 exec, {s(S_MB if isV else S_MA,2)}")
        labt = A.newlabel("GT")
        loop_top(A, labt, 13)
        A(f"buffer_load_dwordx4 {v(AF+4,4)}, {v(vtw)}, {s(S_WS,4)}, {s(S_RR)} offen sc1")
        A("s_waitcnt vmcnt(0)")
        for l in maxtree(range(AF+4, AF+8), mt): A(l)
        for i in range(4): A(f"v_add_f32 {v(AF+8+i)}, {v(AF+i)}, {v(AF+4+i)}")
        A(f"v_cmp_eq_u32 vcc, -1, {v(mt)}")
        for i in range(2): A(f"v_cvt_pk_bf16_f32 {v(AF+8+i)}, {v(AF+8+2*i)}, {v(AF+9+2*i)}")
        retry(A, labt, 13)
        dual(A, [f"buffer_store_dwordx2 {v(AF+8,2)}, {v(V_FINRM)}, {s(S_WS,4)}, {s(S_L)} offen",
                 f"buffer_store_dwordx2 {v(V_POI,2)}, {v(V_FINRM)}, {s(S_WS,4)}, {s(S_LN)} offen"])
        A("s_mov_b64 exec, -1")
        if not isV: p_poison(A, S_PN)
        A(f"s_add_u32 {s(S_RR)}, {s(S_RR)}, 40960")
        A(f"s_add_u32 {s(S_RW)}, {s(S_RW)}, 40960")
    else:
        tick(A, 3)
        window(A, E, isV, cls, flags)
        advance()
    A("s_barrier")
    tick(A, 4)
    if (DELAYLV if isV else DELAYL): A(f"s_sleep {DELAYLV if isV else DELAYL}")
    G = AF + 12
    A(f"s_add_u32 {s(S_T)}, {s(S_L)}, 4096")
    A(f"s_add_u32 {s(S_T2)}, {s(S_L)}, {s(S_G3)}")
    A(f"v_mov_b64 {v(G+8,2)}, 0"); A(f"v_mov_b64 {v(G+10,2)}, 0")
    if STAMP == 1: tick(A, 8)
    loop_top(A, lab, 12)
    A(f"buffer_load_dwordx4 {v(G,4)}, {v(V_T7)}, {s(S_WS,4)}, {s(S_L)} offen sc1")
    A(f"buffer_load_dwordx4 {v(G+4,4)}, {v(V_T7)}, {s(S_WS,4)}, {s(S_T)} offen sc1")
    A(f"s_mov_b64 exec, {s(S_M3,2)}")
    A(f"buffer_load_dwordx4 {v(G+8,4)}, {v(V_T7)}, {s(S_WS,4)}, {s(S_T2)} offen sc1")
    return lab

def gatherA2(A, E, lab):
    G = AF + 12; mt = 72
    A("s_waitcnt vmcnt(0)")
    if STAMP == 1: tick(A, 9)
    A("s_mov_b64 exec, -1")
    mtree = maxtree(range(G, G+12), mt)
    E(ds("g", f"ds_write_b128 {v(V_GA)}, {v(G,4)}"))
    for l in mtree: A(l)
    A(f"v_cmp_eq_u32 vcc, -1, {v(mt)}")
    retry(A, lab, 12)
    E(ds("g", f"ds_write_b128 {v(V_GA)}, {v(G+4,4)} offset:4096"))
    A(f"s_mov_b64 exec, {s(S_M3,2)}")
    E(ds("g", f"ds_write_b128 {v(V_G3W)}, {v(G+8,4)}"))
    A("s_mov_b64 exec, -1")
    tick(A, 5)
    E.drain()

S_OLO = 40; S_OHI = 41; S_TGT = 66
def probes(A, isV, ahead):
    A(f"v_cmp_le_u32 vcc, 32, {v(V_FL)}")
    A(f"s_add_u32 {s(S_T)}, {s(S_TGT)}, 1")
    A(f"s_max_u32 {s(S_T)}, {s(S_T)}, {s(S_KNOWN)}")
    A("s_cmp_lg_u64 vcc, 0")
    A(f"s_cselect_b32 {s(S_KNOWN)}, {s(S_T)}, {s(S_KNOWN)}")
    u_check(A, ahead)
    if not isV: k_check(A)
    A(f"s_add_u32 {s(S_TGT)}, {s(S_KNOWN)}, 3")
    A(f"s_min_u32 {s(S_TGT)}, {s(S_TGT)}, {NSEG-1}")
    A(f"s_lshl_b32 {s(S_T)}, {s(S_TGT)}, 7")
    A(f"s_add_u32 {s(S_T)}, {s(S_T)}, {CN_U}")
    A(f"buffer_load_dword {v(V_FL)}, {v(V_ZERO)}, {s(S_WS,4)}, {s(S_T)} offen sc1")
    if not isV:
        A(f"s_add_u32 {s(S_T)}, {s(S_FLO)}, {FL_K}")
        A(f"buffer_load_dword {v(V_FKS)}, {v(V_ZERO)}, {s(S_WS,4)}, {s(S_T)} offen sc1")

def probes_text(A, isV):
    B = Asm(); B.uid = A.uid + 400000; A.uid += 10
    probes(B, isV, 1)
    return "\n".join(B.lines)
LR = 20; RR_ = 32; UP = list(range(100, 110)) + list(range(112, 120)) + [56, 57, 58, 59, 73, 74]
def ld3_list(dst, sbase, t1, t2):
    return [(dst, f"buffer_load_dwordx4 {v(dst,4)}, {v(V_T7)}, {s(S_WS,4)}, {s(sbase)} offen sc1"),
            (dst+4, f"buffer_load_dwordx4 {v(dst+4,4)}, {v(V_T7)}, {s(S_WS,4)}, {s(t1)} offen sc1"),
            (dst+8, f"buffer_load_dwordx4 {v(dst+8,4)}, {v(V_T7)}, {s(S_WS,4)}, {s(t2)} offen sc1")]
S_A1 = 10; S_A2 = 11; S_B1 = 3; S_B2 = 101
LIST_L = lambda: ld3_list(LR, S_L, S_A1, S_A2)
LIST_R = lambda: ld3_list(RR_, S_RR, S_B1, S_B2)

GSIDE = []
def advance1(A, E, isV, pre=True):
    A(f"s_add_u32 {s(S_STEP)}, {s(S_STEP)}, 1")
    for c_, n_, p_ in ((S_Z,S_ZN,S_ZP),(S_P,S_PN,S_PP)):
        A(f"s_mov_b32 {s(S_T)}, {s(c_)}"); A(f"s_mov_b32 {s(c_)}, {s(n_)}"); A(f"s_mov_b32 {s(n_)}, {s(p_)}"); A(f"s_mov_b32 {s(p_)}, {s(S_T)}")
    A(f"s_mov_b32 {s(S_T)}, {s(S_L)}"); A(f"s_mov_b32 {s(S_L)}, {s(S_LN)}"); A(f"s_mov_b32 {s(S_LN)}, {s(S_T)}")
    A(f"s_add_u32 {s(S_US)}, {s(S_US)}, {40*32768}")
    if isV: A(f"s_add_u32 {s(S_US2)}, {s(S_US2)}, {40*32768}")
    A(f"s_add_u32 {s(S_ARR)}, {s(S_ARR)}, 128")
    A(f"s_add_u32 {s(S_XW)}, {s(S_XW)}, 256"); A(f"s_add_u32 {s(S_XR)}, {s(S_XR)}, 256")
    if pre: preload(A, E, False)

def side_ops(A, E, isV, cls, flags, where):
    n = 0
    adv = where == 'G'
    if PL_X == where:
        z_export(A, isV, ZF, None); n += 2 if isV else 1
    if isV and PL_P == where:
        zs = S_ZN if adv else S_ZP
        A(f"s_add_u32 {s(S_T2)}, {s(zs)}, {4*8192}")
        dual(A, [f"buffer_store_dwordx4 {v(V_POI,4)}, {v(V_ZS4)}, {s(S_WS,4)}, {s(zs)} offen",
                 f"buffer_store_dwordx4 {v(V_POI,4)}, {v(V_ZS4)}, {s(S_WS,4)}, {s(S_T2)} offen",
                 f"buffer_store_dwordx2 {v(V_POI,2)}, {v(V_ZS2)}, {s(S_WS,4)}, {s(zs)} offen"])
        n += 3
    if cls == 0 and adv and PL_X != 'S':
        A(f"s_mov_b64 exec, {s(S_MB if isV else S_MA,2)}")
        dual(A, [f"buffer_store_dwordx2 {v(V_POI,2)}, {v(V_FINRM)}, {s(S_WS,4)}, {s(S_LN)} offen"])
        A("s_mov_b64 exec, -1")
        n += 1
        if not isV: p_poison(A, S_PN); n += 2
    if cls != 0 and not isV and PL_K == where:
        A(f"s_xor_b32 {s(S_MK)}, {s(S_MK)}, {S_LK ^ (S_LK + 16384)}")
        k_dma(A, cls); n += (6 if cls == 12 else 0) if K2W else 4
    if cls != 0 and not isV and PL_M == where:
        km_export(A, E, 44); n += 1
        A(f"s_add_u32 {s(S_KMX)}, {s(S_KMX)}, {NH*3072}")
    if flags and cls == PROBEW and PL_M == where:
        probes(A, isV, 2 if where in 'TW' else 1); n += 1 if isV else 2
    return n

def g1_bottom(A, E, isV, cls, flags):
    if cls == 0:
        st = 1024
        for w in range(4): E(ds("f", f"ds_read_b128 {v(AF+4*w,4)}, {v(V_FINR)} offset:{w*st}"))
        E.drain()
        for i in range(4): A(f"v_add_f32 {v(AF+i)}, {v(AF+i)}, {v(AF+4+i)}")
        for i in range(4): A(f"v_add_f32 {v(AF+8+i)}, {v(AF+8+i)}, {v(AF+12+i)}")
        for i in range(4): A(f"v_add_f32 {v(AF+i)}, {v(AF+i)}, {v(AF+8+i)}")
        for i in range(2): A(f"v_cvt_pk_bf16_f32 {v(AF+24+i)}, {v(AF+2*i)}, {v(AF+1+2*i)}")
        if WIDE:
            A(f"v_mov_b64 {v(AF+26,2)}, {v(AF+24,2)}")
            A("s_nop 1")
            A(f"v_permlane16_swap_b32 {v(AF+24)}, {v(AF+26)}")
            A(f"v_permlane16_swap_b32 {v(AF+25)}, {v(AF+27)}")
            A(f"s_mov_b32 exec_lo, {'0x0000ffff' if isV else '0x000000ff'}")
            A("s_mov_b32 exec_hi, 0x000000ff")
            A(f"buffer_store_dwordx4 {v(AF+24,4)}, {v(V_FINRM)}, {s(S_WS,4)}, {s(S_RW)} offen sc0 sc1")
            dual(A, [f"buffer_store_dwordx4 {v(AF+24,4)}, {v(V_FINRM)}, {s(S_WS,4)}, {s(S_LN)} offen"])
        else:
            A(f"s_mov_b64 exec, {s(S_MB if isV else S_MA,2)}")
            A(f"buffer_store_dwordx2 {v(AF+24,2)}, {v(V_FINRM)}, {s(S_WS,4)}, {s(S_RW)} offen sc0 sc1")
            dual(A, [f"buffer_store_dwordx2 {v(AF+24,2)}, {v(V_FINRM)}, {s(S_WS,4)}, {s(S_LN)} offen"])
        A("s_mov_b64 exec, -1")
        if HINTA == 1: hint_store(A, 128, 56)
        if not HINTA: A("s_barrier")
    nw_ = 0
    if 'W' in (PL_K, PL_M) and cls != 0 and (not isV or cls == PROBEW):
        if WDEL: A(f"s_sleep {WDEL}")
        nw_ = side_ops(A, E, isV, cls, flags, 'W')
    tick(A, 3)
    tr(A, 5)
    if HINTA and HINTA != 5 and cls == 3 and (HINTA < 3 or XHINT == 1):
        preload(A, E, False)
        if HINTA >= 3: gate(A, 128, 1, 57, 58, 59, 9, nw_, 0, DELAYH, cross=True)
        else:
            hint_poll(A, 128, 32, 57, 58, 59, 9, cross=XHINT, first=not XHINT)
            if DELAYH: A(f"s_sleep {DELAYH}")
    advance1(A, E, isV, not (HINTA and HINTA != 5 and cls == 3 and (HINTA < 3 or XHINT == 1)))
    for r in (LR+8, LR+10, RR_+8, RR_+10): A(f"v_mov_b64 {v(r,2)}, 0")
    A(f"s_add_u32 {s(S_A1)}, {s(S_L)}, 4096"); A(f"s_add_u32 {s(S_A2)}, {s(S_L)}, {s(S_G3)}")
    mp_init(A, ["-1", "-1", s(S_M3,2)]); mp_init(A, ["-1", "-1", s(S_M3,2)], 3)
    A(f"s_add_u32 {s(S_B1)}, {s(S_RR)}, 4096"); A(f"s_add_u32 {s(S_B2)}, {s(S_RR)}, {s(S_G3)}")
    if cls == 0 and HINTA == 2 and DELAY0: A(f"s_sleep {DELAY0}")
    if cls == 3 and HINTA == 5:
        if XHINT:
            A(f"s_waitcnt vmcnt({nw_})")
            A(f"v_readfirstlane_b32 {s(S_T2)}, {v(58)}")
            A(f"s_add_u32 {s(S_T)}, {s(S_TD)}, {XLATE}")
            A(f"s_cmp_lt_i32 {s(S_T2)}, {s(S_HN)}")
            A(f"s_cselect_b32 {s(S_T2)}, {s(S_T)}, {s(S_T2)}")
            if STAMP: A(f"s_addc_u32 {s(S_TS+9)}, {s(S_TS+9)}, 0")
            A(f"s_max_i32 {s(S_TD)}, {s(S_TD)}, {s(S_T2)}")
        ts_wait(A, E, S_TD, TA)
    if cls == 3 and HINTA == 4:
        lp = A.newlabel("TW"); dn = A.newlabel("TWd")
        if XHINT == 2:
            A(f"s_waitcnt vmcnt({nw_})")
            A(f"v_readfirstlane_b32 {s(S_T)}, {v(58)}")
            A(f"s_cmp_lt_i32 {s(S_T)}, {s(S_HN)}")
            A(f"s_cselect_b32 {s(S_T2)}, {XDELTA}, 0")
            A(f"s_add_u32 {s(S_TD)}, {s(S_TD)}, {s(S_T2)}")
            if STAMP: A(f"s_cmp_lt_i32 {s(S_T)}, {s(S_HN)}"); A(f"s_addc_u32 {s(S_TS+9)}, {s(S_TS+9)}, 0")
        A(f"s_memtime {s(76 if not (TRACE or STAMP) else 92,2)}"); A("s_waitcnt lgkmcnt(0)"); E.reset()
        A(f"s_sub_u32 {s(S_T)}, {s(S_TD)}, {s(76 if not (TRACE or STAMP) else 92)}")
        A(f"s_cmp_gt_i32 {s(S_T)}, 4000"); A(f"s_cselect_b32 {s(S_T)}, 0, {s(S_T)}")
        A.label(lp)
        A(f"s_sub_u32 {s(S_T)}, {s(S_T)}, {TWSTEP}")
        A(f"s_cmp_gt_i32 {s(S_T)}, 0")
        A(f"s_cbranch_scc1 {lp}")
    if cls == 0 and HINTA >= 3 and (DELAY0V if isV else DELAY0): A(f"s_sleep {DELAY0V if isV else DELAY0}")
    if cls != 0 or isV: tr(A, 9)
    if cls != 0 or HINTA: A("s_barrier")
    tick(A, 4)
    d = (DELAYLV if isV else DELAYL) - (2 if cls == 0 and not HINTA else 0)
    if d: A(f"s_sleep {d}")
    if STAMP == 1: tick(A, 8)
    tr(A, 6)

def nside(isV, cls, flags):
    B = Asm(); n0 = len(STUBS)
    n = side_ops(B, Emit(B), isV, cls, flags, 'G')
    del STUBS[n0:]
    return n

def g1_top(A, E, isV, cls, flags):
    mt = 72
    unp = []
    for j in range(12):
        unp += [f"v_lshlrev_b32 {v(UP[2*j])}, 16, {v(LR+j)}", f"v_and_b32 {v(UP[2*j+1])}, 0xffff0000, {v(LR+j)}"]
    TM = [60, 61, 62, 63, 64, 65, 66, 67]; OUT = 68
    lab = A.newlabel("GA")
    loop_top(A, lab, 12)
    mp_issue(A, LIST_L() + LIST_R())
    nx = side_ops(A, E, isV, cls, flags, 'G')
    A(f"s_waitcnt vmcnt({3+nx})")
    tr(A, 7)
    for l in mp_check(LIST_L(), 72) + unp: A(l)
    for f in range(3):
        A(f"s_waitcnt vmcnt({2-f+nx})")
        if f == 2: tr(A, 8)
        A(f"v_max_u32 {v(72)}, {v(RR_+4*f)}, {v(RR_+4*f+2)}")
        for j in range(4):
            A(f"v_dot2_f32_bf16 {v(TM[2*j])}, {v(RR_+4*f+j)}, {s(S_OLO)}, {v(UP[8*f+2*j])}")
            A(f"v_dot2_f32_bf16 {v(TM[2*j+1])}, {v(RR_+4*f+j)}, {s(S_OHI)}, {v(UP[8*f+2*j+1])}")
        A(f"v_cmp_eq_u32 {s(FPS[3+f],2)}, -1, {v(72)}")
        o = OUT if f != 1 else 44
        for j in range(4):
            A(f"v_cvt_pk_bf16_f32 {v(o+j)}, {v(TM[2*j])}, {v(TM[2*j+1])}")
        if f == 2: A(f"s_mov_b64 exec, {s(S_M3,2)}")
        E(ds("g", f"ds_write_b128 {v(V_GA if f < 2 else V_G3W)}, {v(o,4)} offset:{4096 if f == 1 else 0}"))
    A("s_mov_b64 exec, -1")
    if STAMP == 3:
        A(f"s_or_b64 vcc, {s(FPS[0],2)}, {s(FPS[1],2)}"); A(f"s_or_b64 vcc, vcc, {s(FPS[2],2)}"); A(f"s_addc_u32 {s(S_TS+8)}, {s(S_TS+8)}, 0")
        A(f"s_or_b64 vcc, {s(FPS[3],2)}, {s(FPS[4],2)}"); A(f"s_or_b64 vcc, vcc, {s(FPS[5],2)}"); A(f"s_addc_u32 {s(S_TS+13)}, {s(S_TS+13)}, 0")
    mp_close(A, 6, lab)
    for k in range(3):
        for l in zero(ACC+4*k): A(l)
    if PL_X == 'G': A(f"s_add_u32 {s(S_EXP)}, {s(S_EXP)}, 327680")
    A(f"s_add_u32 {s(S_RR)}, {s(S_RR)}, 20480")
    A(f"s_add_u32 {s(S_RW)}, {s(S_RW)}, 20480")
    tick(A, 5)
    tr(A, 0)
    E.drain()

def stage_side(A, isV, cls):
    if VAR != 1 or PL_X != 'S': return []
    L = [f"s_add_u32 {s(S_T)}, {s(S_EXP)}, {s(S_ZL)}",
         f"buffer_store_dwordx4 {v(ZF,4)}, {v(V_L16)}, {s(S_WS,4)}, {s(S_T)} offen sc0 sc1"]
    if isV:
        L += [f"s_add_u32 {s(S_T)}, {s(S_EXP)}, {s(S_ZL2)}",
              "\n".join([f"s_mov_b64 exec, {s(S_MA,2)}", f"buffer_store_dwordx4 {v(ZF+4,4)}, {v(V_ZH)}, {s(S_WS,4)}, {s(S_T)} offen sc0 sc1", "s_mov_b64 exec, -1"])]
    L += [f"s_mov_b32 {s(S_EXP)}, {s(S_EXN)}", f"s_add_u32 {s(S_EXN)}, {s(S_EXN)}, 327680"]
    T = [[0, 4, L]]
    if cls == 0:
        B = Asm(); B.uid = A.uid + 300000; A.uid += 10
        B(f"s_mov_b64 exec, {s(S_MB if isV else S_MA,2)}")
        dual(B, [f"buffer_store_dwordx2 {v(V_POI,2)}, {v(V_FINRM)}, {s(S_WS,4)}, {s(S_LN)} offen"])
        B("s_mov_b64 exec, -1")
        T.append([8, 12, ["\n".join(B.lines)]])
        if not isV:
            B = Asm(); B.uid = A.uid + 310000; A.uid += 10
            p_poison(B, S_PN)
            T.append([10, 14, ["\n".join(B.lines)]])
    return T

def chain_loop(A, isV, cls, flags):
    E = Emit(A)
    top = A.newlabel("CH_top"); fin = A.newlabel("CH_fin"); ent = A.newlabel("CH_ent"); galab = A.newlabel("GAx")
    preload(A, E); E.drain()
    if TRACE:
        global V_TRC, V_TRA4
        V_TRC, V_TRA4 = (111, 110) if isV else (125, 110)
        A(f"s_lshl_b32 s95, {s(S_GRP)}, 5"); A(f"s_add_u32 s95, s95, {s(S_C)}"); A("s_lshl_b32 s95, s95, 2"); A(f"s_add_u32 s95, s95, {s(S_WAVE)}")
        A("s_lshl_b32 s95, s95, 14"); A(f"s_add_u32 s95, s95, {WS_SCR + 4*1048576}")
        A("s_memrealtime s[88:89]"); A("s_memtime s[70:71]"); A("s_waitcnt lgkmcnt(0)")
    if STAMP:
        A(f"s_memtime {s(88,2)}"); A(f"s_memrealtime {s(92,2)}"); A("s_waitcnt lgkmcnt(0)"); A(f"s_mov_b32 {s(86)}, {s(88)}"); A(f"s_mov_b32 {s(87)}, {s(92)}")
    A(f"s_branch {ent}")
    A.label(top)
    if VAR == 2: gatherA2(A, E, galab)
    else: g1_top(A, E, isV, cls, flags)
    A.label(ent)
    A("s_barrier")
    tick(A, 6)
    if STAMP == 3 and cls == 3:
        A(f"s_memrealtime {s(92,2)}"); A(f"s_lshl_b32 s94, {s(S_STEP)}, 2"); A(f"s_lshl_b32 s95, {s(S_HEAD)}, 8"); A("s_add_u32 s94, s94, s95")
        A(f"s_add_u32 s94, s94, {WS_SCR + 3*1048576 + 65536}"); A("s_waitcnt lgkmcnt(0)"); A(f"v_mov_b32 {v(XS+19)}, s92")
        A(f"buffer_store_dword {v(XS+19)}, {v(V_ZERO)}, {s(S_WS,4)}, s94 offen")
    if STAMP in (1, 3):
        rs = A.newlabel("rs"); rb = A.newlabel("rb")
        A(f"s_cmp_eq_u32 {s(S_STEP)}, 8"); A(f"s_cbranch_scc1 {rs}"); A.label(rb)
        B = Asm(); B.uid = A.uid + 50000; tstamp(B, 3)
        STUBS.append([rs + ":"] + B.lines + [f"s_memtime {s(88,2)}", f"s_memrealtime {s(92,2)}", "s_waitcnt lgkmcnt(0)", f"s_mov_b32 {s(86)}, {s(88)}", f"s_mov_b32 {s(87)}, {s(92)}"] +
                     [f"s_mov_b32 {s(S_TS+k)}, 0" for k in range(16)] + [f"s_branch {rb}"])
    if STAMP == 2:
        A(f"s_memrealtime {s(88,2)}"); A("s_waitcnt lgkmcnt(0)")
        A(f"s_cmp_eq_u32 {s(S_STEP)}, {TSTEP}"); A(f"s_cselect_b32 {s(S_TS+7)}, {s(88)}, {s(S_TS+7)}")
    if isV: v_stage(A, E, cls, flags)
    else: s_stage(A, E, cls, flags)
    tick(A, 0)
    A(f"s_cmp_eq_u32 {s(S_STEP)}, {NSTEP-1}")
    A(f"s_cbranch_scc1 {fin}")
    if not isV and cls == 0: s_tail(A, E)
    tick(A, 1)
    reduce_stage(A, E, isV, cls, flags)
    tick(A, 2)
    if VAR == 2: gatherA(A, E, isV, cls, galab, flags)
    else: g1_bottom(A, E, isV, cls, flags)
    A(f"s_branch {top}")
    flush_stubs(A)
    A.label(fin)
    E.reset()
    if STAMP == 3:
        A(f"s_memtime {s(88,2)}"); A(f"s_memrealtime {s(92,2)}"); A("s_waitcnt lgkmcnt(0)")
        A(f"s_sub_u32 {s(S_TS)}, {s(88)}, {s(86)}"); A(f"s_sub_u32 {s(S_TS+1)}, {s(92)}, {s(87)}")
    if isV:
        A(f"s_add_u32 {s(S_T2)}, {s(S_EXP)}, {4*8192}")
        A(f"buffer_store_dwordx4 {v(XS,4)}, {v(V_ZS4)}, {s(S_WS,4)}, {s(S_EXP)} offen sc0 sc1")
        A(f"buffer_store_dwordx4 {v(XS+4,4)}, {v(V_ZS4)}, {s(S_WS,4)}, {s(S_T2)} offen sc0 sc1")
        A(f"buffer_store_dwordx2 {v(XS+8,2)}, {v(V_ZS2)}, {s(S_WS,4)}, {s(S_EXP)} offen sc0 sc1")
    elif cls != 0:
        km_export(A, E, XS)
    A("s_waitcnt vmcnt(0)")
    A("s_barrier")
    if flags and cls == 0:
        A(f"v_mov_b32 v56, 1"); A(f"v_mov_b32 v57, {NSEG}")
        A(f"s_add_u32 {s(S_T)}, {s(S_FLO)}, {FL_KM}")
        A("s_mov_b64 exec, 1")
        if not isV: A(f"buffer_store_dword v57, {v(V_ZERO)}, {s(S_WS,4)}, {s(S_T)} offen sc0 sc1")
        A(f"buffer_atomic_add v56, {v(V_ZERO)}, {s(S_WS,4)}, {s(S_ARR)} offen offset:128 sc1")
        A(f"buffer_atomic_add v56, {v(V_ZERO)}, {s(S_WS,4)}, {s(S_ARR)} offen offset:256 sc1")
        A("s_mov_b64 exec, -1")
    if STAMP:
        A(f"s_lshl_b32 {s(S_T)}, {s(S_GRP)}, 5")
        A(f"s_add_u32 {s(S_T)}, {s(S_T)}, {s(S_C)}")
        A(f"s_lshl_b32 {s(S_T)}, {s(S_T)}, 2")
        A(f"s_add_u32 {s(S_T)}, {s(S_T)}, {s(S_WAVE)}")
        A(f"s_lshl_b32 {s(S_T)}, {s(S_T)}, 6")
        A(f"s_add_u32 {s(S_T)}, {s(S_T)}, {WS_SCR + 1048576}")
        for k in range(16):
            A(f"v_mov_b32 v21, {s(S_TS+k) if k != 14 else s(S_FAST)}")
            A(f"buffer_store_dword v21, {v(V_ZERO)}, {s(S_WS,4)}, {s(S_T)} offen offset:{4*k}")
        A("s_waitcnt vmcnt(0)")

def role_chain(A, isV, end_label, flags=False):
    global CUR_ORD
    CUR_ORD = ORD_V if isV else ORD_S
    A.c("================ role chain %s ================" % ("V" if isV else "S"))
    A(f"s_load_dwordx2 {s(S_W1,2)}, s[0:1], {KA['Wv' if isV else 'Wq']}")
    A(f"s_load_dwordx2 {s(S_W2,2)}, s[0:1], {KA['Wo' if isV else 'Wk']}")
    A(f"s_load_dwordx2 {s(S_X,2)}, s[0:1], {KA['mem0']}")
    A(f"s_and_b32 {s(S_HEAD)}, {s(S_C)}, 15")
    A(f"s_lshl_b32 {s(S_T)}, {s(S_GRP)}, 4")
    A(f"s_add_u32 {s(S_HEAD)}, {s(S_HEAD)}, {s(S_T)}")
    A(f"s_getreg_b32 {s(S_FAST)}, hwreg(HW_REG_XCC_ID, 0, 4)")
    A(f"s_lshl_b32 {s(S_T)}, {s(S_GRP)}, 5")
    A(f"s_add_u32 {s(S_T)}, {s(S_T)}, {s(S_C)}")
    A(f"s_lshl_b32 {s(S_T)}, {s(S_T)}, 2")
    A(f"s_add_u32 {s(S_T2)}, {s(S_T)}, {MB_X}")
    if not flags: publish(A, S_FAST, S_T2)
    A("s_waitcnt lgkmcnt(0)")
    srd_finish(A, S_W1, W_BYTES); srd_finish(A, S_W2, W_BYTES); srd_finish(A, S_X, 10240)
    A(f"s_mul_i32 s66, {s(S_HEAD)}, 384")
    A("s_waitcnt vmcnt(0)")
    def hook(c1, c2):
        def f(c):
            if not flags: return
            if c == c1: init_load(A, 124, 125)
            if c == c2:
                init_wait(A, 124, 125)
                publish(A, S_FAST, S_T2, vt=126)
        return f
    if not isV:
        load_w_rows384(A, [S_W1, S_W2], 66, lambda c, kk, t, half: wdest(((c//10)*3+t)*10 + c%10, 2*kk+half), rowmap="sparse", vt=116, after_read=hook(8, 14))
    else:
        load_w_rows384(A, [S_W1], 66, lambda c, kk, t, half: wdest(t*10 + c, 2*kk+half), rowmap="sparse", vt=116, after_read=hook(8, -1))
        A(f"s_mul_i32 s66, {s(S_HEAD)}, 245760")
        load_wo(A, S_W2, 66, lambda c, t, half: wdest(30 + 3*t + c//2, 2*(c&1)+half), sparse=True, vt=116, after_read=hook(-1, 1))
    A(f"s_mul_i32 {s(S_T)}, {s(S_WAVE)}, 24576")
    A(f"v_lshl_add_u32 {v(V_WL)}, {v(V_LANE)}, 4, {s(S_T)}")
    for j in range(12):
        A(f"ds_write_b128 {v(V_WL)}, {v(AF+8*j,4)} offset:{j*2048}")
        A(f"ds_write_b128 {v(V_WL)}, {v(AF+8*j+4,4)} offset:{j*2048+1024}")
    A("s_waitcnt lgkmcnt(0)")
    tstamp(A, 2)
    setup_common(A, isV)
    A(f"v_and_b32 v20, 31, {v(V_LANE)}")
    A(f"v_lshlrev_b32 v20, 2, v20")
    A(f"s_lshl_b32 {s(S_T)}, {s(S_GRP)}, 7")
    A(f"s_add_u32 {s(S_T)}, {s(S_T)}, {MB_X}")
    lab = A.newlabel("XH")
    loop_top(A, lab)
    A(f"buffer_load_dword v21, v20, {s(S_WS,4)}, {s(S_T)} offen sc1")
    A("s_waitcnt vmcnt(0)")
    A("v_cmp_eq_u32 vcc, -1, v21")
    retry(A, lab)
    jx = A.newlabel("XJ"); A(f"s_branch {jx}"); flush_stubs(A); A.label(jx)
    A(f"v_cmp_ne_u32 vcc, {s(S_FAST)}, v21")
    A("s_cmp_eq_u64 vcc, 0")
    A(f"s_cselect_b32 {s(S_FAST)}, 1, 0")
    A(f"v_bfe_u32 v20, {v(V_LANE)}, 1, 3")
    A(f"v_mul_u32_u24 v20, 1280, v20")
    A(f"v_lshrrev_b32 v21, 4, {v(V_LANE)}")
    A(f"v_lshl_add_u32 v20, v21, 5, v20")
    A(f"v_and_b32 v21, 1, {v(V_LANE)}")
    A(f"v_lshl_add_u32 v20, v21, 4, v20")
    A(f"s_lshl_b32 {s(S_T)}, {s(S_WAVE)}, 7")
    A(f"s_lshl_b32 {s(S_T2)}, {s(S_WAVE)}, 10")
    for j in range(3):
        sk = A.newlabel("m0s")
        if j == 2:
            A(f"s_cmp_ge_u32 {s(S_WAVE)}, 2"); A(f"s_cbranch_scc1 {sk}")
        A(f"s_add_u32 m0, {s(S_T2)}, {L_MEM + j*4096 - j*512}")
        A("s_nop 0")
        A(f"buffer_load_dwordx4 v20, {s(S_X,4)}, {s(S_T)} offen offset:{j*512} lds")
        if j == 2: A.label(sk)
    if not isV:
        sk = A.newlabel("k0s")
        A(f"s_cmp_eq_u32 {s(S_WAVE)}, 0"); A(f"s_cbranch_scc1 {sk}")
        if K2W:
            A(f"s_cmp_eq_u32 {s(S_WAVE)}, 3"); A(f"s_cselect_b32 {s(S_KN)}, 3, {s(S_KN)}"); A(f"s_cbranch_scc1 {sk}")
        if flags: k_check(A)
        k_dma(A)
        if flags: k_check(A)
        if VAR == 1 and PL_K != 'S':
            A(f"s_xor_b32 {s(S_MK)}, {s(S_MK)}, {S_LK ^ (S_LK + 16384)}")
            k_dma(A)
            if flags: k_check(A)
        A.label(sk)
    for zs, ps in ((S_Z, S_P), (S_ZN, S_PN), (S_ZP, S_PP)):
        A(f"s_add_u32 {s(S_T)}, {s(zs)}, {s(S_ZL)}")
        A(f"buffer_load_dwordx4 v[24:27], {v(V_L16)}, {s(S_WS,4)}, {s(S_T)} offen sc1")
        if isV:
            A(f"s_add_u32 {s(S_T)}, {s(zs)}, {s(S_ZL2)}")
            A(f"buffer_load_dwordx4 v[24:27], {v(V_ZH)}, {s(S_WS,4)}, {s(S_T)} offen sc1")
        A(f"s_add_u32 {s(S_T)}, {s(ps)}, {s(S_PLX)}")
        A(f"buffer_load_dwordx4 v[24:27], {v(V_L16)}, {s(S_WS,4)}, {s(S_T)} offen sc1")
        A(f"buffer_load_dwordx4 v[24:27], {v(V_L16)}, {s(S_WS,4)}, {s(S_T)} offen offset:1024 sc1")
        A(f"s_add_u32 {s(S_T)}, {s(ps)}, {s(S_PLM)}")
        A(f"buffer_load_dwordx4 v[24:27], {v(V_PLD)}, {s(S_WS,4)}, {s(S_T)} offen sc1")
    for ls in (S_L, S_LN):
        for o in (0, 4096, 6144):
            A(f"s_add_u32 {s(S_T)}, {s(ls)}, {o}")
            A(f"buffer_load_dwordx4 v[24:27], {v(V_T7)}, {s(S_WS,4)}, {s(S_T)} offen sc1")
    if flags: u_check(A, 0); u_check(A, 1)
    A("s_waitcnt vmcnt(0)")
    jx = A.newlabel("XJ"); A(f"s_branch {jx}"); flush_stubs(A); A.label(jx)
    A("s_barrier")
    classes = [0, 12, 3]
    labs = {c: A.newlabel("CLS") for c in classes}
    A(f"s_cmp_eq_u32 {s(S_WAVE)}, 0")
    A(f"s_cbranch_scc1 {labs[0]}")
    A(f"s_cmp_eq_u32 {s(S_WAVE)}, 3")
    A(f"s_cbranch_scc1 {labs[3]}")
    for c in [12, 3, 0]:
        A.label(labs[c])
        chain_loop(A, isV, c, flags)
        A(f"s_branch {end_label}")
```

```python
from common import *
import common
STAMP=False
EXP=2
NSLOT=6
EARLY=4

def load_w_rows384(A, srds, s_colbyte, dest_of, rowmap="dense", tiles=None, pfx="lw", vt=200, st=40, after_read=None):
    NS = NSLOT; CH = 24576
    if isinstance(srds, int): srds = [srds]
    nchunk = 10*len(srds)
    vo = [vt, vt+1, vt+2]; vb0 = vt+3; vb1 = vt+4; t0 = vt+5; t1 = vt+6; t2 = vt+7
    sOff = st; sT = st+1; sM = st+2
    A.c("---- weight load: DMA source offsets")
    for j in range(3):
        A(f"v_add_u32 {v(t0)}, {64*j}, {v(V_LANE)}")
        div24(A, t1, t2, t0, sT)
        A(f"v_mul_u32_u24 {v(t1)}, 12288, {v(t1)}")
        A(f"v_lshl_add_u32 {v(vo[j])}, {v(t2)}, 4, {v(t1)}")
    A(f"s_mul_i32 {s(sT)}, {s(S_WAVE)}, {16*12288}")
    A(f"s_add_u32 {s(sOff)}, {s(s_colbyte)}, {s(sT)}")
    A(f"s_mul_i32 {s(sM)}, {s(S_WAVE)}, 6144")
    A(f"v_lshrrev_b32 {v(t0)}, 4, {v(V_LANE)}")
    A(f"v_bfe_u32 {v(t1)}, {v(V_LANE)}, 2, 2")
    if rowmap == "dense":
        A(f"v_lshl_add_u32 {v(t0)}, {v(t0)}, 3, {v(t1)}")
    else:
        A(f"v_lshrrev_b32 {v(t2)}, 1, {v(t0)}")
        A(f"v_and_b32 {v(t0)}, 1, {v(t0)}")
        A(f"v_lshlrev_b32 {v(t0)}, 2, {v(t0)}")
        A(f"v_lshl_add_u32 {v(t0)}, {v(t2)}, 4, {v(t0)}")
        A(f"v_lshrrev_b32 {v(t2)}, 1, {v(t1)}")
        A(f"v_lshl_add_u32 {v(t0)}, {v(t2)}, 3, {v(t0)}")
        A(f"v_and_b32 {v(t1)}, 1, {v(t1)}")
        A(f"v_add_u32 {v(t0)}, {v(t0)}, {v(t1)}")
    A(f"v_mul_u32_u24 {v(t0)}, 384, {v(t0)}")
    A(f"v_and_b32 {v(t1)}, 3, {v(V_LANE)}")
    A(f"v_lshl_add_u32 {v(t0)}, {v(t1)}, 3, {v(t0)}")
    A(f"s_mul_i32 {s(sT)}, {s(S_WAVE)}, 96")
    A(f"v_add_u32 {v(vb0)}, {s(sT)}, {v(t0)}")
    A(f"v_add_u32 {v(vb1)}, {2*CH+CH}, {v(vb0)}")
    def issue(c):
        slot = c % NS
        for j in range(6):
            A(f"s_add_u32 m0, {s(sM)}, {slot*CH + j*1024}")
            A(f"s_add_u32 {s(sT)}, {s(sOff)}, {(c%10)*64*12288 + (j//3)*8*12288}")
            A(f"buffer_load_dwordx4 {v(vo[j%3])}, {s(srds[c//10],4)}, {s(sT)} offen lds")
    for c in range(min(NS-1, nchunk)):
        issue(c)
    for c in range(nchunk):
        later = min(nchunk-1, c+NS-2) - c
        A(f"s_waitcnt vmcnt({6*later})")
        A("s_barrier")
        if c+NS-1 < nchunk:
            issue(c+NS-1)
        slot = c % NS
        vb = vb0 if slot < 3 else vb1
        sb = (slot if slot < 3 else slot-3)*CH
        n = 0
        for kk in range(2):
            for t in range(3):
                for half in range(2):
                    if rowmap == "dense":
                        off = kk*32*384 + half*4*384 + t*32
                    else:
                        off = kk*32*384 + half*2*384 + t*32
                    A(f"ds_read_b64_tr_b16 {dest_of(c,kk,t,half)}, {v(vb)} offset:{sb+off}")
                    n += 1
        A("s_waitcnt lgkmcnt(0)")
        if after_read: after_read(c)
    A("s_barrier")

XF = 8
ACC = 32
PK = 80
V_XSRC = 2; V_XRD = 3; V_ST0 = 4; V_ST1 = 5
S_SEG = 22; S_XOFF = 23; S_DST = 24; S_M0X = 25; S_T = 26; S_FLAG = 27; S_NSEG = 28

def wreg(t, k):
    return (t*20 + k)*4

def setup_x_stream(A):
    A(f"v_lshrrev_b32 v6, 3, {v(V_LANE)}")
    A(f"s_and_b32 {s(S_T)}, {s(S_WAVE)}, 1")
    A(f"s_lshl_b32 {s(S_T)}, {s(S_T)}, 2")
    A(f"v_lshrrev_b32 v7, 4, {v(V_LANE)}")
    A(f"v_add_u32 v7, {s(S_T)}, v7")
    A(f"v_and_b32 {v(V_XSRC)}, 7, {v(V_LANE)}")
    A(f"v_xor_b32 v7, v7, {v(V_XSRC)}")
    A(f"v_mul_u32_u24 v6, 1280, v6")
    A(f"v_lshl_add_u32 v6, v7, 4, v6")
    A(f"s_mul_i32 {s(S_T)}, {s(S_WAVE)}, {8*1280}")
    A(f"v_add_u32 {v(V_XSRC)}, {s(S_T)}, v6")
    A(f"s_mul_i32 {s(S_M0X)}, {s(S_WAVE)}, 10240")
    A(f"v_and_b32 v6, 15, {v(V_LANE)}")
    A(f"v_lshrrev_b32 v7, 1, v6")
    A(f"v_lshrrev_b32 {v(V_XRD)}, 4, {v(V_LANE)}")
    A(f"v_xor_b32 v7, v7, {v(V_XRD)}")
    A(f"v_lshlrev_b32 v7, 4, v7")
    A(f"v_lshrrev_b32 {v(V_XRD)}, 3, v6")
    A(f"v_mul_u32_u24 {v(V_XRD)}, 10240, {v(V_XRD)}")
    A(f"v_and_b32 v6, 7, v6")
    A(f"v_lshl_add_u32 v6, v6, 7, v7")
    A(f"v_add_u32 {v(V_XRD)}, {v(V_XRD)}, v6")
    A(f"v_xor_b32 {v(XB+1)}, 64, {v(V_XRD)}")
    A(f"v_mov_b32 {v(XB)}, {v(V_XRD)}")
    A(f"v_add_u32 {v(XB+2)}, 40960, {v(XB)}")
    A(f"v_add_u32 {v(XB+3)}, 40960, {v(XB+1)}")

XB = 92
V_PFO = 96; V_PFD = 97; PFD = 3
def setup_pf(A):
    A(f"s_mul_i32 {s(S_T)}, {s(S_HEAD)}, 13108")
    A(f"s_lshr_b32 {s(S_T)}, {s(S_T)}, 16")
    A(f"s_mul_i32 {s(S_T)}, {s(S_T)}, 5")
    A(f"s_sub_u32 {s(S_T)}, {s(S_HEAD)}, {s(S_T)}")
    A(f"s_lshl_b32 {s(S_T)}, {s(S_T)}, 2")
    A(f"s_add_u32 {s(S_T)}, {s(S_T)}, {s(S_WAVE)}")
    A(f"s_lshl_b32 {s(S_T)}, {s(S_T)}, 11")
    A(f"s_add_u32 {s(S_T)}, {s(S_T)}, {PFD*40960}")
    A(f"v_lshl_add_u32 {v(V_PFO)}, {v(V_LANE)}, 7, {s(S_T)}")
def first_pf(A):
    A(f"v_subrev_u32 {v(V_PFO)}, {(PFD-1)*40960}, {v(V_PFO)}")
    for d in range(PFD):
        issue_pf(A)
        if d < PFD-1: A(f"v_add_u32 {v(V_PFO)}, 40960, {v(V_PFO)}")
def issue_pf(A):
    A("s_mov_b64 exec, 0xffff")
    A(f"buffer_load_dword {v(V_PFD)}, {v(V_PFO)}, {s(S_X,4)}, {s(S_XOFF)} offen")
    A("s_mov_b64 exec, -1")

XSRD = S_X; XFL = ""
def x_dma(A, buf, j, nop=True):
    A(f"s_add_u32 m0, {s(S_M0X)}, {buf*40960 + j*1024 - j*128}")
    if nop: A("s_nop 0")
    A(f"buffer_load_dwordx4 {v(V_XSRC)}, {s(XSRD,4)}, {s(S_XOFF)} offen offset:{j*128} {XFL} lds")

def issue_x(A, buf):
    for j in range(10):
        x_dma(A, buf, j)

def xread(A, buf, k):
    sl = k % 3
    for tau in range(2):
        A(f"ds_read_b128 {v(XF+sl*8+tau*4,4)}, {v(XB+buf*2+(k&1))} offset:{tau*20480+(k>>1)*1024}")

def kv_epilogue(accset, srd, sflags):
    L = []
    ac = lambda t, tau: ACC + accset*24 + (t*2+tau)*4
    for tau in range(2):
        for t in range(2):
            L.append(f"v_cvt_pk_bf16_f32 {v(PK+tau*4+t*2)}, {v(ac(t,tau))}, {v(ac(t,tau)+1)}")
            L.append(f"v_cvt_pk_bf16_f32 {v(PK+tau*4+t*2+1)}, {v(ac(t,tau)+2)}, {v(ac(t,tau)+3)}")
    for tau in range(2):
        L.append(f"v_cvt_pk_bf16_f32 {v(PK+8+tau*2)}, {v(ac(2,tau))}, {v(ac(2,tau)+1)}")
        L.append(f"v_cvt_pk_bf16_f32 {v(PK+8+tau*2+1)}, {v(ac(2,tau)+2)}, {v(ac(2,tau)+3)}")
    L.append(f"buffer_store_dwordx4 {v(PK,4)}, {v(V_ST0)}, {s(srd,4)}, {s(S_DST)} offen {sflags}")
    L.append(f"buffer_store_dwordx4 {v(PK+4,4)}, {v(V_ST0+2)}, {s(srd,4)}, {s(S_DST)} offen {sflags}")
    L.append(f"v_permlane16_swap_b32 {v(PK+8)}, {v(PK+10)}")
    L.append(f"v_permlane16_swap_b32 {v(PK+9)}, {v(PK+11)}")
    L.append(f"buffer_store_dwordx4 {v(PK+8,4)}, {v(V_ST1)}, {s(srd,4)}, {s(S_DST)} offen {sflags}")
    return L

def setup_kv_store(A):
    A(f"s_lshl_b32 {s(S_T)}, {s(S_WAVE)}, 10")
    A(f"v_lshl_add_u32 {v(V_ST0)}, {v(V_LANE)}, 4, {s(S_T)}")
    A(f"v_lshrrev_b32 v7, 4, {v(V_LANE)}")
    A(f"v_and_b32 v6, 1, v7")
    A(f"v_mul_u32_u24 v6, 6144, v6")
    A(f"v_lshrrev_b32 v7, 1, v7")
    A(f"v_lshl_add_u32 v6, v7, 8, v6")
    A(f"v_and_b32 v7, 15, {v(V_LANE)}")
    A(f"v_lshl_add_u32 v6, v7, 4, v6")
    A(f"s_lshr_b32 {s(S_T)}, {s(S_WAVE)}, 1")
    A(f"s_lshl_b32 {s(S_T)}, {s(S_T)}, 10")
    A(f"s_add_u32 {s(S_T)}, {s(S_T)}, 4096")
    A(f"v_add_u32 v6, {s(S_T)}, v6")
    A(f"s_and_b32 {s(S_T)}, {s(S_WAVE)}, 1")
    A(f"s_lshl_b32 {s(S_T)}, {s(S_T)}, 9")
    A(f"v_add_u32 {v(V_ST1)}, {s(S_T)}, v6")

def role_kv(A, flags=False):
    global V_XRD
    A.c("================ role K/V ================")
    srd_finish(A, S_W1, W_BYTES)
    A(f"s_load_dwordx2 {s(S_X,2)}, s[0:1], {KA['A_x']}")
    A(f"s_mul_i32 s30, {s(S_HEAD)}, 384")
    A(f"s_mul_i32 {s(S_T)}, {s(S_HEAD)}, 12288")
    A(f"s_add_u32 {s(S_DST)}, {s(S_DST)}, {s(S_T)}")
    A("s_waitcnt lgkmcnt(0)")
    srd_finish(A, S_X, X_BYTES)
    if STAMP: stamp(A,0)
    load_w_rows384(A, S_W1, 30, lambda c, kk, t, half: a(wreg(t, 2*c+kk)+2*half, 2))
    if STAMP: stamp(A,1)
    if flags: init_sync(A)
    setup_x_stream(A)
    setup_kv_store(A)
    setup_pf(A)
    A(f"v_add_u32 v6, 6144, {v(V_ST0)}")
    A(f"v_add_u32 v7, 0, {v(V_LANE)}")
    A(f"s_mov_b32 {s(S_XOFF)}, 0")
    A(f"s_mov_b32 {s(S_SEG)}, 0")
    issue_x(A, 0)
    A(f"s_sub_u32 {s(S_DST)}, {s(S_DST)}, {NH*12288}")
    loop = A.newlabel("KV_loop")
    first_pf(A)
    kinit(A)
    A.label(loop)
    for par in range(2):
        ktick(A, 0)
        if common.KST: A("s_waitcnt vmcnt(11)"); ktick(A, 1)
        A("s_waitcnt vmcnt(1)")
        ktick(A, 2)
        A("s_barrier")
        ktick(A, 3)
        for k in range(2):
            xread(A, par, k)
        fill = []
        skip = A.newlabel("KV_skip")
        if par == 0:
            A(f"s_cmp_eq_u32 {s(S_SEG)}, 0")
            A(f"s_cbranch_scc1 {skip}")
        if flags:
            l2 = A.newlabel("KV_np")
            A(f"s_cmp_le_u32 {s(S_SEG)}, {EARLY+1}"); A(f"s_cbranch_scc1 {l2}")
            publish_flag(A)
            A.label(l2)
        A("s_nop 4")
        for ins in kv_epilogue(1-par, S_WS, "sc0 sc1"):
            if "permlane" in ins and PK+8 == int(ins.split()[1][1:-1]): A("s_nop 1")
            A(ins)
        A.label(skip)
        A(f"s_add_u32 {s(S_DST)}, {s(S_DST)}, {NH*12288}")
        A(f"s_add_u32 {s(S_XOFF)}, {s(S_XOFF)}, {32*1280}")
        if EXP == 0:
            issue_x(A, 1-par)
            gemm_seg(A, par)
        elif EXP == 1:
            gemm_seg(A, par)
        elif EXP == 2:
            gemm_seg(A, par, dma=1-par)
        A(f"s_add_u32 {s(S_SEG)}, {s(S_SEG)}, 1")
        if flags:
            l2 = A.newlabel("KV_ne")
            A(f"s_cmp_gt_u32 {s(S_SEG)}, {EARLY}"); A(f"s_cbranch_scc1 {l2}")
            A("s_nop 5")
            for ins in kv_epilogue(par, S_WS, "sc0 sc1"): A(ins)
            A("s_waitcnt vmcnt(0)"); A("s_barrier")
            publish(A, S_SEG, S_FLAG)
            A.label(l2)
    A(f"s_cmp_lt_u32 {s(S_SEG)}, {NSEG}")
    A(f"s_cbranch_scc1 {loop}")
    A("s_waitcnt vmcnt(0)")
    A("s_barrier")
    if flags: publish_flag(A)
    A("s_nop 7")
    for ins in kv_epilogue(1, S_WS, "sc0 sc1"):
        if "permlane" in ins and PK+8 == int(ins.split()[1][1:-1]): A("s_nop 1")
        A(ins)
    A("s_waitcnt vmcnt(0)")
    kdump(A)
    if flags:
        A("s_barrier")
        A(f"s_add_u32 {s(S_SEG)}, {s(S_SEG)}, 1")
        publish_flag(A)

def gemm_seg(A, par, dma=None, accset=None):
    if accset is None: accset = par
    for k in range(20):
        if dma is not None and k < 10:
            A(f"s_add_u32 m0, {s(S_M0X)}, {dma*40960 + k*1024 - k*128}")
        if k+2 < 20:
            xread(A, par, k+2)
            A("s_waitcnt lgkmcnt(4)")
        elif k+1 < 20:
            A("s_waitcnt lgkmcnt(2)")
        else:
            A("s_waitcnt lgkmcnt(0)")
        sl = k % 3
        for t in range(3):
            for tau in range(2):
                acc = ACC + accset*24 + (t*2+tau)*4
                c = "0" if k == 0 else v(acc,4)
                A(f"v_mfma_f32_16x16x32_bf16 {v(acc,4)}, {a(wreg(t,k),4)}, {v(XF+sl*8+tau*4,4)}, {c}")
                if dma is not None and k == 11 and t == 1 and tau == 0: issue_pf(A)
                if dma is not None and k < 10 and t == 1 and tau == 0:
                    A(f"buffer_load_dwordx4 {v(V_XSRC)}, {s(XSRD,4)}, {s(S_XOFF)} offen offset:{k*128} {XFL} lds")

def publish_flag(A):
    lab = A.newlabel("pf")
    A(f"s_cmp_lg_u32 {s(S_WAVE)}, 0")
    A(f"s_cbranch_scc1 {lab}")
    A(f"s_sub_u32 {s(S_T)}, {s(S_SEG)}, 1")
    A(f"v_mov_b32 v98, {s(S_T)}")
    A(f"v_mov_b32 v99, 0")
    A(f"s_mov_b64 exec, 1")
    A(f"buffer_store_dword v98, v99, {s(S_WS,4)}, {s(S_FLAG)} offen sc0 sc1")
    A(f"s_mov_b64 exec, -1")
    A.label(lab)
```

```python
from common import *
STAMP=False
EARLY=2

def load_wo(A, srd, s_base, dest_of, sparse=False, vt=200, st=40, after_read=None):
    NS = 3; CH = 40960
    vo = vt; vbA = vt+1; vbB = vt+2; t0 = vt+5; t1 = vt+6; t2 = vt+7; vb2 = vt+3; vb3 = vt+4
    sOff = st; sT = st+1; sM = st+2; sOff2 = st+3
    A(f"v_lshlrev_b32 {v(vo)}, 4, {v(V_LANE)}")
    A(f"s_mul_i32 {s(sM)}, {s(S_WAVE)}, 10240")
    A(f"s_add_u32 {s(sOff)}, {s(s_base)}, {s(sM)}")
    A(f"s_lshr_b32 {s(sT)}, {s(S_WAVE)}, 1")
    A(f"s_mul_i32 {s(sT)}, {s(sT)}, {32*1280}")
    A(f"s_add_u32 {s(sOff2)}, {s(sOff)}, {s(sT)}")
    A(f"v_lshrrev_b32 {v(t0)}, 4, {v(V_LANE)}")
    A(f"v_bfe_u32 {v(t1)}, {v(V_LANE)}, 2, 2")
    A(f"v_and_b32 {v(t2)}, 3, {v(V_LANE)}")
    A(f"v_lshlrev_b32 {v(t2)}, 3, {v(t2)}")
    A(f"s_mul_i32 {s(sT)}, {s(S_WAVE)}, 320")
    A(f"v_add_u32 {v(t2)}, {s(sT)}, {v(t2)}")
    if not sparse:
        A(f"v_lshl_add_u32 {v(vbA)}, {v(t0)}, 2, {v(t1)}")
        A(f"v_lshl_add_u32 {v(vbB)}, {v(t0)}, 3, {v(t1)}")
        A(f"v_mul_u32_u24 {v(vbA)}, 1280, {v(vbA)}")
        A(f"v_mul_u32_u24 {v(vbB)}, 1280, {v(vbB)}")
        A(f"v_add_u32 {v(vbA)}, {v(vbA)}, {v(t2)}")
        A(f"v_add_u32 {v(vbB)}, {v(vbB)}, {v(t2)}")
    else:
        A(f"v_lshrrev_b32 {v(vbA)}, 1, {v(t0)}")
        A(f"v_and_b32 {v(t0)}, 1, {v(t0)}")
        A(f"v_lshlrev_b32 {v(t0)}, 2, {v(t0)}")
        A(f"v_lshl_add_u32 {v(t0)}, {v(vbA)}, 4, {v(t0)}")
        A(f"v_lshrrev_b32 {v(vbA)}, 1, {v(t1)}")
        A(f"v_lshl_add_u32 {v(t0)}, {v(vbA)}, 3, {v(t0)}")
        A(f"v_and_b32 {v(t1)}, 1, {v(t1)}")
        A(f"v_add_u32 {v(t0)}, {v(t0)}, {v(t1)}")
        A(f"v_mul_u32_u24 {v(vbA)}, 1280, {v(t0)}")
        A(f"v_add_u32 {v(vbA)}, {v(vbA)}, {v(t2)}")
        A(f"v_mov_b32 {v(vbB)}, {v(vbA)}")
    def issue(c):
        slot = c % NS
        if sparse: src, so = 32*c*1280, sOff
        elif c < 4: src, so = 48*c*1280, sOff
        else: src, so = (96*(c-4)+32)*1280, sOff2
        A(f"s_add_u32 {s(sT)}, {s(so)}, {src}")
        for j in range(10):
            if j % 4 == 0:
                A(f"s_add_u32 m0, {s(sM)}, {slot*CH + j*1024}")
                if j: A(f"s_add_u32 {s(sT)}, {s(sT)}, 4096")
                else: A("s_nop 0")
            A(f"buffer_load_dwordx4 {v(vo)}, {s(srd,4)}, {s(sT)} offen offset:{(j%4)*1024} lds")
    for c in range(NS-1): issue(c)
    for c in range(6):
        later = min(5, c+NS-2) - c
        A(f"s_waitcnt vmcnt({10*later})")
        A("s_barrier")
        if c+NS-1 < 6: issue(c+NS-1)
        slot = c % NS
        vb = vbA if (c < 4) else vbB
        A(f"v_add_u32 {v(vb2)}, {slot*CH}, {v(vb)}")
        for t in range(10):
            for half in range(2):
                if sparse: off = half*2*1280
                else: off = half*(16*1280 if c < 4 else 4*1280)
                A(f"ds_read_b64_tr_b16 {dest_of(c,t,half)}, {v(vb2)} offset:{off + t*32}")
            if t == 6: A("s_waitcnt lgkmcnt(0)")
        A("s_waitcnt lgkmcnt(0)")
        if after_read: after_read(c)
    A("s_barrier")

VF = 8
ACC = 56
PK = 72
V_SRC = 2; V_RD = 3; V_ST = 4; V_FL = 5; V_Z = 6
S_SEG = 22; S_SRC = 23; S_DST = 24; S_M0 = 25; S_T = 26; S_FLAG = 27; S_FIN = 28; S_NEED = 29; S_CNT = 30; S_D2 = 31

def wreg(t, ks): return (t*6+ks)*4

def v_dma(A, buf):
    A(f"s_add_u32 m0, {s(S_M0)}, {buf*12288}")
    A("s_nop 0")
    for j in range(3):
        A(f"buffer_load_dwordx4 {v(V_SRC)}, {s(S_WS,4)}, {s(S_SRC)} offen offset:{j*1024} sc1 lds")

def epi(T, st):
    ac = ACC + st*8; pk = PK + st*4
    L = [f"v_cvt_pk_bf16_f32 {v(pk)}, {v(ac)}, {v(ac+1)}", f"v_cvt_pk_bf16_f32 {v(pk+1)}, {v(ac+2)}, {v(ac+3)}",
         f"v_cvt_pk_bf16_f32 {v(pk+2)}, {v(ac+4)}, {v(ac+5)}", f"v_cvt_pk_bf16_f32 {v(pk+3)}, {v(ac+6)}, {v(ac+7)}",
         f"s_add_u32 {s(S_D2)}, {s(S_DST)}, {T*1024}",
         f"buffer_store_dwordx4 {v(pk,4)}, {v(V_ST)}, {s(S_WS,4)}, {s(S_D2)} offen sc0 sc1"]
    return L

def role_u(A, flags=False):
    A.c("================ role U ================")
    A(f"s_load_dwordx2 {s(S_W1,2)}, s[0:1], {KA['Wo']}")
    A(f"s_mul_i32 s32, {s(S_HEAD)}, 245760")
    A("s_waitcnt lgkmcnt(0)")
    srd_finish(A, S_W1, W_BYTES)
    if STAMP: stamp(A,0)
    load_wo(A, S_W1, 32, lambda c, t, half: a(wreg(t, c)+2*half, 2))
    if STAMP: stamp(A,1)
    if flags: init_sync(A)
    A(f"s_mul_i32 {s(S_M0)}, {s(S_WAVE)}, 3072")
    A(f"v_lshlrev_b32 {v(V_RD)}, 4, {v(V_LANE)}")
    A(f"v_add_u32 {v(V_SRC)}, {s(S_M0)}, {v(V_RD)}")
    A(f"s_mul_i32 {s(S_T)}, {s(S_WAVE)}, {10*1024}")
    A(f"v_add_u32 {v(V_ST)}, {s(S_T)}, {v(V_RD)}")
    A(f"v_mov_b32 {v(V_Z)}, 0")
    A(f"s_mul_i32 {s(S_SRC)}, {s(S_HEAD)}, 12288")
    A(f"s_add_u32 {s(S_SRC)}, {s(S_SRC)}, {WS_V}")
    A(f"s_mul_i32 {s(S_DST)}, {s(S_HEAD)}, 40960")
    A(f"s_add_u32 {s(S_DST)}, {s(S_DST)}, {WS_U - 40*32768}")
    A(f"s_mov_b32 {s(S_SEG)}, 0")
    if flags:
        A(f"v_mov_b32 {v(V_FL)}, 0")
        A(f"s_mov_b32 {s(S_NEED)}, 1")
        flag_wait(A, V_FL, V_Z, S_FIN, S_NEED, S_T, S_CNT)
    v_dma(A, 0)
    loop = A.newlabel("U_loop")
    A("s_waitcnt vmcnt(0)")
    A.label(loop)
    for par in range(2):
        A("s_waitcnt vmcnt(9)")
        A("s_barrier")
        for ks in range(6):
            for tau in range(2):
                A(f"ds_read_b128 {v(VF+(ks*2+tau)*4,4)}, {v(V_RD)} offset:{par*12288 + (tau*6+ks)*1024}")
        skip = A.newlabel("U_skip")
        if par == 0:
            A(f"s_cmp_eq_u32 {s(S_SEG)}, 0")
            A(f"s_cbranch_scc1 {skip}")
        if flags:
            l2 = A.newlabel("U_s2")
            A(f"s_cmp_lt_u32 {s(S_SEG)}, {2+EARLY}"); A(f"s_cbranch_scc1 {l2}")
            arrive(A, S_FLAG)
            A(f"s_add_u32 {s(S_FLAG)}, {s(S_FLAG)}, 128")
            A.label(l2)
        for ins in epi(9, 1): A(ins)
        A.label(skip)
        A(f"s_add_u32 {s(S_DST)}, {s(S_DST)}, {40*32768}")
        A(f"s_add_u32 {s(S_SRC)}, {s(S_SRC)}, {NH*12288}")
        if flags:
            A(f"s_add_u32 {s(S_NEED)}, {s(S_SEG)}, 2")
            A(f"s_min_u32 {s(S_NEED)}, {s(S_NEED)}, {NSEG}")
            flag_wait(A, V_FL, V_Z, S_FIN, S_NEED, S_T, S_CNT)
            flag_load(A, V_FL, V_Z, S_FIN)
        v_dma(A, 1-par)
        for T in range(10):
            st = T & 1
            fill = epi(T-1, 1-st) if T > 0 else []
            n = 0
            for ks in range(6):
                if T == 0:
                    A(f"s_waitcnt lgkmcnt({10-2*ks})")
                for tau in range(2):
                    acc = ACC + st*8 + tau*4
                    c = "0" if ks == 0 else v(acc,4)
                    A(f"v_mfma_f32_16x16x32_bf16 {v(acc,4)}, {v(VF+(ks*2+tau)*4,4)}, {a(wreg(T,ks),4)}, {c}")
                    n += 1
                    if n >= 4 and fill: A(fill.pop(0))
        A(f"s_add_u32 {s(S_SEG)}, {s(S_SEG)}, 1")
        if flags:
            l2 = A.newlabel("U_ne")
            A(f"s_cmp_gt_u32 {s(S_SEG)}, {EARLY}"); A(f"s_cbranch_scc1 {l2}")
            A("s_nop 5")
            for ins in epi(9, 1): A(ins)
            A("s_waitcnt vmcnt(0)"); A("s_barrier")
            arrive(A, S_FLAG)
            A(f"s_add_u32 {s(S_FLAG)}, {s(S_FLAG)}, 128")
            A.label(l2)
    A(f"s_cmp_lt_u32 {s(S_SEG)}, {NSEG}")
    A(f"s_cbranch_scc1 {loop}")
    A("s_nop 7")
    for ins in epi(9, 1): A(ins)
    A("s_waitcnt vmcnt(0)")
    if STAMP: stamp(A,2)
    if flags:
        A("s_barrier")
        arrive(A, S_FLAG)
        A(f"s_add_u32 {s(S_FLAG)}, {s(S_FLAG)}, 128")
        arrive(A, S_FLAG)
```

```python
from common import *
import common
import role_kv, role_u, role_chain, role_init, role_q, role_f, role_b, hazard, sys
NAME = "concat_heads__memory_aug_recurrent_mem_tr__sliding_block__prompt"
out = sys.argv[1]
rc = role_chain
rc.PBMODE = 2; role_f.WARM = 2
for k_, x_ in dict(DELAYL=0, DELAYLV=0, HINTB=6, HINTA=5, K2W=0, WDEL=4, PBSTEP=4, PBSTEP0=4, PBSTEPV=3, PBSTG=1, DELAY0=3, DELAY0V=3,
                   XHINT=1, XLATE=20, PL_K='B', DELAYBS=2, TB=38, TA=120, ZPRE2=0).items(): setattr(rc, k_, x_)
TS = 0; DBGT = 0; OFF = ''; BUD = None; PLAIN = 0; UX = 0
for kv in sys.argv[2:]:
    k, x = kv.split('=')
    if k == "TS": TS = int(x)
    elif k == "DBGT": DBGT = int(x)
    elif k == "OFF": OFF = x
    elif k == "ULATE": role_u.ULATE = int(x)
    elif k == "KSTART": common.KSTART = int(x)
    elif k == "WARM": role_f.WARM = int(x)
    elif k == "LATE": role_b.LATE = int(x)
    elif k == "UX": UX = int(x)
    elif k == "KST": common.KST = int(x)
    elif k == "BUD": BUD = int(x)
    elif k == "PLAIN": PLAIN = int(x)
    else: setattr(rc, k, x if k.startswith('PL_') else int(x))
ref = open("cdna_kernels/" + NAME + ".s.ref").read().split("\n")
head = [l for l in ref if l.startswith(";") and "@launch" not in l and "Override launch" not in l and "grid=ceil" not in l]
MAIN = NAME + "_kernel"
hdr = "\n".join(head) + "\n"
hdr += f"; @launch grid=(256,1,1) block=(256,1,1) lds=163840\n"
hdr += ".amdgcn_target \"amdgcn-amd-amdhsa--gfx950\"\n.text\n"
body = ""

common.TS = TS
A = Asm(); A.uid = 100
A("s_cmp_ge_u32 s2, 256"); A("s_cbranch_scc1 L_exit")
prologue(A)
tstamp(A, 0)
if DBGT: A("s_memrealtime s[96:97]"); A("s_waitcnt lgkmcnt(0)")
A("s_and_b32 s23, s2, 7"); A("s_lshr_b32 s24, s2, 3")
if BUD is not None: A(f"s_mov_b32 s100, {BUD}"); rc.SPIN_MAX = BUD
A("s_cmp_ge_u32 s23, 2"); A("s_cbranch_scc1 L_bulk")
if "C" in OFF: A("s_branch L_end")
A("s_cmp_ge_u32 s24, 16"); A("s_cbranch_scc1 L_chV")
rc.role_chain(A, False, "L_end", flags=True)
A.label("L_exit"); A("s_endpgm")
A.label("L_chV")
rc.role_chain(A, True, "L_end", flags=True)
A.label("L_bulk")
A("s_mul_i32 s25, s24, 6"); A("s_add_u32 s25, s25, s23"); A("s_sub_u32 s25, s25, 2")
A(f"s_and_b32 {s(S_HEAD)}, s25, 31")
A("s_cmp_ge_u32 s25, 64"); A("s_cbranch_scc1 L_notkv")
A(f"s_load_dwordx2 s[8:9], s[0:1], {KA['Wk']}")
A(f"s_load_dwordx2 s[10:11], s[0:1], {KA['Wv']}")
A(f"s_lshl_b32 s3, {s(S_HEAD)}, 7")
A("s_waitcnt lgkmcnt(0)")
A("s_cmp_ge_u32 s25, 32")
A("s_cselect_b32 s8, s10, s8"); A("s_cselect_b32 s9, s11, s9")
A(f"s_cselect_b32 {s(role_kv.S_DST)}, {WS_V}, {WS_K}")
A(f"s_cselect_b32 {s(role_kv.S_FLAG)}, {FL_V-FL_K}, 0")
A(f"s_add_u32 s3, s3, {FL_K}")
A(f"s_add_u32 {s(role_kv.S_FLAG)}, {s(role_kv.S_FLAG)}, s3")
if "K" not in OFF: role_kv.role_kv(A, flags=True)
A("s_branch L_end")
A.label("L_notkv")
A("s_cmp_ge_u32 s25, 96"); A("s_cbranch_scc1 L_notu")
A(f"s_lshl_b32 s3, {s(S_HEAD)}, 7")
A(f"s_mov_b32 {s(role_u.S_FLAG)}, {CN_U}"); A(f"s_add_u32 {s(role_u.S_FIN)}, s3, {FL_V}")
n0 = len(A.lines)
if "U" not in OFF: role_u.role_u(A, flags=True)
if UX:
    i0 = [i for i, l in enumerate(A.lines) if l.startswith("U_loop")][0]
    def keep(l):
        if UX & 1 and "buffer_store_dwordx4" in l: return False
        if UX & 2 and l.rstrip().endswith(" lds"): return False
        if UX & 4 and ("buffer_load_dword " in l or "buffer_store_dword " in l): return False
        if UX & 8 and "v_mfma" in l: return False
        return True
    A.lines = A.lines[:i0] + [l for l in A.lines[i0:] if keep(l)]
A("s_branch L_end")
A.label("L_notu")
A("s_cmp_ge_u32 s25, 128"); A("s_cbranch_scc1 L_notq")
if "Q" not in OFF: role_q.role_q(A, flags=True)
A("s_branch L_end")
A.label("L_notq")
A("s_cmp_ge_u32 s25, 160"); A("s_cbranch_scc1 L_notb")
if "B" not in OFF: role_b.role_b(A, flags=True)
A("s_branch L_end")
A.label("L_notb")
A("s_cmp_ge_u32 s25, 165"); A("s_cbranch_scc1 L_f")
A(f"s_sub_u32 {s(role_b.S_J)}, s25, 160")
if "3" not in OFF: role_b.role_b3(A, flags=True)
A("s_branch L_end")
A.label("L_f")
A(f"s_sub_u32 {s(role_f.S_ID)}, s25, 165"); A(f"s_mov_b32 {s(role_f.S_STR)}, {NF}")
if "F" not in OFF: role_f.role_f(A, flags=True)
A.label("L_end")
tstamp(A, 1)
if DBGT:
    for k, wg in enumerate((0, 128, 2, 58, 98+0, 170+2, 218, 255)):
        lab = A.newlabel("dt")
        A(f"s_cmp_lg_u32 s2, {wg}"); A(f"s_cbranch_scc1 {lab}")
        A("s_memrealtime s[92:93]"); A("s_waitcnt lgkmcnt(0)"); A("s_sub_u32 s92, s92, s96")
        A("v_mov_b32 v252, s92"); A(f"v_mov_b32 v253, {4*(k+1)}")
        A(f"global_store_dword v253, v252, {s(S_DBG,2)}"); A("s_waitcnt vmcnt(0)")
        A.label(lab)
A("s_endpgm")
body += kernel_header(MAIN) + A.text()
txt = hdr + body + '.section .rodata,"a"\n.p2align 6\n' + kernel_desc(MAIN)
if PLAIN: txt = txt.replace(" sc0 sc1", "")
open(out, "w").write(txt)
print(len(txt), "bytes")
hazard.check(txt)
```

```python
from common import *
from sched import *
from role_kv import load_w_rows384
from role_u import load_wo
import math, struct
STAMP = False
DELAY0 = 3
PBMODE = 0
DELAYL = 0
TS3 = 0
TB = 44
TA = 135
XLATE = 30
TICKC = 363
XDELTA = 130
CVADJ = 150
DBVADJ = 2
CWAIT = 2100
TWSTEP = 28
S_TD = 98
PBSTEP0 = 10
PROBEW = 3
GIDX = 57
GIDXV = 3
DFAILB = 18
WIDE = 1
POLLW = 3
DELAY0V = 2
HBIDX = 44
XHINT = 1
DELAYH = 0
TAILW = 0
KMW = 0
RFIRST = 0
ZPRE2 = 1
HINTB = 0
HINTA = 0
HGAP = 1
PL_X = 'G'; PL_M = 'W'; K2W = 1; PL_P = 'T'; PL_K = 'T'
PBSTEPV = 4
PBSTG = 0
VAR = 1
SPEC = 1
WDEL = 9
DROP = 0
DELAYLV = 0
ZPRE = 1
DELAYZV = 2
DELAYZS = 2
PBSTEP = 4
VCAP = 2
DELAYBS = 0
TSTEP = 30
ORDER = 1
DELAYB = 0
NSTEP = 64

def f32bits(x): return struct.unpack("<I", struct.pack("<f", x))[0]

S_STEP=22; S_GRP=23; S_C=24; S_FAST=25; S_T=26; S_T2=27; S_CNT=28; S_DEAD=29
S_Z=30; S_ZN=31; S_P=32; S_PN=33; S_L=34; S_LN=35; S_RR=36; S_RW=37; S_US=38; S_US2=39
S_KS=44; S_EXP=45; S_ZP=46; S_PP=47; S_SC=48; S_KNOWN=49; S_KMX=67; S_ARR=57; S_KN=42
S_MA=50; S_MB=52
S_MU=54; S_MK=55; S_FLO=56; S_T3=58; S_T4=43; S_PST=59; S_PSM=60; S_PLX=61; S_PLM=62; S_ZL=63; S_ZL2=64; S_M3=68; S_G3=65
S_OLO = 40; S_OHI = 41; S_TGT = 66; S_EXN = 29; S_KMY = 39
S_TS=70
V_ZERO=0; V_IDX=2; V_L16=3; V_HI=4; V_WL=5; V_PW=6; V_T7=7; V_TRA=8; V_TRB=18; V_PLD=10; V_PM=11
V_FINR=12; V_TW=13; V_FINRM=14; V_UR=15; V_RW=16; V_KR=17; V_UH=17; V_UHR=18; V_GA=19
AF=20; ACC=60; TMP=76; XS=100; V_POI=120; V_ZH=124; V_FK=111; V_ZS4=125; V_ZS2=126; V_FL=127
V_G3W=9; V_SXR=13; V_PX=16; V_FKS=124; V_TMP1=125; V_TMPV=11
L_MEM=98304; HI=L_MEM
S_LK=114688; S_LU=143360; S_LQ=108544; S_LKM=111616; S_LRED=126976; S_LSX=159744
V_LU=108544; V_LVX=133120; V_LRED=136192

ORD_S = [t*10+k for k in range(10) for t in range(2)] + list(range(20,40)) + [t*10+k for k in range(10) for t in (4,5)]
ORD_V = [t*10+k for k in range(10) for t in (0,1)] + list(range(20,60))
CUR_ORD = ORD_S
def wfrag(f):
    p = CUR_ORD.index(f)
    if p % 5 == 4: return ("lds", p//5)
    r = p - p//5
    return ("reg", 256 + 8*r if r < 32 else 128 + 8*(r-32))
def wdest(f, q):
    kind, x = wfrag(f)
    return reg(x + 2*q, 2) if kind == "reg" else v(AF + 8*x + 2*q, 2)

STUBS = []
def dual_text(A, lines):
    sl = A.newlabel("ds_s"); en = A.newlabel("ds_e")
    STUBS.append([sl + ":"] + [l + (" sc0 sc1" if l.startswith("buffer_store") else "") for l in lines] + [f"s_branch {en}"])
    return "\n".join([f"s_cmp_eq_u32 {s(S_FAST)}, 0", f"s_cbranch_scc1 {sl}"] + lines + [en + ":"])
def dual(A, lines): A(dual_text(A, lines))
def flush_stubs(A):
    for st in STUBS:
        for l in st: A(l)
    STUBS.clear()

def tick(A, k):
    if not STAMP or STAMP == 3: return
    if STAMP == 2:
        A(f"s_memrealtime {s(88,2)}")
        A("s_waitcnt lgkmcnt(0)")
        A(f"s_cmp_eq_u32 {s(S_STEP)}, {TSTEP + (1 if k >= 4 else 0)}")
        A(f"s_cselect_b32 {s(S_TS+k)}, {s(88)}, {s(S_TS+k)}")
        return
    A(f"s_memtime {s(88,2)}")
    A("s_waitcnt lgkmcnt(0)")
    A(f"s_sub_u32 {s(87)}, {s(88)}, {s(86)}")
    A(f"s_add_u32 {s(S_TS+k)}, {s(S_TS+k)}, {s(87)}")
    A(f"s_mov_b32 {s(86)}, {s(88)}")

TRACE = 0
def tr(A, k):
    if TRACE == 2: A(f"s_memrealtime {s(70+2*k,2)}")
    elif TRACE: A(f"s_memtime {s(70+2*k,2)}")
def trace_task():
    if not TRACE: return []
    L = [f"v_writelane_b32 {v(V_TRC)}, {s(70+2*k)}, {k}" for k in range(10)]
    L += [f"s_lshl_b32 s94, {s(S_STEP)}, 8", "s_add_u32 s94, s94, s95"]
    L.append("\n".join(["s_mov_b64 exec, 0x3ff", f"buffer_store_dword {v(V_TRC)}, {v(V_L16)}, {s(S_WS,4)}, s94 offen", "s_mov_b64 exec, -1"]))
    return [[1, 18, L]]
V_TRC = 125; V_TRA4 = 110
S_HP = 90; S_HN = 91; V_HA = 118
def hint_store(A, off, vt):
    A(f"s_add_u32 {s(S_HN)}, {s(S_STEP)}, 1")
    A(f"s_lshl_b32 {s(S_T)}, {s(S_C)}, 2")
    A(f"s_add_u32 {s(S_T)}, {s(S_T)}, {s(S_HP)}")
    A(f"v_mov_b32 {v(vt)}, {s(S_HN)}")
    dual(A, ["s_mov_b64 exec, 1", f"buffer_store_dword {v(vt)}, {v(V_ZERO)}, {s(S_WS,4)}, {s(S_T)} offen offset:{off}", "s_mov_b64 exec, -1"])
S_XW = 100; S_XR = 99
def hint_first(A, off, nw, va, a_, cross=False):
    A(f"s_add_u32 {s(S_HN)}, {s(S_STEP)}, 1")
    A(f"v_and_b32 {v(va)}, {nw-1}, {v(V_LANE)}")
    A(f"v_lshlrev_b32 {v(va)}, 2, {v(va)}")
    if cross and nw == 1: A(f"v_mov_b32 {v(va)}, {s(S_XR)}")
    elif cross: A(f"v_writelane_b32 {v(va)}, {s(S_XR)}, 32"); nw = 33
    A(f"s_mov_b64 exec, {hex((1<<nw)-1)}" if nw <= 32 else "s_mov_b32 exec_hi, 1")
    A(f"buffer_load_dword {v(a_)}, {v(va)}, {s(S_WS,4)}, {s(S_HP)} offen offset:{off} sc1")
def hint_poll(A, off, nw, va, a_, b_, ctr, cross=False, first=True):
    lp = A.newlabel("HP"); dn = A.newlabel("HPd")
    ld = lambda r: f"buffer_load_dword {v(r)}, {v(va)}, {s(S_WS,4)}, {s(S_HP)} offen offset:{off} sc1"
    if first:
        hint_first(A, off, nw, va, a_, cross)
        if HGAP: A(f"s_sleep {HGAP}")
    else:
        A(f"s_mov_b64 exec, {hex((1<<nw)-1)}" if (not cross or nw == 1) else "s_mov_b32 exec_hi, 1")
    A(ld(b_))
    A.label(lp)
    A("s_waitcnt vmcnt(1)")
    A(f"v_cmp_gt_i32 vcc, {s(S_HN)}, {v(a_)}")
    A(f"s_cbranch_vccz {dn}")
    A(ld(a_))
    A("s_waitcnt vmcnt(1)")
    A(f"v_cmp_gt_i32 vcc, {s(S_HN)}, {v(b_)}")
    A(f"s_cbranch_vccz {dn}")
    A(ld(b_))
    if STAMP: A(f"s_add_u32 {s(S_TS+ctr)}, {s(S_TS+ctr)}, 1")
    A(f"s_sub_u32 {s(S_CNT)}, {s(S_CNT)}, 1")
    A(f"s_cbranch_scc0 {lp}")
    A(f"s_mov_b32 {s(S_CNT)}, 0")
    A.label(dn)
    A("s_mov_b64 exec, -1")
def gate(A, off, nw, va, a_, b_, ctr, younger, d_pass, d_fail, cross=False):
    fl = A.newlabel("GTf"); bk = A.newlabel("GTb")
    A(f"s_waitcnt vmcnt({younger})")
    A(f"s_mov_b64 exec, {hex((1<<nw)-1)}")
    A(f"v_cmp_gt_i32 vcc, {s(S_HN)}, {v(a_)}")
    A("s_mov_b64 exec, -1")
    A(f"s_cbranch_vccnz {fl}")
    if d_pass: A(f"s_sleep {d_pass}")
    A.label(bk)
    B = Asm(); B.uid = A.uid + 600000; A.uid += 10
    B.label(fl)
    hint_poll(B, off, nw, va, a_, b_, ctr, cross=cross)
    if d_fail: B(f"s_sleep {d_fail}")
    B(f"s_branch {bk}")
    STUBS.append(B.lines)
def first_text(A, off, nw, va, a_):
    B = Asm(); hint_first(B, off, nw, va, a_); B("s_mov_b64 exec, -1")
    L = [l.strip() for l in B.lines]
    return L[:3] + ["\n".join(L[3:])]
def RTMP(): return 76 if not (TRACE or STAMP) else 92
def ts_hint_store(A, E, vt):
    r = RTMP()
    A(f"s_memrealtime {s(r,2)}")
    A(f"s_add_u32 {s(S_HN)}, {s(S_STEP)}, 1")
    A(f"s_lshl_b32 {s(S_HN)}, {s(S_HN)}, 24")
    A(f"s_lshl_b32 {s(S_T)}, {s(S_C)}, 2")
    A(f"s_add_u32 {s(S_T)}, {s(S_T)}, {s(S_HP)}")
    E.drain()
    A(f"s_and_b32 {s(r)}, {s(r)}, 0xffffff")
    A(f"s_or_b32 {s(r)}, {s(r)}, {s(S_HN)}")
    A(f"v_mov_b32 {v(vt)}, {s(r)}")
    dual(A, ["s_mov_b64 exec, 1", f"buffer_store_dword {v(vt)}, {v(V_ZERO)}, {s(S_WS,4)}, {s(S_T)} offen", "s_mov_b64 exec, -1"])
def ts_wait(A, E, s_t, ticks):
    r = RTMP(); lp = A.newlabel("TW")
    A(f"s_memrealtime {s(r,2)}"); A("s_waitcnt lgkmcnt(0)"); E.reset()
    A(f"s_add_u32 {s(r+1)}, {s(s_t)}, {ticks}")
    A(f"s_sub_u32 {s(r+1)}, {s(r+1)}, {s(r)}")
    A(f"s_and_b32 {s(r+1)}, {s(r+1)}, 0xffffff")
    A(f"s_cmp_gt_u32 {s(r+1)}, 200"); A(f"s_cselect_b32 {s(r+1)}, 0, {s(r+1)}")
    A(f"s_mul_i32 {s(r+1)}, {s(r+1)}, {TICKC}")
    A.label(lp)
    A(f"s_sub_u32 {s(r+1)}, {s(r+1)}, {44*16}")
    A(f"s_cmp_gt_i32 {s(r+1)}, 0")
    A(f"s_cbranch_scc1 {lp}")
def xstore(A):
    if HINTB != 6: A(f"s_add_u32 {s(S_HN)}, {s(S_STEP)}, 1")
    A(f"v_lshrrev_b32 {v(59)}, 2, {v(V_L16)}")
    A(f"s_cmp_eq_u32 {s(S_C)}, 16")
    A(f"v_mov_b32 {v(57)}, {s(S_HN if HINTB != 6 else S_TD)}")
    A("s_cselect_b32 exec_lo, -1, 0"); A("s_mov_b32 exec_hi, 0")
    A(f"buffer_store_dword {v(57)}, {v(59)}, {s(S_WS,4)}, {s(S_XW)} offen sc0 sc1")
    A("s_mov_b64 exec, -1")
def ts_poll(A, va, a_, b_, ctr):
    lp = A.newlabel("HP"); dn = A.newlabel("HPd"); d2 = A.newlabel("HPe")
    ld = lambda r: f"buffer_load_dword {v(r)}, {v(va)}, {s(S_WS,4)}, {s(S_HP)} offen sc1"
    A(f"s_add_u32 {s(S_HN)}, {s(S_STEP)}, 1")
    A(f"s_lshl_b32 {s(S_HN)}, {s(S_HN)}, 24")
    A(f"v_and_b32 {v(va)}, 15, {v(V_LANE)}")
    A(f"v_lshlrev_b32 {v(va)}, 2, {v(va)}")
    A("s_mov_b64 exec, 0xffff")
    A.label(lp)
    A(ld(a_))
    if STAMP: A(f"s_add_u32 {s(S_TS+ctr)}, {s(S_TS+ctr)}, 1")
    A(f"s_sub_u32 {s(S_CNT)}, {s(S_CNT)}, 1")
    A(f"s_cbranch_scc1 {d2}")
    A("s_waitcnt vmcnt(0)")
    A(f"v_cmp_gt_i32 vcc, {s(S_HN)}, {v(a_)}")
    A(f"s_cbranch_vccnz {lp}")
    A.label(dn)
    STUBS.append([d2 + ":", f"s_mov_b32 {s(S_CNT)}, 0", "s_waitcnt vmcnt(0)", f"s_branch {dn}"])
    for sh in (1, 2, 4, 8):
        A("s_nop 1")
        A(f"v_max_i32_dpp {v(a_)}, {v(a_)}, {v(a_)} row_ror:{sh} row_mask:0xf bank_mask:0xf")
    A("s_nop 0")
    A(f"v_readfirstlane_b32 {s(S_TD)}, {v(a_)}")
    A("s_mov_b64 exec, -1")
def wait_poison(A, extra=0, fin=False):
    key = f"{v(V_POI,2)}, {v(V_FINRM)}" if fin else f"{v(V_POI,2)}, "
    idx = max(i for i, l in enumerate(A.lines) if "buffer_store" in l and (key in l))
    n = sum(1 for l in A.lines[idx+1:] if l.strip().startswith("buffer_"))
    return f"s_waitcnt vmcnt({max(n - extra, 0)})"
def loop_top(A, lab, ctr=15):
    A.label(lab)
    if STAMP: A(f"s_add_u32 {s(S_TS+ctr)}, {s(S_TS+ctr)}, 1")
    A(f"s_sub_u32 {s(S_CNT)}, {s(S_CNT)}, 1")
    A(f"s_cbranch_scc1 {lab}_dead")
def retry(A, lab, ctr=15):
    A(f"s_cbranch_vccnz {lab}")
    A.label(lab + "_ok")
    STUBS.append([lab + "_dead:", f"s_mov_b32 {s(S_CNT)}, 0", "s_mov_b64 exec, -1" if ctr in (11, 12, 15) else "s_nop 0", f"s_branch {lab}_ok"])

def mp_init(A, masks, base=0):
    for i, m in enumerate(masks): A(f"s_mov_b64 {s(FPS[base+i],2)}, {m}")
def mp_issue(A, loads, base=0):
    for i, (r, ld) in enumerate(loads):
        A(f"s_mov_b64 exec, {s(FPS[base+i],2)}"); A(ld)
    A("s_mov_b64 exec, -1")
def mp_check(loads, mt, base=0):
    L = []
    for i, (r, _) in enumerate(loads):
        L += [f"v_max_u32 {v(mt+i)}, {v(r)}, {v(r+2)}"]
    L += [f"v_cmp_eq_u32 {s(FPS[base+i],2)}, -1, {v(mt+i)}" for i in range(len(loads))]
    return L
def mp_close(A, n, lab, base=0):
    A(f"s_or_b64 vcc, {s(FPS[base],2)}, {s(FPS[base+1],2)}")
    for i in range(2, n): A(f"s_or_b64 vcc, vcc, {s(FPS[base+i],2)}")
    A(f"s_cbranch_scc1 {lab}")
    A.label(lab + "_ok")
    STUBS.append([lab + "_dead:", f"s_mov_b32 {s(S_CNT)}, 0", f"s_branch {lab}_ok"])
FPS = [12, 14, 16, 18, 8, 96]

def maxtree(regs_, t):
    L = []; r = list(regs_)
    L.append(f"v_max3_u32 {v(t)}, {v(r[0])}, {v(r[1])}, {v(r[2])}"); r = r[3:]
    while len(r) >= 2:
        L.append(f"v_max3_u32 {v(t)}, {v(t)}, {v(r[0])}, {v(r[1])}"); r = r[2:]
    if r: L.append(f"v_max_u32 {v(t)}, {v(t)}, {v(r[0])}")
    return L

def post(sa, out=None):
    o = sa if out is None else out
    return [f"v_add_f32 {v(sa)}, {v(sa)}, {v(sa+1)}", f"v_add_f32 {v(sa+2)}, {v(sa+2)}, {v(sa+3)}",
            f"v_cvt_pk_bf16_f32 {v(o)}, {v(sa)}, {v(sa+2)}"]
def post_s(sa, off, tag):
    return post(sa) + [ds(tag, f"ds_write_b32 {v(V_PW)}, {v(sa)} offset:{off}")]
def post_v(sa, off, tag):
    return post(sa) + [ds(tag, f"ds_write_b16 {v(V_PW)}, {v(sa)} offset:{off}"), ds(tag, f"ds_write_b16_d16_hi {v(V_PW)}, {v(sa)} offset:{off+4}")]
def zero(sa): return [f"v_mov_b64 {v(sa,2)}, 0", f"v_mov_b64 {v(sa+2,2)}, 0"]
def wl_read(j):
    r = TMP + 8*(j % 3)
    return [ds(f"W{j}", f"ds_read_b128 {v(r,4)}, {v(V_WL)} offset:{j*2048}"),
            ds(f"W{j}", f"ds_read_b128 {v(r+4,4)}, {v(V_WL)} offset:{j*2048+1024}")]
def smf(f, acc, afrag):
    kind, x = wfrag(f)
    it = []
    if kind == "lds":
        it.append(need(f"W{x}")); b = v(TMP + 8*(x % 3), 8)
    else: b = reg(x, 8)
    it.append(f"v_smfmac_f32_16x16x64_bf16 {v(acc,4)}, {v(afrag,4)}, {b}, {v(V_IDX)}")
    return it
def refill_tasks():
    return [[5*j+4, 5*(j+3)+4-5, wl_read(j+3)] for j in range(9)]

def setup_common(A, isV):
    LU = V_LU if isV else S_LU; LRED = V_LRED if isV else S_LRED
    t0, t1, t2 = 112, 113, 114
    A(f"v_mov_b32 {v(V_ZERO)}, 0")
    A(f"v_and_b32 {v(t0)}, 15, {v(V_LANE)}")
    A(f"v_lshrrev_b32 {v(t1)}, 4, {v(V_LANE)}")
    A(f"v_mov_b32 {v(V_IDX)}, 0x4444")
    A(f"v_mov_b32 {v(t2)}, 0xeeee")
    A(f"v_and_b32 {v(V_L16)}, 1, {v(V_LANE)}")
    A(f"v_cmp_eq_u32 vcc, 1, {v(V_L16)}")
    A("s_nop 1")
    A(f"v_cndmask_b32 {v(V_IDX)}, {v(V_IDX)}, {v(t2)}, vcc")
    A(f"v_lshlrev_b32 {v(V_L16)}, 4, {v(V_LANE)}")
    A(f"v_add_u32 {v(V_HI)}, {HI}, {v(V_L16)}")
    A(f"s_mul_i32 {s(S_T)}, {s(S_WAVE)}, 24576")
    A(f"v_add_u32 {v(V_WL)}, {s(S_T)}, {v(V_L16)}")
    if isV:
        A(f"v_and_b32 {v(t2)}, 7, {v(t0)}")
        A(f"v_lshlrev_b32 {v(t2)}, 5, {v(t2)}")
        A(f"v_lshl_add_u32 {v(t2)}, {v(t1)}, 3, {v(t2)}")
        A(f"v_lshrrev_b32 {v(V_PW)}, 3, {v(t0)}")
        A(f"v_lshl_add_u32 {v(t2)}, {v(V_PW)}, 1, {v(t2)}")
    else:
        A(f"v_lshlrev_b32 {v(t2)}, 2, {v(t1)}")
        A(f"v_lshl_add_u32 {v(t2)}, {v(t0)}, 4, {v(t2)}")
    A(f"s_mul_i32 {s(S_T)}, {s(S_WAVE)}, 768")
    A(f"s_add_u32 {s(S_T)}, {s(S_T)}, {V_LVX if isV else S_LQ}")
    A(f"v_add_u32 {v(V_PW)}, {s(S_T)}, {v(t2)}")
    A(f"v_and_b32 {v(t2)}, 7, {v(t0)}")
    A(f"v_lshl_add_u32 {v(V_PLD)}, {v(t1)}, 3, {v(t2)}")
    A(f"v_lshlrev_b32 {v(V_PLD)}, 4, {v(V_PLD)}")
    A(f"v_lshl_add_u32 {v(V_FINR)}, {v(t1)}, 4, {v(t2)}")
    A(f"v_lshlrev_b32 {v(V_FINR)}, 4, {v(V_FINR)}")
    if isV:
        A(f"s_and_b32 {s(S_T)}, {s(S_C)}, 1")
        A(f"s_lshl_b32 {s(S_T)}, {s(S_T)}, 7")
        A(f"v_add_u32 {v(V_ZH)}, {s(S_T)}, {v(V_FINR)}")
        A(f"v_lshrrev_b32 {v(V_UH)}, 3, {v(t0)}")
        A(f"v_mul_u32_u24 {v(V_UH)}, 40960, {v(V_UH)}")
        A(f"v_add_u32 {v(V_UH)}, {v(V_UH)}, {v(V_ZH)}")
        A(f"s_mul_i32 {s(S_T)}, {s(S_WAVE)}, 6144")
        A(f"s_add_u32 {s(S_T)}, {s(S_T)}, {LU+4096}")
        A(f"v_add_u32 {v(V_UHR)}, {s(S_T)}, {v(V_FINR)}")
        A(f"v_mov_b32 {v(V_FINR)}, {v(V_L16)}")
    A(f"v_add_u32 {v(V_FINR)}, {LRED}, {v(V_FINR)}")
    A(f"s_mul_i32 {s(S_MU)}, {s(S_WAVE)}, {6144 if isV else 4096}")
    A(f"s_add_u32 {s(S_MU)}, {s(S_MU)}, {LU}")
    A(f"v_add_u32 {v(V_UR)}, {s(S_MU)}, {v(V_L16)}")
    if isV:
        A(f"s_mul_i32 {s(S_T)}, {s(S_WAVE)}, 1024")
        A(f"s_add_u32 {s(S_T)}, {s(S_T)}, {LRED}")
        A(f"v_add_u32 {v(V_RW)}, {s(S_T)}, {v(V_L16)}")
    A(f"v_lshrrev_b32 {v(V_FINRM)}, 1, {v(t1)}")
    A(f"s_lshl_b32 {s(S_T)}, {s(S_C)}, 1")
    A(f"v_add_u32 {v(V_FINRM)}, {s(S_T)}, {v(V_FINRM)}")
    if isV:
        A(f"s_add_u32 {s(S_T)}, {s(S_C)}, {64-16}")
        A(f"v_mov_b32 {v(V_TW)}, {s(S_T)}")
        A(f"v_cmp_lt_u32 vcc, 7, {v(t0)}")
        A("s_nop 1")
        A(f"v_cndmask_b32 {v(V_FINRM)}, {v(V_FINRM)}, {v(V_TW)}, vcc")
        A(f"v_lshrrev_b32 {v(V_TW)}, 3, {v(t0)}")
        A(f"v_lshl_add_u32 {v(V_TW)}, {v(V_TW)}, 9, {v(V_PLD)}")
    A(f"v_lshlrev_b32 {v(V_FINRM)}, 7, {v(V_FINRM)}")
    A(f"v_lshl_add_u32 {v(V_FINRM)}, {v(t2)}, 4, {v(V_FINRM)}")
    A(f"v_and_b32 {v(t2)}, 1, {v(t1)}")
    A(f"v_lshl_add_u32 {v(V_FINRM)}, {v(t2)}, 3, {v(V_FINRM)}")
    A(f"s_mov_b32 {s(S_MA)}, 0x00ff00ff")
    A(f"s_mov_b32 {s(S_MA+1)}, 0x00ff00ff")
    A(f"s_mov_b32 {s(S_MB)}, {'0xffffffff' if isV else '0x00ff00ff'}")
    A(f"s_mov_b32 {s(S_MB+1)}, {'0x00ff00ff' if isV else '0'}")
    A(f"s_lshl_b32 {s(S_T)}, {s(S_WAVE)}, 10")
    A(f"v_add_u32 {v(V_T7)}, {s(S_T)}, {v(V_L16)}")
    if not isV: A(f"v_add_u32 {v(126)}, {HI}, {v(V_T7)}")
    A(f"s_lshr_b32 {s(S_G3)}, {s(S_WAVE)}, 1")
    A(f"s_add_u32 {s(S_G3)}, {s(S_G3)}, 8")
    A(f"s_sub_u32 {s(S_G3)}, {s(S_G3)}, {s(S_WAVE)}")
    A(f"s_lshl_b32 {s(S_G3)}, {s(S_G3)}, 10")
    A(f"s_and_b32 {s(S_T2)}, {s(S_WAVE)}, 1")
    A(f"s_sub_u32 {s(S_M3)}, {s(S_T2)}, 1")
    A(f"s_sub_u32 {s(S_M3+1)}, 0, {s(S_T2)}")
    A(f"v_and_b32 {v(V_GA)}, 7, {v(V_LANE)}")
    A(f"v_lshlrev_b32 {v(V_GA)}, 5, {v(V_GA)}")
    A(f"v_lshl_add_u32 {v(V_GA)}, {v(t1)}, 8, {v(V_GA)}")
    A(f"v_bfe_u32 {v(115)}, {v(V_LANE)}, 3, 1")
    A(f"v_lshl_add_u32 {v(V_GA)}, {v(115)}, 4, {v(V_GA)}")
    A(f"s_add_u32 {s(S_T)}, {s(S_T)}, {HI}")
    A(f"v_add_u32 {v(V_GA)}, {s(S_T)}, {v(V_GA)}")
    A(f"v_add_u32 {v(V_G3W)}, {s(S_G3)}, {v(V_GA)}")
    for i in range(4): A(f"v_mov_b32 {v(V_POI+i)}, -1")
    r_, c_ = 115, 116
    A(f"v_bfe_u32 {v(r_)}, {v(V_LANE)}, 2, 2")
    A(f"v_and_b32 {v(c_)}, 1, {v(V_LANE)}")
    A(f"v_lshlrev_b32 {v(c_)}, 3, {v(c_)}")
    if not isV:
        A(f"v_add_u32 {v(c_)}, {S_LQ}, {v(c_)}")
        A(f"v_lshl_add_u32 {v(V_TRA)}, {v(t1)}, 2, {v(r_)}")
        A(f"v_lshl_add_u32 {v(V_TRA)}, {v(V_TRA)}, 4, {v(c_)}")
        A(f"v_lshrrev_b32 {v(t2)}, 1, {v(t1)}")
        A(f"v_mul_u32_u24 {v(t2)}, 48, {v(t2)}")
        A(f"v_and_b32 {v(V_TRB)}, 1, {v(t1)}")
        A(f"v_lshl_add_u32 {v(V_TRB)}, {v(V_TRB)}, 3, {v(t2)}")
        A(f"v_add_u32 {v(V_TRB)}, {v(V_TRB)}, {v(r_)}")
        A(f"v_lshl_add_u32 {v(V_TRB)}, {v(V_TRB)}, 4, {v(c_)}")
        A(f"v_and_b32 {v(t2)}, 7, {v(t0)}")
        A(f"v_lshl_add_u32 {v(t2)}, {v(t1)}, 4, {v(t2)}")
        A(f"v_lshlrev_b32 {v(t2)}, 4, {v(t2)}")
        A(f"v_lshrrev_b32 {v(V_PX)}, 3, {v(t0)}")
        A(f"v_lshl_add_u32 {v(V_SXR)}, {v(V_PX)}, 10, {v(t2)}")
        A(f"v_add_u32 {v(V_SXR)}, {S_LSX}, {v(V_SXR)}")
        A(f"v_lshl_add_u32 {v(V_PX)}, {v(V_PX)}, 3, {v(t2)}")
        A(f"v_lshlrev_b32 {v(V_PM)}, 4, {v(t0)}")
        A(f"v_lshl_add_u32 {v(V_PM)}, {v(t1)}, 3, {v(V_PM)}")
        A(f"s_sub_u32 {s(S_T)}, {s(S_WAVE)}, 1")
        A(f"s_and_b32 {s(S_T)}, {s(S_T)}, 3")
        A(f"s_mul_i32 {s(S_T2)}, {s(S_T)}, 6144")
        A(f"s_add_u32 {s(S_T2)}, {s(S_T2)}, {S_LK}")
        A(f"v_add_u32 {v(V_KR)}, {s(S_T2)}, {v(V_L16)}")
        A(f"s_mul_i32 {s(S_MK)}, {s(S_T)}, {6144 if K2W else 4096}")
        A(f"s_mul_i32 {s(S_KS)}, {s(S_HEAD)}, 12288")
        A(f"s_add_u32 {s(S_KS)}, {s(S_KS)}, {s(S_MK)}")
        A(f"s_add_u32 {s(S_KS)}, {s(S_KS)}, {WS_K}")
        A(f"s_add_u32 {s(S_MK)}, {s(S_MK)}, {S_LK}")
        A(f"s_lshr_b32 {s(S_PST)}, {s(S_HEAD)}, 1")
        A(f"s_lshl_b32 {s(S_PST)}, {s(S_PST)}, 10")
        A(f"s_and_b32 {s(S_PSM)}, {s(S_HEAD)}, 1")
        A(f"s_lshl_b32 {s(S_PSM)}, {s(S_PSM)}, 7")
        A(f"s_add_u32 {s(S_PST)}, {s(S_PST)}, {s(S_PSM)}")
        A(f"s_lshl_b32 {s(S_PSM)}, {s(S_HEAD)}, 7")
        A(f"s_add_u32 {s(S_PSM)}, {s(S_PSM)}, 16384")
    else:
        A(f"v_lshl_add_u32 {v(t2)}, {v(t1)}, 3, {v(r_)}")
        A(f"v_and_b32 {v(c_)}, 3, {v(V_LANE)}")
        A(f"v_lshlrev_b32 {v(c_)}, 3, {v(c_)}")
        A(f"v_lshl_add_u32 {v(V_TRA)}, {v(t2)}, 5, {v(c_)}")
        A(f"v_add_u32 {v(V_TRA)}, {V_LVX}, {v(V_TRA)}")
        A(f"v_lshlrev_b32 {v(V_ZS4)}, 13, {v(t1)}")
        A(f"v_and_b32 {v(t2)}, 1, {v(t1)}")
        A(f"v_lshlrev_b32 {v(V_ZS2)}, 13, {v(t2)}")
        A(f"v_lshrrev_b32 {v(t2)}, 1, {v(t1)}")
        A(f"v_lshl_add_u32 {v(V_ZS2)}, {v(t2)}, 3, {v(V_ZS2)}")
        A(f"s_mul_i32 {s(S_T)}, {s(S_WAVE)}, {10*8192}")
        A(f"s_lshl_b32 {s(S_T2)}, {s(S_HEAD)}, 8")
        A(f"s_add_u32 {s(S_T)}, {s(S_T)}, {s(S_T2)}")
        A(f"v_lshl_add_u32 {v(t2)}, {v(t0)}, 4, {s(S_T)}")
        A(f"v_add_u32 {v(V_ZS4)}, {v(V_ZS4)}, {v(t2)}")
        A(f"v_add_u32 {v(V_ZS2)}, {v(V_ZS2)}, {v(t2)}")
        A(f"v_add_u32 {v(V_ZS2)}, {8*8192}, {v(V_ZS2)}")
    A(f"s_mov_b32 {s(S_Z)}, {MB_Z}")
    A(f"s_mov_b32 {s(S_ZN)}, {MB_Z+327680}")
    A(f"s_mov_b32 {s(S_P)}, {MB_P}")
    A(f"s_mov_b32 {s(S_PN)}, {MB_P+20480}")
    A(f"s_mov_b32 {s(S_ZP)}, {MB_Z+2*327680}")
    A(f"s_mov_b32 {s(S_PP)}, {MB_P+2*20480}")
    A(f"s_mul_i32 {s(S_T)}, {s(S_GRP)}, 10240")
    A(f"s_add_u32 {s(S_L)}, {s(S_T)}, {MB_L}")
    A(f"s_add_u32 {s(S_LN)}, {s(S_T)}, {MB_L+20480}")
    if isV:
        A(f"s_mul_i32 {s(S_T2)}, {s(S_C)}, 768")
        A(f"s_add_u32 {s(S_T2)}, {s(S_T2)}, {MB_R + 8192 - 16*768}")
    else:
        A(f"s_mul_i32 {s(S_T2)}, {s(S_C)}, 512")
        A(f"s_add_u32 {s(S_T2)}, {s(S_T2)}, {MB_R}")
    A(f"s_mul_i32 {s(S_T)}, {s(S_GRP)}, 20480")
    A(f"s_add_u32 {s(S_RW)}, {s(S_T2)}, {s(S_T)}")
    A(f"s_add_u32 {s(S_RR)}, {s(S_T2)}, 20480")
    A(f"s_sub_u32 {s(S_RR)}, {s(S_RR)}, {s(S_T)}")
    if VAR == 1:
        A(f"s_mul_i32 {s(S_T)}, {s(S_GRP)}, 10240")
        A(f"s_add_u32 {s(S_RW)}, {s(S_T)}, {MB_R}")
        A(f"s_sub_u32 {s(S_RR)}, {MB_R + 10240}, {s(S_T)}")
        A(f"s_mov_b32 {s(S_OLO)}, 0x00003f80"); A(f"s_mov_b32 {s(S_OHI)}, 0x3f800000"); A(f"s_mov_b32 {s(S_TGT)}, 0")
    A(f"s_lshl_b32 {s(S_T)}, {s(S_GRP)}, 2")
    A(f"s_add_u32 {s(S_T)}, {s(S_T)}, {s(S_WAVE)}")
    A(f"s_lshl_b32 {s(S_PLX)}, {s(S_T)}, 11")
    A(f"s_lshl_b32 {s(S_PLM)}, {s(S_T)}, 9")
    A(f"s_add_u32 {s(S_PLM)}, {s(S_PLM)}, 16384")
    A(f"s_lshl_b32 {s(S_ZL)}, {s(S_T)}, 10")
    A(f"s_mul_i32 {s(S_US)}, {s(S_T)}, {4*40960}")
    A(f"s_add_u32 {s(S_US)}, {s(S_US)}, {WS_U}")
    if isV:
        A(f"s_sub_u32 {s(S_T2)}, {s(S_C)}, 16")
        A(f"s_lshr_b32 {s(S_T2)}, {s(S_T2)}, 1")
        A(f"s_add_u32 {s(S_T2)}, {s(S_T2)}, 32")
        A(f"s_lshl_b32 {s(S_T3)}, {s(S_T2)}, 13")
        A(f"s_add_u32 {s(S_ZL2)}, {s(S_ZL)}, {s(S_T3)}")
        A(f"s_lshl_b32 {s(S_T3)}, {s(S_T2)}, 10")
        A(f"s_add_u32 {s(S_US2)}, {s(S_US)}, {s(S_T3)}")
    A(f"s_lshl_b32 {s(S_T3)}, {s(S_C)}, 13")
    A(f"s_add_u32 {s(S_ZL)}, {s(S_ZL)}, {s(S_T3)}")
    A(f"s_lshl_b32 {s(S_T3)}, {s(S_C)}, 10")
    A(f"s_add_u32 {s(S_US)}, {s(S_US)}, {s(S_T3)}")
    A(f"s_mov_b32 {s(S_ARR)}, {CN_Z - 256}")
    A(f"s_lshl_b32 {s(S_HP)}, {s(S_GRP)}, 8")
    A(f"s_add_u32 {s(S_HP)}, {s(S_HP)}, {MB_H}")
    A(f"s_lshl_b32 {s(S_T2)}, {s(S_GRP)}, 7")
    A(f"s_add_u32 {s(S_XW)}, {s(S_T2)}, {MB_RH}")
    A(f"s_sub_u32 {s(S_XR)}, {MB_RH + 128 - 128}, {s(S_T2)}")
    A(f"s_sub_u32 {s(S_XR)}, {s(S_XR)}, {s(S_HP)}")
    A(f"s_lshl_b32 {s(S_FLO)}, {s(S_HEAD)}, 7")
    A(f"s_mov_b32 {s(S_KNOWN)}, 0")
    A(f"s_mov_b32 {s(S_KN)}, 1")
    A(f"v_mov_b32 {v(V_FL)}, 0")
    if not isV: A(f"v_mov_b32 {v(V_FKS)}, 0")
    A(f"s_mov_b32 {s(S_SC)}, {f32bits(192**-0.5*math.log2(math.e))}")
    A(f"s_mov_b32 {s(S_STEP)}, 0")
    A(f"s_mov_b32 {s(S_CNT)}, {SPIN_MAX + 1000 if SPIN_MAX else 0}")
    A(f"s_mov_b32 {s(S_EXP)}, {WS_Z if (VAR == 2 or PL_X != 'S') else WS_SCR}")
    A(f"s_mov_b32 {s(S_EXN)}, {WS_Z}")
    A(f"s_mul_i32 {s(S_KMX)}, {s(S_HEAD)}, 3072")
    A(f"s_add_u32 {s(S_KMX)}, {s(S_KMX)}, {WS_KM - 1024}")
    if not isV: A(f"s_mov_b32 {s(S_KMY)}, {WS_SCR}")
    if STAMP:
        for k in range(16): A(f"s_mov_b32 {s(S_TS+k)}, 0")

LOOKA = 8
def spin(lines_load, cond, ok):
    pass

def u_check(A, seg_off):
    sl = A.newlabel("uc_s"); ok = A.newlabel("uc_ok"); lp = A.newlabel("uc_lp"); g1 = A.newlabel("uc_g")
    A(f"s_add_u32 {s(S_T3)}, {s(S_STEP)}, {seg_off}")
    A(f"s_cmp_ge_u32 {s(S_T3)}, {s(S_KNOWN)}")
    A(f"s_cbranch_scc1 {sl}")
    A.label(ok)
    ld = f"buffer_load_dword {v(V_FL)}, {v(V_ZERO)}, {s(S_WS,4)}, {s(S_T4)} offen sc1"
    STUBS.append([sl + ":",
        f"s_add_u32 {s(S_KNOWN)}, {s(S_T3)}, {LOOKA}", f"s_min_u32 {s(S_KNOWN)}, {s(S_KNOWN)}, {NSEG-1}",
        f"s_lshl_b32 {s(S_T4)}, {s(S_KNOWN)}, 7", f"s_add_u32 {s(S_T4)}, {s(S_T4)}, {CN_U}", f"s_add_u32 {s(S_KNOWN)}, {s(S_KNOWN)}, 1",
        ld, "s_waitcnt vmcnt(0)", f"v_cmp_gt_u32 vcc, 32, {v(V_FL)}", f"s_cbranch_vccz {ok}",
        f"s_add_u32 {s(S_KNOWN)}, {s(S_T3)}, 1", f"s_min_u32 {s(S_T3)}, {s(S_T3)}, {NSEG-1}",
        f"s_lshl_b32 {s(S_T4)}, {s(S_T3)}, 7", f"s_add_u32 {s(S_T4)}, {s(S_T4)}, {CN_U}",
        lp + ":", ld, "s_waitcnt vmcnt(0)", f"v_cmp_gt_u32 vcc, 32, {v(V_FL)}", f"s_cbranch_vccz {ok}",
        f"s_sub_u32 {s(S_CNT)}, {s(S_CNT)}, 1", f"s_cbranch_scc0 {lp}", f"s_mov_b32 {s(S_CNT)}, 0", f"s_branch {ok}"])

def k_check(A):
    sl = A.newlabel("kc_s"); ok = A.newlabel("kc_ok"); lp = A.newlabel("kc_lp")
    A.label(lp)
    A(f"v_cmp_gt_u32 vcc, {s(S_KN)}, {v(V_FKS)}")
    A(f"s_cbranch_vccnz {sl}")
    A.label(ok)
    STUBS.append([sl + ":", f"s_sub_u32 {s(S_CNT)}, {s(S_CNT)}, 1", f"s_cbranch_scc1 {sl}_d", f"s_add_u32 {s(S_T3)}, {s(S_FLO)}, {FL_K}",
                  f"buffer_load_dword {v(V_FKS)}, {v(V_ZERO)}, {s(S_WS,4)}, {s(S_T3)} offen sc1", "s_waitcnt vmcnt(0)", f"s_branch {lp}",
                  sl + "_d:", f"s_mov_b32 {s(S_CNT)}, 0", f"s_branch {ok}"])

def k_dma(A, cls=12):
    if K2W:
        if cls == 12:
            A(f"s_mov_b32 m0, {s(S_MK)}")
            A(f"s_add_u32 {s(S_T)}, {s(S_KS)}, 3072")
            for j in range(3):
                A(f"buffer_load_dwordx4 {v(V_L16)}, {s(S_WS,4)}, {s(S_KS)} offen offset:{j*1024} sc1 lds")
            A(f"s_add_u32 m0, {s(S_MK)}, 3072")
            A("s_nop 0")
            for j in range(3):
                A(f"buffer_load_dwordx4 {v(V_L16)}, {s(S_WS,4)}, {s(S_T)} offen offset:{j*1024} sc1 lds")
    else:
        A(f"s_mov_b32 m0, {s(S_MK)}")
        A("s_nop 0")
        for j in range(4):
            A(f"buffer_load_dwordx4 {v(V_L16)}, {s(S_WS,4)}, {s(S_KS)} offen offset:{j*1024} sc1 lds")
    A(f"s_add_u32 {s(S_KS)}, {s(S_KS)}, {NH*12288}")
    A(f"s_add_u32 {s(S_KN)}, {s(S_KN)}, 1")
    A(f"s_min_u32 {s(S_KN)}, {s(S_KN)}, {NSEG}")

def phaseB_items(A, isV, cls, flags):
    L = [f"s_mov_b32 m0, {s(S_MU)}"]
    for j in range(4):
        L.append(f"s_add_u32 {s(S_T4)}, {s(S_US)}, {j*(40960-1024)}")
        L.append(f"buffer_load_dwordx4 {v(V_L16)}, {s(S_WS,4)}, {s(S_T4)} offen offset:{j*1024} sc1 lds")
    if isV:
        L.append(f"s_add_u32 m0, {s(S_MU)}, 4096")
        L.append(f"s_add_u32 {s(S_T4)}, {s(S_US2)}, {2*40960-1024}")
        L.append(f"buffer_load_dwordx4 {v(V_UH)}, {s(S_WS,4)}, {s(S_US2)} offen sc1 lds")
        L.append(f"buffer_load_dwordx4 {v(V_UH)}, {s(S_WS,4)}, {s(S_T4)} offen offset:1024 sc1 lds")
    if flags and cls == 0:
        if isV:
            an = A.newlabel("an"); ab = A.newlabel("ab")
            STUBS.append([an + ":", f"s_cmp_lt_u32 {s(S_STEP)}, 2", f"s_cbranch_scc1 {ab}", f"v_mov_b32 {v(V_TMPV)}, 32", "s_mov_b64 exec, 1",
                          f"buffer_atomic_add {v(V_TMPV)}, {v(V_ZERO)}, {s(S_WS,4)}, {s(S_ARR)} offen sc1", "s_mov_b64 exec, -1", f"s_branch {ab}"])
            L.append("\n".join([f"s_cmp_eq_u32 {s(S_C)}, 16", f"s_cbranch_scc1 {an}", ab + ":"]))
        else:
            L += [f"s_add_u32 {s(S_T)}, {s(S_FLO)}, {FL_KM}", f"s_sub_u32 {s(S_T2)}, {s(S_STEP)}, 0", f"s_max_i32 {s(S_T2)}, {s(S_T2)}, 0", f"v_mov_b32 {v(V_FL)}, {s(S_T2)}"]
            L.append("\n".join(["s_mov_b64 exec, 1", f"buffer_store_dword {v(V_FL)}, {v(V_ZERO)}, {s(S_WS,4)}, {s(S_T)} offen sc0 sc1", "s_mov_b64 exec, -1"]))
    return L

def km_export(A, E, tmp):
    E(ds("KX", f"ds_read_b128 {v(tmp,4)}, {v(126)} offset:{S_LKM-HI-1024}"))
    E(need("KX"))
    A(f"buffer_store_dwordx4 {v(tmp,4)}, {v(V_T7)}, {s(S_WS,4)}, {s(S_KMX)} offen sc0 sc1")

ZF = 48
def z_poison(A):
    A(f"s_add_u32 {s(S_T2)}, {s(S_ZP)}, {4*8192}")
    dual(A, [f"buffer_store_dwordx4 {v(V_POI,4)}, {v(V_ZS4)}, {s(S_WS,4)}, {s(S_ZP)} offen",
             f"buffer_store_dwordx4 {v(V_POI,4)}, {v(V_ZS4)}, {s(S_WS,4)}, {s(S_T2)} offen",
             f"buffer_store_dwordx2 {v(V_POI,2)}, {v(V_ZS2)}, {s(S_WS,4)}, {s(S_ZP)} offen"])
def p_poison(A, slot):
    A(f"s_add_u32 {s(S_T)}, {s(slot)}, {s(S_PST)}"); A(f"s_add_u32 {s(S_T2)}, {s(slot)}, {s(S_PSM)}")
    dual(A, [f"s_mov_b64 exec, {s(S_MA,2)}",
             f"buffer_store_dwordx4 {v(V_POI,4)}, {v(V_L16)}, {s(S_WS,4)}, {s(S_T)} offen",
             f"s_mov_b64 exec, {s(S_MB,2)}",
             f"buffer_store_dwordx2 {v(V_POI,2)}, {v(V_PM)}, {s(S_WS,4)}, {s(S_T2)} offen",
             "s_mov_b64 exec, -1"])
def z_export(A, isV, zf, woff):
    A(f"s_add_u32 {s(S_T)}, {s(S_EXP)}, {s(S_ZL)}")
    if woff: A(f"s_sub_u32 {s(S_T)}, {s(S_T)}, {s(woff)}")
    A(f"buffer_store_dwordx4 {v(zf,4)}, {v(V_L16)}, {s(S_WS,4)}, {s(S_T)} offen sc0 sc1")
    if isV:
        A(f"s_add_u32 {s(S_T)}, {s(S_EXP)}, {s(S_ZL2)}")
        if woff: A(f"s_sub_u32 {s(S_T)}, {s(S_T)}, {s(woff)}")
        A(f"s_mov_b64 exec, {s(S_MA,2)}")
        A(f"buffer_store_dwordx4 {v(zf+4,4)}, {v(V_ZH)}, {s(S_WS,4)}, {s(S_T)} offen sc0 sc1")
        A("s_mov_b64 exec, -1")
def window(A, E, isV, cls, flags):
    LZ = (V_LVX if isV else S_LK + 12288) - HI
    last = A.newlabel("wz")
    if WDEL: A(f"s_sleep {WDEL}")
    z_export(A, isV, ZF, None)
    if cls != 3:
        A(f"s_cmp_lg_u32 {s(S_WAVE)}, {3 if isV else 1}"); A(f"s_cbranch_scc1 {last}")
        for t in range(2 if isV else 1): E(ds("zs", f"ds_read_b128 {v(AF+4*t,4)}, {v(V_HI)} offset:{LZ+t*1024}"))
        E(need("zs"))
        A(f"s_lshl_b32 {s(S_T2)}, {s(S_WAVE)}, 10")
        z_export(A, isV, AF, S_T2)
        A.label(last)
    if flags:
        u_check(A, 1)
        if not isV: k_check(A)

def qk_tr(isq, ks, dst, tag):
    b = 0 if isq else 3072
    if ks < 4: vb, o0, o1 = V_TRA, 48*ks*16, (48*ks+16)*16
    else: vb, o0, o1 = V_TRB, (96*(ks-4)+32)*16, (96*(ks-4)+36)*16
    return [ds(tag, f"ds_read_b64_tr_b16 {v(dst,2)}, {v(vb)} offset:{b+o0}"),
            ds(tag, f"ds_read_b64_tr_b16 {v(dst+2,2)}, {v(vb)} offset:{b+o1}")]

def xlane(op, r, t, which):
    return [f"v_mov_b32 {v(t)}, {v(r)}", "s_nop 1", f"v_permlane{which}_swap_b32 {v(r)}, {v(t)}", f"{op} {v(r)}, {v(r)}, {v(t)}"]

def pb_tasks(items, e, d, span, step=4):
    if PBMODE == 0: return [[e, d, items]]
    if PBMODE == 1:
        STUBS.clear()
        return [[e, d, [it for it in items if isinstance(it, str) and 'buffer_' not in it]]]
    if DROP & 1: items = [it for it in items if not (isinstance(it, str) and it.endswith(" lds"))]
    if DROP & 2: items = [it for it in items if not (isinstance(it, str) and it.startswith("buffer_store") and "sc1" in it)]
    groups = []; cur = []
    for it in items:
        cur.append(it)
        if isinstance(it, str) and 'buffer_' in it: groups.append(cur); cur = []
    if cur: groups.append(cur)
    n = len(groups); out = []
    for i, g in enumerate(groups):
        st = e + i*step
        out.append([st, st+step, g])
    return out

def s_stage(A, E, cls, flags):
    S0, S1, S2, S3 = ACC, ACC+4, ACC+8, ACC+12
    accs = [S0, S1, S2, S3, S0, S1]
    ard = lambda k: ds(f"A{k}", f"ds_read_b128 {v(AF+4*k,4)}, {v(V_HI)} offset:{k*1024}")
    for k in range(3): E(ard(k))
    main = []
    for f in ORD_S:
        t, k = divmod(f, 10)
        main.append(([need(f"A{k}")] if t == 0 else []) + smf(f, accs[t], AF+4*k))
    T = refill_tasks() + [[max(k-3, 4 if (k >= 7 and PL_X == 'S') else 0), max(k-1, 2*k-5), [ard(k)]] for k in range(3, 10)]
    pb = phaseB_items(A, False, cls, flags)
    if PL_K == 'S' and cls != 0:
        pb += [f"s_xor_b32 {s(S_MK)}, {s(S_MK)}, {S_LK ^ (S_LK + 16384)}", f"s_mov_b32 m0, {s(S_MK)}", f"s_add_u32 {s(S_KN)}, {s(S_KN)}, 1"]
        pb += [f"buffer_load_dwordx4 {v(V_L16)}, {s(S_WS,4)}, {s(S_KS)} offen offset:{j*1024} sc1 lds" for j in range(4)]
        pb += [f"s_add_u32 {s(S_KS)}, {s(S_KS)}, {NH*12288}", f"s_min_u32 {s(S_KN)}, {s(S_KN)}, {NSEG}"]
    T += pb_tasks(pb, 2 + PBSTG*{0:0,12:1,3:2}[cls], 22, 56, PBSTEP if cls else PBSTEP0)
    T.append([0, 28, zero(S3)])
    if HINTB == 4 and cls == 3: T.append([GIDX-3, GIDX+1, first_text(A, 0, 16, XS, XS+1)])
    if HINTB in (3, 4) and cls == 0:
        B = Asm(); B.uid = A.uid + 500000; A.uid += 10
        hint_store(B, 0, V_TMP1 if not TRACE else 127)
        T.append([HBIDX-3, HBIDX+1, [l.strip() for l in B.lines[:4]] + ["\n".join(B.lines[4:])]])
    T += stage_side(A, False, cls)
    T += trace_task()
    T.append([21, 33, post_s(S0, 0, "qw") + post_s(S1, 256, "qw") + zero(S0) + zero(S1)])
    T.append([32, 36, post_s(S2, 512, "qw")])
    T.append([37, 38, [need("qw"), "s_barrier"]])
    T.append([42, 58, post_s(S3, 3072, "kw")])
    if cls == 12:
        SA = XS+16
        R = {0: (XS, XS+4), 1: (XS+8, XS+12), 2: (AF, AF+4), 3: (AF+8, AF+12), 4: (XS, XS+4), 5: (XS+8, XS+12)}
        def rd(ks): return qk_tr(True, ks, R[ks][0], f"X{ks}") + [ds(f"X{ks}", f"ds_read_b128 {v(R[ks][1],4)}, {v(V_KR)} offset:{ks*1024}")]
        def mm(ks, first=False): return [need(f"X{ks}"), f"v_mfma_f32_16x16x32_bf16 {v(SA,4)}, {v(R[ks][1],4)}, {v(R[ks][0],4)}, {'0' if first else v(SA,4)}"]
        T.append([38, 42, rd(0)])
        T.append([38, 45, rd(1)])
        T.append([45, 49, mm(0, True) + rd(4)])
        T.append([44, 48, rd(2)])
        T.append([48, 52, mm(1) + rd(5)])
        T.append([48, 54, rd(3)])
        T.append([52, 54, mm(2)])
        T.append([54, 55, mm(4)])
        T.append([55, 56, mm(5)])
        T.append([56, 57, mm(3)])
    if cls == 0:
        for ks in range(5): T.append([38, 45+2*ks, qk_tr(True, ks, XS+4*ks, f"m{ks}")])
        T.append([42, 58, qk_tr(True, 5, AF, "m5")])
    schedule(E, main, T, maxn=4)
    if cls == 12:
        E(ds("sx", f"ds_write_b128 {v(126)}, {v(XS+16,4)} offset:{S_LSX-HI-1024}"))
        if VAR == 1: A(f"v_xor_b32 {v(V_KR)}, {S_LK ^ (S_LK + 16384)}, {v(V_KR)}")
        A("s_nop 3")
    else:
        A("s_nop 4")
    pa = post_s(S0, 3072+256, "kw"); pb_ = post_s(S1, 3072+512, "kw")
    for it in pa + pb_: E(it)
    if HINTB == 5 and cls == 0: hint_store(A, 0, 68)
    if HINTB == 6 and cls == 0: ts_hint_store(A, E, 68)
    tr(A, 1)
    E.drain()
    A("s_barrier")

def dppadd(r): return f"v_add_f32_dpp {v(r)}, {v(r)}, {v(r)} row_ror:8 row_mask:0xf bank_mask:0xf"

def s_tail(A, E):
    KF, SX, SM, t0, t1 = TMP, 44, 52, 56, 57
    mx, sm, m = 58, 59, 62
    dpp = " row_ror:8 row_mask:0xf bank_mask:0xf"
    E(ds("sx", f"ds_read_b128 {v(SX,4)}, {v(V_SXR)}"))
    for ks in range(6):
        for it in qk_tr(False, ks, KF+4*ks, f"m{ks}"): E(it)
    if HINTB == 2: hint_store(A, 0, 60)
    X = [need("sx"),
         f"v_max3_f32 {v(mx)}, {v(SX)}, {v(SX+1)}, {v(SX+2)}",
         f"v_max_f32 {v(mx)}, {v(mx)}, {v(SX+3)}", "s_nop 1",
         f"v_max_f32_dpp {v(mx)}, {v(mx)}, {v(mx)}" + dpp]
    X += xlane("v_max_f32", mx, t0, 16) + xlane("v_max_f32", mx, t0, 32)
    main = [[]] + [[need(f"m{ks}"), f"v_mfma_f32_16x16x32_bf16 {v(SM,4)}, {v(KF+4*ks,4)}, {v(XS+4*ks if ks < 5 else AF,4)}, {'0' if ks==0 else v(SM,4)}"] for ks in range(6)]
    for it in X[:9]: E(it)
    schedule(E, main, [[0, 99, X[9:]]])
    A(f"s_add_u32 {s(S_T)}, {s(S_P)}, {s(S_PST)}")
    A(f"s_add_u32 {s(S_T2)}, {s(S_P)}, {s(S_PSM)}")
    A("s_waitcnt vmcnt(0)" if TAILW or VAR == 2 else wait_poison(A))
    tr(A, 9)
    A("s_nop 4")
    A(f"v_max3_f32 {v(m)}, {v(SM)}, {v(SM+1)}, {v(SM+2)}")
    A(f"v_max3_f32 {v(m)}, {v(m)}, {v(SM+3)}, {v(mx)}")
    for l in xlane("v_max_f32", m, t0, 16): A(l)
    A(f"v_mul_f32 {v(m)}, {s(S_SC)}, {v(m)}")
    R = [SX, SX+1, SX+2, SX+3, SM, SM+1, SM+2, SM+3]
    for r in R: A(f"v_fma_f32 {v(r)}, {v(r)}, {s(S_SC)}, -{v(m)}")
    for r in R: A(f"v_exp_f32 {v(r)}, {v(r)}")
    A(f"v_add_f32 {v(sm)}, {v(SX)}, {v(SX+1)}")
    A(f"v_add_f32 {v(t0)}, {v(SX+2)}, {v(SX+3)}")
    A(f"v_add_f32 {v(t1)}, {v(SM)}, {v(SM+1)}")
    A(f"v_add_f32 {v(m)}, {v(SM+2)}, {v(SM+3)}")
    A(f"v_add_f32 {v(sm)}, {v(sm)}, {v(t0)}")
    A(f"v_add_f32 {v(t1)}, {v(t1)}, {v(m)}")
    A(f"v_fmac_f32 {v(sm)}, 0x3e800000, {v(t1)}")
    A("s_nop 1")
    A(f"v_add_f32_dpp {v(sm)}, {v(sm)}, {v(sm)}" + dpp)
    for l in xlane("v_add_f32", sm, t0, 16) + xlane("v_add_f32", sm, t0, 32): A(l)
    A(f"v_rcp_f32 {v(sm)}, {v(sm)}")
    A(f"s_cmp_eq_u32 {s(S_FAST)}, 0")
    for r in R[:4]: A(f"v_mul_f32 {v(r)}, {v(r)}, {v(sm)}")
    for i in range(2): A(f"v_cvt_pk_bf16_f32 {v(64+i)}, {v(SX+2*i)}, {v(SX+2*i+1)}")
    dual(A, [f"buffer_store_dwordx2 {v(64,2)}, {v(V_PX)}, {s(S_WS,4)}, {s(S_T)} offen"])
    for r in R[4:]: A(f"v_mul_f32 {v(r)}, {v(r)}, {v(sm)}")
    for i in range(2): A(f"v_cvt_pk_bf16_f32 {v(SM+i)}, {v(SM+2*i)}, {v(SM+2*i+1)}")
    dual(A, [f"s_mov_b64 exec, {s(S_MB,2)}",
             f"buffer_store_dwordx2 {v(SM,2)}, {v(V_PM)}, {s(S_WS,4)}, {s(S_T2)} offen",
             "s_mov_b64 exec, -1"])
    if HINTB == 1: hint_store(A, 0, 56)

def v_stage(A, E, cls, flags):
    S = [ACC, ACC+4, ACC+8, ACC+12, 112, 116]
    ard = lambda k: ds(f"A{k}", f"ds_read_b128 {v(AF+4*k,4)}, {v(V_HI)} offset:{k*1024}")
    for k in range(3): E(ard(k))
    main = []
    for f in ORD_V[:30]:
        t, k = divmod(f, 10)
        main.append(([need(f"A{k}")] if t == 0 else []) + smf(f, S[t], AF+4*k))
    RT = refill_tasks()
    T = [t for t in RT if t[0] < 29] + [[max(k-3, 4 if (k >= 7 and PL_X == 'S') else 0), max(k-1, 2*k-5), [ard(k)]] for k in range(3, 10)]
    PB = pb_tasks(phaseB_items(A, True, cls, flags), 2 + PBSTG*{0:0,12:1,3:2}[cls], 24, 58, PBSTEPV)
    T += [t for t in PB if t[0] < 28]
    T.append([0, 20, zero(S[3]) + zero(S[4]) + zero(S[5])])
    T += stage_side(A, True, cls)
    T += trace_task()
    T.append([21, 99, post_v(S[0], 0, "vw") + post_v(S[1], 256, "vw") + zero(S[0])])
    schedule(E, main, T, maxn=4)
    for l in zero(S[1]) + zero(AF+12) + zero(AF+16): A(l)
    A("s_nop 1")
    for it in post_v(S[2], 512, "vw"): E(it)
    for it in RT[5][2]: E(it)
    for l in zero(AF+20) + zero(AF+24) + zero(S[2]): A(l)
    E.need("vw")
    A("s_barrier")
    for kk in range(3):
        for h in range(2):
            E(ds(f"B{kk}", f"ds_read_b64_tr_b16 {v(AF+4*kk+2*h,2)}, {v(V_TRA)} offset:{(32*kk+4*h)*32}"))
    SS = [S[3], S[4], S[5], S[0], S[1], S[2], AF+12, AF+16, AF+20, AF+24]
    sa = lambda t: SS[t]
    main = []
    for t in range(10):
        for kk in range(3):
            main.append(([need(f"B{kk}")] if t == 0 else []) + smf(30 + 3*t + kk, sa(t), AF+4*kk))
    T = [[t[0]-30, t[1]-30, t[2]] for t in RT if t[0] > 29]
    T += [[max(t[0]-30, 0), max(t[1]-30, 2), t[2]] for t in PB if t[0] >= 28]
    if HINTB == 4 and cls == 3: T.append([max(GIDXV-3, 0), GIDXV+1, first_text(A, 0, 16, 110, 11 if TRACE else 111)])
    def fin(t):
        L = post(sa(t), XS+t)
        if t in (3, 7):
            q = XS + t - 3
            L += ["s_nop 0"]
            L += [f"v_permlane32_swap_b32 {v(q)}, {v(q+2)}", f"v_permlane32_swap_b32 {v(q+1)}, {v(q+3)}", "s_nop 1",
                  f"v_permlane16_swap_b32 {v(q)}, {v(q+1)}", f"v_permlane16_swap_b32 {v(q+2)}, {v(q+3)}"]
            L += [f"s_add_u32 {s(S_T)}, {s(S_Z)}, {(t//4)*4*8192}\n" + dual_text(A, [f"buffer_store_dwordx4 {v(q,4)}, {v(V_ZS4)}, {s(S_WS,4)}, {s(S_T)} offen"])]
        if t == 9:
            L += ["s_nop 1", f"v_permlane16_swap_b32 {v(XS+8)}, {v(XS+9)}"]
            L += [dual_text(A, [f"buffer_store_dwordx2 {v(XS+8,2)}, {v(V_ZS2)}, {s(S_WS,4)}, {s(S_Z)} offen"])]
        return L
    chain = []
    for t in range(8):
        T.append([3*t+2+3, 40+t, fin(t)])
    schedule(E, main, T, cap=VCAP, maxn=5)
    for it in fin(8): E(it)
    A(wait_poison(A, fin=True) if (cls == 0 and VAR == 1) else "s_nop 0")
    A("s_nop 2")
    for it in fin(9): E(it)
    tr(A, 1)

S_A1 = 10; S_B1_ = 3
def reduce_stage(A, E, isV, cls, flags):
    PF, mt = AF, 56
    UL = [76,80,84,88,92,96,60,64] if isV else [100,104,108,112]
    D = [68, 72]; DO = [40, 44]
    nt = 2 if isV else 1
    if VAR == 1 and PL_K == 'T' and not isV: side_ops(A, E, isV, cls, flags, 'T')
    A(f"s_add_u32 {s(S_T)}, {s(S_P)}, {s(S_PLX)}")
    A(f"s_add_u32 {s(S_T2)}, {s(S_P)}, {s(S_PLM)}")
    A(f"s_add_u32 {s(S_T3)}, {s(S_Z)}, {s(S_ZL)}")
    if isV: A(f"s_add_u32 {s(S_T4)}, {s(S_Z)}, {s(S_ZL2)}")
    for l in zero(PF+8) + (zero(ZF+4) if isV else []): A(l)
    if PL_K == 'B' and not isV and cls != 0: A(f"s_xor_b32 {s(S_MK)}, {s(S_MK)}, {S_LK ^ (S_LK + 16384)}")
    mp_init(A, ["-1", "-1", s(S_MA,2), "-1"] + ([s(S_MA,2)] if isV else []))
    zl = [(ZF, f"buffer_load_dwordx4 {v(ZF,4)}, {v(V_L16)}, {s(S_WS,4)}, {s(S_T3)} offen sc1")]
    if isV: zl.append((ZF+4, f"buffer_load_dwordx4 {v(ZF+4,4)}, {v(V_ZH)}, {s(S_WS,4)}, {s(S_T4)} offen sc1"))
    def u_reads():
        for j in range(4): E(ds("U", f"ds_read_b128 {v(UL[j],4)}, {v(V_UR)} offset:{j*1024}"))
        if isV:
            for j in range(4): E(ds("U", f"ds_read_b128 {v(UL[4+j],4)}, {v(V_UHR)} offset:{(j>>1)*1024+(j&1)*128}"))
    def zpoi():
        A(f"s_add_u32 {s(S_A1)}, {s(S_ZP)}, {4*8192}")
        dual(A, [f"buffer_store_dwordx4 {v(V_POI,4)}, {v(V_ZS4)}, {s(S_WS,4)}, {s(S_ZP)} offen",
                 f"buffer_store_dwordx4 {v(V_POI,4)}, {v(V_ZS4)}, {s(S_WS,4)}, {s(S_A1)} offen",
                 f"buffer_store_dwordx2 {v(V_POI,2)}, {v(V_ZS2)}, {s(S_WS,4)}, {s(S_ZP)} offen"])
    prew = False
    early = ZPRE2 == 4 and (isV or cls != 0)
    def z_early():
        mp_issue(A, zl, 3)
        mp_init(A, ["0"] * len(zl), 3)
    if early and cls != 3:
        if isV: zpoi()
        d = DELAYZV if isV else DELAYZS
        if d: A(f"s_sleep {d}")
        z_early()
        A(f"s_waitcnt vmcnt({len(zl) + (5 if isV else 0)})")
        u_reads()
    if PL_K == 'B' and flags and cls == 3 and not isV:
        A(f"s_mov_b32 {s(S_B1_)}, {s(S_T3)}"); k_check(A); A(f"s_mov_b32 {s(S_T3)}, {s(S_B1_)}")
    tr(A, 2)
    if HINTB == 6:
        if cls == 3:
            ts_poll(A, 57, 58, 59, 10)
            if XHINT and isV: xstore(A)
            if early:
                u_reads(); z_early()
                if isV: zpoi()
            ts_wait(A, E, S_TD, TB)
        if cls == 0 and not isV and DELAYBS: A(f"s_sleep {DELAYBS}")
        A("s_barrier")
    elif HINTB == 4:
        if cls == 3:
            if isV: gate(A, 0, 16, 110, 11 if TRACE else 111, 59, 10, 3 if GIDXV < 12 else 2, DELAYB, DFAILB)
            else: gate(A, 0, 16, XS, XS+1, XS+2, 10, 0, 0, DFAILB)
        if cls == 0 and not isV and DELAYBS: A(f"s_sleep {DELAYBS}")
        A("s_barrier")
    elif HINTB:
        if cls == (0 if HINTB == 1 else 3):
            hint_poll(A, 0, 16, 57, 58, 59, 10)
            if HINTA == 4:
                A(f"s_memtime {s(FPS[5],2)}"); A("s_waitcnt lgkmcnt(0)"); E.reset()
                A(f"s_add_u32 {s(S_TD)}, {s(FPS[5])}, {CWAIT - (CVADJ if isV else 0)}")
            db = DELAYB - (DBVADJ if isV else 0)
            if db > 0: A(f"s_sleep {db}")
        if cls == 0 and not isV and DELAYBS: A(f"s_sleep {DELAYBS}")
        A("s_barrier")
    elif not isV:
        A("s_barrier")
        if DELAYBS: A(f"s_sleep {DELAYBS}")
    elif DELAYB: A(f"s_sleep {DELAYB}")
    if STAMP == 1: tick(A, 8)
    tr(A, 3)
    gl = [(PF+4*j, f"buffer_load_dwordx4 {v(PF+4*j,4)}, {v(V_L16)}, {s(S_WS,4)}, {s(S_T)} offen offset:{j*1024} sc1") for j in range(2)]
    gl.append((PF+8, f"buffer_load_dwordx4 {v(PF+8,4)}, {v(V_PLD)}, {s(S_WS,4)}, {s(S_T2)} offen sc1"))
    gl += zl
    lab = A.newlabel("GB")
    loop_top(A, lab, 11)
    mp_issue(A, gl)
    nz = 0
    if XHINT and cls == 3 and isV and HINTB != 6:
        xstore(A); nz += 1
    if not early:
        A(f"s_waitcnt vmcnt({len(gl)+nz})")
        u_reads()
        if isV: zpoi(); nz += 3
    if PL_K == 'B' and not isV and cls != 0:
        A(f"s_mov_b32 m0, {s(S_MK)}")
        A("s_nop 0")
        for j in range(4): A(f"buffer_load_dwordx4 {v(V_L16)}, {s(S_WS,4)}, {s(S_KS)} offen offset:{j*1024} sc1 lds")
        nz += 4
    if XHINT == 2 and cls == 3:
        hint_first(A, 128, 1, 57, 58, True); A("s_mov_b64 exec, -1"); nz += 1
    A(f"s_waitcnt vmcnt({nz}) lgkmcnt(0)"); E.reset()
    if STAMP == 1: tick(A, 7)
    main = []
    def mm(d, a_, b_, first): return [f"v_mfma_f32_16x16x32_bf16 {v(d,4)}, {v(a_,4)}, {v(b_,4)}, {'0' if first else v(d,4)}"]
    for t in range(nt):
        for j in range(2): main.append(mm(DO[t], UL[4*t+2*j+1], PF+4*j, j == 0))
        for j in range(3): main.append(mm(D[t], UL[4*t+2*j] if j < 2 else ZF+4*t, PF+4*j, j == 0))
    X = mp_check(gl, 32)
    T = [[0, 99, X]]
    if cls == 0 and VAR == 2:
        LZ = (V_LVX if isV else S_LK + 12288) - HI
        T.append([1, 98, [ds("zs", f"ds_write_b128 {v(V_HI)}, {v(ZF+4*t,4)} offset:{LZ+t*1024}") for t in range(nt)]])
    schedule(E, main[:5], T)
    mp_close(A, len(gl), lab)
    tr(A, 4)
    if PL_K == 'B' and not isV and cls != 0:
        A(f"s_add_u32 {s(S_KS)}, {s(S_KS)}, {NH*12288}"); A(f"s_add_u32 {s(S_KN)}, {s(S_KN)}, 1"); A(f"s_min_u32 {s(S_KN)}, {s(S_KN)}, {NSEG}")
    add0 = [f"v_add_f32_dpp {v(D[0]+i)}, {v(DO[0]+i)}, {v(D[0]+i)} row_ror:8 row_mask:0xf bank_mask:0xf" for i in range(4)]
    for k_, m_ in enumerate(main[5:]):
        A(m_[0])
        if k_ >= 3:
            A(add0.pop(0)); A(add0.pop(0))
    if HINTA == 2 and cls == 0: hint_store(A, 128, 57)
    if HINTA == 5 and cls == 3 and XHINT:
        A(f"v_mov_b32 {v(57)}, {s(S_XR)}"); A("s_mov_b64 exec, 1")
        A(f"buffer_load_dword {v(58)}, {v(57)}, {s(S_WS,4)}, {s(S_HP)} offen offset:128 sc1"); A("s_mov_b64 exec, -1")
    if HINTA in (2, 3, 4) and cls == 3 and XHINT == 1:
        hint_first(A, 128, 32 if HINTA == 2 else 1, 57, 58, True); A("s_mov_b64 exec, -1")
    A("s_nop 3" if not isV else "s_nop 0")
    for l in add0: A(l)
    if isV:
        A("s_nop 4")
        for i in range(4):
            A(f"v_add_f32_dpp {v(D[0]+i)}, {v(D[1]+i)}, {v(DO[1]+i)} row_ror:8 row_mask:0xf bank_mask:0xc")
    E(ds("r", f"ds_write_b128 {v(V_RW if isV else 126)}, {v(D[0],4)} offset:{0 if isV else S_LRED-HI}"))
    E.drain()
    A("s_barrier")

def preload(A, E, z=True):
    for j in range(3):
        for it in wl_read(j): E(it)
    for k in range(3 if z else 0):
        for l in zero(ACC+4*k): A(l)

def gatherA(A, E, isV, cls, lab, flags):
    mt = 72
    vtw = V_TW if isV else V_PLD
    def advance():
        A(f"s_add_u32 {s(S_STEP)}, {s(S_STEP)}, 1")
        for c_, n_, p_ in ((S_Z,S_ZN,S_ZP),(S_P,S_PN,S_PP)):
            A(f"s_mov_b32 {s(S_T)}, {s(c_)}"); A(f"s_mov_b32 {s(c_)}, {s(n_)}"); A(f"s_mov_b32 {s(n_)}, {s(p_)}"); A(f"s_mov_b32 {s(p_)}, {s(S_T)}")
        A(f"s_mov_b32 {s(S_T)}, {s(S_L)}"); A(f"s_mov_b32 {s(S_L)}, {s(S_LN)}"); A(f"s_mov_b32 {s(S_LN)}, {s(S_T)}")
        A(f"s_add_u32 {s(S_US)}, {s(S_US)}, {40*32768}")
        if isV: A(f"s_add_u32 {s(S_US2)}, {s(S_US2)}, {40*32768}")
        A(f"s_add_u32 {s(S_EXP)}, {s(S_EXP)}, 327680")
        A(f"s_add_u32 {s(S_ARR)}, {s(S_ARR)}, 128")
        if not isV: A(f"s_add_u32 {s(S_KMX)}, {s(S_KMX)}, {NH*3072}")
        preload(A, E)
    if cls == 0:
        st = 1024
        for w in range(4): E(ds("f", f"ds_read_b128 {v(AF+4*w,4)}, {v(V_FINR)} offset:{w*st}"))
        E.drain()
        for i in range(4): A(f"v_add_f32 {v(AF+i)}, {v(AF+i)}, {v(AF+4+i)}")
        for i in range(4): A(f"v_add_f32 {v(AF+8+i)}, {v(AF+8+i)}, {v(AF+12+i)}")
        for i in range(4): A(f"v_add_f32 {v(AF+i)}, {v(AF+i)}, {v(AF+8+i)}")
        A(f"s_mov_b64 exec, {s(S_MB if isV else S_MA,2)}")
        A(f"buffer_store_dwordx4 {v(AF,4)}, {v(vtw)}, {s(S_WS,4)}, {s(S_RW)} offen sc0 sc1")
        A("s_mov_b64 exec, -1")
        tick(A, 3)
        advance()
        if DELAY0: A(f"s_sleep {DELAY0}")
        A(f"s_mov_b64 exec, {s(S_MB if isV else S_MA,2)}")
        labt = A.newlabel("GT")
        loop_top(A, labt, 13)
        A(f"buffer_load_dwordx4 {v(AF+4,4)}, {v(vtw)}, {s(S_WS,4)}, {s(S_RR)} offen sc1")
        A("s_waitcnt vmcnt(0)")
        for l in maxtree(range(AF+4, AF+8), mt): A(l)
        for i in range(4): A(f"v_add_f32 {v(AF+8+i)}, {v(AF+i)}, {v(AF+4+i)}")
        A(f"v_cmp_eq_u32 vcc, -1, {v(mt)}")
        for i in range(2): A(f"v_cvt_pk_bf16_f32 {v(AF+8+i)}, {v(AF+8+2*i)}, {v(AF+9+2*i)}")
        retry(A, labt, 13)
        dual(A, [f"buffer_store_dwordx2 {v(AF+8,2)}, {v(V_FINRM)}, {s(S_WS,4)}, {s(S_L)} offen",
                 f"buffer_store_dwordx2 {v(V_POI,2)}, {v(V_FINRM)}, {s(S_WS,4)}, {s(S_LN)} offen"])
        A("s_mov_b64 exec, -1")
        if not isV: p_poison(A, S_PN)
        A(f"s_add_u32 {s(S_RR)}, {s(S_RR)}, 40960")
        A(f"s_add_u32 {s(S_RW)}, {s(S_RW)}, 40960")
    else:
        tick(A, 3)
        window(A, E, isV, cls, flags)
        advance()
    A("s_barrier")
    tick(A, 4)
    if (DELAYLV if isV else DELAYL): A(f"s_sleep {DELAYLV if isV else DELAYL}")
    G = AF + 12
    A(f"s_add_u32 {s(S_T)}, {s(S_L)}, 4096")
    A(f"s_add_u32 {s(S_T2)}, {s(S_L)}, {s(S_G3)}")
    A(f"v_mov_b64 {v(G+8,2)}, 0"); A(f"v_mov_b64 {v(G+10,2)}, 0")
    if STAMP == 1: tick(A, 8)
    loop_top(A, lab, 12)
    A(f"buffer_load_dwordx4 {v(G,4)}, {v(V_T7)}, {s(S_WS,4)}, {s(S_L)} offen sc1")
    A(f"buffer_load_dwordx4 {v(G+4,4)}, {v(V_T7)}, {s(S_WS,4)}, {s(S_T)} offen sc1")
    A(f"s_mov_b64 exec, {s(S_M3,2)}")
    A(f"buffer_load_dwordx4 {v(G+8,4)}, {v(V_T7)}, {s(S_WS,4)}, {s(S_T2)} offen sc1")
    return lab

def gatherA2(A, E, lab):
    G = AF + 12; mt = 72
    A("s_waitcnt vmcnt(0)")
    if STAMP == 1: tick(A, 9)
    A("s_mov_b64 exec, -1")
    mtree = maxtree(range(G, G+12), mt)
    E(ds("g", f"ds_write_b128 {v(V_GA)}, {v(G,4)}"))
    for l in mtree: A(l)
    A(f"v_cmp_eq_u32 vcc, -1, {v(mt)}")
    retry(A, lab, 12)
    E(ds("g", f"ds_write_b128 {v(V_GA)}, {v(G+4,4)} offset:4096"))
    A(f"s_mov_b64 exec, {s(S_M3,2)}")
    E(ds("g", f"ds_write_b128 {v(V_G3W)}, {v(G+8,4)}"))
    A("s_mov_b64 exec, -1")
    tick(A, 5)
    E.drain()

S_OLO = 40; S_OHI = 41; S_TGT = 66
def probes(A, isV, ahead):
    A(f"v_cmp_le_u32 vcc, 32, {v(V_FL)}")
    A(f"s_add_u32 {s(S_T)}, {s(S_TGT)}, 1")
    A(f"s_max_u32 {s(S_T)}, {s(S_T)}, {s(S_KNOWN)}")
    A("s_cmp_lg_u64 vcc, 0")
    A(f"s_cselect_b32 {s(S_KNOWN)}, {s(S_T)}, {s(S_KNOWN)}")
    u_check(A, ahead)
    if not isV and PL_K != 'B': k_check(A)
    A(f"s_add_u32 {s(S_TGT)}, {s(S_KNOWN)}, 3")
    A(f"s_min_u32 {s(S_TGT)}, {s(S_TGT)}, {NSEG-1}")
    A(f"s_lshl_b32 {s(S_T)}, {s(S_TGT)}, 7")
    A(f"s_add_u32 {s(S_T)}, {s(S_T)}, {CN_U}")
    A(f"buffer_load_dword {v(V_FL)}, {v(V_ZERO)}, {s(S_WS,4)}, {s(S_T)} offen sc1")
    if not isV:
        A(f"s_add_u32 {s(S_T)}, {s(S_FLO)}, {FL_K}")
        A(f"buffer_load_dword {v(V_FKS)}, {v(V_ZERO)}, {s(S_WS,4)}, {s(S_T)} offen sc1")

def probes_text(A, isV):
    B = Asm(); B.uid = A.uid + 400000; A.uid += 10
    probes(B, isV, 1)
    return "\n".join(B.lines)
LR = 20; RR_ = 32; UP = list(range(100, 110)) + list(range(112, 120)) + [56, 57, 58, 59, 73, 74]
def ld3_list(dst, sbase, t1, t2):
    return [(dst, f"buffer_load_dwordx4 {v(dst,4)}, {v(V_T7)}, {s(S_WS,4)}, {s(sbase)} offen sc1"),
            (dst+4, f"buffer_load_dwordx4 {v(dst+4,4)}, {v(V_T7)}, {s(S_WS,4)}, {s(t1)} offen sc1"),
            (dst+8, f"buffer_load_dwordx4 {v(dst+8,4)}, {v(V_T7)}, {s(S_WS,4)}, {s(t2)} offen sc1")]
S_A1 = 10; S_A2 = 11; S_B1 = 3; S_B2 = 101
LIST_L = lambda: ld3_list(LR, S_L, S_A1, S_A2)
LIST_R = lambda: ld3_list(RR_, S_RR, S_B1, S_B2)

GSIDE = []
def advance1(A, E, isV, pre=True):
    A(f"s_add_u32 {s(S_STEP)}, {s(S_STEP)}, 1")
    for c_, n_, p_ in ((S_Z,S_ZN,S_ZP),(S_P,S_PN,S_PP)):
        A(f"s_mov_b32 {s(S_T)}, {s(c_)}"); A(f"s_mov_b32 {s(c_)}, {s(n_)}"); A(f"s_mov_b32 {s(n_)}, {s(p_)}"); A(f"s_mov_b32 {s(p_)}, {s(S_T)}")
    A(f"s_mov_b32 {s(S_T)}, {s(S_L)}"); A(f"s_mov_b32 {s(S_L)}, {s(S_LN)}"); A(f"s_mov_b32 {s(S_LN)}, {s(S_T)}")
    A(f"s_add_u32 {s(S_US)}, {s(S_US)}, {40*32768}")
    if isV: A(f"s_add_u32 {s(S_US2)}, {s(S_US2)}, {40*32768}")
    A(f"s_add_u32 {s(S_ARR)}, {s(S_ARR)}, 128")
    A(f"s_add_u32 {s(S_XW)}, {s(S_XW)}, 256"); A(f"s_add_u32 {s(S_XR)}, {s(S_XR)}, 256")
    if pre: preload(A, E, False)

def side_ops(A, E, isV, cls, flags, where):
    n = 0
    adv = where == 'G'
    if PL_X == where:
        z_export(A, isV, ZF, None); n += 2 if isV else 1
    if isV and PL_P == where:
        zs = S_ZN if adv else S_ZP
        A(f"s_add_u32 {s(S_T2)}, {s(zs)}, {4*8192}")
        dual(A, [f"buffer_store_dwordx4 {v(V_POI,4)}, {v(V_ZS4)}, {s(S_WS,4)}, {s(zs)} offen",
                 f"buffer_store_dwordx4 {v(V_POI,4)}, {v(V_ZS4)}, {s(S_WS,4)}, {s(S_T2)} offen",
                 f"buffer_store_dwordx2 {v(V_POI,2)}, {v(V_ZS2)}, {s(S_WS,4)}, {s(zs)} offen"])
        n += 3
    if cls == 0 and adv and PL_X != 'S':
        A(f"s_mov_b64 exec, {s(S_MB if isV else S_MA,2)}")
        dual(A, [f"buffer_store_dwordx2 {v(V_POI,2)}, {v(V_FINRM)}, {s(S_WS,4)}, {s(S_LN)} offen"])
        A("s_mov_b64 exec, -1")
        n += 1
        if not isV: p_poison(A, S_PN); n += 2
    if cls != 0 and not isV and PL_K == where:
        A(f"s_xor_b32 {s(S_MK)}, {s(S_MK)}, {S_LK ^ (S_LK + 16384)}")
        k_dma(A, cls); n += (6 if cls == 12 else 0) if K2W else 4
    if cls != 0 and not isV and PL_M == where:
        km_export(A, E, 44); n += 1
        A(f"s_add_u32 {s(S_KMX)}, {s(S_KMX)}, {NH*3072}")
    if flags and cls == PROBEW and PL_M == where:
        probes(A, isV, {'T': 2, 'W': 1, 'G': 1}[where]); n += 1 if isV else 2
    return n

def g1_bottom(A, E, isV, cls, flags):
    if cls == 0:
        st = 1024
        for w in range(4): E(ds("f", f"ds_read_b128 {v(AF+4*w,4)}, {v(V_FINR)} offset:{w*st}"))
        E.drain()
        for i in range(4): A(f"v_add_f32 {v(AF+i)}, {v(AF+i)}, {v(AF+4+i)}")
        for i in range(4): A(f"v_add_f32 {v(AF+8+i)}, {v(AF+8+i)}, {v(AF+12+i)}")
        for i in range(4): A(f"v_add_f32 {v(AF+i)}, {v(AF+i)}, {v(AF+8+i)}")
        for i in range(2): A(f"v_cvt_pk_bf16_f32 {v(AF+24+i)}, {v(AF+2*i)}, {v(AF+1+2*i)}")
        if WIDE:
            A(f"v_mov_b64 {v(AF+26,2)}, {v(AF+24,2)}")
            A("s_nop 1")
            A(f"v_permlane16_swap_b32 {v(AF+24)}, {v(AF+26)}")
            A(f"v_permlane16_swap_b32 {v(AF+25)}, {v(AF+27)}")
            A(f"s_mov_b32 exec_lo, {'0x0000ffff' if isV else '0x000000ff'}")
            A("s_mov_b32 exec_hi, 0x000000ff")
            A(f"buffer_store_dwordx4 {v(AF+24,4)}, {v(V_FINRM)}, {s(S_WS,4)}, {s(S_RW)} offen sc0 sc1")
            dual(A, [f"buffer_store_dwordx4 {v(AF+24,4)}, {v(V_FINRM)}, {s(S_WS,4)}, {s(S_LN)} offen"])
        else:
            A(f"s_mov_b64 exec, {s(S_MB if isV else S_MA,2)}")
            A(f"buffer_store_dwordx2 {v(AF+24,2)}, {v(V_FINRM)}, {s(S_WS,4)}, {s(S_RW)} offen sc0 sc1")
            dual(A, [f"buffer_store_dwordx2 {v(AF+24,2)}, {v(V_FINRM)}, {s(S_WS,4)}, {s(S_LN)} offen"])
        A("s_mov_b64 exec, -1")
        if HINTA == 1: hint_store(A, 128, 56)
        if not HINTA: A("s_barrier")
    nw_ = 0
    if 'W' in (PL_K, PL_M) and cls != 0 and (not isV or cls == PROBEW):
        if WDEL: A(f"s_sleep {WDEL}")
        nw_ = side_ops(A, E, isV, cls, flags, 'W')
    tick(A, 3)
    tr(A, 5)
    if HINTA and HINTA != 5 and cls == 3 and (HINTA < 3 or XHINT == 1):
        preload(A, E, False)
        if HINTA >= 3: gate(A, 128, 1, 57, 58, 59, 9, nw_, 0, DELAYH, cross=True)
        else:
            hint_poll(A, 128, 32, 57, 58, 59, 9, cross=XHINT, first=not XHINT)
            if DELAYH: A(f"s_sleep {DELAYH}")
    advance1(A, E, isV, not (HINTA and HINTA != 5 and cls == 3 and (HINTA < 3 or XHINT == 1)))
    for r in (LR+8, LR+10, RR_+8, RR_+10): A(f"v_mov_b64 {v(r,2)}, 0")
    A(f"s_add_u32 {s(S_A1)}, {s(S_L)}, 4096"); A(f"s_add_u32 {s(S_A2)}, {s(S_L)}, {s(S_G3)}")
    mp_init(A, ["-1", "-1", s(S_M3,2)]); mp_init(A, ["-1", "-1", s(S_M3,2)], 3)
    A(f"s_add_u32 {s(S_B1)}, {s(S_RR)}, 4096"); A(f"s_add_u32 {s(S_B2)}, {s(S_RR)}, {s(S_G3)}")
    if cls == 0 and HINTA == 2 and DELAY0: A(f"s_sleep {DELAY0}")
    if cls == 3 and HINTA == 5:
        if XHINT:
            A(f"s_waitcnt vmcnt({nw_})")
            A(f"v_readfirstlane_b32 {s(S_T2)}, {v(58)}")
            A(f"s_add_u32 {s(S_T)}, {s(S_TD)}, {XLATE}")
            A(f"s_cmp_lt_i32 {s(S_T2)}, {s(S_HN)}")
            A(f"s_cselect_b32 {s(S_T2)}, {s(S_T)}, {s(S_T2)}")
            if STAMP: A(f"s_addc_u32 {s(S_TS+9)}, {s(S_TS+9)}, 0")
            A(f"s_max_i32 {s(S_TD)}, {s(S_TD)}, {s(S_T2)}")
        ts_wait(A, E, S_TD, TA)
    if cls == 3 and HINTA == 4:
        lp = A.newlabel("TW"); dn = A.newlabel("TWd")
        if XHINT == 2:
            A(f"s_waitcnt vmcnt({nw_})")
            A(f"v_readfirstlane_b32 {s(S_T)}, {v(58)}")
            A(f"s_cmp_lt_i32 {s(S_T)}, {s(S_HN)}")
            A(f"s_cselect_b32 {s(S_T2)}, {XDELTA}, 0")
            A(f"s_add_u32 {s(S_TD)}, {s(S_TD)}, {s(S_T2)}")
            if STAMP: A(f"s_cmp_lt_i32 {s(S_T)}, {s(S_HN)}"); A(f"s_addc_u32 {s(S_TS+9)}, {s(S_TS+9)}, 0")
        A(f"s_memtime {s(76 if not (TRACE or STAMP) else 92,2)}"); A("s_waitcnt lgkmcnt(0)"); E.reset()
        A(f"s_sub_u32 {s(S_T)}, {s(S_TD)}, {s(76 if not (TRACE or STAMP) else 92)}")
        A(f"s_cmp_gt_i32 {s(S_T)}, 4000"); A(f"s_cselect_b32 {s(S_T)}, 0, {s(S_T)}")
        A.label(lp)
        A(f"s_sub_u32 {s(S_T)}, {s(S_T)}, {TWSTEP}")
        A(f"s_cmp_gt_i32 {s(S_T)}, 0")
        A(f"s_cbranch_scc1 {lp}")
    if cls == 0 and HINTA >= 3 and (DELAY0V if isV else DELAY0): A(f"s_sleep {DELAY0V if isV else DELAY0}")
    if cls != 0 or isV: tr(A, 9)
    if cls != 0 or HINTA: A("s_barrier")
    tick(A, 4)
    d = (DELAYLV if isV else DELAYL) - (2 if cls == 0 and not HINTA else 0)
    if d: A(f"s_sleep {d}")
    if STAMP == 1: tick(A, 8)
    tr(A, 6)

def nside(isV, cls, flags):
    B = Asm(); n0 = len(STUBS)
    n = side_ops(B, Emit(B), isV, cls, flags, 'G')
    del STUBS[n0:]
    return n

def g1_top(A, E, isV, cls, flags):
    mt = 72
    unp = []
    for j in range(12):
        unp += [f"v_lshlrev_b32 {v(UP[2*j])}, 16, {v(LR+j)}", f"v_and_b32 {v(UP[2*j+1])}, 0xffff0000, {v(LR+j)}"]
    TM = [60, 61, 62, 63, 64, 65, 66, 67]; OUT = 68
    lab = A.newlabel("GA")
    loop_top(A, lab, 12)
    mp_issue(A, LIST_L() + LIST_R())
    nx = side_ops(A, E, isV, cls, flags, 'G')
    A(f"s_waitcnt vmcnt({3+nx})")
    tr(A, 7)
    for l in mp_check(LIST_L(), 72) + unp: A(l)
    for f in range(3):
        A(f"s_waitcnt vmcnt({2-f+nx})")
        if f == 2: tr(A, 8)
        A(f"v_max_u32 {v(72)}, {v(RR_+4*f)}, {v(RR_+4*f+2)}")
        for j in range(4):
            A(f"v_dot2_f32_bf16 {v(TM[2*j])}, {v(RR_+4*f+j)}, {s(S_OLO)}, {v(UP[8*f+2*j])}")
            A(f"v_dot2_f32_bf16 {v(TM[2*j+1])}, {v(RR_+4*f+j)}, {s(S_OHI)}, {v(UP[8*f+2*j+1])}")
        A(f"v_cmp_eq_u32 {s(FPS[3+f],2)}, -1, {v(72)}")
        o = OUT if f != 1 else 44
        for j in range(4):
            A(f"v_cvt_pk_bf16_f32 {v(o+j)}, {v(TM[2*j])}, {v(TM[2*j+1])}")
        if f == 2: A(f"s_mov_b64 exec, {s(S_M3,2)}")
        E(ds("g", f"ds_write_b128 {v(V_GA if f < 2 else V_G3W)}, {v(o,4)} offset:{4096 if f == 1 else 0}"))
    A("s_mov_b64 exec, -1")
    if STAMP == 3:
        A(f"s_or_b64 vcc, {s(FPS[0],2)}, {s(FPS[1],2)}"); A(f"s_or_b64 vcc, vcc, {s(FPS[2],2)}"); A(f"s_addc_u32 {s(S_TS+8)}, {s(S_TS+8)}, 0")
        A(f"s_or_b64 vcc, {s(FPS[3],2)}, {s(FPS[4],2)}"); A(f"s_or_b64 vcc, vcc, {s(FPS[5],2)}"); A(f"s_addc_u32 {s(S_TS+13)}, {s(S_TS+13)}, 0")
    mp_close(A, 6, lab)
    for k in range(3):
        for l in zero(ACC+4*k): A(l)
    if PL_X == 'G': A(f"s_add_u32 {s(S_EXP)}, {s(S_EXP)}, 327680")
    A(f"s_add_u32 {s(S_RR)}, {s(S_RR)}, 20480")
    A(f"s_add_u32 {s(S_RW)}, {s(S_RW)}, 20480")
    tick(A, 5)
    tr(A, 0)
    E.drain()

def stage_side(A, isV, cls):
    if VAR != 1 or PL_X != 'S': return []
    L = [f"s_add_u32 {s(S_T)}, {s(S_EXP)}, {s(S_ZL)}",
         f"buffer_store_dwordx4 {v(ZF,4)}, {v(V_L16)}, {s(S_WS,4)}, {s(S_T)} offen sc0 sc1"]
    if isV:
        L += [f"s_add_u32 {s(S_T)}, {s(S_EXP)}, {s(S_ZL2)}",
              "\n".join([f"s_mov_b64 exec, {s(S_MA,2)}", f"buffer_store_dwordx4 {v(ZF+4,4)}, {v(V_ZH)}, {s(S_WS,4)}, {s(S_T)} offen sc0 sc1", "s_mov_b64 exec, -1"])]
    L += [f"s_mov_b32 {s(S_EXP)}, {s(S_EXN)}", f"s_add_u32 {s(S_EXN)}, {s(S_EXN)}, 327680"]
    T = [[0, 4, L]]
    if cls == 0:
        B = Asm(); B.uid = A.uid + 300000; A.uid += 10
        B(f"s_mov_b64 exec, {s(S_MB if isV else S_MA,2)}")
        dual(B, [f"buffer_store_dwordx2 {v(V_POI,2)}, {v(V_FINRM)}, {s(S_WS,4)}, {s(S_LN)} offen"])
        B("s_mov_b64 exec, -1")
        T.append([8, 12, ["\n".join(B.lines)]])
        if not isV:
            B = Asm(); B.uid = A.uid + 310000; A.uid += 10
            p_poison(B, S_PN)
            T.append([10, 14, ["\n".join(B.lines)]])
    return T

def chain_loop(A, isV, cls, flags):
    E = Emit(A)
    top = A.newlabel("CH_top"); fin = A.newlabel("CH_fin"); ent = A.newlabel("CH_ent"); galab = A.newlabel("GAx")
    preload(A, E); E.drain()
    if TRACE:
        global V_TRC, V_TRA4
        V_TRC, V_TRA4 = (111, 110) if isV else (125, 110)
        A(f"s_lshl_b32 s95, {s(S_GRP)}, 5"); A(f"s_add_u32 s95, s95, {s(S_C)}"); A("s_lshl_b32 s95, s95, 2"); A(f"s_add_u32 s95, s95, {s(S_WAVE)}")
        A("s_lshl_b32 s95, s95, 14"); A(f"s_add_u32 s95, s95, {WS_SCR + 4*1048576}")
        A("s_memrealtime s[88:89]"); A("s_memtime s[70:71]"); A("s_waitcnt lgkmcnt(0)")
    if STAMP:
        A(f"s_memtime {s(88,2)}"); A(f"s_memrealtime {s(92,2)}"); A("s_waitcnt lgkmcnt(0)"); A(f"s_mov_b32 {s(86)}, {s(88)}"); A(f"s_mov_b32 {s(87)}, {s(92)}")
    A(f"s_branch {ent}")
    A.label(top)
    if VAR == 2: gatherA2(A, E, galab)
    else: g1_top(A, E, isV, cls, flags)
    A.label(ent)
    A("s_barrier")
    tick(A, 6)
    if STAMP == 3 and cls == 3:
        A(f"s_memrealtime {s(92,2)}"); A(f"s_lshl_b32 s94, {s(S_STEP)}, 2"); A(f"s_lshl_b32 s95, {s(S_HEAD)}, 8"); A("s_add_u32 s94, s94, s95")
        A(f"s_add_u32 s94, s94, {WS_SCR + 3*1048576 + 65536}"); A("s_waitcnt lgkmcnt(0)"); A(f"v_mov_b32 {v(XS+19)}, s92")
        A(f"buffer_store_dword {v(XS+19)}, {v(V_ZERO)}, {s(S_WS,4)}, s94 offen")
    if STAMP in (1, 3):
        rs = A.newlabel("rs"); rb = A.newlabel("rb")
        A(f"s_cmp_eq_u32 {s(S_STEP)}, 8"); A(f"s_cbranch_scc1 {rs}"); A.label(rb)
        B = Asm(); B.uid = A.uid + 50000
        if not TS3: tstamp(B, 3)
        STUBS.append([rs + ":"] + B.lines + [f"s_memtime {s(88,2)}", f"s_memrealtime {s(92,2)}", "s_waitcnt lgkmcnt(0)", f"s_mov_b32 {s(86)}, {s(88)}", f"s_mov_b32 {s(87)}, {s(92)}"] +
                     [f"s_mov_b32 {s(S_TS+k)}, 0" for k in range(16)] + [f"s_branch {rb}"])
    if STAMP == 2:
        A(f"s_memrealtime {s(88,2)}"); A("s_waitcnt lgkmcnt(0)")
        A(f"s_cmp_eq_u32 {s(S_STEP)}, {TSTEP}"); A(f"s_cselect_b32 {s(S_TS+7)}, {s(88)}, {s(S_TS+7)}")
    if isV: v_stage(A, E, cls, flags)
    else: s_stage(A, E, cls, flags)
    tick(A, 0)
    A(f"s_cmp_eq_u32 {s(S_STEP)}, {NSTEP-1}")
    A(f"s_cbranch_scc1 {fin}")
    if not isV and cls == 0: s_tail(A, E)
    tick(A, 1)
    reduce_stage(A, E, isV, cls, flags)
    tick(A, 2)
    if VAR == 2: gatherA(A, E, isV, cls, galab, flags)
    else: g1_bottom(A, E, isV, cls, flags)
    A(f"s_branch {top}")
    flush_stubs(A)
    A.label(fin)
    E.reset()
    if STAMP == 3:
        A(f"s_memtime {s(88,2)}"); A(f"s_memrealtime {s(92,2)}"); A("s_waitcnt lgkmcnt(0)")
        A(f"s_sub_u32 {s(S_TS)}, {s(88)}, {s(86)}"); A(f"s_sub_u32 {s(S_TS+1)}, {s(92)}, {s(87)}")
    if isV:
        A(f"s_add_u32 {s(S_T2)}, {s(S_EXP)}, {4*8192}")
        A(f"buffer_store_dwordx4 {v(XS,4)}, {v(V_ZS4)}, {s(S_WS,4)}, {s(S_EXP)} offen sc0 sc1")
        A(f"buffer_store_dwordx4 {v(XS+4,4)}, {v(V_ZS4)}, {s(S_WS,4)}, {s(S_T2)} offen sc0 sc1")
        A(f"buffer_store_dwordx2 {v(XS+8,2)}, {v(V_ZS2)}, {s(S_WS,4)}, {s(S_EXP)} offen sc0 sc1")
    elif cls != 0:
        km_export(A, E, XS)
    A("s_waitcnt vmcnt(0)")
    A("s_barrier")
    if flags and cls == 0:
        A(f"v_mov_b32 v56, 1"); A(f"v_mov_b32 v57, {NSEG}")
        A(f"s_add_u32 {s(S_T)}, {s(S_FLO)}, {FL_KM}")
        A("s_mov_b64 exec, 1")
        if not isV: A(f"buffer_store_dword v57, {v(V_ZERO)}, {s(S_WS,4)}, {s(S_T)} offen sc0 sc1")
        A(f"buffer_atomic_add v56, {v(V_ZERO)}, {s(S_WS,4)}, {s(S_ARR)} offen offset:128 sc1")
        A(f"buffer_atomic_add v56, {v(V_ZERO)}, {s(S_WS,4)}, {s(S_ARR)} offen offset:256 sc1")
        A("s_mov_b64 exec, -1")
    if STAMP:
        A(f"s_lshl_b32 {s(S_T)}, {s(S_GRP)}, 5")
        A(f"s_add_u32 {s(S_T)}, {s(S_T)}, {s(S_C)}")
        A(f"s_lshl_b32 {s(S_T)}, {s(S_T)}, 2")
        A(f"s_add_u32 {s(S_T)}, {s(S_T)}, {s(S_WAVE)}")
        A(f"s_lshl_b32 {s(S_T)}, {s(S_T)}, 6")
        A(f"s_add_u32 {s(S_T)}, {s(S_T)}, {WS_SCR + 1048576}")
        for k in range(16):
            A(f"v_mov_b32 v21, {s(S_TS+k) if k != 14 else s(S_FAST)}")
            A(f"buffer_store_dword v21, {v(V_ZERO)}, {s(S_WS,4)}, {s(S_T)} offen offset:{4*k}")
        A("s_waitcnt vmcnt(0)")

def role_chain(A, isV, end_label, flags=False):
    global CUR_ORD
    CUR_ORD = ORD_V if isV else ORD_S
    A.c("================ role chain %s ================" % ("V" if isV else "S"))
    A(f"s_load_dwordx2 {s(S_W1,2)}, s[0:1], {KA['Wv' if isV else 'Wq']}")
    A(f"s_load_dwordx2 {s(S_W2,2)}, s[0:1], {KA['Wo' if isV else 'Wk']}")
    A(f"s_load_dwordx2 {s(S_X,2)}, s[0:1], {KA['mem0']}")
    A(f"s_and_b32 {s(S_HEAD)}, {s(S_C)}, 15")
    A(f"s_lshl_b32 {s(S_T)}, {s(S_GRP)}, 4")
    A(f"s_add_u32 {s(S_HEAD)}, {s(S_HEAD)}, {s(S_T)}")
    A(f"s_getreg_b32 {s(S_FAST)}, hwreg(HW_REG_XCC_ID, 0, 4)")
    A(f"s_lshl_b32 {s(S_T)}, {s(S_GRP)}, 5")
    A(f"s_add_u32 {s(S_T)}, {s(S_T)}, {s(S_C)}")
    A(f"s_lshl_b32 {s(S_T)}, {s(S_T)}, 2")
    A(f"s_add_u32 {s(S_T2)}, {s(S_T)}, {MB_X}")
    if not flags: publish(A, S_FAST, S_T2)
    A("s_waitcnt lgkmcnt(0)")
    srd_finish(A, S_W1, W_BYTES); srd_finish(A, S_W2, W_BYTES); srd_finish(A, S_X, 10240)
    A(f"s_mul_i32 s66, {s(S_HEAD)}, 384")
    A("s_waitcnt vmcnt(0)")
    def hook(c1, c2):
        def f(c):
            if not flags: return
            if c == c1: init_load(A, 124, 125)
            if c == c2:
                init_wait(A, 124, 125)
                publish(A, S_FAST, S_T2, vt=126)
        return f
    if not isV:
        load_w_rows384(A, [S_W1, S_W2], 66, lambda c, kk, t, half: wdest(((c//10)*3+t)*10 + c%10, 2*kk+half), rowmap="sparse", vt=116, after_read=hook(8, 14))
    else:
        load_w_rows384(A, [S_W1], 66, lambda c, kk, t, half: wdest(t*10 + c, 2*kk+half), rowmap="sparse", vt=116, after_read=hook(8, -1))
        A(f"s_mul_i32 s66, {s(S_HEAD)}, 245760")
        load_wo(A, S_W2, 66, lambda c, t, half: wdest(30 + 3*t + c//2, 2*(c&1)+half), sparse=True, vt=116, after_read=hook(-1, 1))
    A(f"s_mul_i32 {s(S_T)}, {s(S_WAVE)}, 24576")
    A(f"v_lshl_add_u32 {v(V_WL)}, {v(V_LANE)}, 4, {s(S_T)}")
    for j in range(12):
        A(f"ds_write_b128 {v(V_WL)}, {v(AF+8*j,4)} offset:{j*2048}")
        A(f"ds_write_b128 {v(V_WL)}, {v(AF+8*j+4,4)} offset:{j*2048+1024}")
    A("s_waitcnt lgkmcnt(0)")
    tstamp(A, 2)
    setup_common(A, isV)
    A(f"v_and_b32 v20, 31, {v(V_LANE)}")
    A(f"v_lshlrev_b32 v20, 2, v20")
    A(f"s_lshl_b32 {s(S_T)}, {s(S_GRP)}, 7")
    A(f"s_add_u32 {s(S_T)}, {s(S_T)}, {MB_X}")
    lab = A.newlabel("XH")
    loop_top(A, lab)
    A(f"buffer_load_dword v21, v20, {s(S_WS,4)}, {s(S_T)} offen sc1")
    A("s_waitcnt vmcnt(0)")
    A("v_cmp_eq_u32 vcc, -1, v21")
    retry(A, lab)
    jx = A.newlabel("XJ"); A(f"s_branch {jx}"); flush_stubs(A); A.label(jx)
    A(f"v_cmp_ne_u32 vcc, {s(S_FAST)}, v21")
    A("s_cmp_eq_u64 vcc, 0")
    A(f"s_cselect_b32 {s(S_FAST)}, 1, 0")
    if TS3 == 1: tstamp(A, 3)
    A(f"v_bfe_u32 v20, {v(V_LANE)}, 1, 3")
    A(f"v_mul_u32_u24 v20, 1280, v20")
    A(f"v_lshrrev_b32 v21, 4, {v(V_LANE)}")
    A(f"v_lshl_add_u32 v20, v21, 5, v20")
    A(f"v_and_b32 v21, 1, {v(V_LANE)}")
    A(f"v_lshl_add_u32 v20, v21, 4, v20")
    A(f"s_lshl_b32 {s(S_T)}, {s(S_WAVE)}, 7")
    A(f"s_lshl_b32 {s(S_T2)}, {s(S_WAVE)}, 10")
    for j in range(3):
        sk = A.newlabel("m0s")
        if j == 2:
            A(f"s_cmp_ge_u32 {s(S_WAVE)}, 2"); A(f"s_cbranch_scc1 {sk}")
        A(f"s_add_u32 m0, {s(S_T2)}, {L_MEM + j*4096 - j*512}")
        A("s_nop 0")
        A(f"buffer_load_dwordx4 v20, {s(S_X,4)}, {s(S_T)} offen offset:{j*512} lds")
        if j == 2: A.label(sk)
    if not isV:
        sk = A.newlabel("k0s")
        A(f"s_cmp_eq_u32 {s(S_WAVE)}, 0"); A(f"s_cbranch_scc1 {sk}")
        if K2W:
            A(f"s_cmp_eq_u32 {s(S_WAVE)}, 3"); A(f"s_cselect_b32 {s(S_KN)}, 3, {s(S_KN)}"); A(f"s_cbranch_scc1 {sk}")
        if flags: k_check(A)
        k_dma(A)
        if flags and PL_K != 'B': k_check(A)
        if VAR == 1 and PL_K not in 'SB':
            A(f"s_xor_b32 {s(S_MK)}, {s(S_MK)}, {S_LK ^ (S_LK + 16384)}")
            k_dma(A)
            if flags: k_check(A)
        A.label(sk)
    if TS3 == 2: A("s_barrier"); tstamp(A, 3)
    for zs, ps in ((S_Z, S_P), (S_ZN, S_PN), (S_ZP, S_PP)):
        A(f"s_add_u32 {s(S_T)}, {s(zs)}, {s(S_ZL)}")
        A(f"buffer_load_dwordx4 v[24:27], {v(V_L16)}, {s(S_WS,4)}, {s(S_T)} offen sc1")
        if isV:
            A(f"s_add_u32 {s(S_T)}, {s(zs)}, {s(S_ZL2)}")
            A(f"buffer_load_dwordx4 v[24:27], {v(V_ZH)}, {s(S_WS,4)}, {s(S_T)} offen sc1")
        A(f"s_add_u32 {s(S_T)}, {s(ps)}, {s(S_PLX)}")
        A(f"buffer_load_dwordx4 v[24:27], {v(V_L16)}, {s(S_WS,4)}, {s(S_T)} offen sc1")
        A(f"buffer_load_dwordx4 v[24:27], {v(V_L16)}, {s(S_WS,4)}, {s(S_T)} offen offset:1024 sc1")
        A(f"s_add_u32 {s(S_T)}, {s(ps)}, {s(S_PLM)}")
        A(f"buffer_load_dwordx4 v[24:27], {v(V_PLD)}, {s(S_WS,4)}, {s(S_T)} offen sc1")
    for ls in (S_L, S_LN):
        for o in (0, 4096, 6144):
            A(f"s_add_u32 {s(S_T)}, {s(ls)}, {o}")
            A(f"buffer_load_dwordx4 v[24:27], {v(V_T7)}, {s(S_WS,4)}, {s(S_T)} offen sc1")
    if TS3 == 3: A("s_waitcnt vmcnt(0)"); tstamp(A, 3)
    if flags: u_check(A, 0)
    if TS3 == 4: tstamp(A, 3)
    if flags and PL_M != 'W': u_check(A, 1)
    A("s_waitcnt vmcnt(0)")
    jx = A.newlabel("XJ"); A(f"s_branch {jx}"); flush_stubs(A); A.label(jx)
    A("s_barrier")
    classes = [0, 12, 3]
    labs = {c: A.newlabel("CLS") for c in classes}
    A(f"s_cmp_eq_u32 {s(S_WAVE)}, 0")
    A(f"s_cbranch_scc1 {labs[0]}")
    A(f"s_cmp_eq_u32 {s(S_WAVE)}, 3")
    A(f"s_cbranch_scc1 {labs[3]}")
    for c in [12, 3, 0]:
        A.label(labs[c])
        chain_loop(A, isV, c, flags)
        A(f"s_branch {end_label}")
```

```python
from common import *
import role_kv as kv
from role_kv import XF, ACC, PK, V_ST0, V_ST1, S_SEG, S_XOFF, S_M0X, S_T, wreg
from role_chain import f32bits
import math
L_Q = 81920; L_KM = L_Q + 12288
KF = 100
QF = 148
MF = 172
SC = 196
MK = 208
V_TRA = 212; V_TRB = 213; V_L16 = 214; V_QW0 = 215; V_QW1 = 216; V_QW2 = 217; V_QR = 218; V_PM = 219; V_FL = 220; V_Z = 221; V_FA = 222
T0 = 224
S_KS = 30; S_KMS = 31; S_PD = 32; S_PDM = 33; S_C = 34; S_NEED = 35; S_CNT = 36; S_FLO = 37; S_FKM = 38; S_FK = 39; S_MB = 50

def xlane(A, op, r, t, which):
    A(f"v_mov_b32 {v(t)}, {v(r)}"); A("s_nop 1"); A(f"v_permlane{which}_swap_b32 {v(r)}, {v(t)}"); A(f"{op} {v(r)}, {v(r)}, {v(t)}")

def attention(A, qt):
    for ks in range(6):
        A(f"ds_read_b128 {v(QF+4*ks,4)}, {v(V_QR)} offset:{ks*1024}")
    for ks in range(6):
        if ks < 4: vb, o0, o1 = V_TRA, 48*ks*16, (48*ks+16)*16
        else: vb, o0, o1 = V_TRB, (96*(ks-4)+32)*16, (96*(ks-4)+36)*16
        if ks == 4: A("s_waitcnt lgkmcnt(8)")
        A(f"ds_read_b64_tr_b16 {v(MF+4*ks,2)}, {v(vb)} offset:{o0}")
        A(f"ds_read_b64_tr_b16 {v(MF+4*ks+2,2)}, {v(vb)} offset:{o1}")
    nt = 1 + qt
    for ks in range(6):
        for t in range(nt):
            c = (v(MK,4) if t == qt else "0") if ks == 0 else v(SC+4+4*t,4)
            A(f"v_mfma_f32_16x16x32_bf16 {v(SC+4+4*t,4)}, {v(KF+(t*6+ks)*4,4)}, {v(QF+4*ks,4)}, {c}")
    A("s_waitcnt lgkmcnt(0)")
    for ks in range(6):
        A(f"v_mfma_f32_16x16x32_bf16 {v(SC,4)}, {v(MF+4*ks,4)}, {v(QF+4*ks,4)}, {'0' if ks==0 else v(SC,4)}")
    n = 4 + 4*nt
    m, t0, sm = T0, T0+1, T0+2
    A(f"v_max3_f32 {v(m)}, {v(SC+4)}, {v(SC+5)}, {v(SC+6)}")
    if nt == 2:
        A(f"v_max3_f32 {v(m)}, {v(m)}, {v(SC+8)}, {v(SC+9)}")
        A(f"v_max3_f32 {v(m)}, {v(m)}, {v(SC+10)}, {v(SC+11)}")
    A("s_nop 6")
    A(f"v_max3_f32 {v(m)}, {v(m)}, {v(SC+7)}, {v(SC)}")
    A(f"v_max3_f32 {v(t0)}, {v(SC+1)}, {v(SC+2)}, {v(SC+3)}")
    A(f"v_max_f32 {v(m)}, {v(m)}, {v(t0)}")
    xlane(A, "v_max_f32", m, t0, 16); xlane(A, "v_max_f32", m, t0, 32)
    A(f"v_mul_f32 {v(m)}, {s(S_C)}, {v(m)}")
    for i in range(n): A(f"v_fma_f32 {v(SC+i)}, {v(SC+i)}, {s(S_C)}, -{v(m)}")
    for i in range(n): A(f"v_exp_f32 {v(SC+i)}, {v(SC+i)}")
    A(f"v_add_f32 {v(sm)}, {v(SC)}, {v(SC+1)}")
    A(f"v_add_f32 {v(t0)}, {v(SC+2)}, {v(SC+3)}")
    A(f"v_add_f32 {v(sm)}, {v(sm)}, {v(t0)}")
    A(f"v_mul_f32 {v(sm)}, 0.5, {v(sm)}")
    for i in range(4, n): A(f"v_add_f32 {v(sm)}, {v(sm)}, {v(SC+i)}")
    xlane(A, "v_add_f32", sm, t0, 16); xlane(A, "v_add_f32", sm, t0, 32)
    A(f"v_rcp_f32 {v(sm)}, {v(sm)}")
    A("s_nop 0")
    for i in range(n): A(f"v_mul_f32 {v(SC+i)}, {v(SC+i)}, {v(sm)}")
    o = T0+4
    for i in range(2): A(f"v_cvt_pk_bf16_f32 {v(o+4+i)}, {v(SC+2*i)}, {v(SC+2*i+1)}")
    for i in range(2*nt): A(f"v_cvt_pk_bf16_f32 {v(o+i)}, {v(SC+4+2*i)}, {v(SC+5+2*i)}")
    if nt == 1: A(f"v_mov_b64 {v(o+2,2)}, 0")
    A(f"buffer_store_dwordx4 {v(o,4)}, {v(V_L16)}, {s(S_WS,4)}, {s(S_PD)} offen sc0 sc1")
    A(f"s_mov_b64 exec, {s(S_MB,2)}")
    A(f"buffer_store_dwordx2 {v(o+4,2)}, {v(V_PM)}, {s(S_WS,4)}, {s(S_PDM)} offen sc0 sc1")
    A("s_mov_b64 exec, -1")

def role_q(A, flags=False):
    A.c("================ role Q ================")
    A(f"s_load_dwordx2 {s(S_W1,2)}, s[0:1], {KA['Wq']}")
    A(f"s_load_dwordx2 {s(S_X,2)}, s[0:1], {KA['A_x']}")
    A(f"s_mul_i32 s30, {s(S_HEAD)}, 384")
    A("s_waitcnt lgkmcnt(0)")
    srd_finish(A, S_W1, W_BYTES); srd_finish(A, S_X, X_BYTES)
    if flags:
        wait_k_started(A, S_HEAD)
    kv.load_w_rows384(A, S_W1, 30, lambda c, kk, t, half: a(wreg(t, 2*c+kk)+2*half, 2))
    kv.setup_x_stream(A)
    kv.setup_kv_store(A)
    kv.setup_pf(A)
    A(f"v_add_u32 {v(V_QW0)}, {L_Q}, {v(V_ST0)}")
    A(f"v_add_u32 {v(V_QW2)}, {L_Q}, {v(V_ST1)}")
    A(f"v_lshlrev_b32 {v(V_L16)}, 4, {v(V_LANE)}")
    A(f"s_and_b32 {s(S_T)}, {s(S_WAVE)}, 1")
    A(f"s_mul_i32 {s(S_PD)}, {s(S_T)}, 40960")
    A(f"s_mul_i32 {s(S_T)}, {s(S_T)}, 6144")
    A(f"s_add_u32 {s(S_T)}, {s(S_T)}, {L_Q}")
    A(f"v_add_u32 {v(V_QR)}, {s(S_T)}, {v(V_L16)}")
    n_, g_, r_, c_, t_ = T0, T0+1, T0+2, T0+3, T0+4
    A(f"v_and_b32 {v(n_)}, 15, {v(V_LANE)}")
    A(f"v_lshrrev_b32 {v(g_)}, 4, {v(V_LANE)}")
    A(f"v_bfe_u32 {v(r_)}, {v(V_LANE)}, 2, 2")
    A(f"v_and_b32 {v(c_)}, 1, {v(V_LANE)}")
    A(f"v_lshlrev_b32 {v(c_)}, 3, {v(c_)}")
    A(f"v_add_u32 {v(c_)}, {L_KM}, {v(c_)}")
    A(f"v_lshl_add_u32 {v(V_TRA)}, {v(g_)}, 2, {v(r_)}")
    A(f"v_lshl_add_u32 {v(V_TRA)}, {v(V_TRA)}, 4, {v(c_)}")
    A(f"v_lshrrev_b32 {v(t_)}, 1, {v(g_)}")
    A(f"v_mul_u32_u24 {v(t_)}, 48, {v(t_)}")
    A(f"v_and_b32 {v(V_TRB)}, 1, {v(g_)}")
    A(f"v_lshl_add_u32 {v(V_TRB)}, {v(V_TRB)}, 3, {v(t_)}")
    A(f"v_add_u32 {v(V_TRB)}, {v(V_TRB)}, {v(r_)}")
    A(f"v_lshl_add_u32 {v(V_TRB)}, {v(V_TRB)}, 4, {v(c_)}")
    A(f"v_lshlrev_b32 {v(V_PM)}, 4, {v(n_)}")
    A(f"v_lshl_add_u32 {v(V_PM)}, {v(g_)}, 3, {v(V_PM)}")
    A(f"v_lshlrev_b32 {v(t_)}, 2, {v(g_)}")
    A(f"v_mov_b32 {v(c_)}, {f32bits(-1e30)}")
    for r in range(4):
        A(f"v_add_u32 {v(r_)}, {r}, {v(t_)}")
        A(f"v_cmp_gt_u32 vcc, {v(r_)}, {v(n_)}")
        A("s_nop 1")
        A(f"v_cndmask_b32 {v(MK+r)}, 0, {v(c_)}, vcc")
    A(f"s_mov_b32 {s(S_MB)}, -1"); A(f"s_mov_b32 {s(S_MB+1)}, 0")
    A(f"v_mov_b32 {v(V_Z)}, 0"); A(f"v_mov_b32 {v(V_FL)}, 0"); A(f"v_mov_b32 {v(V_FA)}, 0")
    A(f"s_mov_b32 {s(S_C)}, {f32bits(192**-0.5*math.log2(math.e))}")
    A(f"s_mul_i32 {s(S_KS)}, {s(S_HEAD)}, 12288")
    A(f"s_add_u32 {s(S_KS)}, {s(S_KS)}, {WS_K}")
    A(f"s_mul_i32 {s(S_KMS)}, {s(S_HEAD)}, 3072")
    A(f"s_add_u32 {s(S_KMS)}, {s(S_KMS)}, {WS_KM}")
    A(f"s_add_u32 {s(S_PD)}, {s(S_PD)}, {WS_P}")
    A(f"s_lshl_b32 {s(S_T)}, {s(S_HEAD)}, 8")
    A(f"s_add_u32 {s(S_PDM)}, {s(S_PD)}, {s(S_T)}")
    A(f"s_add_u32 {s(S_PDM)}, {s(S_PDM)}, {32*1024}")
    A(f"s_lshl_b32 {s(S_T)}, {s(S_HEAD)}, 10")
    A(f"s_add_u32 {s(S_PD)}, {s(S_PD)}, {s(S_T)}")
    A(f"s_lshl_b32 {s(S_T)}, {s(S_HEAD)}, 7")
    A(f"s_mov_b32 {s(S_FLO)}, {CN_Q}")
    A(f"s_add_u32 {s(S_FKM)}, {s(S_T)}, {FL_KM}")
    A(f"s_add_u32 {s(S_FK)}, {s(S_T)}, {FL_K}")
    A(f"s_mov_b32 {s(S_XOFF)}, 0")
    A(f"s_mov_b32 {s(S_SEG)}, 0")
    kv.issue_x(A, 0)
    kv.first_pf(A)
    loop = A.newlabel("Q_loop")
    A.label(loop)
    for par in range(2):
        A("s_waitcnt vmcnt(0)")
        A("s_barrier")
        for k in range(2): kv.xread(A, par, k)
        if flags:
            l2 = A.newlabel("Q_s0")
            if par == 0: A(f"s_cmp_eq_u32 {s(S_SEG)}, 0"); A(f"s_cbranch_scc1 {l2}")
            arrive_last(A, S_FLO, RD_Q-CN_Q, 32, vt=T0)
            A(f"s_add_u32 {s(S_FLO)}, {s(S_FLO)}, 128")
            A.label(l2)
        A(f"s_add_u32 {s(S_NEED)}, {s(S_SEG)}, 1")
        sk = A.newlabel("Q_nok")
        A(f"s_cmp_ge_u32 {s(S_WAVE)}, 2"); A(f"s_cbranch_scc1 {sk}")
        if flags: flag_wait(A, V_FA, V_Z, S_FK, S_NEED, S_T, S_CNT)
        for f in range(12):
            if f % 4 == 0: A(f"s_add_u32 {s(S_T)}, {s(S_KS)}, {f*1024}")
            A(f"buffer_load_dwordx4 {v(KF+4*f,4)}, {v(V_L16)}, {s(S_WS,4)}, {s(S_T)} offen offset:{(f%4)*1024} sc1")
        A.label(sk)
        A(f"s_add_u32 {s(S_XOFF)}, {s(S_XOFF)}, {32*1280}")
        kv.gemm_seg(A, par, dma=1-par, accset=0)
        sk = A.newlabel("Q_nom")
        A(f"s_cmp_lg_u32 {s(S_WAVE)}, 3"); A(f"s_cbranch_scc1 {sk}")
        if flags: flag_wait(A, V_FL, V_Z, S_FKM, S_NEED, S_T, S_CNT)
        A(f"s_mov_b32 m0, {L_KM}")
        A("s_nop 0")
        for j in range(3):
            A(f"buffer_load_dwordx4 {v(V_L16)}, {s(S_WS,4)}, {s(S_KMS)} offen offset:{j*1024} sc1 lds")
        A.label(sk)
        A("s_nop 7")
        for ins in kv.kv_epilogue(0, S_WS, ""):
            if ins.startswith("buffer_store"):
                d = ins.split()[1].rstrip(",")
                ins = {v(PK,4): f"ds_write_b128 {v(V_QW0)}, {d}", v(PK+4,4): f"ds_write_b128 {v(V_QW0)}, {d} offset:6144", v(PK+8,4): f"ds_write_b128 {v(V_QW2)}, {d}"}[d]
            A(ins)
        sk = A.newlabel("Q_w3");
        A(f"s_cmp_lg_u32 {s(S_WAVE)}, 3"); A(f"s_cbranch_scc1 {sk}")
        A("s_waitcnt vmcnt(0)")
        A.label(sk)
        A("s_waitcnt vmcnt(11) lgkmcnt(0)")
        A("s_barrier")
        l0 = A.newlabel("Q_a0"); l1 = A.newlabel("Q_done")
        A(f"s_cmp_ge_u32 {s(S_WAVE)}, 2"); A(f"s_cbranch_scc1 {l1}")
        A(f"s_cmp_eq_u32 {s(S_WAVE)}, 0"); A(f"s_cbranch_scc1 {l0}")
        attention(A, 1)
        A(f"s_branch {l1}")
        A.label(l0)
        attention(A, 0)
        A.label(l1)
        A(f"s_add_u32 {s(S_KS)}, {s(S_KS)}, {NH*12288}")
        A(f"s_add_u32 {s(S_KMS)}, {s(S_KMS)}, {NH*3072}")
        A(f"s_add_u32 {s(S_PD)}, {s(S_PD)}, 81920")
        A(f"s_add_u32 {s(S_PDM)}, {s(S_PDM)}, 81920")
        A(f"s_add_u32 {s(S_SEG)}, {s(S_SEG)}, 1")
    A(f"s_cmp_lt_u32 {s(S_SEG)}, {NSEG}")
    A(f"s_cbranch_scc1 {loop}")
    A("s_waitcnt vmcnt(0)")
    if flags:
        A("s_barrier")
        arrive_last(A, S_FLO, RD_Q-CN_Q, 32, vt=T0)
```

```python
from common import *
import common
STAMP=False
EARLY=3
ULATE=0

def load_wo(A, srd, s_base, dest_of, sparse=False, vt=200, st=40, after_read=None):
    NS = 4; CH = 40960
    vo = vt; vbA = vt+1; vbB = vt+2; t0 = vt+5; t1 = vt+6; t2 = vt+7; vb2 = vt+3; vb3 = vt+4
    sOff = st; sT = st+1; sM = st+2; sOff2 = st+3
    A(f"v_lshlrev_b32 {v(vo)}, 4, {v(V_LANE)}")
    A(f"s_mul_i32 {s(sM)}, {s(S_WAVE)}, 10240")
    A(f"s_add_u32 {s(sOff)}, {s(s_base)}, {s(sM)}")
    A(f"s_lshr_b32 {s(sT)}, {s(S_WAVE)}, 1")
    A(f"s_mul_i32 {s(sT)}, {s(sT)}, {32*1280}")
    A(f"s_add_u32 {s(sOff2)}, {s(sOff)}, {s(sT)}")
    A(f"v_lshrrev_b32 {v(t0)}, 4, {v(V_LANE)}")
    A(f"v_bfe_u32 {v(t1)}, {v(V_LANE)}, 2, 2")
    A(f"v_and_b32 {v(t2)}, 3, {v(V_LANE)}")
    A(f"v_lshlrev_b32 {v(t2)}, 3, {v(t2)}")
    A(f"s_mul_i32 {s(sT)}, {s(S_WAVE)}, 320")
    A(f"v_add_u32 {v(t2)}, {s(sT)}, {v(t2)}")
    if not sparse:
        A(f"v_lshl_add_u32 {v(vbA)}, {v(t0)}, 2, {v(t1)}")
        A(f"v_lshl_add_u32 {v(vbB)}, {v(t0)}, 3, {v(t1)}")
        A(f"v_mul_u32_u24 {v(vbA)}, 1280, {v(vbA)}")
        A(f"v_mul_u32_u24 {v(vbB)}, 1280, {v(vbB)}")
        A(f"v_add_u32 {v(vbA)}, {v(vbA)}, {v(t2)}")
        A(f"v_add_u32 {v(vbB)}, {v(vbB)}, {v(t2)}")
    else:
        A(f"v_lshrrev_b32 {v(vbA)}, 1, {v(t0)}")
        A(f"v_and_b32 {v(t0)}, 1, {v(t0)}")
        A(f"v_lshlrev_b32 {v(t0)}, 2, {v(t0)}")
        A(f"v_lshl_add_u32 {v(t0)}, {v(vbA)}, 4, {v(t0)}")
        A(f"v_lshrrev_b32 {v(vbA)}, 1, {v(t1)}")
        A(f"v_lshl_add_u32 {v(t0)}, {v(vbA)}, 3, {v(t0)}")
        A(f"v_and_b32 {v(t1)}, 1, {v(t1)}")
        A(f"v_add_u32 {v(t0)}, {v(t0)}, {v(t1)}")
        A(f"v_mul_u32_u24 {v(vbA)}, 1280, {v(t0)}")
        A(f"v_add_u32 {v(vbA)}, {v(vbA)}, {v(t2)}")
        A(f"v_mov_b32 {v(vbB)}, {v(vbA)}")
    def issue(c):
        slot = c % NS
        if c < 4: src, so = 48*c*1280, sOff
        else: src, so = (96*(c-4)+32)*1280, sOff2
        A(f"s_add_u32 {s(sT)}, {s(so)}, {src}")
        for j in range(10):
            if j % 4 == 0:
                A(f"s_add_u32 m0, {s(sM)}, {slot*CH + j*1024}")
                if j: A(f"s_add_u32 {s(sT)}, {s(sT)}, 4096")
                else: A("s_nop 0")
            A(f"buffer_load_dwordx4 {v(vo)}, {s(srd,4)}, {s(sT)} offen offset:{(j%4)*1024} {common.WFL} lds")
    for c in range(NS-1): issue(c)
    for c in range(6):
        later = min(5, c+NS-2) - c
        A(f"s_waitcnt vmcnt({10*later})")
        A("s_barrier")
        if c+NS-1 < 6: issue(c+NS-1)
        slot = c % NS
        vb = vbA if (c < 4) else vbB
        A(f"v_add_u32 {v(vb2)}, {slot*CH}, {v(vb)}")
        for t in range(10):
            for half in range(2):
                if sparse: off = half*2*1280
                else: off = half*(16*1280 if c < 4 else 4*1280)
                A(f"ds_read_b64_tr_b16 {dest_of(c,t,half)}, {v(vb2)} offset:{off + t*32}")
            if t == 6: A("s_waitcnt lgkmcnt(0)")
        A("s_waitcnt lgkmcnt(0)")
        if after_read: after_read(c)
    A("s_barrier")

VF = 8
ACC = 56
PK = 72
V_SRC = 2; V_RD = 3; V_ST = 4; V_FL = 5; V_Z = 6
S_SEG = 22; S_SRC = 23; S_DST = 24; S_M0 = 25; S_T = 26; S_FLAG = 27; S_FIN = 28; S_NEED = 29; S_CNT = 30; S_D2 = 31

def wreg(t, ks): return (t*6+ks)*4

def v_dma(A, buf):
    A(f"s_add_u32 m0, {s(S_M0)}, {buf*12288}")
    A("s_nop 0")
    for j in range(3):
        A(f"buffer_load_dwordx4 {v(V_SRC)}, {s(S_WS,4)}, {s(S_SRC)} offen offset:{j*1024} sc1 lds")

def epi(T, st):
    ac = ACC + st*8; pk = PK + st*4
    L = [f"v_cvt_pk_bf16_f32 {v(pk)}, {v(ac)}, {v(ac+1)}", f"v_cvt_pk_bf16_f32 {v(pk+1)}, {v(ac+2)}, {v(ac+3)}",
         f"v_cvt_pk_bf16_f32 {v(pk+2)}, {v(ac+4)}, {v(ac+5)}", f"v_cvt_pk_bf16_f32 {v(pk+3)}, {v(ac+6)}, {v(ac+7)}",
         f"s_add_u32 {s(S_D2)}, {s(S_DST)}, {T*1024}",
         f"buffer_store_dwordx4 {v(pk,4)}, {v(V_ST)}, {s(S_WS,4)}, {s(S_D2)} offen sc0 sc1"]
    return L

def role_u(A, flags=False):
    A.c("================ role U ================")
    A(f"s_load_dwordx2 {s(S_W1,2)}, s[0:1], {KA['Wo']}")
    A(f"s_mul_i32 s32, {s(S_HEAD)}, 245760")
    A("s_waitcnt lgkmcnt(0)")
    srd_finish(A, S_W1, W_BYTES)
    if STAMP: stamp(A,0)
    if flags and ULATE: init_sync(A)
    load_wo(A, S_W1, 32, lambda c, t, half: a(wreg(t, c)+2*half, 2))
    if ULATE: tstamp(A, 2)
    if STAMP: stamp(A,1)
    if flags and not ULATE: init_sync(A)
    A(f"s_mul_i32 {s(S_M0)}, {s(S_WAVE)}, 3072")
    A(f"v_lshlrev_b32 {v(V_RD)}, 4, {v(V_LANE)}")
    A(f"v_add_u32 {v(V_SRC)}, {s(S_M0)}, {v(V_RD)}")
    A(f"s_mul_i32 {s(S_T)}, {s(S_WAVE)}, {10*1024}")
    A(f"v_add_u32 {v(V_ST)}, {s(S_T)}, {v(V_RD)}")
    A(f"v_mov_b32 {v(V_Z)}, 0")
    A(f"s_mul_i32 {s(S_SRC)}, {s(S_HEAD)}, 12288")
    A(f"s_add_u32 {s(S_SRC)}, {s(S_SRC)}, {WS_V}")
    A(f"s_mul_i32 {s(S_DST)}, {s(S_HEAD)}, 40960")
    A(f"s_add_u32 {s(S_DST)}, {s(S_DST)}, {WS_U - 40*32768}")
    A(f"s_mov_b32 {s(S_SEG)}, 0")
    if flags:
        A(f"v_mov_b32 {v(V_FL)}, 0")
        A(f"s_mov_b32 {s(S_NEED)}, 1")
        flag_wait(A, V_FL, V_Z, S_FIN, S_NEED, S_T, S_CNT)
    v_dma(A, 0)
    loop = A.newlabel("U_loop")
    A("s_waitcnt vmcnt(0)")
    A.label(loop)
    for par in range(2):
        A("s_waitcnt vmcnt(9)")
        A("s_barrier")
        for ks in range(6):
            for tau in range(2):
                A(f"ds_read_b128 {v(VF+(ks*2+tau)*4,4)}, {v(V_RD)} offset:{par*12288 + (tau*6+ks)*1024}")
        skip = A.newlabel("U_skip")
        if par == 0:
            A(f"s_cmp_eq_u32 {s(S_SEG)}, 0")
            A(f"s_cbranch_scc1 {skip}")
        if flags:
            l2 = A.newlabel("U_s2")
            A(f"s_cmp_lt_u32 {s(S_SEG)}, {2+EARLY}"); A(f"s_cbranch_scc1 {l2}")
            arrive(A, S_FLAG)
            A(f"s_add_u32 {s(S_FLAG)}, {s(S_FLAG)}, 128")
            A.label(l2)
        for ins in epi(9, 1): A(ins)
        A.label(skip)
        A(f"s_add_u32 {s(S_DST)}, {s(S_DST)}, {40*32768}")
        A(f"s_add_u32 {s(S_SRC)}, {s(S_SRC)}, {NH*12288}")
        if flags:
            A(f"s_add_u32 {s(S_NEED)}, {s(S_SEG)}, 2")
            A(f"s_min_u32 {s(S_NEED)}, {s(S_NEED)}, {NSEG}")
            flag_wait(A, V_FL, V_Z, S_FIN, S_NEED, S_T, S_CNT)
            flag_load(A, V_FL, V_Z, S_FIN)
        v_dma(A, 1-par)
        for T in range(10):
            st = T & 1
            fill = epi(T-1, 1-st) if T > 0 else []
            n = 0
            for ks in range(6):
                if T == 0:
                    A(f"s_waitcnt lgkmcnt({10-2*ks})")
                for tau in range(2):
                    acc = ACC + st*8 + tau*4
                    c = "0" if ks == 0 else v(acc,4)
                    A(f"v_mfma_f32_16x16x32_bf16 {v(acc,4)}, {v(VF+(ks*2+tau)*4,4)}, {a(wreg(T,ks),4)}, {c}")
                    n += 1
                    if n >= 4 and fill: A(fill.pop(0))
        A(f"s_add_u32 {s(S_SEG)}, {s(S_SEG)}, 1")
        if flags:
            l2 = A.newlabel("U_ne")
            A(f"s_cmp_gt_u32 {s(S_SEG)}, {EARLY}"); A(f"s_cbranch_scc1 {l2}")
            A("s_nop 5")
            for ins in epi(9, 1): A(ins)
            A("s_waitcnt vmcnt(0)"); A("s_barrier")
            arrive(A, S_FLAG)
            A(f"s_add_u32 {s(S_FLAG)}, {s(S_FLAG)}, 128")
            A.label(l2)
    A(f"s_cmp_lt_u32 {s(S_SEG)}, {NSEG}")
    A(f"s_cbranch_scc1 {loop}")
    A("s_nop 7")
    for ins in epi(9, 1): A(ins)
    A("s_waitcnt vmcnt(0)")
    if STAMP: stamp(A,2)
    if flags:
        A("s_barrier")
        arrive(A, S_FLAG)
        A(f"s_add_u32 {s(S_FLAG)}, {s(S_FLAG)}, 128")
        arrive(A, S_FLAG)
```

```python
NSEG=64; NH=32
WS_K   = 0
WS_V   = WS_K + NSEG*NH*12288
WS_U   = WS_V + NSEG*NH*12288
WS_Z   = WS_U + NSEG*40*32*1024
WS_P   = WS_Z + NSEG*40*8*1024
WS_KM  = WS_P + NSEG*2*40*1024
WS_MB  = WS_KM + NSEG*NH*3072
WS_SIZE = 268435456
def emap(ks, g, sig):
    if ks < 4:
        return 48*ks + 16*(sig>>2) + 4*g + (sig&3)
    return 48*(2*(ks-4) + (g>>1)) + 32 + 8*(g&1) + sig
if __name__ == "__main__":
    print(hex(WS_V),hex(WS_U),hex(WS_Z),hex(WS_P),hex(WS_KM),hex(WS_MB))
    assert sorted(emap(k,g,s) for k in range(6) for g in range(4) for s in range(8))==list(range(192))

MB_Z = WS_MB
MB_P = MB_Z + 3*327680
MB_L = MB_P + 3*20480
MB_X = MB_L + 4*10240
MB_H = MB_X + 256
MB_RH = MB_X + 1024
POISON_END = (MB_X + 1024 + 16384 + 4095)//4096*4096
FLAGS = POISON_END
FL_K = FLAGS; FL_V = FL_K + 4096; FL_KM = FL_V + 4096
CN_U = FL_KM + 4096
CN_Z = CN_U + 8192
CN_Q = CN_Z + 8192
RD_Q = CN_Q + 8192
CN_B = RD_Q + 8192
RD_B = CN_B + 4096
FLAGS_END = RD_B + 4096
WS_OB = (FLAGS_END + 4095)//4096*4096
MB_R = (WS_OB + 2048*1280 + (2<<20) - 1)//(2<<20)*(2<<20)
RSTEP = 49152; RPP = 42
WS_SCR = MB_R + 4*1024*1024
```

```python
from common import *
from sched import *
from role_kv import load_w_rows384
from role_u import load_wo
import math, struct
STAMP = False
DELAY0 = 3
PBMODE = 0
DELAYL = 0
PREU = 2
NUMA = 1
TS3 = 0
TB = 44
TA = 135
XLATE = 30
TICKC = 363
XDELTA = 130
CVADJ = 150
DBVADJ = 2
CWAIT = 2100
TWSTEP = 28
S_TD = 98
PBSTEP0 = 10
PROBEW = 3
GIDX = 57
GIDXV = 3
DFAILB = 18
WIDE = 1
POLLW = 3
DELAY0V = 2
HBIDX = 44
XHINT = 1
DELAYH = 0
TAILW = 0
KMW = 0
RFIRST = 0
ZPRE2 = 1
HINTB = 0
HINTA = 0
HGAP = 1
PL_X = 'G'; PL_M = 'W'; K2W = 1; PL_P = 'T'; PL_K = 'T'
PBSTEPV = 4
PBSTG = 0
VAR = 1
SPEC = 1
WDEL = 9
DROP = 0
DELAYLV = 0
ZPRE = 1
DELAYZV = 2
DELAYZS = 2
PBSTEP = 4
VCAP = 2
DELAYBS = 0
TSTEP = 30
ORDER = 1
DELAYB = 0
NSTEP = 64

def f32bits(x): return struct.unpack("<I", struct.pack("<f", x))[0]

S_STEP=22; S_GRP=23; S_C=24; S_FAST=25; S_T=26; S_T2=27; S_CNT=28; S_DEAD=29
S_Z=30; S_ZN=31; S_P=32; S_PN=33; S_L=34; S_LN=35; S_RR=36; S_RW=37; S_US=38; S_US2=39
S_KS=44; S_EXP=45; S_ZP=46; S_PP=47; S_SC=48; S_KNOWN=49; S_KMX=67; S_ARR=57; S_KN=42
S_MA=50; S_MB=52
S_MU=54; S_MK=55; S_FLO=56; S_T3=58; S_T4=43; S_PST=59; S_PSM=60; S_PLX=61; S_PLM=62; S_ZL=63; S_ZL2=64; S_M3=68; S_G3=65
S_OLO = 40; S_OHI = 41; S_TGT = 66; S_EXN = 29; S_R3 = 29;  S_KMY = 39
S_TS=70
V_ZERO=0; V_IDX=2; V_L16=3; V_HI=4; V_WL=5; V_PW=6; V_T7=7; V_TRA=8; V_TRB=18; V_PLD=10; V_PM=11
V_FINR=12; V_TW=13; V_FINRM=14; V_UR=15; V_RW=16; V_KR=17; V_UH=17; V_UHR=18; V_GA=19
AF=20; ACC=60; TMP=76; XS=100; V_POI=120; V_ZH=124; V_FK=111; V_ZS4=125; V_ZS2=126; V_FL=127
V_G3W=9; V_FINRR=110; V_SXR=13; V_PX=16; V_FKS=124; V_TMP1=125; V_TMPV=11
L_MEM=98304; HI=L_MEM
S_LK=114688; S_LU=143360; S_LQ=108544; S_LKM=111616; S_LRED=126976; S_LSX=159744
V_LU=108544; V_LVX=133120; V_LRED=136192

ORD_S = [t*10+k for k in range(10) for t in range(2)] + list(range(20,40)) + [t*10+k for k in range(10) for t in (4,5)]
ORD_V = [t*10+k for k in range(10) for t in (0,1)] + list(range(20,60))
CUR_ORD = ORD_S
def wfrag(f):
    p = CUR_ORD.index(f)
    if p % 5 == 4: return ("lds", p//5)
    r = p - p//5
    return ("reg", 256 + 8*r if r < 32 else 128 + 8*(r-32))
def wdest(f, q):
    kind, x = wfrag(f)
    return reg(x + 2*q, 2) if kind == "reg" else v(AF + 8*x + 2*q, 2)

STUBS = []
def dual_text(A, lines):
    sl = A.newlabel("ds_s"); en = A.newlabel("ds_e")
    STUBS.append([sl + ":"] + [l + (" sc0 sc1" if l.startswith("buffer_store") else "") for l in lines] + [f"s_branch {en}"])
    return "\n".join([f"s_cmp_eq_u32 {s(S_FAST)}, 0", f"s_cbranch_scc1 {sl}"] + lines + [en + ":"])
def dual(A, lines): A(dual_text(A, lines))
def flush_stubs(A):
    for st in STUBS:
        for l in st: A(l)
    STUBS.clear()

def tick(A, k):
    if not STAMP or STAMP == 3: return
    if STAMP == 2:
        A(f"s_memrealtime {s(88,2)}")
        A("s_waitcnt lgkmcnt(0)")
        A(f"s_cmp_eq_u32 {s(S_STEP)}, {TSTEP + (1 if k >= 4 else 0)}")
        A(f"s_cselect_b32 {s(S_TS+k)}, {s(88)}, {s(S_TS+k)}")
        return
    A(f"s_memtime {s(88,2)}")
    A("s_waitcnt lgkmcnt(0)")
    A(f"s_sub_u32 {s(87)}, {s(88)}, {s(86)}")
    A(f"s_add_u32 {s(S_TS+k)}, {s(S_TS+k)}, {s(87)}")
    A(f"s_mov_b32 {s(86)}, {s(88)}")

TRACE = 0
def tr(A, k):
    if TRACE == 2: A(f"s_memrealtime {s(70+2*k,2)}")
    elif TRACE: A(f"s_memtime {s(70+2*k,2)}")
def trace_task():
    if not TRACE: return []
    L = [f"v_writelane_b32 {v(V_TRC)}, {s(70+2*k)}, {k}" for k in range(10)]
    L += [f"s_lshl_b32 s94, {s(S_STEP)}, 8", "s_add_u32 s94, s94, s95"]
    L.append("\n".join(["s_mov_b64 exec, 0x3ff", f"buffer_store_dword {v(V_TRC)}, {v(V_L16)}, {s(S_WS,4)}, s94 offen", "s_mov_b64 exec, -1"]))
    return [[1, 18, L]]
V_TRC = 125; V_TRA4 = 110
S_HP = 90; S_HN = 91; V_HA = 118
def hint_store(A, off, vt):
    A(f"s_add_u32 {s(S_HN)}, {s(S_STEP)}, 1")
    A(f"s_lshl_b32 {s(S_T)}, {s(S_C)}, 2")
    A(f"s_add_u32 {s(S_T)}, {s(S_T)}, {s(S_HP)}")
    A(f"v_mov_b32 {v(vt)}, {s(S_HN)}")
    dual(A, ["s_mov_b64 exec, 1", f"buffer_store_dword {v(vt)}, {v(V_ZERO)}, {s(S_WS,4)}, {s(S_T)} offen offset:{off}", "s_mov_b64 exec, -1"])
S_XW = 100; S_XR = 99
def hint_first(A, off, nw, va, a_, cross=False):
    A(f"s_add_u32 {s(S_HN)}, {s(S_STEP)}, 1")
    A(f"v_and_b32 {v(va)}, {nw-1}, {v(V_LANE)}")
    A(f"v_lshlrev_b32 {v(va)}, 2, {v(va)}")
    if cross and nw == 1: A(f"v_mov_b32 {v(va)}, {s(S_XR)}")
    elif cross: A(f"v_writelane_b32 {v(va)}, {s(S_XR)}, 32"); nw = 33
    A(f"s_mov_b64 exec, {hex((1<<nw)-1)}" if nw <= 32 else "s_mov_b32 exec_hi, 1")
    A(f"buffer_load_dword {v(a_)}, {v(va)}, {s(S_WS,4)}, {s(S_HP)} offen offset:{off} sc1")
def hint_poll(A, off, nw, va, a_, b_, ctr, cross=False, first=True):
    lp = A.newlabel("HP"); dn = A.newlabel("HPd")
    ld = lambda r: f"buffer_load_dword {v(r)}, {v(va)}, {s(S_WS,4)}, {s(S_HP)} offen offset:{off} sc1"
    if first:
        hint_first(A, off, nw, va, a_, cross)
        if HGAP: A(f"s_sleep {HGAP}")
    else:
        A(f"s_mov_b64 exec, {hex((1<<nw)-1)}" if (not cross or nw == 1) else "s_mov_b32 exec_hi, 1")
    A(ld(b_))
    A.label(lp)
    A("s_waitcnt vmcnt(1)")
    A(f"v_cmp_gt_i32 vcc, {s(S_HN)}, {v(a_)}")
    A(f"s_cbranch_vccz {dn}")
    A(ld(a_))
    A("s_waitcnt vmcnt(1)")
    A(f"v_cmp_gt_i32 vcc, {s(S_HN)}, {v(b_)}")
    A(f"s_cbranch_vccz {dn}")
    A(ld(b_))
    if STAMP: A(f"s_add_u32 {s(S_TS+ctr)}, {s(S_TS+ctr)}, 1")
    A(f"s_sub_u32 {s(S_CNT)}, {s(S_CNT)}, 1")
    A(f"s_cbranch_scc0 {lp}")
    A(f"s_mov_b32 {s(S_CNT)}, 0")
    A.label(dn)
    A("s_mov_b64 exec, -1")
def gate(A, off, nw, va, a_, b_, ctr, younger, d_pass, d_fail, cross=False):
    fl = A.newlabel("GTf"); bk = A.newlabel("GTb")
    A(f"s_waitcnt vmcnt({younger})")
    A(f"s_mov_b64 exec, {hex((1<<nw)-1)}")
    A(f"v_cmp_gt_i32 vcc, {s(S_HN)}, {v(a_)}")
    A("s_mov_b64 exec, -1")
    A(f"s_cbranch_vccnz {fl}")
    if d_pass: A(f"s_sleep {d_pass}")
    A.label(bk)
    B = Asm(); B.uid = A.uid + 600000; A.uid += 10
    B.label(fl)
    hint_poll(B, off, nw, va, a_, b_, ctr, cross=cross)
    if d_fail: B(f"s_sleep {d_fail}")
    B(f"s_branch {bk}")
    STUBS.append(B.lines)
def first_text(A, off, nw, va, a_):
    B = Asm(); hint_first(B, off, nw, va, a_); B("s_mov_b64 exec, -1")
    L = [l.strip() for l in B.lines]
    return L[:3] + ["\n".join(L[3:])]
def RTMP(): return 76 if not (TRACE or STAMP) else 92
def ts_hint_store(A, E, vt):
    r = RTMP()
    A(f"s_memrealtime {s(r,2)}")
    A(f"s_add_u32 {s(S_HN)}, {s(S_STEP)}, 1")
    A(f"s_lshl_b32 {s(S_HN)}, {s(S_HN)}, 24")
    A(f"s_lshl_b32 {s(S_T)}, {s(S_C)}, 2")
    A(f"s_add_u32 {s(S_T)}, {s(S_T)}, {s(S_HP)}")
    E.drain()
    A(f"s_and_b32 {s(r)}, {s(r)}, 0xffffff")
    A(f"s_or_b32 {s(r)}, {s(r)}, {s(S_HN)}")
    A(f"v_mov_b32 {v(vt)}, {s(r)}")
    dual(A, ["s_mov_b64 exec, 1", f"buffer_store_dword {v(vt)}, {v(V_ZERO)}, {s(S_WS,4)}, {s(S_T)} offen", "s_mov_b64 exec, -1"])
def ts_wait(A, E, s_t, ticks):
    r = RTMP(); lp = A.newlabel("TW")
    A(f"s_memrealtime {s(r,2)}"); A("s_waitcnt lgkmcnt(0)"); E.reset()
    A(f"s_add_u32 {s(r+1)}, {s(s_t)}, {ticks}")
    A(f"s_sub_u32 {s(r+1)}, {s(r+1)}, {s(r)}")
    A(f"s_and_b32 {s(r+1)}, {s(r+1)}, 0xffffff")
    A(f"s_cmp_gt_u32 {s(r+1)}, 200"); A(f"s_cselect_b32 {s(r+1)}, 0, {s(r+1)}")
    A(f"s_mul_i32 {s(r+1)}, {s(r+1)}, {TICKC}")
    A.label(lp)
    A(f"s_sub_u32 {s(r+1)}, {s(r+1)}, {44*16}")
    A(f"s_cmp_gt_i32 {s(r+1)}, 0")
    A(f"s_cbranch_scc1 {lp}")
def xstore(A):
    if HINTB != 6: A(f"s_add_u32 {s(S_HN)}, {s(S_STEP)}, 1")
    A(f"v_lshrrev_b32 {v(59)}, 2, {v(V_L16)}")
    A(f"s_cmp_eq_u32 {s(S_C)}, 16")
    A(f"v_mov_b32 {v(57)}, {s(S_HN if HINTB != 6 else S_TD)}")
    A("s_cselect_b32 exec_lo, -1, 0"); A("s_mov_b32 exec_hi, 0")
    A(f"buffer_store_dword {v(57)}, {v(59)}, {s(S_WS,4)}, {s(S_XW)} offen sc0 sc1")
    A("s_mov_b64 exec, -1")
def ts_poll(A, va, a_, b_, ctr):
    lp = A.newlabel("HP"); dn = A.newlabel("HPd"); d2 = A.newlabel("HPe")
    ld = lambda r: f"buffer_load_dword {v(r)}, {v(va)}, {s(S_WS,4)}, {s(S_HP)} offen sc1"
    A(f"s_add_u32 {s(S_HN)}, {s(S_STEP)}, 1")
    A(f"s_lshl_b32 {s(S_HN)}, {s(S_HN)}, 24")
    A(f"v_and_b32 {v(va)}, 15, {v(V_LANE)}")
    A(f"v_lshlrev_b32 {v(va)}, 2, {v(va)}")
    A("s_mov_b64 exec, 0xffff")
    A.label(lp)
    A(ld(a_))
    if STAMP: A(f"s_add_u32 {s(S_TS+ctr)}, {s(S_TS+ctr)}, 1")
    A(f"s_sub_u32 {s(S_CNT)}, {s(S_CNT)}, 1")
    A(f"s_cbranch_scc1 {d2}")
    A("s_waitcnt vmcnt(0)")
    A(f"v_cmp_gt_i32 vcc, {s(S_HN)}, {v(a_)}")
    A(f"s_cbranch_vccnz {lp}")
    A.label(dn)
    STUBS.append([d2 + ":", f"s_mov_b32 {s(S_CNT)}, 0", "s_waitcnt vmcnt(0)", f"s_branch {dn}"])
    for sh in (1, 2, 4, 8):
        A("s_nop 1")
        A(f"v_max_i32_dpp {v(a_)}, {v(a_)}, {v(a_)} row_ror:{sh} row_mask:0xf bank_mask:0xf")
    A("s_nop 0")
    A(f"v_readfirstlane_b32 {s(S_TD)}, {v(a_)}")
    A("s_mov_b64 exec, -1")
def wait_poison(A, extra=0, fin=False):
    key = f"{v(V_POI,2)}, {v(V_FINRM)}" if fin else f"{v(V_POI,2)}, "
    idx = max(i for i, l in enumerate(A.lines) if "buffer_store" in l and (key in l))
    n = sum(1 for l in A.lines[idx+1:] if l.strip().startswith("buffer_"))
    return f"s_waitcnt vmcnt({max(n - extra, 0)})"
def loop_top(A, lab, ctr=15):
    A.label(lab)
    if STAMP: A(f"s_add_u32 {s(S_TS+ctr)}, {s(S_TS+ctr)}, 1")
    A(f"s_sub_u32 {s(S_CNT)}, {s(S_CNT)}, 1")
    A(f"s_cbranch_scc1 {lab}_dead")
def retry(A, lab, ctr=15):
    A(f"s_cbranch_vccnz {lab}")
    A.label(lab + "_ok")
    STUBS.append([lab + "_dead:", f"s_mov_b32 {s(S_CNT)}, 0", "s_mov_b64 exec, -1" if ctr in (11, 12, 15) else "s_nop 0", f"s_branch {lab}_ok"])

def mp_init(A, masks, base=0):
    for i, m in enumerate(masks): A(f"s_mov_b64 {s(FPS[base+i],2)}, {m}")
def mp_issue(A, loads, base=0):
    for i, (r, ld) in enumerate(loads):
        A(f"s_mov_b64 exec, {s(FPS[base+i],2)}"); A(ld)
    A("s_mov_b64 exec, -1")
def mp_check(loads, mt, base=0):
    L = []
    for i, (r, _) in enumerate(loads):
        L += [f"v_max_u32 {v(mt+i)}, {v(r)}, {v(r+2)}"]
    L += [f"v_cmp_eq_u32 {s(FPS[base+i],2)}, -1, {v(mt+i)}" for i in range(len(loads))]
    return L
def mp_close(A, n, lab, base=0):
    A(f"s_or_b64 vcc, {s(FPS[base],2)}, {s(FPS[base+1],2)}")
    for i in range(2, n): A(f"s_or_b64 vcc, vcc, {s(FPS[base+i],2)}")
    A(f"s_cbranch_scc1 {lab}")
    A.label(lab + "_ok")
    STUBS.append([lab + "_dead:", f"s_mov_b32 {s(S_CNT)}, 0", f"s_branch {lab}_ok"])
FPS = [12, 14, 16, 18, 8, 96]

def maxtree(regs_, t):
    L = []; r = list(regs_)
    L.append(f"v_max3_u32 {v(t)}, {v(r[0])}, {v(r[1])}, {v(r[2])}"); r = r[3:]
    while len(r) >= 2:
        L.append(f"v_max3_u32 {v(t)}, {v(t)}, {v(r[0])}, {v(r[1])}"); r = r[2:]
    if r: L.append(f"v_max_u32 {v(t)}, {v(t)}, {v(r[0])}")
    return L

def post(sa, out=None):
    o = sa if out is None else out
    return [f"v_add_f32 {v(sa)}, {v(sa)}, {v(sa+1)}", f"v_add_f32 {v(sa+2)}, {v(sa+2)}, {v(sa+3)}",
            f"v_cvt_pk_bf16_f32 {v(o)}, {v(sa)}, {v(sa+2)}"]
def post_s(sa, off, tag):
    return post(sa) + [ds(tag, f"ds_write_b32 {v(V_PW)}, {v(sa)} offset:{off}")]
def post_v(sa, off, tag):
    return post(sa) + [ds(tag, f"ds_write_b16 {v(V_PW)}, {v(sa)} offset:{off}"), ds(tag, f"ds_write_b16_d16_hi {v(V_PW)}, {v(sa)} offset:{off+4}")]
def zero(sa): return [f"v_mov_b64 {v(sa,2)}, 0", f"v_mov_b64 {v(sa+2,2)}, 0"]
def wl_read(j):
    r = TMP + 8*(j % 3)
    return [ds(f"W{j}", f"ds_read_b128 {v(r,4)}, {v(V_WL)} offset:{j*2048}"),
            ds(f"W{j}", f"ds_read_b128 {v(r+4,4)}, {v(V_WL)} offset:{j*2048+1024}")]
def smf(f, acc, afrag):
    kind, x = wfrag(f)
    it = []
    if kind == "lds":
        it.append(need(f"W{x}")); b = v(TMP + 8*(x % 3), 8)
    else: b = reg(x, 8)
    it.append(f"v_smfmac_f32_16x16x64_bf16 {v(acc,4)}, {v(afrag,4)}, {b}, {v(V_IDX)}")
    return it
def refill_tasks():
    return [[5*j+4, 5*(j+3)+4-5, wl_read(j+3)] for j in range(9)]

def setup_common(A, isV):
    LU = V_LU if isV else S_LU; LRED = V_LRED if isV else S_LRED
    t0, t1, t2 = 112, 113, 114
    A(f"v_mov_b32 {v(V_ZERO)}, 0")
    A(f"v_and_b32 {v(t0)}, 15, {v(V_LANE)}")
    A(f"v_lshrrev_b32 {v(t1)}, 4, {v(V_LANE)}")
    A(f"v_mov_b32 {v(V_IDX)}, 0x4444")
    A(f"v_mov_b32 {v(t2)}, 0xeeee")
    A(f"v_and_b32 {v(V_L16)}, 1, {v(V_LANE)}")
    A(f"v_cmp_eq_u32 vcc, 1, {v(V_L16)}")
    A("s_nop 1")
    A(f"v_cndmask_b32 {v(V_IDX)}, {v(V_IDX)}, {v(t2)}, vcc")
    A(f"v_lshlrev_b32 {v(V_L16)}, 4, {v(V_LANE)}")
    A(f"v_add_u32 {v(V_HI)}, {HI}, {v(V_L16)}")
    A(f"s_mul_i32 {s(S_T)}, {s(S_WAVE)}, 24576")
    A(f"v_add_u32 {v(V_WL)}, {s(S_T)}, {v(V_L16)}")
    if isV:
        A(f"v_and_b32 {v(t2)}, 7, {v(t0)}")
        A(f"v_lshlrev_b32 {v(t2)}, 5, {v(t2)}")
        A(f"v_lshl_add_u32 {v(t2)}, {v(t1)}, 3, {v(t2)}")
        A(f"v_lshrrev_b32 {v(V_PW)}, 3, {v(t0)}")
        A(f"v_lshl_add_u32 {v(t2)}, {v(V_PW)}, 1, {v(t2)}")
    else:
        A(f"v_lshlrev_b32 {v(t2)}, 2, {v(t1)}")
        A(f"v_lshl_add_u32 {v(t2)}, {v(t0)}, 4, {v(t2)}")
    A(f"s_mul_i32 {s(S_T)}, {s(S_WAVE)}, 768")
    A(f"s_add_u32 {s(S_T)}, {s(S_T)}, {V_LVX if isV else S_LQ}")
    A(f"v_add_u32 {v(V_PW)}, {s(S_T)}, {v(t2)}")
    A(f"v_and_b32 {v(t2)}, 7, {v(t0)}")
    A(f"v_lshl_add_u32 {v(V_PLD)}, {v(t1)}, 3, {v(t2)}")
    A(f"v_lshlrev_b32 {v(V_PLD)}, 4, {v(V_PLD)}")
    A(f"v_lshl_add_u32 {v(V_FINR)}, {v(t1)}, 4, {v(t2)}")
    A(f"v_lshlrev_b32 {v(V_FINR)}, 4, {v(V_FINR)}")
    if isV:
        A(f"s_and_b32 {s(S_T)}, {s(S_C)}, 1")
        A(f"s_lshl_b32 {s(S_T)}, {s(S_T)}, 7")
        A(f"v_add_u32 {v(V_ZH)}, {s(S_T)}, {v(V_FINR)}")
        A(f"v_lshrrev_b32 {v(V_UH)}, 3, {v(t0)}")
        A(f"v_mul_u32_u24 {v(V_UH)}, 40960, {v(V_UH)}")
        A(f"v_add_u32 {v(V_UH)}, {v(V_UH)}, {v(V_ZH)}")
        A(f"s_mul_i32 {s(S_T)}, {s(S_WAVE)}, 6144")
        A(f"s_add_u32 {s(S_T)}, {s(S_T)}, {LU+4096}")
        A(f"v_add_u32 {v(V_UHR)}, {s(S_T)}, {v(V_FINR)}")
        A(f"v_mov_b32 {v(V_FINR)}, {v(V_L16)}")
    A(f"v_add_u32 {v(V_FINR)}, {LRED}, {v(V_FINR)}")
    A(f"s_mul_i32 {s(S_MU)}, {s(S_WAVE)}, {6144 if isV else 4096}")
    A(f"s_add_u32 {s(S_MU)}, {s(S_MU)}, {LU}")
    A(f"v_add_u32 {v(V_UR)}, {s(S_MU)}, {v(V_L16)}")
    if isV:
        A(f"s_mul_i32 {s(S_T)}, {s(S_WAVE)}, 1024")
        A(f"s_add_u32 {s(S_T)}, {s(S_T)}, {LRED}")
        A(f"v_add_u32 {v(V_RW)}, {s(S_T)}, {v(V_L16)}")
    A(f"v_lshrrev_b32 {v(V_FINRM)}, 1, {v(t1)}")
    A(f"s_lshl_b32 {s(S_T)}, {s(S_C)}, 1")
    A(f"v_add_u32 {v(V_FINRM)}, {s(S_T)}, {v(V_FINRM)}")
    if isV:
        A(f"s_add_u32 {s(S_T)}, {s(S_C)}, {64-16}")
        A(f"v_mov_b32 {v(V_TW)}, {s(S_T)}")
        A(f"v_cmp_lt_u32 vcc, 7, {v(t0)}")
        A("s_nop 1")
        A(f"v_cndmask_b32 {v(V_FINRM)}, {v(V_FINRM)}, {v(V_TW)}, vcc")
        A(f"v_lshrrev_b32 {v(V_TW)}, 3, {v(t0)}")
        A(f"v_lshl_add_u32 {v(V_TW)}, {v(V_TW)}, 9, {v(V_PLD)}")
    A(f"v_lshlrev_b32 {v(V_FINRM)}, 7, {v(V_FINRM)}")
    A(f"v_lshl_add_u32 {v(V_FINRM)}, {v(t2)}, 4, {v(V_FINRM)}")
    A(f"v_and_b32 {v(t2)}, 1, {v(t1)}")
    A(f"v_lshl_add_u32 {v(V_FINRM)}, {v(t2)}, 3, {v(V_FINRM)}")
    A(f"s_mov_b32 {s(S_MA)}, 0x00ff00ff")
    A(f"s_mov_b32 {s(S_MA+1)}, 0x00ff00ff")
    A(f"s_mov_b32 {s(S_MB)}, {'0xffffffff' if isV else '0x00ff00ff'}")
    A(f"s_mov_b32 {s(S_MB+1)}, {'0x00ff00ff' if isV else '0'}")
    A(f"s_lshl_b32 {s(S_T)}, {s(S_WAVE)}, 10")
    A(f"v_add_u32 {v(V_T7)}, {s(S_T)}, {v(V_L16)}")
    if not isV: A(f"v_add_u32 {v(126)}, {HI}, {v(V_T7)}")
    A(f"s_lshr_b32 {s(S_G3)}, {s(S_WAVE)}, 1")
    A(f"s_add_u32 {s(S_G3)}, {s(S_G3)}, 8")
    A(f"s_sub_u32 {s(S_G3)}, {s(S_G3)}, {s(S_WAVE)}")
    A(f"s_lshl_b32 {s(S_G3)}, {s(S_G3)}, 10")
    A(f"s_and_b32 {s(S_T2)}, {s(S_WAVE)}, 1")
    A(f"s_sub_u32 {s(S_M3)}, {s(S_T2)}, 1")
    A(f"s_sub_u32 {s(S_M3+1)}, 0, {s(S_T2)}")
    A(f"v_and_b32 {v(V_GA)}, 7, {v(V_LANE)}")
    A(f"v_lshlrev_b32 {v(V_GA)}, 5, {v(V_GA)}")
    A(f"v_lshl_add_u32 {v(V_GA)}, {v(t1)}, 8, {v(V_GA)}")
    A(f"v_bfe_u32 {v(115)}, {v(V_LANE)}, 3, 1")
    A(f"v_lshl_add_u32 {v(V_GA)}, {v(115)}, 4, {v(V_GA)}")
    A(f"s_add_u32 {s(S_T)}, {s(S_T)}, {HI}")
    A(f"v_add_u32 {v(V_GA)}, {s(S_T)}, {v(V_GA)}")
    A(f"v_add_u32 {v(V_G3W)}, {s(S_G3)}, {v(V_GA)}")
    for i in range(4): A(f"v_mov_b32 {v(V_POI+i)}, -1")
    r_, c_ = 115, 116
    A(f"v_bfe_u32 {v(r_)}, {v(V_LANE)}, 2, 2")
    A(f"v_and_b32 {v(c_)}, 1, {v(V_LANE)}")
    A(f"v_lshlrev_b32 {v(c_)}, 3, {v(c_)}")
    if not isV:
        A(f"v_add_u32 {v(c_)}, {S_LQ}, {v(c_)}")
        A(f"v_lshl_add_u32 {v(V_TRA)}, {v(t1)}, 2, {v(r_)}")
        A(f"v_lshl_add_u32 {v(V_TRA)}, {v(V_TRA)}, 4, {v(c_)}")
        A(f"v_lshrrev_b32 {v(t2)}, 1, {v(t1)}")
        A(f"v_mul_u32_u24 {v(t2)}, 48, {v(t2)}")
        A(f"v_and_b32 {v(V_TRB)}, 1, {v(t1)}")
        A(f"v_lshl_add_u32 {v(V_TRB)}, {v(V_TRB)}, 3, {v(t2)}")
        A(f"v_add_u32 {v(V_TRB)}, {v(V_TRB)}, {v(r_)}")
        A(f"v_lshl_add_u32 {v(V_TRB)}, {v(V_TRB)}, 4, {v(c_)}")
        A(f"v_and_b32 {v(t2)}, 7, {v(t0)}")
        A(f"v_lshl_add_u32 {v(t2)}, {v(t1)}, 4, {v(t2)}")
        A(f"v_lshlrev_b32 {v(t2)}, 4, {v(t2)}")
        A(f"v_lshrrev_b32 {v(V_PX)}, 3, {v(t0)}")
        A(f"v_lshl_add_u32 {v(V_SXR)}, {v(V_PX)}, 10, {v(t2)}")
        A(f"v_add_u32 {v(V_SXR)}, {S_LSX}, {v(V_SXR)}")
        A(f"v_lshl_add_u32 {v(V_PX)}, {v(V_PX)}, 3, {v(t2)}")
        A(f"v_lshlrev_b32 {v(V_PM)}, 4, {v(t0)}")
        A(f"v_lshl_add_u32 {v(V_PM)}, {v(t1)}, 3, {v(V_PM)}")
        A(f"s_sub_u32 {s(S_T)}, {s(S_WAVE)}, 1")
        A(f"s_and_b32 {s(S_T)}, {s(S_T)}, 3")
        A(f"s_mul_i32 {s(S_T2)}, {s(S_T)}, 6144")
        A(f"s_add_u32 {s(S_T2)}, {s(S_T2)}, {S_LK}")
        A(f"v_add_u32 {v(V_KR)}, {s(S_T2)}, {v(V_L16)}")
        A(f"s_mul_i32 {s(S_MK)}, {s(S_T)}, {6144 if K2W else 4096}")
        A(f"s_mul_i32 {s(S_KS)}, {s(S_HEAD)}, 12288")
        A(f"s_add_u32 {s(S_KS)}, {s(S_KS)}, {s(S_MK)}")
        A(f"s_add_u32 {s(S_KS)}, {s(S_KS)}, {WS_K}")
        A(f"s_add_u32 {s(S_MK)}, {s(S_MK)}, {S_LK}")
        A(f"s_lshr_b32 {s(S_PST)}, {s(S_HEAD)}, 1")
        A(f"s_lshl_b32 {s(S_PST)}, {s(S_PST)}, 10")
        A(f"s_and_b32 {s(S_PSM)}, {s(S_HEAD)}, 1")
        A(f"s_lshl_b32 {s(S_PSM)}, {s(S_PSM)}, 7")
        A(f"s_add_u32 {s(S_PST)}, {s(S_PST)}, {s(S_PSM)}")
        A(f"s_lshl_b32 {s(S_PSM)}, {s(S_HEAD)}, 7")
        A(f"s_add_u32 {s(S_PSM)}, {s(S_PSM)}, 16384")
    else:
        A(f"v_lshl_add_u32 {v(t2)}, {v(t1)}, 3, {v(r_)}")
        A(f"v_and_b32 {v(c_)}, 3, {v(V_LANE)}")
        A(f"v_lshlrev_b32 {v(c_)}, 3, {v(c_)}")
        A(f"v_lshl_add_u32 {v(V_TRA)}, {v(t2)}, 5, {v(c_)}")
        A(f"v_add_u32 {v(V_TRA)}, {V_LVX}, {v(V_TRA)}")
        A(f"v_lshlrev_b32 {v(V_ZS4)}, 13, {v(t1)}")
        A(f"v_and_b32 {v(t2)}, 1, {v(t1)}")
        A(f"v_lshlrev_b32 {v(V_ZS2)}, 13, {v(t2)}")
        A(f"v_lshrrev_b32 {v(t2)}, 1, {v(t1)}")
        A(f"v_lshl_add_u32 {v(V_ZS2)}, {v(t2)}, 3, {v(V_ZS2)}")
        A(f"s_mul_i32 {s(S_T)}, {s(S_WAVE)}, {10*8192}")
        A(f"s_lshl_b32 {s(S_T2)}, {s(S_HEAD)}, 8")
        A(f"s_add_u32 {s(S_T)}, {s(S_T)}, {s(S_T2)}")
        A(f"v_lshl_add_u32 {v(t2)}, {v(t0)}, 4, {s(S_T)}")
        A(f"v_add_u32 {v(V_ZS4)}, {v(V_ZS4)}, {v(t2)}")
        A(f"v_add_u32 {v(V_ZS2)}, {v(V_ZS2)}, {v(t2)}")
        A(f"v_add_u32 {v(V_ZS2)}, {8*8192}, {v(V_ZS2)}")
    A(f"s_mov_b32 {s(S_Z)}, {MB_Z}")
    A(f"s_mov_b32 {s(S_ZN)}, {MB_Z+327680}")
    A(f"s_mov_b32 {s(S_P)}, {MB_P}")
    A(f"s_mov_b32 {s(S_PN)}, {MB_P+20480}")
    A(f"s_mov_b32 {s(S_ZP)}, {MB_Z+2*327680}")
    A(f"s_mov_b32 {s(S_PP)}, {MB_P+2*20480}")
    A(f"s_mul_i32 {s(S_T)}, {s(S_GRP)}, 10240")
    A(f"s_add_u32 {s(S_L)}, {s(S_T)}, {MB_L}")
    A(f"s_add_u32 {s(S_LN)}, {s(S_T)}, {MB_L+20480}")
    if True:
        A(f"s_lshl_b32 {s(S_T)}, {s(S_GRP)}, 14")
        A(f"s_add_u32 {s(S_RW)}, {s(S_T)}, {MB_R}")
        A(f"s_sub_u32 {s(S_RR)}, {MB_R + 16384}, {s(S_T)}")
        A(f"s_mul_i32 {s(S_T)}, {s(S_GRP)}, 14336")
        A(f"s_add_u32 {s(S_R3)}, {s(S_T)}, {32768 + 2048 - 8192 - 16384}")
        A(f"s_add_u32 {s(S_R3)}, {s(S_R3)}, {s(S_G3)}")
        if isV:
            A(f"s_sub_u32 {s(S_T)}, {32768 - 8192}, {s(S_T)}")
            A(f"v_add_u32 {v(V_FINRR)}, {s(S_T)}, {v(V_FINRM)}")
            A(f"v_cmp_lt_u32 vcc, 7, {v(t0)}")
            A("s_nop 1")
            A(f"v_cndmask_b32 {v(V_FINRR)}, {v(V_FINRM)}, {v(V_FINRR)}, vcc")
        A(f"s_mov_b32 {s(S_OLO)}, 0x00003f80"); A(f"s_mov_b32 {s(S_OHI)}, 0x3f800000"); A(f"s_mov_b32 {s(S_TGT)}, 0")
    A(f"s_lshl_b32 {s(S_T)}, {s(S_GRP)}, 2")
    A(f"s_add_u32 {s(S_T)}, {s(S_T)}, {s(S_WAVE)}")
    A(f"s_lshl_b32 {s(S_PLX)}, {s(S_T)}, 11")
    A(f"s_lshl_b32 {s(S_PLM)}, {s(S_T)}, 9")
    A(f"s_add_u32 {s(S_PLM)}, {s(S_PLM)}, 16384")
    A(f"s_lshl_b32 {s(S_ZL)}, {s(S_T)}, 10")
    A(f"s_mul_i32 {s(S_US)}, {s(S_T)}, {4*40960}")
    A(f"s_add_u32 {s(S_US)}, {s(S_US)}, {WS_U}")
    if isV:
        A(f"s_sub_u32 {s(S_T2)}, {s(S_C)}, 16")
        A(f"s_lshr_b32 {s(S_T2)}, {s(S_T2)}, 1")
        A(f"s_add_u32 {s(S_T2)}, {s(S_T2)}, 32")
        A(f"s_lshl_b32 {s(S_T3)}, {s(S_T2)}, 13")
        A(f"s_add_u32 {s(S_ZL2)}, {s(S_ZL)}, {s(S_T3)}")
        A(f"s_lshl_b32 {s(S_T3)}, {s(S_T2)}, 10")
        A(f"s_add_u32 {s(S_US2)}, {s(S_US)}, {s(S_T3)}")
    A(f"s_lshl_b32 {s(S_T3)}, {s(S_C)}, 13")
    A(f"s_add_u32 {s(S_ZL)}, {s(S_ZL)}, {s(S_T3)}")
    A(f"s_lshl_b32 {s(S_T3)}, {s(S_C)}, 10")
    A(f"s_add_u32 {s(S_US)}, {s(S_US)}, {s(S_T3)}")
    A(f"s_mov_b32 {s(S_ARR)}, {CN_Z - 256}")
    A(f"s_lshl_b32 {s(S_HP)}, {s(S_GRP)}, 8")
    A(f"s_add_u32 {s(S_HP)}, {s(S_HP)}, {MB_H}")
    A(f"s_lshl_b32 {s(S_T2)}, {s(S_GRP)}, 7")
    A(f"s_add_u32 {s(S_XW)}, {s(S_T2)}, {MB_RH}")
    A(f"s_sub_u32 {s(S_XR)}, {MB_RH + 128 - 128}, {s(S_T2)}")
    A(f"s_sub_u32 {s(S_XR)}, {s(S_XR)}, {s(S_HP)}")
    A(f"s_lshl_b32 {s(S_FLO)}, {s(S_HEAD)}, 7")
    A(f"s_mov_b32 {s(S_KNOWN)}, 0")
    A(f"s_mov_b32 {s(S_KN)}, 1")
    A(f"v_mov_b32 {v(V_FL)}, 0")
    if not isV: A(f"v_mov_b32 {v(V_FKS)}, 0")
    A(f"s_mov_b32 {s(S_SC)}, {f32bits(192**-0.5*math.log2(math.e))}")
    A(f"s_mov_b32 {s(S_STEP)}, 0")
    A(f"s_mov_b32 {s(S_CNT)}, {SPIN_MAX + 1000 if SPIN_MAX else 0}")
    A(f"s_mov_b32 {s(S_EXP)}, {WS_Z if (VAR == 2 or PL_X != 'S') else WS_SCR}")
    if PL_X == 'S': A(f"s_mov_b32 {s(S_EXN)}, {WS_Z}")
    A(f"s_mul_i32 {s(S_KMX)}, {s(S_HEAD)}, 3072")
    A(f"s_add_u32 {s(S_KMX)}, {s(S_KMX)}, {WS_KM - 1024}")
    if not isV: A(f"s_mov_b32 {s(S_KMY)}, {WS_SCR}")
    if STAMP:
        for k in range(16): A(f"s_mov_b32 {s(S_TS+k)}, 0")

LOOKA = 8
def spin(lines_load, cond, ok):
    pass

def u_check(A, seg_off):
    sl = A.newlabel("uc_s"); ok = A.newlabel("uc_ok"); lp = A.newlabel("uc_lp"); g1 = A.newlabel("uc_g")
    A(f"s_add_u32 {s(S_T3)}, {s(S_STEP)}, {seg_off}")
    A(f"s_cmp_ge_u32 {s(S_T3)}, {s(S_KNOWN)}")
    A(f"s_cbranch_scc1 {sl}")
    A.label(ok)
    ld = f"buffer_load_dword {v(V_FL)}, {v(V_ZERO)}, {s(S_WS,4)}, {s(S_T4)} offen sc1"
    STUBS.append([sl + ":",
        f"s_add_u32 {s(S_KNOWN)}, {s(S_T3)}, {LOOKA}", f"s_min_u32 {s(S_KNOWN)}, {s(S_KNOWN)}, {NSEG-1}",
        f"s_lshl_b32 {s(S_T4)}, {s(S_KNOWN)}, 7", f"s_add_u32 {s(S_T4)}, {s(S_T4)}, {CN_U}", f"s_add_u32 {s(S_KNOWN)}, {s(S_KNOWN)}, 1",
        ld, "s_waitcnt vmcnt(0)", f"v_cmp_gt_u32 vcc, 32, {v(V_FL)}", f"s_cbranch_vccz {ok}",
        f"s_add_u32 {s(S_KNOWN)}, {s(S_T3)}, 1", f"s_min_u32 {s(S_T3)}, {s(S_T3)}, {NSEG-1}",
        f"s_lshl_b32 {s(S_T4)}, {s(S_T3)}, 7", f"s_add_u32 {s(S_T4)}, {s(S_T4)}, {CN_U}",
        lp + ":", ld, "s_waitcnt vmcnt(0)", f"v_cmp_gt_u32 vcc, 32, {v(V_FL)}", f"s_cbranch_vccz {ok}",
        f"s_sub_u32 {s(S_CNT)}, {s(S_CNT)}, 1", f"s_cbranch_scc0 {lp}", f"s_mov_b32 {s(S_CNT)}, 0", f"s_branch {ok}"])

def k_check(A):
    sl = A.newlabel("kc_s"); ok = A.newlabel("kc_ok"); lp = A.newlabel("kc_lp")
    A.label(lp)
    A(f"v_cmp_gt_u32 vcc, {s(S_KN)}, {v(V_FKS)}")
    A(f"s_cbranch_vccnz {sl}")
    A.label(ok)
    STUBS.append([sl + ":", f"s_sub_u32 {s(S_CNT)}, {s(S_CNT)}, 1", f"s_cbranch_scc1 {sl}_d", f"s_add_u32 {s(S_T3)}, {s(S_FLO)}, {FL_K}",
                  f"buffer_load_dword {v(V_FKS)}, {v(V_ZERO)}, {s(S_WS,4)}, {s(S_T3)} offen sc1", "s_waitcnt vmcnt(0)", f"s_branch {lp}",
                  sl + "_d:", f"s_mov_b32 {s(S_CNT)}, 0", f"s_branch {ok}"])

def k_dma(A, cls=12):
    if K2W:
        if cls == 12:
            A(f"s_mov_b32 m0, {s(S_MK)}")
            A(f"s_add_u32 {s(S_T)}, {s(S_KS)}, 3072")
            for j in range(3):
                A(f"buffer_load_dwordx4 {v(V_L16)}, {s(S_WS,4)}, {s(S_KS)} offen offset:{j*1024} sc1 lds")
            A(f"s_add_u32 m0, {s(S_MK)}, 3072")
            A("s_nop 0")
            for j in range(3):
                A(f"buffer_load_dwordx4 {v(V_L16)}, {s(S_WS,4)}, {s(S_T)} offen offset:{j*1024} sc1 lds")
    else:
        A(f"s_mov_b32 m0, {s(S_MK)}")
        A("s_nop 0")
        for j in range(4):
            A(f"buffer_load_dwordx4 {v(V_L16)}, {s(S_WS,4)}, {s(S_KS)} offen offset:{j*1024} sc1 lds")
    A(f"s_add_u32 {s(S_KS)}, {s(S_KS)}, {NH*12288}")
    A(f"s_add_u32 {s(S_KN)}, {s(S_KN)}, 1")
    A(f"s_min_u32 {s(S_KN)}, {s(S_KN)}, {NSEG}")

def phaseB_items(A, isV, cls, flags):
    L = [f"s_mov_b32 m0, {s(S_MU)}"]
    for j in range(4):
        L.append(f"s_add_u32 {s(S_T4)}, {s(S_US)}, {j*(40960-1024)}")
        L.append(f"buffer_load_dwordx4 {v(V_L16)}, {s(S_WS,4)}, {s(S_T4)} offen offset:{j*1024} sc1 lds")
    if isV:
        L.append(f"s_add_u32 m0, {s(S_MU)}, 4096")
        L.append(f"s_add_u32 {s(S_T4)}, {s(S_US2)}, {2*40960-1024}")
        L.append(f"buffer_load_dwordx4 {v(V_UH)}, {s(S_WS,4)}, {s(S_US2)} offen sc1 lds")
        L.append(f"buffer_load_dwordx4 {v(V_UH)}, {s(S_WS,4)}, {s(S_T4)} offen offset:1024 sc1 lds")
    if flags and cls == 0:
        if isV:
            an = A.newlabel("an"); ab = A.newlabel("ab")
            STUBS.append([an + ":", f"s_cmp_lt_u32 {s(S_STEP)}, 2", f"s_cbranch_scc1 {ab}", f"v_mov_b32 {v(V_TMPV)}, 32", "s_mov_b64 exec, 1",
                          f"buffer_atomic_add {v(V_TMPV)}, {v(V_ZERO)}, {s(S_WS,4)}, {s(S_ARR)} offen sc1", "s_mov_b64 exec, -1", f"s_branch {ab}"])
            L.append("\n".join([f"s_cmp_eq_u32 {s(S_C)}, 16", f"s_cbranch_scc1 {an}", ab + ":"]))
        else:
            L += [f"s_add_u32 {s(S_T)}, {s(S_FLO)}, {FL_KM}", f"s_sub_u32 {s(S_T2)}, {s(S_STEP)}, 0", f"s_max_i32 {s(S_T2)}, {s(S_T2)}, 0", f"v_mov_b32 {v(V_FL)}, {s(S_T2)}"]
            L.append("\n".join(["s_mov_b64 exec, 1", f"buffer_store_dword {v(V_FL)}, {v(V_ZERO)}, {s(S_WS,4)}, {s(S_T)} offen sc0 sc1", "s_mov_b64 exec, -1"]))
    return L

def km_export(A, E, tmp):
    E(ds("KX", f"ds_read_b128 {v(tmp,4)}, {v(126)} offset:{S_LKM-HI-1024}"))
    E(need("KX"))
    A(f"buffer_store_dwordx4 {v(tmp,4)}, {v(V_T7)}, {s(S_WS,4)}, {s(S_KMX)} offen sc0 sc1")

ZF = 48
def z_poison(A):
    A(f"s_add_u32 {s(S_T2)}, {s(S_ZP)}, {4*8192}")
    dual(A, [f"buffer_store_dwordx4 {v(V_POI,4)}, {v(V_ZS4)}, {s(S_WS,4)}, {s(S_ZP)} offen",
             f"buffer_store_dwordx4 {v(V_POI,4)}, {v(V_ZS4)}, {s(S_WS,4)}, {s(S_T2)} offen",
             f"buffer_store_dwordx2 {v(V_POI,2)}, {v(V_ZS2)}, {s(S_WS,4)}, {s(S_ZP)} offen"])
def p_poison(A, slot):
    A(f"s_add_u32 {s(S_T)}, {s(slot)}, {s(S_PST)}"); A(f"s_add_u32 {s(S_T2)}, {s(slot)}, {s(S_PSM)}")
    dual(A, [f"s_mov_b64 exec, {s(S_MA,2)}",
             f"buffer_store_dwordx4 {v(V_POI,4)}, {v(V_L16)}, {s(S_WS,4)}, {s(S_T)} offen",
             f"s_mov_b64 exec, {s(S_MB,2)}",
             f"buffer_store_dwordx2 {v(V_POI,2)}, {v(V_PM)}, {s(S_WS,4)}, {s(S_T2)} offen",
             "s_mov_b64 exec, -1"])
def z_export(A, isV, zf, woff):
    A(f"s_add_u32 {s(S_T)}, {s(S_EXP)}, {s(S_ZL)}")
    if woff: A(f"s_sub_u32 {s(S_T)}, {s(S_T)}, {s(woff)}")
    A(f"buffer_store_dwordx4 {v(zf,4)}, {v(V_L16)}, {s(S_WS,4)}, {s(S_T)} offen sc0 sc1")
    if isV:
        A(f"s_add_u32 {s(S_T)}, {s(S_EXP)}, {s(S_ZL2)}")
        if woff: A(f"s_sub_u32 {s(S_T)}, {s(S_T)}, {s(woff)}")
        A(f"s_mov_b64 exec, {s(S_MA,2)}")
        A(f"buffer_store_dwordx4 {v(zf+4,4)}, {v(V_ZH)}, {s(S_WS,4)}, {s(S_T)} offen sc0 sc1")
        A("s_mov_b64 exec, -1")
def window(A, E, isV, cls, flags):
    LZ = (V_LVX if isV else S_LK + 12288) - HI
    last = A.newlabel("wz")
    if WDEL: A(f"s_sleep {WDEL}")
    z_export(A, isV, ZF, None)
    if cls != 3:
        A(f"s_cmp_lg_u32 {s(S_WAVE)}, {3 if isV else 1}"); A(f"s_cbranch_scc1 {last}")
        for t in range(2 if isV else 1): E(ds("zs", f"ds_read_b128 {v(AF+4*t,4)}, {v(V_HI)} offset:{LZ+t*1024}"))
        E(need("zs"))
        A(f"s_lshl_b32 {s(S_T2)}, {s(S_WAVE)}, 10")
        z_export(A, isV, AF, S_T2)
        A.label(last)
    if flags:
        u_check(A, 1)
        if not isV: k_check(A)

def qk_tr(isq, ks, dst, tag):
    b = 0 if isq else 3072
    if ks < 4: vb, o0, o1 = V_TRA, 48*ks*16, (48*ks+16)*16
    else: vb, o0, o1 = V_TRB, (96*(ks-4)+32)*16, (96*(ks-4)+36)*16
    return [ds(tag, f"ds_read_b64_tr_b16 {v(dst,2)}, {v(vb)} offset:{b+o0}"),
            ds(tag, f"ds_read_b64_tr_b16 {v(dst+2,2)}, {v(vb)} offset:{b+o1}")]

def xlane(op, r, t, which):
    return [f"v_mov_b32 {v(t)}, {v(r)}", "s_nop 1", f"v_permlane{which}_swap_b32 {v(r)}, {v(t)}", f"{op} {v(r)}, {v(r)}, {v(t)}"]

def pb_tasks(items, e, d, span, step=4):
    if PBMODE == 0: return [[e, d, items]]
    if PBMODE == 1:
        STUBS.clear()
        return [[e, d, [it for it in items if isinstance(it, str) and 'buffer_' not in it]]]
    if DROP & 1: items = [it for it in items if not (isinstance(it, str) and it.endswith(" lds"))]
    if DROP & 2: items = [it for it in items if not (isinstance(it, str) and it.startswith("buffer_store") and "sc1" in it)]
    groups = []; cur = []
    for it in items:
        cur.append(it)
        if isinstance(it, str) and 'buffer_' in it: groups.append(cur); cur = []
    if cur: groups.append(cur)
    n = len(groups); out = []
    for i, g in enumerate(groups):
        st = e + i*step
        out.append([st, st+step, g])
    return out

def s_stage(A, E, cls, flags):
    S0, S1, S2, S3 = ACC, ACC+4, ACC+8, ACC+12
    accs = [S0, S1, S2, S3, S0, S1]
    ard = lambda k: ds(f"A{k}", f"ds_read_b128 {v(AF+4*k,4)}, {v(V_HI)} offset:{k*1024}")
    for k in range(3): E(ard(k))
    main = []
    for f in ORD_S:
        t, k = divmod(f, 10)
        main.append(([need(f"A{k}")] if t == 0 else []) + smf(f, accs[t], AF+4*k))
    T = refill_tasks() + [[max(k-3, 4 if (k >= 7 and PL_X == 'S') else 0), max(k-1, 2*k-5), [ard(k)]] for k in range(3, 10)]
    pb = phaseB_items(A, False, cls, flags)
    if PL_K == 'S' and cls != 0:
        pb += [f"s_xor_b32 {s(S_MK)}, {s(S_MK)}, {S_LK ^ (S_LK + 16384)}", f"s_mov_b32 m0, {s(S_MK)}", f"s_add_u32 {s(S_KN)}, {s(S_KN)}, 1"]
        pb += [f"buffer_load_dwordx4 {v(V_L16)}, {s(S_WS,4)}, {s(S_KS)} offen offset:{j*1024} sc1 lds" for j in range(4)]
        pb += [f"s_add_u32 {s(S_KS)}, {s(S_KS)}, {NH*12288}", f"s_min_u32 {s(S_KN)}, {s(S_KN)}, {NSEG}"]
    T += pb_tasks(pb, 2 + PBSTG*{0:0,12:1,3:2}[cls], 22, 56, PBSTEP if cls else PBSTEP0)
    T.append([0, 28, zero(S3)])
    if HINTB == 4 and cls == 3: T.append([GIDX-3, GIDX+1, first_text(A, 0, 16, XS, XS+1)])
    if HINTB in (3, 4) and cls == 0:
        B = Asm(); B.uid = A.uid + 500000; A.uid += 10
        hint_store(B, 0, V_TMP1 if not TRACE else 127)
        T.append([HBIDX-3, HBIDX+1, [l.strip() for l in B.lines[:4]] + ["\n".join(B.lines[4:])]])
    T += stage_side(A, False, cls)
    T += trace_task()
    T.append([21, 33, post_s(S0, 0, "qw") + post_s(S1, 256, "qw") + zero(S0) + zero(S1)])
    T.append([32, 36, post_s(S2, 512, "qw")])
    T.append([37, 38, [need("qw"), "s_barrier"]])
    T.append([42, 58, post_s(S3, 3072, "kw")])
    if cls == 12:
        SA = XS+16
        R = {0: (XS, XS+4), 1: (XS+8, XS+12), 2: (AF, AF+4), 3: (AF+8, AF+12), 4: (XS, XS+4), 5: (XS+8, XS+12)}
        def rd(ks): return qk_tr(True, ks, R[ks][0], f"X{ks}") + [ds(f"X{ks}", f"ds_read_b128 {v(R[ks][1],4)}, {v(V_KR)} offset:{ks*1024}")]
        def mm(ks, first=False): return [need(f"X{ks}"), f"v_mfma_f32_16x16x32_bf16 {v(SA,4)}, {v(R[ks][1],4)}, {v(R[ks][0],4)}, {'0' if first else v(SA,4)}"]
        T.append([38, 42, rd(0)])
        T.append([38, 45, rd(1)])
        T.append([45, 49, mm(0, True) + rd(4)])
        T.append([44, 48, rd(2)])
        T.append([48, 52, mm(1) + rd(5)])
        T.append([48, 54, rd(3)])
        T.append([52, 54, mm(2)])
        T.append([54, 55, mm(4)])
        T.append([55, 56, mm(5)])
        T.append([56, 57, mm(3)])
    if cls == 0:
        for ks in range(5): T.append([38, 45+2*ks, qk_tr(True, ks, XS+4*ks, f"m{ks}")])
        T.append([42, 58, qk_tr(True, 5, AF, "m5")])
    schedule(E, main, T, maxn=4)
    if cls == 12:
        E(ds("sx", f"ds_write_b128 {v(126)}, {v(XS+16,4)} offset:{S_LSX-HI-1024}"))
        if VAR == 1: A(f"v_xor_b32 {v(V_KR)}, {S_LK ^ (S_LK + 16384)}, {v(V_KR)}")
        A("s_nop 3")
    else:
        A("s_nop 4")
    pa = post_s(S0, 3072+256, "kw"); pb_ = post_s(S1, 3072+512, "kw")
    for it in pa + pb_: E(it)
    if HINTB == 5 and cls == 0: hint_store(A, 0, 68)
    if HINTB == 6 and cls == 0: ts_hint_store(A, E, 68)
    tr(A, 1)
    E.drain()
    A("s_barrier")

def dppadd(r): return f"v_add_f32_dpp {v(r)}, {v(r)}, {v(r)} row_ror:8 row_mask:0xf bank_mask:0xf"

def s_tail(A, E):
    KF, SX, SM, t0, t1 = TMP, 44, 52, 56, 57
    mx, sm, m = 58, 59, 62
    dpp = " row_ror:8 row_mask:0xf bank_mask:0xf"
    E(ds("sx", f"ds_read_b128 {v(SX,4)}, {v(V_SXR)}"))
    for ks in range(6):
        for it in qk_tr(False, ks, KF+4*ks, f"m{ks}"): E(it)
    if HINTB == 2: hint_store(A, 0, 60)
    X = [need("sx"),
         f"v_max3_f32 {v(mx)}, {v(SX)}, {v(SX+1)}, {v(SX+2)}",
         f"v_max_f32 {v(mx)}, {v(mx)}, {v(SX+3)}", "s_nop 1",
         f"v_max_f32_dpp {v(mx)}, {v(mx)}, {v(mx)}" + dpp]
    X += xlane("v_max_f32", mx, t0, 16) + xlane("v_max_f32", mx, t0, 32)
    main = [[]] + [[need(f"m{ks}"), f"v_mfma_f32_16x16x32_bf16 {v(SM,4)}, {v(KF+4*ks,4)}, {v(XS+4*ks if ks < 5 else AF,4)}, {'0' if ks==0 else v(SM,4)}"] for ks in range(6)]
    for it in X[:9]: E(it)
    schedule(E, main, [[0, 99, X[9:]]])
    A(f"s_add_u32 {s(S_T)}, {s(S_P)}, {s(S_PST)}")
    A(f"s_add_u32 {s(S_T2)}, {s(S_P)}, {s(S_PSM)}")
    A("s_waitcnt vmcnt(0)" if TAILW or VAR == 2 else wait_poison(A))
    tr(A, 9)
    A("s_nop 4")
    A(f"v_max3_f32 {v(m)}, {v(SM)}, {v(SM+1)}, {v(SM+2)}")
    A(f"v_max3_f32 {v(m)}, {v(m)}, {v(SM+3)}, {v(mx)}")
    for l in xlane("v_max_f32", m, t0, 16): A(l)
    A(f"v_mul_f32 {v(m)}, {s(S_SC)}, {v(m)}")
    R = [SX, SX+1, SX+2, SX+3, SM, SM+1, SM+2, SM+3]
    for r in R: A(f"v_fma_f32 {v(r)}, {v(r)}, {s(S_SC)}, -{v(m)}")
    for r in R: A(f"v_exp_f32 {v(r)}, {v(r)}")
    A(f"v_add_f32 {v(sm)}, {v(SX)}, {v(SX+1)}")
    A(f"v_add_f32 {v(t0)}, {v(SX+2)}, {v(SX+3)}")
    A(f"v_add_f32 {v(t1)}, {v(SM)}, {v(SM+1)}")
    A(f"v_add_f32 {v(m)}, {v(SM+2)}, {v(SM+3)}")
    A(f"v_add_f32 {v(sm)}, {v(sm)}, {v(t0)}")
    A(f"v_add_f32 {v(t1)}, {v(t1)}, {v(m)}")
    A(f"v_fmac_f32 {v(sm)}, 0x3e800000, {v(t1)}")
    A("s_nop 1")
    A(f"v_add_f32_dpp {v(sm)}, {v(sm)}, {v(sm)}" + dpp)
    for l in xlane("v_add_f32", sm, t0, 16) + xlane("v_add_f32", sm, t0, 32): A(l)
    A(f"v_rcp_f32 {v(sm)}, {v(sm)}")
    A(f"s_cmp_eq_u32 {s(S_FAST)}, 0")
    for r in R[:4]: A(f"v_mul_f32 {v(r)}, {v(r)}, {v(sm)}")
    for i in range(2): A(f"v_cvt_pk_bf16_f32 {v(64+i)}, {v(SX+2*i)}, {v(SX+2*i+1)}")
    dual(A, [f"buffer_store_dwordx2 {v(64,2)}, {v(V_PX)}, {s(S_WS,4)}, {s(S_T)} offen"])
    for r in R[4:]: A(f"v_mul_f32 {v(r)}, {v(r)}, {v(sm)}")
    for i in range(2): A(f"v_cvt_pk_bf16_f32 {v(SM+i)}, {v(SM+2*i)}, {v(SM+2*i+1)}")
    dual(A, [f"s_mov_b64 exec, {s(S_MB,2)}",
             f"buffer_store_dwordx2 {v(SM,2)}, {v(V_PM)}, {s(S_WS,4)}, {s(S_T2)} offen",
             "s_mov_b64 exec, -1"])
    if HINTB == 1: hint_store(A, 0, 56)

def v_stage(A, E, cls, flags):
    S = [ACC, ACC+4, ACC+8, ACC+12, 112, 116]
    ard = lambda k: ds(f"A{k}", f"ds_read_b128 {v(AF+4*k,4)}, {v(V_HI)} offset:{k*1024}")
    for k in range(3): E(ard(k))
    main = []
    for f in ORD_V[:30]:
        t, k = divmod(f, 10)
        main.append(([need(f"A{k}")] if t == 0 else []) + smf(f, S[t], AF+4*k))
    RT = refill_tasks()
    T = [t for t in RT if t[0] < 29] + [[max(k-3, 4 if (k >= 7 and PL_X == 'S') else 0), max(k-1, 2*k-5), [ard(k)]] for k in range(3, 10)]
    PB = pb_tasks(phaseB_items(A, True, cls, flags), 2 + PBSTG*{0:0,12:1,3:2}[cls], 24, 58, PBSTEPV)
    T += [t for t in PB if t[0] < 28]
    T.append([0, 20, zero(S[3]) + zero(S[4]) + zero(S[5])])
    T += stage_side(A, True, cls)
    T += trace_task()
    T.append([21, 99, post_v(S[0], 0, "vw") + post_v(S[1], 256, "vw") + zero(S[0])])
    schedule(E, main, T, maxn=4)
    for l in zero(S[1]) + zero(AF+12) + zero(AF+16): A(l)
    A("s_nop 1")
    for it in post_v(S[2], 512, "vw"): E(it)
    for it in RT[5][2]: E(it)
    for l in zero(AF+20) + zero(AF+24) + zero(S[2]): A(l)
    E.need("vw")
    A("s_barrier")
    for kk in range(3):
        for h in range(2):
            E(ds(f"B{kk}", f"ds_read_b64_tr_b16 {v(AF+4*kk+2*h,2)}, {v(V_TRA)} offset:{(32*kk+4*h)*32}"))
    SS = [S[3], S[4], S[5], S[0], S[1], S[2], AF+12, AF+16, AF+20, AF+24]
    sa = lambda t: SS[t]
    main = []
    for t in range(10):
        for kk in range(3):
            main.append(([need(f"B{kk}")] if t == 0 else []) + smf(30 + 3*t + kk, sa(t), AF+4*kk))
    T = [[t[0]-30, t[1]-30, t[2]] for t in RT if t[0] > 29]
    T += [[max(t[0]-30, 0), max(t[1]-30, 2), t[2]] for t in PB if t[0] >= 28]
    if HINTB == 4 and cls == 3: T.append([max(GIDXV-3, 0), GIDXV+1, first_text(A, 0, 16, 111, 11)])
    def fin(t):
        L = post(sa(t), XS+t)
        if t in (3, 7):
            q = XS + t - 3
            L += ["s_nop 0"]
            L += [f"v_permlane32_swap_b32 {v(q)}, {v(q+2)}", f"v_permlane32_swap_b32 {v(q+1)}, {v(q+3)}", "s_nop 1",
                  f"v_permlane16_swap_b32 {v(q)}, {v(q+1)}", f"v_permlane16_swap_b32 {v(q+2)}, {v(q+3)}"]
            L += [f"s_add_u32 {s(S_T)}, {s(S_Z)}, {(t//4)*4*8192}\n" + dual_text(A, [f"buffer_store_dwordx4 {v(q,4)}, {v(V_ZS4)}, {s(S_WS,4)}, {s(S_T)} offen"])]
        if t == 9:
            L += ["s_nop 1", f"v_permlane16_swap_b32 {v(XS+8)}, {v(XS+9)}"]
            L += [dual_text(A, [f"buffer_store_dwordx2 {v(XS+8,2)}, {v(V_ZS2)}, {s(S_WS,4)}, {s(S_Z)} offen"])]
        return L
    chain = []
    for t in range(8):
        T.append([3*t+2+3, 40+t, fin(t)])
    schedule(E, main, T, cap=VCAP, maxn=5)
    for it in fin(8): E(it)
    A(wait_poison(A, fin=True) if (cls == 0 and VAR == 1) else "s_nop 0")
    A("s_nop 2")
    for it in fin(9): E(it)
    tr(A, 1)

S_A1 = 10; S_B1_ = 3
def reduce_stage(A, E, isV, cls, flags):
    PF, mt = AF, 56
    UL = [76,80,84,88,92,96,60,64] if isV else [100,104,108,112]
    D = [68, 72]; DO = [40, 44]
    nt = 2 if isV else 1
    if VAR == 1 and PL_K == 'T' and not isV: side_ops(A, E, isV, cls, flags, 'T')
    A(f"s_add_u32 {s(S_T)}, {s(S_P)}, {s(S_PLX)}")
    A(f"s_add_u32 {s(S_T2)}, {s(S_P)}, {s(S_PLM)}")
    A(f"s_add_u32 {s(S_T3)}, {s(S_Z)}, {s(S_ZL)}")
    if isV: A(f"s_add_u32 {s(S_T4)}, {s(S_Z)}, {s(S_ZL2)}")
    for l in zero(PF+8) + (zero(ZF+4) if isV else []): A(l)
    if PL_K == 'B' and not isV and cls != 0: A(f"s_xor_b32 {s(S_MK)}, {s(S_MK)}, {S_LK ^ (S_LK + 16384)}")
    mp_init(A, ["-1", "-1", s(S_MA,2), "-1"] + ([s(S_MA,2)] if isV else []))
    zl = [(ZF, f"buffer_load_dwordx4 {v(ZF,4)}, {v(V_L16)}, {s(S_WS,4)}, {s(S_T3)} offen sc1")]
    if isV: zl.append((ZF+4, f"buffer_load_dwordx4 {v(ZF+4,4)}, {v(V_ZH)}, {s(S_WS,4)}, {s(S_T4)} offen sc1"))
    def u_reads():
        for j in range(4): E(ds("U", f"ds_read_b128 {v(UL[j],4)}, {v(V_UR)} offset:{j*1024}"))
        if isV:
            for j in range(4): E(ds("U", f"ds_read_b128 {v(UL[4+j],4)}, {v(V_UHR)} offset:{(j>>1)*1024+(j&1)*128}"))
    def zpoi():
        A(f"s_add_u32 {s(S_A1)}, {s(S_ZP)}, {4*8192}")
        dual(A, [f"buffer_store_dwordx4 {v(V_POI,4)}, {v(V_ZS4)}, {s(S_WS,4)}, {s(S_ZP)} offen",
                 f"buffer_store_dwordx4 {v(V_POI,4)}, {v(V_ZS4)}, {s(S_WS,4)}, {s(S_A1)} offen",
                 f"buffer_store_dwordx2 {v(V_POI,2)}, {v(V_ZS2)}, {s(S_WS,4)}, {s(S_ZP)} offen"])
    early = False
    if PREU and cls != 3:
        if isV: zpoi()
        A(f"s_waitcnt vmcnt({5 if isV else (2 if cls == 0 else 0)})")
        u_reads()
    if PL_K == 'B' and flags and cls == 3 and not isV:
        A(f"s_mov_b32 {s(S_B1_)}, {s(S_T3)}"); k_check(A); A(f"s_mov_b32 {s(S_T3)}, {s(S_B1_)}")
    tr(A, 2)
    if HINTB == 6:
        if cls == 3:
            ts_poll(A, 57, 58, 59, 10)
            if XHINT and isV: xstore(A)
            if PREU == 1:
                u_reads()
                if isV: zpoi()
            ts_wait(A, E, S_TD, TB)
        if cls == 0 and not isV and DELAYBS: A(f"s_sleep {DELAYBS}")
        A("s_barrier")
    elif HINTB == 4:
        if cls == 3:
            if isV: gate(A, 0, 16, 110, 11 if TRACE else 111, 59, 10, 3 if GIDXV < 12 else 2, DELAYB, DFAILB)
            else: gate(A, 0, 16, XS, XS+1, XS+2, 10, 0, 0, DFAILB)
        if cls == 0 and not isV and DELAYBS: A(f"s_sleep {DELAYBS}")
        A("s_barrier")
    elif HINTB:
        if cls == (0 if HINTB == 1 else 3):
            hint_poll(A, 0, 16, 57, 58, 59, 10)
            if HINTA == 4:
                A(f"s_memtime {s(FPS[5],2)}"); A("s_waitcnt lgkmcnt(0)"); E.reset()
                A(f"s_add_u32 {s(S_TD)}, {s(FPS[5])}, {CWAIT - (CVADJ if isV else 0)}")
            db = DELAYB - (DBVADJ if isV else 0)
            if db > 0: A(f"s_sleep {db}")
        if cls == 0 and not isV and DELAYBS: A(f"s_sleep {DELAYBS}")
        A("s_barrier")
    elif not isV:
        A("s_barrier")
        if DELAYBS: A(f"s_sleep {DELAYBS}")
    elif DELAYB: A(f"s_sleep {DELAYB}")
    if STAMP == 1: tick(A, 8)
    tr(A, 3)
    gl = [(PF+4*j, f"buffer_load_dwordx4 {v(PF+4*j,4)}, {v(V_L16)}, {s(S_WS,4)}, {s(S_T)} offen offset:{j*1024} sc1") for j in range(2)]
    gl.append((PF+8, f"buffer_load_dwordx4 {v(PF+8,4)}, {v(V_PLD)}, {s(S_WS,4)}, {s(S_T2)} offen sc1"))
    gl += zl
    lab = A.newlabel("GB")
    loop_top(A, lab, 11)
    mp_issue(A, gl)
    nz = 0
    if XHINT and cls == 3 and isV and HINTB != 6:
        xstore(A); nz += 1
    if not PREU or (PREU == 2 and cls == 3):
        A(f"s_waitcnt vmcnt({len(gl)+nz})")
        u_reads()
        if isV: zpoi(); nz += 3
    if PL_K == 'B' and not isV and cls != 0:
        A(f"s_mov_b32 m0, {s(S_MK)}")
        A("s_nop 0")
        for j in range(4): A(f"buffer_load_dwordx4 {v(V_L16)}, {s(S_WS,4)}, {s(S_KS)} offen offset:{j*1024} sc1 lds")
        nz += 4
    if XHINT == 2 and cls == 3:
        hint_first(A, 128, 1, 57, 58, True); A("s_mov_b64 exec, -1"); nz += 1
    def mm(d, a_, b_, first): return f"v_mfma_f32_16x16x32_bf16 {v(d,4)}, {v(a_,4)}, {v(b_,4)}, {'0' if first else v(d,4)}"
    chk = mp_check(gl, 32); n_ = len(gl)
    A(f"s_waitcnt vmcnt({nz + n_ - 2}) lgkmcnt(0)"); E.reset()
    xs = []
    for t in range(nt):
        for j in range(2): xs += [mm(DO[t], UL[4*t+2*j+1], PF+4*j, j == 0), mm(D[t], UL[4*t+2*j], PF+4*j, j == 0)]
    fill = [chk[0], chk[1], chk[n_], chk[n_+1]]
    for m_ in xs:
        A(m_)
        if fill: A(fill.pop(0))
    A(f"s_waitcnt vmcnt({nz})")
    A(mm(D[0], ZF, PF+8, False))
    rest = chk[2:n_] + chk[n_+2:]
    for l in rest[:2]: A(l)
    if isV: A(mm(D[1], ZF+4, PF+8, False))
    for l in rest[2:]: A(l)
    mp_close(A, len(gl), lab)
    main = []
    tr(A, 4)
    if PL_K == 'B' and not isV and cls != 0:
        A(f"s_add_u32 {s(S_KS)}, {s(S_KS)}, {NH*12288}"); A(f"s_add_u32 {s(S_KN)}, {s(S_KN)}, 1"); A(f"s_min_u32 {s(S_KN)}, {s(S_KN)}, {NSEG}")
    add0 = [f"v_add_f32_dpp {v(D[0]+i)}, {v(DO[0]+i)}, {v(D[0]+i)} row_ror:8 row_mask:0xf bank_mask:0xf" for i in range(4)]
    for k_, m_ in enumerate(main[5:]):
        A(m_[0])
        if k_ >= 3:
            A(add0.pop(0)); A(add0.pop(0))
    if HINTA == 2 and cls == 0: hint_store(A, 128, 57)
    if HINTA == 5 and cls == 3 and XHINT:
        A(f"v_mov_b32 {v(57)}, {s(S_XR)}"); A("s_mov_b64 exec, 1")
        A(f"buffer_load_dword {v(58)}, {v(57)}, {s(S_WS,4)}, {s(S_HP)} offen offset:128 sc1"); A("s_mov_b64 exec, -1")
    if HINTA in (2, 3, 4) and cls == 3 and XHINT == 1:
        hint_first(A, 128, 32 if HINTA == 2 else 1, 57, 58, True); A("s_mov_b64 exec, -1")
    A("s_nop 0")
    for l in add0: A(l)
    if isV:
        for i in range(4):
            A(f"v_add_f32_dpp {v(D[0]+i)}, {v(D[1]+i)}, {v(DO[1]+i)} row_ror:8 row_mask:0xf bank_mask:0xc")
    E(ds("r", f"ds_write_b128 {v(V_RW if isV else 126)}, {v(D[0],4)} offset:{0 if isV else S_LRED-HI}"))
    E.drain()
    A("s_barrier")

def preload(A, E, z=True):
    for j in range(3):
        for it in wl_read(j): E(it)
    for k in range(3 if z else 0):
        for l in zero(ACC+4*k): A(l)

def gatherA(A, E, isV, cls, lab, flags):
    mt = 72
    vtw = V_TW if isV else V_PLD
    def advance():
        A(f"s_add_u32 {s(S_STEP)}, {s(S_STEP)}, 1")
        for c_, n_, p_ in ((S_Z,S_ZN,S_ZP),(S_P,S_PN,S_PP)):
            A(f"s_mov_b32 {s(S_T)}, {s(c_)}"); A(f"s_mov_b32 {s(c_)}, {s(n_)}"); A(f"s_mov_b32 {s(n_)}, {s(p_)}"); A(f"s_mov_b32 {s(p_)}, {s(S_T)}")
        A(f"s_mov_b32 {s(S_T)}, {s(S_L)}"); A(f"s_mov_b32 {s(S_L)}, {s(S_LN)}"); A(f"s_mov_b32 {s(S_LN)}, {s(S_T)}")
        A(f"s_add_u32 {s(S_US)}, {s(S_US)}, {40*32768}")
        if isV: A(f"s_add_u32 {s(S_US2)}, {s(S_US2)}, {40*32768}")
        A(f"s_add_u32 {s(S_EXP)}, {s(S_EXP)}, 327680")
        A(f"s_add_u32 {s(S_ARR)}, {s(S_ARR)}, 128")
        if not isV: A(f"s_add_u32 {s(S_KMX)}, {s(S_KMX)}, {NH*3072}")
        preload(A, E)
    if cls == 0:
        st = 1024
        for w in range(4): E(ds("f", f"ds_read_b128 {v(AF+4*w,4)}, {v(V_FINR)} offset:{w*st}"))
        E.drain()
        for i in range(4): A(f"v_add_f32 {v(AF+i)}, {v(AF+i)}, {v(AF+4+i)}")
        for i in range(4): A(f"v_add_f32 {v(AF+8+i)}, {v(AF+8+i)}, {v(AF+12+i)}")
        for i in range(4): A(f"v_add_f32 {v(AF+i)}, {v(AF+i)}, {v(AF+8+i)}")
        A(f"s_mov_b64 exec, {s(S_MB if isV else S_MA,2)}")
        A(f"buffer_store_dwordx4 {v(AF,4)}, {v(vtw)}, {s(S_WS,4)}, {s(S_RW)} offen sc0 sc1")
        A("s_mov_b64 exec, -1")
        tick(A, 3)
        advance()
        if DELAY0: A(f"s_sleep {DELAY0}")
        A(f"s_mov_b64 exec, {s(S_MB if isV else S_MA,2)}")
        labt = A.newlabel("GT")
        loop_top(A, labt, 13)
        A(f"buffer_load_dwordx4 {v(AF+4,4)}, {v(vtw)}, {s(S_WS,4)}, {s(S_RR)} offen sc1")
        A("s_waitcnt vmcnt(0)")
        for l in maxtree(range(AF+4, AF+8), mt): A(l)
        for i in range(4): A(f"v_add_f32 {v(AF+8+i)}, {v(AF+i)}, {v(AF+4+i)}")
        A(f"v_cmp_eq_u32 vcc, -1, {v(mt)}")
        for i in range(2): A(f"v_cvt_pk_bf16_f32 {v(AF+8+i)}, {v(AF+8+2*i)}, {v(AF+9+2*i)}")
        retry(A, labt, 13)
        dual(A, [f"buffer_store_dwordx2 {v(AF+8,2)}, {v(V_FINRM)}, {s(S_WS,4)}, {s(S_L)} offen",
                 f"buffer_store_dwordx2 {v(V_POI,2)}, {v(V_FINRM)}, {s(S_WS,4)}, {s(S_LN)} offen"])
        A("s_mov_b64 exec, -1")
        if not isV: p_poison(A, S_PN)
        A(f"s_add_u32 {s(S_RR)}, {s(S_RR)}, 40960")
        A(f"s_add_u32 {s(S_RW)}, {s(S_RW)}, 40960")
    else:
        tick(A, 3)
        window(A, E, isV, cls, flags)
        advance()
    A("s_barrier")
    tick(A, 4)
    if (DELAYLV if isV else DELAYL): A(f"s_sleep {DELAYLV if isV else DELAYL}")
    G = AF + 12
    A(f"s_add_u32 {s(S_T)}, {s(S_L)}, 4096")
    A(f"s_add_u32 {s(S_T2)}, {s(S_L)}, {s(S_G3)}")
    A(f"v_mov_b64 {v(G+8,2)}, 0"); A(f"v_mov_b64 {v(G+10,2)}, 0")
    if STAMP == 1: tick(A, 8)
    loop_top(A, lab, 12)
    A(f"buffer_load_dwordx4 {v(G,4)}, {v(V_T7)}, {s(S_WS,4)}, {s(S_L)} offen sc1")
    A(f"buffer_load_dwordx4 {v(G+4,4)}, {v(V_T7)}, {s(S_WS,4)}, {s(S_T)} offen sc1")
    A(f"s_mov_b64 exec, {s(S_M3,2)}")
    A(f"buffer_load_dwordx4 {v(G+8,4)}, {v(V_T7)}, {s(S_WS,4)}, {s(S_T2)} offen sc1")
    return lab

def gatherA2(A, E, lab):
    G = AF + 12; mt = 72
    A("s_waitcnt vmcnt(0)")
    if STAMP == 1: tick(A, 9)
    A("s_mov_b64 exec, -1")
    mtree = maxtree(range(G, G+12), mt)
    E(ds("g", f"ds_write_b128 {v(V_GA)}, {v(G,4)}"))
    for l in mtree: A(l)
    A(f"v_cmp_eq_u32 vcc, -1, {v(mt)}")
    retry(A, lab, 12)
    E(ds("g", f"ds_write_b128 {v(V_GA)}, {v(G+4,4)} offset:4096"))
    A(f"s_mov_b64 exec, {s(S_M3,2)}")
    E(ds("g", f"ds_write_b128 {v(V_G3W)}, {v(G+8,4)}"))
    A("s_mov_b64 exec, -1")
    tick(A, 5)
    E.drain()

S_OLO = 40; S_OHI = 41; S_TGT = 66
def probes(A, isV, ahead):
    A(f"v_cmp_le_u32 vcc, 32, {v(V_FL)}")
    A(f"s_add_u32 {s(S_T)}, {s(S_TGT)}, 1")
    A(f"s_max_u32 {s(S_T)}, {s(S_T)}, {s(S_KNOWN)}")
    A("s_cmp_lg_u64 vcc, 0")
    A(f"s_cselect_b32 {s(S_KNOWN)}, {s(S_T)}, {s(S_KNOWN)}")
    u_check(A, ahead)
    if not isV and PL_K != 'B': k_check(A)
    A(f"s_add_u32 {s(S_TGT)}, {s(S_KNOWN)}, 3")
    A(f"s_min_u32 {s(S_TGT)}, {s(S_TGT)}, {NSEG-1}")
    A(f"s_lshl_b32 {s(S_T)}, {s(S_TGT)}, 7")
    A(f"s_add_u32 {s(S_T)}, {s(S_T)}, {CN_U}")
    A(f"buffer_load_dword {v(V_FL)}, {v(V_ZERO)}, {s(S_WS,4)}, {s(S_T)} offen sc1")
    if not isV:
        A(f"s_add_u32 {s(S_T)}, {s(S_FLO)}, {FL_K}")
        A(f"buffer_load_dword {v(V_FKS)}, {v(V_ZERO)}, {s(S_WS,4)}, {s(S_T)} offen sc1")

def probes_text(A, isV):
    B = Asm(); B.uid = A.uid + 400000; A.uid += 10
    probes(B, isV, 1)
    return "\n".join(B.lines)
LR = 20; RR_ = 32; UP = list(range(100, 110)) + list(range(112, 120)) + [56, 57, 58, 59, 73, 74]
def ld3_list(dst, sbase, t1, t2):
    return [(dst, f"buffer_load_dwordx4 {v(dst,4)}, {v(V_T7)}, {s(S_WS,4)}, {s(sbase)} offen sc1"),
            (dst+4, f"buffer_load_dwordx4 {v(dst+4,4)}, {v(V_T7)}, {s(S_WS,4)}, {s(t1)} offen sc1"),
            (dst+8, f"buffer_load_dwordx4 {v(dst+8,4)}, {v(V_T7)}, {s(S_WS,4)}, {s(t2)} offen sc1")]
S_A1 = 10; S_A2 = 11; S_B1 = 3; S_B2 = 101
LIST_L = lambda: ld3_list(LR, S_L, S_A1, S_A2)
LIST_R = lambda: ld3_list(RR_, S_RR, S_B1, S_B2)

GSIDE = []
def advance1(A, E, isV, pre=True):
    A(f"s_add_u32 {s(S_STEP)}, {s(S_STEP)}, 1")
    for c_, n_, p_ in ((S_Z,S_ZN,S_ZP),(S_P,S_PN,S_PP)):
        A(f"s_mov_b32 {s(S_T)}, {s(c_)}"); A(f"s_mov_b32 {s(c_)}, {s(n_)}"); A(f"s_mov_b32 {s(n_)}, {s(p_)}"); A(f"s_mov_b32 {s(p_)}, {s(S_T)}")
    A(f"s_mov_b32 {s(S_T)}, {s(S_L)}"); A(f"s_mov_b32 {s(S_L)}, {s(S_LN)}"); A(f"s_mov_b32 {s(S_LN)}, {s(S_T)}")
    A(f"s_add_u32 {s(S_US)}, {s(S_US)}, {40*32768}")
    if isV: A(f"s_add_u32 {s(S_US2)}, {s(S_US2)}, {40*32768}")
    A(f"s_add_u32 {s(S_ARR)}, {s(S_ARR)}, 128")
    A(f"s_add_u32 {s(S_XW)}, {s(S_XW)}, 256"); A(f"s_add_u32 {s(S_XR)}, {s(S_XR)}, 256")
    if pre: preload(A, E, False)

def side_ops(A, E, isV, cls, flags, where):
    n = 0
    adv = where == 'G'
    if PL_X == where:
        z_export(A, isV, ZF, None); n += 2 if isV else 1
    if isV and PL_P == where:
        zs = S_ZN if adv else S_ZP
        A(f"s_add_u32 {s(S_T2)}, {s(zs)}, {4*8192}")
        dual(A, [f"buffer_store_dwordx4 {v(V_POI,4)}, {v(V_ZS4)}, {s(S_WS,4)}, {s(zs)} offen",
                 f"buffer_store_dwordx4 {v(V_POI,4)}, {v(V_ZS4)}, {s(S_WS,4)}, {s(S_T2)} offen",
                 f"buffer_store_dwordx2 {v(V_POI,2)}, {v(V_ZS2)}, {s(S_WS,4)}, {s(zs)} offen"])
        n += 3
    if cls == 0 and adv and PL_X != 'S':
        A(f"s_mov_b64 exec, {s(S_MB if isV else S_MA,2)}")
        dual(A, [f"buffer_store_dwordx2 {v(V_POI,2)}, {v(V_FINRM)}, {s(S_WS,4)}, {s(S_LN)} offen"])
        A("s_mov_b64 exec, -1")
        n += 1
        if not isV: p_poison(A, S_PN); n += 2
    if cls != 0 and not isV and PL_K == where:
        A(f"s_xor_b32 {s(S_MK)}, {s(S_MK)}, {S_LK ^ (S_LK + 16384)}")
        k_dma(A, cls); n += (6 if cls == 12 else 0) if K2W else 4
    if cls != 0 and not isV and PL_M == where:
        km_export(A, E, 44); n += 1
        A(f"s_add_u32 {s(S_KMX)}, {s(S_KMX)}, {NH*3072}")
    if flags and cls == PROBEW and PL_M == where:
        probes(A, isV, {'T': 2, 'W': 1, 'G': 1}[where]); n += 1 if isV else 2
    return n

def g1_bottom(A, E, isV, cls, flags):
    if cls == 0:
        st = 1024
        for w in range(4): E(ds("f", f"ds_read_b128 {v(AF+4*w,4)}, {v(V_FINR)} offset:{w*st}"))
        E.drain()
        for i in range(4): A(f"v_add_f32 {v(AF+i)}, {v(AF+i)}, {v(AF+4+i)}")
        for i in range(4): A(f"v_add_f32 {v(AF+8+i)}, {v(AF+8+i)}, {v(AF+12+i)}")
        for i in range(4): A(f"v_add_f32 {v(AF+i)}, {v(AF+i)}, {v(AF+8+i)}")
        for i in range(2): A(f"v_cvt_pk_bf16_f32 {v(AF+24+i)}, {v(AF+2*i)}, {v(AF+1+2*i)}")
        if WIDE:
            A(f"v_mov_b64 {v(AF+26,2)}, {v(AF+24,2)}")
            A("s_nop 1")
            A(f"v_permlane16_swap_b32 {v(AF+24)}, {v(AF+26)}")
            A(f"v_permlane16_swap_b32 {v(AF+25)}, {v(AF+27)}")
            A(f"s_mov_b32 exec_lo, {'0x0000ffff' if isV else '0x000000ff'}")
            A("s_mov_b32 exec_hi, 0x000000ff")
            A(f"buffer_store_dwordx4 {v(AF+24,4)}, {v(V_FINRR if isV else V_FINRM)}, {s(S_WS,4)}, {s(S_RW)} offen sc0 sc1")
            dual(A, [f"buffer_store_dwordx4 {v(AF+24,4)}, {v(V_FINRM)}, {s(S_WS,4)}, {s(S_LN)} offen"])
        else:
            A(f"s_mov_b64 exec, {s(S_MB if isV else S_MA,2)}")
            A(f"buffer_store_dwordx2 {v(AF+24,2)}, {v(V_FINRR if isV else V_FINRM)}, {s(S_WS,4)}, {s(S_RW)} offen sc0 sc1")
            dual(A, [f"buffer_store_dwordx2 {v(AF+24,2)}, {v(V_FINRM)}, {s(S_WS,4)}, {s(S_LN)} offen"])
        A("s_mov_b64 exec, -1")
        if HINTA == 1: hint_store(A, 128, 56)
        if not HINTA: A("s_barrier")
    nw_ = 0
    if 'W' in (PL_K, PL_M) and cls != 0 and (not isV or cls == PROBEW):
        if WDEL: A(f"s_sleep {WDEL}")
        nw_ = side_ops(A, E, isV, cls, flags, 'W')
    tick(A, 3)
    tr(A, 5)
    if HINTA and HINTA != 5 and cls == 3 and (HINTA < 3 or XHINT == 1):
        preload(A, E, False)
        if HINTA >= 3: gate(A, 128, 1, 57, 58, 59, 9, nw_, 0, DELAYH, cross=True)
        else:
            hint_poll(A, 128, 32, 57, 58, 59, 9, cross=XHINT, first=not XHINT)
            if DELAYH: A(f"s_sleep {DELAYH}")
    advance1(A, E, isV, not (HINTA and HINTA != 5 and cls == 3 and (HINTA < 3 or XHINT == 1)))
    for r in (LR+8, LR+10, RR_+8, RR_+10): A(f"v_mov_b64 {v(r,2)}, 0")
    A(f"s_add_u32 {s(S_A1)}, {s(S_L)}, 4096"); A(f"s_add_u32 {s(S_A2)}, {s(S_L)}, {s(S_G3)}")
    mp_init(A, ["-1", "-1", s(S_M3,2)]); mp_init(A, ["-1", "-1", s(S_M3,2)], 3)
    A(f"s_add_u32 {s(S_B1)}, {s(S_RR)}, 4096"); A(f"s_add_u32 {s(S_B2)}, {s(S_RR)}, {s(S_R3)}")
    if cls == 0 and HINTA == 2 and DELAY0: A(f"s_sleep {DELAY0}")
    if cls == 3 and HINTA == 5:
        if XHINT:
            A(f"s_waitcnt vmcnt({nw_})")
            A(f"v_readfirstlane_b32 {s(S_T2)}, {v(58)}")
            A(f"s_add_u32 {s(S_T)}, {s(S_TD)}, {XLATE}")
            A(f"s_cmp_lt_i32 {s(S_T2)}, {s(S_HN)}")
            A(f"s_cselect_b32 {s(S_T2)}, {s(S_T)}, {s(S_T2)}")
            if STAMP: A(f"s_addc_u32 {s(S_TS+9)}, {s(S_TS+9)}, 0")
            A(f"s_max_i32 {s(S_TD)}, {s(S_TD)}, {s(S_T2)}")
        ts_wait(A, E, S_TD, TA)
    if cls == 3 and HINTA == 4:
        lp = A.newlabel("TW"); dn = A.newlabel("TWd")
        if XHINT == 2:
            A(f"s_waitcnt vmcnt({nw_})")
            A(f"v_readfirstlane_b32 {s(S_T)}, {v(58)}")
            A(f"s_cmp_lt_i32 {s(S_T)}, {s(S_HN)}")
            A(f"s_cselect_b32 {s(S_T2)}, {XDELTA}, 0")
            A(f"s_add_u32 {s(S_TD)}, {s(S_TD)}, {s(S_T2)}")
            if STAMP: A(f"s_cmp_lt_i32 {s(S_T)}, {s(S_HN)}"); A(f"s_addc_u32 {s(S_TS+9)}, {s(S_TS+9)}, 0")
        A(f"s_memtime {s(76 if not (TRACE or STAMP) else 92,2)}"); A("s_waitcnt lgkmcnt(0)"); E.reset()
        A(f"s_sub_u32 {s(S_T)}, {s(S_TD)}, {s(76 if not (TRACE or STAMP) else 92)}")
        A(f"s_cmp_gt_i32 {s(S_T)}, 4000"); A(f"s_cselect_b32 {s(S_T)}, 0, {s(S_T)}")
        A.label(lp)
        A(f"s_sub_u32 {s(S_T)}, {s(S_T)}, {TWSTEP}")
        A(f"s_cmp_gt_i32 {s(S_T)}, 0")
        A(f"s_cbranch_scc1 {lp}")
    if cls == 0 and HINTA >= 3 and (DELAY0V if isV else DELAY0): A(f"s_sleep {DELAY0V if isV else DELAY0}")
    if cls != 0 or isV: tr(A, 9)
    if cls != 0 or HINTA: A("s_barrier")
    tick(A, 4)
    d = (DELAYLV if isV else DELAYL) - (2 if cls == 0 and not HINTA else 0)
    if d: A(f"s_sleep {d}")
    if STAMP == 1: tick(A, 8)
    tr(A, 6)

def nside(isV, cls, flags):
    B = Asm(); n0 = len(STUBS)
    n = side_ops(B, Emit(B), isV, cls, flags, 'G')
    del STUBS[n0:]
    return n

def g1_top(A, E, isV, cls, flags):
    mt = 72
    unp = []
    for j in range(12):
        unp += [f"v_lshlrev_b32 {v(UP[2*j])}, 16, {v(LR+j)}", f"v_and_b32 {v(UP[2*j+1])}, 0xffff0000, {v(LR+j)}"]
    TM = [60, 61, 62, 63, 64, 65, 66, 67]; OUT = 68
    lab = A.newlabel("GA")
    loop_top(A, lab, 12)
    mp_issue(A, LIST_L() + LIST_R())
    nx = side_ops(A, E, isV, cls, flags, 'G')
    A(f"s_waitcnt vmcnt({3+nx})")
    tr(A, 7)
    for l in mp_check(LIST_L(), 72) + unp: A(l)
    for f in range(3):
        A(f"s_waitcnt vmcnt({2-f+nx})")
        if f == 2: tr(A, 8)
        A(f"v_max_u32 {v(72)}, {v(RR_+4*f)}, {v(RR_+4*f+2)}")
        for j in range(4):
            A(f"v_dot2_f32_bf16 {v(TM[2*j])}, {v(RR_+4*f+j)}, {s(S_OLO)}, {v(UP[8*f+2*j])}")
            A(f"v_dot2_f32_bf16 {v(TM[2*j+1])}, {v(RR_+4*f+j)}, {s(S_OHI)}, {v(UP[8*f+2*j+1])}")
        A(f"v_cmp_eq_u32 {s(FPS[3+f],2)}, -1, {v(72)}")
        o = OUT if f != 1 else 44
        for j in range(4):
            A(f"v_cvt_pk_bf16_f32 {v(o+j)}, {v(TM[2*j])}, {v(TM[2*j+1])}")
        if f == 2: A(f"s_mov_b64 exec, {s(S_M3,2)}")
        E(ds("g", f"ds_write_b128 {v(V_GA if f < 2 else V_G3W)}, {v(o,4)} offset:{4096 if f == 1 else 0}"))
    A("s_mov_b64 exec, -1")
    if STAMP == 3:
        A(f"s_or_b64 vcc, {s(FPS[0],2)}, {s(FPS[1],2)}"); A(f"s_or_b64 vcc, vcc, {s(FPS[2],2)}"); A(f"s_addc_u32 {s(S_TS+8)}, {s(S_TS+8)}, 0")
        A(f"s_or_b64 vcc, {s(FPS[3],2)}, {s(FPS[4],2)}"); A(f"s_or_b64 vcc, vcc, {s(FPS[5],2)}"); A(f"s_addc_u32 {s(S_TS+13)}, {s(S_TS+13)}, 0")
    mp_close(A, 6, lab)
    for k in range(3):
        for l in zero(ACC+4*k): A(l)
    if PL_X == 'G': A(f"s_add_u32 {s(S_EXP)}, {s(S_EXP)}, 327680")
    A(f"s_cmp_eq_u32 {s(S_STEP)}, {RPP}")
    A(f"s_cselect_b32 {s(S_T)}, {s(55 if isV else 64)}, {RSTEP}")
    A(f"s_add_u32 {s(S_RR)}, {s(S_RR)}, {s(S_T)}")
    A(f"s_add_u32 {s(S_RW)}, {s(S_RW)}, {s(S_T)}")
    tick(A, 5)
    tr(A, 0)
    E.drain()

def stage_side(A, isV, cls):
    if VAR != 1 or PL_X != 'S': return []
    L = [f"s_add_u32 {s(S_T)}, {s(S_EXP)}, {s(S_ZL)}",
         f"buffer_store_dwordx4 {v(ZF,4)}, {v(V_L16)}, {s(S_WS,4)}, {s(S_T)} offen sc0 sc1"]
    if isV:
        L += [f"s_add_u32 {s(S_T)}, {s(S_EXP)}, {s(S_ZL2)}",
              "\n".join([f"s_mov_b64 exec, {s(S_MA,2)}", f"buffer_store_dwordx4 {v(ZF+4,4)}, {v(V_ZH)}, {s(S_WS,4)}, {s(S_T)} offen sc0 sc1", "s_mov_b64 exec, -1"])]
    L += [f"s_mov_b32 {s(S_EXP)}, {s(S_EXN)}", f"s_add_u32 {s(S_EXN)}, {s(S_EXN)}, 327680"]
    T = [[0, 4, L]]
    if cls == 0:
        B = Asm(); B.uid = A.uid + 300000; A.uid += 10
        B(f"s_mov_b64 exec, {s(S_MB if isV else S_MA,2)}")
        dual(B, [f"buffer_store_dwordx2 {v(V_POI,2)}, {v(V_FINRM)}, {s(S_WS,4)}, {s(S_LN)} offen"])
        B("s_mov_b64 exec, -1")
        T.append([8, 12, ["\n".join(B.lines)]])
        if not isV:
            B = Asm(); B.uid = A.uid + 310000; A.uid += 10
            p_poison(B, S_PN)
            T.append([10, 14, ["\n".join(B.lines)]])
    return T

def chain_loop(A, isV, cls, flags):
    E = Emit(A)
    top = A.newlabel("CH_top"); fin = A.newlabel("CH_fin"); ent = A.newlabel("CH_ent"); galab = A.newlabel("GAx")
    preload(A, E); E.drain()
    if TRACE:
        global V_TRC, V_TRA4
        V_TRC, V_TRA4 = (111, 110) if isV else (125, 110)
        A(f"s_lshl_b32 s95, {s(S_GRP)}, 5"); A(f"s_add_u32 s95, s95, {s(S_C)}"); A("s_lshl_b32 s95, s95, 2"); A(f"s_add_u32 s95, s95, {s(S_WAVE)}")
        A("s_lshl_b32 s95, s95, 14"); A(f"s_add_u32 s95, s95, {WS_SCR + 4*1048576}")
        A("s_memrealtime s[88:89]"); A("s_memtime s[70:71]"); A("s_waitcnt lgkmcnt(0)")
    if STAMP:
        A(f"s_memtime {s(88,2)}"); A(f"s_memrealtime {s(92,2)}"); A("s_waitcnt lgkmcnt(0)"); A(f"s_mov_b32 {s(86)}, {s(88)}"); A(f"s_mov_b32 {s(87)}, {s(92)}")
    A(f"s_branch {ent}")
    A.label(top)
    if VAR == 2: gatherA2(A, E, galab)
    else: g1_top(A, E, isV, cls, flags)
    A.label(ent)
    A("s_barrier")
    tick(A, 6)
    if STAMP == 3 and cls == 3:
        A(f"s_memrealtime {s(92,2)}"); A(f"s_lshl_b32 s94, {s(S_STEP)}, 2"); A(f"s_lshl_b32 s95, {s(S_HEAD)}, 8"); A("s_add_u32 s94, s94, s95")
        A(f"s_add_u32 s94, s94, {WS_SCR + 3*1048576 + 65536}"); A("s_waitcnt lgkmcnt(0)"); A(f"v_mov_b32 {v(XS+19)}, s92")
        A(f"buffer_store_dword {v(XS+19)}, {v(V_ZERO)}, {s(S_WS,4)}, s94 offen")
    if STAMP in (1, 3):
        rs = A.newlabel("rs"); rb = A.newlabel("rb")
        A(f"s_cmp_eq_u32 {s(S_STEP)}, 8"); A(f"s_cbranch_scc1 {rs}"); A.label(rb)
        B = Asm(); B.uid = A.uid + 50000
        if not TS3: tstamp(B, 3)
        STUBS.append([rs + ":"] + B.lines + [f"s_memtime {s(88,2)}", f"s_memrealtime {s(92,2)}", "s_waitcnt lgkmcnt(0)", f"s_mov_b32 {s(86)}, {s(88)}", f"s_mov_b32 {s(87)}, {s(92)}"] +
                     [f"s_mov_b32 {s(S_TS+k)}, 0" for k in range(16)] + [f"s_branch {rb}"])
    if STAMP == 2:
        A(f"s_memrealtime {s(88,2)}"); A("s_waitcnt lgkmcnt(0)")
        A(f"s_cmp_eq_u32 {s(S_STEP)}, {TSTEP}"); A(f"s_cselect_b32 {s(S_TS+7)}, {s(88)}, {s(S_TS+7)}")
    if isV: v_stage(A, E, cls, flags)
    else: s_stage(A, E, cls, flags)
    tick(A, 0)
    A(f"s_cmp_eq_u32 {s(S_STEP)}, {NSTEP-1}")
    A(f"s_cbranch_scc1 {fin}")
    if not isV and cls == 0: s_tail(A, E)
    tick(A, 1)
    reduce_stage(A, E, isV, cls, flags)
    tick(A, 2)
    if VAR == 2: gatherA(A, E, isV, cls, galab, flags)
    else: g1_bottom(A, E, isV, cls, flags)
    A(f"s_branch {top}")
    flush_stubs(A)
    A.label(fin)
    E.reset()
    if STAMP == 3:
        A(f"s_memtime {s(88,2)}"); A(f"s_memrealtime {s(92,2)}"); A("s_waitcnt lgkmcnt(0)")
        A(f"s_sub_u32 {s(S_TS)}, {s(88)}, {s(86)}"); A(f"s_sub_u32 {s(S_TS+1)}, {s(92)}, {s(87)}")
    if isV:
        A(f"s_add_u32 {s(S_T2)}, {s(S_EXP)}, {4*8192}")
        A(f"buffer_store_dwordx4 {v(XS,4)}, {v(V_ZS4)}, {s(S_WS,4)}, {s(S_EXP)} offen sc0 sc1")
        A(f"buffer_store_dwordx4 {v(XS+4,4)}, {v(V_ZS4)}, {s(S_WS,4)}, {s(S_T2)} offen sc0 sc1")
        A(f"buffer_store_dwordx2 {v(XS+8,2)}, {v(V_ZS2)}, {s(S_WS,4)}, {s(S_EXP)} offen sc0 sc1")
    elif cls != 0:
        km_export(A, E, XS)
    A("s_waitcnt vmcnt(0)")
    A("s_barrier")
    if flags and cls == 0:
        A(f"v_mov_b32 v56, 1"); A(f"v_mov_b32 v57, {NSEG}")
        A(f"s_add_u32 {s(S_T)}, {s(S_FLO)}, {FL_KM}")
        A("s_mov_b64 exec, 1")
        if not isV: A(f"buffer_store_dword v57, {v(V_ZERO)}, {s(S_WS,4)}, {s(S_T)} offen sc0 sc1")
        A(f"buffer_atomic_add v56, {v(V_ZERO)}, {s(S_WS,4)}, {s(S_ARR)} offen offset:128 sc1")
        A(f"buffer_atomic_add v56, {v(V_ZERO)}, {s(S_WS,4)}, {s(S_ARR)} offen offset:256 sc1")
        A("s_mov_b64 exec, -1")
    if STAMP:
        A(f"s_lshl_b32 {s(S_T)}, {s(S_GRP)}, 5")
        A(f"s_add_u32 {s(S_T)}, {s(S_T)}, {s(S_C)}")
        A(f"s_lshl_b32 {s(S_T)}, {s(S_T)}, 2")
        A(f"s_add_u32 {s(S_T)}, {s(S_T)}, {s(S_WAVE)}")
        A(f"s_lshl_b32 {s(S_T)}, {s(S_T)}, 6")
        A(f"s_add_u32 {s(S_T)}, {s(S_T)}, {WS_SCR + 1048576}")
        for k in range(16):
            A(f"v_mov_b32 v21, {s(S_TS+k) if k != 14 else s(S_FAST)}")
            A(f"buffer_store_dword v21, {v(V_ZERO)}, {s(S_WS,4)}, {s(S_T)} offen offset:{4*k}")
        A("s_waitcnt vmcnt(0)")

def role_chain(A, isV, end_label, flags=False):
    global CUR_ORD
    CUR_ORD = ORD_V if isV else ORD_S
    A.c("================ role chain %s ================" % ("V" if isV else "S"))
    A(f"s_load_dwordx2 {s(S_W1,2)}, s[0:1], {KA['Wv' if isV else 'Wq']}")
    A(f"s_load_dwordx2 {s(S_W2,2)}, s[0:1], {KA['Wo' if isV else 'Wk']}")
    A(f"s_load_dwordx2 {s(S_X,2)}, s[0:1], {KA['mem0']}")
    A(f"s_and_b32 {s(S_HEAD)}, {s(S_C)}, 15")
    A(f"s_lshl_b32 {s(S_T)}, {s(S_GRP)}, 4")
    A(f"s_add_u32 {s(S_HEAD)}, {s(S_HEAD)}, {s(S_T)}")
    A(f"s_getreg_b32 {s(S_FAST)}, hwreg(HW_REG_XCC_ID, 0, 4)")
    A(f"s_lshl_b32 {s(S_T)}, {s(S_GRP)}, 5")
    A(f"s_add_u32 {s(S_T)}, {s(S_T)}, {s(S_C)}")
    A(f"s_lshl_b32 {s(S_T)}, {s(S_T)}, 2")
    A(f"s_add_u32 {s(S_T2)}, {s(S_T)}, {MB_X}")
    if not flags: publish(A, S_FAST, S_T2)
    A("s_waitcnt lgkmcnt(0)")
    srd_finish(A, S_W1, W_BYTES); srd_finish(A, S_W2, W_BYTES); srd_finish(A, S_X, 10240)
    A(f"s_mul_i32 s66, {s(S_HEAD)}, 384")
    A("s_waitcnt vmcnt(0)")
    def hook(c1, c2):
        def f(c):
            if not flags: return
            if c == c1: init_load(A, 124, 125)
            if c == c2:
                init_wait(A, 124, 125)
                publish(A, S_FAST, S_T2, vt=126)
        return f
    if not isV:
        load_w_rows384(A, [S_W1, S_W2], 66, lambda c, kk, t, half: wdest(((c//10)*3+t)*10 + c%10, 2*kk+half), rowmap="sparse", vt=116, after_read=hook(8, 14))
    else:
        load_w_rows384(A, [S_W1], 66, lambda c, kk, t, half: wdest(t*10 + c, 2*kk+half), rowmap="sparse", vt=116, after_read=hook(8, -1))
        A(f"s_mul_i32 s66, {s(S_HEAD)}, 245760")
        load_wo(A, S_W2, 66, lambda c, t, half: wdest(30 + 3*t + c//2, 2*(c&1)+half), sparse=True, vt=116, after_read=hook(-1, 1))
    A(f"s_mul_i32 {s(S_T)}, {s(S_WAVE)}, 24576")
    A(f"v_lshl_add_u32 {v(V_WL)}, {v(V_LANE)}, 4, {s(S_T)}")
    for j in range(12):
        A(f"ds_write_b128 {v(V_WL)}, {v(AF+8*j,4)} offset:{j*2048}")
        A(f"ds_write_b128 {v(V_WL)}, {v(AF+8*j+4,4)} offset:{j*2048+1024}")
    A("s_waitcnt lgkmcnt(0)")
    tstamp(A, 2)
    if flags and NUMA:
        A("v_mov_b32 v118, 0"); A(f"global_load_dword v119, v118, {s(S_DBG,2)} offset:4 sc1")
    setup_common(A, isV)
    A(f"v_and_b32 v20, 31, {v(V_LANE)}")
    A(f"v_lshlrev_b32 v20, 2, v20")
    A(f"s_lshl_b32 {s(S_T)}, {s(S_GRP)}, 7")
    A(f"s_add_u32 {s(S_T)}, {s(S_T)}, {MB_X}")
    lab = A.newlabel("XH")
    loop_top(A, lab)
    A(f"buffer_load_dword v21, v20, {s(S_WS,4)}, {s(S_T)} offen sc1")
    A("s_waitcnt vmcnt(0)")
    A("v_cmp_eq_u32 vcc, -1, v21")
    retry(A, lab)
    jx = A.newlabel("XJ"); A(f"s_branch {jx}"); flush_stubs(A); A.label(jx)
    A(f"v_cmp_ne_u32 vcc, {s(S_FAST)}, v21")
    A("s_cmp_eq_u64 vcc, 0")
    A(f"s_cselect_b32 {s(S_FAST)}, 1, 0")
    if flags and NUMA:
        A(f"s_mov_b32 {s(S_T)}, {MB_X}")
        lab = A.newlabel("XN")
        loop_top(A, lab)
        A(f"buffer_load_dword v21, {v(V_ZERO)}, {s(S_WS,4)}, {s(S_T)} offen sc1")
        A("s_waitcnt vmcnt(0)")
        A("v_cmp_eq_u32 vcc, -1, v21")
        retry(A, lab)
        jx = A.newlabel("XJ"); A(f"s_branch {jx}"); flush_stubs(A); A.label(jx)
        A(f"v_readfirstlane_b32 {s(S_T)}, v21"); A(f"v_readfirstlane_b32 {s(S_T2)}, v119")
        A(f"s_bfe_u32 {s(S_T)}, {s(S_T)}, 0x10002"); A(f"s_mul_i32 {s(S_T)}, {s(S_T)}, 3"); A(f"s_xor_b32 {s(S_T2)}, {s(S_T2)}, {s(S_T)}")
        if NUMA == 2: A(f"s_xor_b32 {s(S_T2)}, {s(S_T2)}, 3")
        A(f"s_and_b32 {s(S_T)}, {s(S_T2)}, 1"); A(f"s_lshl_b32 {s(S_T)}, {s(S_T)}, 13")
        A(f"s_bfe_u32 {s(S_T2)}, {s(S_T2)}, 0x10001"); A(f"s_lshl_b32 {s(S_T2)}, {s(S_T2)}, 13")
        A(f"s_add_u32 {s(S_RR)}, {s(S_RR)}, {s(S_T)}"); A(f"s_add_u32 {s(S_RW)}, {s(S_RW)}, {s(S_T)}")
        A(f"s_sub_u32 {s(S_T2)}, {s(S_T2)}, {s(S_T)}")
    else: A(f"s_mov_b32 {s(S_T2)}, 0")
    A(f"s_add_u32 {s(55 if isV else 64)}, {s(S_T2)}, {(2<<20) - (RPP-1)*RSTEP}")
    if TS3 == 1: tstamp(A, 3)
    A(f"v_bfe_u32 v20, {v(V_LANE)}, 1, 3")
    A(f"v_mul_u32_u24 v20, 1280, v20")
    A(f"v_lshrrev_b32 v21, 4, {v(V_LANE)}")
    A(f"v_lshl_add_u32 v20, v21, 5, v20")
    A(f"v_and_b32 v21, 1, {v(V_LANE)}")
    A(f"v_lshl_add_u32 v20, v21, 4, v20")
    A(f"s_lshl_b32 {s(S_T)}, {s(S_WAVE)}, 7")
    A(f"s_lshl_b32 {s(S_T2)}, {s(S_WAVE)}, 10")
    for j in range(3):
        sk = A.newlabel("m0s")
        if j == 2:
            A(f"s_cmp_ge_u32 {s(S_WAVE)}, 2"); A(f"s_cbranch_scc1 {sk}")
        A(f"s_add_u32 m0, {s(S_T2)}, {L_MEM + j*4096 - j*512}")
        A("s_nop 0")
        A(f"buffer_load_dwordx4 v20, {s(S_X,4)}, {s(S_T)} offen offset:{j*512} lds")
        if j == 2: A.label(sk)
    if not isV:
        sk = A.newlabel("k0s")
        A(f"s_cmp_eq_u32 {s(S_WAVE)}, 0"); A(f"s_cbranch_scc1 {sk}")
        if K2W:
            A(f"s_cmp_eq_u32 {s(S_WAVE)}, 3"); A(f"s_cselect_b32 {s(S_KN)}, 3, {s(S_KN)}"); A(f"s_cbranch_scc1 {sk}")
        if flags: k_check(A)
        k_dma(A)
        if flags and PL_K != 'B': k_check(A)
        if VAR == 1 and PL_K not in 'SB':
            A(f"s_xor_b32 {s(S_MK)}, {s(S_MK)}, {S_LK ^ (S_LK + 16384)}")
            k_dma(A)
            if flags: k_check(A)
        A.label(sk)
    if TS3 == 2: A("s_barrier"); tstamp(A, 3)
    for zs, ps in ((S_Z, S_P), (S_ZN, S_PN), (S_ZP, S_PP)):
        A(f"s_add_u32 {s(S_T)}, {s(zs)}, {s(S_ZL)}")
        A(f"buffer_load_dwordx4 v[24:27], {v(V_L16)}, {s(S_WS,4)}, {s(S_T)} offen sc1")
        if isV:
            A(f"s_add_u32 {s(S_T)}, {s(zs)}, {s(S_ZL2)}")
            A(f"buffer_load_dwordx4 v[24:27], {v(V_ZH)}, {s(S_WS,4)}, {s(S_T)} offen sc1")
        A(f"s_add_u32 {s(S_T)}, {s(ps)}, {s(S_PLX)}")
        A(f"buffer_load_dwordx4 v[24:27], {v(V_L16)}, {s(S_WS,4)}, {s(S_T)} offen sc1")
        A(f"buffer_load_dwordx4 v[24:27], {v(V_L16)}, {s(S_WS,4)}, {s(S_T)} offen offset:1024 sc1")
        A(f"s_add_u32 {s(S_T)}, {s(ps)}, {s(S_PLM)}")
        A(f"buffer_load_dwordx4 v[24:27], {v(V_PLD)}, {s(S_WS,4)}, {s(S_T)} offen sc1")
    for ls in (S_L, S_LN):
        for o in (0, 4096, 6144):
            A(f"s_add_u32 {s(S_T)}, {s(ls)}, {o}")
            A(f"buffer_load_dwordx4 v[24:27], {v(V_T7)}, {s(S_WS,4)}, {s(S_T)} offen sc1")
    if TS3 == 3: A("s_waitcnt vmcnt(0)"); tstamp(A, 3)
    if flags: u_check(A, 0)
    if TS3 == 4: tstamp(A, 3)
    if flags and PL_M != 'W': u_check(A, 1)
    A("s_waitcnt vmcnt(0)")
    jx = A.newlabel("XJ"); A(f"s_branch {jx}"); flush_stubs(A); A.label(jx)
    A("s_barrier")
    classes = [0, 12, 3]
    labs = {c: A.newlabel("CLS") for c in classes}
    A(f"s_cmp_eq_u32 {s(S_WAVE)}, 0")
    A(f"s_cbranch_scc1 {labs[0]}")
    A(f"s_cmp_eq_u32 {s(S_WAVE)}, 3")
    A(f"s_cbranch_scc1 {labs[3]}")
    for c in [12, 3, 0]:
        A.label(labs[c])
        chain_loop(A, isV, c, flags)
        A(f"s_branch {end_label}")
```

```python
from common import *
V_L16 = 2; V_OST = 3; V_Z = 4; V_FA = 5; V_FU = 6; V_FP = 7; V_P2 = 8
PF = 12
ZF = 44
D = 76
S_ID = 22; S_SEGC = 23; S_CB = 24; S_T = 26; S_T2 = 27; S_NEED = 28; S_CNT = 29; S_US = 30; S_PS = 31; S_ZS = 32; S_OS = 33; S_M0 = 34; S_FB = 35; S_STR = 36
NTASK = 640
WARM = 1

def lanes_wait(A, vfl, s_need):
    pass

def wait_cnt(A, base, need, s_known):
    sk = A.newlabel("F_kn")
    A(f"s_cmp_lt_u32 {s(S_SEGC)}, {s(s_known)}"); A(f"s_cbranch_scc1 {sk}")
    A(f"s_lshl_b32 {s(S_FB)}, {s(S_SEGC)}, 7")
    A(f"s_add_u32 {s(S_FB)}, {s(S_FB)}, {base}")
    A(f"s_mov_b32 {s(S_NEED)}, {need}")
    A(f"v_mov_b32 {v(V_FU)}, 0")
    flag_wait(A, V_FU, V_Z, S_FB, S_NEED, S_T, S_CNT, sleep=6)
    A(f"s_add_u32 {s(s_known)}, {s(S_SEGC)}, 1")
    A.label(sk)

def decode(A, s_id):
    A(f"s_mul_i32 {s(S_SEGC)}, {s(s_id)}, 6554")
    A(f"s_lshr_b32 {s(S_SEGC)}, {s(S_SEGC)}, 16")
    A(f"s_mul_i32 {s(S_T)}, {s(S_SEGC)}, 10")
    A(f"s_sub_u32 {s(S_CB)}, {s(s_id)}, {s(S_T)}")
    A(f"s_lshl_b32 {s(S_CB)}, {s(S_CB)}, 2")
    A(f"s_add_u32 {s(S_CB)}, {s(S_CB)}, {s(S_WAVE)}")

def issue_u(A, base, flags):
    decode(A, S_T2)
    if flags: wait_cnt(A, CN_U, 32, 37)
    A(f"s_mul_i32 {s(S_US)}, {s(S_SEGC)}, {40*32768}")
    A(f"s_lshl_b32 {s(S_T)}, {s(S_CB)}, 10")
    A(f"s_add_u32 {s(S_US)}, {s(S_US)}, {s(S_T)}")
    A(f"s_add_u32 {s(S_US)}, {s(S_US)}, {WS_U}")
    for h in range(32):
        if h: A(f"s_add_u32 {s(S_US)}, {s(S_US)}, 40960")
        A(f"buffer_load_dwordx4 {a(base+4*h,4)}, {v(V_L16)}, {s(S_WS,4)}, {s(S_US)} offen sc1")

def warm(A):
    A(f"s_load_dwordx2 {s(S_X,2)}, s[0:1], {KA['A_x']}")
    A(f"s_load_dwordx2 {s(S_W1,2)}, s[0:1], {KA['B_x']}")
    A(f"s_sub_u32 {s(S_T)}, {s(S_ID)}, 1")
    A(f"s_lshl_b32 {s(S_T)}, {s(S_T)}, 2")
    A(f"s_add_u32 {s(S_T)}, {s(S_T)}, {s(S_WAVE)}")
    A(f"s_lshl_b32 {s(S_T)}, {s(S_T)}, 13")
    A(f"v_lshlrev_b32 {v(PF+16)}, 7, {v(V_LANE)}")
    A("s_waitcnt lgkmcnt(0)")
    srd_finish(A, S_X, X_BYTES); srd_finish(A, S_W1, X_BYTES)
    for j in range(3 if WARM == 1 else 1):
        A(f"buffer_load_dword {v(PF+17)}, {v(PF+16)}, {s(S_X,4)}, {s(S_T)} offen")
        if WARM == 1: A(f"buffer_load_dword {v(PF+18)}, {v(PF+16)}, {s(S_W1,4)}, {s(S_T)} offen")
        A(f"s_add_u32 {s(S_T)}, {s(S_T)}, {NF*4*8192}")

NUMA = 1
PDBG = 0
def probe(A):
    sk = A.newlabel("F_np")
    A(f"s_or_b32 {s(S_T)}, {s(S_ID)}, {s(S_WAVE)}"); A(f"s_cbranch_scc1 {sk}")
    for j in range(8): A(f"s_mov_b32 s{44+j}, {MB_R + RPP*RSTEP + j*4096}")
    A("s_mov_b64 exec, 0xffff")
    for j in range(8): A(f"buffer_store_dwordx4 {v(PF,4)}, {v(V_L16)}, {s(S_WS,4)}, s{44+j} offen sc0 sc1")
    A("s_mov_b64 exec, 1")
    A("s_waitcnt vmcnt(0)")
    A(f"s_mov_b32 {s(S_US)}, -1"); A(f"s_mov_b32 {s(S_PS)}, -1")
    for i in range(16):
        j = [0, 2, 1, 3, 4, 6, 5, 7][i & 7]
        acc = S_PS if j & 2 else S_US
        A("s_memtime s[40:41]"); A("s_waitcnt lgkmcnt(0)")
        A(f"buffer_load_dword {v(PF+13)}, {v(V_Z)}, {s(S_WS,4)}, s{44+j} offen offset:{(i>>3)*128} sc1")
        A("s_waitcnt vmcnt(0)")
        A("s_memtime s[42:43]"); A("s_waitcnt lgkmcnt(0)")
        A("s_sub_u32 s42, s42, s40"); A(f"s_min_u32 {s(acc)}, {s(acc)}, s42")
    A(f"s_getreg_b32 {s(S_T2)}, hwreg(HW_REG_XCC_ID, 2, 1)")
    A(f"s_mul_i32 {s(S_T2)}, {s(S_T2)}, 3")
    A(f"s_cmp_gt_u32 {s(S_US)}, {s(S_PS)}")
    A(f"s_cselect_b32 {s(S_T)}, 1, 2")
    A(f"s_xor_b32 {s(S_T)}, {s(S_T)}, {s(S_T2)}")
    A(f"v_mov_b32 {v(PF+12)}, {s(S_T)}")
    A(f"global_store_dword {v(V_Z)}, {v(PF+12)}, {s(S_DBG,2)} offset:4 sc0 sc1")
    if PDBG:
        A(f"v_mov_b32 {v(PF+14)}, {s(S_US)}"); A(f"v_mov_b32 {v(PF+15)}, {s(S_PS)}")
        A(f"global_store_dwordx2 {v(V_Z)}, {v(PF+14,2)}, {s(S_DBG,2)} offset:16")
    A("s_mov_b64 exec, -1")
    A("s_waitcnt vmcnt(0)")
    A.label(sk)

def self_init(A):
    npg = (POISON_END - WS_MB + 4095)//4096
    for i in range(4): A(f"v_mov_b32 {v(PF+i)}, -1")
    A(f"s_lshl_b32 {s(S_T)}, {s(S_WAVE)}, 10")
    A(f"v_add_u32 {v(PF+4)}, {s(S_T)}, {v(V_L16)}")
    skp = A.newlabel("F_skip")
    A(f"s_sub_u32 {s(S_OS)}, {s(S_ID)}, 1")
    A(f"s_cbranch_scc1 {skp}")
    A(f"s_lshl_b32 {s(S_T)}, {s(S_OS)}, 12")
    A(f"s_add_u32 {s(S_T)}, {s(S_T)}, {WS_MB}")
    lp = A.newlabel("F_po")
    A.label(lp)
    A(f"buffer_store_dwordx4 {v(PF,4)}, {v(PF+4)}, {s(S_WS,4)}, {s(S_T)} offen sc0 sc1")
    A(f"s_add_u32 {s(S_T)}, {s(S_T)}, {(NF-1)*4096}")
    A(f"s_cmp_lt_u32 {s(S_T)}, {POISON_END}")
    A(f"s_cbranch_scc1 {lp}")
    lp = A.newlabel("F_pr")
    A(f"s_mov_b32 {s(S_T2)}, {s(S_OS)}")
    A.label(lp)
    A(f"s_mul_i32 {s(S_US)}, {s(S_T2)}, 6554"); A(f"s_lshr_b32 {s(S_US)}, {s(S_US)}, 16")
    A(f"s_mul_i32 {s(S_PS)}, {s(S_US)}, 10"); A(f"s_sub_u32 {s(S_PS)}, {s(S_T2)}, {s(S_PS)}")
    A(f"s_cmp_eq_u32 {s(S_PS)}, 9"); A(f"s_cselect_b32 {s(S_PS)}, 10, {s(S_PS)}")
    A(f"s_lshl_b32 {s(S_PS)}, {s(S_PS)}, 12")
    A(f"s_mul_i32 {s(S_T)}, {s(S_US)}, {RSTEP}")
    A(f"s_cmp_ge_u32 {s(S_US)}, {RPP}"); A(f"s_cselect_b32 {s(S_US)}, {(2<<20) - RPP*RSTEP}, 0")
    A(f"s_add_u32 {s(S_T)}, {s(S_T)}, {s(S_US)}"); A(f"s_add_u32 {s(S_T)}, {s(S_T)}, {s(S_PS)}"); A(f"s_add_u32 {s(S_T)}, {s(S_T)}, {MB_R}")
    A(f"buffer_store_dwordx4 {v(PF,4)}, {v(PF+4)}, {s(S_WS,4)}, {s(S_T)} offen sc0 sc1")
    A(f"s_add_u32 {s(S_T2)}, {s(S_T2)}, {NF-1}")
    A(f"s_cmp_lt_u32 {s(S_T2)}, 630")
    A(f"s_cbranch_scc1 {lp}")
    sk = A.newlabel("F_nz")
    A(f"s_cmp_ge_u32 {s(S_OS)}, {(FLAGS_END-FLAGS)//4096}"); A(f"s_cbranch_scc1 {sk}")
    for i in range(4): A(f"v_mov_b32 {v(PF+8+i)}, 0")
    A(f"s_lshl_b32 {s(S_T)}, {s(S_OS)}, 12")
    A(f"s_add_u32 {s(S_T)}, {s(S_T)}, {FLAGS}")
    A(f"buffer_store_dwordx4 {v(PF+8,4)}, {v(PF+4)}, {s(S_WS,4)}, {s(S_T)} offen sc0 sc1")
    A.label(sk)
    A.label(skp)
    A("s_waitcnt vmcnt(0)")
    if NUMA: probe(A)
    A("s_barrier")
    sk = A.newlabel("F_na")
    A(f"s_cmp_lg_u32 {s(S_WAVE)}, 0"); A(f"s_cbranch_scc1 {sk}")
    A(f"v_mov_b32 {v(PF)}, 1")
    A("s_mov_b64 exec, 1")
    A(f"global_atomic_add {v(V_Z)}, {v(PF)}, {s(S_DBG,2)} sc1")
    A("s_mov_b64 exec, -1")
    A.label(sk)
    init_sync(A, PF+5, PF+6)
    assert POISON_END % 4096 == 0 and FLAGS == POISON_END

def role_f(A, flags=False):
    A.c("================ role F ================")
    A(f"s_load_dwordx2 {s(S_W2,2)}, s[0:1], {KA['out']}")
    A(f"v_lshlrev_b32 {v(V_L16)}, 4, {v(V_LANE)}")
    A(f"v_add_u32 {v(V_P2)}, 40960, {v(V_L16)}")
    A(f"v_and_b32 v9, 31, {v(V_LANE)}")
    A(f"v_mul_u32_u24 v9, 2560, v9")
    A(f"v_lshrrev_b32 v10, 5, {v(V_LANE)}")
    A(f"v_lshl_add_u32 {v(V_OST)}, v10, 4, v9")
    A(f"v_mov_b32 {v(V_Z)}, 0")
    A("s_mov_b32 s37, 0"); A("s_mov_b32 s38, 0"); A("s_mov_b32 s39, 0")
    A(f"s_mul_i32 {s(S_M0)}, {s(S_WAVE)}, 20480")
    A("s_waitcnt lgkmcnt(0)")
    srd_finish(A, S_W2, 2048*1280*2)
    if flags and WARM:
        sw = A.newlabel('F_nw'); A(f's_cmp_eq_u32 {s(S_ID)}, 0'); A(f's_cbranch_scc1 {sw}'); warm(A); A.label(sw)
    if flags: self_init(A)
    A(f"s_mov_b32 {s(S_T2)}, {s(S_ID)}")
    issue_u(A, 0, flags)
    loop = A.newlabel("F_loop"); done = A.newlabel("F_done")
    A.label(loop)
    for par in range(2):
        A(f"s_mov_b32 {s(S_T2)}, {s(S_ID)}")
        decode(A, S_T2)
        if flags:
            wait_cnt(A, RD_Q, 1, 38)
            wait_cnt(A, CN_Z, 64, 39)
        A(f"s_mul_i32 {s(S_PS)}, {s(S_SEGC)}, 81920")
        A(f"s_add_u32 {s(S_PS)}, {s(S_PS)}, {s(S_M0)}")
        A(f"s_add_u32 {s(S_PS)}, {s(S_PS)}, {WS_P}")
        A(f"s_mul_i32 {s(S_ZS)}, {s(S_SEGC)}, 327680")
        A(f"s_lshl_b32 {s(S_T)}, {s(S_CB)}, 13")
        A(f"s_add_u32 {s(S_ZS)}, {s(S_ZS)}, {s(S_T)}")
        A(f"s_add_u32 {s(S_ZS)}, {s(S_ZS)}, {WS_Z}")
        A(f"s_mul_i32 {s(S_OS)}, {s(S_SEGC)}, {32*2560}")
        A(f"s_lshl_b32 {s(S_T)}, {s(S_CB)}, 5")
        A(f"s_add_u32 {s(S_OS)}, {s(S_OS)}, {s(S_T)}")
        A("s_barrier")
        for j in range(20):
            if j % 4 == 0:
                A(f"s_add_u32 m0, {s(S_M0)}, {j*1024}")
                A(f"s_add_u32 {s(S_T)}, {s(S_PS)}, {j*1024}")
            A(f"buffer_load_dwordx4 {v(V_L16)}, {s(S_WS,4)}, {s(S_T)} offen offset:{(j%4)*1024} sc1 lds")
        for j in range(8):
            if j == 4: A(f"s_add_u32 {s(S_ZS)}, {s(S_ZS)}, 4096")
            A(f"buffer_load_dwordx4 {v(ZF+4*j,4)}, {v(V_L16)}, {s(S_WS,4)}, {s(S_ZS)} offen offset:{(j%4)*1024} sc1")
        A(f"s_add_u32 {s(S_T2)}, {s(S_ID)}, {s(S_STR)}")
        A(f"s_min_u32 {s(S_T2)}, {s(S_T2)}, {NTASK-1}")
        if flags:
            pass
        issue_u(A, 128*(1-par), flags)
        A("s_waitcnt vmcnt(32)")
        A("s_barrier")
        def rd(j):
            sl = j % 4
            A(f"ds_read_b128 {v(PF+sl*8,4)}, {v(V_L16)} offset:{j*1024}")
            A(f"ds_read_b128 {v(PF+sl*8+4,4)}, {v(V_P2)} offset:{j*1024}")
        for j in range(3): rd(j)
        for j in range(40):
            if j+3 < 40:
                rd(j+3); A("s_waitcnt lgkmcnt(6)")
            else: A(f"s_waitcnt lgkmcnt({2*(39-j)})")
            a_ = a(128*par+4*j,4) if j < 32 else v(ZF+4*(j-32),4)
            for q in range(2):
                A(f"v_mfma_f32_16x16x32_bf16 {v(D+4*q,4)}, {a_}, {v(PF+(j%4)*8+4*q,4)}, {'0' if j==0 else v(D+4*q,4)}")
        A("s_nop 7")
        A(f"v_cvt_pk_bf16_f32 {v(D+8)}, {v(D)}, {v(D+1)}")
        A(f"v_cvt_pk_bf16_f32 {v(D+9)}, {v(D+2)}, {v(D+3)}")
        A(f"v_cvt_pk_bf16_f32 {v(D+10)}, {v(D+4)}, {v(D+5)}")
        A(f"v_cvt_pk_bf16_f32 {v(D+11)}, {v(D+6)}, {v(D+7)}")
        A("s_nop 1")
        A(f"v_permlane16_swap_b32 {v(D+8)}, {v(D+10)}")
        A(f"v_permlane16_swap_b32 {v(D+9)}, {v(D+11)}")
        A(f"buffer_store_dwordx4 {v(D+8,4)}, {v(V_OST)}, {s(S_W2,4)}, {s(S_OS)} offen")
        A(f"s_add_u32 {s(S_ID)}, {s(S_ID)}, {s(S_STR)}")
        A(f"s_cmp_ge_u32 {s(S_ID)}, {NTASK}")
        A(f"s_cbranch_scc1 {done}")
    A(f"s_branch {loop}")
    A.label(done)
    A("s_waitcnt vmcnt(0)")
```

```python
from common import *
import common
import role_kv, role_u, role_chain, role_init, role_q, role_f, role_b, hazard, sys
NAME = "concat_heads__memory_aug_recurrent_mem_tr__sliding_block__prompt"
out = sys.argv[1]
rc = role_chain
rc.PBMODE = 2; role_f.WARM = 2
for k_, x_ in dict(DELAYL=0, DELAYLV=0, HINTB=6, HINTA=5, K2W=0, WDEL=4, PBSTEP=4, PBSTEP0=4, PBSTEPV=3, PBSTG=1, DELAY0=2, DELAY0V=2, PREU=0,
                   XHINT=1, XEARLY=1, XLATE=20, PL_K='B', PL_P='W', DELAYBS=2, TB=32, TA=98, ZPRE2=0).items(): setattr(rc, k_, x_)
TS = 0; DBGT = 0; OFF = ''; BUD = None; PLAIN = 0; UX = 0
for kv in sys.argv[2:]:
    k, x = kv.split('=')
    if k == "TS": TS = int(x)
    elif k == "DBGT": DBGT = int(x)
    elif k == "OFF": OFF = x
    elif k == "OUTF": role_f.OUTF = role_b.OUTF = x.replace("_", " ")
    elif k == "LEAD": role_kv.LEAD = int(x)
    elif k == "PDBG": role_f.PDBG = int(x)
    elif k == "NUMA": rc.NUMA = int(x); role_f.NUMA = int(x)
    elif k == "ULATE": role_u.ULATE = int(x)
    elif k == "KSTART": common.KSTART = int(x)
    elif k == "WARM": role_f.WARM = int(x)
    elif k == "LATE": role_b.LATE = int(x)
    elif k == "UX": UX = int(x)
    elif k == "KST": common.KST = int(x)
    elif k == "BUD": BUD = int(x)
    elif k == "PLAIN": PLAIN = int(x)
    else: setattr(rc, k, x if k.startswith('PL_') else int(x))
ref = open("cdna_kernels/" + NAME + ".s.ref").read().split("\n")
head = [l for l in ref if l.startswith(";") and "@launch" not in l and "Override launch" not in l and "grid=ceil" not in l]
MAIN = NAME + "_kernel"
hdr = "\n".join(head) + "\n"
hdr += f"; @launch grid=(256,1,1) block=(256,1,1) lds=163840\n"
hdr += ".amdgcn_target \"amdgcn-amd-amdhsa--gfx950\"\n.text\n"
body = ""

common.TS = TS
A = Asm(); A.uid = 100
A("s_cmp_ge_u32 s2, 256"); A("s_cbranch_scc1 L_exit")
prologue(A)
tstamp(A, 0)
if DBGT: A("s_memrealtime s[96:97]"); A("s_waitcnt lgkmcnt(0)")
A("s_and_b32 s23, s2, 7"); A("s_lshr_b32 s24, s2, 3")
if BUD is not None: A(f"s_mov_b32 s100, {BUD}"); rc.SPIN_MAX = BUD
A("s_cmp_ge_u32 s23, 2"); A("s_cbranch_scc1 L_bulk")
if "C" in OFF: A("s_branch L_end")
A("s_cmp_ge_u32 s24, 16"); A("s_cbranch_scc1 L_chV")
rc.role_chain(A, False, "L_end", flags=True)
A.label("L_exit"); A("s_endpgm")
A.label("L_chV")
rc.role_chain(A, True, "L_end", flags=True)
A.label("L_bulk")
A("s_mul_i32 s25, s24, 6"); A("s_add_u32 s25, s25, s23"); A("s_sub_u32 s25, s25, 2")
A(f"s_and_b32 {s(S_HEAD)}, s25, 31")
A("s_cmp_ge_u32 s25, 64"); A("s_cbranch_scc1 L_notkv")
A(f"s_load_dwordx2 s[8:9], s[0:1], {KA['Wk']}")
A(f"s_load_dwordx2 s[10:11], s[0:1], {KA['Wv']}")
A(f"s_lshl_b32 s3, {s(S_HEAD)}, 7")
A("s_waitcnt lgkmcnt(0)")
A("s_cmp_ge_u32 s25, 32")
A("s_cselect_b32 s8, s10, s8"); A("s_cselect_b32 s9, s11, s9")
A(f"s_cselect_b32 {s(role_kv.S_DST)}, {WS_V}, {WS_K}")
A(f"s_cselect_b32 {s(role_kv.S_FLAG)}, {FL_V-FL_K}, 0")
A(f"s_add_u32 s3, s3, {FL_K}")
A(f"s_add_u32 {s(role_kv.S_FLAG)}, {s(role_kv.S_FLAG)}, s3")
if "K" not in OFF: role_kv.role_kv(A, flags=True)
A("s_branch L_end")
A.label("L_notkv")
A("s_cmp_ge_u32 s25, 96"); A("s_cbranch_scc1 L_notu")
A(f"s_lshl_b32 s3, {s(S_HEAD)}, 7")
A(f"s_mov_b32 {s(role_u.S_FLAG)}, {CN_U}"); A(f"s_add_u32 {s(role_u.S_FIN)}, s3, {FL_V}")
n0 = len(A.lines)
if "U" not in OFF: role_u.role_u(A, flags=True)
if UX:
    i0 = [i for i, l in enumerate(A.lines) if l.startswith("U_loop")][0]
    def keep(l):
        if UX & 1 and "buffer_store_dwordx4" in l: return False
        if UX & 2 and l.rstrip().endswith(" lds"): return False
        if UX & 4 and ("buffer_load_dword " in l or "buffer_store_dword " in l): return False
        if UX & 8 and "v_mfma" in l: return False
        return True
    A.lines = A.lines[:i0] + [l for l in A.lines[i0:] if keep(l)]
A("s_branch L_end")
A.label("L_notu")
A("s_cmp_ge_u32 s25, 128"); A("s_cbranch_scc1 L_notq")
if "Q" not in OFF: role_q.role_q(A, flags=True)
A("s_branch L_end")
A.label("L_notq")
A("s_cmp_ge_u32 s25, 160"); A("s_cbranch_scc1 L_notb")
if "B" not in OFF: role_b.role_b(A, flags=True)
A("s_branch L_end")
A.label("L_notb")
A("s_cmp_ge_u32 s25, 165"); A("s_cbranch_scc1 L_f")
A(f"s_sub_u32 {s(role_b.S_J)}, s25, 160")
if "3" not in OFF: role_b.role_b3(A, flags=True)
A("s_branch L_end")
A.label("L_f")
A(f"s_sub_u32 {s(role_f.S_ID)}, s25, 165"); A(f"s_mov_b32 {s(role_f.S_STR)}, {NF}")
if "F" not in OFF: role_f.role_f(A, flags=True)
A.label("L_end")
tstamp(A, 1)
if DBGT:
    for k, wg in enumerate((0, 128, 2, 58, 98+0, 170+2, 218, 255)):
        lab = A.newlabel("dt")
        A(f"s_cmp_lg_u32 s2, {wg}"); A(f"s_cbranch_scc1 {lab}")
        A("s_memrealtime s[92:93]"); A("s_waitcnt lgkmcnt(0)"); A("s_sub_u32 s92, s92, s96")
        A("v_mov_b32 v252, s92"); A(f"v_mov_b32 v253, {4*(k+1)}")
        A(f"global_store_dword v253, v252, {s(S_DBG,2)}"); A("s_waitcnt vmcnt(0)")
        A.label(lab)
A("s_endpgm")
body += kernel_header(MAIN) + A.text()
txt = hdr + body + '.section .rodata,"a"\n.p2align 6\n' + kernel_desc(MAIN)
if PLAIN: txt = txt.replace(" sc0 sc1", "")
open(out, "w").write(txt)
print(len(txt), "bytes")
hazard.check(txt)
```

```python
from common import *
from sched import *
from role_kv import load_w_rows384
from role_u import load_wo
import math, struct
STAMP = False
DELAY0 = 3
PBMODE = 0
DELAYL = 0
HW3 = 1
LRGAP = 0
XEARLY = 0
PREU = 2
NUMA = 1
TS3 = 0
TB = 44
TA = 135
XLATE = 30
TICKC = 363
XDELTA = 130
CVADJ = 150
DBVADJ = 2
CWAIT = 2100
TWSTEP = 28
S_TD = 98
PBSTEP0 = 10
PROBEW = 3
GIDX = 57
GIDXV = 3
DFAILB = 18
WIDE = 1
POLLW = 3
DELAY0V = 2
HBIDX = 44
XHINT = 1
DELAYH = 0
TAILW = 0
KMW = 0
RFIRST = 0
ZPRE2 = 1
HINTB = 0
HINTA = 0
HGAP = 1
PL_X = 'G'; PL_M = 'W'; K2W = 1; PL_P = 'T'; PL_K = 'T'
PBSTEPV = 4
PBSTG = 0
VAR = 1
SPEC = 1
WDEL = 9
DROP = 0
DELAYLV = 0
ZPRE = 1
DELAYZV = 2
DELAYZS = 2
PBSTEP = 4
VCAP = 2
DELAYBS = 0
TSTEP = 30
ORDER = 1
DELAYB = 0
NSTEP = 64

def f32bits(x): return struct.unpack("<I", struct.pack("<f", x))[0]

S_STEP=22; S_GRP=23; S_C=24; S_FAST=25; S_T=26; S_T2=27; S_CNT=28; S_DEAD=29
S_Z=30; S_ZN=31; S_P=32; S_PN=33; S_L=34; S_LN=35; S_RR=36; S_RW=37; S_US=38; S_US2=39
S_KS=44; S_EXP=45; S_ZP=46; S_PP=47; S_SC=48; S_KNOWN=49; S_KMX=67; S_ARR=57; S_KN=42
S_MA=50; S_MB=52
S_MU=54; S_MK=55; S_FLO=56; S_T3=58; S_T4=43; S_PST=59; S_PSM=60; S_PLX=61; S_PLM=62; S_ZL=63; S_ZL2=64; S_M3=68; S_G3=65
S_OLO = 40; S_OHI = 41; S_TGT = 66; S_EXN = 29; S_R3 = 29;  S_KMY = 39
S_TS=70
V_ZERO=0; V_IDX=2; V_L16=3; V_HI=4; V_WL=5; V_PW=6; V_T7=7; V_TRA=8; V_TRB=18; V_PLD=10; V_PM=11
V_FINR=12; V_TW=13; V_FINRM=14; V_UR=15; V_RW=16; V_KR=17; V_UH=17; V_UHR=18; V_GA=19
AF=20; ACC=60; TMP=76; XS=100; V_POI=120; V_ZH=124; V_FK=111; V_ZS4=125; V_ZS2=126; V_FL=127
V_G3W=9; V_FINRR=110; V_SXR=13; V_PX=16; V_FKS=124; V_TMP1=125; V_TMPV=11
L_MEM=98304; HI=L_MEM
S_LK=114688; S_LU=143360; S_LQ=108544; S_LKM=111616; S_LRED=126976; S_LSX=159744
V_LU=108544; V_LVX=133120; V_LRED=136192

ORD_S = [t*10+k for k in range(10) for t in range(2)] + list(range(20,40)) + [t*10+k for k in range(10) for t in (4,5)]
ORD_V = [t*10+k for k in range(10) for t in (0,1)] + list(range(20,60))
CUR_ORD = ORD_S
def wfrag(f):
    p = CUR_ORD.index(f)
    if p % 5 == 4: return ("lds", p//5)
    r = p - p//5
    return ("reg", 256 + 8*r if r < 32 else 128 + 8*(r-32))
def wdest(f, q):
    kind, x = wfrag(f)
    return reg(x + 2*q, 2) if kind == "reg" else v(AF + 8*x + 2*q, 2)

STUBS = []
def dual_text(A, lines):
    sl = A.newlabel("ds_s"); en = A.newlabel("ds_e")
    STUBS.append([sl + ":"] + [l + (" sc0 sc1" if l.startswith("buffer_store") else "") for l in lines] + [f"s_branch {en}"])
    return "\n".join([f"s_cmp_eq_u32 {s(S_FAST)}, 0", f"s_cbranch_scc1 {sl}"] + lines + [en + ":"])
def dual(A, lines): A(dual_text(A, lines))
def flush_stubs(A):
    for st in STUBS:
        for l in st: A(l)
    STUBS.clear()

def tick(A, k):
    if not STAMP or STAMP == 3: return
    if STAMP == 2:
        A(f"s_memrealtime {s(88,2)}")
        A("s_waitcnt lgkmcnt(0)")
        A(f"s_cmp_eq_u32 {s(S_STEP)}, {TSTEP + (1 if k >= 4 else 0)}")
        A(f"s_cselect_b32 {s(S_TS+k)}, {s(88)}, {s(S_TS+k)}")
        return
    A(f"s_memtime {s(88,2)}")
    A("s_waitcnt lgkmcnt(0)")
    A(f"s_sub_u32 {s(87)}, {s(88)}, {s(86)}")
    A(f"s_add_u32 {s(S_TS+k)}, {s(S_TS+k)}, {s(87)}")
    A(f"s_mov_b32 {s(86)}, {s(88)}")

TRACE = 0
def tr(A, k):
    if TRACE == 2: A(f"s_memrealtime {s(70+2*k,2)}")
    elif TRACE: A(f"s_memtime {s(70+2*k,2)}")
def trace_task():
    if not TRACE: return []
    L = [f"v_writelane_b32 {v(V_TRC)}, {s(70+2*k)}, {k}" for k in range(10)]
    L += [f"s_lshl_b32 s94, {s(S_STEP)}, 8", "s_add_u32 s94, s94, s95"]
    L.append("\n".join(["s_mov_b64 exec, 0x3ff", f"buffer_store_dword {v(V_TRC)}, {v(V_L16)}, {s(S_WS,4)}, s94 offen", "s_mov_b64 exec, -1"]))
    return [[1, 18, L]]
V_TRC = 125; V_TRA4 = 110
S_HP = 90; S_HN = 91; V_HA = 118
def hint_store(A, off, vt):
    A(f"s_add_u32 {s(S_HN)}, {s(S_STEP)}, 1")
    A(f"s_lshl_b32 {s(S_T)}, {s(S_C)}, 2")
    A(f"s_add_u32 {s(S_T)}, {s(S_T)}, {s(S_HP)}")
    A(f"v_mov_b32 {v(vt)}, {s(S_HN)}")
    dual(A, ["s_mov_b64 exec, 1", f"buffer_store_dword {v(vt)}, {v(V_ZERO)}, {s(S_WS,4)}, {s(S_T)} offen offset:{off}", "s_mov_b64 exec, -1"])
S_XW = 100; S_XR = 99
def hint_first(A, off, nw, va, a_, cross=False):
    A(f"s_add_u32 {s(S_HN)}, {s(S_STEP)}, 1")
    A(f"v_and_b32 {v(va)}, {nw-1}, {v(V_LANE)}")
    A(f"v_lshlrev_b32 {v(va)}, 2, {v(va)}")
    if cross and nw == 1: A(f"v_mov_b32 {v(va)}, {s(S_XR)}")
    elif cross: A(f"v_writelane_b32 {v(va)}, {s(S_XR)}, 32"); nw = 33
    A(f"s_mov_b64 exec, {hex((1<<nw)-1)}" if nw <= 32 else "s_mov_b32 exec_hi, 1")
    A(f"buffer_load_dword {v(a_)}, {v(va)}, {s(S_WS,4)}, {s(S_HP)} offen offset:{off} sc1")
def hint_poll(A, off, nw, va, a_, b_, ctr, cross=False, first=True):
    lp = A.newlabel("HP"); dn = A.newlabel("HPd")
    ld = lambda r: f"buffer_load_dword {v(r)}, {v(va)}, {s(S_WS,4)}, {s(S_HP)} offen offset:{off} sc1"
    if first:
        hint_first(A, off, nw, va, a_, cross)
        if HGAP: A(f"s_sleep {HGAP}")
    else:
        A(f"s_mov_b64 exec, {hex((1<<nw)-1)}" if (not cross or nw == 1) else "s_mov_b32 exec_hi, 1")
    A(ld(b_))
    A.label(lp)
    A("s_waitcnt vmcnt(1)")
    A(f"v_cmp_gt_i32 vcc, {s(S_HN)}, {v(a_)}")
    A(f"s_cbranch_vccz {dn}")
    A(ld(a_))
    A("s_waitcnt vmcnt(1)")
    A(f"v_cmp_gt_i32 vcc, {s(S_HN)}, {v(b_)}")
    A(f"s_cbranch_vccz {dn}")
    A(ld(b_))
    if STAMP: A(f"s_add_u32 {s(S_TS+ctr)}, {s(S_TS+ctr)}, 1")
    A(f"s_sub_u32 {s(S_CNT)}, {s(S_CNT)}, 1")
    A(f"s_cbranch_scc0 {lp}")
    A(f"s_mov_b32 {s(S_CNT)}, 0")
    A.label(dn)
    A("s_mov_b64 exec, -1")
def gate(A, off, nw, va, a_, b_, ctr, younger, d_pass, d_fail, cross=False):
    fl = A.newlabel("GTf"); bk = A.newlabel("GTb")
    A(f"s_waitcnt vmcnt({younger})")
    A(f"s_mov_b64 exec, {hex((1<<nw)-1)}")
    A(f"v_cmp_gt_i32 vcc, {s(S_HN)}, {v(a_)}")
    A("s_mov_b64 exec, -1")
    A(f"s_cbranch_vccnz {fl}")
    if d_pass: A(f"s_sleep {d_pass}")
    A.label(bk)
    B = Asm(); B.uid = A.uid + 600000; A.uid += 10
    B.label(fl)
    hint_poll(B, off, nw, va, a_, b_, ctr, cross=cross)
    if d_fail: B(f"s_sleep {d_fail}")
    B(f"s_branch {bk}")
    STUBS.append(B.lines)
def first_text(A, off, nw, va, a_):
    B = Asm(); hint_first(B, off, nw, va, a_); B("s_mov_b64 exec, -1")
    L = [l.strip() for l in B.lines]
    return L[:3] + ["\n".join(L[3:])]
def RTMP(): return 76 if not (TRACE or STAMP) else 92
def ts_hint_read(A):
    r = RTMP()
    A(f"s_memrealtime {s(r,2)}")
    A(f"s_add_u32 {s(S_HN)}, {s(S_STEP)}, 1")
    A(f"s_lshl_b32 {s(S_HN)}, {s(S_HN)}, 24")
    A(f"s_lshl_b32 {s(S_T)}, {s(S_C)}, 2")
    A(f"s_add_u32 {s(S_T)}, {s(S_T)}, {s(S_HP)}")
def ts_hint_store(A, E, vt, pre=False):
    r = RTMP()
    if not pre:
        ts_hint_read(A)
        E.drain()
    A(f"s_and_b32 {s(r)}, {s(r)}, 0xffffff")
    A(f"s_or_b32 {s(r)}, {s(r)}, {s(S_HN)}")
    A(f"v_mov_b32 {v(vt)}, {s(r)}")
    dual(A, ["s_mov_b64 exec, 1", f"buffer_store_dword {v(vt)}, {v(V_ZERO)}, {s(S_WS,4)}, {s(S_T)} offen", "s_mov_b64 exec, -1"])
def ts_wait(A, E, s_t, ticks, pre=False):
    r = RTMP(); lp = A.newlabel("TW")
    if not pre: A(f"s_memrealtime {s(r,2)}")
    A("s_waitcnt lgkmcnt(0)"); E.reset()
    A(f"s_add_u32 {s(r+1)}, {s(s_t)}, {ticks}")
    A(f"s_sub_u32 {s(r+1)}, {s(r+1)}, {s(r)}")
    A(f"s_and_b32 {s(r+1)}, {s(r+1)}, 0xffffff")
    A(f"s_cmp_gt_u32 {s(r+1)}, 200"); A(f"s_cselect_b32 {s(r+1)}, 0, {s(r+1)}")
    A(f"s_mul_i32 {s(r+1)}, {s(r+1)}, {TICKC}")
    A.label(lp)
    A(f"s_sub_u32 {s(r+1)}, {s(r+1)}, {44*16}")
    A(f"s_cmp_gt_i32 {s(r+1)}, 0")
    A(f"s_cbranch_scc1 {lp}")
S_A1_ = 11
def xstore(A):
    if HINTB != 6: A(f"s_add_u32 {s(S_HN)}, {s(S_STEP)}, 1")
    A(f"v_lshrrev_b32 {v(59)}, 2, {v(V_L16)}")
    A(f"s_cmp_eq_u32 {s(S_C)}, 16")
    A(f"v_mov_b32 {v(57)}, {s(S_HN if HINTB != 6 else S_TD)}")
    A("s_cselect_b32 exec_lo, -1, 0"); A("s_mov_b32 exec_hi, 0")
    A(f"s_add_u32 {s(S_A1_)}, {s(S_RW)}, {s(S_XW)}")
    A(f"buffer_store_dword {v(57)}, {v(59)}, {s(S_WS,4)}, {s(S_A1_)} offen sc0 sc1")
    A("s_mov_b64 exec, -1")
def ts_poll(A, va, a_, b_, ctr):
    lp = A.newlabel("HP"); dn = A.newlabel("HPd"); d2 = A.newlabel("HPe")
    ld = lambda r: f"buffer_load_dword {v(r)}, {v(va)}, {s(S_WS,4)}, {s(S_HP)} offen sc1"
    A(f"s_add_u32 {s(S_HN)}, {s(S_STEP)}, 1")
    A(f"s_lshl_b32 {s(S_HN)}, {s(S_HN)}, 24")
    A(f"v_and_b32 {v(va)}, 15, {v(V_LANE)}")
    A(f"v_lshlrev_b32 {v(va)}, 2, {v(va)}")
    A("s_mov_b64 exec, 0xffff")
    A.label(lp)
    A(ld(a_))
    if STAMP: A(f"s_add_u32 {s(S_TS+ctr)}, {s(S_TS+ctr)}, 1")
    A(f"s_sub_u32 {s(S_CNT)}, {s(S_CNT)}, 1")
    A(f"s_cbranch_scc1 {d2}")
    A("s_waitcnt vmcnt(0)")
    A(f"v_cmp_gt_i32 vcc, {s(S_HN)}, {v(a_)}")
    A(f"s_cbranch_vccnz {lp}")
    A.label(dn)
    STUBS.append([d2 + ":", f"s_mov_b32 {s(S_CNT)}, 0", "s_waitcnt vmcnt(0)", f"s_branch {dn}"])
    A(f"s_memrealtime {s(RTMP(),2)}")
    for sh in (1, 2, 4, 8):
        A("s_nop 1")
        A(f"v_max_i32_dpp {v(a_)}, {v(a_)}, {v(a_)} row_ror:{sh} row_mask:0xf bank_mask:0xf")
    A("s_nop 0")
    A(f"v_readfirstlane_b32 {s(S_TD)}, {v(a_)}")
    A("s_mov_b64 exec, -1")
def wait_poison(A, extra=0, fin=False):
    key = f"{v(V_POI,2)}, {v(V_FINRM)}" if fin else f"{v(V_POI,2)}, "
    idx = max(i for i, l in enumerate(A.lines) if "buffer_store" in l and (key in l))
    n = sum(1 for l in A.lines[idx+1:] if l.strip().startswith("buffer_"))
    return f"s_waitcnt vmcnt({max(n - extra, 0)})"
def loop_top(A, lab, ctr=15):
    A.label(lab)
    if STAMP: A(f"s_add_u32 {s(S_TS+ctr)}, {s(S_TS+ctr)}, 1")
    A(f"s_sub_u32 {s(S_CNT)}, {s(S_CNT)}, 1")
    A(f"s_cbranch_scc1 {lab}_dead")
def retry(A, lab, ctr=15):
    A(f"s_cbranch_vccnz {lab}")
    A.label(lab + "_ok")
    STUBS.append([lab + "_dead:", f"s_mov_b32 {s(S_CNT)}, 0", "s_mov_b64 exec, -1" if ctr in (11, 12, 15) else "s_nop 0", f"s_branch {lab}_ok"])

def mp_init(A, masks, base=0):
    for i, m in enumerate(masks): A(f"s_mov_b64 {s(FPS[base+i],2)}, {m}")
def mp_issue(A, loads, base=0):
    for i, (r, ld) in enumerate(loads):
        A(f"s_mov_b64 exec, {s(FPS[base+i],2)}"); A(ld)
    A("s_mov_b64 exec, -1")
def mp_check(loads, mt, base=0):
    L = []
    for i, (r, _) in enumerate(loads):
        L += [f"v_max_u32 {v(mt+i)}, {v(r)}, {v(r+2)}"]
    L += [f"v_cmp_eq_u32 {s(FPS[base+i],2)}, -1, {v(mt+i)}" for i in range(len(loads))]
    return L
def mp_close(A, n, lab, base=0):
    A(f"s_or_b64 vcc, {s(FPS[base],2)}, {s(FPS[base+1],2)}")
    for i in range(2, n): A(f"s_or_b64 vcc, vcc, {s(FPS[base+i],2)}")
    A(f"s_cbranch_scc1 {lab}")
    A.label(lab + "_ok")
    STUBS.append([lab + "_dead:", f"s_mov_b32 {s(S_CNT)}, 0", f"s_branch {lab}_ok"])
FPS = [12, 14, 16, 18, 8, 96]

def maxtree(regs_, t):
    L = []; r = list(regs_)
    L.append(f"v_max3_u32 {v(t)}, {v(r[0])}, {v(r[1])}, {v(r[2])}"); r = r[3:]
    while len(r) >= 2:
        L.append(f"v_max3_u32 {v(t)}, {v(t)}, {v(r[0])}, {v(r[1])}"); r = r[2:]
    if r: L.append(f"v_max_u32 {v(t)}, {v(t)}, {v(r[0])}")
    return L

def post(sa, out=None):
    o = sa if out is None else out
    return [f"v_add_f32 {v(sa)}, {v(sa)}, {v(sa+1)}", f"v_add_f32 {v(sa+2)}, {v(sa+2)}, {v(sa+3)}",
            f"v_cvt_pk_bf16_f32 {v(o)}, {v(sa)}, {v(sa+2)}"]
def post_s(sa, off, tag):
    return post(sa) + [ds(tag, f"ds_write_b32 {v(V_PW)}, {v(sa)} offset:{off}")]
def post_v(sa, off, tag):
    return post(sa) + [ds(tag, f"ds_write_b16 {v(V_PW)}, {v(sa)} offset:{off}"), ds(tag, f"ds_write_b16_d16_hi {v(V_PW)}, {v(sa)} offset:{off+4}")]
def zero(sa): return [f"v_mov_b64 {v(sa,2)}, 0", f"v_mov_b64 {v(sa+2,2)}, 0"]
def wl_read(j):
    r = TMP + 8*(j % 3)
    return [ds(f"W{j}", f"ds_read_b128 {v(r,4)}, {v(V_WL)} offset:{j*2048}"),
            ds(f"W{j}", f"ds_read_b128 {v(r+4,4)}, {v(V_WL)} offset:{j*2048+1024}")]
def smf(f, acc, afrag):
    kind, x = wfrag(f)
    it = []
    if kind == "lds":
        it.append(need(f"W{x}")); b = v(TMP + 8*(x % 3), 8)
    else: b = reg(x, 8)
    it.append(f"v_smfmac_f32_16x16x64_bf16 {v(acc,4)}, {v(afrag,4)}, {b}, {v(V_IDX)}")
    return it
def refill_tasks():
    return [[5*j+4, 5*(j+3)+4-5, wl_read(j+3)] for j in range(9)]

def setup_common(A, isV):
    LU = V_LU if isV else S_LU; LRED = V_LRED if isV else S_LRED
    t0, t1, t2 = 112, 113, 114
    A(f"v_mov_b32 {v(V_ZERO)}, 0")
    A(f"v_and_b32 {v(t0)}, 15, {v(V_LANE)}")
    A(f"v_lshrrev_b32 {v(t1)}, 4, {v(V_LANE)}")
    A(f"v_mov_b32 {v(V_IDX)}, 0x4444")
    A(f"v_mov_b32 {v(t2)}, 0xeeee")
    A(f"v_and_b32 {v(V_L16)}, 1, {v(V_LANE)}")
    A(f"v_cmp_eq_u32 vcc, 1, {v(V_L16)}")
    A("s_nop 1")
    A(f"v_cndmask_b32 {v(V_IDX)}, {v(V_IDX)}, {v(t2)}, vcc")
    A(f"v_lshlrev_b32 {v(V_L16)}, 4, {v(V_LANE)}")
    A(f"v_add_u32 {v(V_HI)}, {HI}, {v(V_L16)}")
    A(f"s_mul_i32 {s(S_T)}, {s(S_WAVE)}, 24576")
    A(f"v_add_u32 {v(V_WL)}, {s(S_T)}, {v(V_L16)}")
    if isV:
        A(f"v_and_b32 {v(t2)}, 7, {v(t0)}")
        A(f"v_lshlrev_b32 {v(t2)}, 5, {v(t2)}")
        A(f"v_lshl_add_u32 {v(t2)}, {v(t1)}, 3, {v(t2)}")
        A(f"v_lshrrev_b32 {v(V_PW)}, 3, {v(t0)}")
        A(f"v_lshl_add_u32 {v(t2)}, {v(V_PW)}, 1, {v(t2)}")
    else:
        A(f"v_lshlrev_b32 {v(t2)}, 2, {v(t1)}")
        A(f"v_lshl_add_u32 {v(t2)}, {v(t0)}, 4, {v(t2)}")
    A(f"s_mul_i32 {s(S_T)}, {s(S_WAVE)}, 768")
    A(f"s_add_u32 {s(S_T)}, {s(S_T)}, {V_LVX if isV else S_LQ}")
    A(f"v_add_u32 {v(V_PW)}, {s(S_T)}, {v(t2)}")
    A(f"v_and_b32 {v(t2)}, 7, {v(t0)}")
    A(f"v_lshl_add_u32 {v(V_PLD)}, {v(t1)}, 3, {v(t2)}")
    A(f"v_lshlrev_b32 {v(V_PLD)}, 4, {v(V_PLD)}")
    A(f"v_lshl_add_u32 {v(V_FINR)}, {v(t1)}, 4, {v(t2)}")
    A(f"v_lshlrev_b32 {v(V_FINR)}, 4, {v(V_FINR)}")
    if isV:
        A(f"s_and_b32 {s(S_T)}, {s(S_C)}, 1")
        A(f"s_lshl_b32 {s(S_T)}, {s(S_T)}, 7")
        A(f"v_add_u32 {v(V_ZH)}, {s(S_T)}, {v(V_FINR)}")
        A(f"v_lshrrev_b32 {v(V_UH)}, 3, {v(t0)}")
        A(f"v_mul_u32_u24 {v(V_UH)}, 40960, {v(V_UH)}")
        A(f"v_add_u32 {v(V_UH)}, {v(V_UH)}, {v(V_ZH)}")
        A(f"s_mul_i32 {s(S_T)}, {s(S_WAVE)}, 6144")
        A(f"s_add_u32 {s(S_T)}, {s(S_T)}, {LU+4096}")
        A(f"v_add_u32 {v(V_UHR)}, {s(S_T)}, {v(V_FINR)}")
        A(f"v_mov_b32 {v(V_FINR)}, {v(V_L16)}")
    A(f"v_add_u32 {v(V_FINR)}, {LRED}, {v(V_FINR)}")
    A(f"s_mul_i32 {s(S_MU)}, {s(S_WAVE)}, {6144 if isV else 4096}")
    A(f"s_add_u32 {s(S_MU)}, {s(S_MU)}, {LU}")
    A(f"v_add_u32 {v(V_UR)}, {s(S_MU)}, {v(V_L16)}")
    if isV:
        A(f"s_mul_i32 {s(S_T)}, {s(S_WAVE)}, 1024")
        A(f"s_add_u32 {s(S_T)}, {s(S_T)}, {LRED}")
        A(f"v_add_u32 {v(V_RW)}, {s(S_T)}, {v(V_L16)}")
    A(f"v_lshrrev_b32 {v(V_FINRM)}, 1, {v(t1)}")
    A(f"s_lshl_b32 {s(S_T)}, {s(S_C)}, 1")
    A(f"v_add_u32 {v(V_FINRM)}, {s(S_T)}, {v(V_FINRM)}")
    if isV:
        A(f"s_add_u32 {s(S_T)}, {s(S_C)}, {64-16}")
        A(f"v_mov_b32 {v(V_TW)}, {s(S_T)}")
        A(f"v_cmp_lt_u32 vcc, 7, {v(t0)}")
        A("s_nop 1")
        A(f"v_cndmask_b32 {v(V_FINRM)}, {v(V_FINRM)}, {v(V_TW)}, vcc")
        A(f"v_lshrrev_b32 {v(V_TW)}, 3, {v(t0)}")
        A(f"v_lshl_add_u32 {v(V_TW)}, {v(V_TW)}, 9, {v(V_PLD)}")
    A(f"v_lshlrev_b32 {v(V_FINRM)}, 7, {v(V_FINRM)}")
    A(f"v_lshl_add_u32 {v(V_FINRM)}, {v(t2)}, 4, {v(V_FINRM)}")
    A(f"v_and_b32 {v(t2)}, 1, {v(t1)}")
    A(f"v_lshl_add_u32 {v(V_FINRM)}, {v(t2)}, 3, {v(V_FINRM)}")
    A(f"s_mov_b32 {s(S_MA)}, 0x00ff00ff")
    A(f"s_mov_b32 {s(S_MA+1)}, 0x00ff00ff")
    A(f"s_mov_b32 {s(S_MB)}, {'0xffffffff' if isV else '0x00ff00ff'}")
    A(f"s_mov_b32 {s(S_MB+1)}, {'0x00ff00ff' if isV else '0'}")
    A(f"s_lshl_b32 {s(S_T)}, {s(S_WAVE)}, 10")
    A(f"v_add_u32 {v(V_T7)}, {s(S_T)}, {v(V_L16)}")
    if not isV: A(f"v_add_u32 {v(126)}, {HI}, {v(V_T7)}")
    A(f"s_lshr_b32 {s(S_G3)}, {s(S_WAVE)}, 1")
    A(f"s_add_u32 {s(S_G3)}, {s(S_G3)}, 8")
    A(f"s_sub_u32 {s(S_G3)}, {s(S_G3)}, {s(S_WAVE)}")
    A(f"s_lshl_b32 {s(S_G3)}, {s(S_G3)}, 10")
    A(f"s_and_b32 {s(S_T2)}, {s(S_WAVE)}, 1")
    A(f"s_sub_u32 {s(S_M3)}, {s(S_T2)}, 1")
    A(f"s_sub_u32 {s(S_M3+1)}, 0, {s(S_T2)}")
    A(f"v_and_b32 {v(V_GA)}, 7, {v(V_LANE)}")
    A(f"v_lshlrev_b32 {v(V_GA)}, 5, {v(V_GA)}")
    A(f"v_lshl_add_u32 {v(V_GA)}, {v(t1)}, 8, {v(V_GA)}")
    A(f"v_bfe_u32 {v(115)}, {v(V_LANE)}, 3, 1")
    A(f"v_lshl_add_u32 {v(V_GA)}, {v(115)}, 4, {v(V_GA)}")
    A(f"s_add_u32 {s(S_T)}, {s(S_T)}, {HI}")
    A(f"v_add_u32 {v(V_GA)}, {s(S_T)}, {v(V_GA)}")
    A(f"v_add_u32 {v(V_G3W)}, {s(S_G3)}, {v(V_GA)}")
    for i in range(4): A(f"v_mov_b32 {v(V_POI+i)}, -1")
    r_, c_ = 115, 116
    A(f"v_bfe_u32 {v(r_)}, {v(V_LANE)}, 2, 2")
    A(f"v_and_b32 {v(c_)}, 1, {v(V_LANE)}")
    A(f"v_lshlrev_b32 {v(c_)}, 3, {v(c_)}")
    if not isV:
        A(f"v_add_u32 {v(c_)}, {S_LQ}, {v(c_)}")
        A(f"v_lshl_add_u32 {v(V_TRA)}, {v(t1)}, 2, {v(r_)}")
        A(f"v_lshl_add_u32 {v(V_TRA)}, {v(V_TRA)}, 4, {v(c_)}")
        A(f"v_lshrrev_b32 {v(t2)}, 1, {v(t1)}")
        A(f"v_mul_u32_u24 {v(t2)}, 48, {v(t2)}")
        A(f"v_and_b32 {v(V_TRB)}, 1, {v(t1)}")
        A(f"v_lshl_add_u32 {v(V_TRB)}, {v(V_TRB)}, 3, {v(t2)}")
        A(f"v_add_u32 {v(V_TRB)}, {v(V_TRB)}, {v(r_)}")
        A(f"v_lshl_add_u32 {v(V_TRB)}, {v(V_TRB)}, 4, {v(c_)}")
        A(f"v_and_b32 {v(t2)}, 7, {v(t0)}")
        A(f"v_lshl_add_u32 {v(t2)}, {v(t1)}, 4, {v(t2)}")
        A(f"v_lshlrev_b32 {v(t2)}, 4, {v(t2)}")
        A(f"v_lshrrev_b32 {v(V_PX)}, 3, {v(t0)}")
        A(f"v_lshl_add_u32 {v(V_SXR)}, {v(V_PX)}, 11, {v(t2)}")
        A(f"v_add_u32 {v(V_SXR)}, {S_LSX}, {v(V_SXR)}")
        A(f"v_lshl_add_u32 {v(V_PX)}, {v(V_PX)}, 3, {v(t2)}")
        A(f"v_lshlrev_b32 {v(V_PM)}, 4, {v(t0)}")
        A(f"v_lshl_add_u32 {v(V_PM)}, {v(t1)}, 3, {v(V_PM)}")
        A(f"s_sub_u32 {s(S_T)}, {s(S_WAVE)}, 1")
        A(f"s_and_b32 {s(S_T)}, {s(S_T)}, 3")
        A(f"s_lshr_b32 {s(S_T2)}, {s(S_WAVE)}, 1")
        A(f"s_mul_i32 {s(S_T2)}, {s(S_T2)}, 6144")
        A(f"s_add_u32 {s(S_T2)}, {s(S_T2)}, {S_LK}")
        A(f"v_add_u32 {v(V_KR)}, {s(S_T2)}, {v(V_L16)}")
        A(f"s_mul_i32 {s(S_MK)}, {s(S_T)}, {6144 if K2W else 4096}")
        A(f"s_mul_i32 {s(S_KS)}, {s(S_HEAD)}, 12288")
        A(f"s_add_u32 {s(S_KS)}, {s(S_KS)}, {s(S_MK)}")
        A(f"s_add_u32 {s(S_KS)}, {s(S_KS)}, {WS_K}")
        A(f"s_add_u32 {s(S_MK)}, {s(S_MK)}, {S_LK}")
        A(f"s_lshr_b32 {s(S_PST)}, {s(S_HEAD)}, 1")
        A(f"s_lshl_b32 {s(S_PST)}, {s(S_PST)}, 10")
        A(f"s_and_b32 {s(S_PSM)}, {s(S_HEAD)}, 1")
        A(f"s_lshl_b32 {s(S_PSM)}, {s(S_PSM)}, 7")
        A(f"s_add_u32 {s(S_PST)}, {s(S_PST)}, {s(S_PSM)}")
        A(f"s_lshl_b32 {s(S_PSM)}, {s(S_HEAD)}, 7")
        A(f"s_add_u32 {s(S_PSM)}, {s(S_PSM)}, 16384")
    else:
        A(f"v_lshl_add_u32 {v(t2)}, {v(t1)}, 3, {v(r_)}")
        A(f"v_and_b32 {v(c_)}, 3, {v(V_LANE)}")
        A(f"v_lshlrev_b32 {v(c_)}, 3, {v(c_)}")
        A(f"v_lshl_add_u32 {v(V_TRA)}, {v(t2)}, 5, {v(c_)}")
        A(f"v_add_u32 {v(V_TRA)}, {V_LVX}, {v(V_TRA)}")
        A(f"v_lshlrev_b32 {v(V_ZS4)}, 13, {v(t1)}")
        A(f"v_and_b32 {v(t2)}, 1, {v(t1)}")
        A(f"v_lshlrev_b32 {v(V_ZS2)}, 13, {v(t2)}")
        A(f"v_lshrrev_b32 {v(t2)}, 1, {v(t1)}")
        A(f"v_lshl_add_u32 {v(V_ZS2)}, {v(t2)}, 3, {v(V_ZS2)}")
        A(f"s_mul_i32 {s(S_T)}, {s(S_WAVE)}, {10*8192}")
        A(f"s_lshl_b32 {s(S_T2)}, {s(S_HEAD)}, 8")
        A(f"s_add_u32 {s(S_T)}, {s(S_T)}, {s(S_T2)}")
        A(f"v_lshl_add_u32 {v(t2)}, {v(t0)}, 4, {s(S_T)}")
        A(f"v_add_u32 {v(V_ZS4)}, {v(V_ZS4)}, {v(t2)}")
        A(f"v_add_u32 {v(V_ZS2)}, {v(V_ZS2)}, {v(t2)}")
        A(f"v_add_u32 {v(V_ZS2)}, {8*8192}, {v(V_ZS2)}")
    A(f"s_mov_b32 {s(S_Z)}, {MB_Z}")
    A(f"s_mov_b32 {s(S_ZN)}, {MB_Z+327680}")
    A(f"s_mov_b32 {s(S_P)}, {MB_P}")
    A(f"s_mov_b32 {s(S_PN)}, {MB_P+20480}")
    A(f"s_mov_b32 {s(S_ZP)}, {MB_Z+2*327680}")
    A(f"s_mov_b32 {s(S_PP)}, {MB_P+2*20480}")
    A(f"s_mul_i32 {s(S_T)}, {s(S_GRP)}, 10240")
    A(f"s_add_u32 {s(S_L)}, {s(S_T)}, {MB_L}")
    A(f"s_add_u32 {s(S_LN)}, {s(S_T)}, {MB_L+20480}")
    if True:
        A(f"s_lshl_b32 {s(S_T)}, {s(S_GRP)}, 14")
        A(f"s_add_u32 {s(S_RW)}, {s(S_T)}, {MB_R}")
        A(f"s_sub_u32 {s(S_RR)}, {MB_R + 16384}, {s(S_T)}")
        A(f"s_mul_i32 {s(S_T)}, {s(S_GRP)}, 14336")
        A(f"s_add_u32 {s(S_R3)}, {s(S_T)}, {32768 + 2048 - 8192 - 16384}")
        A(f"s_add_u32 {s(S_R3)}, {s(S_R3)}, {s(S_G3)}")
        if isV:
            A(f"s_sub_u32 {s(S_T)}, {32768 - 8192}, {s(S_T)}")
            A(f"v_add_u32 {v(V_FINRR)}, {s(S_T)}, {v(V_FINRM)}")
            A(f"v_cmp_lt_u32 vcc, 7, {v(t0)}")
            A("s_nop 1")
            A(f"v_cndmask_b32 {v(V_FINRR)}, {v(V_FINRM)}, {v(V_FINRR)}, vcc")
        A(f"s_mov_b32 {s(S_OLO)}, 0x00003f80"); A(f"s_mov_b32 {s(S_OHI)}, 0x3f800000"); A(f"s_mov_b32 {s(S_TGT)}, 0")
    A(f"s_lshl_b32 {s(S_T)}, {s(S_GRP)}, 2")
    A(f"s_add_u32 {s(S_T)}, {s(S_T)}, {s(S_WAVE)}")
    A(f"s_lshl_b32 {s(S_PLX)}, {s(S_T)}, 11")
    A(f"s_lshl_b32 {s(S_PLM)}, {s(S_T)}, 9")
    A(f"s_add_u32 {s(S_PLM)}, {s(S_PLM)}, 16384")
    A(f"s_lshl_b32 {s(S_ZL)}, {s(S_T)}, 10")
    A(f"s_mul_i32 {s(S_US)}, {s(S_T)}, {4*40960}")
    A(f"s_add_u32 {s(S_US)}, {s(S_US)}, {WS_U}")
    if isV:
        A(f"s_sub_u32 {s(S_T2)}, {s(S_C)}, 16")
        A(f"s_lshr_b32 {s(S_T2)}, {s(S_T2)}, 1")
        A(f"s_add_u32 {s(S_T2)}, {s(S_T2)}, 32")
        A(f"s_lshl_b32 {s(S_T3)}, {s(S_T2)}, 13")
        A(f"s_add_u32 {s(S_ZL2)}, {s(S_ZL)}, {s(S_T3)}")
        A(f"s_lshl_b32 {s(S_T3)}, {s(S_T2)}, 10")
        A(f"s_add_u32 {s(S_US2)}, {s(S_US)}, {s(S_T3)}")
    A(f"s_lshl_b32 {s(S_T3)}, {s(S_C)}, 13")
    A(f"s_add_u32 {s(S_ZL)}, {s(S_ZL)}, {s(S_T3)}")
    A(f"s_lshl_b32 {s(S_T3)}, {s(S_C)}, 10")
    A(f"s_add_u32 {s(S_US)}, {s(S_US)}, {s(S_T3)}")
    A(f"s_mov_b32 {s(S_ARR)}, {CN_Z - 256}")
    A(f"s_lshl_b32 {s(S_HP)}, {s(S_GRP)}, 8")
    A(f"s_add_u32 {s(S_HP)}, {s(S_HP)}, {MB_H}")
    A(f"s_mul_i32 {s(S_T2)}, {s(S_GRP)}, {16384-128}")
    A(f"s_sub_u32 {s(S_XW)}, {32768+4096}, {s(S_T2)}")
    A(f"s_add_u32 {s(S_XR)}, {s(S_T2)}, {32768+4096+128-16384}")
    A(f"s_lshl_b32 {s(S_FLO)}, {s(S_HEAD)}, 7")
    A(f"s_mov_b32 {s(S_KNOWN)}, 0")
    A(f"s_mov_b32 {s(S_KN)}, 1")
    A(f"v_mov_b32 {v(V_FL)}, 0")
    if not isV: A(f"v_mov_b32 {v(V_FKS)}, 0")
    A(f"s_mov_b32 {s(S_SC)}, {f32bits(192**-0.5*math.log2(math.e))}")
    A(f"s_mov_b32 {s(S_STEP)}, 0")
    A(f"s_mov_b32 {s(S_CNT)}, {SPIN_MAX + 1000 if SPIN_MAX else 0}")
    A(f"s_mov_b32 {s(S_EXP)}, {WS_Z if (VAR == 2 or PL_X != 'S') else WS_SCR}")
    if PL_X == 'S': A(f"s_mov_b32 {s(S_EXN)}, {WS_Z}")
    A(f"s_mul_i32 {s(S_KMX)}, {s(S_HEAD)}, 3072")
    A(f"s_add_u32 {s(S_KMX)}, {s(S_KMX)}, {WS_KM - 1024}")
    if not isV: A(f"s_mov_b32 {s(S_KMY)}, {WS_SCR}")
    if STAMP:
        for k in range(16): A(f"s_mov_b32 {s(S_TS+k)}, 0")

LOOKA = 0
def spin(lines_load, cond, ok):
    pass

def u_check(A, seg_off):
    sl = A.newlabel("uc_s"); ok = A.newlabel("uc_ok"); lp = A.newlabel("uc_lp"); g1 = A.newlabel("uc_g")
    A(f"s_add_u32 {s(S_T3)}, {s(S_STEP)}, {seg_off}")
    A(f"s_cmp_ge_u32 {s(S_T3)}, {s(S_KNOWN)}")
    A(f"s_cbranch_scc1 {sl}")
    A.label(ok)
    ld = f"buffer_load_dword {v(V_FL)}, {v(V_ZERO)}, {s(S_WS,4)}, {s(S_T4)} offen sc1"
    STUBS.append([sl + ":",
        f"s_add_u32 {s(S_KNOWN)}, {s(S_T3)}, {LOOKA}", f"s_min_u32 {s(S_KNOWN)}, {s(S_KNOWN)}, {NSEG-1}",
        f"s_lshl_b32 {s(S_T4)}, {s(S_KNOWN)}, 7", f"s_add_u32 {s(S_T4)}, {s(S_T4)}, {CN_U}", f"s_add_u32 {s(S_KNOWN)}, {s(S_KNOWN)}, 1",
        ld, "s_waitcnt vmcnt(0)", f"v_cmp_gt_u32 vcc, 32, {v(V_FL)}", f"s_cbranch_vccz {ok}",
        f"s_add_u32 {s(S_KNOWN)}, {s(S_T3)}, 1", f"s_min_u32 {s(S_T3)}, {s(S_T3)}, {NSEG-1}",
        f"s_lshl_b32 {s(S_T4)}, {s(S_T3)}, 7", f"s_add_u32 {s(S_T4)}, {s(S_T4)}, {CN_U}",
        lp + ":", ld, "s_waitcnt vmcnt(0)", f"v_cmp_gt_u32 vcc, 32, {v(V_FL)}", f"s_cbranch_vccz {ok}",
        f"s_sub_u32 {s(S_CNT)}, {s(S_CNT)}, 1", f"s_cbranch_scc0 {lp}", f"s_mov_b32 {s(S_CNT)}, 0", f"s_branch {ok}"])

def k_check(A):
    sl = A.newlabel("kc_s"); ok = A.newlabel("kc_ok"); lp = A.newlabel("kc_lp")
    A.label(lp)
    A(f"v_cmp_gt_u32 vcc, {s(S_KN)}, {v(V_FKS)}")
    A(f"s_cbranch_vccnz {sl}")
    A.label(ok)
    STUBS.append([sl + ":", f"s_sub_u32 {s(S_CNT)}, {s(S_CNT)}, 1", f"s_cbranch_scc1 {sl}_d", f"s_add_u32 {s(S_T3)}, {s(S_FLO)}, {FL_K}",
                  f"buffer_load_dword {v(V_FKS)}, {v(V_ZERO)}, {s(S_WS,4)}, {s(S_T3)} offen sc1", "s_waitcnt vmcnt(0)", f"s_branch {lp}",
                  sl + "_d:", f"s_mov_b32 {s(S_CNT)}, 0", f"s_branch {ok}"])

def k_dma(A, cls=12):
    if K2W:
        if cls == 12:
            A(f"s_mov_b32 m0, {s(S_MK)}")
            A(f"s_add_u32 {s(S_T)}, {s(S_KS)}, 3072")
            for j in range(3):
                A(f"buffer_load_dwordx4 {v(V_L16)}, {s(S_WS,4)}, {s(S_KS)} offen offset:{j*1024} sc1 lds")
            A(f"s_add_u32 m0, {s(S_MK)}, 3072")
            A("s_nop 0")
            for j in range(3):
                A(f"buffer_load_dwordx4 {v(V_L16)}, {s(S_WS,4)}, {s(S_T)} offen offset:{j*1024} sc1 lds")
    else:
        A(f"s_mov_b32 m0, {s(S_MK)}")
        A("s_nop 0")
        for j in range(4):
            A(f"buffer_load_dwordx4 {v(V_L16)}, {s(S_WS,4)}, {s(S_KS)} offen offset:{j*1024} sc1 lds")
    A(f"s_add_u32 {s(S_KS)}, {s(S_KS)}, {NH*12288}")
    A(f"s_add_u32 {s(S_KN)}, {s(S_KN)}, 1")
    A(f"s_min_u32 {s(S_KN)}, {s(S_KN)}, {NSEG}")

def phaseB_items(A, isV, cls, flags):
    L = [f"s_mov_b32 m0, {s(S_MU)}"]
    for j in range(4):
        L.append(f"s_add_u32 {s(S_T4)}, {s(S_US)}, {j*(40960-1024)}")
        L.append(f"buffer_load_dwordx4 {v(V_L16)}, {s(S_WS,4)}, {s(S_T4)} offen offset:{j*1024} sc1 lds")
    if isV:
        L.append(f"s_add_u32 m0, {s(S_MU)}, 4096")
        L.append(f"s_add_u32 {s(S_T4)}, {s(S_US2)}, {2*40960-1024}")
        L.append(f"buffer_load_dwordx4 {v(V_UH)}, {s(S_WS,4)}, {s(S_US2)} offen sc1 lds")
        L.append(f"buffer_load_dwordx4 {v(V_UH)}, {s(S_WS,4)}, {s(S_T4)} offen offset:1024 sc1 lds")
    if flags and cls == 0:
        if isV:
            an = A.newlabel("an"); ab = A.newlabel("ab")
            STUBS.append([an + ":", f"s_cmp_lt_u32 {s(S_STEP)}, 2", f"s_cbranch_scc1 {ab}", f"v_mov_b32 {v(V_TMPV)}, 32", "s_mov_b64 exec, 1",
                          f"buffer_atomic_add {v(V_TMPV)}, {v(V_ZERO)}, {s(S_WS,4)}, {s(S_ARR)} offen sc1", "s_mov_b64 exec, -1", f"s_branch {ab}"])
            L.append("\n".join([f"s_cmp_eq_u32 {s(S_C)}, 16", f"s_cbranch_scc1 {an}", ab + ":"]))
        else:
            L += [f"s_add_u32 {s(S_T)}, {s(S_FLO)}, {FL_KM}", f"s_sub_u32 {s(S_T2)}, {s(S_STEP)}, 0", f"s_max_i32 {s(S_T2)}, {s(S_T2)}, 0", f"v_mov_b32 {v(V_FL)}, {s(S_T2)}"]
            L.append("\n".join(["s_mov_b64 exec, 1", f"buffer_store_dword {v(V_FL)}, {v(V_ZERO)}, {s(S_WS,4)}, {s(S_T)} offen sc0 sc1", "s_mov_b64 exec, -1"]))
    return L

def km_export(A, E, tmp):
    E(ds("KX", f"ds_read_b128 {v(tmp,4)}, {v(126)} offset:{S_LKM-HI-1024}"))
    E(need("KX"))
    A(f"buffer_store_dwordx4 {v(tmp,4)}, {v(V_T7)}, {s(S_WS,4)}, {s(S_KMX)} offen sc0 sc1")

ZF = 48
def z_poison(A):
    A(f"s_add_u32 {s(S_T2)}, {s(S_ZP)}, {4*8192}")
    dual(A, [f"buffer_store_dwordx4 {v(V_POI,4)}, {v(V_ZS4)}, {s(S_WS,4)}, {s(S_ZP)} offen",
             f"buffer_store_dwordx4 {v(V_POI,4)}, {v(V_ZS4)}, {s(S_WS,4)}, {s(S_T2)} offen",
             f"buffer_store_dwordx2 {v(V_POI,2)}, {v(V_ZS2)}, {s(S_WS,4)}, {s(S_ZP)} offen"])
def p_poison(A, slot):
    A(f"s_add_u32 {s(S_T)}, {s(slot)}, {s(S_PST)}"); A(f"s_add_u32 {s(S_T2)}, {s(slot)}, {s(S_PSM)}")
    dual(A, [f"s_mov_b64 exec, {s(S_MA,2)}",
             f"buffer_store_dwordx4 {v(V_POI,4)}, {v(V_L16)}, {s(S_WS,4)}, {s(S_T)} offen",
             f"s_mov_b64 exec, {s(S_MB,2)}",
             f"buffer_store_dwordx2 {v(V_POI,2)}, {v(V_PM)}, {s(S_WS,4)}, {s(S_T2)} offen",
             "s_mov_b64 exec, -1"])
def z_export(A, isV, zf, woff):
    A(f"s_add_u32 {s(S_T)}, {s(S_EXP)}, {s(S_ZL)}")
    if woff: A(f"s_sub_u32 {s(S_T)}, {s(S_T)}, {s(woff)}")
    A(f"buffer_store_dwordx4 {v(zf,4)}, {v(V_L16)}, {s(S_WS,4)}, {s(S_T)} offen sc0 sc1")
    if isV:
        A(f"s_add_u32 {s(S_T)}, {s(S_EXP)}, {s(S_ZL2)}")
        if woff: A(f"s_sub_u32 {s(S_T)}, {s(S_T)}, {s(woff)}")
        A(f"s_mov_b64 exec, {s(S_MA,2)}")
        A(f"buffer_store_dwordx4 {v(zf+4,4)}, {v(V_ZH)}, {s(S_WS,4)}, {s(S_T)} offen sc0 sc1")
        A("s_mov_b64 exec, -1")
def window(A, E, isV, cls, flags):
    LZ = (V_LVX if isV else S_LK + 12288) - HI
    last = A.newlabel("wz")
    if WDEL: A(f"s_sleep {WDEL}")
    z_export(A, isV, ZF, None)
    if cls != 3:
        A(f"s_cmp_lg_u32 {s(S_WAVE)}, {3 if isV else 1}"); A(f"s_cbranch_scc1 {last}")
        for t in range(2 if isV else 1): E(ds("zs", f"ds_read_b128 {v(AF+4*t,4)}, {v(V_HI)} offset:{LZ+t*1024}"))
        E(need("zs"))
        A(f"s_lshl_b32 {s(S_T2)}, {s(S_WAVE)}, 10")
        z_export(A, isV, AF, S_T2)
        A.label(last)
    if flags:
        u_check(A, 1)
        if not isV: k_check(A)

def qk_tr(isq, ks, dst, tag):
    b = 0 if isq else 3072
    if ks < 4: vb, o0, o1 = V_TRA, 48*ks*16, (48*ks+16)*16
    else: vb, o0, o1 = V_TRB, (96*(ks-4)+32)*16, (96*(ks-4)+36)*16
    return [ds(tag, f"ds_read_b64_tr_b16 {v(dst,2)}, {v(vb)} offset:{b+o0}"),
            ds(tag, f"ds_read_b64_tr_b16 {v(dst+2,2)}, {v(vb)} offset:{b+o1}")]

def xlane(op, r, t, which):
    return [f"v_mov_b32 {v(t)}, {v(r)}", "s_nop 1", f"v_permlane{which}_swap_b32 {v(r)}, {v(t)}", f"{op} {v(r)}, {v(r)}, {v(t)}"]

def pb_tasks(items, e, d, span, step=4):
    if PBMODE == 0: return [[e, d, items]]
    if PBMODE == 1:
        STUBS.clear()
        return [[e, d, [it for it in items if isinstance(it, str) and 'buffer_' not in it]]]
    if DROP & 1: items = [it for it in items if not (isinstance(it, str) and it.endswith(" lds"))]
    if DROP & 2: items = [it for it in items if not (isinstance(it, str) and it.startswith("buffer_store") and "sc1" in it)]
    groups = []; cur = []
    for it in items:
        cur.append(it)
        if isinstance(it, str) and 'buffer_' in it: groups.append(cur); cur = []
    if cur: groups.append(cur)
    n = len(groups); out = []
    for i, g in enumerate(groups):
        st = e + i*step
        out.append([st, st+step, g])
    return out

def s_stage(A, E, cls, flags):
    S0, S1, S2, S3 = ACC, ACC+4, ACC+8, ACC+12
    accs = [S0, S1, S2, S3, S0, S1]
    ard = lambda k: ds(f"A{k}", f"ds_read_b128 {v(AF+4*k,4)}, {v(V_HI)} offset:{k*1024}")
    for k in range(3): E(ard(k))
    main = []
    for f in ORD_S:
        t, k = divmod(f, 10)
        main.append(([need(f"A{k}")] if t == 0 else []) + smf(f, accs[t], AF+4*k))
    T = refill_tasks() + [[max(k-3, 4 if (k >= 7 and PL_X == 'S') else 0), max(k-1, 2*k-5), [ard(k)]] for k in range(3, 10)]
    pb = phaseB_items(A, False, cls, flags)
    if PL_K == 'S' and cls != 0:
        pb += [f"s_xor_b32 {s(S_MK)}, {s(S_MK)}, {S_LK ^ (S_LK + 16384)}", f"s_mov_b32 m0, {s(S_MK)}", f"s_add_u32 {s(S_KN)}, {s(S_KN)}, 1"]
        pb += [f"buffer_load_dwordx4 {v(V_L16)}, {s(S_WS,4)}, {s(S_KS)} offen offset:{j*1024} sc1 lds" for j in range(4)]
        pb += [f"s_add_u32 {s(S_KS)}, {s(S_KS)}, {NH*12288}", f"s_min_u32 {s(S_KN)}, {s(S_KN)}, {NSEG}"]
    T += pb_tasks(pb, 2 + PBSTG*{0:0,12:1,3:2}[cls], 22, 56, PBSTEP if cls else PBSTEP0)
    T.append([0, 28, zero(S3)])
    if HINTB == 4 and cls == 3: T.append([GIDX-3, GIDX+1, first_text(A, 0, 16, XS, XS+1)])
    if HINTB in (3, 4) and cls == 0:
        B = Asm(); B.uid = A.uid + 500000; A.uid += 10
        hint_store(B, 0, V_TMP1 if not TRACE else 127)
        T.append([HBIDX-3, HBIDX+1, [l.strip() for l in B.lines[:4]] + ["\n".join(B.lines[4:])]])
    T += stage_side(A, False, cls)
    T += trace_task()
    T.append([21, 33, post_s(S0, 0, "qw") + post_s(S1, 256, "qw") + zero(S0) + zero(S1)])
    T.append([32, 36, post_s(S2, 512, "qw")])
    T.append([37, 38, [need("qw"), "s_barrier"]])
    T.append([42, 58, post_s(S3, 3072, "kw")])
    SA = S2
    kss = (3, 4, 5) if cls == 12 else (0, 1, 2)
    def mm(ks, q_, k_): return [need(f"X{ks}"), f"v_mfma_f32_16x16x32_bf16 {v(SA,4)}, {v(k_,4)}, {v(q_,4)}, {'0' if ks == kss[0] else v(SA,4)}"]
    krd = lambda ks, r: ds(f"X{ks}", f"ds_read_b128 {v(r,4)}, {v(V_KR)} offset:{ks*1024}")
    if cls == 0:
        for ks in range(3): T.append([38, 41+2*ks, qk_tr(True, ks, XS+4*ks, f"X{ks}")])
        for ks in range(3): T.append([44+2*ks, 46+2*ks, [krd(ks, AF+4+4*ks)]])
        for ks in (3, 4): T.append([38, 50+2*ks, qk_tr(True, ks, XS+4*ks, f"m{ks}")])
        T.append([42, 59, qk_tr(True, 5, AF, "m5")])
        for ks in range(3): T.append([51+2*ks, 52+2*ks, mm(ks, XS+4*ks, AF+4+4*ks)])
    else:
        R = [(XS, XS+4), (XS+8, XS+12), (XS+16, AF)]
        for i, ks in enumerate(kss):
            T.append([38 if i < 2 else 42, 42+3*i, qk_tr(True, ks, R[i][0], f"X{ks}") + [krd(ks, R[i][1])]])
            T.append([48+3*i, 49+3*i, mm(ks, *R[i])])
    schedule(E, main, T, maxn=4)
    E(ds("sx", f"ds_write_b128 {v(126)}, {v(SA,4)} offset:{S_LSX-HI}"))
    A(f"v_xor_b32 {v(V_KR)}, {S_LK ^ (S_LK + 16384)}, {v(V_KR)}")
    A("s_nop 2")
    pa = post_s(S0, 3072+256, "kw"); pb_ = post_s(S1, 3072+512, "kw")
    for it in pa + pb_: E(it)
    if HINTB == 5 and cls == 0: hint_store(A, 0, 72)
    if HINTB == 6 and cls == 0 and not HW3: ts_hint_store(A, E, 72)
    tr(A, 1)
    if HINTB == 6 and cls == 3 and HW3:
        ts_hint_read(A); E.drain()
        if HW3 == 2: ts_hint_store(A, E, 72, True)
    else: E.drain()
    A("s_barrier")

def dppadd(r): return f"v_add_f32_dpp {v(r)}, {v(r)}, {v(r)} row_ror:8 row_mask:0xf bank_mask:0xf"

def s_tail(A, E):
    KF, SX, SM, t0, t1 = TMP, 44, 52, 56, 57
    mx, sm, m = 58, 59, 62
    dpp = " row_ror:8 row_mask:0xf bank_mask:0xf"
    E(ds("sx", f"ds_read_b128 {v(SX,4)}, {v(V_SXR)}"))
    E(ds("sx", f"ds_read_b128 {v(SX+4,4)}, {v(V_SXR)} offset:1024"))
    for ks in range(6):
        for it in qk_tr(False, ks, KF+4*ks, f"m{ks}"): E(it)
    if HINTB == 2: hint_store(A, 0, 60)
    X = [need("sx")] + [f"v_add_f32 {v(SX+i)}, {v(SX+i)}, {v(SX+4+i)}" for i in range(4)] + [
         f"v_max3_f32 {v(mx)}, {v(SX)}, {v(SX+1)}, {v(SX+2)}",
         f"v_max_f32 {v(mx)}, {v(mx)}, {v(SX+3)}", "s_nop 1",
         f"v_max_f32_dpp {v(mx)}, {v(mx)}, {v(mx)}" + dpp]
    X += xlane("v_max_f32", mx, t0, 16) + xlane("v_max_f32", mx, t0, 32)
    main = [[]] + [[need(f"m{ks}"), f"v_mfma_f32_16x16x32_bf16 {v(SM,4)}, {v(KF+4*ks,4)}, {v(XS+4*ks if ks < 5 else AF,4)}, {'0' if ks==0 else v(SM,4)}"] for ks in range(6)]
    for it in X[:9]: E(it)
    schedule(E, main, [[0, 99, X[9:]]])
    A(f"s_add_u32 {s(S_T)}, {s(S_P)}, {s(S_PST)}")
    A(f"s_add_u32 {s(S_T2)}, {s(S_P)}, {s(S_PSM)}")
    A("s_waitcnt vmcnt(0)" if TAILW or VAR == 2 else wait_poison(A))
    tr(A, 9)
    A("s_nop 4")
    A(f"v_max3_f32 {v(m)}, {v(SM)}, {v(SM+1)}, {v(SM+2)}")
    A(f"v_max3_f32 {v(m)}, {v(m)}, {v(SM+3)}, {v(mx)}")
    for l in xlane("v_max_f32", m, t0, 16): A(l)
    A(f"v_mul_f32 {v(m)}, {s(S_SC)}, {v(m)}")
    R = [SX, SX+1, SX+2, SX+3, SM, SM+1, SM+2, SM+3]
    for r in R: A(f"v_fma_f32 {v(r)}, {v(r)}, {s(S_SC)}, -{v(m)}")
    for r in R: A(f"v_exp_f32 {v(r)}, {v(r)}")
    A(f"v_add_f32 {v(sm)}, {v(SX)}, {v(SX+1)}")
    A(f"v_add_f32 {v(t0)}, {v(SX+2)}, {v(SX+3)}")
    A(f"v_add_f32 {v(t1)}, {v(SM)}, {v(SM+1)}")
    A(f"v_add_f32 {v(m)}, {v(SM+2)}, {v(SM+3)}")
    A(f"v_add_f32 {v(sm)}, {v(sm)}, {v(t0)}")
    A(f"v_add_f32 {v(t1)}, {v(t1)}, {v(m)}")
    A(f"v_fmac_f32 {v(sm)}, 0x3e800000, {v(t1)}")
    A("s_nop 1")
    A(f"v_add_f32_dpp {v(sm)}, {v(sm)}, {v(sm)}" + dpp)
    for l in xlane("v_add_f32", sm, t0, 16) + xlane("v_add_f32", sm, t0, 32): A(l)
    A(f"v_rcp_f32 {v(sm)}, {v(sm)}")
    A(f"s_cmp_eq_u32 {s(S_FAST)}, 0")
    for r in R[:4]: A(f"v_mul_f32 {v(r)}, {v(r)}, {v(sm)}")
    for i in range(2): A(f"v_cvt_pk_bf16_f32 {v(64+i)}, {v(SX+2*i)}, {v(SX+2*i+1)}")
    dual(A, [f"buffer_store_dwordx2 {v(64,2)}, {v(V_PX)}, {s(S_WS,4)}, {s(S_T)} offen"])
    for r in R[4:]: A(f"v_mul_f32 {v(r)}, {v(r)}, {v(sm)}")
    for i in range(2): A(f"v_cvt_pk_bf16_f32 {v(SM+i)}, {v(SM+2*i)}, {v(SM+2*i+1)}")
    dual(A, [f"s_mov_b64 exec, {s(S_MB,2)}",
             f"buffer_store_dwordx2 {v(SM,2)}, {v(V_PM)}, {s(S_WS,4)}, {s(S_T2)} offen",
             "s_mov_b64 exec, -1"])
    if HINTB == 1: hint_store(A, 0, 56)

def v_stage(A, E, cls, flags):
    S = [ACC, ACC+4, ACC+8, ACC+12, 112, 116]
    ard = lambda k: ds(f"A{k}", f"ds_read_b128 {v(AF+4*k,4)}, {v(V_HI)} offset:{k*1024}")
    for k in range(3): E(ard(k))
    main = []
    for f in ORD_V[:30]:
        t, k = divmod(f, 10)
        main.append(([need(f"A{k}")] if t == 0 else []) + smf(f, S[t], AF+4*k))
    RT = refill_tasks()
    T = [t for t in RT if t[0] < 29] + [[max(k-3, 4 if (k >= 7 and PL_X == 'S') else 0), max(k-1, 2*k-5), [ard(k)]] for k in range(3, 10)]
    PB = pb_tasks(phaseB_items(A, True, cls, flags), 2 + PBSTG*{0:0,12:1,3:2}[cls], 24, 58, PBSTEPV)
    T += [t for t in PB if t[0] < 28]
    T.append([0, 20, zero(S[3]) + zero(S[4]) + zero(S[5])])
    T += stage_side(A, True, cls)
    T += trace_task()
    T.append([21, 99, post_v(S[0], 0, "vw") + post_v(S[1], 256, "vw") + zero(S[0])])
    schedule(E, main, T, maxn=4)
    for l in zero(S[1]) + zero(AF+12) + zero(AF+16): A(l)
    A("s_nop 1")
    for it in post_v(S[2], 512, "vw"): E(it)
    for it in RT[5][2]: E(it)
    for l in zero(AF+20) + zero(AF+24) + zero(S[2]): A(l)
    E.need("vw")
    A("s_barrier")
    for kk in range(3):
        for h in range(2):
            E(ds(f"B{kk}", f"ds_read_b64_tr_b16 {v(AF+4*kk+2*h,2)}, {v(V_TRA)} offset:{(32*kk+4*h)*32}"))
    SS = [S[3], S[4], S[5], S[0], S[1], S[2], AF+12, AF+16, AF+20, AF+24]
    sa = lambda t: SS[t]
    main = []
    for t in range(10):
        for kk in range(3):
            main.append(([need(f"B{kk}")] if t == 0 else []) + smf(30 + 3*t + kk, sa(t), AF+4*kk))
    T = [[t[0]-30, t[1]-30, t[2]] for t in RT if t[0] > 29]
    T += [[max(t[0]-30, 0), max(t[1]-30, 2), t[2]] for t in PB if t[0] >= 28]
    if HINTB == 4 and cls == 3: T.append([max(GIDXV-3, 0), GIDXV+1, first_text(A, 0, 16, 111, 11)])
    def fin(t):
        L = post(sa(t), XS+t)
        if t in (3, 7):
            q = XS + t - 3
            L += ["s_nop 0"]
            L += [f"v_permlane32_swap_b32 {v(q)}, {v(q+2)}", f"v_permlane32_swap_b32 {v(q+1)}, {v(q+3)}", "s_nop 1",
                  f"v_permlane16_swap_b32 {v(q)}, {v(q+1)}", f"v_permlane16_swap_b32 {v(q+2)}, {v(q+3)}"]
            L += [f"s_add_u32 {s(S_T)}, {s(S_Z)}, {(t//4)*4*8192}\n" + dual_text(A, [f"buffer_store_dwordx4 {v(q,4)}, {v(V_ZS4)}, {s(S_WS,4)}, {s(S_T)} offen"])]
        if t == 9:
            L += ["s_nop 1", f"v_permlane16_swap_b32 {v(XS+8)}, {v(XS+9)}"]
            L += [dual_text(A, [f"buffer_store_dwordx2 {v(XS+8,2)}, {v(V_ZS2)}, {s(S_WS,4)}, {s(S_Z)} offen"])]
        return L
    chain = []
    for t in range(8):
        T.append([3*t+2+3, 40+t, fin(t)])
    schedule(E, main, T, cap=VCAP, maxn=5)
    for it in fin(8): E(it)
    A(wait_poison(A, fin=True) if (cls == 0 and VAR == 1) else "s_nop 0")
    A("s_nop 2")
    for it in fin(9): E(it)
    tr(A, 1)

S_A1 = 10; S_B1_ = 3
def reduce_stage(A, E, isV, cls, flags):
    PF, mt = AF, 56
    UL = [76,80,84,88,92,96,60,64] if isV else [100,104,108,112]
    D = [68, 72]; DO = [40, 44]
    nt = 2 if isV else 1
    if VAR == 1 and PL_K == 'T' and not isV: side_ops(A, E, isV, cls, flags, 'T')
    A(f"s_add_u32 {s(S_T)}, {s(S_P)}, {s(S_PLX)}")
    A(f"s_add_u32 {s(S_T2)}, {s(S_P)}, {s(S_PLM)}")
    A(f"s_add_u32 {s(S_T3)}, {s(S_Z)}, {s(S_ZL)}")
    if isV: A(f"s_add_u32 {s(S_T4)}, {s(S_Z)}, {s(S_ZL2)}")
    for l in zero(PF+8) + (zero(ZF+4) if isV else []): A(l)
    if PL_K == 'B' and not isV and cls != 0: A(f"s_xor_b32 {s(S_MK)}, {s(S_MK)}, {S_LK ^ (S_LK + 16384)}")
    mp_init(A, ["-1", "-1", s(S_MA,2), "-1"] + ([s(S_MA,2)] if isV else []))
    zl = [(ZF, f"buffer_load_dwordx4 {v(ZF,4)}, {v(V_L16)}, {s(S_WS,4)}, {s(S_T3)} offen sc1")]
    if isV: zl.append((ZF+4, f"buffer_load_dwordx4 {v(ZF+4,4)}, {v(V_ZH)}, {s(S_WS,4)}, {s(S_T4)} offen sc1"))
    def u_reads():
        for j in range(4): E(ds("U", f"ds_read_b128 {v(UL[j],4)}, {v(V_UR)} offset:{j*1024}"))
        if isV:
            for j in range(4): E(ds("U", f"ds_read_b128 {v(UL[4+j],4)}, {v(V_UHR)} offset:{(j>>1)*1024+(j&1)*128}"))
    def zpoi():
        A(f"s_add_u32 {s(S_A1)}, {s(S_ZP)}, {4*8192}")
        dual(A, [f"buffer_store_dwordx4 {v(V_POI,4)}, {v(V_ZS4)}, {s(S_WS,4)}, {s(S_ZP)} offen",
                 f"buffer_store_dwordx4 {v(V_POI,4)}, {v(V_ZS4)}, {s(S_WS,4)}, {s(S_A1)} offen",
                 f"buffer_store_dwordx2 {v(V_POI,2)}, {v(V_ZS2)}, {s(S_WS,4)}, {s(S_ZP)} offen"])
    early = False
    if PREU and cls != 3:
        if isV: zpoi()
        A(f"s_waitcnt vmcnt({5 if isV else (2 if cls == 0 else 0)})")
        u_reads()
    if PL_K == 'B' and flags and cls == 3 and not isV:
        A(f"s_mov_b32 {s(S_B1_)}, {s(S_T3)}"); k_check(A); A(f"s_mov_b32 {s(S_T3)}, {s(S_B1_)}")
    tr(A, 2)
    if HINTB == 6:
        if cls == 3:
            ts_poll(A, 57, 58, 59, 10)
            if XHINT and isV and XEARLY: xstore(A)
            if PREU == 1:
                u_reads()
                if isV: zpoi()
            ts_wait(A, E, S_TD, TB, True)
        if cls == 0 and not isV and DELAYBS: A(f"s_sleep {DELAYBS}")
        A("s_barrier")
    elif HINTB == 4:
        if cls == 3:
            if isV: gate(A, 0, 16, 110, 11 if TRACE else 111, 59, 10, 3 if GIDXV < 12 else 2, DELAYB, DFAILB)
            else: gate(A, 0, 16, XS, XS+1, XS+2, 10, 0, 0, DFAILB)
        if cls == 0 and not isV and DELAYBS: A(f"s_sleep {DELAYBS}")
        A("s_barrier")
    elif HINTB:
        if cls == (0 if HINTB == 1 else 3):
            hint_poll(A, 0, 16, 57, 58, 59, 10)
            if HINTA == 4:
                A(f"s_memtime {s(FPS[5],2)}"); A("s_waitcnt lgkmcnt(0)"); E.reset()
                A(f"s_add_u32 {s(S_TD)}, {s(FPS[5])}, {CWAIT - (CVADJ if isV else 0)}")
            db = DELAYB - (DBVADJ if isV else 0)
            if db > 0: A(f"s_sleep {db}")
        if cls == 0 and not isV and DELAYBS: A(f"s_sleep {DELAYBS}")
        A("s_barrier")
    elif not isV:
        A("s_barrier")
        if DELAYBS: A(f"s_sleep {DELAYBS}")
    elif DELAYB: A(f"s_sleep {DELAYB}")
    if STAMP == 1: tick(A, 8)
    tr(A, 3)
    gl = [(PF+4*j, f"buffer_load_dwordx4 {v(PF+4*j,4)}, {v(V_L16)}, {s(S_WS,4)}, {s(S_T)} offen offset:{j*1024} sc1") for j in range(2)]
    gl.append((PF+8, f"buffer_load_dwordx4 {v(PF+8,4)}, {v(V_PLD)}, {s(S_WS,4)}, {s(S_T2)} offen sc1"))
    gl += zl
    lab = A.newlabel("GB")
    loop_top(A, lab, 11)
    mp_issue(A, gl)
    nz = 0
    if XHINT and cls == 3 and isV and (HINTB != 6 or not XEARLY):
        xstore(A); nz += 1
    if not PREU or (PREU == 2 and cls == 3):
        A(f"s_waitcnt vmcnt({len(gl)+nz})")
        u_reads()
        if isV and PL_P != 'W': zpoi(); nz += 3
    if PL_K == 'B' and not isV and cls != 0:
        A(f"s_mov_b32 m0, {s(S_MK)}")
        A("s_nop 0")
        for j in range(4): A(f"buffer_load_dwordx4 {v(V_L16)}, {s(S_WS,4)}, {s(S_KS)} offen offset:{j*1024} sc1 lds")
        nz += 4
    if XHINT == 2 and cls == 3:
        hint_first(A, 128, 1, 57, 58, True); A("s_mov_b64 exec, -1"); nz += 1
    def mm(d, a_, b_, first): return f"v_mfma_f32_16x16x32_bf16 {v(d,4)}, {v(a_,4)}, {v(b_,4)}, {'0' if first else v(d,4)}"
    chk = mp_check(gl, 32); n_ = len(gl)
    A(f"s_waitcnt vmcnt({nz + n_ - 2}) lgkmcnt(0)"); E.reset()
    xs = []
    for t in range(nt):
        for j in range(2): xs += [mm(DO[t], UL[4*t+2*j+1], PF+4*j, j == 0), mm(D[t], UL[4*t+2*j], PF+4*j, j == 0)]
    fill = [chk[0], chk[1], chk[n_], chk[n_+1]]
    for m_ in xs:
        A(m_)
        if fill: A(fill.pop(0))
    A(f"s_waitcnt vmcnt({nz})")
    A(mm(D[0], ZF, PF+8, False))
    rest = chk[2:n_] + chk[n_+2:]
    for l in rest[:2]: A(l)
    if isV: A(mm(D[1], ZF+4, PF+8, False))
    for l in rest[2:]: A(l)
    mp_close(A, len(gl), lab)
    main = []
    tr(A, 4)
    if PL_K == 'B' and not isV and cls != 0:
        A(f"s_add_u32 {s(S_KS)}, {s(S_KS)}, {NH*12288}"); A(f"s_add_u32 {s(S_KN)}, {s(S_KN)}, 1"); A(f"s_min_u32 {s(S_KN)}, {s(S_KN)}, {NSEG}")
    add0 = [f"v_add_f32_dpp {v(D[0]+i)}, {v(DO[0]+i)}, {v(D[0]+i)} row_ror:8 row_mask:0xf bank_mask:0xf" for i in range(4)]
    for k_, m_ in enumerate(main[5:]):
        A(m_[0])
        if k_ >= 3:
            A(add0.pop(0)); A(add0.pop(0))
    if HINTA == 2 and cls == 0: hint_store(A, 128, 57)
    if HINTA == 5 and cls == 3 and XHINT:
        A(f"s_add_u32 {s(S_A1_)}, {s(S_RR)}, {s(S_XR)}"); A("s_mov_b64 exec, 1")
        A(f"buffer_load_dword {v(58)}, {v(V_ZERO)}, {s(S_WS,4)}, {s(S_A1_)} offen sc1"); A("s_mov_b64 exec, -1")
    if HINTA in (2, 3, 4) and cls == 3 and XHINT == 1:
        hint_first(A, 128, 32 if HINTA == 2 else 1, 57, 58, True); A("s_mov_b64 exec, -1")
    A("s_nop 0")
    for l in add0: A(l)
    if isV:
        for i in range(4):
            A(f"v_add_f32_dpp {v(D[0]+i)}, {v(D[1]+i)}, {v(DO[1]+i)} row_ror:8 row_mask:0xf bank_mask:0xc")
    E(ds("r", f"ds_write_b128 {v(V_RW if isV else 126)}, {v(D[0],4)} offset:{0 if isV else S_LRED-HI}"))
    E.drain()
    A("s_barrier")

def preload(A, E, z=True):
    for j in range(3):
        for it in wl_read(j): E(it)
    for k in range(3 if z else 0):
        for l in zero(ACC+4*k): A(l)

def gatherA(A, E, isV, cls, lab, flags):
    mt = 72
    vtw = V_TW if isV else V_PLD
    def advance():
        A(f"s_add_u32 {s(S_STEP)}, {s(S_STEP)}, 1")
        for c_, n_, p_ in ((S_Z,S_ZN,S_ZP),(S_P,S_PN,S_PP)):
            A(f"s_mov_b32 {s(S_T)}, {s(c_)}"); A(f"s_mov_b32 {s(c_)}, {s(n_)}"); A(f"s_mov_b32 {s(n_)}, {s(p_)}"); A(f"s_mov_b32 {s(p_)}, {s(S_T)}")
        A(f"s_mov_b32 {s(S_T)}, {s(S_L)}"); A(f"s_mov_b32 {s(S_L)}, {s(S_LN)}"); A(f"s_mov_b32 {s(S_LN)}, {s(S_T)}")
        A(f"s_add_u32 {s(S_US)}, {s(S_US)}, {40*32768}")
        if isV: A(f"s_add_u32 {s(S_US2)}, {s(S_US2)}, {40*32768}")
        A(f"s_add_u32 {s(S_EXP)}, {s(S_EXP)}, 327680")
        A(f"s_add_u32 {s(S_ARR)}, {s(S_ARR)}, 128")
        if not isV: A(f"s_add_u32 {s(S_KMX)}, {s(S_KMX)}, {NH*3072}")
        preload(A, E)
    if cls == 0:
        st = 1024
        for w in range(4): E(ds("f", f"ds_read_b128 {v(AF+4*w,4)}, {v(V_FINR)} offset:{w*st}"))
        E.drain()
        for i in range(4): A(f"v_add_f32 {v(AF+i)}, {v(AF+i)}, {v(AF+4+i)}")
        for i in range(4): A(f"v_add_f32 {v(AF+8+i)}, {v(AF+8+i)}, {v(AF+12+i)}")
        for i in range(4): A(f"v_add_f32 {v(AF+i)}, {v(AF+i)}, {v(AF+8+i)}")
        A(f"s_mov_b64 exec, {s(S_MB if isV else S_MA,2)}")
        A(f"buffer_store_dwordx4 {v(AF,4)}, {v(vtw)}, {s(S_WS,4)}, {s(S_RW)} offen sc0 sc1")
        A("s_mov_b64 exec, -1")
        tick(A, 3)
        advance()
        if DELAY0: A(f"s_sleep {DELAY0}")
        A(f"s_mov_b64 exec, {s(S_MB if isV else S_MA,2)}")
        labt = A.newlabel("GT")
        loop_top(A, labt, 13)
        A(f"buffer_load_dwordx4 {v(AF+4,4)}, {v(vtw)}, {s(S_WS,4)}, {s(S_RR)} offen sc1")
        A("s_waitcnt vmcnt(0)")
        for l in maxtree(range(AF+4, AF+8), mt): A(l)
        for i in range(4): A(f"v_add_f32 {v(AF+8+i)}, {v(AF+i)}, {v(AF+4+i)}")
        A(f"v_cmp_eq_u32 vcc, -1, {v(mt)}")
        for i in range(2): A(f"v_cvt_pk_bf16_f32 {v(AF+8+i)}, {v(AF+8+2*i)}, {v(AF+9+2*i)}")
        retry(A, labt, 13)
        dual(A, [f"buffer_store_dwordx2 {v(AF+8,2)}, {v(V_FINRM)}, {s(S_WS,4)}, {s(S_L)} offen",
                 f"buffer_store_dwordx2 {v(V_POI,2)}, {v(V_FINRM)}, {s(S_WS,4)}, {s(S_LN)} offen"])
        A("s_mov_b64 exec, -1")
        if not isV: p_poison(A, S_PN)
        A(f"s_add_u32 {s(S_RR)}, {s(S_RR)}, 40960")
        A(f"s_add_u32 {s(S_RW)}, {s(S_RW)}, 40960")
    else:
        tick(A, 3)
        window(A, E, isV, cls, flags)
        advance()
    A("s_barrier")
    tick(A, 4)
    if (DELAYLV if isV else DELAYL): A(f"s_sleep {DELAYLV if isV else DELAYL}")
    G = AF + 12
    A(f"s_add_u32 {s(S_T)}, {s(S_L)}, 4096")
    A(f"s_add_u32 {s(S_T2)}, {s(S_L)}, {s(S_G3)}")
    A(f"v_mov_b64 {v(G+8,2)}, 0"); A(f"v_mov_b64 {v(G+10,2)}, 0")
    if STAMP == 1: tick(A, 8)
    loop_top(A, lab, 12)
    A(f"buffer_load_dwordx4 {v(G,4)}, {v(V_T7)}, {s(S_WS,4)}, {s(S_L)} offen sc1")
    A(f"buffer_load_dwordx4 {v(G+4,4)}, {v(V_T7)}, {s(S_WS,4)}, {s(S_T)} offen sc1")
    A(f"s_mov_b64 exec, {s(S_M3,2)}")
    A(f"buffer_load_dwordx4 {v(G+8,4)}, {v(V_T7)}, {s(S_WS,4)}, {s(S_T2)} offen sc1")
    return lab

def gatherA2(A, E, lab):
    G = AF + 12; mt = 72
    A("s_waitcnt vmcnt(0)")
    if STAMP == 1: tick(A, 9)
    A("s_mov_b64 exec, -1")
    mtree = maxtree(range(G, G+12), mt)
    E(ds("g", f"ds_write_b128 {v(V_GA)}, {v(G,4)}"))
    for l in mtree: A(l)
    A(f"v_cmp_eq_u32 vcc, -1, {v(mt)}")
    retry(A, lab, 12)
    E(ds("g", f"ds_write_b128 {v(V_GA)}, {v(G+4,4)} offset:4096"))
    A(f"s_mov_b64 exec, {s(S_M3,2)}")
    E(ds("g", f"ds_write_b128 {v(V_G3W)}, {v(G+8,4)}"))
    A("s_mov_b64 exec, -1")
    tick(A, 5)
    E.drain()

S_OLO = 40; S_OHI = 41; S_TGT = 66
def probes(A, isV, ahead):
    A(f"v_cmp_le_u32 vcc, 32, {v(V_FL)}")
    A(f"s_add_u32 {s(S_T)}, {s(S_TGT)}, 1")
    A(f"s_max_u32 {s(S_T)}, {s(S_T)}, {s(S_KNOWN)}")
    A("s_cmp_lg_u64 vcc, 0")
    A(f"s_cselect_b32 {s(S_KNOWN)}, {s(S_T)}, {s(S_KNOWN)}")
    A(f"s_cselect_b32 {s(S_TGT)}, 2, 0")
    u_check(A, ahead)
    if not isV and PL_K != 'B': k_check(A)
    A(f"s_add_u32 {s(S_TGT)}, {s(S_KNOWN)}, {s(S_TGT)}")
    A(f"s_min_u32 {s(S_TGT)}, {s(S_TGT)}, {NSEG-1}")
    A(f"s_lshl_b32 {s(S_T)}, {s(S_TGT)}, 7")
    A(f"s_add_u32 {s(S_T)}, {s(S_T)}, {CN_U}")
    A(f"buffer_load_dword {v(V_FL)}, {v(V_ZERO)}, {s(S_WS,4)}, {s(S_T)} offen sc1")
    if not isV:
        A(f"s_add_u32 {s(S_T)}, {s(S_FLO)}, {FL_K}")
        A(f"buffer_load_dword {v(V_FKS)}, {v(V_ZERO)}, {s(S_WS,4)}, {s(S_T)} offen sc1")

def probes_text(A, isV):
    B = Asm(); B.uid = A.uid + 400000; A.uid += 10
    probes(B, isV, 1)
    return "\n".join(B.lines)
LR = 20; RR_ = 32; UP = list(range(100, 110)) + list(range(112, 120)) + [56, 57, 58, 59, 73, 74]
def ld3_list(dst, sbase, t1, t2):
    return [(dst, f"buffer_load_dwordx4 {v(dst,4)}, {v(V_T7)}, {s(S_WS,4)}, {s(sbase)} offen sc1"),
            (dst+4, f"buffer_load_dwordx4 {v(dst+4,4)}, {v(V_T7)}, {s(S_WS,4)}, {s(t1)} offen sc1"),
            (dst+8, f"buffer_load_dwordx4 {v(dst+8,4)}, {v(V_T7)}, {s(S_WS,4)}, {s(t2)} offen sc1")]
S_A1 = 10; S_A2 = 11; S_B1 = 3; S_B2 = 101
LIST_L = lambda: ld3_list(LR, S_L, S_A1, S_A2)
LIST_R = lambda: ld3_list(RR_, S_RR, S_B1, S_B2)

GSIDE = []
def advance1(A, E, isV, pre=True):
    A(f"s_add_u32 {s(S_STEP)}, {s(S_STEP)}, 1")
    for c_, n_, p_ in ((S_Z,S_ZN,S_ZP),(S_P,S_PN,S_PP)):
        A(f"s_mov_b32 {s(S_T)}, {s(c_)}"); A(f"s_mov_b32 {s(c_)}, {s(n_)}"); A(f"s_mov_b32 {s(n_)}, {s(p_)}"); A(f"s_mov_b32 {s(p_)}, {s(S_T)}")
    A(f"s_mov_b32 {s(S_T)}, {s(S_L)}"); A(f"s_mov_b32 {s(S_L)}, {s(S_LN)}"); A(f"s_mov_b32 {s(S_LN)}, {s(S_T)}")
    A(f"s_add_u32 {s(S_US)}, {s(S_US)}, {40*32768}")
    if isV: A(f"s_add_u32 {s(S_US2)}, {s(S_US2)}, {40*32768}")
    A(f"s_add_u32 {s(S_ARR)}, {s(S_ARR)}, 128")
    if pre: preload(A, E, False)

def side_ops(A, E, isV, cls, flags, where):
    n = 0
    adv = where == 'G'
    if PL_X == where:
        z_export(A, isV, ZF, None); n += 2 if isV else 1
    if isV and PL_P == where:
        zs = S_ZN if adv else S_ZP
        A(f"s_add_u32 {s(S_T2)}, {s(zs)}, {4*8192}")
        dual(A, [f"buffer_store_dwordx4 {v(V_POI,4)}, {v(V_ZS4)}, {s(S_WS,4)}, {s(zs)} offen",
                 f"buffer_store_dwordx4 {v(V_POI,4)}, {v(V_ZS4)}, {s(S_WS,4)}, {s(S_T2)} offen",
                 f"buffer_store_dwordx2 {v(V_POI,2)}, {v(V_ZS2)}, {s(S_WS,4)}, {s(zs)} offen"])
        n += 3
    if cls == 0 and adv and PL_X != 'S':
        A(f"s_mov_b64 exec, {s(S_MB if isV else S_MA,2)}")
        dual(A, [f"buffer_store_dwordx2 {v(V_POI,2)}, {v(V_FINRM)}, {s(S_WS,4)}, {s(S_LN)} offen"])
        A("s_mov_b64 exec, -1")
        n += 1
        if not isV: p_poison(A, S_PN); n += 2
    if cls != 0 and not isV and PL_K == where:
        A(f"s_xor_b32 {s(S_MK)}, {s(S_MK)}, {S_LK ^ (S_LK + 16384)}")
        k_dma(A, cls); n += (6 if cls == 12 else 0) if K2W else 4
    if cls != 0 and not isV and PL_M == where:
        km_export(A, E, 44); n += 1
        A(f"s_add_u32 {s(S_KMX)}, {s(S_KMX)}, {NH*3072}")
    if flags and cls == PROBEW and PL_M == where:
        probes(A, isV, {'T': 2, 'W': 1, 'G': 1}[where]); n += 1 if isV else 2
    return n

def g1_bottom(A, E, isV, cls, flags):
    if cls == 0:
        st = 1024
        for w in range(4): E(ds(f"f{w}", f"ds_read_b128 {v(AF+4*w,4)}, {v(V_FINR)} offset:{w*st}"))
        for w in range(1, 4):
            E(need(f"f{w}"))
            for i in range(4): A(f"v_add_f32 {v(AF+i)}, {v(AF+i)}, {v(AF+4*w+i)}")
        for i in range(2): A(f"v_cvt_pk_bf16_f32 {v(AF+24+i)}, {v(AF+2*i)}, {v(AF+1+2*i)}")
        if WIDE:
            A(f"v_mov_b64 {v(AF+26,2)}, {v(AF+24,2)}")
            A("s_nop 1")
            A(f"v_permlane16_swap_b32 {v(AF+24)}, {v(AF+26)}")
            A(f"v_permlane16_swap_b32 {v(AF+25)}, {v(AF+27)}")
            A(f"s_mov_b32 exec_lo, {'0x0000ffff' if isV else '0x000000ff'}")
            A("s_mov_b32 exec_hi, 0x000000ff")
            A(f"buffer_store_dwordx4 {v(AF+24,4)}, {v(V_FINRR if isV else V_FINRM)}, {s(S_WS,4)}, {s(S_RW)} offen sc0 sc1")
            dual(A, [f"buffer_store_dwordx4 {v(AF+24,4)}, {v(V_FINRM)}, {s(S_WS,4)}, {s(S_LN)} offen"])
        else:
            A(f"s_mov_b64 exec, {s(S_MB if isV else S_MA,2)}")
            A(f"buffer_store_dwordx2 {v(AF+24,2)}, {v(V_FINRR if isV else V_FINRM)}, {s(S_WS,4)}, {s(S_RW)} offen sc0 sc1")
            dual(A, [f"buffer_store_dwordx2 {v(AF+24,2)}, {v(V_FINRM)}, {s(S_WS,4)}, {s(S_LN)} offen"])
        A("s_mov_b64 exec, -1")
        if HINTA == 1: hint_store(A, 128, 56)
        if not HINTA: A("s_barrier")
    nw_ = 0
    if (cls != 0 and (not isV or cls == PROBEW)) or (isV and PL_P == 'W'):
        if WDEL and cls != 0: A(f"s_sleep {WDEL}")
        nw_ = side_ops(A, E, isV, cls, flags, 'W')
    tick(A, 3)
    tr(A, 5)
    if HINTA and HINTA != 5 and cls == 3 and (HINTA < 3 or XHINT == 1):
        preload(A, E, False)
        if HINTA >= 3: gate(A, 128, 1, 57, 58, 59, 9, nw_, 0, DELAYH, cross=True)
        else:
            hint_poll(A, 128, 32, 57, 58, 59, 9, cross=XHINT, first=not XHINT)
            if DELAYH: A(f"s_sleep {DELAYH}")
    advance1(A, E, isV, not (HINTA and HINTA != 5 and cls == 3 and (HINTA < 3 or XHINT == 1)))
    for r in (LR+8, LR+10, RR_+8, RR_+10): A(f"v_mov_b64 {v(r,2)}, 0")
    A(f"s_add_u32 {s(S_A1)}, {s(S_L)}, 4096"); A(f"s_add_u32 {s(S_A2)}, {s(S_L)}, {s(S_G3)}")
    mp_init(A, ["-1", "-1", s(S_M3,2)]); mp_init(A, ["-1", "-1", s(S_M3,2)], 3)
    A(f"s_add_u32 {s(S_B1)}, {s(S_RR)}, 4096"); A(f"s_add_u32 {s(S_B2)}, {s(S_RR)}, {s(S_R3)}")
    if cls == 0 and HINTA == 2 and DELAY0: A(f"s_sleep {DELAY0}")
    if cls == 3 and HINTA == 5:
        if XHINT:
            A(f"s_waitcnt vmcnt({nw_})")
            A(f"v_readfirstlane_b32 {s(S_T2)}, {v(58)}")
            A(f"s_add_u32 {s(S_T)}, {s(S_TD)}, {XLATE}")
            A(f"s_cmp_lt_i32 {s(S_T2)}, {s(S_HN)}")
            A(f"s_cselect_b32 {s(S_T2)}, {s(S_T)}, {s(S_T2)}")
            if STAMP: A(f"s_addc_u32 {s(S_TS+9)}, {s(S_TS+9)}, 0")
            A(f"s_max_i32 {s(S_TD)}, {s(S_TD)}, {s(S_T2)}")
        ts_wait(A, E, S_TD, TA)
    if cls == 3 and HINTA == 4:
        lp = A.newlabel("TW"); dn = A.newlabel("TWd")
        if XHINT == 2:
            A(f"s_waitcnt vmcnt({nw_})")
            A(f"v_readfirstlane_b32 {s(S_T)}, {v(58)}")
            A(f"s_cmp_lt_i32 {s(S_T)}, {s(S_HN)}")
            A(f"s_cselect_b32 {s(S_T2)}, {XDELTA}, 0")
            A(f"s_add_u32 {s(S_TD)}, {s(S_TD)}, {s(S_T2)}")
            if STAMP: A(f"s_cmp_lt_i32 {s(S_T)}, {s(S_HN)}"); A(f"s_addc_u32 {s(S_TS+9)}, {s(S_TS+9)}, 0")
        A(f"s_memtime {s(76 if not (TRACE or STAMP) else 92,2)}"); A("s_waitcnt lgkmcnt(0)"); E.reset()
        A(f"s_sub_u32 {s(S_T)}, {s(S_TD)}, {s(76 if not (TRACE or STAMP) else 92)}")
        A(f"s_cmp_gt_i32 {s(S_T)}, 4000"); A(f"s_cselect_b32 {s(S_T)}, 0, {s(S_T)}")
        A.label(lp)
        A(f"s_sub_u32 {s(S_T)}, {s(S_T)}, {TWSTEP}")
        A(f"s_cmp_gt_i32 {s(S_T)}, 0")
        A(f"s_cbranch_scc1 {lp}")
    if cls == 0 and HINTA >= 3 and (DELAY0V if isV else DELAY0): A(f"s_sleep {DELAY0V if isV else DELAY0}")
    if cls != 0 or isV: tr(A, 9)
    if cls != 0 or HINTA: A("s_barrier")
    tick(A, 4)
    d = (DELAYLV if isV else DELAYL) - (2 if cls == 0 and not HINTA else 0)
    if d: A(f"s_sleep {d}")
    if STAMP == 1: tick(A, 8)
    tr(A, 6)

def nside(isV, cls, flags):
    B = Asm(); n0 = len(STUBS)
    n = side_ops(B, Emit(B), isV, cls, flags, 'G')
    del STUBS[n0:]
    return n

def g1_top(A, E, isV, cls, flags):
    mt = 72
    unp = []
    for j in range(12):
        unp += [f"v_lshlrev_b32 {v(UP[2*j])}, 16, {v(LR+j)}", f"v_and_b32 {v(UP[2*j+1])}, 0xffff0000, {v(LR+j)}"]
    TM = [60, 61, 62, 63, 64, 65, 66, 67]; OUT = 68
    lab = A.newlabel("GA")
    loop_top(A, lab, 12)
    if LRGAP:
        mp_issue(A, LIST_L())
        A(f"s_sleep {LRGAP}")
        mp_issue(A, LIST_R(), 3)
    else: mp_issue(A, LIST_L() + LIST_R())
    nx = side_ops(A, E, isV, cls, flags, 'G')
    A(f"s_waitcnt vmcnt({3+nx})")
    tr(A, 7)
    for l in mp_check(LIST_L(), 72) + unp: A(l)
    for f in range(3):
        A(f"s_waitcnt vmcnt({2-f+nx})")
        if f == 2: tr(A, 8)
        A(f"v_max_u32 {v(72)}, {v(RR_+4*f)}, {v(RR_+4*f+2)}")
        for j in range(4):
            A(f"v_dot2_f32_bf16 {v(TM[2*j])}, {v(RR_+4*f+j)}, {s(S_OLO)}, {v(UP[8*f+2*j])}")
            A(f"v_dot2_f32_bf16 {v(TM[2*j+1])}, {v(RR_+4*f+j)}, {s(S_OHI)}, {v(UP[8*f+2*j+1])}")
        A(f"v_cmp_eq_u32 {s(FPS[3+f],2)}, -1, {v(72)}")
        o = OUT if f != 1 else 44
        for j in range(4):
            A(f"v_cvt_pk_bf16_f32 {v(o+j)}, {v(TM[2*j])}, {v(TM[2*j+1])}")
        if f == 2: A(f"s_mov_b64 exec, {s(S_M3,2)}")
        E(ds("g", f"ds_write_b128 {v(V_GA if f < 2 else V_G3W)}, {v(o,4)} offset:{4096 if f == 1 else 0}"))
    A("s_mov_b64 exec, -1")
    if STAMP == 3:
        A(f"s_or_b64 vcc, {s(FPS[0],2)}, {s(FPS[1],2)}"); A(f"s_or_b64 vcc, vcc, {s(FPS[2],2)}"); A(f"s_addc_u32 {s(S_TS+8)}, {s(S_TS+8)}, 0")
        A(f"s_or_b64 vcc, {s(FPS[3],2)}, {s(FPS[4],2)}"); A(f"s_or_b64 vcc, vcc, {s(FPS[5],2)}"); A(f"s_addc_u32 {s(S_TS+13)}, {s(S_TS+13)}, 0")
    mp_close(A, 6, lab)
    for k in range(3):
        for l in zero(ACC+4*k): A(l)
    if PL_X == 'G': A(f"s_add_u32 {s(S_EXP)}, {s(S_EXP)}, 327680")
    A(f"s_cmp_eq_u32 {s(S_STEP)}, {RPP}")
    A(f"s_cselect_b32 {s(S_T)}, {s(55 if isV else 64)}, {RSTEP}")
    A(f"s_add_u32 {s(S_RR)}, {s(S_RR)}, {s(S_T)}")
    A(f"s_add_u32 {s(S_RW)}, {s(S_RW)}, {s(S_T)}")
    tick(A, 5)
    tr(A, 0)
    E.drain()

def stage_side(A, isV, cls):
    if VAR != 1 or PL_X != 'S': return []
    L = [f"s_add_u32 {s(S_T)}, {s(S_EXP)}, {s(S_ZL)}",
         f"buffer_store_dwordx4 {v(ZF,4)}, {v(V_L16)}, {s(S_WS,4)}, {s(S_T)} offen sc0 sc1"]
    if isV:
        L += [f"s_add_u32 {s(S_T)}, {s(S_EXP)}, {s(S_ZL2)}",
              "\n".join([f"s_mov_b64 exec, {s(S_MA,2)}", f"buffer_store_dwordx4 {v(ZF+4,4)}, {v(V_ZH)}, {s(S_WS,4)}, {s(S_T)} offen sc0 sc1", "s_mov_b64 exec, -1"])]
    L += [f"s_mov_b32 {s(S_EXP)}, {s(S_EXN)}", f"s_add_u32 {s(S_EXN)}, {s(S_EXN)}, 327680"]
    T = [[0, 4, L]]
    if cls == 0:
        B = Asm(); B.uid = A.uid + 300000; A.uid += 10
        B(f"s_mov_b64 exec, {s(S_MB if isV else S_MA,2)}")
        dual(B, [f"buffer_store_dwordx2 {v(V_POI,2)}, {v(V_FINRM)}, {s(S_WS,4)}, {s(S_LN)} offen"])
        B("s_mov_b64 exec, -1")
        T.append([8, 12, ["\n".join(B.lines)]])
        if not isV:
            B = Asm(); B.uid = A.uid + 310000; A.uid += 10
            p_poison(B, S_PN)
            T.append([10, 14, ["\n".join(B.lines)]])
    return T

def chain_loop(A, isV, cls, flags):
    E = Emit(A)
    top = A.newlabel("CH_top"); fin = A.newlabel("CH_fin"); ent = A.newlabel("CH_ent"); galab = A.newlabel("GAx")
    preload(A, E); E.drain()
    if TRACE:
        global V_TRC, V_TRA4
        V_TRC, V_TRA4 = (111, 110) if isV else (125, 110)
        A(f"s_lshl_b32 s95, {s(S_GRP)}, 5"); A(f"s_add_u32 s95, s95, {s(S_C)}"); A("s_lshl_b32 s95, s95, 2"); A(f"s_add_u32 s95, s95, {s(S_WAVE)}")
        A("s_lshl_b32 s95, s95, 14"); A(f"s_add_u32 s95, s95, {WS_SCR + 4*1048576}")
        A("s_memrealtime s[88:89]"); A("s_memtime s[70:71]"); A("s_waitcnt lgkmcnt(0)")
    if STAMP:
        A(f"s_memtime {s(88,2)}"); A(f"s_memrealtime {s(92,2)}"); A("s_waitcnt lgkmcnt(0)"); A(f"s_mov_b32 {s(86)}, {s(88)}"); A(f"s_mov_b32 {s(87)}, {s(92)}")
    A(f"s_branch {ent}")
    A.label(top)
    if VAR == 2: gatherA2(A, E, galab)
    else: g1_top(A, E, isV, cls, flags)
    A.label(ent)
    A("s_barrier")
    tick(A, 6)
    if STAMP == 3 and cls == 3:
        A(f"s_memrealtime {s(92,2)}"); A(f"s_lshl_b32 s94, {s(S_STEP)}, 2"); A(f"s_lshl_b32 s95, {s(S_HEAD)}, 8"); A("s_add_u32 s94, s94, s95")
        A(f"s_add_u32 s94, s94, {WS_SCR + 3*1048576 + 65536}"); A("s_waitcnt lgkmcnt(0)"); A(f"v_mov_b32 {v(XS+19)}, s92")
        A(f"buffer_store_dword {v(XS+19)}, {v(V_ZERO)}, {s(S_WS,4)}, s94 offen")
    if STAMP in (1, 3):
        rs = A.newlabel("rs"); rb = A.newlabel("rb")
        A(f"s_cmp_eq_u32 {s(S_STEP)}, 8"); A(f"s_cbranch_scc1 {rs}"); A.label(rb)
        B = Asm(); B.uid = A.uid + 50000
        if not TS3: tstamp(B, 3)
        STUBS.append([rs + ":"] + B.lines + [f"s_memtime {s(88,2)}", f"s_memrealtime {s(92,2)}", "s_waitcnt lgkmcnt(0)", f"s_mov_b32 {s(86)}, {s(88)}", f"s_mov_b32 {s(87)}, {s(92)}"] +
                     [f"s_mov_b32 {s(S_TS+k)}, 0" for k in range(16)] + [f"s_branch {rb}"])
    if STAMP == 2:
        A(f"s_memrealtime {s(88,2)}"); A("s_waitcnt lgkmcnt(0)")
        A(f"s_cmp_eq_u32 {s(S_STEP)}, {TSTEP}"); A(f"s_cselect_b32 {s(S_TS+7)}, {s(88)}, {s(S_TS+7)}")
    if isV: v_stage(A, E, cls, flags)
    else: s_stage(A, E, cls, flags)
    tick(A, 0)
    A(f"s_cmp_eq_u32 {s(S_STEP)}, {NSTEP-1}")
    A(f"s_cbranch_scc1 {fin}")
    if not isV and cls == 3 and HINTB == 6 and HW3 == 1: ts_hint_store(A, E, 72, True)
    if not isV and cls == 0: s_tail(A, E)
    tick(A, 1)
    reduce_stage(A, E, isV, cls, flags)
    tick(A, 2)
    if VAR == 2: gatherA(A, E, isV, cls, galab, flags)
    else: g1_bottom(A, E, isV, cls, flags)
    A(f"s_branch {top}")
    flush_stubs(A)
    A.label(fin)
    E.reset()
    if STAMP == 3:
        A(f"s_memtime {s(88,2)}"); A(f"s_memrealtime {s(92,2)}"); A("s_waitcnt lgkmcnt(0)")
        A(f"s_sub_u32 {s(S_TS)}, {s(88)}, {s(86)}"); A(f"s_sub_u32 {s(S_TS+1)}, {s(92)}, {s(87)}")
    if isV:
        A(f"s_add_u32 {s(S_T2)}, {s(S_EXP)}, {4*8192}")
        A(f"buffer_store_dwordx4 {v(XS,4)}, {v(V_ZS4)}, {s(S_WS,4)}, {s(S_EXP)} offen sc0 sc1")
        A(f"buffer_store_dwordx4 {v(XS+4,4)}, {v(V_ZS4)}, {s(S_WS,4)}, {s(S_T2)} offen sc0 sc1")
        A(f"buffer_store_dwordx2 {v(XS+8,2)}, {v(V_ZS2)}, {s(S_WS,4)}, {s(S_EXP)} offen sc0 sc1")
    elif cls != 0:
        km_export(A, E, XS)
    A("s_waitcnt vmcnt(0)")
    A("s_barrier")
    if flags and cls == 0:
        A(f"v_mov_b32 v56, 1"); A(f"v_mov_b32 v57, {NSEG}")
        A(f"s_add_u32 {s(S_T)}, {s(S_FLO)}, {FL_KM}")
        A("s_mov_b64 exec, 1")
        if not isV: A(f"buffer_store_dword v57, {v(V_ZERO)}, {s(S_WS,4)}, {s(S_T)} offen sc0 sc1")
        A(f"buffer_atomic_add v56, {v(V_ZERO)}, {s(S_WS,4)}, {s(S_ARR)} offen offset:128 sc1")
        A(f"buffer_atomic_add v56, {v(V_ZERO)}, {s(S_WS,4)}, {s(S_ARR)} offen offset:256 sc1")
        A("s_mov_b64 exec, -1")
    if STAMP:
        A(f"s_lshl_b32 {s(S_T)}, {s(S_GRP)}, 5")
        A(f"s_add_u32 {s(S_T)}, {s(S_T)}, {s(S_C)}")
        A(f"s_lshl_b32 {s(S_T)}, {s(S_T)}, 2")
        A(f"s_add_u32 {s(S_T)}, {s(S_T)}, {s(S_WAVE)}")
        A(f"s_lshl_b32 {s(S_T)}, {s(S_T)}, 6")
        A(f"s_add_u32 {s(S_T)}, {s(S_T)}, {WS_SCR + 1048576}")
        for k in range(16):
            A(f"v_mov_b32 v21, {s(S_TS+k) if k != 14 else s(S_FAST)}")
            A(f"buffer_store_dword v21, {v(V_ZERO)}, {s(S_WS,4)}, {s(S_T)} offen offset:{4*k}")
        A("s_waitcnt vmcnt(0)")

def role_chain(A, isV, end_label, flags=False):
    global CUR_ORD
    CUR_ORD = ORD_V if isV else ORD_S
    A.c("================ role chain %s ================" % ("V" if isV else "S"))
    A(f"s_load_dwordx2 {s(S_W1,2)}, s[0:1], {KA['Wv' if isV else 'Wq']}")
    A(f"s_load_dwordx2 {s(S_W2,2)}, s[0:1], {KA['Wo' if isV else 'Wk']}")
    A(f"s_load_dwordx2 {s(S_X,2)}, s[0:1], {KA['mem0']}")
    A(f"s_and_b32 {s(S_HEAD)}, {s(S_C)}, 15")
    A(f"s_lshl_b32 {s(S_T)}, {s(S_GRP)}, 4")
    A(f"s_add_u32 {s(S_HEAD)}, {s(S_HEAD)}, {s(S_T)}")
    A(f"s_getreg_b32 {s(S_FAST)}, hwreg(HW_REG_XCC_ID, 0, 4)")
    A(f"s_lshl_b32 {s(S_T)}, {s(S_GRP)}, 5")
    A(f"s_add_u32 {s(S_T)}, {s(S_T)}, {s(S_C)}")
    A(f"s_lshl_b32 {s(S_T)}, {s(S_T)}, 2")
    A(f"s_add_u32 {s(S_T2)}, {s(S_T)}, {MB_X}")
    if not flags: publish(A, S_FAST, S_T2)
    A("s_waitcnt lgkmcnt(0)")
    srd_finish(A, S_W1, W_BYTES); srd_finish(A, S_W2, W_BYTES); srd_finish(A, S_X, 10240)
    A(f"s_mul_i32 s66, {s(S_HEAD)}, 384")
    A("s_waitcnt vmcnt(0)")
    def hook(c1, c2):
        def f(c):
            if not flags: return
            if c == c1: init_load(A, 124, 125)
            if c == c2:
                init_wait(A, 124, 125)
                publish(A, S_FAST, S_T2, vt=126)
        return f
    if not isV:
        load_w_rows384(A, [S_W1, S_W2], 66, lambda c, kk, t, half: wdest(((c//10)*3+t)*10 + c%10, 2*kk+half), rowmap="sparse", vt=116, after_read=hook(8, 14))
    else:
        load_w_rows384(A, [S_W1], 66, lambda c, kk, t, half: wdest(t*10 + c, 2*kk+half), rowmap="sparse", vt=116, after_read=hook(8, -1))
        A(f"s_mul_i32 s66, {s(S_HEAD)}, 245760")
        load_wo(A, S_W2, 66, lambda c, t, half: wdest(30 + 3*t + c//2, 2*(c&1)+half), sparse=True, vt=116, after_read=hook(-1, 1))
    A(f"s_mul_i32 {s(S_T)}, {s(S_WAVE)}, 24576")
    A(f"v_lshl_add_u32 {v(V_WL)}, {v(V_LANE)}, 4, {s(S_T)}")
    for j in range(12):
        A(f"ds_write_b128 {v(V_WL)}, {v(AF+8*j,4)} offset:{j*2048}")
        A(f"ds_write_b128 {v(V_WL)}, {v(AF+8*j+4,4)} offset:{j*2048+1024}")
    A("s_waitcnt lgkmcnt(0)")
    tstamp(A, 2)
    if flags and NUMA:
        A("v_mov_b32 v118, 0"); A(f"global_load_dword v119, v118, {s(S_DBG,2)} offset:4 sc1")
    setup_common(A, isV)
    A(f"v_and_b32 v20, 31, {v(V_LANE)}")
    A(f"v_lshlrev_b32 v20, 2, v20")
    A(f"s_lshl_b32 {s(S_T)}, {s(S_GRP)}, 7")
    A(f"s_add_u32 {s(S_T)}, {s(S_T)}, {MB_X}")
    lab = A.newlabel("XH")
    loop_top(A, lab)
    A(f"buffer_load_dword v21, v20, {s(S_WS,4)}, {s(S_T)} offen sc1")
    A("s_waitcnt vmcnt(0)")
    A("v_cmp_eq_u32 vcc, -1, v21")
    retry(A, lab)
    jx = A.newlabel("XJ"); A(f"s_branch {jx}"); flush_stubs(A); A.label(jx)
    A(f"v_cmp_ne_u32 vcc, {s(S_FAST)}, v21")
    A("s_cmp_eq_u64 vcc, 0")
    A(f"s_cselect_b32 {s(S_FAST)}, 1, 0")
    if flags and NUMA:
        A(f"s_mov_b32 {s(S_T)}, {MB_X}")
        lab = A.newlabel("XN")
        loop_top(A, lab)
        A(f"buffer_load_dword v21, {v(V_ZERO)}, {s(S_WS,4)}, {s(S_T)} offen sc1")
        A("s_waitcnt vmcnt(0)")
        A("v_cmp_eq_u32 vcc, -1, v21")
        retry(A, lab)
        jx = A.newlabel("XJ"); A(f"s_branch {jx}"); flush_stubs(A); A.label(jx)
        A(f"v_readfirstlane_b32 {s(S_T)}, v21"); A(f"v_readfirstlane_b32 {s(S_T2)}, v119")
        A(f"s_bfe_u32 {s(S_T)}, {s(S_T)}, 0x10002"); A(f"s_mul_i32 {s(S_T)}, {s(S_T)}, 3"); A(f"s_xor_b32 {s(S_T2)}, {s(S_T2)}, {s(S_T)}")
        if NUMA == 2: A(f"s_xor_b32 {s(S_T2)}, {s(S_T2)}, 3")
        A(f"s_and_b32 {s(S_T)}, {s(S_T2)}, 1"); A(f"s_lshl_b32 {s(S_T)}, {s(S_T)}, 13")
        A(f"s_bfe_u32 {s(S_T2)}, {s(S_T2)}, 0x10001"); A(f"s_lshl_b32 {s(S_T2)}, {s(S_T2)}, 13")
        A(f"s_add_u32 {s(S_RR)}, {s(S_RR)}, {s(S_T)}"); A(f"s_add_u32 {s(S_RW)}, {s(S_RW)}, {s(S_T)}")
        A(f"s_sub_u32 {s(S_T2)}, {s(S_T2)}, {s(S_T)}")
    else: A(f"s_mov_b32 {s(S_T2)}, 0")
    A(f"s_add_u32 {s(55 if isV else 64)}, {s(S_T2)}, {(2<<20) - (RPP-1)*RSTEP}")
    if TS3 == 1: tstamp(A, 3)
    A(f"v_bfe_u32 v20, {v(V_LANE)}, 1, 3")
    A(f"v_mul_u32_u24 v20, 1280, v20")
    A(f"v_lshrrev_b32 v21, 4, {v(V_LANE)}")
    A(f"v_lshl_add_u32 v20, v21, 5, v20")
    A(f"v_and_b32 v21, 1, {v(V_LANE)}")
    A(f"v_lshl_add_u32 v20, v21, 4, v20")
    A(f"s_lshl_b32 {s(S_T)}, {s(S_WAVE)}, 7")
    A(f"s_lshl_b32 {s(S_T2)}, {s(S_WAVE)}, 10")
    for j in range(3):
        sk = A.newlabel("m0s")
        if j == 2:
            A(f"s_cmp_ge_u32 {s(S_WAVE)}, 2"); A(f"s_cbranch_scc1 {sk}")
        A(f"s_add_u32 m0, {s(S_T2)}, {L_MEM + j*4096 - j*512}")
        A("s_nop 0")
        A(f"buffer_load_dwordx4 v20, {s(S_X,4)}, {s(S_T)} offen offset:{j*512} lds")
        if j == 2: A.label(sk)
    if not isV:
        sk = A.newlabel("k0s")
        A(f"s_cmp_eq_u32 {s(S_WAVE)}, 0"); A(f"s_cbranch_scc1 {sk}")
        if K2W:
            A(f"s_cmp_eq_u32 {s(S_WAVE)}, 3"); A(f"s_cselect_b32 {s(S_KN)}, 3, {s(S_KN)}"); A(f"s_cbranch_scc1 {sk}")
        if flags: k_check(A)
        k_dma(A)
        if flags and PL_K != 'B': k_check(A)
        if VAR == 1 and PL_K not in 'SB':
            A(f"s_xor_b32 {s(S_MK)}, {s(S_MK)}, {S_LK ^ (S_LK + 16384)}")
            k_dma(A)
            if flags: k_check(A)
        A.label(sk)
    if TS3 == 2: A("s_barrier"); tstamp(A, 3)
    for zs, ps in ((S_Z, S_P), (S_ZN, S_PN), (S_ZP, S_PP)):
        A(f"s_add_u32 {s(S_T)}, {s(zs)}, {s(S_ZL)}")
        A(f"buffer_load_dwordx4 v[24:27], {v(V_L16)}, {s(S_WS,4)}, {s(S_T)} offen sc1")
        if isV:
            A(f"s_add_u32 {s(S_T)}, {s(zs)}, {s(S_ZL2)}")
            A(f"buffer_load_dwordx4 v[24:27], {v(V_ZH)}, {s(S_WS,4)}, {s(S_T)} offen sc1")
        A(f"s_add_u32 {s(S_T)}, {s(ps)}, {s(S_PLX)}")
        A(f"buffer_load_dwordx4 v[24:27], {v(V_L16)}, {s(S_WS,4)}, {s(S_T)} offen sc1")
        A(f"buffer_load_dwordx4 v[24:27], {v(V_L16)}, {s(S_WS,4)}, {s(S_T)} offen offset:1024 sc1")
        A(f"s_add_u32 {s(S_T)}, {s(ps)}, {s(S_PLM)}")
        A(f"buffer_load_dwordx4 v[24:27], {v(V_PLD)}, {s(S_WS,4)}, {s(S_T)} offen sc1")
    for ls in (S_L, S_LN):
        for o in (0, 4096, 6144):
            A(f"s_add_u32 {s(S_T)}, {s(ls)}, {o}")
            A(f"buffer_load_dwordx4 v[24:27], {v(V_T7)}, {s(S_WS,4)}, {s(S_T)} offen sc1")
    if TS3 == 3: A("s_waitcnt vmcnt(0)"); tstamp(A, 3)
    if flags: u_check(A, 0)
    if TS3 == 4: tstamp(A, 3)
    if flags and PL_M == 'W':
        A(f"s_mov_b32 {s(S_TGT)}, 1"); A(f"s_mov_b32 {s(S_T)}, {CN_U + 128}")
        A(f"buffer_load_dword {v(V_FL)}, {v(V_ZERO)}, {s(S_WS,4)}, {s(S_T)} offen sc1")
    if flags and PL_M != 'W': u_check(A, 1)
    A("s_waitcnt vmcnt(0)")
    jx = A.newlabel("XJ"); A(f"s_branch {jx}"); flush_stubs(A); A.label(jx)
    A("s_barrier")
    classes = [0, 12, 3]
    labs = {c: A.newlabel("CLS") for c in classes}
    A(f"s_cmp_eq_u32 {s(S_WAVE)}, 0")
    A(f"s_cbranch_scc1 {labs[0]}")
    A(f"s_cmp_eq_u32 {s(S_WAVE)}, 3")
    A(f"s_cbranch_scc1 {labs[3]}")
    for c in [12, 3, 0]:
        A.label(labs[c])
        chain_loop(A, isV, c, flags)
        A(f"s_branch {end_label}")
```

```python
from common import *
V_L16 = 2; V_OST = 3; V_Z = 4; V_FA = 5; V_FU = 6; V_FP = 7; V_P2 = 8
PF = 12
ZF = 44
D = 76
S_ID = 22; S_SEGC = 23; S_CB = 24; S_T = 26; S_T2 = 27; S_NEED = 28; S_CNT = 29; S_US = 30; S_PS = 31; S_ZS = 32; S_OS = 33; S_M0 = 34; S_FB = 35; S_STR = 36
NTASK = 640
WARM = 1

def lanes_wait(A, vfl, s_need):
    pass

def wait_cnt(A, base, need, s_known):
    sk = A.newlabel("F_kn")
    A(f"s_cmp_lt_u32 {s(S_SEGC)}, {s(s_known)}"); A(f"s_cbranch_scc1 {sk}")
    A(f"s_lshl_b32 {s(S_FB)}, {s(S_SEGC)}, 7")
    A(f"s_add_u32 {s(S_FB)}, {s(S_FB)}, {base}")
    A(f"s_mov_b32 {s(S_NEED)}, {need}")
    A(f"v_mov_b32 {v(V_FU)}, 0")
    flag_wait(A, V_FU, V_Z, S_FB, S_NEED, S_T, S_CNT, sleep=6)
    A(f"s_add_u32 {s(s_known)}, {s(S_SEGC)}, 1")
    A.label(sk)

def decode(A, s_id):
    A(f"s_mul_i32 {s(S_SEGC)}, {s(s_id)}, 6554")
    A(f"s_lshr_b32 {s(S_SEGC)}, {s(S_SEGC)}, 16")
    A(f"s_mul_i32 {s(S_T)}, {s(S_SEGC)}, 10")
    A(f"s_sub_u32 {s(S_CB)}, {s(s_id)}, {s(S_T)}")
    A(f"s_lshl_b32 {s(S_CB)}, {s(S_CB)}, 2")
    A(f"s_add_u32 {s(S_CB)}, {s(S_CB)}, {s(S_WAVE)}")

def issue_u(A, base, flags):
    decode(A, S_T2)
    if flags: wait_cnt(A, CN_U, 32, 37)
    A(f"s_mul_i32 {s(S_US)}, {s(S_SEGC)}, {40*32768}")
    A(f"s_lshl_b32 {s(S_T)}, {s(S_CB)}, 10")
    A(f"s_add_u32 {s(S_US)}, {s(S_US)}, {s(S_T)}")
    A(f"s_add_u32 {s(S_US)}, {s(S_US)}, {WS_U}")
    for h in range(32):
        if h: A(f"s_add_u32 {s(S_US)}, {s(S_US)}, 40960")
        A(f"buffer_load_dwordx4 {a(base+4*h,4)}, {v(V_L16)}, {s(S_WS,4)}, {s(S_US)} offen sc1")

def warm(A):
    A(f"s_load_dwordx2 {s(S_X,2)}, s[0:1], {KA['A_x']}")
    A(f"s_load_dwordx2 {s(S_W1,2)}, s[0:1], {KA['B_x']}")
    A(f"s_sub_u32 {s(S_T)}, {s(S_ID)}, 1")
    A(f"s_lshl_b32 {s(S_T)}, {s(S_T)}, 2")
    A(f"s_add_u32 {s(S_T)}, {s(S_T)}, {s(S_WAVE)}")
    A(f"s_lshl_b32 {s(S_T)}, {s(S_T)}, 13")
    A(f"v_lshlrev_b32 {v(PF+16)}, 7, {v(V_LANE)}")
    A("s_waitcnt lgkmcnt(0)")
    srd_finish(A, S_X, X_BYTES); srd_finish(A, S_W1, X_BYTES)
    for j in range(3 if WARM == 1 else 1):
        A(f"buffer_load_dword {v(PF+17)}, {v(PF+16)}, {s(S_X,4)}, {s(S_T)} offen")
        if WARM == 1: A(f"buffer_load_dword {v(PF+18)}, {v(PF+16)}, {s(S_W1,4)}, {s(S_T)} offen")
        A(f"s_add_u32 {s(S_T)}, {s(S_T)}, {NF*4*8192}")

NUMA = 1
PDBG = 0
def probe(A):
    sk = A.newlabel("F_np")
    A(f"s_or_b32 {s(S_T)}, {s(S_ID)}, {s(S_WAVE)}"); A(f"s_cbranch_scc1 {sk}")
    for j in range(8): A(f"s_mov_b32 s{44+j}, {MB_R + RPP*RSTEP + j*4096}")
    A("s_mov_b64 exec, 0xffff")
    for j in range(8): A(f"buffer_store_dwordx4 {v(PF,4)}, {v(V_L16)}, {s(S_WS,4)}, s{44+j} offen sc0 sc1")
    A("s_mov_b64 exec, 1")
    A("s_waitcnt vmcnt(0)")
    A(f"s_mov_b32 {s(S_US)}, -1"); A(f"s_mov_b32 {s(S_PS)}, -1")
    for i in range(16):
        j = [0, 2, 1, 3, 4, 6, 5, 7][i & 7]
        acc = S_PS if j & 2 else S_US
        A("s_memtime s[40:41]"); A("s_waitcnt lgkmcnt(0)")
        A(f"buffer_load_dword {v(PF+13)}, {v(V_Z)}, {s(S_WS,4)}, s{44+j} offen offset:{(i>>3)*128} sc1")
        A("s_waitcnt vmcnt(0)")
        A("s_memtime s[42:43]"); A("s_waitcnt lgkmcnt(0)")
        A("s_sub_u32 s42, s42, s40"); A(f"s_min_u32 {s(acc)}, {s(acc)}, s42")
    A(f"s_getreg_b32 {s(S_T2)}, hwreg(HW_REG_XCC_ID, 2, 1)")
    A(f"s_mul_i32 {s(S_T2)}, {s(S_T2)}, 3")
    A(f"s_cmp_gt_u32 {s(S_US)}, {s(S_PS)}")
    A(f"s_cselect_b32 {s(S_T)}, 1, 2")
    A(f"s_xor_b32 {s(S_T)}, {s(S_T)}, {s(S_T2)}")
    A(f"v_mov_b32 {v(PF+12)}, {s(S_T)}")
    A(f"global_store_dword {v(V_Z)}, {v(PF+12)}, {s(S_DBG,2)} offset:4 sc0 sc1")
    if PDBG:
        A(f"v_mov_b32 {v(PF+14)}, {s(S_US)}"); A(f"v_mov_b32 {v(PF+15)}, {s(S_PS)}")
        A(f"global_store_dwordx2 {v(V_Z)}, {v(PF+14,2)}, {s(S_DBG,2)} offset:16")
    A("s_mov_b64 exec, -1")
    A("s_waitcnt vmcnt(0)")
    A.label(sk)

def self_init(A):
    npg = (POISON_END - WS_MB + 4095)//4096
    for i in range(4): A(f"v_mov_b32 {v(PF+i)}, -1")
    A(f"s_lshl_b32 {s(S_T)}, {s(S_WAVE)}, 10")
    A(f"v_add_u32 {v(PF+4)}, {s(S_T)}, {v(V_L16)}")
    skp = A.newlabel("F_skip")
    A(f"s_sub_u32 {s(S_OS)}, {s(S_ID)}, 1")
    A(f"s_cbranch_scc1 {skp}")
    A(f"s_lshl_b32 {s(S_T)}, {s(S_OS)}, 12")
    A(f"s_add_u32 {s(S_T)}, {s(S_T)}, {WS_MB}")
    lp = A.newlabel("F_po")
    A.label(lp)
    A(f"buffer_store_dwordx4 {v(PF,4)}, {v(PF+4)}, {s(S_WS,4)}, {s(S_T)} offen sc0 sc1")
    A(f"s_add_u32 {s(S_T)}, {s(S_T)}, {(NF-1)*4096}")
    A(f"s_cmp_lt_u32 {s(S_T)}, {POISON_END}")
    A(f"s_cbranch_scc1 {lp}")
    lp = A.newlabel("F_pr")
    A(f"s_mov_b32 {s(S_T2)}, {s(S_OS)}")
    A.label(lp)
    A(f"s_mul_i32 {s(S_US)}, {s(S_T2)}, 6554"); A(f"s_lshr_b32 {s(S_US)}, {s(S_US)}, 16")
    A(f"s_mul_i32 {s(S_PS)}, {s(S_US)}, 10"); A(f"s_sub_u32 {s(S_PS)}, {s(S_T2)}, {s(S_PS)}")
    A(f"s_cmp_eq_u32 {s(S_PS)}, 9"); A(f"s_cselect_b32 {s(S_PS)}, 10, {s(S_PS)}")
    A(f"s_lshl_b32 {s(S_PS)}, {s(S_PS)}, 12")
    A(f"s_mul_i32 {s(S_T)}, {s(S_US)}, {RSTEP}")
    A(f"s_cmp_ge_u32 {s(S_US)}, {RPP}"); A(f"s_cselect_b32 {s(S_US)}, {(2<<20) - RPP*RSTEP}, 0")
    A(f"s_add_u32 {s(S_T)}, {s(S_T)}, {s(S_US)}"); A(f"s_add_u32 {s(S_T)}, {s(S_T)}, {s(S_PS)}"); A(f"s_add_u32 {s(S_T)}, {s(S_T)}, {MB_R}")
    A(f"buffer_store_dwordx4 {v(PF,4)}, {v(PF+4)}, {s(S_WS,4)}, {s(S_T)} offen sc0 sc1")
    A(f"s_cmp_ge_u32 {s(S_PS)}, {8<<12}"); A("s_cselect_b32 exec_lo, 0xffff, 0"); A("s_mov_b32 exec_hi, 0")
    A(f"s_add_u32 {s(S_T)}, {s(S_T)}, 4096")
    A(f"buffer_store_dwordx4 {v(PF,4)}, {v(V_L16)}, {s(S_WS,4)}, {s(S_T)} offen sc0 sc1")
    A("s_mov_b64 exec, -1")
    A(f"s_add_u32 {s(S_T2)}, {s(S_T2)}, {NF-1}")
    A(f"s_cmp_lt_u32 {s(S_T2)}, 630")
    A(f"s_cbranch_scc1 {lp}")
    sk = A.newlabel("F_nz")
    A(f"s_cmp_ge_u32 {s(S_OS)}, {(FLAGS_END-FLAGS)//4096}"); A(f"s_cbranch_scc1 {sk}")
    for i in range(4): A(f"v_mov_b32 {v(PF+8+i)}, 0")
    A(f"s_lshl_b32 {s(S_T)}, {s(S_OS)}, 12")
    A(f"s_add_u32 {s(S_T)}, {s(S_T)}, {FLAGS}")
    A(f"buffer_store_dwordx4 {v(PF+8,4)}, {v(PF+4)}, {s(S_WS,4)}, {s(S_T)} offen sc0 sc1")
    A.label(sk)
    A.label(skp)
    A("s_waitcnt vmcnt(0)")
    if NUMA: probe(A)
    A("s_barrier")
    sk = A.newlabel("F_na")
    A(f"s_cmp_lg_u32 {s(S_WAVE)}, 0"); A(f"s_cbranch_scc1 {sk}")
    A(f"v_mov_b32 {v(PF)}, 1")
    A("s_mov_b64 exec, 1")
    A(f"global_atomic_add {v(V_Z)}, {v(PF)}, {s(S_DBG,2)} sc1")
    A("s_mov_b64 exec, -1")
    A.label(sk)
    init_sync(A, PF+5, PF+6)
    assert POISON_END % 4096 == 0 and FLAGS == POISON_END

def role_f(A, flags=False):
    A.c("================ role F ================")
    A(f"s_load_dwordx2 {s(S_W2,2)}, s[0:1], {KA['out']}")
    A(f"v_lshlrev_b32 {v(V_L16)}, 4, {v(V_LANE)}")
    A(f"v_add_u32 {v(V_P2)}, 40960, {v(V_L16)}")
    A(f"v_and_b32 v9, 31, {v(V_LANE)}")
    A(f"v_mul_u32_u24 v9, 2560, v9")
    A(f"v_lshrrev_b32 v10, 5, {v(V_LANE)}")
    A(f"v_lshl_add_u32 {v(V_OST)}, v10, 4, v9")
    A(f"v_mov_b32 {v(V_Z)}, 0")
    A("s_mov_b32 s37, 0"); A("s_mov_b32 s38, 0"); A("s_mov_b32 s39, 0")
    A(f"s_mul_i32 {s(S_M0)}, {s(S_WAVE)}, 20480")
    A("s_waitcnt lgkmcnt(0)")
    srd_finish(A, S_W2, 2048*1280*2)
    if flags and WARM:
        sw = A.newlabel('F_nw'); A(f's_cmp_eq_u32 {s(S_ID)}, 0'); A(f's_cbranch_scc1 {sw}'); warm(A); A.label(sw)
    if flags: self_init(A)
    A(f"s_mov_b32 {s(S_T2)}, {s(S_ID)}")
    issue_u(A, 0, flags)
    loop = A.newlabel("F_loop"); done = A.newlabel("F_done")
    A.label(loop)
    for par in range(2):
        A(f"s_mov_b32 {s(S_T2)}, {s(S_ID)}")
        decode(A, S_T2)
        if flags:
            wait_cnt(A, RD_Q, 1, 38)
            wait_cnt(A, CN_Z, 64, 39)
        A(f"s_mul_i32 {s(S_PS)}, {s(S_SEGC)}, 81920")
        A(f"s_add_u32 {s(S_PS)}, {s(S_PS)}, {s(S_M0)}")
        A(f"s_add_u32 {s(S_PS)}, {s(S_PS)}, {WS_P}")
        A(f"s_mul_i32 {s(S_ZS)}, {s(S_SEGC)}, 327680")
        A(f"s_lshl_b32 {s(S_T)}, {s(S_CB)}, 13")
        A(f"s_add_u32 {s(S_ZS)}, {s(S_ZS)}, {s(S_T)}")
        A(f"s_add_u32 {s(S_ZS)}, {s(S_ZS)}, {WS_Z}")
        A(f"s_mul_i32 {s(S_OS)}, {s(S_SEGC)}, {32*2560}")
        A(f"s_lshl_b32 {s(S_T)}, {s(S_CB)}, 5")
        A(f"s_add_u32 {s(S_OS)}, {s(S_OS)}, {s(S_T)}")
        A("s_barrier")
        for j in range(20):
            if j % 4 == 0:
                A(f"s_add_u32 m0, {s(S_M0)}, {j*1024}")
                A(f"s_add_u32 {s(S_T)}, {s(S_PS)}, {j*1024}")
            A(f"buffer_load_dwordx4 {v(V_L16)}, {s(S_WS,4)}, {s(S_T)} offen offset:{(j%4)*1024} sc1 lds")
        for j in range(8):
            if j == 4: A(f"s_add_u32 {s(S_ZS)}, {s(S_ZS)}, 4096")
            A(f"buffer_load_dwordx4 {v(ZF+4*j,4)}, {v(V_L16)}, {s(S_WS,4)}, {s(S_ZS)} offen offset:{(j%4)*1024} sc1")
        A(f"s_add_u32 {s(S_T2)}, {s(S_ID)}, {s(S_STR)}")
        A(f"s_min_u32 {s(S_T2)}, {s(S_T2)}, {NTASK-1}")
        if flags:
            pass
        issue_u(A, 128*(1-par), flags)
        A("s_waitcnt vmcnt(32)")
        A("s_barrier")
        def rd(j):
            sl = j % 4
            A(f"ds_read_b128 {v(PF+sl*8,4)}, {v(V_L16)} offset:{j*1024}")
            A(f"ds_read_b128 {v(PF+sl*8+4,4)}, {v(V_P2)} offset:{j*1024}")
        for j in range(3): rd(j)
        for j in range(40):
            if j+3 < 40:
                rd(j+3); A("s_waitcnt lgkmcnt(6)")
            else: A(f"s_waitcnt lgkmcnt({2*(39-j)})")
            a_ = a(128*par+4*j,4) if j < 32 else v(ZF+4*(j-32),4)
            for q in range(2):
                A(f"v_mfma_f32_16x16x32_bf16 {v(D+4*q,4)}, {a_}, {v(PF+(j%4)*8+4*q,4)}, {'0' if j==0 else v(D+4*q,4)}")
        A("s_nop 7")
        A(f"v_cvt_pk_bf16_f32 {v(D+8)}, {v(D)}, {v(D+1)}")
        A(f"v_cvt_pk_bf16_f32 {v(D+9)}, {v(D+2)}, {v(D+3)}")
        A(f"v_cvt_pk_bf16_f32 {v(D+10)}, {v(D+4)}, {v(D+5)}")
        A(f"v_cvt_pk_bf16_f32 {v(D+11)}, {v(D+6)}, {v(D+7)}")
        A("s_nop 1")
        A(f"v_permlane16_swap_b32 {v(D+8)}, {v(D+10)}")
        A(f"v_permlane16_swap_b32 {v(D+9)}, {v(D+11)}")
        A(f"buffer_store_dwordx4 {v(D+8,4)}, {v(V_OST)}, {s(S_W2,4)}, {s(S_OS)} offen")
        A(f"s_add_u32 {s(S_ID)}, {s(S_ID)}, {s(S_STR)}")
        A(f"s_cmp_ge_u32 {s(S_ID)}, {NTASK}")
        A(f"s_cbranch_scc1 {done}")
    A(f"s_branch {loop}")
    A.label(done)
    A("s_waitcnt vmcnt(0)")
```

```python
from common import *
import common
STAMP=False
EXP=2
NSLOT=6
LEAD=0
EARLY=4

def load_w_rows384(A, srds, s_colbyte, dest_of, rowmap="dense", tiles=None, pfx="lw", vt=200, st=40, after_read=None):
    NS = NSLOT; CH = 24576
    if isinstance(srds, int): srds = [srds]
    nchunk = 10*len(srds)
    vo = [vt, vt+1, vt+2]; vb0 = vt+3; vb1 = vt+4; t0 = vt+5; t1 = vt+6; t2 = vt+7
    sOff = st; sT = st+1; sM = st+2
    A.c("---- weight load: DMA source offsets")
    for j in range(3):
        A(f"v_add_u32 {v(t0)}, {64*j}, {v(V_LANE)}")
        div24(A, t1, t2, t0, sT)
        A(f"v_mul_u32_u24 {v(t1)}, 12288, {v(t1)}")
        A(f"v_lshl_add_u32 {v(vo[j])}, {v(t2)}, 4, {v(t1)}")
    A(f"s_mul_i32 {s(sT)}, {s(S_WAVE)}, {16*12288}")
    A(f"s_add_u32 {s(sOff)}, {s(s_colbyte)}, {s(sT)}")
    A(f"s_mul_i32 {s(sM)}, {s(S_WAVE)}, 6144")
    A(f"v_lshrrev_b32 {v(t0)}, 4, {v(V_LANE)}")
    A(f"v_bfe_u32 {v(t1)}, {v(V_LANE)}, 2, 2")
    if rowmap == "dense":
        A(f"v_lshl_add_u32 {v(t0)}, {v(t0)}, 3, {v(t1)}")
    else:
        A(f"v_lshrrev_b32 {v(t2)}, 1, {v(t0)}")
        A(f"v_and_b32 {v(t0)}, 1, {v(t0)}")
        A(f"v_lshlrev_b32 {v(t0)}, 2, {v(t0)}")
        A(f"v_lshl_add_u32 {v(t0)}, {v(t2)}, 4, {v(t0)}")
        A(f"v_lshrrev_b32 {v(t2)}, 1, {v(t1)}")
        A(f"v_lshl_add_u32 {v(t0)}, {v(t2)}, 3, {v(t0)}")
        A(f"v_and_b32 {v(t1)}, 1, {v(t1)}")
        A(f"v_add_u32 {v(t0)}, {v(t0)}, {v(t1)}")
    A(f"v_mul_u32_u24 {v(t0)}, 384, {v(t0)}")
    A(f"v_and_b32 {v(t1)}, 3, {v(V_LANE)}")
    A(f"v_lshl_add_u32 {v(t0)}, {v(t1)}, 3, {v(t0)}")
    A(f"s_mul_i32 {s(sT)}, {s(S_WAVE)}, 96")
    A(f"v_add_u32 {v(vb0)}, {s(sT)}, {v(t0)}")
    A(f"v_add_u32 {v(vb1)}, {2*CH+CH}, {v(vb0)}")
    def issue(c):
        slot = c % NS
        for j in range(6):
            A(f"s_add_u32 m0, {s(sM)}, {slot*CH + j*1024}")
            A(f"s_add_u32 {s(sT)}, {s(sOff)}, {(c%10)*64*12288 + (j//3)*8*12288}")
            A(f"buffer_load_dwordx4 {v(vo[j%3])}, {s(srds[c//10],4)}, {s(sT)} offen lds")
    for c in range(min(NS-1, nchunk)):
        issue(c)
    for c in range(nchunk):
        later = min(nchunk-1, c+NS-2) - c
        A(f"s_waitcnt vmcnt({6*later})")
        A("s_barrier")
        if c+NS-1 < nchunk:
            issue(c+NS-1)
        slot = c % NS
        vb = vb0 if slot < 3 else vb1
        sb = (slot if slot < 3 else slot-3)*CH
        n = 0
        for kk in range(2):
            for t in range(3):
                for half in range(2):
                    if rowmap == "dense":
                        off = kk*32*384 + half*4*384 + t*32
                    else:
                        off = kk*32*384 + half*2*384 + t*32
                    A(f"ds_read_b64_tr_b16 {dest_of(c,kk,t,half)}, {v(vb)} offset:{sb+off}")
                    n += 1
        A("s_waitcnt lgkmcnt(0)")
        if after_read: after_read(c)
    A("s_barrier")

XF = 8
ACC = 32
PK = 80
V_XSRC = 2; V_XRD = 3; V_ST0 = 4; V_ST1 = 5
S_SEG = 22; S_XOFF = 23; S_DST = 24; S_M0X = 25; S_T = 26; S_FLAG = 27; S_NSEG = 28

def wreg(t, k):
    return (t*20 + k)*4

def setup_x_stream(A):
    A(f"v_lshrrev_b32 v6, 3, {v(V_LANE)}")
    A(f"s_and_b32 {s(S_T)}, {s(S_WAVE)}, 1")
    A(f"s_lshl_b32 {s(S_T)}, {s(S_T)}, 2")
    A(f"v_lshrrev_b32 v7, 4, {v(V_LANE)}")
    A(f"v_add_u32 v7, {s(S_T)}, v7")
    A(f"v_and_b32 {v(V_XSRC)}, 7, {v(V_LANE)}")
    A(f"v_xor_b32 v7, v7, {v(V_XSRC)}")
    A(f"v_mul_u32_u24 v6, 1280, v6")
    A(f"v_lshl_add_u32 v6, v7, 4, v6")
    A(f"s_mul_i32 {s(S_T)}, {s(S_WAVE)}, {8*1280}")
    A(f"v_add_u32 {v(V_XSRC)}, {s(S_T)}, v6")
    A(f"s_mul_i32 {s(S_M0X)}, {s(S_WAVE)}, 10240")
    A(f"v_and_b32 v6, 15, {v(V_LANE)}")
    A(f"v_lshrrev_b32 v7, 1, v6")
    A(f"v_lshrrev_b32 {v(V_XRD)}, 4, {v(V_LANE)}")
    A(f"v_xor_b32 v7, v7, {v(V_XRD)}")
    A(f"v_lshlrev_b32 v7, 4, v7")
    A(f"v_lshrrev_b32 {v(V_XRD)}, 3, v6")
    A(f"v_mul_u32_u24 {v(V_XRD)}, 10240, {v(V_XRD)}")
    A(f"v_and_b32 v6, 7, v6")
    A(f"v_lshl_add_u32 v6, v6, 7, v7")
    A(f"v_add_u32 {v(V_XRD)}, {v(V_XRD)}, v6")
    A(f"v_xor_b32 {v(XB+1)}, 64, {v(V_XRD)}")
    A(f"v_mov_b32 {v(XB)}, {v(V_XRD)}")
    A(f"v_add_u32 {v(XB+2)}, 40960, {v(XB)}")
    A(f"v_add_u32 {v(XB+3)}, 40960, {v(XB+1)}")

XB = 92
V_PFO = 96; V_PFD = 97; PFD = 3
def setup_pf(A):
    A(f"s_mul_i32 {s(S_T)}, {s(S_HEAD)}, 13108")
    A(f"s_lshr_b32 {s(S_T)}, {s(S_T)}, 16")
    A(f"s_mul_i32 {s(S_T)}, {s(S_T)}, 5")
    A(f"s_sub_u32 {s(S_T)}, {s(S_HEAD)}, {s(S_T)}")
    A(f"s_lshl_b32 {s(S_T)}, {s(S_T)}, 2")
    A(f"s_add_u32 {s(S_T)}, {s(S_T)}, {s(S_WAVE)}")
    A(f"s_lshl_b32 {s(S_T)}, {s(S_T)}, 11")
    A(f"s_add_u32 {s(S_T)}, {s(S_T)}, {PFD*40960}")
    A(f"v_lshl_add_u32 {v(V_PFO)}, {v(V_LANE)}, 7, {s(S_T)}")
def first_pf(A):
    A(f"v_subrev_u32 {v(V_PFO)}, {(PFD-1)*40960}, {v(V_PFO)}")
    for d in range(PFD):
        issue_pf(A)
        if d < PFD-1: A(f"v_add_u32 {v(V_PFO)}, 40960, {v(V_PFO)}")
def issue_pf(A):
    A("s_mov_b64 exec, 0xffff")
    A(f"buffer_load_dword {v(V_PFD)}, {v(V_PFO)}, {s(S_X,4)}, {s(S_XOFF)} offen")
    A("s_mov_b64 exec, -1")

XSRD = S_X; XFL = ""
def x_dma(A, buf, j, nop=True):
    A(f"s_add_u32 m0, {s(S_M0X)}, {buf*40960 + j*1024 - j*128}")
    if nop: A("s_nop 0")
    A(f"buffer_load_dwordx4 {v(V_XSRC)}, {s(XSRD,4)}, {s(S_XOFF)} offen offset:{j*128} {XFL} lds")

def issue_x(A, buf):
    for j in range(10):
        x_dma(A, buf, j)

def xread(A, buf, k):
    sl = k % 3
    for tau in range(2):
        A(f"ds_read_b128 {v(XF+sl*8+tau*4,4)}, {v(XB+buf*2+(k&1))} offset:{tau*20480+(k>>1)*1024}")

def kv_epilogue(accset, srd, sflags):
    L = []
    ac = lambda t, tau: ACC + accset*24 + (t*2+tau)*4
    for tau in range(2):
        for t in range(2):
            L.append(f"v_cvt_pk_bf16_f32 {v(PK+tau*4+t*2)}, {v(ac(t,tau))}, {v(ac(t,tau)+1)}")
            L.append(f"v_cvt_pk_bf16_f32 {v(PK+tau*4+t*2+1)}, {v(ac(t,tau)+2)}, {v(ac(t,tau)+3)}")
    for tau in range(2):
        L.append(f"v_cvt_pk_bf16_f32 {v(PK+8+tau*2)}, {v(ac(2,tau))}, {v(ac(2,tau)+1)}")
        L.append(f"v_cvt_pk_bf16_f32 {v(PK+8+tau*2+1)}, {v(ac(2,tau)+2)}, {v(ac(2,tau)+3)}")
    L.append(f"buffer_store_dwordx4 {v(PK,4)}, {v(V_ST0)}, {s(srd,4)}, {s(S_DST)} offen {sflags}")
    L.append(f"buffer_store_dwordx4 {v(PK+4,4)}, {v(V_ST0+2)}, {s(srd,4)}, {s(S_DST)} offen {sflags}")
    L.append(f"v_permlane16_swap_b32 {v(PK+8)}, {v(PK+10)}")
    L.append(f"v_permlane16_swap_b32 {v(PK+9)}, {v(PK+11)}")
    L.append(f"buffer_store_dwordx4 {v(PK+8,4)}, {v(V_ST1)}, {s(srd,4)}, {s(S_DST)} offen {sflags}")
    return L

def setup_kv_store(A):
    A(f"s_lshl_b32 {s(S_T)}, {s(S_WAVE)}, 10")
    A(f"v_lshl_add_u32 {v(V_ST0)}, {v(V_LANE)}, 4, {s(S_T)}")
    A(f"v_lshrrev_b32 v7, 4, {v(V_LANE)}")
    A(f"v_and_b32 v6, 1, v7")
    A(f"v_mul_u32_u24 v6, 6144, v6")
    A(f"v_lshrrev_b32 v7, 1, v7")
    A(f"v_lshl_add_u32 v6, v7, 8, v6")
    A(f"v_and_b32 v7, 15, {v(V_LANE)}")
    A(f"v_lshl_add_u32 v6, v7, 4, v6")
    A(f"s_lshr_b32 {s(S_T)}, {s(S_WAVE)}, 1")
    A(f"s_lshl_b32 {s(S_T)}, {s(S_T)}, 10")
    A(f"s_add_u32 {s(S_T)}, {s(S_T)}, 4096")
    A(f"v_add_u32 v6, {s(S_T)}, v6")
    A(f"s_and_b32 {s(S_T)}, {s(S_WAVE)}, 1")
    A(f"s_lshl_b32 {s(S_T)}, {s(S_T)}, 9")
    A(f"v_add_u32 {v(V_ST1)}, {s(S_T)}, v6")

def role_kv(A, flags=False):
    global V_XRD
    A.c("================ role K/V ================")
    srd_finish(A, S_W1, W_BYTES)
    A(f"s_load_dwordx2 {s(S_X,2)}, s[0:1], {KA['A_x']}")
    A(f"s_mul_i32 s30, {s(S_HEAD)}, 384")
    A(f"s_mul_i32 {s(S_T)}, {s(S_HEAD)}, 12288")
    A(f"s_add_u32 {s(S_DST)}, {s(S_DST)}, {s(S_T)}")
    A("s_waitcnt lgkmcnt(0)")
    srd_finish(A, S_X, X_BYTES)
    if STAMP: stamp(A,0)
    load_w_rows384(A, S_W1, 30, lambda c, kk, t, half: a(wreg(t, 2*c+kk)+2*half, 2))
    if STAMP: stamp(A,1)
    if flags: init_sync(A)
    setup_x_stream(A)
    setup_kv_store(A)
    setup_pf(A)
    A(f"v_add_u32 v6, 6144, {v(V_ST0)}")
    A(f"v_add_u32 v7, 0, {v(V_LANE)}")
    A(f"s_mov_b32 {s(S_XOFF)}, 0")
    A(f"s_mov_b32 {s(S_SEG)}, 0")
    issue_x(A, 0)
    A(f"s_sub_u32 {s(S_DST)}, {s(S_DST)}, {NH*12288}")
    loop = A.newlabel("KV_loop")
    first_pf(A)
    A("v_mov_b32 v100, 0"); A("v_mov_b32 v101, 0")
    A(f"s_lshl_b32 s32, {s(S_HEAD)}, 7"); A(f"s_add_u32 s32, s32, {FL_KM}")
    kinit(A)
    A.label(loop)
    for par in range(2):
        ktick(A, 0)
        if common.KST: A("s_waitcnt vmcnt(11)"); ktick(A, 1)
        A("s_waitcnt vmcnt(1)")
        ktick(A, 2)
        A("s_barrier")
        ktick(A, 3)
        for k in range(2):
            xread(A, par, k)
        fill = []
        skip = A.newlabel("KV_skip")
        if par == 0:
            A(f"s_cmp_eq_u32 {s(S_SEG)}, 0")
            A(f"s_cbranch_scc1 {skip}")
        if flags:
            l2 = A.newlabel("KV_np")
            A(f"s_cmp_le_u32 {s(S_SEG)}, {EARLY+1}"); A(f"s_cbranch_scc1 {l2}")
            publish_flag(A)
            A.label(l2)
        A("s_nop 4")
        for ins in kv_epilogue(1-par, S_WS, "sc0 sc1"):
            if "permlane" in ins and PK+8 == int(ins.split()[1][1:-1]): A("s_nop 1")
            A(ins)
        A.label(skip)
        if flags and LEAD:
            A(f"s_sub_u32 s31, {s(S_SEG)}, {LEAD}"); A("s_max_i32 s31, s31, 0")
            flag_wait(A, 100, 101, 32, 31, 0, 0, sleep=24)
        A(f"s_add_u32 {s(S_DST)}, {s(S_DST)}, {NH*12288}")
        A(f"s_add_u32 {s(S_XOFF)}, {s(S_XOFF)}, {32*1280}")
        if EXP == 0:
            issue_x(A, 1-par)
            gemm_seg(A, par)
        elif EXP == 1:
            gemm_seg(A, par)
        elif EXP == 2:
            gemm_seg(A, par, dma=1-par)
        A(f"s_add_u32 {s(S_SEG)}, {s(S_SEG)}, 1")
        if flags:
            l2 = A.newlabel("KV_ne")
            A(f"s_cmp_gt_u32 {s(S_SEG)}, {EARLY}"); A(f"s_cbranch_scc1 {l2}")
            A("s_nop 5")
            for ins in kv_epilogue(par, S_WS, "sc0 sc1"): A(ins)
            A("s_waitcnt vmcnt(0)"); A("s_barrier")
            publish(A, S_SEG, S_FLAG)
            A.label(l2)
    A(f"s_cmp_lt_u32 {s(S_SEG)}, {NSEG}")
    A(f"s_cbranch_scc1 {loop}")
    A("s_waitcnt vmcnt(0)")
    A("s_barrier")
    if flags: publish_flag(A)
    A("s_nop 7")
    for ins in kv_epilogue(1, S_WS, "sc0 sc1"):
        if "permlane" in ins and PK+8 == int(ins.split()[1][1:-1]): A("s_nop 1")
        A(ins)
    A("s_waitcnt vmcnt(0)")
    kdump(A)
    if flags:
        A("s_barrier")
        A(f"s_add_u32 {s(S_SEG)}, {s(S_SEG)}, 1")
        publish_flag(A)

def gemm_seg(A, par, dma=None, accset=None):
    if accset is None: accset = par
    for k in range(20):
        if dma is not None and k < 10:
            A(f"s_add_u32 m0, {s(S_M0X)}, {dma*40960 + k*1024 - k*128}")
        if k+2 < 20:
            xread(A, par, k+2)
            A("s_waitcnt lgkmcnt(4)")
        elif k+1 < 20:
            A("s_waitcnt lgkmcnt(2)")
        else:
            A("s_waitcnt lgkmcnt(0)")
        sl = k % 3
        for t in range(3):
            for tau in range(2):
                acc = ACC + accset*24 + (t*2+tau)*4
                c = "0" if k == 0 else v(acc,4)
                A(f"v_mfma_f32_16x16x32_bf16 {v(acc,4)}, {a(wreg(t,k),4)}, {v(XF+sl*8+tau*4,4)}, {c}")
                if dma is not None and k == 11 and t == 1 and tau == 0: issue_pf(A)
                if dma is not None and k < 10 and t == 1 and tau == 0:
                    A(f"buffer_load_dwordx4 {v(V_XSRC)}, {s(XSRD,4)}, {s(S_XOFF)} offen offset:{k*128} {XFL} lds")

def publish_flag(A):
    lab = A.newlabel("pf")
    A(f"s_cmp_lg_u32 {s(S_WAVE)}, 0")
    A(f"s_cbranch_scc1 {lab}")
    A(f"s_sub_u32 {s(S_T)}, {s(S_SEG)}, 1")
    A(f"v_mov_b32 v98, {s(S_T)}")
    A(f"v_mov_b32 v99, 0")
    A(f"s_mov_b64 exec, 1")
    A(f"buffer_store_dword v98, v99, {s(S_WS,4)}, {s(S_FLAG)} offen sc0 sc1")
    A(f"s_mov_b64 exec, -1")
    A.label(lab)
```

```python
from common import *
V_L16 = 2; V_OST = 3; V_Z = 4; V_FA = 5; V_FU = 6; V_FP = 7; V_P2 = 8
PF = 12
ZF = 44
D = 76
S_ID = 22; S_SEGC = 23; S_CB = 24; S_T = 26; S_T2 = 27; S_NEED = 28; S_CNT = 29; S_US = 30; S_PS = 31; S_ZS = 32; S_OS = 33; S_M0 = 34; S_FB = 35; S_STR = 36
NTASK = 640
OUTF = 'nt'
WARM = 1

def lanes_wait(A, vfl, s_need):
    pass

def wait_cnt(A, base, need, s_known, sleep=6):
    sk = A.newlabel("F_kn")
    A(f"s_cmp_lt_u32 {s(S_SEGC)}, {s(s_known)}"); A(f"s_cbranch_scc1 {sk}")
    A(f"s_lshl_b32 {s(S_FB)}, {s(S_SEGC)}, 7")
    A(f"s_add_u32 {s(S_FB)}, {s(S_FB)}, {base}")
    A(f"s_mov_b32 {s(S_NEED)}, {need}")
    A(f"v_mov_b32 {v(V_FU)}, 0")
    flag_wait(A, V_FU, V_Z, S_FB, S_NEED, S_T, S_CNT, sleep=sleep)
    A(f"s_add_u32 {s(s_known)}, {s(S_SEGC)}, 1")
    A.label(sk)

def decode(A, s_id):
    A(f"s_mul_i32 {s(S_SEGC)}, {s(s_id)}, 6554")
    A(f"s_lshr_b32 {s(S_SEGC)}, {s(S_SEGC)}, 16")
    A(f"s_mul_i32 {s(S_T)}, {s(S_SEGC)}, 10")
    A(f"s_sub_u32 {s(S_CB)}, {s(s_id)}, {s(S_T)}")
    A(f"s_lshl_b32 {s(S_CB)}, {s(S_CB)}, 2")
    A(f"s_add_u32 {s(S_CB)}, {s(S_CB)}, {s(S_WAVE)}")

def issue_u(A, base, flags):
    decode(A, S_T2)
    if flags: wait_cnt(A, CN_U, 32, 37)
    A(f"s_mul_i32 {s(S_US)}, {s(S_SEGC)}, {40*32768}")
    A(f"s_lshl_b32 {s(S_T)}, {s(S_CB)}, 10")
    A(f"s_add_u32 {s(S_US)}, {s(S_US)}, {s(S_T)}")
    A(f"s_add_u32 {s(S_US)}, {s(S_US)}, {WS_U}")
    for h in range(32):
        if h: A(f"s_add_u32 {s(S_US)}, {s(S_US)}, 40960")
        A(f"buffer_load_dwordx4 {a(base+4*h,4)}, {v(V_L16)}, {s(S_WS,4)}, {s(S_US)} offen sc1")

def warm(A):
    A(f"s_load_dwordx2 {s(S_X,2)}, s[0:1], {KA['A_x']}")
    A(f"s_load_dwordx2 {s(S_W1,2)}, s[0:1], {KA['B_x']}")
    A(f"s_sub_u32 {s(S_T)}, {s(S_ID)}, 1")
    A(f"s_lshl_b32 {s(S_T)}, {s(S_T)}, 2")
    A(f"s_add_u32 {s(S_T)}, {s(S_T)}, {s(S_WAVE)}")
    A(f"s_lshl_b32 {s(S_T)}, {s(S_T)}, 13")
    A(f"v_lshlrev_b32 {v(PF+16)}, 7, {v(V_LANE)}")
    A("s_waitcnt lgkmcnt(0)")
    srd_finish(A, S_X, X_BYTES); srd_finish(A, S_W1, X_BYTES)
    for j in range(3 if WARM == 1 else 1):
        A(f"buffer_load_dword {v(PF+17)}, {v(PF+16)}, {s(S_X,4)}, {s(S_T)} offen")
        if WARM == 1: A(f"buffer_load_dword {v(PF+18)}, {v(PF+16)}, {s(S_W1,4)}, {s(S_T)} offen")
        A(f"s_add_u32 {s(S_T)}, {s(S_T)}, {NF*4*8192}")

NUMA = 1
PDBG = 0
def probe(A):
    sk = A.newlabel("F_np")
    A(f"s_or_b32 {s(S_T)}, {s(S_ID)}, {s(S_WAVE)}"); A(f"s_cbranch_scc1 {sk}")
    for j in range(8): A(f"s_mov_b32 s{44+j}, {MB_R + RPP*RSTEP + j*4096}")
    A("s_mov_b64 exec, 0xffff")
    for j in range(8): A(f"buffer_store_dwordx4 {v(PF,4)}, {v(V_L16)}, {s(S_WS,4)}, s{44+j} offen sc0 sc1")
    A("s_mov_b64 exec, 1")
    A("s_waitcnt vmcnt(0)")
    A(f"s_mov_b32 {s(S_US)}, -1"); A(f"s_mov_b32 {s(S_PS)}, -1")
    for i in range(16):
        j = [0, 2, 1, 3, 4, 6, 5, 7][i & 7]
        acc = S_PS if j & 2 else S_US
        A("s_memtime s[40:41]"); A("s_waitcnt lgkmcnt(0)")
        A(f"buffer_load_dword {v(PF+13)}, {v(V_Z)}, {s(S_WS,4)}, s{44+j} offen offset:{(i>>3)*128} sc1")
        A("s_waitcnt vmcnt(0)")
        A("s_memtime s[42:43]"); A("s_waitcnt lgkmcnt(0)")
        A("s_sub_u32 s42, s42, s40"); A(f"s_min_u32 {s(acc)}, {s(acc)}, s42")
    A(f"s_getreg_b32 {s(S_T2)}, hwreg(HW_REG_XCC_ID, 2, 1)")
    A(f"s_mul_i32 {s(S_T2)}, {s(S_T2)}, 3")
    A(f"s_cmp_gt_u32 {s(S_US)}, {s(S_PS)}")
    A(f"s_cselect_b32 {s(S_T)}, 1, 2")
    A(f"s_xor_b32 {s(S_T)}, {s(S_T)}, {s(S_T2)}")
    A(f"v_mov_b32 {v(PF+12)}, {s(S_T)}")
    A(f"global_store_dword {v(V_Z)}, {v(PF+12)}, {s(S_DBG,2)} offset:4 sc0 sc1")
    if PDBG:
        A(f"v_mov_b32 {v(PF+14)}, {s(S_US)}"); A(f"v_mov_b32 {v(PF+15)}, {s(S_PS)}")
        A(f"global_store_dwordx2 {v(V_Z)}, {v(PF+14,2)}, {s(S_DBG,2)} offset:16")
    A("s_mov_b64 exec, -1")
    A("s_waitcnt vmcnt(0)")
    A.label(sk)

def self_init(A):
    npg = (POISON_END - WS_MB + 4095)//4096
    for i in range(4): A(f"v_mov_b32 {v(PF+i)}, -1")
    A(f"s_lshl_b32 {s(S_T)}, {s(S_WAVE)}, 10")
    A(f"v_add_u32 {v(PF+4)}, {s(S_T)}, {v(V_L16)}")
    skp = A.newlabel("F_skip")
    A(f"s_sub_u32 {s(S_OS)}, {s(S_ID)}, 1")
    A(f"s_cbranch_scc1 {skp}")
    A(f"s_lshl_b32 {s(S_T)}, {s(S_OS)}, 12")
    A(f"s_add_u32 {s(S_T)}, {s(S_T)}, {WS_MB}")
    lp = A.newlabel("F_po")
    A.label(lp)
    A(f"buffer_store_dwordx4 {v(PF,4)}, {v(PF+4)}, {s(S_WS,4)}, {s(S_T)} offen sc0 sc1")
    A(f"s_add_u32 {s(S_T)}, {s(S_T)}, {(NF-1)*4096}")
    A(f"s_cmp_lt_u32 {s(S_T)}, {POISON_END}")
    A(f"s_cbranch_scc1 {lp}")
    lp = A.newlabel("F_pr")
    A(f"s_mov_b32 {s(S_T2)}, {s(S_OS)}")
    A.label(lp)
    A(f"s_mul_i32 {s(S_US)}, {s(S_T2)}, 6554"); A(f"s_lshr_b32 {s(S_US)}, {s(S_US)}, 16")
    A(f"s_mul_i32 {s(S_PS)}, {s(S_US)}, 10"); A(f"s_sub_u32 {s(S_PS)}, {s(S_T2)}, {s(S_PS)}")
    A(f"s_cmp_eq_u32 {s(S_PS)}, 9"); A(f"s_cselect_b32 {s(S_PS)}, 10, {s(S_PS)}")
    A(f"s_lshl_b32 {s(S_PS)}, {s(S_PS)}, 12")
    A(f"s_mul_i32 {s(S_T)}, {s(S_US)}, {RSTEP}")
    A(f"s_cmp_ge_u32 {s(S_US)}, {RPP}"); A(f"s_cselect_b32 {s(S_US)}, {(2<<20) - RPP*RSTEP}, 0")
    A(f"s_add_u32 {s(S_T)}, {s(S_T)}, {s(S_US)}"); A(f"s_add_u32 {s(S_T)}, {s(S_T)}, {s(S_PS)}"); A(f"s_add_u32 {s(S_T)}, {s(S_T)}, {MB_R}")
    A(f"buffer_store_dwordx4 {v(PF,4)}, {v(PF+4)}, {s(S_WS,4)}, {s(S_T)} offen sc0 sc1")
    A(f"s_cmp_ge_u32 {s(S_PS)}, {8<<12}"); A("s_cselect_b32 exec_lo, 0xffff, 0"); A("s_mov_b32 exec_hi, 0")
    A(f"s_add_u32 {s(S_T)}, {s(S_T)}, 4096")
    A(f"buffer_store_dwordx4 {v(PF,4)}, {v(V_L16)}, {s(S_WS,4)}, {s(S_T)} offen sc0 sc1")
    A("s_mov_b64 exec, -1")
    A(f"s_add_u32 {s(S_T2)}, {s(S_T2)}, {NF-1}")
    A(f"s_cmp_lt_u32 {s(S_T2)}, 630")
    A(f"s_cbranch_scc1 {lp}")
    sk = A.newlabel("F_nz")
    A(f"s_cmp_ge_u32 {s(S_OS)}, {(FLAGS_END-FLAGS)//4096}"); A(f"s_cbranch_scc1 {sk}")
    for i in range(4): A(f"v_mov_b32 {v(PF+8+i)}, 0")
    A(f"s_lshl_b32 {s(S_T)}, {s(S_OS)}, 12")
    A(f"s_add_u32 {s(S_T)}, {s(S_T)}, {FLAGS}")
    A(f"buffer_store_dwordx4 {v(PF+8,4)}, {v(PF+4)}, {s(S_WS,4)}, {s(S_T)} offen sc0 sc1")
    A.label(sk)
    A.label(skp)
    A("s_waitcnt vmcnt(0)")
    if NUMA: probe(A)
    A("s_barrier")
    sk = A.newlabel("F_na")
    A(f"s_cmp_lg_u32 {s(S_WAVE)}, 0"); A(f"s_cbranch_scc1 {sk}")
    A(f"v_mov_b32 {v(PF)}, 1")
    A("s_mov_b64 exec, 1")
    A(f"global_atomic_add {v(V_Z)}, {v(PF)}, {s(S_DBG,2)} sc1")
    A("s_mov_b64 exec, -1")
    A.label(sk)
    init_sync(A, PF+5, PF+6)
    assert POISON_END % 4096 == 0 and FLAGS == POISON_END

def role_f(A, flags=False):
    A.c("================ role F ================")
    A(f"s_load_dwordx2 {s(S_W2,2)}, s[0:1], {KA['out']}")
    A(f"v_lshlrev_b32 {v(V_L16)}, 4, {v(V_LANE)}")
    A(f"v_add_u32 {v(V_P2)}, 40960, {v(V_L16)}")
    A(f"v_and_b32 v9, 31, {v(V_LANE)}")
    A(f"v_mul_u32_u24 v9, 2560, v9")
    A(f"v_lshrrev_b32 v10, 5, {v(V_LANE)}")
    A(f"v_lshl_add_u32 {v(V_OST)}, v10, 4, v9")
    A(f"v_mov_b32 {v(V_Z)}, 0")
    A("s_mov_b32 s37, 0"); A("s_mov_b32 s38, 0"); A("s_mov_b32 s39, 0")
    A(f"s_mul_i32 {s(S_M0)}, {s(S_WAVE)}, 20480")
    A("s_waitcnt lgkmcnt(0)")
    srd_finish(A, S_W2, 2048*1280*2)
    if flags and WARM:
        sw = A.newlabel('F_nw'); A(f's_cmp_eq_u32 {s(S_ID)}, 0'); A(f's_cbranch_scc1 {sw}'); warm(A); A.label(sw)
    if flags: self_init(A)
    A(f"s_mov_b32 {s(S_T2)}, {s(S_ID)}")
    issue_u(A, 0, flags)
    loop = A.newlabel("F_loop"); done = A.newlabel("F_done")
    A.label(loop)
    for par in range(2):
        A(f"s_mov_b32 {s(S_T2)}, {s(S_ID)}")
        decode(A, S_T2)
        A(f"s_mul_i32 {s(S_PS)}, {s(S_SEGC)}, 81920")
        A(f"s_add_u32 {s(S_PS)}, {s(S_PS)}, {s(S_M0)}")
        A(f"s_add_u32 {s(S_PS)}, {s(S_PS)}, {WS_P}")
        A(f"s_mul_i32 {s(S_ZS)}, {s(S_SEGC)}, 327680")
        A(f"s_lshl_b32 {s(S_T)}, {s(S_CB)}, 13")
        A(f"s_add_u32 {s(S_ZS)}, {s(S_ZS)}, {s(S_T)}")
        A(f"s_add_u32 {s(S_ZS)}, {s(S_ZS)}, {WS_Z}")
        A(f"s_mul_i32 {s(S_OS)}, {s(S_SEGC)}, {32*2560}")
        A(f"s_lshl_b32 {s(S_T)}, {s(S_CB)}, 5")
        A(f"s_add_u32 {s(S_OS)}, {s(S_OS)}, {s(S_T)}")
        if flags:
            wait_cnt(A, RD_Q, 1, 38, sleep=3)
            A(f"s_lshl_b32 {s(S_FB)}, {s(S_SEGC)}, 7"); A(f"s_add_u32 {s(S_FB)}, {s(S_FB)}, {CN_Z}")
            flag_load(A, V_FP, V_Z, S_FB)
        A("s_barrier")
        for j in range(20):
            if j % 4 == 0:
                A(f"s_add_u32 m0, {s(S_M0)}, {j*1024}")
                A(f"s_add_u32 {s(S_T)}, {s(S_PS)}, {j*1024}")
            A(f"buffer_load_dwordx4 {v(V_L16)}, {s(S_WS,4)}, {s(S_T)} offen offset:{(j%4)*1024} sc1 lds")
        if flags:
            A("s_waitcnt vmcnt(20)")
            A(f"s_mov_b32 {s(S_NEED)}, 64")
            flag_wait(A, V_FP, V_Z, S_FB, S_NEED, S_T, S_CNT, sleep=3)
        for j in range(8):
            if j == 4: A(f"s_add_u32 {s(S_ZS)}, {s(S_ZS)}, 4096")
            A(f"buffer_load_dwordx4 {v(ZF+4*j,4)}, {v(V_L16)}, {s(S_WS,4)}, {s(S_ZS)} offen offset:{(j%4)*1024} sc1")
        A(f"s_add_u32 {s(S_T2)}, {s(S_ID)}, {s(S_STR)}")
        A(f"s_min_u32 {s(S_T2)}, {s(S_T2)}, {NTASK-1}")
        if flags:
            pass
        issue_u(A, 128*(1-par), flags)
        A("s_waitcnt vmcnt(32)")
        A("s_barrier")
        def rd(j):
            sl = j % 4
            A(f"ds_read_b128 {v(PF+sl*8,4)}, {v(V_L16)} offset:{j*1024}")
            A(f"ds_read_b128 {v(PF+sl*8+4,4)}, {v(V_P2)} offset:{j*1024}")
        for j in range(3): rd(j)
        for j in range(40):
            if j+3 < 40:
                rd(j+3); A("s_waitcnt lgkmcnt(6)")
            else: A(f"s_waitcnt lgkmcnt({2*(39-j)})")
            a_ = a(128*par+4*j,4) if j < 32 else v(ZF+4*(j-32),4)
            for q in range(2):
                A(f"v_mfma_f32_16x16x32_bf16 {v(D+4*q,4)}, {a_}, {v(PF+(j%4)*8+4*q,4)}, {'0' if j==0 else v(D+4*q,4)}")
        A("s_nop 7")
        A(f"v_cvt_pk_bf16_f32 {v(D+8)}, {v(D)}, {v(D+1)}")
        A(f"v_cvt_pk_bf16_f32 {v(D+9)}, {v(D+2)}, {v(D+3)}")
        A(f"v_cvt_pk_bf16_f32 {v(D+10)}, {v(D+4)}, {v(D+5)}")
        A(f"v_cvt_pk_bf16_f32 {v(D+11)}, {v(D+6)}, {v(D+7)}")
        A("s_nop 1")
        A(f"v_permlane16_swap_b32 {v(D+8)}, {v(D+10)}")
        A(f"v_permlane16_swap_b32 {v(D+9)}, {v(D+11)}")
        A(f"buffer_store_dwordx4 {v(D+8,4)}, {v(V_OST)}, {s(S_W2,4)}, {s(S_OS)} offen {OUTF}")
        A(f"s_add_u32 {s(S_ID)}, {s(S_ID)}, {s(S_STR)}")
        A(f"s_cmp_ge_u32 {s(S_ID)}, {NTASK}")
        A(f"s_cbranch_scc1 {done}")
    A(f"s_branch {loop}")
    A.label(done)
    A("s_waitcnt vmcnt(0)")
```

```python
from common import *
from sched import *
from role_kv import load_w_rows384
from role_u import load_wo
import math, struct
STAMP = False
DELAY0 = 3
PBMODE = 0
DELAYL = 0
XBLOCK = 1
TLBW = 0
TLBO = 0
UGS = 0
UGV = 0
UGLATE = 1
CB = 150
TWIN = 0
TWD = 2
HW3 = 1
LRGAP = 0
XEARLY = 0
PREU = 2
NUMA = 1
TS3 = 0
TB = 44
TA = 135
XLATE = 30
TICKC = 363
XDELTA = 130
CVADJ = 150
DBVADJ = 2
CWAIT = 2100
TWSTEP = 28
S_TD = 98
PBSTEP0 = 10
PROBEW = 3
GIDX = 57
GIDXV = 3
DFAILB = 18
WIDE = 1
POLLW = 3
DELAY0V = 2
HBIDX = 44
XHINT = 1
DELAYH = 0
TAILW = 0
KMW = 0
RFIRST = 0
ZPRE2 = 1
HINTB = 0
HINTA = 0
HGAP = 1
PL_X = 'G'; PL_M = 'W'; K2W = 1; PL_P = 'T'; PL_K = 'T'
PBSTEPV = 4
PBSTG = 0
VAR = 1
SPEC = 1
WDEL = 9
DROP = 0
DELAYLV = 0
ZPRE = 1
DELAYZV = 2
DELAYZS = 2
PBSTEP = 4
VCAP = 2
DELAYBS = 0
TSTEP = 30
ORDER = 1
DELAYB = 0
NSTEP = 64

def f32bits(x): return struct.unpack("<I", struct.pack("<f", x))[0]

S_STEP=22; S_GRP=23; S_C=24; S_FAST=25; S_T=26; S_T2=27; S_CNT=28; S_DEAD=29
S_Z=30; S_ZN=31; S_P=32; S_PN=33; S_L=34; S_LN=35; S_RR=36; S_RW=37; S_US=38; S_US2=39
S_KS=44; S_EXP=45; S_ZP=46; S_PP=47; S_SC=48; S_KNOWN=49; S_KMX=67; S_ARR=57; S_KN=42
S_MA=50; S_MB=52
S_MU=54; S_MK=55; S_FLO=56; S_T3=58; S_T4=43; S_PST=59; S_PSM=60; S_PLX=61; S_PLM=62; S_ZL=63; S_ZL2=64; S_M3=68; S_G3=65
S_OLO = 40; S_OHI = 41; S_TGT = 66; S_EXN = 29; S_R3 = 29;  S_KMY = 39
S_TS=70
V_ZERO=0; V_IDX=2; V_L16=3; V_HI=4; V_WL=5; V_PW=6; V_T7=7; V_TRA=8; V_TRB=18; V_PLD=10; V_PM=11
V_FINR=12; V_TW=13; V_FINRM=14; V_UR=15; V_RW=16; V_KR=17; V_UH=17; V_UHR=18; V_GA=19
AF=20; ACC=60; TMP=76; XS=100; V_POI=120; V_ZH=124; V_FK=111; V_ZS4=125; V_ZS2=126; V_FL=127
V_G3W=9; V_FINRR=110; V_FINRT=111; V_PW2=111; V_SXR=13; V_PX=16; V_FKS=124; V_TMP1=125; V_TMPV=11
L_MEM=98304; HI=L_MEM
S_LK=114688; S_LU=143360; S_LQ=108544; S_LKM=111616; S_LRED=126976; S_LSX=159744
V_LU=108544; V_LVX=133120; V_LRED=136192

ORD_S = [t*10+k for k in range(10) for t in range(2)] + list(range(20,40)) + [t*10+k for k in range(10) for t in (4,5)]
ORD_V2 = [(t,k) for t in range(6) for k in (0,1)] + [(0,2),(1,2),(2,2),(3,2),(6,0),(6,1),(4,2),(7,0),(7,1),(5,2),(8,0),(8,1),(6,2),(9,0),(9,1),(7,2),(8,2),(9,2)]
ORD_V = [t*10+k for k in range(10) for t in (0,1)] + list(range(20,30)) + [30+3*t+k for t,k in ORD_V2]
CUR_ORD = ORD_S
def wfrag(f):
    p = CUR_ORD.index(f)
    if p % 5 == 4: return ("lds", p//5)
    r = p - p//5
    return ("reg", 256 + 8*r if r < 32 else 128 + 8*(r-32))
def wdest(f, q):
    kind, x = wfrag(f)
    return reg(x + 2*q, 2) if kind == "reg" else v(AF + 8*x + 2*q, 2)

STUBS = []
def dual_text(A, lines):
    sl = A.newlabel("ds_s"); en = A.newlabel("ds_e")
    STUBS.append([sl + ":"] + [l + (" sc0 sc1" if l.startswith("buffer_store") else "") for l in lines] + [f"s_branch {en}"])
    return "\n".join([f"s_cmp_eq_u32 {s(S_FAST)}, 0", f"s_cbranch_scc1 {sl}"] + lines + [en + ":"])
def dual(A, lines): A(dual_text(A, lines))
def flush_stubs(A):
    for st in STUBS:
        for l in st: A(l)
    STUBS.clear()

def tick(A, k):
    if not STAMP or STAMP == 3: return
    if STAMP == 2:
        A(f"s_memrealtime {s(88,2)}")
        A("s_waitcnt lgkmcnt(0)")
        A(f"s_cmp_eq_u32 {s(S_STEP)}, {TSTEP + (1 if k >= 4 else 0)}")
        A(f"s_cselect_b32 {s(S_TS+k)}, {s(88)}, {s(S_TS+k)}")
        return
    A(f"s_memtime {s(88,2)}")
    A("s_waitcnt lgkmcnt(0)")
    A(f"s_sub_u32 {s(87)}, {s(88)}, {s(86)}")
    A(f"s_add_u32 {s(S_TS+k)}, {s(S_TS+k)}, {s(87)}")
    A(f"s_mov_b32 {s(86)}, {s(88)}")

TRACE = 0
def tr(A, k):
    if TRACE == 2: A(f"s_memrealtime {s(70+2*k,2)}")
    elif TRACE: A(f"s_memtime {s(70+2*k,2)}")
def trace_task():
    if not TRACE: return []
    L = [f"v_writelane_b32 {v(V_TRC)}, {s(70+2*k)}, {k}" for k in range(10)]
    L += [f"s_lshl_b32 s94, {s(S_STEP)}, 8", "s_add_u32 s94, s94, s95"]
    L.append("\n".join(["s_mov_b64 exec, 0x3ff", f"buffer_store_dword {v(V_TRC)}, {v(V_L16)}, {s(S_WS,4)}, s94 offen", "s_mov_b64 exec, -1"]))
    return [[1, 18, L]]
V_TRC = 125; V_TRA4 = 110
S_HP = 90; S_HN = 91; V_HA = 118
def hint_store(A, off, vt):
    A(f"s_add_u32 {s(S_HN)}, {s(S_STEP)}, 1")
    A(f"s_lshl_b32 {s(S_T)}, {s(S_C)}, 2")
    A(f"s_add_u32 {s(S_T)}, {s(S_T)}, {s(S_HP)}")
    A(f"v_mov_b32 {v(vt)}, {s(S_HN)}")
    dual(A, ["s_mov_b64 exec, 1", f"buffer_store_dword {v(vt)}, {v(V_ZERO)}, {s(S_WS,4)}, {s(S_T)} offen offset:{off}", "s_mov_b64 exec, -1"])
S_XW = 100; S_XR = 99
def hint_first(A, off, nw, va, a_, cross=False):
    A(f"s_add_u32 {s(S_HN)}, {s(S_STEP)}, 1")
    A(f"v_and_b32 {v(va)}, {nw-1}, {v(V_LANE)}")
    A(f"v_lshlrev_b32 {v(va)}, 2, {v(va)}")
    if cross and nw == 1: A(f"v_mov_b32 {v(va)}, {s(S_XR)}")
    elif cross: A(f"v_writelane_b32 {v(va)}, {s(S_XR)}, 32"); nw = 33
    A(f"s_mov_b64 exec, {hex((1<<nw)-1)}" if nw <= 32 else "s_mov_b32 exec_hi, 1")
    A(f"buffer_load_dword {v(a_)}, {v(va)}, {s(S_WS,4)}, {s(S_HP)} offen offset:{off} sc1")
def hint_poll(A, off, nw, va, a_, b_, ctr, cross=False, first=True):
    lp = A.newlabel("HP"); dn = A.newlabel("HPd")
    ld = lambda r: f"buffer_load_dword {v(r)}, {v(va)}, {s(S_WS,4)}, {s(S_HP)} offen offset:{off} sc1"
    if first:
        hint_first(A, off, nw, va, a_, cross)
        if HGAP: A(f"s_sleep {HGAP}")
    else:
        A(f"s_mov_b64 exec, {hex((1<<nw)-1)}" if (not cross or nw == 1) else "s_mov_b32 exec_hi, 1")
    A(ld(b_))
    A.label(lp)
    A("s_waitcnt vmcnt(1)")
    A(f"v_cmp_gt_i32 vcc, {s(S_HN)}, {v(a_)}")
    A(f"s_cbranch_vccz {dn}")
    A(ld(a_))
    A("s_waitcnt vmcnt(1)")
    A(f"v_cmp_gt_i32 vcc, {s(S_HN)}, {v(b_)}")
    A(f"s_cbranch_vccz {dn}")
    A(ld(b_))
    if STAMP: A(f"s_add_u32 {s(S_TS+ctr)}, {s(S_TS+ctr)}, 1")
    A(f"s_sub_u32 {s(S_CNT)}, {s(S_CNT)}, 1")
    A(f"s_cbranch_scc0 {lp}")
    A(f"s_mov_b32 {s(S_CNT)}, 0")
    A.label(dn)
    A("s_mov_b64 exec, -1")
def gate(A, off, nw, va, a_, b_, ctr, younger, d_pass, d_fail, cross=False):
    fl = A.newlabel("GTf"); bk = A.newlabel("GTb")
    A(f"s_waitcnt vmcnt({younger})")
    A(f"s_mov_b64 exec, {hex((1<<nw)-1)}")
    A(f"v_cmp_gt_i32 vcc, {s(S_HN)}, {v(a_)}")
    A("s_mov_b64 exec, -1")
    A(f"s_cbranch_vccnz {fl}")
    if d_pass: A(f"s_sleep {d_pass}")
    A.label(bk)
    B = Asm(); B.uid = A.uid + 600000; A.uid += 10
    B.label(fl)
    hint_poll(B, off, nw, va, a_, b_, ctr, cross=cross)
    if d_fail: B(f"s_sleep {d_fail}")
    B(f"s_branch {bk}")
    STUBS.append(B.lines)
def first_text(A, off, nw, va, a_):
    B = Asm(); hint_first(B, off, nw, va, a_); B("s_mov_b64 exec, -1")
    L = [l.strip() for l in B.lines]
    return L[:3] + ["\n".join(L[3:])]
def RTMP(): return 76 if not (TRACE or STAMP) else 92
def ts_hint_read(A):
    r = RTMP()
    A(f"s_memrealtime {s(r,2)}")
    A(f"s_add_u32 {s(S_HN)}, {s(S_STEP)}, 1")
    A(f"s_lshl_b32 {s(S_HN)}, {s(S_HN)}, 24")
    A(f"s_lshl_b32 {s(S_T)}, {s(S_C)}, 2")
    A(f"s_add_u32 {s(S_T)}, {s(S_T)}, {s(S_HP)}")
def ts_hint_store(A, E, vt, pre=False):
    r = RTMP()
    if not pre:
        ts_hint_read(A)
        E.drain()
    A(f"s_and_b32 {s(r)}, {s(r)}, 0xffffff")
    A(f"s_or_b32 {s(r)}, {s(r)}, {s(S_HN)}")
    A(f"v_mov_b32 {v(vt)}, {s(r)}")
    dual(A, ["s_mov_b64 exec, 1", f"buffer_store_dword {v(vt)}, {v(V_ZERO)}, {s(S_WS,4)}, {s(S_T)} offen", "s_mov_b64 exec, -1"])
def ts_wait(A, E, s_t, ticks, pre=False):
    r = RTMP(); lp = A.newlabel("TW")
    if not pre: A(f"s_memrealtime {s(r,2)}")
    A("s_waitcnt lgkmcnt(0)"); E.reset()
    A(f"s_add_u32 {s(r+1)}, {s(s_t)}, {ticks}")
    A(f"s_sub_u32 {s(r+1)}, {s(r+1)}, {s(r)}")
    A(f"s_and_b32 {s(r+1)}, {s(r+1)}, 0xffffff")
    A(f"s_cmp_gt_u32 {s(r+1)}, 120"); A(f"s_cselect_b32 {s(r+1)}, 0, {s(r+1)}")
    A(f"s_mul_i32 {s(r+1)}, {s(r+1)}, {TICKC}")
    A.label(lp)
    A(f"s_sub_u32 {s(r+1)}, {s(r+1)}, {44*16}")
    A(f"s_cmp_gt_i32 {s(r+1)}, 0")
    A(f"s_cbranch_scc1 {lp}")
S_A1_ = 11
def xstore(A):
    if HINTB < 6: A(f"s_add_u32 {s(S_HN)}, {s(S_STEP)}, 1")
    A(f"v_lshrrev_b32 {v(59)}, 2, {v(V_L16)}")
    A(f"s_cmp_eq_u32 {s(S_C)}, 16")
    A(f"v_mov_b32 {v(57)}, {s(S_HN if HINTB < 6 else S_TD)}")
    A("s_cselect_b32 exec_lo, -1, 0"); A("s_mov_b32 exec_hi, 0")
    A(f"s_add_u32 {s(S_A1_)}, {s(S_RW)}, {s(S_XW)}")
    A(f"buffer_store_dword {v(57)}, {v(59)}, {s(S_WS,4)}, {s(S_A1_)} offen sc0 sc1")
    A("s_mov_b64 exec, -1")
def ph_issue(A):
    A(f"s_add_u32 {s(S_HN)}, {s(S_STEP)}, 1")
    A(f"s_lshl_b32 {s(S_HN)}, {s(S_HN)}, 24")
    A(f"v_and_b32 {v(57)}, 15, {v(V_LANE)}")
    A(f"v_lshlrev_b32 {v(57)}, 2, {v(57)}")
    A(f"buffer_load_dword {v(58)}, {v(57)}, {s(S_WS,4)}, {s(S_HP)} offen sc1")
def ph_eval(A, younger):
    lp = A.newlabel("PH"); ok = A.newlabel("PHo")
    A(f"s_waitcnt vmcnt({younger})")
    A(f"v_cmp_gt_i32 vcc, {s(S_HN)}, {v(58)}")
    A(f"s_cbranch_vccnz {lp}")
    A.label(ok)
    STUBS.append([lp + ":", f"buffer_load_dword {v(58)}, {v(57)}, {s(S_WS,4)}, {s(S_HP)} offen sc1",
                  f"s_sub_u32 {s(S_CNT)}, {s(S_CNT)}, 1", f"s_cbranch_scc1 {lp}_d", "s_waitcnt vmcnt(0)",
                  f"v_cmp_gt_i32 vcc, {s(S_HN)}, {v(58)}", f"s_cbranch_vccnz {lp}", f"s_branch {ok}",
                  lp + "_d:", f"s_mov_b32 {s(S_CNT)}, 0", "s_waitcnt vmcnt(0)", f"s_branch {ok}"])
    for sh in (1, 2, 4, 8):
        A("s_nop 1")
        A(f"v_max_i32_dpp {v(58)}, {v(58)}, {v(58)} row_ror:{sh} row_mask:0xf bank_mask:0xf")
    A("s_nop 0")
    A(f"v_readfirstlane_b32 {s(S_TD)}, {v(58)}")
def ts_poll(A, va, a_, b_, ctr):
    lp = A.newlabel("HP"); dn = A.newlabel("HPd"); d2 = A.newlabel("HPe")
    ld = lambda r: f"buffer_load_dword {v(r)}, {v(va)}, {s(S_WS,4)}, {s(S_HP)} offen sc1"
    A(f"s_add_u32 {s(S_HN)}, {s(S_STEP)}, 1")
    A(f"s_lshl_b32 {s(S_HN)}, {s(S_HN)}, 24")
    A(f"v_and_b32 {v(va)}, 15, {v(V_LANE)}")
    A(f"v_lshlrev_b32 {v(va)}, 2, {v(va)}")
    A("s_mov_b64 exec, 0xffff")
    A.label(lp)
    A(ld(a_))
    if STAMP: A(f"s_add_u32 {s(S_TS+ctr)}, {s(S_TS+ctr)}, 1")
    A(f"s_sub_u32 {s(S_CNT)}, {s(S_CNT)}, 1")
    A(f"s_cbranch_scc1 {d2}")
    A("s_waitcnt vmcnt(0)")
    A(f"v_cmp_gt_i32 vcc, {s(S_HN)}, {v(a_)}")
    A(f"s_cbranch_vccnz {lp}")
    A.label(dn)
    STUBS.append([d2 + ":", f"s_mov_b32 {s(S_CNT)}, 0", "s_waitcnt vmcnt(0)", f"s_branch {dn}"])
    A(f"s_memrealtime {s(RTMP(),2)}")
    for sh in (1, 2, 4, 8):
        A("s_nop 1")
        A(f"v_max_i32_dpp {v(a_)}, {v(a_)}, {v(a_)} row_ror:{sh} row_mask:0xf bank_mask:0xf")
    A("s_nop 0")
    A(f"v_readfirstlane_b32 {s(S_TD)}, {v(a_)}")
    A("s_mov_b64 exec, -1")
def wait_poison(A, extra=0, fin=False):
    key = f"{v(V_POI,2)}, {v(V_FINRM)}" if fin else f"{v(V_POI,2)}, "
    idx = max(i for i, l in enumerate(A.lines) if "buffer_store" in l and (key in l))
    n = sum(1 for l in A.lines[idx+1:] if l.strip().startswith("buffer_"))
    return f"s_waitcnt vmcnt({max(n - extra, 0)})"
def loop_top(A, lab, ctr=15):
    A.label(lab)
    if STAMP: A(f"s_add_u32 {s(S_TS+ctr)}, {s(S_TS+ctr)}, 1")
    A(f"s_sub_u32 {s(S_CNT)}, {s(S_CNT)}, 1")
    A(f"s_cbranch_scc1 {lab}_dead")
def retry(A, lab, ctr=15):
    A(f"s_cbranch_vccnz {lab}")
    A.label(lab + "_ok")
    STUBS.append([lab + "_dead:", f"s_mov_b32 {s(S_CNT)}, 0", "s_mov_b64 exec, -1" if ctr in (11, 12, 15) else "s_nop 0", f"s_branch {lab}_ok"])

def mp_init(A, masks, base=0):
    for i, m in enumerate(masks): A(f"s_mov_b64 {s(FPS[base+i],2)}, {m}")
def mp_issue(A, loads, base=0):
    for i, (r, ld) in enumerate(loads):
        A(f"s_mov_b64 exec, {s(FPS[base+i],2)}"); A(ld)
    A("s_mov_b64 exec, -1")
def mp_check(loads, mt, base=0):
    L = []
    for i, (r, _) in enumerate(loads):
        L += [f"v_max_u32 {v(mt+i)}, {v(r)}, {v(r+2)}"]
    L += [f"v_cmp_eq_u32 {s(FPS[base+i],2)}, -1, {v(mt+i)}" for i in range(len(loads))]
    return L
def mp_close(A, n, lab, base=0):
    A(f"s_or_b64 vcc, {s(FPS[base],2)}, {s(FPS[base+1],2)}")
    for i in range(2, n): A(f"s_or_b64 vcc, vcc, {s(FPS[base+i],2)}")
    A(f"s_cbranch_scc1 {lab}")
    A.label(lab + "_ok")
    STUBS.append([lab + "_dead:", f"s_mov_b32 {s(S_CNT)}, 0", f"s_branch {lab}_ok"])
FPS = [12, 14, 16, 18, 8, 96]

def maxtree(regs_, t):
    L = []; r = list(regs_)
    L.append(f"v_max3_u32 {v(t)}, {v(r[0])}, {v(r[1])}, {v(r[2])}"); r = r[3:]
    while len(r) >= 2:
        L.append(f"v_max3_u32 {v(t)}, {v(t)}, {v(r[0])}, {v(r[1])}"); r = r[2:]
    if r: L.append(f"v_max_u32 {v(t)}, {v(t)}, {v(r[0])}")
    return L

def post(sa, out=None):
    o = sa if out is None else out
    return [f"v_add_f32 {v(sa)}, {v(sa)}, {v(sa+1)}", f"v_add_f32 {v(sa+2)}, {v(sa+2)}, {v(sa+3)}",
            f"v_cvt_pk_bf16_f32 {v(o)}, {v(sa)}, {v(sa+2)}"]
def post_s(sa, off, tag):
    return post(sa) + [ds(tag, f"ds_write_b32 {v(V_PW)}, {v(sa)} offset:{off}")]
def post_v(sa, off, tag):
    return post(sa) + [ds(tag, f"ds_write_b16 {v(V_PW)}, {v(sa)} offset:{off}"), ds(tag, f"ds_write_b16_d16_hi {v(V_PW)}, {v(sa)} offset:{off+4}")]
def zero(sa): return [f"v_mov_b64 {v(sa,2)}, 0", f"v_mov_b64 {v(sa+2,2)}, 0"]
def wl_read(j):
    r = TMP + 8*(j % 3)
    return [ds(f"W{j}", f"ds_read_b128 {v(r,4)}, {v(V_WL)} offset:{j*2048}"),
            ds(f"W{j}", f"ds_read_b128 {v(r+4,4)}, {v(V_WL)} offset:{j*2048+1024}")]
def smf(f, acc, afrag):
    kind, x = wfrag(f)
    it = []
    if kind == "lds":
        it.append(need(f"W{x}")); b = v(TMP + 8*(x % 3), 8)
    else: b = reg(x, 8)
    it.append(f"v_smfmac_f32_16x16x64_bf16 {v(acc,4)}, {v(afrag,4)}, {b}, {v(V_IDX)}")
    return it
def refill_tasks():
    return [[5*j+4, 5*(j+3)+4-5, wl_read(j+3)] for j in range(9)]

def setup_common(A, isV):
    LU = V_LU if isV else S_LU; LRED = V_LRED if isV else S_LRED
    t0, t1, t2 = 112, 113, 114
    A(f"v_mov_b32 {v(V_ZERO)}, 0")
    A(f"v_and_b32 {v(t0)}, 15, {v(V_LANE)}")
    A(f"v_lshrrev_b32 {v(t1)}, 4, {v(V_LANE)}")
    A(f"v_mov_b32 {v(V_IDX)}, 0x4444")
    A(f"v_mov_b32 {v(t2)}, 0xeeee")
    A(f"v_and_b32 {v(V_L16)}, 1, {v(V_LANE)}")
    A(f"v_cmp_eq_u32 vcc, 1, {v(V_L16)}")
    A("s_nop 1")
    A(f"v_cndmask_b32 {v(V_IDX)}, {v(V_IDX)}, {v(t2)}, vcc")
    A(f"v_lshlrev_b32 {v(V_L16)}, 4, {v(V_LANE)}")
    A(f"v_add_u32 {v(V_HI)}, {HI}, {v(V_L16)}")
    A(f"s_mul_i32 {s(S_T)}, {s(S_WAVE)}, 24576")
    A(f"v_add_u32 {v(V_WL)}, {s(S_T)}, {v(V_L16)}")
    if isV:
        A(f"v_and_b32 {v(t2)}, 7, {v(t0)}")
        A(f"v_lshlrev_b32 {v(t2)}, 5, {v(t2)}")
        A(f"v_lshl_add_u32 {v(t2)}, {v(t1)}, 3, {v(t2)}")
        A(f"v_lshrrev_b32 {v(V_PW)}, 3, {v(t0)}")
        A(f"v_lshl_add_u32 {v(t2)}, {v(V_PW)}, 1, {v(t2)}")
    else:
        A(f"v_lshlrev_b32 {v(t2)}, 2, {v(t1)}")
        A(f"v_lshl_add_u32 {v(t2)}, {v(t0)}, 4, {v(t2)}")
    A(f"s_mul_i32 {s(S_T)}, {s(S_WAVE)}, {512 if isV else 768}")
    A(f"s_add_u32 {s(S_T)}, {s(S_T)}, {V_LVX if isV else S_LQ}")
    A(f"v_add_u32 {v(V_PW)}, {s(S_T)}, {v(t2)}")
    if isV:
        A(f"s_lshl_b32 {s(S_T)}, {s(S_WAVE)}, 8")
        A(f"s_add_u32 {s(S_T)}, {s(S_T)}, {V_LVX + 2048}")
        A(f"v_add_u32 {v(V_PW2)}, {s(S_T)}, {v(t2)}")
    A(f"v_and_b32 {v(t2)}, 7, {v(t0)}")
    A(f"v_lshl_add_u32 {v(V_PLD)}, {v(t1)}, 3, {v(t2)}")
    A(f"v_lshlrev_b32 {v(V_PLD)}, 4, {v(V_PLD)}")
    A(f"v_lshl_add_u32 {v(V_FINR)}, {v(t1)}, 4, {v(t2)}")
    A(f"v_lshlrev_b32 {v(V_FINR)}, 4, {v(V_FINR)}")
    if isV:
        A(f"s_and_b32 {s(S_T)}, {s(S_C)}, 1")
        A(f"s_lshl_b32 {s(S_T)}, {s(S_T)}, 7")
        A(f"v_add_u32 {v(V_ZH)}, {s(S_T)}, {v(V_FINR)}")
        A(f"v_lshrrev_b32 {v(V_UH)}, 3, {v(t0)}")
        A(f"v_mul_u32_u24 {v(V_UH)}, 40960, {v(V_UH)}")
        A(f"v_add_u32 {v(V_UH)}, {v(V_UH)}, {v(V_ZH)}")
        A(f"s_mul_i32 {s(S_T)}, {s(S_WAVE)}, 6144")
        A(f"s_add_u32 {s(S_T)}, {s(S_T)}, {LU+4096}")
        A(f"v_add_u32 {v(V_UHR)}, {s(S_T)}, {v(V_FINR)}")
        A(f"v_mov_b32 {v(V_FINR)}, {v(V_L16)}")
    A(f"v_add_u32 {v(V_FINR)}, {LRED}, {v(V_FINR)}")
    A(f"s_mul_i32 {s(S_MU)}, {s(S_WAVE)}, {6144 if isV else 4096}")
    A(f"s_add_u32 {s(S_MU)}, {s(S_MU)}, {LU}")
    A(f"v_add_u32 {v(V_UR)}, {s(S_MU)}, {v(V_L16)}")
    if isV:
        A(f"s_mul_i32 {s(S_T)}, {s(S_WAVE)}, 1024")
        A(f"s_add_u32 {s(S_T)}, {s(S_T)}, {LRED}")
        A(f"v_add_u32 {v(V_RW)}, {s(S_T)}, {v(V_L16)}")
    A(f"v_lshrrev_b32 {v(V_FINRM)}, 1, {v(t1)}")
    A(f"s_lshl_b32 {s(S_T)}, {s(S_C)}, 1")
    A(f"v_add_u32 {v(V_FINRM)}, {s(S_T)}, {v(V_FINRM)}")
    if isV:
        A(f"s_add_u32 {s(S_T)}, {s(S_C)}, {64-16}")
        A(f"v_mov_b32 {v(V_TW)}, {s(S_T)}")
        A(f"v_cmp_lt_u32 vcc, 7, {v(t0)}")
        A("s_nop 1")
        A(f"v_cndmask_b32 {v(V_FINRM)}, {v(V_FINRM)}, {v(V_TW)}, vcc")
        A(f"v_lshrrev_b32 {v(V_TW)}, 3, {v(t0)}")
        A(f"v_lshl_add_u32 {v(V_TW)}, {v(V_TW)}, 9, {v(V_PLD)}")
    A(f"v_lshlrev_b32 {v(V_FINRM)}, 7, {v(V_FINRM)}")
    A(f"v_lshl_add_u32 {v(V_FINRM)}, {v(t2)}, 4, {v(V_FINRM)}")
    A(f"v_and_b32 {v(t2)}, 1, {v(t1)}")
    A(f"v_lshl_add_u32 {v(V_FINRM)}, {v(t2)}, 3, {v(V_FINRM)}")
    A(f"s_mov_b32 {s(S_MA)}, 0x00ff00ff")
    A(f"s_mov_b32 {s(S_MA+1)}, 0x00ff00ff")
    A(f"s_mov_b32 {s(S_MB)}, {'0xffffffff' if isV else '0x00ff00ff'}")
    A(f"s_mov_b32 {s(S_MB+1)}, {'0x00ff00ff' if isV else '0'}")
    A(f"s_lshl_b32 {s(S_T)}, {s(S_WAVE)}, 10")
    A(f"v_add_u32 {v(V_T7)}, {s(S_T)}, {v(V_L16)}")
    if not isV: A(f"v_add_u32 {v(126)}, {HI}, {v(V_T7)}")
    A(f"s_lshr_b32 {s(S_G3)}, {s(S_WAVE)}, 1")
    A(f"s_add_u32 {s(S_G3)}, {s(S_G3)}, 8")
    A(f"s_sub_u32 {s(S_G3)}, {s(S_G3)}, {s(S_WAVE)}")
    A(f"s_lshl_b32 {s(S_G3)}, {s(S_G3)}, 10")
    A(f"s_and_b32 {s(S_T2)}, {s(S_WAVE)}, 1")
    A(f"s_sub_u32 {s(S_M3)}, {s(S_T2)}, 1")
    A(f"s_sub_u32 {s(S_M3+1)}, 0, {s(S_T2)}")
    A(f"v_and_b32 {v(V_GA)}, 7, {v(V_LANE)}")
    A(f"v_lshlrev_b32 {v(V_GA)}, 5, {v(V_GA)}")
    A(f"v_lshl_add_u32 {v(V_GA)}, {v(t1)}, 8, {v(V_GA)}")
    A(f"v_bfe_u32 {v(115)}, {v(V_LANE)}, 3, 1")
    A(f"v_lshl_add_u32 {v(V_GA)}, {v(115)}, 4, {v(V_GA)}")
    A(f"s_add_u32 {s(S_T)}, {s(S_T)}, {HI}")
    A(f"v_add_u32 {v(V_GA)}, {s(S_T)}, {v(V_GA)}")
    A(f"v_add_u32 {v(V_G3W)}, {s(S_G3)}, {v(V_GA)}")
    for i in range(4): A(f"v_mov_b32 {v(V_POI+i)}, -1")
    r_, c_ = 115, 116
    A(f"v_bfe_u32 {v(r_)}, {v(V_LANE)}, 2, 2")
    A(f"v_and_b32 {v(c_)}, 1, {v(V_LANE)}")
    A(f"v_lshlrev_b32 {v(c_)}, 3, {v(c_)}")
    if not isV:
        A(f"v_add_u32 {v(c_)}, {S_LQ}, {v(c_)}")
        A(f"v_lshl_add_u32 {v(V_TRA)}, {v(t1)}, 2, {v(r_)}")
        A(f"v_lshl_add_u32 {v(V_TRA)}, {v(V_TRA)}, 4, {v(c_)}")
        A(f"v_lshrrev_b32 {v(t2)}, 1, {v(t1)}")
        A(f"v_mul_u32_u24 {v(t2)}, 48, {v(t2)}")
        A(f"v_and_b32 {v(V_TRB)}, 1, {v(t1)}")
        A(f"v_lshl_add_u32 {v(V_TRB)}, {v(V_TRB)}, 3, {v(t2)}")
        A(f"v_add_u32 {v(V_TRB)}, {v(V_TRB)}, {v(r_)}")
        A(f"v_lshl_add_u32 {v(V_TRB)}, {v(V_TRB)}, 4, {v(c_)}")
        A(f"v_and_b32 {v(t2)}, 7, {v(t0)}")
        A(f"v_lshl_add_u32 {v(t2)}, {v(t1)}, 4, {v(t2)}")
        A(f"v_lshlrev_b32 {v(t2)}, 4, {v(t2)}")
        A(f"v_lshrrev_b32 {v(V_PX)}, 3, {v(t0)}")
        A(f"v_lshl_add_u32 {v(V_SXR)}, {v(V_PX)}, 11, {v(t2)}")
        A(f"v_add_u32 {v(V_SXR)}, {S_LSX}, {v(V_SXR)}")
        A(f"v_lshl_add_u32 {v(V_PX)}, {v(V_PX)}, 3, {v(t2)}")
        A(f"v_lshlrev_b32 {v(V_PM)}, 4, {v(t0)}")
        A(f"v_lshl_add_u32 {v(V_PM)}, {v(t1)}, 3, {v(V_PM)}")
        A(f"s_sub_u32 {s(S_T)}, {s(S_WAVE)}, 1")
        A(f"s_and_b32 {s(S_T)}, {s(S_T)}, 3")
        A(f"s_lshr_b32 {s(S_T2)}, {s(S_WAVE)}, 1")
        A(f"s_mul_i32 {s(S_T2)}, {s(S_T2)}, 6144")
        A(f"s_add_u32 {s(S_T2)}, {s(S_T2)}, {S_LK}")
        A(f"v_add_u32 {v(V_KR)}, {s(S_T2)}, {v(V_L16)}")
        A(f"s_mul_i32 {s(S_MK)}, {s(S_T)}, {6144 if K2W else 4096}")
        A(f"s_mul_i32 {s(S_KS)}, {s(S_HEAD)}, 12288")
        A(f"s_add_u32 {s(S_KS)}, {s(S_KS)}, {s(S_MK)}")
        A(f"s_add_u32 {s(S_KS)}, {s(S_KS)}, {WS_K}")
        A(f"s_add_u32 {s(S_MK)}, {s(S_MK)}, {S_LK}")
        A(f"s_lshr_b32 {s(S_PST)}, {s(S_HEAD)}, 1")
        A(f"s_lshl_b32 {s(S_PST)}, {s(S_PST)}, 10")
        A(f"s_and_b32 {s(S_PSM)}, {s(S_HEAD)}, 1")
        A(f"s_lshl_b32 {s(S_PSM)}, {s(S_PSM)}, 7")
        A(f"s_add_u32 {s(S_PST)}, {s(S_PST)}, {s(S_PSM)}")
        A(f"s_lshl_b32 {s(S_PSM)}, {s(S_HEAD)}, 7")
        A(f"s_add_u32 {s(S_PSM)}, {s(S_PSM)}, 16384")
    else:
        A(f"v_lshl_add_u32 {v(t2)}, {v(t1)}, 3, {v(r_)}")
        A(f"v_and_b32 {v(c_)}, 3, {v(V_LANE)}")
        A(f"v_lshlrev_b32 {v(c_)}, 3, {v(c_)}")
        A(f"v_lshl_add_u32 {v(V_TRA)}, {v(t2)}, 5, {v(c_)}")
        A(f"v_add_u32 {v(V_TRA)}, {V_LVX}, {v(V_TRA)}")
        A(f"v_lshlrev_b32 {v(V_ZS4)}, 13, {v(t1)}")
        A(f"v_and_b32 {v(t2)}, 1, {v(t1)}")
        A(f"v_lshlrev_b32 {v(V_ZS2)}, 13, {v(t2)}")
        A(f"v_lshrrev_b32 {v(t2)}, 1, {v(t1)}")
        A(f"v_lshl_add_u32 {v(V_ZS2)}, {v(t2)}, 3, {v(V_ZS2)}")
        A(f"s_mul_i32 {s(S_T)}, {s(S_WAVE)}, {10*8192}")
        A(f"s_lshl_b32 {s(S_T2)}, {s(S_HEAD)}, 8")
        A(f"s_add_u32 {s(S_T)}, {s(S_T)}, {s(S_T2)}")
        A(f"v_lshl_add_u32 {v(t2)}, {v(t0)}, 4, {s(S_T)}")
        A(f"v_add_u32 {v(V_ZS4)}, {v(V_ZS4)}, {v(t2)}")
        A(f"v_add_u32 {v(V_ZS2)}, {v(V_ZS2)}, {v(t2)}")
        A(f"v_add_u32 {v(V_ZS2)}, {8*8192}, {v(V_ZS2)}")
    A(f"s_mov_b32 {s(S_Z)}, {MB_Z}")
    A(f"s_mov_b32 {s(S_ZN)}, {MB_Z+327680}")
    A(f"s_mov_b32 {s(S_P)}, {MB_P}")
    A(f"s_mov_b32 {s(S_PN)}, {MB_P+20480}")
    A(f"s_mov_b32 {s(S_ZP)}, {MB_Z+2*327680}")
    A(f"s_mov_b32 {s(S_PP)}, {MB_P+2*20480}")
    A(f"s_mul_i32 {s(S_T)}, {s(S_GRP)}, 10240")
    A(f"s_add_u32 {s(S_L)}, {s(S_T)}, {MB_L}")
    A(f"s_add_u32 {s(S_LN)}, {s(S_T)}, {MB_L+20480}")
    if True:
        A(f"s_lshl_b32 {s(S_T)}, {s(S_GRP)}, 14")
        A(f"s_add_u32 {s(S_RW)}, {s(S_T)}, {MB_R}")
        A(f"s_sub_u32 {s(S_RR)}, {MB_R + 16384}, {s(S_T)}")
        A(f"s_mul_i32 {s(S_T)}, {s(S_GRP)}, 14336")
        A(f"s_add_u32 {s(S_R3)}, {s(S_T)}, {32768 + 2048 - 8192 - 16384}")
        A(f"s_add_u32 {s(S_R3)}, {s(S_R3)}, {s(S_G3)}")
        if isV:
            A(f"s_sub_u32 {s(S_T)}, {32768 - 8192}, {s(S_T)}")
            A(f"v_add_u32 {v(V_FINRR)}, {s(S_T)}, {v(V_FINRM)}")
            A(f"v_cmp_lt_u32 vcc, 7, {v(t0)}")
            A("s_nop 1")
            A(f"v_cndmask_b32 {v(V_FINRR)}, {v(V_FINRM)}, {v(V_FINRR)}, vcc")
        A(f"s_mov_b32 {s(S_OLO)}, 0x00003f80"); A(f"s_mov_b32 {s(S_OHI)}, 0x3f800000"); A(f"s_mov_b32 {s(S_TGT)}, 0")
    A(f"s_lshl_b32 {s(S_T)}, {s(S_GRP)}, 2")
    A(f"s_add_u32 {s(S_T)}, {s(S_T)}, {s(S_WAVE)}")
    A(f"s_lshl_b32 {s(S_PLX)}, {s(S_T)}, 11")
    A(f"s_lshl_b32 {s(S_PLM)}, {s(S_T)}, 9")
    A(f"s_add_u32 {s(S_PLM)}, {s(S_PLM)}, 16384")
    A(f"s_lshl_b32 {s(S_ZL)}, {s(S_T)}, 10")
    A(f"s_mul_i32 {s(S_US)}, {s(S_T)}, {4*40960}")
    A(f"s_add_u32 {s(S_US)}, {s(S_US)}, {WS_U}")
    if isV:
        A(f"s_sub_u32 {s(S_T2)}, {s(S_C)}, 16")
        A(f"s_lshr_b32 {s(S_T2)}, {s(S_T2)}, 1")
        A(f"s_add_u32 {s(S_T2)}, {s(S_T2)}, 32")
        A(f"s_lshl_b32 {s(S_T3)}, {s(S_T2)}, 13")
        A(f"s_add_u32 {s(S_ZL2)}, {s(S_ZL)}, {s(S_T3)}")
        A(f"s_lshl_b32 {s(S_T3)}, {s(S_T2)}, 10")
        A(f"s_add_u32 {s(S_US2)}, {s(S_US)}, {s(S_T3)}")
    A(f"s_lshl_b32 {s(S_T3)}, {s(S_C)}, 13")
    A(f"s_add_u32 {s(S_ZL)}, {s(S_ZL)}, {s(S_T3)}")
    A(f"s_lshl_b32 {s(S_T3)}, {s(S_C)}, 10")
    A(f"s_add_u32 {s(S_US)}, {s(S_US)}, {s(S_T3)}")
    A(f"s_mov_b32 {s(S_ARR)}, {CN_Z - 256}")
    A(f"s_lshl_b32 {s(S_HP)}, {s(S_GRP)}, 8")
    A(f"s_add_u32 {s(S_HP)}, {s(S_HP)}, {MB_H}")
    A(f"s_mul_i32 {s(S_T2)}, {s(S_GRP)}, {16384-128}")
    A(f"s_sub_u32 {s(S_XW)}, {32768+4096}, {s(S_T2)}")
    A(f"s_add_u32 {s(S_XR)}, {s(S_T2)}, {32768+4096+128-16384}")
    A(f"s_lshl_b32 {s(S_FLO)}, {s(S_HEAD)}, 7")
    A(f"s_mov_b32 {s(S_KNOWN)}, 0")
    if HINTB == 7: A(f"s_mov_b32 {s(S_TD)}, 0")
    A(f"s_mov_b32 {s(S_KN)}, 1")
    A(f"v_mov_b32 {v(V_FL)}, 0")
    if not isV: A(f"v_mov_b32 {v(V_FKS)}, 0")
    A(f"s_mov_b32 {s(S_SC)}, {f32bits(192**-0.5*math.log2(math.e))}")
    A(f"s_mov_b32 {s(S_STEP)}, 0")
    A(f"s_mov_b32 {s(S_CNT)}, {SPIN_MAX + 1000 if SPIN_MAX else 0}")
    A(f"s_mov_b32 {s(S_EXP)}, {WS_Z if (VAR == 2 or PL_X != 'S') else WS_SCR}")
    if PL_X == 'S': A(f"s_mov_b32 {s(S_EXN)}, {WS_Z}")
    A(f"s_mul_i32 {s(S_KMX)}, {s(S_HEAD)}, 3072")
    A(f"s_add_u32 {s(S_KMX)}, {s(S_KMX)}, {WS_KM - 1024}")
    if not isV: A(f"s_mov_b32 {s(S_KMY)}, {WS_SCR}")
    if STAMP:
        for k in range(16): A(f"s_mov_b32 {s(S_TS+k)}, 0")

LOOKA = 0
def spin(lines_load, cond, ok):
    pass

def u_check(A, seg_off):
    sl = A.newlabel("uc_s"); ok = A.newlabel("uc_ok"); lp = A.newlabel("uc_lp"); g1 = A.newlabel("uc_g")
    A(f"s_add_u32 {s(S_T3)}, {s(S_STEP)}, {seg_off}")
    A(f"s_cmp_ge_u32 {s(S_T3)}, {s(S_KNOWN)}")
    A(f"s_cbranch_scc1 {sl}")
    A.label(ok)
    ld = f"buffer_load_dword {v(V_FL)}, {v(V_ZERO)}, {s(S_WS,4)}, {s(S_T4)} offen sc1"
    STUBS.append([sl + ":",
        f"s_add_u32 {s(S_KNOWN)}, {s(S_T3)}, {LOOKA}", f"s_min_u32 {s(S_KNOWN)}, {s(S_KNOWN)}, {NSEG-1}",
        f"s_lshl_b32 {s(S_T4)}, {s(S_KNOWN)}, 7", f"s_add_u32 {s(S_T4)}, {s(S_T4)}, {CN_U}", f"s_add_u32 {s(S_KNOWN)}, {s(S_KNOWN)}, 1",
        ld, "s_waitcnt vmcnt(0)", f"v_cmp_gt_u32 vcc, 32, {v(V_FL)}", f"s_cbranch_vccz {ok}",
        f"s_add_u32 {s(S_KNOWN)}, {s(S_T3)}, 1", f"s_min_u32 {s(S_T3)}, {s(S_T3)}, {NSEG-1}",
        f"s_lshl_b32 {s(S_T4)}, {s(S_T3)}, 7", f"s_add_u32 {s(S_T4)}, {s(S_T4)}, {CN_U}",
        lp + ":", ld, "s_waitcnt vmcnt(0)", f"v_cmp_gt_u32 vcc, 32, {v(V_FL)}", f"s_cbranch_vccz {ok}",
        f"s_sub_u32 {s(S_CNT)}, {s(S_CNT)}, 1", f"s_cbranch_scc0 {lp}", f"s_mov_b32 {s(S_CNT)}, 0", f"s_branch {ok}"])

def k_check(A):
    sl = A.newlabel("kc_s"); ok = A.newlabel("kc_ok"); lp = A.newlabel("kc_lp")
    A.label(lp)
    A(f"v_cmp_gt_u32 vcc, {s(S_KN)}, {v(V_FKS)}")
    A(f"s_cbranch_vccnz {sl}")
    A.label(ok)
    STUBS.append([sl + ":", f"s_sub_u32 {s(S_CNT)}, {s(S_CNT)}, 1", f"s_cbranch_scc1 {sl}_d", f"s_add_u32 {s(S_T3)}, {s(S_FLO)}, {FL_K}",
                  f"buffer_load_dword {v(V_FKS)}, {v(V_ZERO)}, {s(S_WS,4)}, {s(S_T3)} offen sc1", "s_waitcnt vmcnt(0)", f"s_branch {lp}",
                  sl + "_d:", f"s_mov_b32 {s(S_CNT)}, 0", f"s_branch {ok}"])

def k_dma(A, cls=12):
    if K2W:
        if cls == 12:
            A(f"s_mov_b32 m0, {s(S_MK)}")
            A(f"s_add_u32 {s(S_T)}, {s(S_KS)}, 3072")
            for j in range(3):
                A(f"buffer_load_dwordx4 {v(V_L16)}, {s(S_WS,4)}, {s(S_KS)} offen offset:{j*1024} sc1 lds")
            A(f"s_add_u32 m0, {s(S_MK)}, 3072")
            A("s_nop 0")
            for j in range(3):
                A(f"buffer_load_dwordx4 {v(V_L16)}, {s(S_WS,4)}, {s(S_T)} offen offset:{j*1024} sc1 lds")
    else:
        A(f"s_mov_b32 m0, {s(S_MK)}")
        A("s_nop 0")
        for j in range(4):
            A(f"buffer_load_dwordx4 {v(V_L16)}, {s(S_WS,4)}, {s(S_KS)} offen offset:{j*1024} sc1 lds")
    A(f"s_add_u32 {s(S_KS)}, {s(S_KS)}, {NH*12288}")
    A(f"s_add_u32 {s(S_KN)}, {s(S_KN)}, 1")
    A(f"s_min_u32 {s(S_KN)}, {s(S_KN)}, {NSEG}")

def u_dma_items(isV, lo, hi):
    L = []
    for j in range(lo, min(hi, 6 if isV else 4)):
        if j < 4:
            if j == lo: L.append(f"s_mov_b32 m0, {s(S_MU)}")
            L.append(f"s_add_u32 {s(S_T4)}, {s(S_US)}, {j*(40960-1024)}")
            L.append(f"buffer_load_dwordx4 {v(V_L16)}, {s(S_WS,4)}, {s(S_T4)} offen offset:{j*1024} sc1 lds")
        else:
            if j == lo or j == 4: L.append(f"s_add_u32 m0, {s(S_MU)}, 4096")
            L.append(f"s_add_u32 {s(S_T4)}, {s(S_US2)}, {(j-4)*(2*40960-1024)}")
            L.append(f"buffer_load_dwordx4 {v(V_UH)}, {s(S_WS,4)}, {s(S_T4)} offen offset:{(j-4)*1024} sc1 lds")
    return L

def phaseB_items(A, isV, cls, flags):
    L = u_dma_items(isV, UGV if isV else UGS, 99)
    if flags and cls == 0:
        if isV:
            an = A.newlabel("an"); ab = A.newlabel("ab")
            STUBS.append([an + ":", f"s_cmp_lt_u32 {s(S_STEP)}, 2", f"s_cbranch_scc1 {ab}", f"v_mov_b32 {v(V_TMPV)}, 32", "s_mov_b64 exec, 1",
                          f"buffer_atomic_add {v(V_TMPV)}, {v(V_ZERO)}, {s(S_WS,4)}, {s(S_ARR)} offen sc1", "s_mov_b64 exec, -1", f"s_branch {ab}"])
            L.append("\n".join([f"s_cmp_eq_u32 {s(S_C)}, 16", f"s_cbranch_scc1 {an}", ab + ":"]))
        else:
            L += [f"s_add_u32 {s(S_T)}, {s(S_FLO)}, {FL_KM}", f"s_sub_u32 {s(S_T2)}, {s(S_STEP)}, 0", f"s_max_i32 {s(S_T2)}, {s(S_T2)}, 0", f"v_mov_b32 {v(V_FL)}, {s(S_T2)}"]
            L.append("\n".join(["s_mov_b64 exec, 1", f"buffer_store_dword {v(V_FL)}, {v(V_ZERO)}, {s(S_WS,4)}, {s(S_T)} offen sc0 sc1", "s_mov_b64 exec, -1"]))
    return L

def km_export(A, E, tmp):
    E(ds("KX", f"ds_read_b128 {v(tmp,4)}, {v(126)} offset:{S_LKM-HI-1024}"))
    E(need("KX"))
    A(f"buffer_store_dwordx4 {v(tmp,4)}, {v(V_T7)}, {s(S_WS,4)}, {s(S_KMX)} offen sc0 sc1")

ZF = 48
def z_poison(A):
    A(f"s_add_u32 {s(S_T2)}, {s(S_ZP)}, {4*8192}")
    dual(A, [f"buffer_store_dwordx4 {v(V_POI,4)}, {v(V_ZS4)}, {s(S_WS,4)}, {s(S_ZP)} offen",
             f"buffer_store_dwordx4 {v(V_POI,4)}, {v(V_ZS4)}, {s(S_WS,4)}, {s(S_T2)} offen",
             f"buffer_store_dwordx2 {v(V_POI,2)}, {v(V_ZS2)}, {s(S_WS,4)}, {s(S_ZP)} offen"])
def p_poison(A, slot):
    A(f"s_add_u32 {s(S_T)}, {s(slot)}, {s(S_PST)}"); A(f"s_add_u32 {s(S_T2)}, {s(slot)}, {s(S_PSM)}")
    dual(A, [f"s_mov_b64 exec, {s(S_MA,2)}",
             f"buffer_store_dwordx4 {v(V_POI,4)}, {v(V_L16)}, {s(S_WS,4)}, {s(S_T)} offen",
             f"s_mov_b64 exec, {s(S_MB,2)}",
             f"buffer_store_dwordx2 {v(V_POI,2)}, {v(V_PM)}, {s(S_WS,4)}, {s(S_T2)} offen",
             "s_mov_b64 exec, -1"])
def z_export(A, isV, zf, woff):
    A(f"s_add_u32 {s(S_T)}, {s(S_EXP)}, {s(S_ZL)}")
    if woff: A(f"s_sub_u32 {s(S_T)}, {s(S_T)}, {s(woff)}")
    A(f"buffer_store_dwordx4 {v(zf,4)}, {v(V_L16)}, {s(S_WS,4)}, {s(S_T)} offen sc0 sc1")
    if isV:
        A(f"s_add_u32 {s(S_T)}, {s(S_EXP)}, {s(S_ZL2)}")
        if woff: A(f"s_sub_u32 {s(S_T)}, {s(S_T)}, {s(woff)}")
        A(f"s_mov_b64 exec, {s(S_MA,2)}")
        A(f"buffer_store_dwordx4 {v(zf+4,4)}, {v(V_ZH)}, {s(S_WS,4)}, {s(S_T)} offen sc0 sc1")
        A("s_mov_b64 exec, -1")
def window(A, E, isV, cls, flags):
    LZ = (V_LVX if isV else S_LK + 12288) - HI
    last = A.newlabel("wz")
    if WDEL: A(f"s_sleep {WDEL}")
    z_export(A, isV, ZF, None)
    if cls != 3:
        A(f"s_cmp_lg_u32 {s(S_WAVE)}, {3 if isV else 1}"); A(f"s_cbranch_scc1 {last}")
        for t in range(2 if isV else 1): E(ds("zs", f"ds_read_b128 {v(AF+4*t,4)}, {v(V_HI)} offset:{LZ+t*1024}"))
        E(need("zs"))
        A(f"s_lshl_b32 {s(S_T2)}, {s(S_WAVE)}, 10")
        z_export(A, isV, AF, S_T2)
        A.label(last)
    if flags:
        u_check(A, 1)
        if not isV: k_check(A)

def qk_tr(isq, ks, dst, tag):
    b = 0 if isq else 3072
    if ks < 4: vb, o0, o1 = V_TRA, 48*ks*16, (48*ks+16)*16
    else: vb, o0, o1 = V_TRB, (96*(ks-4)+32)*16, (96*(ks-4)+36)*16
    return [ds(tag, f"ds_read_b64_tr_b16 {v(dst,2)}, {v(vb)} offset:{b+o0}"),
            ds(tag, f"ds_read_b64_tr_b16 {v(dst+2,2)}, {v(vb)} offset:{b+o1}")]

def xlane(op, r, t, which):
    return [f"v_mov_b32 {v(t)}, {v(r)}", "s_nop 1", f"v_permlane{which}_swap_b32 {v(r)}, {v(t)}", f"{op} {v(r)}, {v(r)}, {v(t)}"]

def pb_tasks(items, e, d, span, step=4):
    if PBMODE == 0: return [[e, d, items]]
    if PBMODE == 1:
        STUBS.clear()
        return [[e, d, [it for it in items if isinstance(it, str) and 'buffer_' not in it]]]
    if DROP & 1: items = [it for it in items if not (isinstance(it, str) and it.endswith(" lds"))]
    if DROP & 2: items = [it for it in items if not (isinstance(it, str) and it.startswith("buffer_store") and "sc1" in it)]
    groups = []; cur = []
    for it in items:
        cur.append(it)
        if isinstance(it, str) and 'buffer_' in it: groups.append(cur); cur = []
    if cur: groups.append(cur)
    n = len(groups); out = []
    for i, g in enumerate(groups):
        st = e + i*step
        out.append([st, st+step, g])
    return out

def s_stage(A, E, cls, flags):
    S0, S1, S2, S3 = ACC, ACC+4, ACC+8, ACC+12
    accs = [S0, S1, S2, S3, S0, S1]
    ard = lambda k: ds(f"A{k}", f"ds_read_b128 {v(AF+4*k,4)}, {v(V_HI)} offset:{k*1024}")
    for k in range(3): E(ard(k))
    main = []
    for f in ORD_S:
        t, k = divmod(f, 10)
        main.append(([need(f"A{k}")] if t == 0 else []) + smf(f, accs[t], AF+4*k))
    T = refill_tasks() + [[max(k-3, 4 if (k >= 7 and PL_X == 'S') else 0), max(k-1, 2*k-5), [ard(k)]] for k in range(3, 10)]
    pb = phaseB_items(A, False, cls, flags)
    if PL_K == 'S' and cls != 0:
        pb += [f"s_xor_b32 {s(S_MK)}, {s(S_MK)}, {S_LK ^ (S_LK + 16384)}", f"s_mov_b32 m0, {s(S_MK)}", f"s_add_u32 {s(S_KN)}, {s(S_KN)}, 1"]
        pb += [f"buffer_load_dwordx4 {v(V_L16)}, {s(S_WS,4)}, {s(S_KS)} offen offset:{j*1024} sc1 lds" for j in range(4)]
        pb += [f"s_add_u32 {s(S_KS)}, {s(S_KS)}, {NH*12288}", f"s_min_u32 {s(S_KN)}, {s(S_KN)}, {NSEG}"]
    T += pb_tasks(pb, 2 + PBSTG*{0:0,12:1,3:2}[cls], 22, 56, PBSTEP if cls else PBSTEP0)
    T.append([0, 28, zero(S3)])
    if HINTB == 4 and cls == 3: T.append([GIDX-3, GIDX+1, first_text(A, 0, 16, XS, XS+1)])
    if HINTB in (3, 4) and cls == 0:
        B = Asm(); B.uid = A.uid + 500000; A.uid += 10
        hint_store(B, 0, V_TMP1 if not TRACE else 127)
        T.append([HBIDX-3, HBIDX+1, [l.strip() for l in B.lines[:4]] + ["\n".join(B.lines[4:])]])
    T += stage_side(A, False, cls)
    T += trace_task()
    T.append([21, 33, post_s(S0, 0, "qw") + post_s(S1, 256, "qw") + zero(S0) + zero(S1)])
    T.append([32, 36, post_s(S2, 512, "qw")])
    T.append([37, 38, [need("qw"), "s_barrier"]])
    T.append([42, 58, post_s(S3, 3072, "kw")])
    SA = S2
    kss = (3, 4, 5) if cls == 12 else (0, 1, 2)
    def mm(ks, q_, k_): return [need(f"X{ks}"), f"v_mfma_f32_16x16x32_bf16 {v(SA,4)}, {v(k_,4)}, {v(q_,4)}, {'0' if ks == kss[0] else v(SA,4)}"]
    krd = lambda ks, r: ds(f"X{ks}", f"ds_read_b128 {v(r,4)}, {v(V_KR)} offset:{ks*1024}")
    if cls == 0:
        for ks in range(3): T.append([38, 41+2*ks, qk_tr(True, ks, XS+4*ks, f"X{ks}")])
        for ks in range(3): T.append([44+2*ks, 46+2*ks, [krd(ks, AF+4+4*ks)]])
        for ks in (3, 4): T.append([38, 50+2*ks, qk_tr(True, ks, XS+4*ks, f"m{ks}")])
        T.append([42, 59, qk_tr(True, 5, AF, "m5")])
        for ks in range(3): T.append([51+2*ks, 52+2*ks, mm(ks, XS+4*ks, AF+4+4*ks)])
    else:
        R = [(XS, XS+4), (XS+8, XS+12), (XS+16, AF)]
        for i, ks in enumerate(kss):
            T.append([38 if i < 2 else 42, 42+3*i, qk_tr(True, ks, R[i][0], f"X{ks}") + [krd(ks, R[i][1])]])
            T.append([48+3*i, 49+3*i, mm(ks, *R[i])])
    schedule(E, main, T, maxn=4)
    E(ds("sx", f"ds_write_b128 {v(126)}, {v(SA,4)} offset:{S_LSX-HI}"))
    A(f"v_xor_b32 {v(V_KR)}, {S_LK ^ (S_LK + 16384)}, {v(V_KR)}")
    A("s_nop 2")
    pa = post_s(S0, 3072+256, "kw"); pb_ = post_s(S1, 3072+512, "kw")
    for it in pa + pb_: E(it)
    if HINTB == 5 and cls == 0: hint_store(A, 0, 72)
    if HINTB == 6 and cls == 0 and not HW3: ts_hint_store(A, E, 72)
    tr(A, 1)
    if HINTB >= 6 and cls == 3 and HW3:
        ts_hint_read(A); E.drain()
        if HW3 == 2: ts_hint_store(A, E, 72, True)
    else: E.drain()
    A("s_barrier")

def dppadd(r): return f"v_add_f32_dpp {v(r)}, {v(r)}, {v(r)} row_ror:8 row_mask:0xf bank_mask:0xf"

def s_tail(A, E):
    KF, SX, SM, t0, t1 = TMP, 44, 52, 56, 57
    mx, sm, m = 58, 59, 62
    dpp = " row_ror:8 row_mask:0xf bank_mask:0xf"
    E(ds("sx", f"ds_read_b128 {v(SX,4)}, {v(V_SXR)}"))
    E(ds("sx", f"ds_read_b128 {v(SX+4,4)}, {v(V_SXR)} offset:1024"))
    for ks in range(6):
        for it in qk_tr(False, ks, KF+4*ks, f"m{ks}"): E(it)
    if HINTB == 2: hint_store(A, 0, 60)
    X = [need("sx")] + [f"v_add_f32 {v(SX+i)}, {v(SX+i)}, {v(SX+4+i)}" for i in range(4)] + [
         f"v_max3_f32 {v(mx)}, {v(SX)}, {v(SX+1)}, {v(SX+2)}",
         f"v_max_f32 {v(mx)}, {v(mx)}, {v(SX+3)}", "s_nop 1",
         f"v_max_f32_dpp {v(mx)}, {v(mx)}, {v(mx)}" + dpp]
    X += xlane("v_max_f32", mx, t0, 16) + xlane("v_max_f32", mx, t0, 32)
    main = [[]] + [[need(f"m{ks}"), f"v_mfma_f32_16x16x32_bf16 {v(SM,4)}, {v(KF+4*ks,4)}, {v(XS+4*ks if ks < 5 else AF,4)}, {'0' if ks==0 else v(SM,4)}"] for ks in range(6)]
    for it in X[:9]: E(it)
    schedule(E, main, [[0, 99, X[9:]]])
    A(f"s_add_u32 {s(S_T)}, {s(S_P)}, {s(S_PST)}")
    A(f"s_add_u32 {s(S_T2)}, {s(S_P)}, {s(S_PSM)}")
    A("s_waitcnt vmcnt(0)" if TAILW or VAR == 2 else wait_poison(A))
    tr(A, 9)
    A("s_nop 4")
    A(f"v_max3_f32 {v(m)}, {v(SM)}, {v(SM+1)}, {v(SM+2)}")
    A(f"v_max3_f32 {v(m)}, {v(m)}, {v(SM+3)}, {v(mx)}")
    for l in xlane("v_max_f32", m, t0, 16): A(l)
    A(f"v_mul_f32 {v(m)}, {s(S_SC)}, {v(m)}")
    R = [SX, SX+1, SX+2, SX+3, SM, SM+1, SM+2, SM+3]
    for r in R: A(f"v_fma_f32 {v(r)}, {v(r)}, {s(S_SC)}, -{v(m)}")
    for r in R: A(f"v_exp_f32 {v(r)}, {v(r)}")
    A(f"v_add_f32 {v(sm)}, {v(SX)}, {v(SX+1)}")
    A(f"v_add_f32 {v(t0)}, {v(SX+2)}, {v(SX+3)}")
    A(f"v_add_f32 {v(t1)}, {v(SM)}, {v(SM+1)}")
    A(f"v_add_f32 {v(m)}, {v(SM+2)}, {v(SM+3)}")
    A(f"v_add_f32 {v(sm)}, {v(sm)}, {v(t0)}")
    A(f"v_add_f32 {v(t1)}, {v(t1)}, {v(m)}")
    A(f"v_fmac_f32 {v(sm)}, 0x3e800000, {v(t1)}")
    A("s_nop 1")
    A(f"v_add_f32_dpp {v(sm)}, {v(sm)}, {v(sm)}" + dpp)
    for l in xlane("v_add_f32", sm, t0, 16) + xlane("v_add_f32", sm, t0, 32): A(l)
    A(f"v_rcp_f32 {v(sm)}, {v(sm)}")
    A(f"s_cmp_eq_u32 {s(S_FAST)}, 0")
    for r in R[:4]: A(f"v_mul_f32 {v(r)}, {v(r)}, {v(sm)}")
    for i in range(2): A(f"v_cvt_pk_bf16_f32 {v(64+i)}, {v(SX+2*i)}, {v(SX+2*i+1)}")
    dual(A, [f"buffer_store_dwordx2 {v(64,2)}, {v(V_PX)}, {s(S_WS,4)}, {s(S_T)} offen"])
    for r in R[4:]: A(f"v_mul_f32 {v(r)}, {v(r)}, {v(sm)}")
    for i in range(2): A(f"v_cvt_pk_bf16_f32 {v(SM+i)}, {v(SM+2*i)}, {v(SM+2*i+1)}")
    dual(A, [f"s_mov_b64 exec, {s(S_MB,2)}",
             f"buffer_store_dwordx2 {v(SM,2)}, {v(V_PM)}, {s(S_WS,4)}, {s(S_T2)} offen",
             "s_mov_b64 exec, -1"])
    if HINTB == 1: hint_store(A, 0, 56)

def v_stage(A, E, cls, flags):
    S = [ACC, ACC+4, ACC+8, ACC+12, 112, 116]
    ard = lambda k: ds(f"A{k}", f"ds_read_b128 {v(AF+4*k,4)}, {v(V_HI)} offset:{k*1024}")
    for k in range(3): E(ard(k))
    main = []
    for f in ORD_V[:30]:
        t, k = divmod(f, 10)
        main.append(([need(f"A{k}")] if t == 0 else []) + smf(f, S[t], AF+4*k))
    SS = [S[3], S[4], S[5], S[0], S[1], AF+12, AF+16, AF+20, AF+24, S[2]]
    sa = lambda t: SS[t]
    seen = set()
    for t, kk in ORD_V2:
        main.append(([need(f"B{kk}")] if kk not in seen else []) + smf(30 + 3*t + kk, sa(t), AF+4*kk)); seen.add(kk)
    brd = lambda kk: [ds(f"B{kk}", f"ds_read_b64_tr_b16 {v(AF+4*kk+2*h,2)}, {v(V_TRA)} offset:{(32*kk+4*h)*32}") for h in range(2)]
    T = refill_tasks() + [[k-3, max(k-1, 2*k-5), [ard(k)]] for k in range(3, 10)]
    T += pb_tasks(phaseB_items(A, True, cls, flags), 2 + PBSTG*{0:0,12:1,3:2}[cls], 24, 58, PBSTEPV)
    T.append([0, 19, zero(S[3]) + zero(S[4]) + zero(S[5])])
    T += trace_task()
    T.append([20, 26, post_v(S[0], 0, "vw") + post_v(S[1], 256, "vw")])
    T.append([26, 29, [need("vw"), "s_barrier"] + brd(0) + brd(1)])
    T.append([26, 34, zero(S[0]) + zero(S[1])])
    T.append([32, 36, post(S[2]) + [ds("vw2", f"ds_write_b16 {v(V_PW2)}, {v(S[2])}"), ds("vw2", f"ds_write_b16_d16_hi {v(V_PW2)}, {v(S[2])} offset:4")]])
    T.append([37, 40, [need("vw2"), "s_barrier"] + brd(2)])
    T.append([27, 38, zero(AF+12)])
    T.append([27, 44, zero(AF+16) + zero(AF+20) + zero(AF+24)])
    T.append([37, 50, zero(S[2])])
    def fin(t):
        L = post(sa(t), XS+t)
        if t in (3, 7):
            q = XS + t - 3
            L += ["s_nop 0"]
            L += [f"v_permlane32_swap_b32 {v(q)}, {v(q+2)}", f"v_permlane32_swap_b32 {v(q+1)}, {v(q+3)}", "s_nop 1",
                  f"v_permlane16_swap_b32 {v(q)}, {v(q+1)}", f"v_permlane16_swap_b32 {v(q+2)}, {v(q+3)}"]
            L += [f"s_add_u32 {s(S_T)}, {s(S_Z)}, {(t//4)*4*8192}\n" + dual_text(A, [f"buffer_store_dwordx4 {v(q,4)}, {v(V_ZS4)}, {s(S_WS,4)}, {s(S_T)} offen"])]
        if t == 9:
            L += ["s_nop 1", f"v_permlane16_swap_b32 {v(XS+8)}, {v(XS+9)}"]
            L += [dual_text(A, [f"buffer_store_dwordx2 {v(XS+8,2)}, {v(V_ZS2)}, {s(S_WS,4)}, {s(S_Z)} offen"])]
        return L
    done = {t: 30 + ORD_V2.index((t, 2)) for t in range(10)}
    for t in range(7):
        T.append([done[t]+3, 70+t, fin(t)])
    schedule(E, main, T, cap=VCAP)
    f7 = fin(7)
    for it in f7[:3] + fin(8): E(it)
    for it in f7[4:]: E(it)
    A(wait_poison(A, fin=True) if (cls == 0 and VAR == 1) else "s_nop 0")
    for it in fin(9): E(it)
    tr(A, 1)

S_A1 = 10; S_B1_ = 3
def reduce_stage(A, E, isV, cls, flags):
    PF, mt = AF, 56
    UL = [76,80,84,88,92,96,60,64] if isV else [100,104,108,112]
    D = [68, 72]; DO = [40, 44]
    nt = 2 if isV else 1
    if VAR == 1 and PL_K == 'T' and not isV: side_ops(A, E, isV, cls, flags, 'T')
    A(f"s_add_u32 {s(S_T)}, {s(S_P)}, {s(S_PLX)}")
    A(f"s_add_u32 {s(S_T2)}, {s(S_P)}, {s(S_PLM)}")
    A(f"s_add_u32 {s(S_T3)}, {s(S_Z)}, {s(S_ZL)}")
    if isV: A(f"s_add_u32 {s(S_T4)}, {s(S_Z)}, {s(S_ZL2)}")
    for l in zero(PF+8) + (zero(ZF+4) if isV else []): A(l)
    if PL_K == 'B' and not isV and cls != 0: A(f"s_xor_b32 {s(S_MK)}, {s(S_MK)}, {S_LK ^ (S_LK + 16384)}")
    mp_init(A, ["-1", "-1", s(S_MA,2), "-1"] + ([s(S_MA,2)] if isV else []))
    zl = [(ZF, f"buffer_load_dwordx4 {v(ZF,4)}, {v(V_L16)}, {s(S_WS,4)}, {s(S_T3)} offen sc1")]
    if isV: zl.append((ZF+4, f"buffer_load_dwordx4 {v(ZF+4,4)}, {v(V_ZH)}, {s(S_WS,4)}, {s(S_T4)} offen sc1"))
    def u_reads():
        for j in range(4): E(ds("U", f"ds_read_b128 {v(UL[j],4)}, {v(V_UR)} offset:{j*1024}"))
        if isV:
            for j in range(4): E(ds("U", f"ds_read_b128 {v(UL[4+j],4)}, {v(V_UHR)} offset:{(j>>1)*1024+(j&1)*128}"))
    def zpoi():
        A(f"s_add_u32 {s(S_A1)}, {s(S_ZP)}, {4*8192}")
        dual(A, [f"buffer_store_dwordx4 {v(V_POI,4)}, {v(V_ZS4)}, {s(S_WS,4)}, {s(S_ZP)} offen",
                 f"buffer_store_dwordx4 {v(V_POI,4)}, {v(V_ZS4)}, {s(S_WS,4)}, {s(S_A1)} offen",
                 f"buffer_store_dwordx2 {v(V_POI,2)}, {v(V_ZS2)}, {s(S_WS,4)}, {s(S_ZP)} offen"])
    early = False
    if PREU and cls != 3:
        if isV: zpoi()
        A(f"s_waitcnt vmcnt({5 if isV else (2 if cls == 0 else 0)})")
        u_reads()
    if PL_K == 'B' and flags and cls == 3 and not isV:
        A(f"s_mov_b32 {s(S_B1_)}, {s(S_T3)}"); k_check(A); A(f"s_mov_b32 {s(S_T3)}, {s(S_B1_)}")
    tr(A, 2)
    if HINTB == 7:
        if cls == 3: ts_wait(A, E, S_TD, CB)
        if cls == 0 and not isV and DELAYBS: A(f"s_sleep {DELAYBS}")
        A("s_barrier")
    elif HINTB == 6:
        if cls == 3:
            ts_poll(A, 57, 58, 59, 10)
            if XHINT and isV and XEARLY: xstore(A)
            if PREU == 1:
                u_reads()
                if isV: zpoi()
            ts_wait(A, E, S_TD, TB, True)
        if cls == 0 and not isV and DELAYBS: A(f"s_sleep {DELAYBS}")
        A("s_barrier")
    elif HINTB == 4:
        if cls == 3:
            if isV: gate(A, 0, 16, 110, 11 if TRACE else 111, 59, 10, 3 if GIDXV < 12 else 2, DELAYB, DFAILB)
            else: gate(A, 0, 16, XS, XS+1, XS+2, 10, 0, 0, DFAILB)
        if cls == 0 and not isV and DELAYBS: A(f"s_sleep {DELAYBS}")
        A("s_barrier")
    elif HINTB:
        if cls == (0 if HINTB == 1 else 3):
            hint_poll(A, 0, 16, 57, 58, 59, 10)
            if HINTA == 4:
                A(f"s_memtime {s(FPS[5],2)}"); A("s_waitcnt lgkmcnt(0)"); E.reset()
                A(f"s_add_u32 {s(S_TD)}, {s(FPS[5])}, {CWAIT - (CVADJ if isV else 0)}")
            db = DELAYB - (DBVADJ if isV else 0)
            if db > 0: A(f"s_sleep {db}")
        if cls == 0 and not isV and DELAYBS: A(f"s_sleep {DELAYBS}")
        A("s_barrier")
    elif not isV:
        A("s_barrier")
        if DELAYBS: A(f"s_sleep {DELAYBS}")
    elif DELAYB: A(f"s_sleep {DELAYB}")
    if STAMP == 1: tick(A, 8)
    tr(A, 3)
    gl = [(PF+4*j, f"buffer_load_dwordx4 {v(PF+4*j,4)}, {v(V_L16)}, {s(S_WS,4)}, {s(S_T)} offen offset:{j*1024} sc1") for j in range(2)]
    gl.append((PF+8, f"buffer_load_dwordx4 {v(PF+8,4)}, {v(V_PLD)}, {s(S_WS,4)}, {s(S_T2)} offen sc1"))
    gl += zl
    lab = A.newlabel("GB")
    loop_top(A, lab, 11)
    mp_issue(A, gl)
    nz = 0
    if HINTB == 7 and cls == 3:
        ph_issue(A); nz += 1
    if XHINT and cls == 3 and isV and HINTB != 7 and (HINTB != 6 or not XEARLY):
        xstore(A); nz += 1
    if not PREU or (PREU == 2 and cls == 3):
        A(f"s_waitcnt vmcnt({len(gl)+nz})")
        u_reads()
        if isV and PL_P != 'W': zpoi(); nz += 3
    if PL_K == 'B' and not isV and cls != 0:
        A(f"s_mov_b32 m0, {s(S_MK)}")
        A("s_nop 0")
        for j in range(4): A(f"buffer_load_dwordx4 {v(V_L16)}, {s(S_WS,4)}, {s(S_KS)} offen offset:{j*1024} sc1 lds")
        nz += 4
    if XHINT == 2 and cls == 3:
        hint_first(A, 128, 1, 57, 58, True); A("s_mov_b64 exec, -1"); nz += 1
    def mm(d, a_, b_, first): return f"v_mfma_f32_16x16x32_bf16 {v(d,4)}, {v(a_,4)}, {v(b_,4)}, {'0' if first else v(d,4)}"
    chk = mp_check(gl, 32); n_ = len(gl)
    A(f"s_waitcnt vmcnt({nz + n_ - 2}) lgkmcnt(0)"); E.reset()
    xs = []
    for t in range(nt):
        for j in range(2): xs += [mm(DO[t], UL[4*t+2*j+1], PF+4*j, j == 0), mm(D[t], UL[4*t+2*j], PF+4*j, j == 0)]
    fill = [chk[0], chk[1], chk[n_], chk[n_+1]]
    for m_ in xs:
        A(m_)
        if fill: A(fill.pop(0))
    A(f"s_waitcnt vmcnt({nz})")
    A(mm(D[0], ZF, PF+8, False))
    rest = chk[2:n_] + chk[n_+2:]
    for l in rest[:2]: A(l)
    if isV: A(mm(D[1], ZF+4, PF+8, False))
    for l in rest[2:]: A(l)
    mp_close(A, len(gl), lab)
    main = []
    tr(A, 4)
    if PL_K == 'B' and not isV and cls != 0:
        A(f"s_add_u32 {s(S_KS)}, {s(S_KS)}, {NH*12288}"); A(f"s_add_u32 {s(S_KN)}, {s(S_KN)}, 1"); A(f"s_min_u32 {s(S_KN)}, {s(S_KN)}, {NSEG}")
    add0 = [f"v_add_f32_dpp {v(D[0]+i)}, {v(DO[0]+i)}, {v(D[0]+i)} row_ror:8 row_mask:0xf bank_mask:0xf" for i in range(4)]
    for k_, m_ in enumerate(main[5:]):
        A(m_[0])
        if k_ >= 3:
            A(add0.pop(0)); A(add0.pop(0))
    if HINTA == 2 and cls == 0: hint_store(A, 128, 57)
    if HINTA == 5 and cls == 3 and XHINT and HINTB != 7:
        A(f"s_add_u32 {s(S_A1_)}, {s(S_RR)}, {s(S_XR)}"); A("s_mov_b64 exec, 1")
        A(f"buffer_load_dword {v(58)}, {v(V_ZERO)}, {s(S_WS,4)}, {s(S_A1_)} offen sc1"); A("s_mov_b64 exec, -1")
    if HINTA in (2, 3, 4) and cls == 3 and XHINT == 1:
        hint_first(A, 128, 32 if HINTA == 2 else 1, 57, 58, True); A("s_mov_b64 exec, -1")
    A("s_nop 0")
    for l in add0: A(l)
    if isV:
        for i in range(4):
            A(f"v_add_f32_dpp {v(D[0]+i)}, {v(D[1]+i)}, {v(DO[1]+i)} row_ror:8 row_mask:0xf bank_mask:0xc")
    E(ds("r", f"ds_write_b128 {v(V_RW if isV else 126)}, {v(D[0],4)} offset:{0 if isV else S_LRED-HI}"))
    E.drain()
    A("s_barrier")
    if HINTB == 7 and cls == 3:
        ph_eval(A, 0 if isV else 4)
        if XHINT and isV: xstore(A)

def preload(A, E, z=True):
    for j in range(3):
        for it in wl_read(j): E(it)
    for k in range(3 if z else 0):
        for l in zero(ACC+4*k): A(l)

def gatherA(A, E, isV, cls, lab, flags):
    mt = 72
    vtw = V_TW if isV else V_PLD
    def advance():
        A(f"s_add_u32 {s(S_STEP)}, {s(S_STEP)}, 1")
        for c_, n_, p_ in ((S_Z,S_ZN,S_ZP),(S_P,S_PN,S_PP)):
            A(f"s_mov_b32 {s(S_T)}, {s(c_)}"); A(f"s_mov_b32 {s(c_)}, {s(n_)}"); A(f"s_mov_b32 {s(n_)}, {s(p_)}"); A(f"s_mov_b32 {s(p_)}, {s(S_T)}")
        A(f"s_mov_b32 {s(S_T)}, {s(S_L)}"); A(f"s_mov_b32 {s(S_L)}, {s(S_LN)}"); A(f"s_mov_b32 {s(S_LN)}, {s(S_T)}")
        A(f"s_add_u32 {s(S_US)}, {s(S_US)}, {40*32768}")
        if isV: A(f"s_add_u32 {s(S_US2)}, {s(S_US2)}, {40*32768}")
        A(f"s_add_u32 {s(S_EXP)}, {s(S_EXP)}, 327680")
        A(f"s_add_u32 {s(S_ARR)}, {s(S_ARR)}, 128")
        if not isV: A(f"s_add_u32 {s(S_KMX)}, {s(S_KMX)}, {NH*3072}")
        preload(A, E)
    if cls == 0:
        st = 1024
        for w in range(4): E(ds("f", f"ds_read_b128 {v(AF+4*w,4)}, {v(V_FINR)} offset:{w*st}"))
        E.drain()
        for i in range(4): A(f"v_add_f32 {v(AF+i)}, {v(AF+i)}, {v(AF+4+i)}")
        for i in range(4): A(f"v_add_f32 {v(AF+8+i)}, {v(AF+8+i)}, {v(AF+12+i)}")
        for i in range(4): A(f"v_add_f32 {v(AF+i)}, {v(AF+i)}, {v(AF+8+i)}")
        A(f"s_mov_b64 exec, {s(S_MB if isV else S_MA,2)}")
        A(f"buffer_store_dwordx4 {v(AF,4)}, {v(vtw)}, {s(S_WS,4)}, {s(S_RW)} offen sc0 sc1")
        A("s_mov_b64 exec, -1")
        tick(A, 3)
        advance()
        if DELAY0: A(f"s_sleep {DELAY0}")
        A(f"s_mov_b64 exec, {s(S_MB if isV else S_MA,2)}")
        labt = A.newlabel("GT")
        loop_top(A, labt, 13)
        A(f"buffer_load_dwordx4 {v(AF+4,4)}, {v(vtw)}, {s(S_WS,4)}, {s(S_RR)} offen sc1")
        A("s_waitcnt vmcnt(0)")
        for l in maxtree(range(AF+4, AF+8), mt): A(l)
        for i in range(4): A(f"v_add_f32 {v(AF+8+i)}, {v(AF+i)}, {v(AF+4+i)}")
        A(f"v_cmp_eq_u32 vcc, -1, {v(mt)}")
        for i in range(2): A(f"v_cvt_pk_bf16_f32 {v(AF+8+i)}, {v(AF+8+2*i)}, {v(AF+9+2*i)}")
        retry(A, labt, 13)
        dual(A, [f"buffer_store_dwordx2 {v(AF+8,2)}, {v(V_FINRM)}, {s(S_WS,4)}, {s(S_L)} offen",
                 f"buffer_store_dwordx2 {v(V_POI,2)}, {v(V_FINRM)}, {s(S_WS,4)}, {s(S_LN)} offen"])
        A("s_mov_b64 exec, -1")
        if not isV: p_poison(A, S_PN)
        A(f"s_add_u32 {s(S_RR)}, {s(S_RR)}, 40960")
        A(f"s_add_u32 {s(S_RW)}, {s(S_RW)}, 40960")
    else:
        tick(A, 3)
        window(A, E, isV, cls, flags)
        advance()
    A("s_barrier")
    tick(A, 4)
    if (DELAYLV if isV else DELAYL): A(f"s_sleep {DELAYLV if isV else DELAYL}")
    G = AF + 12
    A(f"s_add_u32 {s(S_T)}, {s(S_L)}, 4096")
    A(f"s_add_u32 {s(S_T2)}, {s(S_L)}, {s(S_G3)}")
    A(f"v_mov_b64 {v(G+8,2)}, 0"); A(f"v_mov_b64 {v(G+10,2)}, 0")
    if STAMP == 1: tick(A, 8)
    loop_top(A, lab, 12)
    A(f"buffer_load_dwordx4 {v(G,4)}, {v(V_T7)}, {s(S_WS,4)}, {s(S_L)} offen sc1")
    A(f"buffer_load_dwordx4 {v(G+4,4)}, {v(V_T7)}, {s(S_WS,4)}, {s(S_T)} offen sc1")
    A(f"s_mov_b64 exec, {s(S_M3,2)}")
    A(f"buffer_load_dwordx4 {v(G+8,4)}, {v(V_T7)}, {s(S_WS,4)}, {s(S_T2)} offen sc1")
    return lab

def gatherA2(A, E, lab):
    G = AF + 12; mt = 72
    A("s_waitcnt vmcnt(0)")
    if STAMP == 1: tick(A, 9)
    A("s_mov_b64 exec, -1")
    mtree = maxtree(range(G, G+12), mt)
    E(ds("g", f"ds_write_b128 {v(V_GA)}, {v(G,4)}"))
    for l in mtree: A(l)
    A(f"v_cmp_eq_u32 vcc, -1, {v(mt)}")
    retry(A, lab, 12)
    E(ds("g", f"ds_write_b128 {v(V_GA)}, {v(G+4,4)} offset:4096"))
    A(f"s_mov_b64 exec, {s(S_M3,2)}")
    E(ds("g", f"ds_write_b128 {v(V_G3W)}, {v(G+8,4)}"))
    A("s_mov_b64 exec, -1")
    tick(A, 5)
    E.drain()

S_OLO = 40; S_OHI = 41; S_TGT = 66
def probes(A, isV, ahead):
    A(f"v_cmp_le_u32 vcc, 32, {v(V_FL)}")
    A(f"s_add_u32 {s(S_T)}, {s(S_TGT)}, 1")
    A(f"s_max_u32 {s(S_T)}, {s(S_T)}, {s(S_KNOWN)}")
    A("s_cmp_lg_u64 vcc, 0")
    A(f"s_cselect_b32 {s(S_KNOWN)}, {s(S_T)}, {s(S_KNOWN)}")
    A(f"s_cselect_b32 {s(S_TGT)}, 2, 0")
    u_check(A, ahead)
    if not isV and PL_K != 'B': k_check(A)
    A(f"s_add_u32 {s(S_TGT)}, {s(S_KNOWN)}, {s(S_TGT)}")
    A(f"s_min_u32 {s(S_TGT)}, {s(S_TGT)}, {NSEG-1}")
    A(f"s_lshl_b32 {s(S_T)}, {s(S_TGT)}, 7")
    A(f"s_add_u32 {s(S_T)}, {s(S_T)}, {CN_U}")
    A(f"buffer_load_dword {v(V_FL)}, {v(V_ZERO)}, {s(S_WS,4)}, {s(S_T)} offen sc1")
    if not isV:
        A(f"s_add_u32 {s(S_T)}, {s(S_FLO)}, {FL_K}")
        A(f"buffer_load_dword {v(V_FKS)}, {v(V_ZERO)}, {s(S_WS,4)}, {s(S_T)} offen sc1")

def probes_text(A, isV):
    B = Asm(); B.uid = A.uid + 400000; A.uid += 10
    probes(B, isV, 1)
    return "\n".join(B.lines)
LR = 20; RR_ = 32; UP = list(range(100, 110)) + list(range(112, 120)) + [56, 57, 58, 59, 73, 74]
def ld3_list(dst, sbase, t1, t2):
    return [(dst, f"buffer_load_dwordx4 {v(dst,4)}, {v(V_T7)}, {s(S_WS,4)}, {s(sbase)} offen sc1"),
            (dst+4, f"buffer_load_dwordx4 {v(dst+4,4)}, {v(V_T7)}, {s(S_WS,4)}, {s(t1)} offen sc1"),
            (dst+8, f"buffer_load_dwordx4 {v(dst+8,4)}, {v(V_T7)}, {s(S_WS,4)}, {s(t2)} offen sc1")]
S_A1 = 10; S_A2 = 11; S_B1 = 3; S_B2 = 101
LIST_L = lambda: ld3_list(LR, S_L, S_A1, S_A2)
LIST_R = lambda: ld3_list(RR_, S_RR, S_B1, S_B2)

GSIDE = []
def advance1(A, E, isV, pre=True):
    A(f"s_add_u32 {s(S_STEP)}, {s(S_STEP)}, 1")
    for c_, n_, p_ in ((S_Z,S_ZN,S_ZP),(S_P,S_PN,S_PP)):
        A(f"s_mov_b32 {s(S_T)}, {s(c_)}"); A(f"s_mov_b32 {s(c_)}, {s(n_)}"); A(f"s_mov_b32 {s(n_)}, {s(p_)}"); A(f"s_mov_b32 {s(p_)}, {s(S_T)}")
    A(f"s_mov_b32 {s(S_T)}, {s(S_L)}"); A(f"s_mov_b32 {s(S_L)}, {s(S_LN)}"); A(f"s_mov_b32 {s(S_LN)}, {s(S_T)}")
    A(f"s_add_u32 {s(S_US)}, {s(S_US)}, {40*32768}")
    if isV: A(f"s_add_u32 {s(S_US2)}, {s(S_US2)}, {40*32768}")
    A(f"s_add_u32 {s(S_ARR)}, {s(S_ARR)}, 128")
    if pre: preload(A, E, False)

def side_ops(A, E, isV, cls, flags, where):
    n = 0
    adv = where == 'G'
    if PL_X == where:
        z_export(A, isV, ZF, None); n += 2 if isV else 1
    if isV and PL_P == where:
        zs = S_ZN if adv else S_ZP
        A(f"s_add_u32 {s(S_T2)}, {s(zs)}, {4*8192}")
        dual(A, [f"buffer_store_dwordx4 {v(V_POI,4)}, {v(V_ZS4)}, {s(S_WS,4)}, {s(zs)} offen",
                 f"buffer_store_dwordx4 {v(V_POI,4)}, {v(V_ZS4)}, {s(S_WS,4)}, {s(S_T2)} offen",
                 f"buffer_store_dwordx2 {v(V_POI,2)}, {v(V_ZS2)}, {s(S_WS,4)}, {s(zs)} offen"])
        n += 3
    if cls == 0 and adv and PL_X != 'S':
        A(f"s_mov_b64 exec, {s(S_MB if isV else S_MA,2)}")
        dual(A, [f"buffer_store_dwordx2 {v(V_POI,2)}, {v(V_FINRM)}, {s(S_WS,4)}, {s(S_LN)} offen"])
        A("s_mov_b64 exec, -1")
        n += 1
        if not isV: p_poison(A, S_PN); n += 2
    if cls != 0 and not isV and PL_K == where:
        A(f"s_xor_b32 {s(S_MK)}, {s(S_MK)}, {S_LK ^ (S_LK + 16384)}")
        k_dma(A, cls); n += (6 if cls == 12 else 0) if K2W else 4
    if cls != 0 and not isV and PL_M == where:
        km_export(A, E, 44); n += 1
        A(f"s_add_u32 {s(S_KMX)}, {s(S_KMX)}, {NH*3072}")
    if flags and cls == PROBEW and PL_M == where:
        probes(A, isV, {'T': 2, 'W': 1, 'G': 1}[where]); n += 1 if isV else 2
    return n

def g1_bottom(A, E, isV, cls, flags):
    if cls == 0:
        st = 1024
        for w in range(4): E(ds(f"f{w}", f"ds_read_b128 {v(AF+4*w,4)}, {v(V_FINR)} offset:{w*st}"))
        for w in range(1, 4):
            E(need(f"f{w}"))
            for i in range(4): A(f"v_add_f32 {v(AF+i)}, {v(AF+i)}, {v(AF+4*w+i)}")
        for i in range(2): A(f"v_cvt_pk_bf16_f32 {v(AF+24+i)}, {v(AF+2*i)}, {v(AF+1+2*i)}")
        if TWIN:
            msk = s(S_MB if isV else S_MA, 2)
            A(f"s_mov_b64 exec, {msk}")
            A(f"buffer_store_dwordx2 {v(AF+24,2)}, {v(V_FINRR if isV else V_FINRM)}, {s(S_WS,4)}, {s(S_RW)} offen sc0 sc1")
            A("s_mov_b64 exec, -1")
            tr(A, 5)
            preload(A, E, True)
            if TWD: A(f"s_sleep {TWD}")
            A(f"s_mov_b64 exec, {msk}")
            lt = A.newlabel("GT")
            loop_top(A, lt, 13)
            A(f"buffer_load_dwordx2 {v(AF+4,2)}, {v(V_FINRT if isV else V_FINRM)}, {s(S_WS,4)}, {s(S_RR)} offen sc1")
            A("s_waitcnt vmcnt(0)")
            for j in range(2):
                A(f"v_dot2_f32_bf16 {v(AF+8+2*j)}, {v(AF+4+j)}, {s(S_OLO)}, {v(AF+2*j)}")
                A(f"v_dot2_f32_bf16 {v(AF+9+2*j)}, {v(AF+4+j)}, {s(S_OHI)}, {v(AF+1+2*j)}")
            A(f"v_cmp_eq_u32 vcc, -1, {v(AF+4)}")
            A("s_nop 0")
            for j in range(2): A(f"v_cvt_pk_bf16_f32 {v(AF+24+j)}, {v(AF+8+2*j)}, {v(AF+9+2*j)}")
            retry(A, lt, 13)
            dual(A, [f"buffer_store_dwordx2 {v(AF+24,2)}, {v(V_FINRM)}, {s(S_WS,4)}, {s(S_LN)} offen"])
        elif WIDE:
            A(f"v_mov_b64 {v(AF+26,2)}, {v(AF+24,2)}")
            A("s_nop 1")
            A(f"v_permlane16_swap_b32 {v(AF+24)}, {v(AF+26)}")
            A(f"v_permlane16_swap_b32 {v(AF+25)}, {v(AF+27)}")
            A(f"s_mov_b32 exec_lo, {'0x0000ffff' if isV else '0x000000ff'}")
            A("s_mov_b32 exec_hi, 0x000000ff")
            A(f"buffer_store_dwordx4 {v(AF+24,4)}, {v(V_FINRR if isV else V_FINRM)}, {s(S_WS,4)}, {s(S_RW)} offen sc0 sc1")
            dual(A, [f"buffer_store_dwordx4 {v(AF+24,4)}, {v(V_FINRM)}, {s(S_WS,4)}, {s(S_LN)} offen"])
        else:
            A(f"s_mov_b64 exec, {s(S_MB if isV else S_MA,2)}")
            A(f"buffer_store_dwordx2 {v(AF+24,2)}, {v(V_FINRR if isV else V_FINRM)}, {s(S_WS,4)}, {s(S_RW)} offen sc0 sc1")
            dual(A, [f"buffer_store_dwordx2 {v(AF+24,2)}, {v(V_FINRM)}, {s(S_WS,4)}, {s(S_LN)} offen"])
        A("s_mov_b64 exec, -1")
        if HINTA == 1: hint_store(A, 128, 56)
        if not HINTA: A("s_barrier")
    nw_ = 0
    if (cls != 0 and (not isV or cls == PROBEW)) or (isV and PL_P == 'W'):
        if WDEL and cls != 0: A(f"s_sleep {WDEL}")
        if HINTB == 7 and cls == 3 and XHINT:
            A(f"s_add_u32 {s(S_A1_)}, {s(S_RR)}, {s(S_XR)}"); A("s_mov_b64 exec, 1")
            A(f"buffer_load_dword {v(58)}, {v(V_ZERO)}, {s(S_WS,4)}, {s(S_A1_)} offen sc1"); A("s_mov_b64 exec, -1")
        nw_ = side_ops(A, E, isV, cls, flags, 'W')
    tick(A, 3)
    if not (TWIN and cls == 0): tr(A, 5)
    if HINTA and HINTA != 5 and cls == 3 and (HINTA < 3 or XHINT == 1):
        preload(A, E, False)
        if HINTA >= 3: gate(A, 128, 1, 57, 58, 59, 9, nw_, 0, DELAYH, cross=True)
        else:
            hint_poll(A, 128, 32, 57, 58, 59, 9, cross=XHINT, first=not XHINT)
            if DELAYH: A(f"s_sleep {DELAYH}")
    advance1(A, E, isV, not (HINTA and HINTA != 5 and cls == 3 and (HINTA < 3 or XHINT == 1)) and not TWIN)
    if TWIN and cls != 0: preload(A, E, True)
    for r in (LR+8, LR+10, RR_+8, RR_+10): A(f"v_mov_b64 {v(r,2)}, 0")
    A(f"s_add_u32 {s(S_A1)}, {s(S_L)}, 4096"); A(f"s_add_u32 {s(S_A2)}, {s(S_L)}, {s(S_G3)}")
    mp_init(A, ["-1", "-1", s(S_M3,2)]); mp_init(A, ["-1", "-1", s(S_M3,2)], 3)
    A(f"s_add_u32 {s(S_B1)}, {s(S_RR)}, 4096"); A(f"s_add_u32 {s(S_B2)}, {s(S_RR)}, {s(S_R3)}")
    if cls == 0 and HINTA == 2 and DELAY0: A(f"s_sleep {DELAY0}")
    if cls == 3 and HINTA == 5:
        if XHINT:
            A(f"s_waitcnt vmcnt({nw_})")
            A(f"v_readfirstlane_b32 {s(S_T2)}, {v(58)}")
            if XBLOCK:
                xl = A.newlabel("XL"); xo = A.newlabel("XLo")
                A(f"s_cmp_lt_i32 {s(S_T2)}, {s(S_HN)}")
                A(f"s_cbranch_scc1 {xl}")
                A.label(xo)
                STUBS.append([xl + ":", f"s_add_u32 {s(S_T)}, {s(S_RR)}, {s(S_XR)}", xl + "_l:"] + ([f"s_add_u32 {s(S_TS+9)}, {s(S_TS+9)}, 1"] if STAMP else []) +
                             [f"buffer_load_dword {v(58)}, {v(V_ZERO)}, {s(S_WS,4)}, {s(S_T)} offen sc1",
                              f"s_sub_u32 {s(S_CNT)}, {s(S_CNT)}, 1", f"s_cbranch_scc1 {xl}_d", "s_waitcnt vmcnt(0)",
                              f"v_readfirstlane_b32 {s(S_T2)}, {v(58)}", "s_nop 0", f"s_cmp_lt_i32 {s(S_T2)}, {s(S_HN)}", f"s_cbranch_scc1 {xl}_l", f"s_branch {xo}",
                              xl + "_d:", f"s_mov_b32 {s(S_CNT)}, 0", "s_waitcnt vmcnt(0)", f"s_branch {xo}"])
            else:
                A(f"s_add_u32 {s(S_T)}, {s(S_TD)}, {XLATE}")
                A(f"s_cmp_lt_i32 {s(S_T2)}, {s(S_HN)}")
                A(f"s_cselect_b32 {s(S_T2)}, {s(S_T)}, {s(S_T2)}")
                if STAMP: A(f"s_addc_u32 {s(S_TS+9)}, {s(S_TS+9)}, 0")
            A(f"s_max_i32 {s(S_TD)}, {s(S_TD)}, {s(S_T2)}")
        ts_wait(A, E, S_TD, TA)
        if HINTB == 7: A(f"s_add_u32 {s(S_TD)}, {s(S_TD)}, {TA}")
    if cls == 3 and HINTA == 4:
        lp = A.newlabel("TW"); dn = A.newlabel("TWd")
        if XHINT == 2:
            A(f"s_waitcnt vmcnt({nw_})")
            A(f"v_readfirstlane_b32 {s(S_T)}, {v(58)}")
            A(f"s_cmp_lt_i32 {s(S_T)}, {s(S_HN)}")
            A(f"s_cselect_b32 {s(S_T2)}, {XDELTA}, 0")
            A(f"s_add_u32 {s(S_TD)}, {s(S_TD)}, {s(S_T2)}")
            if STAMP: A(f"s_cmp_lt_i32 {s(S_T)}, {s(S_HN)}"); A(f"s_addc_u32 {s(S_TS+9)}, {s(S_TS+9)}, 0")
        A(f"s_memtime {s(76 if not (TRACE or STAMP) else 92,2)}"); A("s_waitcnt lgkmcnt(0)"); E.reset()
        A(f"s_sub_u32 {s(S_T)}, {s(S_TD)}, {s(76 if not (TRACE or STAMP) else 92)}")
        A(f"s_cmp_gt_i32 {s(S_T)}, 4000"); A(f"s_cselect_b32 {s(S_T)}, 0, {s(S_T)}")
        A.label(lp)
        A(f"s_sub_u32 {s(S_T)}, {s(S_T)}, {TWSTEP}")
        A(f"s_cmp_gt_i32 {s(S_T)}, 0")
        A(f"s_cbranch_scc1 {lp}")
    if cls == 0 and HINTA >= 3 and (DELAY0V if isV else DELAY0): A(f"s_sleep {DELAY0V if isV else DELAY0}")
    if cls != 0 or isV: tr(A, 9)
    if cls != 0 or HINTA: A("s_barrier")
    tick(A, 4)
    d = (DELAYLV if isV else DELAYL) - (2 if cls == 0 and not HINTA else 0)
    if d: A(f"s_sleep {d}")
    if STAMP == 1: tick(A, 8)
    tr(A, 6)

def nside(isV, cls, flags):
    B = Asm(); n0 = len(STUBS)
    n = side_ops(B, Emit(B), isV, cls, flags, 'G')
    del STUBS[n0:]
    return n

def g1_top(A, E, isV, cls, flags):
    mt = 72
    if TWIN:
        lab = A.newlabel("GA")
        loop_top(A, lab, 12)
        mp_issue(A, LIST_L())
        nx = side_ops(A, E, isV, cls, flags, 'G')
        for f in range(3):
            A(f"s_waitcnt vmcnt({2-f+nx})")
            if f == 0: tr(A, 7)
            if f == 2: tr(A, 8); A(f"s_mov_b64 exec, {s(S_M3,2)}")
            E(ds("g", f"ds_write_b128 {v(V_GA if f < 2 else V_G3W)}, {v(LR+4*f,4)} offset:{4096 if f == 1 else 0}"))
        A("s_mov_b64 exec, -1")
        for l in mp_check(LIST_L(), 72): A(l)
        mp_close(A, 3, lab)
        A(f"s_add_u32 {s(S_EXP)}, {s(S_EXP)}, 327680")
        A(f"s_cmp_eq_u32 {s(S_STEP)}, {RPP}")
        A(f"s_cselect_b32 {s(S_T)}, {s(55 if isV else 64)}, {RSTEP}")
        A(f"s_add_u32 {s(S_RR)}, {s(S_RR)}, {s(S_T)}")
        A(f"s_add_u32 {s(S_RW)}, {s(S_RW)}, {s(S_T)}")
        tr(A, 0)
        E.drain()
        return
    unp = []
    for j in range(12):
        unp += [f"v_lshlrev_b32 {v(UP[2*j])}, 16, {v(LR+j)}", f"v_and_b32 {v(UP[2*j+1])}, 0xffff0000, {v(LR+j)}"]
    TM = [60, 61, 62, 63, 64, 65, 66, 67]; OUT = 68
    lab = A.newlabel("GA")
    loop_top(A, lab, 12)
    if LRGAP:
        mp_issue(A, LIST_L())
        A(f"s_sleep {LRGAP}")
        mp_issue(A, LIST_R(), 3)
    else: mp_issue(A, LIST_L() + LIST_R())
    ng = UGV if isV else UGS
    if not UGLATE:
        for l in u_dma_items(isV, 0, ng): A(l)
    nx = side_ops(A, E, isV, cls, flags, 'G')
    if UGLATE:
        for l in u_dma_items(isV, 0, ng): A(l)
    nx += ng
    A(f"s_waitcnt vmcnt({3+nx})")
    tr(A, 7)
    for l in mp_check(LIST_L(), 72) + unp: A(l)
    for f in range(3):
        A(f"s_waitcnt vmcnt({2-f+nx})")
        if f == 2: tr(A, 8)
        A(f"v_max_u32 {v(72)}, {v(RR_+4*f)}, {v(RR_+4*f+2)}")
        for j in range(4):
            A(f"v_dot2_f32_bf16 {v(TM[2*j])}, {v(RR_+4*f+j)}, {s(S_OLO)}, {v(UP[8*f+2*j])}")
            A(f"v_dot2_f32_bf16 {v(TM[2*j+1])}, {v(RR_+4*f+j)}, {s(S_OHI)}, {v(UP[8*f+2*j+1])}")
        A(f"v_cmp_eq_u32 {s(FPS[3+f],2)}, -1, {v(72)}")
        o = OUT if f != 1 else 44
        for j in range(4):
            A(f"v_cvt_pk_bf16_f32 {v(o+j)}, {v(TM[2*j])}, {v(TM[2*j+1])}")
        if f == 2: A(f"s_mov_b64 exec, {s(S_M3,2)}")
        E(ds("g", f"ds_write_b128 {v(V_GA if f < 2 else V_G3W)}, {v(o,4)} offset:{4096 if f == 1 else 0}"))
    A("s_mov_b64 exec, -1")
    if STAMP == 3:
        A(f"s_or_b64 vcc, {s(FPS[0],2)}, {s(FPS[1],2)}"); A(f"s_or_b64 vcc, vcc, {s(FPS[2],2)}"); A(f"s_addc_u32 {s(S_TS+8)}, {s(S_TS+8)}, 0")
        A(f"s_or_b64 vcc, {s(FPS[3],2)}, {s(FPS[4],2)}"); A(f"s_or_b64 vcc, vcc, {s(FPS[5],2)}"); A(f"s_addc_u32 {s(S_TS+13)}, {s(S_TS+13)}, 0")
    mp_close(A, 6, lab)
    for k in range(3):
        for l in zero(ACC+4*k): A(l)
    if PL_X == 'G': A(f"s_add_u32 {s(S_EXP)}, {s(S_EXP)}, 327680")
    A(f"s_cmp_eq_u32 {s(S_STEP)}, {RPP}")
    A(f"s_cselect_b32 {s(S_T)}, {s(55 if isV else 64)}, {RSTEP}")
    A(f"s_add_u32 {s(S_RR)}, {s(S_RR)}, {s(S_T)}")
    A(f"s_add_u32 {s(S_RW)}, {s(S_RW)}, {s(S_T)}")
    tick(A, 5)
    tr(A, 0)
    E.drain()

def stage_side(A, isV, cls):
    if VAR != 1 or PL_X != 'S': return []
    L = [f"s_add_u32 {s(S_T)}, {s(S_EXP)}, {s(S_ZL)}",
         f"buffer_store_dwordx4 {v(ZF,4)}, {v(V_L16)}, {s(S_WS,4)}, {s(S_T)} offen sc0 sc1"]
    if isV:
        L += [f"s_add_u32 {s(S_T)}, {s(S_EXP)}, {s(S_ZL2)}",
              "\n".join([f"s_mov_b64 exec, {s(S_MA,2)}", f"buffer_store_dwordx4 {v(ZF+4,4)}, {v(V_ZH)}, {s(S_WS,4)}, {s(S_T)} offen sc0 sc1", "s_mov_b64 exec, -1"])]
    L += [f"s_mov_b32 {s(S_EXP)}, {s(S_EXN)}", f"s_add_u32 {s(S_EXN)}, {s(S_EXN)}, 327680"]
    T = [[0, 4, L]]
    if cls == 0:
        B = Asm(); B.uid = A.uid + 300000; A.uid += 10
        B(f"s_mov_b64 exec, {s(S_MB if isV else S_MA,2)}")
        dual(B, [f"buffer_store_dwordx2 {v(V_POI,2)}, {v(V_FINRM)}, {s(S_WS,4)}, {s(S_LN)} offen"])
        B("s_mov_b64 exec, -1")
        T.append([8, 12, ["\n".join(B.lines)]])
        if not isV:
            B = Asm(); B.uid = A.uid + 310000; A.uid += 10
            p_poison(B, S_PN)
            T.append([10, 14, ["\n".join(B.lines)]])
    return T

def chain_loop(A, isV, cls, flags):
    E = Emit(A)
    top = A.newlabel("CH_top"); fin = A.newlabel("CH_fin"); ent = A.newlabel("CH_ent"); galab = A.newlabel("GAx")
    preload(A, E); E.drain()
    if TRACE:
        global V_TRC, V_TRA4
        V_TRC, V_TRA4 = (13, 110) if isV else (125, 110)
        A(f"s_lshl_b32 s95, {s(S_GRP)}, 5"); A(f"s_add_u32 s95, s95, {s(S_C)}"); A("s_lshl_b32 s95, s95, 2"); A(f"s_add_u32 s95, s95, {s(S_WAVE)}")
        A("s_lshl_b32 s95, s95, 14"); A(f"s_add_u32 s95, s95, {WS_SCR + 4*1048576}")
        A("s_memrealtime s[88:89]"); A("s_memtime s[70:71]"); A("s_waitcnt lgkmcnt(0)")
    if STAMP:
        A(f"s_memtime {s(88,2)}"); A(f"s_memrealtime {s(92,2)}"); A("s_waitcnt lgkmcnt(0)"); A(f"s_mov_b32 {s(86)}, {s(88)}"); A(f"s_mov_b32 {s(87)}, {s(92)}")
    A(f"s_branch {ent}")
    A.label(top)
    if VAR == 2: gatherA2(A, E, galab)
    else: g1_top(A, E, isV, cls, flags)
    A.label(ent)
    A("s_barrier")
    tick(A, 6)
    if STAMP == 3 and cls == 3:
        A(f"s_memrealtime {s(92,2)}"); A(f"s_lshl_b32 s94, {s(S_STEP)}, 2"); A(f"s_lshl_b32 s95, {s(S_HEAD)}, 8"); A("s_add_u32 s94, s94, s95")
        A(f"s_add_u32 s94, s94, {WS_SCR + 3*1048576 + 65536}"); A("s_waitcnt lgkmcnt(0)"); A(f"v_mov_b32 {v(XS+19)}, s92")
        A(f"buffer_store_dword {v(XS+19)}, {v(V_ZERO)}, {s(S_WS,4)}, s94 offen")
    if STAMP in (1, 3):
        rs = A.newlabel("rs"); rb = A.newlabel("rb")
        A(f"s_cmp_eq_u32 {s(S_STEP)}, 8"); A(f"s_cbranch_scc1 {rs}"); A.label(rb)
        B = Asm(); B.uid = A.uid + 50000
        if not TS3: tstamp(B, 3)
        STUBS.append([rs + ":"] + B.lines + [f"s_memtime {s(88,2)}", f"s_memrealtime {s(92,2)}", "s_waitcnt lgkmcnt(0)", f"s_mov_b32 {s(86)}, {s(88)}", f"s_mov_b32 {s(87)}, {s(92)}"] +
                     [f"s_mov_b32 {s(S_TS+k)}, 0" for k in range(16)] + [f"s_branch {rb}"])
    if STAMP == 2:
        A(f"s_memrealtime {s(88,2)}"); A("s_waitcnt lgkmcnt(0)")
        A(f"s_cmp_eq_u32 {s(S_STEP)}, {TSTEP}"); A(f"s_cselect_b32 {s(S_TS+7)}, {s(88)}, {s(S_TS+7)}")
    if isV: v_stage(A, E, cls, flags)
    else: s_stage(A, E, cls, flags)
    tick(A, 0)
    A(f"s_cmp_eq_u32 {s(S_STEP)}, {NSTEP-1}")
    A(f"s_cbranch_scc1 {fin}")
    if not isV and cls == 3 and HINTB >= 6 and HW3 == 1: ts_hint_store(A, E, 72, True)
    if not isV and cls == 0: s_tail(A, E)
    tick(A, 1)
    reduce_stage(A, E, isV, cls, flags)
    tick(A, 2)
    if VAR == 2: gatherA(A, E, isV, cls, galab, flags)
    else: g1_bottom(A, E, isV, cls, flags)
    A(f"s_branch {top}")
    flush_stubs(A)
    A.label(fin)
    E.reset()
    if STAMP == 3:
        A(f"s_memtime {s(88,2)}"); A(f"s_memrealtime {s(92,2)}"); A("s_waitcnt lgkmcnt(0)")
        A(f"s_sub_u32 {s(S_TS)}, {s(88)}, {s(86)}"); A(f"s_sub_u32 {s(S_TS+1)}, {s(92)}, {s(87)}")
    if isV:
        A(f"s_add_u32 {s(S_T2)}, {s(S_EXP)}, {4*8192}")
        A(f"buffer_store_dwordx4 {v(XS,4)}, {v(V_ZS4)}, {s(S_WS,4)}, {s(S_EXP)} offen sc0 sc1")
        A(f"buffer_store_dwordx4 {v(XS+4,4)}, {v(V_ZS4)}, {s(S_WS,4)}, {s(S_T2)} offen sc0 sc1")
        A(f"buffer_store_dwordx2 {v(XS+8,2)}, {v(V_ZS2)}, {s(S_WS,4)}, {s(S_EXP)} offen sc0 sc1")
    elif cls != 0:
        km_export(A, E, XS)
    A("s_waitcnt vmcnt(0)")
    A("s_barrier")
    if flags and cls == 0:
        A(f"v_mov_b32 v56, 1"); A(f"v_mov_b32 v57, {NSEG}")
        A(f"s_add_u32 {s(S_T)}, {s(S_FLO)}, {FL_KM}")
        A("s_mov_b64 exec, 1")
        if not isV: A(f"buffer_store_dword v57, {v(V_ZERO)}, {s(S_WS,4)}, {s(S_T)} offen sc0 sc1")
        A(f"buffer_atomic_add v56, {v(V_ZERO)}, {s(S_WS,4)}, {s(S_ARR)} offen offset:128 sc1")
        A(f"buffer_atomic_add v56, {v(V_ZERO)}, {s(S_WS,4)}, {s(S_ARR)} offen offset:256 sc1")
        A("s_mov_b64 exec, -1")
    if STAMP:
        A(f"s_lshl_b32 {s(S_T)}, {s(S_GRP)}, 5")
        A(f"s_add_u32 {s(S_T)}, {s(S_T)}, {s(S_C)}")
        A(f"s_lshl_b32 {s(S_T)}, {s(S_T)}, 2")
        A(f"s_add_u32 {s(S_T)}, {s(S_T)}, {s(S_WAVE)}")
        A(f"s_lshl_b32 {s(S_T)}, {s(S_T)}, 6")
        A(f"s_add_u32 {s(S_T)}, {s(S_T)}, {WS_SCR + 1048576}")
        for k in range(16):
            A(f"v_mov_b32 v21, {s(S_TS+k) if k != 14 else s(S_FAST)}")
            A(f"buffer_store_dword v21, {v(V_ZERO)}, {s(S_WS,4)}, {s(S_T)} offen offset:{4*k}")
        A("s_waitcnt vmcnt(0)")

def role_chain(A, isV, end_label, flags=False):
    global CUR_ORD
    CUR_ORD = ORD_V if isV else ORD_S
    A.c("================ role chain %s ================" % ("V" if isV else "S"))
    A(f"s_load_dwordx2 {s(S_W1,2)}, s[0:1], {KA['Wv' if isV else 'Wq']}")
    A(f"s_load_dwordx2 {s(S_W2,2)}, s[0:1], {KA['Wo' if isV else 'Wk']}")
    A(f"s_load_dwordx2 {s(S_X,2)}, s[0:1], {KA['mem0']}")
    A(f"s_and_b32 {s(S_HEAD)}, {s(S_C)}, 15")
    A(f"s_lshl_b32 {s(S_T)}, {s(S_GRP)}, 4")
    A(f"s_add_u32 {s(S_HEAD)}, {s(S_HEAD)}, {s(S_T)}")
    A(f"s_getreg_b32 {s(S_FAST)}, hwreg(HW_REG_XCC_ID, 0, 4)")
    A(f"s_lshl_b32 {s(S_T)}, {s(S_GRP)}, 5")
    A(f"s_add_u32 {s(S_T)}, {s(S_T)}, {s(S_C)}")
    A(f"s_lshl_b32 {s(S_T)}, {s(S_T)}, 2")
    A(f"s_add_u32 {s(S_T2)}, {s(S_T)}, {MB_X}")
    if not flags: publish(A, S_FAST, S_T2)
    A("s_waitcnt lgkmcnt(0)")
    srd_finish(A, S_W1, W_BYTES); srd_finish(A, S_W2, W_BYTES); srd_finish(A, S_X, 10240)
    A(f"s_mul_i32 s66, {s(S_HEAD)}, 384")
    A("s_waitcnt vmcnt(0)")
    def hook(c1, c2):
        def f(c):
            if not flags: return
            if c == c1: init_load(A, 124, 125)
            if c == c2:
                init_wait(A, 124, 125)
                publish(A, S_FAST, S_T2, vt=126)
        return f
    if not isV:
        load_w_rows384(A, [S_W1, S_W2], 66, lambda c, kk, t, half: wdest(((c//10)*3+t)*10 + c%10, 2*kk+half), rowmap="sparse", vt=116, after_read=hook(8, 14))
    else:
        load_w_rows384(A, [S_W1], 66, lambda c, kk, t, half: wdest(t*10 + c, 2*kk+half), rowmap="sparse", vt=116, after_read=hook(8, -1))
        A(f"s_mul_i32 s66, {s(S_HEAD)}, 245760")
        load_wo(A, S_W2, 66, lambda c, t, half: wdest(30 + 3*t + c//2, 2*(c&1)+half), sparse=True, vt=116, after_read=hook(-1, 1))
    A(f"s_mul_i32 {s(S_T)}, {s(S_WAVE)}, 24576")
    A(f"v_lshl_add_u32 {v(V_WL)}, {v(V_LANE)}, 4, {s(S_T)}")
    for j in range(12):
        A(f"ds_write_b128 {v(V_WL)}, {v(AF+8*j,4)} offset:{j*2048}")
        A(f"ds_write_b128 {v(V_WL)}, {v(AF+8*j+4,4)} offset:{j*2048+1024}")
    A("s_waitcnt lgkmcnt(0)")
    tstamp(A, 2)
    if flags and NUMA:
        A("v_mov_b32 v118, 0"); A(f"global_load_dword v119, v118, {s(S_DBG,2)} offset:4 sc1")
    setup_common(A, isV)
    A(f"v_and_b32 v20, 31, {v(V_LANE)}")
    A(f"v_lshlrev_b32 v20, 2, v20")
    A(f"s_lshl_b32 {s(S_T)}, {s(S_GRP)}, 7")
    A(f"s_add_u32 {s(S_T)}, {s(S_T)}, {MB_X}")
    lab = A.newlabel("XH")
    loop_top(A, lab)
    A(f"buffer_load_dword v21, v20, {s(S_WS,4)}, {s(S_T)} offen sc1")
    A("s_waitcnt vmcnt(0)")
    A("v_cmp_eq_u32 vcc, -1, v21")
    retry(A, lab)
    jx = A.newlabel("XJ"); A(f"s_branch {jx}"); flush_stubs(A); A.label(jx)
    A(f"v_cmp_ne_u32 vcc, {s(S_FAST)}, v21")
    A("s_cmp_eq_u64 vcc, 0")
    A(f"s_cselect_b32 {s(S_FAST)}, 1, 0")
    if flags and NUMA:
        A(f"s_mov_b32 {s(S_T)}, {MB_X}")
        lab = A.newlabel("XN")
        loop_top(A, lab)
        A(f"buffer_load_dword v21, {v(V_ZERO)}, {s(S_WS,4)}, {s(S_T)} offen sc1")
        A("s_waitcnt vmcnt(0)")
        A("v_cmp_eq_u32 vcc, -1, v21")
        retry(A, lab)
        jx = A.newlabel("XJ"); A(f"s_branch {jx}"); flush_stubs(A); A.label(jx)
        A(f"v_readfirstlane_b32 {s(S_T)}, v21"); A(f"v_readfirstlane_b32 {s(S_T2)}, v119")
        A(f"s_bfe_u32 {s(S_T)}, {s(S_T)}, 0x10002"); A(f"s_mul_i32 {s(S_T)}, {s(S_T)}, 3"); A(f"s_xor_b32 {s(S_T2)}, {s(S_T2)}, {s(S_T)}")
        if NUMA == 2: A(f"s_xor_b32 {s(S_T2)}, {s(S_T2)}, 3")
        A(f"s_and_b32 {s(S_T)}, {s(S_T2)}, 1"); A(f"s_lshl_b32 {s(S_T)}, {s(S_T)}, 13")
        A(f"s_bfe_u32 {s(S_T2)}, {s(S_T2)}, 0x10001"); A(f"s_lshl_b32 {s(S_T2)}, {s(S_T2)}, 13")
        A(f"s_add_u32 {s(S_RR)}, {s(S_RR)}, {s(S_T)}"); A(f"s_add_u32 {s(S_RW)}, {s(S_RW)}, {s(S_T)}")
        A(f"s_sub_u32 {s(S_T2)}, {s(S_T2)}, {s(S_T)}")
    else: A(f"s_mov_b32 {s(S_T2)}, 0")
    A(f"s_add_u32 {s(55 if isV else 64)}, {s(S_T2)}, {(2<<20) - (RPP-1)*RSTEP}")
    if TS3 == 1: tstamp(A, 3)
    A(f"v_bfe_u32 v20, {v(V_LANE)}, 1, 3")
    A(f"v_mul_u32_u24 v20, 1280, v20")
    A(f"v_lshrrev_b32 v21, 4, {v(V_LANE)}")
    A(f"v_lshl_add_u32 v20, v21, 5, v20")
    A(f"v_and_b32 v21, 1, {v(V_LANE)}")
    A(f"v_lshl_add_u32 v20, v21, 4, v20")
    A(f"s_lshl_b32 {s(S_T)}, {s(S_WAVE)}, 7")
    A(f"s_lshl_b32 {s(S_T2)}, {s(S_WAVE)}, 10")
    for j in range(3):
        sk = A.newlabel("m0s")
        if j == 2:
            A(f"s_cmp_ge_u32 {s(S_WAVE)}, 2"); A(f"s_cbranch_scc1 {sk}")
        A(f"s_add_u32 m0, {s(S_T2)}, {L_MEM + j*4096 - j*512}")
        A("s_nop 0")
        A(f"buffer_load_dwordx4 v20, {s(S_X,4)}, {s(S_T)} offen offset:{j*512} lds")
        if j == 2: A.label(sk)
    if not isV:
        sk = A.newlabel("k0s")
        A(f"s_cmp_eq_u32 {s(S_WAVE)}, 0"); A(f"s_cbranch_scc1 {sk}")
        if K2W:
            A(f"s_cmp_eq_u32 {s(S_WAVE)}, 3"); A(f"s_cselect_b32 {s(S_KN)}, 3, {s(S_KN)}"); A(f"s_cbranch_scc1 {sk}")
        if flags: k_check(A)
        k_dma(A)
        if flags and PL_K != 'B': k_check(A)
        if VAR == 1 and PL_K not in 'SB':
            A(f"s_xor_b32 {s(S_MK)}, {s(S_MK)}, {S_LK ^ (S_LK + 16384)}")
            k_dma(A)
            if flags: k_check(A)
        A.label(sk)
    if TS3 == 2: A("s_barrier"); tstamp(A, 3)
    if TLBW:
        A(f"v_lshlrev_b32 v28, 21, {v(V_LANE)}")
        A(f"s_mov_b32 {s(S_T)}, {TLBO}")
        A(f"buffer_load_dword v29, v28, {s(S_WS,4)}, {s(S_T)} offen")
        A(f"s_mov_b32 {s(S_T)}, {(128<<20) + TLBO}")
        A("s_mov_b64 exec, 0xffffffff")
        A(f"buffer_load_dword v29, v28, {s(S_WS,4)}, {s(S_T)} offen")
        A("s_mov_b64 exec, -1")
    for zs, ps in ((S_Z, S_P), (S_ZN, S_PN), (S_ZP, S_PP)):
        A(f"s_add_u32 {s(S_T)}, {s(zs)}, {s(S_ZL)}")
        A(f"buffer_load_dwordx4 v[24:27], {v(V_L16)}, {s(S_WS,4)}, {s(S_T)} offen sc1")
        if isV:
            A(f"s_add_u32 {s(S_T)}, {s(zs)}, {s(S_ZL2)}")
            A(f"buffer_load_dwordx4 v[24:27], {v(V_ZH)}, {s(S_WS,4)}, {s(S_T)} offen sc1")
        A(f"s_add_u32 {s(S_T)}, {s(ps)}, {s(S_PLX)}")
        A(f"buffer_load_dwordx4 v[24:27], {v(V_L16)}, {s(S_WS,4)}, {s(S_T)} offen sc1")
        A(f"buffer_load_dwordx4 v[24:27], {v(V_L16)}, {s(S_WS,4)}, {s(S_T)} offen offset:1024 sc1")
        A(f"s_add_u32 {s(S_T)}, {s(ps)}, {s(S_PLM)}")
        A(f"buffer_load_dwordx4 v[24:27], {v(V_PLD)}, {s(S_WS,4)}, {s(S_T)} offen sc1")
    for ls in (S_L, S_LN):
        for o in (0, 4096, 6144):
            A(f"s_add_u32 {s(S_T)}, {s(ls)}, {o}")
            A(f"buffer_load_dwordx4 v[24:27], {v(V_T7)}, {s(S_WS,4)}, {s(S_T)} offen sc1")
    if TS3 == 3: A("s_waitcnt vmcnt(0)"); tstamp(A, 3)
    if flags: u_check(A, 0)
    for l in u_dma_items(isV, 0, UGV if isV else UGS): A(l)
    if TS3 == 4: tstamp(A, 3)
    if flags and PL_M == 'W':
        A(f"s_mov_b32 {s(S_TGT)}, 1"); A(f"s_mov_b32 {s(S_T)}, {CN_U + 128}")
        A(f"buffer_load_dword {v(V_FL)}, {v(V_ZERO)}, {s(S_WS,4)}, {s(S_T)} offen sc1")
    if flags and PL_M != 'W': u_check(A, 1)
    A("s_waitcnt vmcnt(0)")
    jx = A.newlabel("XJ"); A(f"s_branch {jx}"); flush_stubs(A); A.label(jx)
    A("s_barrier")
    classes = [0, 12, 3]
    labs = {c: A.newlabel("CLS") for c in classes}
    A(f"s_cmp_eq_u32 {s(S_WAVE)}, 0")
    A(f"s_cbranch_scc1 {labs[0]}")
    A(f"s_cmp_eq_u32 {s(S_WAVE)}, 3")
    A(f"s_cbranch_scc1 {labs[3]}")
    for c in [12, 3, 0]:
        A.label(labs[c])
        chain_loop(A, isV, c, flags)
        A(f"s_branch {end_label}")
```

```python
from common import *
from sched import *
from role_kv import load_w_rows384
from role_u import load_wo
import math, struct
STAMP = False
DELAY0 = 3
PBMODE = 0
DELAYL = 0
XBLOCK = 1
TLBW = 0
TLBO = 0
UGS = 0
UGV = 0
UGLATE = 1
CB = 150
TWIN = 0
TWD = 2
HW3 = 1
LRGAP = 0
XEARLY = 0
PREU = 2
NUMA = 1
TS3 = 0
TB = 44
TA = 135
XLATE = 30
TICKC = 363
XDELTA = 130
CVADJ = 150
DBVADJ = 2
CWAIT = 2100
TWSTEP = 28
S_TD = 98
PBSTEP0 = 10
PROBEW = 3
GIDX = 57
GIDXV = 3
DFAILB = 18
WIDE = 1
POLLW = 3
DELAY0V = 2
HBIDX = 44
XHINT = 1
DELAYH = 0
TAILW = 0
KMW = 0
RFIRST = 0
ZPRE2 = 1
HINTB = 0
HINTA = 0
HGAP = 1
PL_X = 'G'; PL_M = 'W'; K2W = 1; PL_P = 'T'; PL_K = 'T'
PBSTEPV = 4
PBSTG = 0
VAR = 1
SPEC = 1
WDEL = 9
DROP = 0
DELAYLV = 0
ZPRE = 1
DELAYZV = 2
DELAYZS = 2
PBSTEP = 4
VCAP = 2
DELAYBS = 0
TSTEP = 30
ORDER = 1
DELAYB = 0
NSTEP = 64

def f32bits(x): return struct.unpack("<I", struct.pack("<f", x))[0]

S_STEP=22; S_GRP=23; S_C=24; S_FAST=25; S_T=26; S_T2=27; S_CNT=28; S_DEAD=29
S_Z=30; S_ZN=31; S_P=32; S_PN=33; S_L=34; S_LN=35; S_RR=36; S_RW=37; S_US=38; S_US2=39
S_KS=44; S_EXP=45; S_ZP=46; S_PP=47; S_SC=48; S_KNOWN=49; S_KMX=67; S_ARR=57; S_KN=42
S_MA=50; S_MB=52
S_MU=54; S_MK=55; S_FLO=56; S_T3=58; S_T4=43; S_PST=59; S_PSM=60; S_PLX=61; S_PLM=62; S_ZL=63; S_ZL2=64; S_M3=68; S_G3=65
S_OLO = 40; S_OHI = 41; S_TGT = 66; S_EXN = 29; S_R3 = 29;  S_KMY = 39
S_TS=70
V_ZERO=0; V_IDX=2; V_L16=3; V_HI=4; V_WL=5; V_PW=6; V_T7=7; V_TRA=8; V_TRB=18; V_PLD=10; V_PM=11
V_FINR=12; V_TW=13; V_FINRM=14; V_UR=15; V_RW=16; V_KR=17; V_UH=17; V_UHR=18; V_GA=19
AF=20; ACC=60; TMP=76; XS=100; V_POI=120; V_ZH=124; V_FK=111; V_ZS4=125; V_ZS2=126; V_FL=127
V_G3W=9; V_FINRR=110; V_FINRT=111; V_PW2=111; V_SXR=13; V_PX=16; V_FKS=124; V_TMP1=125; V_TMPV=11
L_MEM=98304; HI=L_MEM
S_LK=114688; S_LU=143360; S_LQ=108544; S_LKM=111616; S_LRED=126976; S_LSX=159744
V_LU=108544; V_LVX=133120; V_LRED=136192

ORD_S = [t*10+k for k in range(10) for t in range(2)] + list(range(20,40)) + [t*10+k for k in range(10) for t in (4,5)]
ORD_V2 = [(t,k) for t in range(6) for k in (0,1)] + [(0,2),(1,2),(2,2),(3,2),(6,0),(6,1),(4,2),(7,0),(7,1),(5,2),(8,0),(8,1),(6,2),(9,0),(9,1),(7,2),(8,2),(9,2)]
ORD_V = [t*10+k for k in range(10) for t in (0,1)] + list(range(20,30)) + [30+3*t+k for t,k in ORD_V2]
CUR_ORD = ORD_S
def wfrag(f):
    p = CUR_ORD.index(f)
    if p % 5 == 4: return ("lds", p//5)
    r = p - p//5
    return ("reg", 256 + 8*r if r < 32 else 128 + 8*(r-32))
def wdest(f, q):
    kind, x = wfrag(f)
    return reg(x + 2*q, 2) if kind == "reg" else v(AF + 8*x + 2*q, 2)

STUBS = []
def dual_text(A, lines):
    sl = A.newlabel("ds_s"); en = A.newlabel("ds_e")
    STUBS.append([sl + ":"] + [l + (" sc0 sc1" if l.startswith("buffer_store") else "") for l in lines] + [f"s_branch {en}"])
    return "\n".join([f"s_cmp_eq_u32 {s(S_FAST)}, 0", f"s_cbranch_scc1 {sl}"] + lines + [en + ":"])
def dual(A, lines): A(dual_text(A, lines))
def flush_stubs(A):
    for st in STUBS:
        for l in st: A(l)
    STUBS.clear()

def tick(A, k):
    if not STAMP or STAMP == 3: return
    if STAMP == 2:
        A(f"s_memrealtime {s(88,2)}")
        A("s_waitcnt lgkmcnt(0)")
        A(f"s_cmp_eq_u32 {s(S_STEP)}, {TSTEP + (1 if k >= 4 else 0)}")
        A(f"s_cselect_b32 {s(S_TS+k)}, {s(88)}, {s(S_TS+k)}")
        return
    A(f"s_memtime {s(88,2)}")
    A("s_waitcnt lgkmcnt(0)")
    A(f"s_sub_u32 {s(87)}, {s(88)}, {s(86)}")
    A(f"s_add_u32 {s(S_TS+k)}, {s(S_TS+k)}, {s(87)}")
    A(f"s_mov_b32 {s(86)}, {s(88)}")

TRACE = 0
def tr(A, k):
    if TRACE == 2: A(f"s_memrealtime {s(70+2*k,2)}")
    elif TRACE: A(f"s_memtime {s(70+2*k,2)}")
def trace_task():
    if not TRACE: return []
    L = [f"v_writelane_b32 {v(V_TRC)}, {s(70+2*k)}, {k}" for k in range(10)]
    L += [f"s_lshl_b32 s94, {s(S_STEP)}, 8", "s_add_u32 s94, s94, s95"]
    L.append("\n".join(["s_mov_b64 exec, 0x3ff", f"buffer_store_dword {v(V_TRC)}, {v(V_L16)}, {s(S_WS,4)}, s94 offen", "s_mov_b64 exec, -1"]))
    return [[1, 18, L]]
V_TRC = 125; V_TRA4 = 110
S_HP = 90; S_HN = 91; V_HA = 118
def hint_store(A, off, vt):
    A(f"s_add_u32 {s(S_HN)}, {s(S_STEP)}, 1")
    A(f"s_lshl_b32 {s(S_T)}, {s(S_C)}, 2")
    A(f"s_add_u32 {s(S_T)}, {s(S_T)}, {s(S_HP)}")
    A(f"v_mov_b32 {v(vt)}, {s(S_HN)}")
    dual(A, ["s_mov_b64 exec, 1", f"buffer_store_dword {v(vt)}, {v(V_ZERO)}, {s(S_WS,4)}, {s(S_T)} offen offset:{off}", "s_mov_b64 exec, -1"])
S_XW = 100; S_XR = 99
def hint_first(A, off, nw, va, a_, cross=False):
    A(f"s_add_u32 {s(S_HN)}, {s(S_STEP)}, 1")
    A(f"v_and_b32 {v(va)}, {nw-1}, {v(V_LANE)}")
    A(f"v_lshlrev_b32 {v(va)}, 2, {v(va)}")
    if cross and nw == 1: A(f"v_mov_b32 {v(va)}, {s(S_XR)}")
    elif cross: A(f"v_writelane_b32 {v(va)}, {s(S_XR)}, 32"); nw = 33
    A(f"s_mov_b64 exec, {hex((1<<nw)-1)}" if nw <= 32 else "s_mov_b32 exec_hi, 1")
    A(f"buffer_load_dword {v(a_)}, {v(va)}, {s(S_WS,4)}, {s(S_HP)} offen offset:{off} sc1")
def hint_poll(A, off, nw, va, a_, b_, ctr, cross=False, first=True):
    lp = A.newlabel("HP"); dn = A.newlabel("HPd")
    ld = lambda r: f"buffer_load_dword {v(r)}, {v(va)}, {s(S_WS,4)}, {s(S_HP)} offen offset:{off} sc1"
    if first:
        hint_first(A, off, nw, va, a_, cross)
        if HGAP: A(f"s_sleep {HGAP}")
    else:
        A(f"s_mov_b64 exec, {hex((1<<nw)-1)}" if (not cross or nw == 1) else "s_mov_b32 exec_hi, 1")
    A(ld(b_))
    A.label(lp)
    A("s_waitcnt vmcnt(1)")
    A(f"v_cmp_gt_i32 vcc, {s(S_HN)}, {v(a_)}")
    A(f"s_cbranch_vccz {dn}")
    A(ld(a_))
    A("s_waitcnt vmcnt(1)")
    A(f"v_cmp_gt_i32 vcc, {s(S_HN)}, {v(b_)}")
    A(f"s_cbranch_vccz {dn}")
    A(ld(b_))
    if STAMP: A(f"s_add_u32 {s(S_TS+ctr)}, {s(S_TS+ctr)}, 1")
    A(f"s_sub_u32 {s(S_CNT)}, {s(S_CNT)}, 1")
    A(f"s_cbranch_scc0 {lp}")
    A(f"s_mov_b32 {s(S_CNT)}, 0")
    A.label(dn)
    A("s_mov_b64 exec, -1")
def gate(A, off, nw, va, a_, b_, ctr, younger, d_pass, d_fail, cross=False):
    fl = A.newlabel("GTf"); bk = A.newlabel("GTb")
    A(f"s_waitcnt vmcnt({younger})")
    A(f"s_mov_b64 exec, {hex((1<<nw)-1)}")
    A(f"v_cmp_gt_i32 vcc, {s(S_HN)}, {v(a_)}")
    A("s_mov_b64 exec, -1")
    A(f"s_cbranch_vccnz {fl}")
    if d_pass: A(f"s_sleep {d_pass}")
    A.label(bk)
    B = Asm(); B.uid = A.uid + 600000; A.uid += 10
    B.label(fl)
    hint_poll(B, off, nw, va, a_, b_, ctr, cross=cross)
    if d_fail: B(f"s_sleep {d_fail}")
    B(f"s_branch {bk}")
    STUBS.append(B.lines)
def first_text(A, off, nw, va, a_):
    B = Asm(); hint_first(B, off, nw, va, a_); B("s_mov_b64 exec, -1")
    L = [l.strip() for l in B.lines]
    return L[:3] + ["\n".join(L[3:])]
def RTMP(): return 76 if not (TRACE or STAMP) else 92
def ts_hint_read(A):
    r = RTMP()
    A(f"s_memrealtime {s(r,2)}")
    A(f"s_add_u32 {s(S_HN)}, {s(S_STEP)}, 1")
    A(f"s_lshl_b32 {s(S_HN)}, {s(S_HN)}, 24")
    A(f"s_lshl_b32 {s(S_T)}, {s(S_C)}, 2")
    A(f"s_add_u32 {s(S_T)}, {s(S_T)}, {s(S_HP)}")
def ts_hint_store(A, E, vt, pre=False):
    r = RTMP()
    if not pre:
        ts_hint_read(A)
        E.drain()
    A(f"s_and_b32 {s(r)}, {s(r)}, 0xffffff")
    A(f"s_or_b32 {s(r)}, {s(r)}, {s(S_HN)}")
    A(f"v_mov_b32 {v(vt)}, {s(r)}")
    dual(A, ["s_mov_b64 exec, 1", f"buffer_store_dword {v(vt)}, {v(V_ZERO)}, {s(S_WS,4)}, {s(S_T)} offen", "s_mov_b64 exec, -1"])
def ts_wait(A, E, s_t, ticks, pre=False):
    r = RTMP(); lp = A.newlabel("TW")
    if not pre: A(f"s_memrealtime {s(r,2)}")
    A("s_waitcnt lgkmcnt(0)"); E.reset()
    A(f"s_add_u32 {s(r+1)}, {s(s_t)}, {ticks}")
    A(f"s_sub_u32 {s(r+1)}, {s(r+1)}, {s(r)}")
    A(f"s_and_b32 {s(r+1)}, {s(r+1)}, 0xffffff")
    A(f"s_cmp_gt_u32 {s(r+1)}, 120"); A(f"s_cselect_b32 {s(r+1)}, 0, {s(r+1)}")
    A(f"s_mul_i32 {s(r+1)}, {s(r+1)}, {TICKC}")
    A.label(lp)
    A(f"s_sub_u32 {s(r+1)}, {s(r+1)}, {44*16}")
    A(f"s_cmp_gt_i32 {s(r+1)}, 0")
    A(f"s_cbranch_scc1 {lp}")
S_A1_ = 11
def xstore(A):
    if HINTB < 6: A(f"s_add_u32 {s(S_HN)}, {s(S_STEP)}, 1")
    A(f"v_lshrrev_b32 {v(59)}, 2, {v(V_L16)}")
    A(f"s_cmp_eq_u32 {s(S_C)}, 16")
    A(f"v_mov_b32 {v(57)}, {s(S_HN if HINTB < 6 else S_TD)}")
    A("s_cselect_b32 exec_lo, -1, 0"); A("s_mov_b32 exec_hi, 0")
    A(f"s_add_u32 {s(S_A1_)}, {s(S_RW)}, {s(S_XW)}")
    A(f"buffer_store_dword {v(57)}, {v(59)}, {s(S_WS,4)}, {s(S_A1_)} offen sc0 sc1")
    A("s_mov_b64 exec, -1")
def ph_issue(A):
    A(f"s_add_u32 {s(S_HN)}, {s(S_STEP)}, 1")
    A(f"s_lshl_b32 {s(S_HN)}, {s(S_HN)}, 24")
    A(f"v_and_b32 {v(57)}, 15, {v(V_LANE)}")
    A(f"v_lshlrev_b32 {v(57)}, 2, {v(57)}")
    A(f"buffer_load_dword {v(58)}, {v(57)}, {s(S_WS,4)}, {s(S_HP)} offen sc1")
def ph_eval(A, younger):
    lp = A.newlabel("PH"); ok = A.newlabel("PHo")
    A(f"s_waitcnt vmcnt({younger})")
    A(f"v_cmp_gt_i32 vcc, {s(S_HN)}, {v(58)}")
    A(f"s_cbranch_vccnz {lp}")
    A.label(ok)
    STUBS.append([lp + ":", f"buffer_load_dword {v(58)}, {v(57)}, {s(S_WS,4)}, {s(S_HP)} offen sc1",
                  f"s_sub_u32 {s(S_CNT)}, {s(S_CNT)}, 1", f"s_cbranch_scc1 {lp}_d", "s_waitcnt vmcnt(0)",
                  f"v_cmp_gt_i32 vcc, {s(S_HN)}, {v(58)}", f"s_cbranch_vccnz {lp}", f"s_branch {ok}",
                  lp + "_d:", f"s_mov_b32 {s(S_CNT)}, 0", "s_waitcnt vmcnt(0)", f"s_branch {ok}"])
    for sh in (1, 2, 4, 8):
        A("s_nop 1")
        A(f"v_max_i32_dpp {v(58)}, {v(58)}, {v(58)} row_ror:{sh} row_mask:0xf bank_mask:0xf")
    A("s_nop 0")
    A(f"v_readfirstlane_b32 {s(S_TD)}, {v(58)}")
def ts_poll(A, va, a_, b_, ctr):
    lp = A.newlabel("HP"); dn = A.newlabel("HPd"); d2 = A.newlabel("HPe")
    ld = lambda r: f"buffer_load_dword {v(r)}, {v(va)}, {s(S_WS,4)}, {s(S_HP)} offen sc1"
    A(f"s_add_u32 {s(S_HN)}, {s(S_STEP)}, 1")
    A(f"s_lshl_b32 {s(S_HN)}, {s(S_HN)}, 24")
    A(f"v_and_b32 {v(va)}, 15, {v(V_LANE)}")
    A(f"v_lshlrev_b32 {v(va)}, 2, {v(va)}")
    A("s_mov_b64 exec, 0xffff")
    A.label(lp)
    A(ld(a_))
    if STAMP: A(f"s_add_u32 {s(S_TS+ctr)}, {s(S_TS+ctr)}, 1")
    A(f"s_sub_u32 {s(S_CNT)}, {s(S_CNT)}, 1")
    A(f"s_cbranch_scc1 {d2}")
    A("s_waitcnt vmcnt(0)")
    A(f"v_cmp_gt_i32 vcc, {s(S_HN)}, {v(a_)}")
    A(f"s_cbranch_vccnz {lp}")
    A.label(dn)
    STUBS.append([d2 + ":", f"s_mov_b32 {s(S_CNT)}, 0", "s_waitcnt vmcnt(0)", f"s_branch {dn}"])
    A(f"s_memrealtime {s(RTMP(),2)}")
    for sh in (1, 2, 4, 8):
        A("s_nop 1")
        A(f"v_max_i32_dpp {v(a_)}, {v(a_)}, {v(a_)} row_ror:{sh} row_mask:0xf bank_mask:0xf")
    A("s_nop 0")
    A(f"v_readfirstlane_b32 {s(S_TD)}, {v(a_)}")
    A("s_mov_b64 exec, -1")
def wait_poison(A, extra=0, fin=False):
    key = f"{v(V_POI,2)}, {v(V_FINRM)}" if fin else f"{v(V_POI,2)}, "
    idx = max(i for i, l in enumerate(A.lines) if "buffer_store" in l and (key in l))
    n = sum(1 for l in A.lines[idx+1:] if l.strip().startswith("buffer_"))
    return f"s_waitcnt vmcnt({max(n - extra, 0)})"
def loop_top(A, lab, ctr=15):
    A.label(lab)
    if STAMP: A(f"s_add_u32 {s(S_TS+ctr)}, {s(S_TS+ctr)}, 1")
    A(f"s_sub_u32 {s(S_CNT)}, {s(S_CNT)}, 1")
    A(f"s_cbranch_scc1 {lab}_dead")
def retry(A, lab, ctr=15):
    A(f"s_cbranch_vccnz {lab}")
    A.label(lab + "_ok")
    STUBS.append([lab + "_dead:", f"s_mov_b32 {s(S_CNT)}, 0", "s_mov_b64 exec, -1" if ctr in (11, 12, 15) else "s_nop 0", f"s_branch {lab}_ok"])

def mp_init(A, masks, base=0):
    for i, m in enumerate(masks): A(f"s_mov_b64 {s(FPS[base+i],2)}, {m}")
def mp_issue(A, loads, base=0):
    for i, (r, ld) in enumerate(loads):
        A(f"s_mov_b64 exec, {s(FPS[base+i],2)}"); A(ld)
    A("s_mov_b64 exec, -1")
def mp_check(loads, mt, base=0):
    L = []
    for i, (r, _) in enumerate(loads):
        L += [f"v_max_u32 {v(mt+i)}, {v(r)}, {v(r+2)}"]
    L += [f"v_cmp_eq_u32 {s(FPS[base+i],2)}, -1, {v(mt+i)}" for i in range(len(loads))]
    return L
def mp_close(A, n, lab, base=0):
    A(f"s_or_b64 vcc, {s(FPS[base],2)}, {s(FPS[base+1],2)}")
    for i in range(2, n): A(f"s_or_b64 vcc, vcc, {s(FPS[base+i],2)}")
    A(f"s_cbranch_scc1 {lab}")
    A.label(lab + "_ok")
    STUBS.append([lab + "_dead:", f"s_mov_b32 {s(S_CNT)}, 0", f"s_branch {lab}_ok"])
FPS = [12, 14, 16, 18, 8, 96]

def maxtree(regs_, t):
    L = []; r = list(regs_)
    L.append(f"v_max3_u32 {v(t)}, {v(r[0])}, {v(r[1])}, {v(r[2])}"); r = r[3:]
    while len(r) >= 2:
        L.append(f"v_max3_u32 {v(t)}, {v(t)}, {v(r[0])}, {v(r[1])}"); r = r[2:]
    if r: L.append(f"v_max_u32 {v(t)}, {v(t)}, {v(r[0])}")
    return L

def post(sa, out=None):
    o = sa if out is None else out
    return [f"v_add_f32 {v(sa)}, {v(sa)}, {v(sa+1)}", f"v_add_f32 {v(sa+2)}, {v(sa+2)}, {v(sa+3)}",
            f"v_cvt_pk_bf16_f32 {v(o)}, {v(sa)}, {v(sa+2)}"]
def post_s(sa, off, tag):
    return post(sa) + [ds(tag, f"ds_write_b32 {v(V_PW)}, {v(sa)} offset:{off}")]
def post_v(sa, off, tag):
    return post(sa) + [ds(tag, f"ds_write_b16 {v(V_PW)}, {v(sa)} offset:{off}"), ds(tag, f"ds_write_b16_d16_hi {v(V_PW)}, {v(sa)} offset:{off+4}")]
def zero(sa): return [f"v_mov_b64 {v(sa,2)}, 0", f"v_mov_b64 {v(sa+2,2)}, 0"]
def wl_read(j):
    r = TMP + 8*(j % 3)
    return [ds(f"W{j}", f"ds_read_b128 {v(r,4)}, {v(V_WL)} offset:{j*2048}"),
            ds(f"W{j}", f"ds_read_b128 {v(r+4,4)}, {v(V_WL)} offset:{j*2048+1024}")]
def smf(f, acc, afrag):
    kind, x = wfrag(f)
    it = []
    if kind == "lds":
        it.append(need(f"W{x}")); b = v(TMP + 8*(x % 3), 8)
    else: b = reg(x, 8)
    it.append(f"v_smfmac_f32_16x16x64_bf16 {v(acc,4)}, {v(afrag,4)}, {b}, {v(V_IDX)}")
    return it
def refill_tasks():
    return [[5*j+4, 5*(j+3)+4-5, wl_read(j+3)] for j in range(9)]

def setup_common(A, isV):
    LU = V_LU if isV else S_LU; LRED = V_LRED if isV else S_LRED
    t0, t1, t2 = 112, 113, 114
    A(f"v_mov_b32 {v(V_ZERO)}, 0")
    A(f"v_and_b32 {v(t0)}, 15, {v(V_LANE)}")
    A(f"v_lshrrev_b32 {v(t1)}, 4, {v(V_LANE)}")
    A(f"v_mov_b32 {v(V_IDX)}, 0x4444")
    A(f"v_mov_b32 {v(t2)}, 0xeeee")
    A(f"v_and_b32 {v(V_L16)}, 1, {v(V_LANE)}")
    A(f"v_cmp_eq_u32 vcc, 1, {v(V_L16)}")
    A("s_nop 1")
    A(f"v_cndmask_b32 {v(V_IDX)}, {v(V_IDX)}, {v(t2)}, vcc")
    A(f"v_lshlrev_b32 {v(V_L16)}, 4, {v(V_LANE)}")
    A(f"v_add_u32 {v(V_HI)}, {HI}, {v(V_L16)}")
    A(f"s_mul_i32 {s(S_T)}, {s(S_WAVE)}, 24576")
    A(f"v_add_u32 {v(V_WL)}, {s(S_T)}, {v(V_L16)}")
    if isV:
        A(f"v_and_b32 {v(t2)}, 7, {v(t0)}")
        A(f"v_lshlrev_b32 {v(t2)}, 5, {v(t2)}")
        A(f"v_lshl_add_u32 {v(t2)}, {v(t1)}, 3, {v(t2)}")
        A(f"v_lshrrev_b32 {v(V_PW)}, 3, {v(t0)}")
        A(f"v_lshl_add_u32 {v(t2)}, {v(V_PW)}, 1, {v(t2)}")
    else:
        A(f"v_lshlrev_b32 {v(t2)}, 2, {v(t1)}")
        A(f"v_lshl_add_u32 {v(t2)}, {v(t0)}, 4, {v(t2)}")
    A(f"s_mul_i32 {s(S_T)}, {s(S_WAVE)}, {512 if isV else 768}")
    A(f"s_add_u32 {s(S_T)}, {s(S_T)}, {V_LVX if isV else S_LQ}")
    A(f"v_add_u32 {v(V_PW)}, {s(S_T)}, {v(t2)}")
    if isV:
        A(f"s_lshl_b32 {s(S_T)}, {s(S_WAVE)}, 8")
        A(f"s_add_u32 {s(S_T)}, {s(S_T)}, {V_LVX + 2048}")
        A(f"v_add_u32 {v(V_PW2)}, {s(S_T)}, {v(t2)}")
    A(f"v_and_b32 {v(t2)}, 7, {v(t0)}")
    A(f"v_lshl_add_u32 {v(V_PLD)}, {v(t1)}, 3, {v(t2)}")
    A(f"v_lshlrev_b32 {v(V_PLD)}, 4, {v(V_PLD)}")
    A(f"v_lshl_add_u32 {v(V_FINR)}, {v(t1)}, 4, {v(t2)}")
    A(f"v_lshlrev_b32 {v(V_FINR)}, 4, {v(V_FINR)}")
    if isV:
        A(f"s_and_b32 {s(S_T)}, {s(S_C)}, 1")
        A(f"s_lshl_b32 {s(S_T)}, {s(S_T)}, 7")
        A(f"v_add_u32 {v(V_ZH)}, {s(S_T)}, {v(V_FINR)}")
        A(f"v_lshrrev_b32 {v(V_UH)}, 3, {v(t0)}")
        A(f"v_mul_u32_u24 {v(V_UH)}, 40960, {v(V_UH)}")
        A(f"v_add_u32 {v(V_UH)}, {v(V_UH)}, {v(V_ZH)}")
        A(f"s_mul_i32 {s(S_T)}, {s(S_WAVE)}, 6144")
        A(f"s_add_u32 {s(S_T)}, {s(S_T)}, {LU+4096}")
        A(f"v_add_u32 {v(V_UHR)}, {s(S_T)}, {v(V_FINR)}")
        A(f"v_mov_b32 {v(V_FINR)}, {v(V_L16)}")
    A(f"v_add_u32 {v(V_FINR)}, {LRED}, {v(V_FINR)}")
    A(f"s_mul_i32 {s(S_MU)}, {s(S_WAVE)}, {6144 if isV else 4096}")
    A(f"s_add_u32 {s(S_MU)}, {s(S_MU)}, {LU}")
    A(f"v_add_u32 {v(V_UR)}, {s(S_MU)}, {v(V_L16)}")
    if isV:
        A(f"s_mul_i32 {s(S_T)}, {s(S_WAVE)}, 1024")
        A(f"s_add_u32 {s(S_T)}, {s(S_T)}, {LRED}")
        A(f"v_add_u32 {v(V_RW)}, {s(S_T)}, {v(V_L16)}")
    A(f"v_lshrrev_b32 {v(V_FINRM)}, 1, {v(t1)}")
    A(f"s_lshl_b32 {s(S_T)}, {s(S_C)}, 1")
    A(f"v_add_u32 {v(V_FINRM)}, {s(S_T)}, {v(V_FINRM)}")
    if isV:
        A(f"s_add_u32 {s(S_T)}, {s(S_C)}, {64-16}")
        A(f"v_mov_b32 {v(V_TW)}, {s(S_T)}")
        A(f"v_cmp_lt_u32 vcc, 7, {v(t0)}")
        A("s_nop 1")
        A(f"v_cndmask_b32 {v(V_FINRM)}, {v(V_FINRM)}, {v(V_TW)}, vcc")
        A(f"v_lshrrev_b32 {v(V_TW)}, 3, {v(t0)}")
        A(f"v_lshl_add_u32 {v(V_TW)}, {v(V_TW)}, 9, {v(V_PLD)}")
    A(f"v_lshlrev_b32 {v(V_FINRM)}, 7, {v(V_FINRM)}")
    A(f"v_lshl_add_u32 {v(V_FINRM)}, {v(t2)}, 4, {v(V_FINRM)}")
    A(f"v_and_b32 {v(t2)}, 1, {v(t1)}")
    A(f"v_lshl_add_u32 {v(V_FINRM)}, {v(t2)}, 3, {v(V_FINRM)}")
    A(f"s_mov_b32 {s(S_MA)}, 0x00ff00ff")
    A(f"s_mov_b32 {s(S_MA+1)}, 0x00ff00ff")
    A(f"s_mov_b32 {s(S_MB)}, {'0xffffffff' if isV else '0x00ff00ff'}")
    A(f"s_mov_b32 {s(S_MB+1)}, {'0x00ff00ff' if isV else '0'}")
    A(f"s_lshl_b32 {s(S_T)}, {s(S_WAVE)}, 10")
    A(f"v_add_u32 {v(V_T7)}, {s(S_T)}, {v(V_L16)}")
    if not isV: A(f"v_add_u32 {v(126)}, {HI}, {v(V_T7)}")
    A(f"s_lshr_b32 {s(S_G3)}, {s(S_WAVE)}, 1")
    A(f"s_add_u32 {s(S_G3)}, {s(S_G3)}, 8")
    A(f"s_sub_u32 {s(S_G3)}, {s(S_G3)}, {s(S_WAVE)}")
    A(f"s_lshl_b32 {s(S_G3)}, {s(S_G3)}, 10")
    A(f"s_and_b32 {s(S_T2)}, {s(S_WAVE)}, 1")
    A(f"s_sub_u32 {s(S_M3)}, {s(S_T2)}, 1")
    A(f"s_sub_u32 {s(S_M3+1)}, 0, {s(S_T2)}")
    A(f"v_and_b32 {v(V_GA)}, 7, {v(V_LANE)}")
    A(f"v_lshlrev_b32 {v(V_GA)}, 5, {v(V_GA)}")
    A(f"v_lshl_add_u32 {v(V_GA)}, {v(t1)}, 8, {v(V_GA)}")
    A(f"v_bfe_u32 {v(115)}, {v(V_LANE)}, 3, 1")
    A(f"v_lshl_add_u32 {v(V_GA)}, {v(115)}, 4, {v(V_GA)}")
    A(f"s_add_u32 {s(S_T)}, {s(S_T)}, {HI}")
    A(f"v_add_u32 {v(V_GA)}, {s(S_T)}, {v(V_GA)}")
    A(f"v_add_u32 {v(V_G3W)}, {s(S_G3)}, {v(V_GA)}")
    for i in range(4): A(f"v_mov_b32 {v(V_POI+i)}, -1")
    r_, c_ = 115, 116
    A(f"v_bfe_u32 {v(r_)}, {v(V_LANE)}, 2, 2")
    A(f"v_and_b32 {v(c_)}, 1, {v(V_LANE)}")
    A(f"v_lshlrev_b32 {v(c_)}, 3, {v(c_)}")
    if not isV:
        A(f"v_add_u32 {v(c_)}, {S_LQ}, {v(c_)}")
        A(f"v_lshl_add_u32 {v(V_TRA)}, {v(t1)}, 2, {v(r_)}")
        A(f"v_lshl_add_u32 {v(V_TRA)}, {v(V_TRA)}, 4, {v(c_)}")
        A(f"v_lshrrev_b32 {v(t2)}, 1, {v(t1)}")
        A(f"v_mul_u32_u24 {v(t2)}, 48, {v(t2)}")
        A(f"v_and_b32 {v(V_TRB)}, 1, {v(t1)}")
        A(f"v_lshl_add_u32 {v(V_TRB)}, {v(V_TRB)}, 3, {v(t2)}")
        A(f"v_add_u32 {v(V_TRB)}, {v(V_TRB)}, {v(r_)}")
        A(f"v_lshl_add_u32 {v(V_TRB)}, {v(V_TRB)}, 4, {v(c_)}")
        A(f"v_and_b32 {v(t2)}, 7, {v(t0)}")
        A(f"v_lshl_add_u32 {v(t2)}, {v(t1)}, 4, {v(t2)}")
        A(f"v_lshlrev_b32 {v(t2)}, 4, {v(t2)}")
        A(f"v_lshrrev_b32 {v(V_PX)}, 3, {v(t0)}")
        A(f"v_lshl_add_u32 {v(V_SXR)}, {v(V_PX)}, 11, {v(t2)}")
        A(f"v_add_u32 {v(V_SXR)}, {S_LSX}, {v(V_SXR)}")
        A(f"v_lshl_add_u32 {v(V_PX)}, {v(V_PX)}, 3, {v(t2)}")
        A(f"v_lshlrev_b32 {v(V_PM)}, 4, {v(t0)}")
        A(f"v_lshl_add_u32 {v(V_PM)}, {v(t1)}, 3, {v(V_PM)}")
        A(f"s_sub_u32 {s(S_T)}, {s(S_WAVE)}, 1")
        A(f"s_and_b32 {s(S_T)}, {s(S_T)}, 3")
        A(f"s_lshr_b32 {s(S_T2)}, {s(S_WAVE)}, 1")
        A(f"s_mul_i32 {s(S_T2)}, {s(S_T2)}, 6144")
        A(f"s_add_u32 {s(S_T2)}, {s(S_T2)}, {S_LK}")
        A(f"v_add_u32 {v(V_KR)}, {s(S_T2)}, {v(V_L16)}")
        A(f"s_mul_i32 {s(S_MK)}, {s(S_T)}, {6144 if K2W else 4096}")
        A(f"s_mul_i32 {s(S_KS)}, {s(S_HEAD)}, 12288")
        A(f"s_add_u32 {s(S_KS)}, {s(S_KS)}, {s(S_MK)}")
        A(f"s_add_u32 {s(S_KS)}, {s(S_KS)}, {WS_K}")
        A(f"s_add_u32 {s(S_MK)}, {s(S_MK)}, {S_LK}")
        A(f"s_lshr_b32 {s(S_PST)}, {s(S_HEAD)}, 1")
        A(f"s_lshl_b32 {s(S_PST)}, {s(S_PST)}, 10")
        A(f"s_and_b32 {s(S_PSM)}, {s(S_HEAD)}, 1")
        A(f"s_lshl_b32 {s(S_PSM)}, {s(S_PSM)}, 7")
        A(f"s_add_u32 {s(S_PST)}, {s(S_PST)}, {s(S_PSM)}")
        A(f"s_lshl_b32 {s(S_PSM)}, {s(S_HEAD)}, 7")
        A(f"s_add_u32 {s(S_PSM)}, {s(S_PSM)}, 16384")
    else:
        A(f"v_lshl_add_u32 {v(t2)}, {v(t1)}, 3, {v(r_)}")
        A(f"v_and_b32 {v(c_)}, 3, {v(V_LANE)}")
        A(f"v_lshlrev_b32 {v(c_)}, 3, {v(c_)}")
        A(f"v_lshl_add_u32 {v(V_TRA)}, {v(t2)}, 5, {v(c_)}")
        A(f"v_add_u32 {v(V_TRA)}, {V_LVX}, {v(V_TRA)}")
        A(f"v_lshlrev_b32 {v(V_ZS4)}, 13, {v(t1)}")
        A(f"v_and_b32 {v(t2)}, 1, {v(t1)}")
        A(f"v_lshlrev_b32 {v(V_ZS2)}, 13, {v(t2)}")
        A(f"v_lshrrev_b32 {v(t2)}, 1, {v(t1)}")
        A(f"v_lshl_add_u32 {v(V_ZS2)}, {v(t2)}, 3, {v(V_ZS2)}")
        A(f"s_mul_i32 {s(S_T)}, {s(S_WAVE)}, {10*8192}")
        A(f"s_lshl_b32 {s(S_T2)}, {s(S_HEAD)}, 8")
        A(f"s_add_u32 {s(S_T)}, {s(S_T)}, {s(S_T2)}")
        A(f"v_lshl_add_u32 {v(t2)}, {v(t0)}, 4, {s(S_T)}")
        A(f"v_add_u32 {v(V_ZS4)}, {v(V_ZS4)}, {v(t2)}")
        A(f"v_add_u32 {v(V_ZS2)}, {v(V_ZS2)}, {v(t2)}")
        A(f"v_add_u32 {v(V_ZS2)}, {8*8192}, {v(V_ZS2)}")
    A(f"s_mov_b32 {s(S_Z)}, {MB_Z}")
    A(f"s_mov_b32 {s(S_ZN)}, {MB_Z+327680}")
    A(f"s_mov_b32 {s(S_P)}, {MB_P}")
    A(f"s_mov_b32 {s(S_PN)}, {MB_P+20480}")
    A(f"s_mov_b32 {s(S_ZP)}, {MB_Z+2*327680}")
    A(f"s_mov_b32 {s(S_PP)}, {MB_P+2*20480}")
    A(f"s_mul_i32 {s(S_T)}, {s(S_GRP)}, 10240")
    A(f"s_add_u32 {s(S_L)}, {s(S_T)}, {MB_L}")
    A(f"s_add_u32 {s(S_LN)}, {s(S_T)}, {MB_L+20480}")
    if True:
        A(f"s_lshl_b32 {s(S_T)}, {s(S_GRP)}, 14")
        A(f"s_add_u32 {s(S_RW)}, {s(S_T)}, {MB_R}")
        A(f"s_sub_u32 {s(S_RR)}, {MB_R + 16384}, {s(S_T)}")
        A(f"s_mul_i32 {s(S_T)}, {s(S_GRP)}, 14336")
        A(f"s_add_u32 {s(S_R3)}, {s(S_T)}, {32768 + 2048 - 8192 - 16384}")
        A(f"s_add_u32 {s(S_R3)}, {s(S_R3)}, {s(S_G3)}")
        if isV:
            A(f"s_sub_u32 {s(S_T)}, {32768 - 8192}, {s(S_T)}")
            A(f"v_add_u32 {v(V_FINRR)}, {s(S_T)}, {v(V_FINRM)}")
            A(f"v_cmp_lt_u32 vcc, 7, {v(t0)}")
            A("s_nop 1")
            A(f"v_cndmask_b32 {v(V_FINRR)}, {v(V_FINRM)}, {v(V_FINRR)}, vcc")
        A(f"s_mov_b32 {s(S_OLO)}, 0x00003f80"); A(f"s_mov_b32 {s(S_OHI)}, 0x3f800000"); A(f"s_mov_b32 {s(S_TGT)}, 0")
    A(f"s_lshl_b32 {s(S_T)}, {s(S_GRP)}, 2")
    A(f"s_add_u32 {s(S_T)}, {s(S_T)}, {s(S_WAVE)}")
    A(f"s_lshl_b32 {s(S_PLX)}, {s(S_T)}, 11")
    A(f"s_lshl_b32 {s(S_PLM)}, {s(S_T)}, 9")
    A(f"s_add_u32 {s(S_PLM)}, {s(S_PLM)}, 16384")
    A(f"s_lshl_b32 {s(S_ZL)}, {s(S_T)}, 10")
    A(f"s_mul_i32 {s(S_US)}, {s(S_T)}, {4*40960}")
    A(f"s_add_u32 {s(S_US)}, {s(S_US)}, {WS_U}")
    if isV:
        A(f"s_sub_u32 {s(S_T2)}, {s(S_C)}, 16")
        A(f"s_lshr_b32 {s(S_T2)}, {s(S_T2)}, 1")
        A(f"s_add_u32 {s(S_T2)}, {s(S_T2)}, 32")
        A(f"s_lshl_b32 {s(S_T3)}, {s(S_T2)}, 13")
        A(f"s_add_u32 {s(S_ZL2)}, {s(S_ZL)}, {s(S_T3)}")
        A(f"s_lshl_b32 {s(S_T3)}, {s(S_T2)}, 10")
        A(f"s_add_u32 {s(S_US2)}, {s(S_US)}, {s(S_T3)}")
    A(f"s_lshl_b32 {s(S_T3)}, {s(S_C)}, 13")
    A(f"s_add_u32 {s(S_ZL)}, {s(S_ZL)}, {s(S_T3)}")
    A(f"s_lshl_b32 {s(S_T3)}, {s(S_C)}, 10")
    A(f"s_add_u32 {s(S_US)}, {s(S_US)}, {s(S_T3)}")
    A(f"s_mov_b32 {s(S_ARR)}, {CN_Z - 256}")
    A(f"s_lshl_b32 {s(S_HP)}, {s(S_GRP)}, 8")
    A(f"s_add_u32 {s(S_HP)}, {s(S_HP)}, {MB_H}")
    A(f"s_mul_i32 {s(S_T2)}, {s(S_GRP)}, {16384-128}")
    A(f"s_sub_u32 {s(S_XW)}, {32768+4096}, {s(S_T2)}")
    A(f"s_add_u32 {s(S_XR)}, {s(S_T2)}, {32768+4096+128-16384}")
    A(f"s_lshl_b32 {s(S_FLO)}, {s(S_HEAD)}, 7")
    A(f"s_mov_b32 {s(S_KNOWN)}, 0")
    if HINTB == 7: A(f"s_mov_b32 {s(S_TD)}, 0")
    A(f"s_mov_b32 {s(S_KN)}, 1")
    A(f"v_mov_b32 {v(V_FL)}, 0")
    if not isV: A(f"v_mov_b32 {v(V_FKS)}, 0")
    A(f"s_mov_b32 {s(S_SC)}, {f32bits(192**-0.5*math.log2(math.e))}")
    A(f"s_mov_b32 {s(S_STEP)}, 0")
    A(f"s_mov_b32 {s(S_CNT)}, {SPIN_MAX + 1000 if SPIN_MAX else 0}")
    A(f"s_mov_b32 {s(S_EXP)}, {WS_Z if (VAR == 2 or PL_X != 'S') else WS_SCR}")
    if PL_X == 'S': A(f"s_mov_b32 {s(S_EXN)}, {WS_Z}")
    A(f"s_mul_i32 {s(S_KMX)}, {s(S_HEAD)}, 3072")
    A(f"s_add_u32 {s(S_KMX)}, {s(S_KMX)}, {WS_KM - 1024}")
    if not isV: A(f"s_mov_b32 {s(S_KMY)}, {WS_SCR}")
    if STAMP:
        for k in range(16): A(f"s_mov_b32 {s(S_TS+k)}, 0")

LOOKA = 0
def spin(lines_load, cond, ok):
    pass

def u_check(A, seg_off):
    sl = A.newlabel("uc_s"); ok = A.newlabel("uc_ok"); lp = A.newlabel("uc_lp"); g1 = A.newlabel("uc_g")
    A(f"s_add_u32 {s(S_T3)}, {s(S_STEP)}, {seg_off}")
    A(f"s_cmp_ge_u32 {s(S_T3)}, {s(S_KNOWN)}")
    A(f"s_cbranch_scc1 {sl}")
    A.label(ok)
    ld = f"buffer_load_dword {v(V_FL)}, {v(V_ZERO)}, {s(S_WS,4)}, {s(S_T4)} offen sc1"
    STUBS.append([sl + ":",
        f"s_add_u32 {s(S_KNOWN)}, {s(S_T3)}, {LOOKA}", f"s_min_u32 {s(S_KNOWN)}, {s(S_KNOWN)}, {NSEG-1}",
        f"s_lshl_b32 {s(S_T4)}, {s(S_KNOWN)}, 7", f"s_add_u32 {s(S_T4)}, {s(S_T4)}, {CN_U}", f"s_add_u32 {s(S_KNOWN)}, {s(S_KNOWN)}, 1",
        ld, "s_waitcnt vmcnt(0)", f"v_cmp_gt_u32 vcc, 32, {v(V_FL)}", f"s_cbranch_vccz {ok}",
        f"s_add_u32 {s(S_KNOWN)}, {s(S_T3)}, 1", f"s_min_u32 {s(S_T3)}, {s(S_T3)}, {NSEG-1}",
        f"s_lshl_b32 {s(S_T4)}, {s(S_T3)}, 7", f"s_add_u32 {s(S_T4)}, {s(S_T4)}, {CN_U}",
        lp + ":", ld, "s_waitcnt vmcnt(0)", f"v_cmp_gt_u32 vcc, 32, {v(V_FL)}", f"s_cbranch_vccz {ok}",
        f"s_sub_u32 {s(S_CNT)}, {s(S_CNT)}, 1", f"s_cbranch_scc0 {lp}", f"s_mov_b32 {s(S_CNT)}, 0", f"s_branch {ok}"])

def k_check(A):
    sl = A.newlabel("kc_s"); ok = A.newlabel("kc_ok"); lp = A.newlabel("kc_lp")
    A.label(lp)
    A(f"v_cmp_gt_u32 vcc, {s(S_KN)}, {v(V_FKS)}")
    A(f"s_cbranch_vccnz {sl}")
    A.label(ok)
    STUBS.append([sl + ":", f"s_sub_u32 {s(S_CNT)}, {s(S_CNT)}, 1", f"s_cbranch_scc1 {sl}_d", f"s_add_u32 {s(S_T3)}, {s(S_FLO)}, {FL_K}",
                  f"buffer_load_dword {v(V_FKS)}, {v(V_ZERO)}, {s(S_WS,4)}, {s(S_T3)} offen sc1", "s_waitcnt vmcnt(0)", f"s_branch {lp}",
                  sl + "_d:", f"s_mov_b32 {s(S_CNT)}, 0", f"s_branch {ok}"])

def k_dma(A, cls=12):
    if K2W:
        if cls == 12:
            A(f"s_mov_b32 m0, {s(S_MK)}")
            A(f"s_add_u32 {s(S_T)}, {s(S_KS)}, 3072")
            for j in range(3):
                A(f"buffer_load_dwordx4 {v(V_L16)}, {s(S_WS,4)}, {s(S_KS)} offen offset:{j*1024} sc1 lds")
            A(f"s_add_u32 m0, {s(S_MK)}, 3072")
            A("s_nop 0")
            for j in range(3):
                A(f"buffer_load_dwordx4 {v(V_L16)}, {s(S_WS,4)}, {s(S_T)} offen offset:{j*1024} sc1 lds")
    else:
        A(f"s_mov_b32 m0, {s(S_MK)}")
        A("s_nop 0")
        for j in range(4):
            A(f"buffer_load_dwordx4 {v(V_L16)}, {s(S_WS,4)}, {s(S_KS)} offen offset:{j*1024} sc1 lds")
    A(f"s_add_u32 {s(S_KS)}, {s(S_KS)}, {NH*12288}")
    A(f"s_add_u32 {s(S_KN)}, {s(S_KN)}, 1")
    A(f"s_min_u32 {s(S_KN)}, {s(S_KN)}, {NSEG}")

def u_dma_items(isV, lo, hi):
    L = []
    for j in range(lo, min(hi, 6 if isV else 4)):
        if j < 4:
            if j == lo: L.append(f"s_mov_b32 m0, {s(S_MU)}")
            L.append(f"s_add_u32 {s(S_T4)}, {s(S_US)}, {j*(40960-1024)}")
            L.append(f"buffer_load_dwordx4 {v(V_L16)}, {s(S_WS,4)}, {s(S_T4)} offen offset:{j*1024} sc1 lds")
        else:
            if j == lo or j == 4: L.append(f"s_add_u32 m0, {s(S_MU)}, 4096")
            L.append(f"s_add_u32 {s(S_T4)}, {s(S_US2)}, {(j-4)*(2*40960-1024)}")
            L.append(f"buffer_load_dwordx4 {v(V_UH)}, {s(S_WS,4)}, {s(S_T4)} offen offset:{(j-4)*1024} sc1 lds")
    return L

def phaseB_items(A, isV, cls, flags):
    L = u_dma_items(isV, UGV if isV else UGS, 99)
    if flags and cls == 0:
        if isV:
            an = A.newlabel("an"); ab = A.newlabel("ab")
            STUBS.append([an + ":", f"s_cmp_lt_u32 {s(S_STEP)}, 2", f"s_cbranch_scc1 {ab}", f"v_mov_b32 {v(V_TMPV)}, 32", "s_mov_b64 exec, 1",
                          f"buffer_atomic_add {v(V_TMPV)}, {v(V_ZERO)}, {s(S_WS,4)}, {s(S_ARR)} offen sc1", "s_mov_b64 exec, -1", f"s_branch {ab}"])
            L.append("\n".join([f"s_cmp_eq_u32 {s(S_C)}, 16", f"s_cbranch_scc1 {an}", ab + ":"]))
        else:
            L += [f"s_add_u32 {s(S_T)}, {s(S_FLO)}, {FL_KM}", f"s_sub_u32 {s(S_T2)}, {s(S_STEP)}, 0", f"s_max_i32 {s(S_T2)}, {s(S_T2)}, 0", f"v_mov_b32 {v(V_FL)}, {s(S_T2)}"]
            L.append("\n".join(["s_mov_b64 exec, 1", f"buffer_store_dword {v(V_FL)}, {v(V_ZERO)}, {s(S_WS,4)}, {s(S_T)} offen sc0 sc1", "s_mov_b64 exec, -1"]))
    return L

def km_export(A, E, tmp):
    E(ds("KX", f"ds_read_b128 {v(tmp,4)}, {v(126)} offset:{S_LKM-HI-1024}"))
    E(need("KX"))
    A(f"buffer_store_dwordx4 {v(tmp,4)}, {v(V_T7)}, {s(S_WS,4)}, {s(S_KMX)} offen sc0 sc1")

ZF = 48
def z_poison(A):
    A(f"s_add_u32 {s(S_T2)}, {s(S_ZP)}, {4*8192}")
    dual(A, [f"buffer_store_dwordx4 {v(V_POI,4)}, {v(V_ZS4)}, {s(S_WS,4)}, {s(S_ZP)} offen",
             f"buffer_store_dwordx4 {v(V_POI,4)}, {v(V_ZS4)}, {s(S_WS,4)}, {s(S_T2)} offen",
             f"buffer_store_dwordx2 {v(V_POI,2)}, {v(V_ZS2)}, {s(S_WS,4)}, {s(S_ZP)} offen"])
def p_poison(A, slot):
    A(f"s_add_u32 {s(S_T)}, {s(slot)}, {s(S_PST)}"); A(f"s_add_u32 {s(S_T2)}, {s(slot)}, {s(S_PSM)}")
    dual(A, [f"s_mov_b64 exec, {s(S_MA,2)}",
             f"buffer_store_dwordx4 {v(V_POI,4)}, {v(V_L16)}, {s(S_WS,4)}, {s(S_T)} offen",
             f"s_mov_b64 exec, {s(S_MB,2)}",
             f"buffer_store_dwordx2 {v(V_POI,2)}, {v(V_PM)}, {s(S_WS,4)}, {s(S_T2)} offen",
             "s_mov_b64 exec, -1"])
def z_export(A, isV, zf, woff):
    A(f"s_add_u32 {s(S_T)}, {s(S_EXP)}, {s(S_ZL)}")
    if woff: A(f"s_sub_u32 {s(S_T)}, {s(S_T)}, {s(woff)}")
    A(f"buffer_store_dwordx4 {v(zf,4)}, {v(V_L16)}, {s(S_WS,4)}, {s(S_T)} offen sc0 sc1")
    if isV:
        A(f"s_add_u32 {s(S_T)}, {s(S_EXP)}, {s(S_ZL2)}")
        if woff: A(f"s_sub_u32 {s(S_T)}, {s(S_T)}, {s(woff)}")
        A(f"s_mov_b64 exec, {s(S_MA,2)}")
        A(f"buffer_store_dwordx4 {v(zf+4,4)}, {v(V_ZH)}, {s(S_WS,4)}, {s(S_T)} offen sc0 sc1")
        A("s_mov_b64 exec, -1")
def window(A, E, isV, cls, flags):
    LZ = (V_LVX if isV else S_LK + 12288) - HI
    last = A.newlabel("wz")
    if WDEL: A(f"s_sleep {WDEL}")
    z_export(A, isV, ZF, None)
    if cls != 3:
        A(f"s_cmp_lg_u32 {s(S_WAVE)}, {3 if isV else 1}"); A(f"s_cbranch_scc1 {last}")
        for t in range(2 if isV else 1): E(ds("zs", f"ds_read_b128 {v(AF+4*t,4)}, {v(V_HI)} offset:{LZ+t*1024}"))
        E(need("zs"))
        A(f"s_lshl_b32 {s(S_T2)}, {s(S_WAVE)}, 10")
        z_export(A, isV, AF, S_T2)
        A.label(last)
    if flags:
        u_check(A, 1)
        if not isV: k_check(A)

def qk_tr(isq, ks, dst, tag):
    b = 0 if isq else 3072
    if ks < 4: vb, o0, o1 = V_TRA, 48*ks*16, (48*ks+16)*16
    else: vb, o0, o1 = V_TRB, (96*(ks-4)+32)*16, (96*(ks-4)+36)*16
    return [ds(tag, f"ds_read_b64_tr_b16 {v(dst,2)}, {v(vb)} offset:{b+o0}"),
            ds(tag, f"ds_read_b64_tr_b16 {v(dst+2,2)}, {v(vb)} offset:{b+o1}")]

def xlane(op, r, t, which):
    return [f"v_mov_b32 {v(t)}, {v(r)}", "s_nop 1", f"v_permlane{which}_swap_b32 {v(r)}, {v(t)}", f"{op} {v(r)}, {v(r)}, {v(t)}"]

def pb_tasks(items, e, d, span, step=4):
    if PBMODE == 0: return [[e, d, items]]
    if PBMODE == 1:
        STUBS.clear()
        return [[e, d, [it for it in items if isinstance(it, str) and 'buffer_' not in it]]]
    if DROP & 1: items = [it for it in items if not (isinstance(it, str) and it.endswith(" lds"))]
    if DROP & 2: items = [it for it in items if not (isinstance(it, str) and it.startswith("buffer_store") and "sc1" in it)]
    groups = []; cur = []
    for it in items:
        cur.append(it)
        if isinstance(it, str) and 'buffer_' in it: groups.append(cur); cur = []
    if cur: groups.append(cur)
    n = len(groups); out = []
    for i, g in enumerate(groups):
        st = e + i*step
        out.append([st, st+step, g])
    return out

def s_stage(A, E, cls, flags):
    S0, S1, S2, S3 = ACC, ACC+4, ACC+8, ACC+12
    accs = [S0, S1, S2, S3, S0, S1]
    ard = lambda k: ds(f"A{k}", f"ds_read_b128 {v(AF+4*k,4)}, {v(V_HI)} offset:{k*1024}")
    for k in range(3): E(ard(k))
    main = []
    for f in ORD_S:
        t, k = divmod(f, 10)
        main.append(([need(f"A{k}")] if t == 0 else []) + smf(f, accs[t], AF+4*k))
    T = refill_tasks() + [[max(k-3, 4 if (k >= 7 and PL_X == 'S') else 0), max(k-1, 2*k-5), [ard(k)]] for k in range(3, 10)]
    pb = phaseB_items(A, False, cls, flags)
    if PL_K == 'S' and cls != 0:
        pb += [f"s_xor_b32 {s(S_MK)}, {s(S_MK)}, {S_LK ^ (S_LK + 16384)}", f"s_mov_b32 m0, {s(S_MK)}", f"s_add_u32 {s(S_KN)}, {s(S_KN)}, 1"]
        pb += [f"buffer_load_dwordx4 {v(V_L16)}, {s(S_WS,4)}, {s(S_KS)} offen offset:{j*1024} sc1 lds" for j in range(4)]
        pb += [f"s_add_u32 {s(S_KS)}, {s(S_KS)}, {NH*12288}", f"s_min_u32 {s(S_KN)}, {s(S_KN)}, {NSEG}"]
    T += pb_tasks(pb, 2 + PBSTG*{0:0,12:1,3:2}[cls], 22, 56, PBSTEP if cls else PBSTEP0)
    T.append([0, 28, zero(S3)])
    if HINTB == 4 and cls == 3: T.append([GIDX-3, GIDX+1, first_text(A, 0, 16, XS, XS+1)])
    if HINTB in (3, 4) and cls == 0:
        B = Asm(); B.uid = A.uid + 500000; A.uid += 10
        hint_store(B, 0, V_TMP1 if not TRACE else 127)
        T.append([HBIDX-3, HBIDX+1, [l.strip() for l in B.lines[:4]] + ["\n".join(B.lines[4:])]])
    T += stage_side(A, False, cls)
    T += trace_task()
    T.append([21, 33, post_s(S0, 0, "qw") + post_s(S1, 256, "qw") + zero(S0) + zero(S1)])
    T.append([32, 36, post_s(S2, 512, "qw")])
    T.append([37, 38, [need("qw"), "s_barrier"]])
    T.append([42, 58, post_s(S3, 3072, "kw")])
    SA = S2
    kss = (3, 4, 5) if cls == 12 else (0, 1, 2)
    def mm(ks, q_, k_): return [need(f"X{ks}"), f"v_mfma_f32_16x16x32_bf16 {v(SA,4)}, {v(k_,4)}, {v(q_,4)}, {'0' if ks == kss[0] else v(SA,4)}"]
    krd = lambda ks, r: ds(f"X{ks}", f"ds_read_b128 {v(r,4)}, {v(V_KR)} offset:{ks*1024}")
    if cls == 0:
        for ks in range(3): T.append([38, 41+2*ks, qk_tr(True, ks, XS+4*ks, f"X{ks}")])
        for ks in range(3): T.append([44+2*ks, 46+2*ks, [krd(ks, AF+4+4*ks)]])
        for ks in (3, 4): T.append([38, 50+2*ks, qk_tr(True, ks, XS+4*ks, f"m{ks}")])
        T.append([42, 59, qk_tr(True, 5, AF, "m5")])
        for ks in range(3): T.append([51+2*ks, 52+2*ks, mm(ks, XS+4*ks, AF+4+4*ks)])
    else:
        R = [(XS, XS+4), (XS+8, XS+12), (XS+16, AF)]
        for i, ks in enumerate(kss):
            T.append([38 if i < 2 else 42, 42+3*i, qk_tr(True, ks, R[i][0], f"X{ks}") + [krd(ks, R[i][1])]])
            T.append([48+3*i, 49+3*i, mm(ks, *R[i])])
    schedule(E, main, T, maxn=4)
    E(ds("sx", f"ds_write_b128 {v(126)}, {v(SA,4)} offset:{S_LSX-HI}"))
    A(f"v_xor_b32 {v(V_KR)}, {S_LK ^ (S_LK + 16384)}, {v(V_KR)}")
    A("s_nop 2")
    pa = post_s(S0, 3072+256, "kw"); pb_ = post_s(S1, 3072+512, "kw")
    for it in pa + pb_: E(it)
    if HINTB == 5 and cls == 0: hint_store(A, 0, 72)
    if HINTB == 6 and cls == 0 and not HW3: ts_hint_store(A, E, 72)
    tr(A, 1)
    if HINTB >= 6 and cls == 3 and HW3:
        ts_hint_read(A); E.drain()
        if HW3 == 2: ts_hint_store(A, E, 72, True)
    else: E.drain()
    A("s_barrier")

def dppadd(r): return f"v_add_f32_dpp {v(r)}, {v(r)}, {v(r)} row_ror:8 row_mask:0xf bank_mask:0xf"

def s_tail(A, E):
    KF, SX, SM, t0, t1 = TMP, 44, 52, 56, 57
    mx, sm, m = 58, 59, 62
    dpp = " row_ror:8 row_mask:0xf bank_mask:0xf"
    E(ds("sx", f"ds_read_b128 {v(SX,4)}, {v(V_SXR)}"))
    E(ds("sx", f"ds_read_b128 {v(SX+4,4)}, {v(V_SXR)} offset:1024"))
    for ks in range(6):
        for it in qk_tr(False, ks, KF+4*ks, f"m{ks}"): E(it)
    if HINTB == 2: hint_store(A, 0, 60)
    X = [need("sx")] + [f"v_add_f32 {v(SX+i)}, {v(SX+i)}, {v(SX+4+i)}" for i in range(4)] + [
         f"v_max3_f32 {v(mx)}, {v(SX)}, {v(SX+1)}, {v(SX+2)}",
         f"v_max_f32 {v(mx)}, {v(mx)}, {v(SX+3)}", "s_nop 1",
         f"v_max_f32_dpp {v(mx)}, {v(mx)}, {v(mx)}" + dpp]
    X += xlane("v_max_f32", mx, t0, 16) + xlane("v_max_f32", mx, t0, 32)
    main = [[]] + [[need(f"m{ks}"), f"v_mfma_f32_16x16x32_bf16 {v(SM,4)}, {v(KF+4*ks,4)}, {v(XS+4*ks if ks < 5 else AF,4)}, {'0' if ks==0 else v(SM,4)}"] for ks in range(6)]
    for it in X[:9]: E(it)
    schedule(E, main, [[0, 99, X[9:]]])
    A(f"s_add_u32 {s(S_T)}, {s(S_P)}, {s(S_PST)}")
    A(f"s_add_u32 {s(S_T2)}, {s(S_P)}, {s(S_PSM)}")
    A("s_waitcnt vmcnt(0)" if TAILW or VAR == 2 else wait_poison(A))
    tr(A, 9)
    A("s_nop 4")
    A(f"v_max3_f32 {v(m)}, {v(SM)}, {v(SM+1)}, {v(SM+2)}")
    A(f"v_max3_f32 {v(m)}, {v(m)}, {v(SM+3)}, {v(mx)}")
    for l in xlane("v_max_f32", m, t0, 16): A(l)
    A(f"v_mul_f32 {v(m)}, {s(S_SC)}, {v(m)}")
    R = [SX, SX+1, SX+2, SX+3, SM, SM+1, SM+2, SM+3]
    for r in R: A(f"v_fma_f32 {v(r)}, {v(r)}, {s(S_SC)}, -{v(m)}")
    for r in R: A(f"v_exp_f32 {v(r)}, {v(r)}")
    A(f"v_add_f32 {v(sm)}, {v(SX)}, {v(SX+1)}")
    A(f"v_add_f32 {v(t0)}, {v(SX+2)}, {v(SX+3)}")
    A(f"v_add_f32 {v(t1)}, {v(SM)}, {v(SM+1)}")
    A(f"v_add_f32 {v(m)}, {v(SM+2)}, {v(SM+3)}")
    A(f"v_add_f32 {v(sm)}, {v(sm)}, {v(t0)}")
    A(f"v_add_f32 {v(t1)}, {v(t1)}, {v(m)}")
    A(f"v_fmac_f32 {v(sm)}, 0x3e800000, {v(t1)}")
    A("s_nop 1")
    A(f"v_add_f32_dpp {v(sm)}, {v(sm)}, {v(sm)}" + dpp)
    for l in xlane("v_add_f32", sm, t0, 16) + xlane("v_add_f32", sm, t0, 32): A(l)
    A(f"v_rcp_f32 {v(sm)}, {v(sm)}")
    A(f"s_cmp_eq_u32 {s(S_FAST)}, 0")
    for r in R[:4]: A(f"v_mul_f32 {v(r)}, {v(r)}, {v(sm)}")
    for i in range(2): A(f"v_cvt_pk_bf16_f32 {v(64+i)}, {v(SX+2*i)}, {v(SX+2*i+1)}")
    dual(A, [f"buffer_store_dwordx2 {v(64,2)}, {v(V_PX)}, {s(S_WS,4)}, {s(S_T)} offen"])
    for r in R[4:]: A(f"v_mul_f32 {v(r)}, {v(r)}, {v(sm)}")
    for i in range(2): A(f"v_cvt_pk_bf16_f32 {v(SM+i)}, {v(SM+2*i)}, {v(SM+2*i+1)}")
    dual(A, [f"s_mov_b64 exec, {s(S_MB,2)}",
             f"buffer_store_dwordx2 {v(SM,2)}, {v(V_PM)}, {s(S_WS,4)}, {s(S_T2)} offen",
             "s_mov_b64 exec, -1"])
    if HINTB == 1: hint_store(A, 0, 56)

def v_stage(A, E, cls, flags):
    S = [ACC, ACC+4, ACC+8, ACC+12, 112, 116]
    ard = lambda k: ds(f"A{k}", f"ds_read_b128 {v(AF+4*k,4)}, {v(V_HI)} offset:{k*1024}")
    for k in range(3): E(ard(k))
    main = []
    for f in ORD_V[:30]:
        t, k = divmod(f, 10)
        main.append(([need(f"A{k}")] if t == 0 else []) + smf(f, S[t], AF+4*k))
    SS = [S[3], S[4], S[5], S[0], S[1], AF+12, AF+16, AF+20, AF+24, S[2]]
    sa = lambda t: SS[t]
    seen = set()
    for t, kk in ORD_V2:
        main.append(([need(f"B{kk}")] if kk not in seen else []) + smf(30 + 3*t + kk, sa(t), AF+4*kk)); seen.add(kk)
    brd = lambda kk: [ds(f"B{kk}", f"ds_read_b64_tr_b16 {v(AF+4*kk+2*h,2)}, {v(V_TRA)} offset:{(32*kk+4*h)*32}") for h in range(2)]
    T = refill_tasks() + [[k-3, max(k-1, 2*k-5), [ard(k)]] for k in range(3, 10)]
    T += pb_tasks(phaseB_items(A, True, cls, flags), 2 + PBSTG*{0:0,12:1,3:2}[cls], 24, 58, PBSTEPV)
    T.append([0, 19, zero(S[3]) + zero(S[4]) + zero(S[5])])
    T += trace_task()
    T.append([20, 26, post_v(S[0], 0, "vw") + post_v(S[1], 256, "vw")])
    T.append([26, 29, [need("vw"), "s_barrier"] + brd(0) + brd(1)])
    T.append([26, 34, zero(S[0]) + zero(S[1])])
    T.append([32, 36, post(S[2]) + [ds("vw2", f"ds_write_b16 {v(V_PW2)}, {v(S[2])}"), ds("vw2", f"ds_write_b16_d16_hi {v(V_PW2)}, {v(S[2])} offset:4")]])
    T.append([37, 40, [need("vw2"), "s_barrier"] + brd(2)])
    T.append([27, 38, zero(AF+12)])
    T.append([27, 44, zero(AF+16) + zero(AF+20) + zero(AF+24)])
    T.append([37, 50, zero(S[2])])
    def fin(t):
        L = post(sa(t), XS+t)
        if t in (3, 7):
            q = XS + t - 3
            L += ["s_nop 0"]
            L += [f"v_permlane32_swap_b32 {v(q)}, {v(q+2)}", f"v_permlane32_swap_b32 {v(q+1)}, {v(q+3)}", "s_nop 1",
                  f"v_permlane16_swap_b32 {v(q)}, {v(q+1)}", f"v_permlane16_swap_b32 {v(q+2)}, {v(q+3)}"]
            L += [f"s_add_u32 {s(S_T)}, {s(S_Z)}, {(t//4)*4*8192}\n" + dual_text(A, [f"buffer_store_dwordx4 {v(q,4)}, {v(V_ZS4)}, {s(S_WS,4)}, {s(S_T)} offen"])]
        if t == 9:
            L += ["s_nop 1", f"v_permlane16_swap_b32 {v(XS+8)}, {v(XS+9)}"]
            L += [dual_text(A, [f"buffer_store_dwordx2 {v(XS+8,2)}, {v(V_ZS2)}, {s(S_WS,4)}, {s(S_Z)} offen"])]
        return L
    done = {t: 30 + ORD_V2.index((t, 2)) for t in range(10)}
    for t in range(7):
        T.append([done[t]+3, 70+t, fin(t)])
    schedule(E, main, T, cap=VCAP)
    f7 = fin(7)
    for it in f7[:3] + fin(8): E(it)
    for it in f7[4:]: E(it)
    A(wait_poison(A, fin=True) if (cls == 0 and VAR == 1) else "s_nop 0")
    for it in fin(9): E(it)
    tr(A, 1)

S_A1 = 10; S_B1_ = 3
def reduce_stage(A, E, isV, cls, flags):
    PF, mt = AF, 56
    UL = [76,80,84,88,92,96,60,64] if isV else [100,104,108,112]
    D = [68, 72]; DO = [40, 44]
    nt = 2 if isV else 1
    if VAR == 1 and PL_K == 'T' and not isV: side_ops(A, E, isV, cls, flags, 'T')
    A(f"s_add_u32 {s(S_T)}, {s(S_P)}, {s(S_PLX)}")
    A(f"s_add_u32 {s(S_T2)}, {s(S_P)}, {s(S_PLM)}")
    A(f"s_add_u32 {s(S_T3)}, {s(S_Z)}, {s(S_ZL)}")
    if isV: A(f"s_add_u32 {s(S_T4)}, {s(S_Z)}, {s(S_ZL2)}")
    for l in zero(PF+8) + (zero(ZF+4) if isV else []): A(l)
    if PL_K == 'B' and not isV and cls != 0: A(f"s_xor_b32 {s(S_MK)}, {s(S_MK)}, {S_LK ^ (S_LK + 16384)}")
    mp_init(A, ["-1", "-1", s(S_MA,2), "-1"] + ([s(S_MA,2)] if isV else []))
    zl = [(ZF, f"buffer_load_dwordx4 {v(ZF,4)}, {v(V_L16)}, {s(S_WS,4)}, {s(S_T3)} offen sc1")]
    if isV: zl.append((ZF+4, f"buffer_load_dwordx4 {v(ZF+4,4)}, {v(V_ZH)}, {s(S_WS,4)}, {s(S_T4)} offen sc1"))
    def u_reads():
        for j in range(4): E(ds("U", f"ds_read_b128 {v(UL[j],4)}, {v(V_UR)} offset:{j*1024}"))
        if isV:
            for j in range(4): E(ds("U", f"ds_read_b128 {v(UL[4+j],4)}, {v(V_UHR)} offset:{(j>>1)*1024+(j&1)*128}"))
    def zpoi():
        A(f"s_add_u32 {s(S_A1)}, {s(S_ZP)}, {4*8192}")
        dual(A, [f"buffer_store_dwordx4 {v(V_POI,4)}, {v(V_ZS4)}, {s(S_WS,4)}, {s(S_ZP)} offen",
                 f"buffer_store_dwordx4 {v(V_POI,4)}, {v(V_ZS4)}, {s(S_WS,4)}, {s(S_A1)} offen",
                 f"buffer_store_dwordx2 {v(V_POI,2)}, {v(V_ZS2)}, {s(S_WS,4)}, {s(S_ZP)} offen"])
    early = False
    if PREU and cls != 3:
        if isV: zpoi()
        A(f"s_waitcnt vmcnt({5 if isV else (2 if cls == 0 else 0)})")
        u_reads()
    if PL_K == 'B' and flags and cls == 3 and not isV:
        A(f"s_mov_b32 {s(S_B1_)}, {s(S_T3)}"); k_check(A); A(f"s_mov_b32 {s(S_T3)}, {s(S_B1_)}")
    tr(A, 2)
    if HINTB == 7:
        if cls == 3: ts_wait(A, E, S_TD, CB)
        if cls == 0 and not isV and DELAYBS: A(f"s_sleep {DELAYBS}")
        A("s_barrier")
    elif HINTB == 6:
        if cls == 3:
            ts_poll(A, 57, 58, 59, 10)
            if XHINT and isV and XEARLY: xstore(A)
            if PREU == 1:
                u_reads()
                if isV: zpoi()
            ts_wait(A, E, S_TD, TB, True)
        if cls == 0 and not isV and DELAYBS: A(f"s_sleep {DELAYBS}")
        A("s_barrier")
    elif HINTB == 4:
        if cls == 3:
            if isV: gate(A, 0, 16, 110, 11 if TRACE else 111, 59, 10, 3 if GIDXV < 12 else 2, DELAYB, DFAILB)
            else: gate(A, 0, 16, XS, XS+1, XS+2, 10, 0, 0, DFAILB)
        if cls == 0 and not isV and DELAYBS: A(f"s_sleep {DELAYBS}")
        A("s_barrier")
    elif HINTB:
        if cls == (0 if HINTB == 1 else 3):
            hint_poll(A, 0, 16, 57, 58, 59, 10)
            if HINTA == 4:
                A(f"s_memtime {s(FPS[5],2)}"); A("s_waitcnt lgkmcnt(0)"); E.reset()
                A(f"s_add_u32 {s(S_TD)}, {s(FPS[5])}, {CWAIT - (CVADJ if isV else 0)}")
            db = DELAYB - (DBVADJ if isV else 0)
            if db > 0: A(f"s_sleep {db}")
        if cls == 0 and not isV and DELAYBS: A(f"s_sleep {DELAYBS}")
        A("s_barrier")
    elif not isV:
        A("s_barrier")
        if DELAYBS: A(f"s_sleep {DELAYBS}")
    elif DELAYB: A(f"s_sleep {DELAYB}")
    if STAMP == 1: tick(A, 8)
    tr(A, 3)
    gl = [(PF+4*j, f"buffer_load_dwordx4 {v(PF+4*j,4)}, {v(V_L16)}, {s(S_WS,4)}, {s(S_T)} offen offset:{j*1024} sc1") for j in range(2)]
    gl.append((PF+8, f"buffer_load_dwordx4 {v(PF+8,4)}, {v(V_PLD)}, {s(S_WS,4)}, {s(S_T2)} offen sc1"))
    gl += zl
    lab = A.newlabel("GB")
    loop_top(A, lab, 11)
    mp_issue(A, gl)
    nz = 0
    if HINTB == 7 and cls == 3:
        ph_issue(A); nz += 1
    if XHINT and cls == 3 and isV and HINTB != 7 and (HINTB != 6 or not XEARLY):
        xstore(A); nz += 1
    if not PREU or (PREU == 2 and cls == 3):
        A(f"s_waitcnt vmcnt({len(gl)+nz})")
        u_reads()
        if isV and PL_P != 'W': zpoi(); nz += 3
    if PL_K == 'B' and not isV and cls != 0:
        A(f"s_mov_b32 m0, {s(S_MK)}")
        A("s_nop 0")
        for j in range(4): A(f"buffer_load_dwordx4 {v(V_L16)}, {s(S_WS,4)}, {s(S_KS)} offen offset:{j*1024} sc1 lds")
        nz += 4
    if XHINT == 2 and cls == 3:
        hint_first(A, 128, 1, 57, 58, True); A("s_mov_b64 exec, -1"); nz += 1
    def mm(d, a_, b_, first): return f"v_mfma_f32_16x16x32_bf16 {v(d,4)}, {v(a_,4)}, {v(b_,4)}, {'0' if first else v(d,4)}"
    chk = mp_check(gl, 32); n_ = len(gl)
    A(f"s_waitcnt vmcnt({nz + n_ - 2}) lgkmcnt(0)"); E.reset()
    xs = []
    for t in range(nt):
        for j in range(2): xs += [mm(DO[t], UL[4*t+2*j+1], PF+4*j, j == 0), mm(D[t], UL[4*t+2*j], PF+4*j, j == 0)]
    fill = [chk[0], chk[1], chk[n_], chk[n_+1]]
    for m_ in xs:
        A(m_)
        if fill: A(fill.pop(0))
    A(f"s_waitcnt vmcnt({nz})")
    A(mm(D[0], ZF, PF+8, False))
    rest = chk[2:n_] + chk[n_+2:]
    for l in rest[:2]: A(l)
    if isV: A(mm(D[1], ZF+4, PF+8, False))
    for l in rest[2:]: A(l)
    mp_close(A, len(gl), lab)
    main = []
    tr(A, 4)
    if PL_K == 'B' and not isV and cls != 0:
        A(f"s_add_u32 {s(S_KS)}, {s(S_KS)}, {NH*12288}"); A(f"s_add_u32 {s(S_KN)}, {s(S_KN)}, 1"); A(f"s_min_u32 {s(S_KN)}, {s(S_KN)}, {NSEG}")
    add0 = [f"v_add_f32_dpp {v(D[0]+i)}, {v(DO[0]+i)}, {v(D[0]+i)} row_ror:8 row_mask:0xf bank_mask:0xf" for i in range(4)]
    for k_, m_ in enumerate(main[5:]):
        A(m_[0])
        if k_ >= 3:
            A(add0.pop(0)); A(add0.pop(0))
    if HINTA == 2 and cls == 0: hint_store(A, 128, 57)
    if HINTA == 5 and cls == 3 and XHINT and HINTB != 7:
        A(f"s_add_u32 {s(S_A1_)}, {s(S_RR)}, {s(S_XR)}"); A("s_mov_b64 exec, 1")
        A(f"buffer_load_dword {v(58)}, {v(V_ZERO)}, {s(S_WS,4)}, {s(S_A1_)} offen sc1"); A("s_mov_b64 exec, -1")
    if HINTA in (2, 3, 4) and cls == 3 and XHINT == 1:
        hint_first(A, 128, 32 if HINTA == 2 else 1, 57, 58, True); A("s_mov_b64 exec, -1")
    A("s_nop 0")
    for l in add0: A(l)
    if isV:
        for i in range(4):
            A(f"v_add_f32_dpp {v(D[0]+i)}, {v(D[1]+i)}, {v(DO[1]+i)} row_ror:8 row_mask:0xf bank_mask:0xc")
    E(ds("r", f"ds_write_b128 {v(V_RW if isV else 126)}, {v(D[0],4)} offset:{0 if isV else S_LRED-HI}"))
    E.drain()
    A("s_barrier")
    if HINTB == 7 and cls == 3:
        ph_eval(A, 0 if isV else 4)
        if XHINT and isV: xstore(A)

def preload(A, E, z=True):
    for j in range(3):
        for it in wl_read(j): E(it)
    for k in range(3 if z else 0):
        for l in zero(ACC+4*k): A(l)

def gatherA(A, E, isV, cls, lab, flags):
    mt = 72
    vtw = V_TW if isV else V_PLD
    def advance():
        A(f"s_add_u32 {s(S_STEP)}, {s(S_STEP)}, 1")
        for c_, n_, p_ in ((S_Z,S_ZN,S_ZP),(S_P,S_PN,S_PP)):
            A(f"s_mov_b32 {s(S_T)}, {s(c_)}"); A(f"s_mov_b32 {s(c_)}, {s(n_)}"); A(f"s_mov_b32 {s(n_)}, {s(p_)}"); A(f"s_mov_b32 {s(p_)}, {s(S_T)}")
        A(f"s_mov_b32 {s(S_T)}, {s(S_L)}"); A(f"s_mov_b32 {s(S_L)}, {s(S_LN)}"); A(f"s_mov_b32 {s(S_LN)}, {s(S_T)}")
        A(f"s_add_u32 {s(S_US)}, {s(S_US)}, {40*32768}")
        if isV: A(f"s_add_u32 {s(S_US2)}, {s(S_US2)}, {40*32768}")
        A(f"s_add_u32 {s(S_EXP)}, {s(S_EXP)}, 327680")
        A(f"s_add_u32 {s(S_ARR)}, {s(S_ARR)}, 128")
        if not isV: A(f"s_add_u32 {s(S_KMX)}, {s(S_KMX)}, {NH*3072}")
        preload(A, E)
    if cls == 0:
        st = 1024
        for w in range(4): E(ds("f", f"ds_read_b128 {v(AF+4*w,4)}, {v(V_FINR)} offset:{w*st}"))
        E.drain()
        for i in range(4): A(f"v_add_f32 {v(AF+i)}, {v(AF+i)}, {v(AF+4+i)}")
        for i in range(4): A(f"v_add_f32 {v(AF+8+i)}, {v(AF+8+i)}, {v(AF+12+i)}")
        for i in range(4): A(f"v_add_f32 {v(AF+i)}, {v(AF+i)}, {v(AF+8+i)}")
        A(f"s_mov_b64 exec, {s(S_MB if isV else S_MA,2)}")
        A(f"buffer_store_dwordx4 {v(AF,4)}, {v(vtw)}, {s(S_WS,4)}, {s(S_RW)} offen sc0 sc1")
        A("s_mov_b64 exec, -1")
        tick(A, 3)
        advance()
        if DELAY0: A(f"s_sleep {DELAY0}")
        A(f"s_mov_b64 exec, {s(S_MB if isV else S_MA,2)}")
        labt = A.newlabel("GT")
        loop_top(A, labt, 13)
        A(f"buffer_load_dwordx4 {v(AF+4,4)}, {v(vtw)}, {s(S_WS,4)}, {s(S_RR)} offen sc1")
        A("s_waitcnt vmcnt(0)")
        for l in maxtree(range(AF+4, AF+8), mt): A(l)
        for i in range(4): A(f"v_add_f32 {v(AF+8+i)}, {v(AF+i)}, {v(AF+4+i)}")
        A(f"v_cmp_eq_u32 vcc, -1, {v(mt)}")
        for i in range(2): A(f"v_cvt_pk_bf16_f32 {v(AF+8+i)}, {v(AF+8+2*i)}, {v(AF+9+2*i)}")
        retry(A, labt, 13)
        dual(A, [f"buffer_store_dwordx2 {v(AF+8,2)}, {v(V_FINRM)}, {s(S_WS,4)}, {s(S_L)} offen",
                 f"buffer_store_dwordx2 {v(V_POI,2)}, {v(V_FINRM)}, {s(S_WS,4)}, {s(S_LN)} offen"])
        A("s_mov_b64 exec, -1")
        if not isV: p_poison(A, S_PN)
        A(f"s_add_u32 {s(S_RR)}, {s(S_RR)}, 40960")
        A(f"s_add_u32 {s(S_RW)}, {s(S_RW)}, 40960")
    else:
        tick(A, 3)
        window(A, E, isV, cls, flags)
        advance()
    A("s_barrier")
    tick(A, 4)
    if (DELAYLV if isV else DELAYL): A(f"s_sleep {DELAYLV if isV else DELAYL}")
    G = AF + 12
    A(f"s_add_u32 {s(S_T)}, {s(S_L)}, 4096")
    A(f"s_add_u32 {s(S_T2)}, {s(S_L)}, {s(S_G3)}")
    A(f"v_mov_b64 {v(G+8,2)}, 0"); A(f"v_mov_b64 {v(G+10,2)}, 0")
    if STAMP == 1: tick(A, 8)
    loop_top(A, lab, 12)
    A(f"buffer_load_dwordx4 {v(G,4)}, {v(V_T7)}, {s(S_WS,4)}, {s(S_L)} offen sc1")
    A(f"buffer_load_dwordx4 {v(G+4,4)}, {v(V_T7)}, {s(S_WS,4)}, {s(S_T)} offen sc1")
    A(f"s_mov_b64 exec, {s(S_M3,2)}")
    A(f"buffer_load_dwordx4 {v(G+8,4)}, {v(V_T7)}, {s(S_WS,4)}, {s(S_T2)} offen sc1")
    return lab

def gatherA2(A, E, lab):
    G = AF + 12; mt = 72
    A("s_waitcnt vmcnt(0)")
    if STAMP == 1: tick(A, 9)
    A("s_mov_b64 exec, -1")
    mtree = maxtree(range(G, G+12), mt)
    E(ds("g", f"ds_write_b128 {v(V_GA)}, {v(G,4)}"))
    for l in mtree: A(l)
    A(f"v_cmp_eq_u32 vcc, -1, {v(mt)}")
    retry(A, lab, 12)
    E(ds("g", f"ds_write_b128 {v(V_GA)}, {v(G+4,4)} offset:4096"))
    A(f"s_mov_b64 exec, {s(S_M3,2)}")
    E(ds("g", f"ds_write_b128 {v(V_G3W)}, {v(G+8,4)}"))
    A("s_mov_b64 exec, -1")
    tick(A, 5)
    E.drain()

S_OLO = 40; S_OHI = 41; S_TGT = 66
def probes(A, isV, ahead):
    A(f"v_cmp_le_u32 vcc, 32, {v(V_FL)}")
    A(f"s_add_u32 {s(S_T)}, {s(S_TGT)}, 1")
    A(f"s_max_u32 {s(S_T)}, {s(S_T)}, {s(S_KNOWN)}")
    A("s_cmp_lg_u64 vcc, 0")
    A(f"s_cselect_b32 {s(S_KNOWN)}, {s(S_T)}, {s(S_KNOWN)}")
    A(f"s_cselect_b32 {s(S_TGT)}, 2, 0")
    u_check(A, ahead)
    if not isV and PL_K != 'B': k_check(A)
    A(f"s_add_u32 {s(S_TGT)}, {s(S_KNOWN)}, {s(S_TGT)}")
    A(f"s_min_u32 {s(S_TGT)}, {s(S_TGT)}, {NSEG-1}")
    A(f"s_lshl_b32 {s(S_T)}, {s(S_TGT)}, 7")
    A(f"s_add_u32 {s(S_T)}, {s(S_T)}, {CN_U}")
    A(f"buffer_load_dword {v(V_FL)}, {v(V_ZERO)}, {s(S_WS,4)}, {s(S_T)} offen sc1")
    if not isV:
        A(f"s_add_u32 {s(S_T)}, {s(S_FLO)}, {FL_K}")
        A(f"buffer_load_dword {v(V_FKS)}, {v(V_ZERO)}, {s(S_WS,4)}, {s(S_T)} offen sc1")

def probes_text(A, isV):
    B = Asm(); B.uid = A.uid + 400000; A.uid += 10
    probes(B, isV, 1)
    return "\n".join(B.lines)
LR = 20; RR_ = 32; UP = list(range(100, 110)) + list(range(112, 120)) + [56, 57, 58, 59, 73, 74]
def ld3_list(dst, sbase, t1, t2):
    return [(dst, f"buffer_load_dwordx4 {v(dst,4)}, {v(V_T7)}, {s(S_WS,4)}, {s(sbase)} offen sc1"),
            (dst+4, f"buffer_load_dwordx4 {v(dst+4,4)}, {v(V_T7)}, {s(S_WS,4)}, {s(t1)} offen sc1"),
            (dst+8, f"buffer_load_dwordx4 {v(dst+8,4)}, {v(V_T7)}, {s(S_WS,4)}, {s(t2)} offen sc1")]
S_A1 = 10; S_A2 = 11; S_B1 = 3; S_B2 = 101
LIST_L = lambda: ld3_list(LR, S_L, S_A1, S_A2)
LIST_R = lambda: ld3_list(RR_, S_RR, S_B1, S_B2)

GSIDE = []
def advance1(A, E, isV, pre=True):
    A(f"s_add_u32 {s(S_STEP)}, {s(S_STEP)}, 1")
    for c_, n_, p_ in ((S_Z,S_ZN,S_ZP),(S_P,S_PN,S_PP)):
        A(f"s_mov_b32 {s(S_T)}, {s(c_)}"); A(f"s_mov_b32 {s(c_)}, {s(n_)}"); A(f"s_mov_b32 {s(n_)}, {s(p_)}"); A(f"s_mov_b32 {s(p_)}, {s(S_T)}")
    A(f"s_mov_b32 {s(S_T)}, {s(S_L)}"); A(f"s_mov_b32 {s(S_L)}, {s(S_LN)}"); A(f"s_mov_b32 {s(S_LN)}, {s(S_T)}")
    A(f"s_add_u32 {s(S_US)}, {s(S_US)}, {40*32768}")
    if isV: A(f"s_add_u32 {s(S_US2)}, {s(S_US2)}, {40*32768}")
    A(f"s_add_u32 {s(S_ARR)}, {s(S_ARR)}, 128")
    if pre: preload(A, E, False)

def side_ops(A, E, isV, cls, flags, where):
    n = 0
    adv = where == 'G'
    if PL_X == where:
        z_export(A, isV, ZF, None); n += 2 if isV else 1
    if isV and PL_P == where:
        zs = S_ZN if adv else S_ZP
        A(f"s_add_u32 {s(S_T2)}, {s(zs)}, {4*8192}")
        dual(A, [f"buffer_store_dwordx4 {v(V_POI,4)}, {v(V_ZS4)}, {s(S_WS,4)}, {s(zs)} offen",
                 f"buffer_store_dwordx4 {v(V_POI,4)}, {v(V_ZS4)}, {s(S_WS,4)}, {s(S_T2)} offen",
                 f"buffer_store_dwordx2 {v(V_POI,2)}, {v(V_ZS2)}, {s(S_WS,4)}, {s(zs)} offen"])
        n += 3
    if cls == 0 and adv and PL_X != 'S':
        A(f"s_mov_b64 exec, {s(S_MB if isV else S_MA,2)}")
        dual(A, [f"buffer_store_dwordx2 {v(V_POI,2)}, {v(V_FINRM)}, {s(S_WS,4)}, {s(S_LN)} offen"])
        A("s_mov_b64 exec, -1")
        n += 1
        if not isV: p_poison(A, S_PN); n += 2
    if cls != 0 and not isV and PL_K == where:
        A(f"s_xor_b32 {s(S_MK)}, {s(S_MK)}, {S_LK ^ (S_LK + 16384)}")
        k_dma(A, cls); n += (6 if cls == 12 else 0) if K2W else 4
    if cls != 0 and not isV and PL_M == where:
        km_export(A, E, 44); n += 1
        A(f"s_add_u32 {s(S_KMX)}, {s(S_KMX)}, {NH*3072}")
    if flags and cls == PROBEW and PL_M == where:
        probes(A, isV, {'T': 2, 'W': 1, 'G': 1}[where]); n += 1 if isV else 2
    return n

def g1_bottom(A, E, isV, cls, flags):
    if cls == 0:
        st = 1024
        for w in range(4): E(ds(f"f{w}", f"ds_read_b128 {v(AF+4*w,4)}, {v(V_FINR)} offset:{w*st}"))
        for w in range(1, 4):
            E(need(f"f{w}"))
            for i in range(4): A(f"v_add_f32 {v(AF+i)}, {v(AF+i)}, {v(AF+4*w+i)}")
        for i in range(2): A(f"v_cvt_pk_bf16_f32 {v(AF+24+i)}, {v(AF+2*i)}, {v(AF+1+2*i)}")
        if TWIN:
            msk = s(S_MB if isV else S_MA, 2)
            A(f"s_mov_b64 exec, {msk}")
            A(f"buffer_store_dwordx2 {v(AF+24,2)}, {v(V_FINRR if isV else V_FINRM)}, {s(S_WS,4)}, {s(S_RW)} offen sc0 sc1")
            A("s_mov_b64 exec, -1")
            tr(A, 5)
            preload(A, E, True)
            if TWD: A(f"s_sleep {TWD}")
            A(f"s_mov_b64 exec, {msk}")
            lt = A.newlabel("GT")
            loop_top(A, lt, 13)
            A(f"buffer_load_dwordx2 {v(AF+4,2)}, {v(V_FINRT if isV else V_FINRM)}, {s(S_WS,4)}, {s(S_RR)} offen sc1")
            A("s_waitcnt vmcnt(0)")
            for j in range(2):
                A(f"v_dot2_f32_bf16 {v(AF+8+2*j)}, {v(AF+4+j)}, {s(S_OLO)}, {v(AF+2*j)}")
                A(f"v_dot2_f32_bf16 {v(AF+9+2*j)}, {v(AF+4+j)}, {s(S_OHI)}, {v(AF+1+2*j)}")
            A(f"v_cmp_eq_u32 vcc, -1, {v(AF+4)}")
            A("s_nop 0")
            for j in range(2): A(f"v_cvt_pk_bf16_f32 {v(AF+24+j)}, {v(AF+8+2*j)}, {v(AF+9+2*j)}")
            retry(A, lt, 13)
            dual(A, [f"buffer_store_dwordx2 {v(AF+24,2)}, {v(V_FINRM)}, {s(S_WS,4)}, {s(S_LN)} offen"])
        elif WIDE:
            A(f"v_mov_b64 {v(AF+26,2)}, {v(AF+24,2)}")
            A("s_nop 1")
            A(f"v_permlane16_swap_b32 {v(AF+24)}, {v(AF+26)}")
            A(f"v_permlane16_swap_b32 {v(AF+25)}, {v(AF+27)}")
            A(f"s_mov_b32 exec_lo, {'0x0000ffff' if isV else '0x000000ff'}")
            A("s_mov_b32 exec_hi, 0x000000ff")
            A(f"buffer_store_dwordx4 {v(AF+24,4)}, {v(V_FINRR if isV else V_FINRM)}, {s(S_WS,4)}, {s(S_RW)} offen sc0 sc1")
            dual(A, [f"buffer_store_dwordx4 {v(AF+24,4)}, {v(V_FINRM)}, {s(S_WS,4)}, {s(S_LN)} offen"])
        else:
            A(f"s_mov_b64 exec, {s(S_MB if isV else S_MA,2)}")
            A(f"buffer_store_dwordx2 {v(AF+24,2)}, {v(V_FINRR if isV else V_FINRM)}, {s(S_WS,4)}, {s(S_RW)} offen sc0 sc1")
            dual(A, [f"buffer_store_dwordx2 {v(AF+24,2)}, {v(V_FINRM)}, {s(S_WS,4)}, {s(S_LN)} offen"])
        A("s_mov_b64 exec, -1")
        if HINTA == 1: hint_store(A, 128, 56)
        if not HINTA: A("s_barrier")
    nw_ = 0
    if (cls != 0 and (not isV or cls == PROBEW)) or (isV and PL_P == 'W'):
        if WDEL and cls != 0: A(f"s_sleep {WDEL}")
        if HINTB == 7 and cls == 3 and XHINT:
            A(f"s_add_u32 {s(S_A1_)}, {s(S_RR)}, {s(S_XR)}"); A("s_mov_b64 exec, 1")
            A(f"buffer_load_dword {v(58)}, {v(V_ZERO)}, {s(S_WS,4)}, {s(S_A1_)} offen sc1"); A("s_mov_b64 exec, -1")
        nw_ = side_ops(A, E, isV, cls, flags, 'W')
    tick(A, 3)
    if not (TWIN and cls == 0): tr(A, 5)
    if HINTA and HINTA != 5 and cls == 3 and (HINTA < 3 or XHINT == 1):
        preload(A, E, False)
        if HINTA >= 3: gate(A, 128, 1, 57, 58, 59, 9, nw_, 0, DELAYH, cross=True)
        else:
            hint_poll(A, 128, 32, 57, 58, 59, 9, cross=XHINT, first=not XHINT)
            if DELAYH: A(f"s_sleep {DELAYH}")
    advance1(A, E, isV, not (HINTA and HINTA != 5 and cls == 3 and (HINTA < 3 or XHINT == 1)) and not TWIN)
    if TWIN and cls != 0: preload(A, E, True)
    for r in (LR+8, LR+10, RR_+8, RR_+10): A(f"v_mov_b64 {v(r,2)}, 0")
    A(f"s_add_u32 {s(S_A1)}, {s(S_L)}, 4096"); A(f"s_add_u32 {s(S_A2)}, {s(S_L)}, {s(S_G3)}")
    mp_init(A, ["-1", "-1", s(S_M3,2)]); mp_init(A, ["-1", "-1", s(S_M3,2)], 3)
    A(f"s_add_u32 {s(S_B1)}, {s(S_RR)}, 4096"); A(f"s_add_u32 {s(S_B2)}, {s(S_RR)}, {s(S_R3)}")
    if cls == 0 and HINTA == 2 and DELAY0: A(f"s_sleep {DELAY0}")
    if cls == 3 and HINTA == 5:
        if XHINT:
            A(f"s_waitcnt vmcnt({nw_})")
            A(f"v_readfirstlane_b32 {s(S_T2)}, {v(58)}")
            if XBLOCK:
                xl = A.newlabel("XL"); xo = A.newlabel("XLo")
                A(f"s_cmp_lt_i32 {s(S_T2)}, {s(S_HN)}")
                A(f"s_cbranch_scc1 {xl}")
                A.label(xo)
                STUBS.append([xl + ":", f"s_add_u32 {s(S_T)}, {s(S_RR)}, {s(S_XR)}", xl + "_l:"] + ([f"s_add_u32 {s(S_TS+9)}, {s(S_TS+9)}, 1"] if STAMP else []) +
                             [f"buffer_load_dword {v(58)}, {v(V_ZERO)}, {s(S_WS,4)}, {s(S_T)} offen sc1",
                              f"s_sub_u32 {s(S_CNT)}, {s(S_CNT)}, 1", f"s_cbranch_scc1 {xl}_d", "s_waitcnt vmcnt(0)",
                              f"v_readfirstlane_b32 {s(S_T2)}, {v(58)}", "s_nop 0", f"s_cmp_lt_i32 {s(S_T2)}, {s(S_HN)}", f"s_cbranch_scc1 {xl}_l", f"s_branch {xo}",
                              xl + "_d:", f"s_mov_b32 {s(S_CNT)}, 0", "s_waitcnt vmcnt(0)", f"s_branch {xo}"])
            else:
                A(f"s_add_u32 {s(S_T)}, {s(S_TD)}, {XLATE}")
                A(f"s_cmp_lt_i32 {s(S_T2)}, {s(S_HN)}")
                A(f"s_cselect_b32 {s(S_T2)}, {s(S_T)}, {s(S_T2)}")
                if STAMP: A(f"s_addc_u32 {s(S_TS+9)}, {s(S_TS+9)}, 0")
            A(f"s_max_i32 {s(S_TD)}, {s(S_TD)}, {s(S_T2)}")
        ts_wait(A, E, S_TD, TA)
        if HINTB == 7: A(f"s_add_u32 {s(S_TD)}, {s(S_TD)}, {TA}")
    if cls == 3 and HINTA == 4:
        lp = A.newlabel("TW"); dn = A.newlabel("TWd")
        if XHINT == 2:
            A(f"s_waitcnt vmcnt({nw_})")
            A(f"v_readfirstlane_b32 {s(S_T)}, {v(58)}")
            A(f"s_cmp_lt_i32 {s(S_T)}, {s(S_HN)}")
            A(f"s_cselect_b32 {s(S_T2)}, {XDELTA}, 0")
            A(f"s_add_u32 {s(S_TD)}, {s(S_TD)}, {s(S_T2)}")
            if STAMP: A(f"s_cmp_lt_i32 {s(S_T)}, {s(S_HN)}"); A(f"s_addc_u32 {s(S_TS+9)}, {s(S_TS+9)}, 0")
        A(f"s_memtime {s(76 if not (TRACE or STAMP) else 92,2)}"); A("s_waitcnt lgkmcnt(0)"); E.reset()
        A(f"s_sub_u32 {s(S_T)}, {s(S_TD)}, {s(76 if not (TRACE or STAMP) else 92)}")
        A(f"s_cmp_gt_i32 {s(S_T)}, 4000"); A(f"s_cselect_b32 {s(S_T)}, 0, {s(S_T)}")
        A.label(lp)
        A(f"s_sub_u32 {s(S_T)}, {s(S_T)}, {TWSTEP}")
        A(f"s_cmp_gt_i32 {s(S_T)}, 0")
        A(f"s_cbranch_scc1 {lp}")
    if cls == 0 and HINTA >= 3 and (DELAY0V if isV else DELAY0): A(f"s_sleep {DELAY0V if isV else DELAY0}")
    if cls != 0 or isV: tr(A, 9)
    if cls != 0 or HINTA: A("s_barrier")
    tick(A, 4)
    d = (DELAYLV if isV else DELAYL) - (2 if cls == 0 and not HINTA else 0)
    if d: A(f"s_sleep {d}")
    if STAMP == 1: tick(A, 8)
    tr(A, 6)

def nside(isV, cls, flags):
    B = Asm(); n0 = len(STUBS)
    n = side_ops(B, Emit(B), isV, cls, flags, 'G')
    del STUBS[n0:]
    return n

def g1_top(A, E, isV, cls, flags):
    mt = 72
    if TWIN:
        lab = A.newlabel("GA")
        loop_top(A, lab, 12)
        mp_issue(A, LIST_L())
        nx = side_ops(A, E, isV, cls, flags, 'G')
        for f in range(3):
            A(f"s_waitcnt vmcnt({2-f+nx})")
            if f == 0: tr(A, 7)
            if f == 2: tr(A, 8); A(f"s_mov_b64 exec, {s(S_M3,2)}")
            E(ds("g", f"ds_write_b128 {v(V_GA if f < 2 else V_G3W)}, {v(LR+4*f,4)} offset:{4096 if f == 1 else 0}"))
        A("s_mov_b64 exec, -1")
        for l in mp_check(LIST_L(), 72): A(l)
        mp_close(A, 3, lab)
        A(f"s_add_u32 {s(S_EXP)}, {s(S_EXP)}, 327680")
        A(f"s_cmp_eq_u32 {s(S_STEP)}, {RPP}")
        A(f"s_cselect_b32 {s(S_T)}, {s(55 if isV else 64)}, {RSTEP}")
        A(f"s_add_u32 {s(S_RR)}, {s(S_RR)}, {s(S_T)}")
        A(f"s_add_u32 {s(S_RW)}, {s(S_RW)}, {s(S_T)}")
        tr(A, 0)
        E.drain()
        return
    unp = []
    for j in range(12):
        unp += [f"v_lshlrev_b32 {v(UP[2*j])}, 16, {v(LR+j)}", f"v_and_b32 {v(UP[2*j+1])}, 0xffff0000, {v(LR+j)}"]
    TM = [60, 61, 62, 63, 64, 65, 66, 67]; OUT = 68
    lab = A.newlabel("GA")
    loop_top(A, lab, 12)
    if LRGAP:
        mp_issue(A, LIST_L())
        A(f"s_sleep {LRGAP}")
        mp_issue(A, LIST_R(), 3)
    else: mp_issue(A, LIST_L() + LIST_R())
    ng = UGV if isV else UGS
    if not UGLATE:
        for l in u_dma_items(isV, 0, ng): A(l)
    nx = side_ops(A, E, isV, cls, flags, 'G')
    if UGLATE:
        for l in u_dma_items(isV, 0, ng): A(l)
    nx += ng
    A(f"s_waitcnt vmcnt({3+nx})")
    tr(A, 7)
    for l in mp_check(LIST_L(), 72) + unp: A(l)
    for f in range(3):
        A(f"s_waitcnt vmcnt({2-f+nx})")
        if f == 2: tr(A, 8)
        A(f"v_max_u32 {v(72)}, {v(RR_+4*f)}, {v(RR_+4*f+2)}")
        for j in range(4):
            A(f"v_dot2_f32_bf16 {v(TM[2*j])}, {v(RR_+4*f+j)}, {s(S_OLO)}, {v(UP[8*f+2*j])}")
            A(f"v_dot2_f32_bf16 {v(TM[2*j+1])}, {v(RR_+4*f+j)}, {s(S_OHI)}, {v(UP[8*f+2*j+1])}")
        A(f"v_cmp_eq_u32 {s(FPS[3+f],2)}, -1, {v(72)}")
        o = OUT if f != 1 else 44
        for j in range(4):
            A(f"v_cvt_pk_bf16_f32 {v(o+j)}, {v(TM[2*j])}, {v(TM[2*j+1])}")
        if f == 2: A(f"s_mov_b64 exec, {s(S_M3,2)}")
        E(ds("g", f"ds_write_b128 {v(V_GA if f < 2 else V_G3W)}, {v(o,4)} offset:{4096 if f == 1 else 0}"))
    A("s_mov_b64 exec, -1")
    if STAMP == 3:
        A(f"s_or_b64 vcc, {s(FPS[0],2)}, {s(FPS[1],2)}"); A(f"s_or_b64 vcc, vcc, {s(FPS[2],2)}"); A(f"s_addc_u32 {s(S_TS+8)}, {s(S_TS+8)}, 0")
        A(f"s_or_b64 vcc, {s(FPS[3],2)}, {s(FPS[4],2)}"); A(f"s_or_b64 vcc, vcc, {s(FPS[5],2)}"); A(f"s_addc_u32 {s(S_TS+13)}, {s(S_TS+13)}, 0")
    mp_close(A, 6, lab)
    for k in range(3):
        for l in zero(ACC+4*k): A(l)
    if PL_X == 'G': A(f"s_add_u32 {s(S_EXP)}, {s(S_EXP)}, 327680")
    A(f"s_cmp_eq_u32 {s(S_STEP)}, {RPP}")
    A(f"s_cselect_b32 {s(S_T)}, {s(55 if isV else 64)}, {RSTEP}")
    A(f"s_add_u32 {s(S_RR)}, {s(S_RR)}, {s(S_T)}")
    A(f"s_add_u32 {s(S_RW)}, {s(S_RW)}, {s(S_T)}")
    tick(A, 5)
    tr(A, 0)
    E.drain()

def stage_side(A, isV, cls):
    if VAR != 1 or PL_X != 'S': return []
    L = [f"s_add_u32 {s(S_T)}, {s(S_EXP)}, {s(S_ZL)}",
         f"buffer_store_dwordx4 {v(ZF,4)}, {v(V_L16)}, {s(S_WS,4)}, {s(S_T)} offen sc0 sc1"]
    if isV:
        L += [f"s_add_u32 {s(S_T)}, {s(S_EXP)}, {s(S_ZL2)}",
              "\n".join([f"s_mov_b64 exec, {s(S_MA,2)}", f"buffer_store_dwordx4 {v(ZF+4,4)}, {v(V_ZH)}, {s(S_WS,4)}, {s(S_T)} offen sc0 sc1", "s_mov_b64 exec, -1"])]
    L += [f"s_mov_b32 {s(S_EXP)}, {s(S_EXN)}", f"s_add_u32 {s(S_EXN)}, {s(S_EXN)}, 327680"]
    T = [[0, 4, L]]
    if cls == 0:
        B = Asm(); B.uid = A.uid + 300000; A.uid += 10
        B(f"s_mov_b64 exec, {s(S_MB if isV else S_MA,2)}")
        dual(B, [f"buffer_store_dwordx2 {v(V_POI,2)}, {v(V_FINRM)}, {s(S_WS,4)}, {s(S_LN)} offen"])
        B("s_mov_b64 exec, -1")
        T.append([8, 12, ["\n".join(B.lines)]])
        if not isV:
            B = Asm(); B.uid = A.uid + 310000; A.uid += 10
            p_poison(B, S_PN)
            T.append([10, 14, ["\n".join(B.lines)]])
    return T

def chain_loop(A, isV, cls, flags):
    E = Emit(A)
    top = A.newlabel("CH_top"); fin = A.newlabel("CH_fin"); ent = A.newlabel("CH_ent"); galab = A.newlabel("GAx")
    preload(A, E); E.drain()
    if TRACE:
        global V_TRC, V_TRA4
        V_TRC, V_TRA4 = (13, 110) if isV else (125, 110)
        A(f"s_lshl_b32 s95, {s(S_GRP)}, 5"); A(f"s_add_u32 s95, s95, {s(S_C)}"); A("s_lshl_b32 s95, s95, 2"); A(f"s_add_u32 s95, s95, {s(S_WAVE)}")
        A("s_lshl_b32 s95, s95, 14"); A(f"s_add_u32 s95, s95, {WS_SCR + 4*1048576}")
        A("s_memrealtime s[88:89]"); A("s_memtime s[70:71]"); A("s_waitcnt lgkmcnt(0)")
    if STAMP:
        A(f"s_memtime {s(88,2)}"); A(f"s_memrealtime {s(92,2)}"); A("s_waitcnt lgkmcnt(0)"); A(f"s_mov_b32 {s(86)}, {s(88)}"); A(f"s_mov_b32 {s(87)}, {s(92)}")
    A(f"s_branch {ent}")
    A.label(top)
    if VAR == 2: gatherA2(A, E, galab)
    else: g1_top(A, E, isV, cls, flags)
    A.label(ent)
    A("s_barrier")
    tick(A, 6)
    if STAMP == 3 and cls == 3:
        A(f"s_memrealtime {s(92,2)}"); A(f"s_lshl_b32 s94, {s(S_STEP)}, 2"); A(f"s_lshl_b32 s95, {s(S_HEAD)}, 8"); A("s_add_u32 s94, s94, s95")
        A(f"s_add_u32 s94, s94, {WS_SCR + 3*1048576 + 65536}"); A("s_waitcnt lgkmcnt(0)"); A(f"v_mov_b32 {v(XS+19)}, s92")
        A(f"buffer_store_dword {v(XS+19)}, {v(V_ZERO)}, {s(S_WS,4)}, s94 offen")
    if STAMP in (1, 3):
        rs = A.newlabel("rs"); rb = A.newlabel("rb")
        A(f"s_cmp_eq_u32 {s(S_STEP)}, 8"); A(f"s_cbranch_scc1 {rs}"); A.label(rb)
        B = Asm(); B.uid = A.uid + 50000
        if not TS3: tstamp(B, 3)
        STUBS.append([rs + ":"] + B.lines + [f"s_memtime {s(88,2)}", f"s_memrealtime {s(92,2)}", "s_waitcnt lgkmcnt(0)", f"s_mov_b32 {s(86)}, {s(88)}", f"s_mov_b32 {s(87)}, {s(92)}"] +
                     [f"s_mov_b32 {s(S_TS+k)}, 0" for k in range(16)] + [f"s_branch {rb}"])
    if STAMP == 2:
        A(f"s_memrealtime {s(88,2)}"); A("s_waitcnt lgkmcnt(0)")
        A(f"s_cmp_eq_u32 {s(S_STEP)}, {TSTEP}"); A(f"s_cselect_b32 {s(S_TS+7)}, {s(88)}, {s(S_TS+7)}")
    if isV: v_stage(A, E, cls, flags)
    else: s_stage(A, E, cls, flags)
    tick(A, 0)
    A(f"s_cmp_eq_u32 {s(S_STEP)}, {NSTEP-1}")
    A(f"s_cbranch_scc1 {fin}")
    if not isV and cls == 3 and HINTB >= 6 and HW3 == 1: ts_hint_store(A, E, 72, True)
    if not isV and cls == 0: s_tail(A, E)
    tick(A, 1)
    reduce_stage(A, E, isV, cls, flags)
    tick(A, 2)
    if VAR == 2: gatherA(A, E, isV, cls, galab, flags)
    else: g1_bottom(A, E, isV, cls, flags)
    A(f"s_branch {top}")
    flush_stubs(A)
    A.label(fin)
    E.reset()
    if STAMP == 3:
        A(f"s_memtime {s(88,2)}"); A(f"s_memrealtime {s(92,2)}"); A("s_waitcnt lgkmcnt(0)")
        A(f"s_sub_u32 {s(S_TS)}, {s(88)}, {s(86)}"); A(f"s_sub_u32 {s(S_TS+1)}, {s(92)}, {s(87)}")
    if isV:
        A(f"s_add_u32 {s(S_T2)}, {s(S_EXP)}, {4*8192}")
        A(f"buffer_store_dwordx4 {v(XS,4)}, {v(V_ZS4)}, {s(S_WS,4)}, {s(S_EXP)} offen sc0 sc1")
        A(f"buffer_store_dwordx4 {v(XS+4,4)}, {v(V_ZS4)}, {s(S_WS,4)}, {s(S_T2)} offen sc0 sc1")
        A(f"buffer_store_dwordx2 {v(XS+8,2)}, {v(V_ZS2)}, {s(S_WS,4)}, {s(S_EXP)} offen sc0 sc1")
    elif cls != 0:
        km_export(A, E, XS)
    A("s_waitcnt vmcnt(0)")
    A("s_barrier")
    if flags and cls == 0:
        A(f"v_mov_b32 v56, 1"); A(f"v_mov_b32 v57, {NSEG}")
        A(f"s_add_u32 {s(S_T)}, {s(S_FLO)}, {FL_KM}")
        A("s_mov_b64 exec, 1")
        if not isV: A(f"buffer_store_dword v57, {v(V_ZERO)}, {s(S_WS,4)}, {s(S_T)} offen sc0 sc1")
        A(f"buffer_atomic_add v56, {v(V_ZERO)}, {s(S_WS,4)}, {s(S_ARR)} offen offset:128 sc1")
        A(f"buffer_atomic_add v56, {v(V_ZERO)}, {s(S_WS,4)}, {s(S_ARR)} offen offset:256 sc1")
        A("s_mov_b64 exec, -1")
    if STAMP:
        A(f"s_lshl_b32 {s(S_T)}, {s(S_GRP)}, 5")
        A(f"s_add_u32 {s(S_T)}, {s(S_T)}, {s(S_C)}")
        A(f"s_lshl_b32 {s(S_T)}, {s(S_T)}, 2")
        A(f"s_add_u32 {s(S_T)}, {s(S_T)}, {s(S_WAVE)}")
        A(f"s_lshl_b32 {s(S_T)}, {s(S_T)}, 6")
        A(f"s_add_u32 {s(S_T)}, {s(S_T)}, {WS_SCR + 1048576}")
        for k in range(16):
            A(f"v_mov_b32 v21, {s(S_TS+k) if k != 14 else s(S_FAST)}")
            A(f"buffer_store_dword v21, {v(V_ZERO)}, {s(S_WS,4)}, {s(S_T)} offen offset:{4*k}")
        A("s_waitcnt vmcnt(0)")

def role_chain(A, isV, end_label, flags=False):
    global CUR_ORD
    CUR_ORD = ORD_V if isV else ORD_S
    A.c("================ role chain %s ================" % ("V" if isV else "S"))
    A(f"s_load_dwordx2 {s(S_W1,2)}, s[0:1], {KA['Wv' if isV else 'Wq']}")
    A(f"s_load_dwordx2 {s(S_W2,2)}, s[0:1], {KA['Wo' if isV else 'Wk']}")
    A(f"s_load_dwordx2 {s(S_X,2)}, s[0:1], {KA['mem0']}")
    A(f"s_and_b32 {s(S_HEAD)}, {s(S_C)}, 15")
    A(f"s_lshl_b32 {s(S_T)}, {s(S_GRP)}, 4")
    A(f"s_add_u32 {s(S_HEAD)}, {s(S_HEAD)}, {s(S_T)}")
    A(f"s_getreg_b32 {s(S_FAST)}, hwreg(HW_REG_XCC_ID, 0, 4)")
    A(f"s_lshl_b32 {s(S_T)}, {s(S_GRP)}, 5")
    A(f"s_add_u32 {s(S_T)}, {s(S_T)}, {s(S_C)}")
    A(f"s_lshl_b32 {s(S_T)}, {s(S_T)}, 2")
    A(f"s_add_u32 {s(S_T2)}, {s(S_T)}, {MB_X}")
    if not flags: publish(A, S_FAST, S_T2)
    A("s_waitcnt lgkmcnt(0)")
    srd_finish(A, S_W1, W_BYTES); srd_finish(A, S_W2, W_BYTES); srd_finish(A, S_X, 10240)
    A(f"s_mul_i32 s66, {s(S_HEAD)}, 384")
    def hook(c1, c2):
        def f(c):
            if not flags: return
            if c == c1: init_load(A, 124, 125)
            if c == c2:
                init_wait(A, 124, 125)
                publish(A, S_FAST, S_T2, vt=126)
        return f
    if not isV:
        load_w_rows384(A, [S_W1, S_W2], 66, lambda c, kk, t, half: wdest(((c//10)*3+t)*10 + c%10, 2*kk+half), rowmap="sparse", vt=116, after_read=hook(8, 14))
    else:
        load_w_rows384(A, [S_W1], 66, lambda c, kk, t, half: wdest(t*10 + c, 2*kk+half), rowmap="sparse", vt=116, after_read=hook(8, -1))
        A(f"s_mul_i32 s66, {s(S_HEAD)}, 245760")
        load_wo(A, S_W2, 66, lambda c, t, half: wdest(30 + 3*t + c//2, 2*(c&1)+half), sparse=True, vt=116, after_read=hook(-1, 1))
    A(f"s_mul_i32 {s(S_T)}, {s(S_WAVE)}, 24576")
    A(f"v_lshl_add_u32 {v(V_WL)}, {v(V_LANE)}, 4, {s(S_T)}")
    for j in range(12):
        A(f"ds_write_b128 {v(V_WL)}, {v(AF+8*j,4)} offset:{j*2048}")
        A(f"ds_write_b128 {v(V_WL)}, {v(AF+8*j+4,4)} offset:{j*2048+1024}")
    A("s_waitcnt lgkmcnt(0)")
    tstamp(A, 2)
    dstamp(A, 5, 0); dstamp(A, 6, 128)
    if flags and NUMA:
        A("v_mov_b32 v118, 0"); A(f"global_load_dwordx2 v[118:119], v118, {s(S_DBG,2)} offset:4 sc1")
    setup_common(A, isV)
    A(f"v_and_b32 v20, 31, {v(V_LANE)}")
    A(f"v_lshlrev_b32 v20, 2, v20")
    A(f"s_lshl_b32 {s(S_T)}, {s(S_GRP)}, 7")
    A(f"s_add_u32 {s(S_T)}, {s(S_T)}, {MB_X}")
    lab = A.newlabel("XH")
    loop_top(A, lab)
    A(f"buffer_load_dword v21, v20, {s(S_WS,4)}, {s(S_T)} offen sc1")
    A("s_waitcnt vmcnt(0)")
    A("v_cmp_eq_u32 vcc, -1, v21")
    retry(A, lab)
    jx = A.newlabel("XJ"); A(f"s_branch {jx}"); flush_stubs(A); A.label(jx)
    A(f"v_cmp_ne_u32 vcc, {s(S_FAST)}, v21")
    A("s_cmp_eq_u64 vcc, 0")
    A(f"s_cselect_b32 {s(S_FAST)}, 1, 0")
    if flags and NUMA:
        A(f"s_mov_b32 {s(S_T)}, {MB_X}")
        lab = A.newlabel("XN")
        loop_top(A, lab)
        A(f"buffer_load_dword v21, {v(V_ZERO)}, {s(S_WS,4)}, {s(S_T)} offen sc1")
        A("s_waitcnt vmcnt(0)")
        A("v_cmp_eq_u32 vcc, -1, v21")
        retry(A, lab)
        jx = A.newlabel("XJ"); A(f"s_branch {jx}"); flush_stubs(A); A.label(jx)
        A(f"v_readfirstlane_b32 {s(S_T3)}, v21"); A(f"v_readfirstlane_b32 {s(S_T)}, v118"); A(f"v_readfirstlane_b32 {s(S_T2)}, v119")
        A(f"s_bfe_u32 {s(S_T3)}, {s(S_T3)}, 0x10002")
        A(f"s_xor_b32 {s(S_T)}, {s(S_T)}, {s(S_T3)}"); A(f"s_xor_b32 {s(S_T2)}, {s(S_T2)}, {s(S_T3)}")
        A(f"s_and_b32 {s(S_T)}, {s(S_T)}, 1"); A(f"s_lshl_b32 {s(S_T)}, {s(S_T)}, 13")
        A(f"s_and_b32 {s(S_T2)}, {s(S_T2)}, 1"); A(f"s_lshl_b32 {s(S_T2)}, {s(S_T2)}, 13")
        A(f"s_add_u32 {s(S_RR)}, {s(S_RR)}, {s(S_T)}"); A(f"s_add_u32 {s(S_RW)}, {s(S_RW)}, {s(S_T)}")
        A(f"s_sub_u32 {s(S_T2)}, {s(S_T2)}, {s(S_T)}")
    else: A(f"s_mov_b32 {s(S_T2)}, 0")
    A(f"s_add_u32 {s(55 if isV else 64)}, {s(S_T2)}, {(2<<20) - (RPP-1)*RSTEP}")
    if TS3 == 1: tstamp(A, 3)
    A(f"v_bfe_u32 v20, {v(V_LANE)}, 1, 3")
    A(f"v_mul_u32_u24 v20, 1280, v20")
    A(f"v_lshrrev_b32 v21, 4, {v(V_LANE)}")
    A(f"v_lshl_add_u32 v20, v21, 5, v20")
    A(f"v_and_b32 v21, 1, {v(V_LANE)}")
    A(f"v_lshl_add_u32 v20, v21, 4, v20")
    A(f"s_lshl_b32 {s(S_T)}, {s(S_WAVE)}, 7")
    A(f"s_lshl_b32 {s(S_T2)}, {s(S_WAVE)}, 10")
    for j in range(3):
        sk = A.newlabel("m0s")
        if j == 2:
            A(f"s_cmp_ge_u32 {s(S_WAVE)}, 2"); A(f"s_cbranch_scc1 {sk}")
        A(f"s_add_u32 m0, {s(S_T2)}, {L_MEM + j*4096 - j*512}")
        A("s_nop 0")
        A(f"buffer_load_dwordx4 v20, {s(S_X,4)}, {s(S_T)} offen offset:{j*512} lds")
        if j == 2: A.label(sk)
    if not isV:
        sk = A.newlabel("k0s")
        A(f"s_cmp_eq_u32 {s(S_WAVE)}, 0"); A(f"s_cbranch_scc1 {sk}")
        if K2W:
            A(f"s_cmp_eq_u32 {s(S_WAVE)}, 3"); A(f"s_cselect_b32 {s(S_KN)}, 3, {s(S_KN)}"); A(f"s_cbranch_scc1 {sk}")
        if flags: k_check(A)
        k_dma(A)
        if flags and PL_K != 'B': k_check(A)
        if VAR == 1 and PL_K not in 'SB':
            A(f"s_xor_b32 {s(S_MK)}, {s(S_MK)}, {S_LK ^ (S_LK + 16384)}")
            k_dma(A)
            if flags: k_check(A)
        A.label(sk)
    if TS3 == 2: A("s_barrier"); tstamp(A, 3)
    if TLBW:
        A(f"v_lshlrev_b32 v28, 21, {v(V_LANE)}")
        A(f"s_mov_b32 {s(S_T)}, {TLBO}")
        A(f"buffer_load_dword v29, v28, {s(S_WS,4)}, {s(S_T)} offen")
        A(f"s_mov_b32 {s(S_T)}, {(128<<20) + TLBO}")
        A("s_mov_b64 exec, 0xffffffff")
        A(f"buffer_load_dword v29, v28, {s(S_WS,4)}, {s(S_T)} offen")
        A("s_mov_b64 exec, -1")
    for zs, ps in ((S_Z, S_P), (S_ZN, S_PN), (S_ZP, S_PP)):
        A(f"s_add_u32 {s(S_T)}, {s(zs)}, {s(S_ZL)}")
        A(f"buffer_load_dwordx4 v[24:27], {v(V_L16)}, {s(S_WS,4)}, {s(S_T)} offen sc1")
        if isV:
            A(f"s_add_u32 {s(S_T)}, {s(zs)}, {s(S_ZL2)}")
            A(f"buffer_load_dwordx4 v[24:27], {v(V_ZH)}, {s(S_WS,4)}, {s(S_T)} offen sc1")
        A(f"s_add_u32 {s(S_T)}, {s(ps)}, {s(S_PLX)}")
        A(f"buffer_load_dwordx4 v[24:27], {v(V_L16)}, {s(S_WS,4)}, {s(S_T)} offen sc1")
        A(f"buffer_load_dwordx4 v[24:27], {v(V_L16)}, {s(S_WS,4)}, {s(S_T)} offen offset:1024 sc1")
        A(f"s_add_u32 {s(S_T)}, {s(ps)}, {s(S_PLM)}")
        A(f"buffer_load_dwordx4 v[24:27], {v(V_PLD)}, {s(S_WS,4)}, {s(S_T)} offen sc1")
    for ls in (S_L, S_LN):
        for o in (0, 4096, 6144):
            A(f"s_add_u32 {s(S_T)}, {s(ls)}, {o}")
            A(f"buffer_load_dwordx4 v[24:27], {v(V_T7)}, {s(S_WS,4)}, {s(S_T)} offen sc1")
    if TS3 == 3: A("s_waitcnt vmcnt(0)"); tstamp(A, 3)
    if flags: u_check(A, 0)
    for l in u_dma_items(isV, 0, UGV if isV else UGS): A(l)
    if TS3 == 4: tstamp(A, 3)
    if flags and PL_M == 'W':
        A(f"s_mov_b32 {s(S_TGT)}, 1"); A(f"s_mov_b32 {s(S_T)}, {CN_U + 128}")
        A(f"buffer_load_dword {v(V_FL)}, {v(V_ZERO)}, {s(S_WS,4)}, {s(S_T)} offen sc1")
    if flags and PL_M != 'W': u_check(A, 1)
    A("s_waitcnt vmcnt(0)")
    jx = A.newlabel("XJ"); A(f"s_branch {jx}"); flush_stubs(A); A.label(jx)
    A("s_barrier")
    dstamp(A, 7, 0)
    classes = [0, 12, 3]
    labs = {c: A.newlabel("CLS") for c in classes}
    A(f"s_cmp_eq_u32 {s(S_WAVE)}, 0")
    A(f"s_cbranch_scc1 {labs[0]}")
    A(f"s_cmp_eq_u32 {s(S_WAVE)}, 3")
    A(f"s_cbranch_scc1 {labs[3]}")
    for c in [12, 3, 0]:
        A.label(labs[c])
        chain_loop(A, isV, c, flags)
        A(f"s_branch {end_label}")
```

```python
from common import *
V_L16 = 2; V_OST = 3; V_Z = 4; V_FA = 5; V_FU = 6; V_FP = 7; V_P2 = 8
PF = 12
ZF = 44
D = 76
S_ID = 22; S_SEGC = 23; S_CB = 24; S_T = 26; S_T2 = 27; S_NEED = 28; S_CNT = 29; S_US = 30; S_PS = 31; S_ZS = 32; S_OS = 33; S_M0 = 34; S_FB = 35; S_STR = 36
NTASK = 640
OUTF = 'nt'
WARM = 1

def lanes_wait(A, vfl, s_need):
    pass

def wait_cnt(A, base, need, s_known, sleep=6):
    sk = A.newlabel("F_kn")
    A(f"s_cmp_lt_u32 {s(S_SEGC)}, {s(s_known)}"); A(f"s_cbranch_scc1 {sk}")
    A(f"s_lshl_b32 {s(S_FB)}, {s(S_SEGC)}, 7")
    A(f"s_add_u32 {s(S_FB)}, {s(S_FB)}, {base}")
    A(f"s_mov_b32 {s(S_NEED)}, {need}")
    A(f"v_mov_b32 {v(V_FU)}, 0")
    flag_wait(A, V_FU, V_Z, S_FB, S_NEED, S_T, S_CNT, sleep=sleep)
    A(f"s_add_u32 {s(s_known)}, {s(S_SEGC)}, 1")
    A.label(sk)

def decode(A, s_id):
    A(f"s_mul_i32 {s(S_SEGC)}, {s(s_id)}, 6554")
    A(f"s_lshr_b32 {s(S_SEGC)}, {s(S_SEGC)}, 16")
    A(f"s_mul_i32 {s(S_T)}, {s(S_SEGC)}, 10")
    A(f"s_sub_u32 {s(S_CB)}, {s(s_id)}, {s(S_T)}")
    A(f"s_lshl_b32 {s(S_CB)}, {s(S_CB)}, 2")
    A(f"s_add_u32 {s(S_CB)}, {s(S_CB)}, {s(S_WAVE)}")

def issue_u(A, base, flags):
    decode(A, S_T2)
    if flags: wait_cnt(A, CN_U, 32, 37)
    A(f"s_mul_i32 {s(S_US)}, {s(S_SEGC)}, {40*32768}")
    A(f"s_lshl_b32 {s(S_T)}, {s(S_CB)}, 10")
    A(f"s_add_u32 {s(S_US)}, {s(S_US)}, {s(S_T)}")
    A(f"s_add_u32 {s(S_US)}, {s(S_US)}, {WS_U}")
    for h in range(32):
        if h: A(f"s_add_u32 {s(S_US)}, {s(S_US)}, 40960")
        A(f"buffer_load_dwordx4 {a(base+4*h,4)}, {v(V_L16)}, {s(S_WS,4)}, {s(S_US)} offen sc1")

def warm(A):
    A(f"s_load_dwordx2 {s(S_X,2)}, s[0:1], {KA['A_x']}")
    A(f"s_load_dwordx2 {s(S_W1,2)}, s[0:1], {KA['B_x']}")
    A(f"s_sub_u32 {s(S_T)}, {s(S_ID)}, 2")
    A(f"s_lshl_b32 {s(S_T)}, {s(S_T)}, 2")
    A(f"s_add_u32 {s(S_T)}, {s(S_T)}, {s(S_WAVE)}")
    A(f"s_lshl_b32 {s(S_T)}, {s(S_T)}, 13")
    A(f"v_lshlrev_b32 {v(PF+16)}, 7, {v(V_LANE)}")
    A("s_waitcnt lgkmcnt(0)")
    srd_finish(A, S_X, X_BYTES); srd_finish(A, S_W1, X_BYTES)
    for j in range(3 if WARM == 1 else 1):
        A(f"buffer_load_dword {v(PF+17)}, {v(PF+16)}, {s(S_X,4)}, {s(S_T)} offen")
        if WARM == 1: A(f"buffer_load_dword {v(PF+18)}, {v(PF+16)}, {s(S_W1,4)}, {s(S_T)} offen")
        A(f"s_add_u32 {s(S_T)}, {s(S_T)}, {NF*4*8192}")

NUMA = 1
PDBG = 0
def probe(A):
    sk = A.newlabel("F_np")
    A(f"s_lshr_b32 {s(S_T)}, {s(S_ID)}, 1"); A(f"s_or_b32 {s(S_T)}, {s(S_T)}, {s(S_WAVE)}"); A(f"s_cbranch_scc1 {sk}")
    A(f"s_lshl_b32 {s(S_T)}, {s(S_ID)}, 21")
    for j in range(8): A(f"s_add_u32 s{44+j}, {s(S_T)}, {MB_R + RPP*RSTEP + j*4096}")
    A("s_mov_b64 exec, 0xffff")
    for j in range(8): A(f"buffer_store_dwordx4 {v(PF,4)}, {v(V_L16)}, {s(S_WS,4)}, s{44+j} offen sc0 sc1")
    A("s_mov_b64 exec, 1")
    A("s_waitcnt vmcnt(0)")
    A(f"s_mov_b32 {s(S_US)}, -1"); A(f"s_mov_b32 {s(S_PS)}, -1")
    for i in range(16):
        j = [0, 2, 1, 3, 4, 6, 5, 7][i & 7]
        acc = S_PS if j & 2 else S_US
        A("s_memtime s[40:41]"); A("s_waitcnt lgkmcnt(0)")
        A(f"buffer_load_dword {v(PF+13)}, {v(V_Z)}, {s(S_WS,4)}, s{44+j} offen offset:{(i>>3)*128} sc1")
        A("s_waitcnt vmcnt(0)")
        A("s_memtime s[42:43]"); A("s_waitcnt lgkmcnt(0)")
        A("s_sub_u32 s42, s42, s40"); A(f"s_min_u32 {s(acc)}, {s(acc)}, s42")
    A(f"s_getreg_b32 {s(S_T2)}, hwreg(HW_REG_XCC_ID, 2, 1)")
    A(f"s_cmp_gt_u32 {s(S_US)}, {s(S_PS)}")
    A(f"s_cselect_b32 {s(S_T)}, 1, 0")
    A(f"s_xor_b32 {s(S_T)}, {s(S_T)}, {s(S_T2)}")
    A(f"v_mov_b32 {v(PF+12)}, {s(S_T)}")
    A(f"s_lshl_b32 {s(S_T)}, {s(S_ID)}, 2"); A(f"v_mov_b32 {v(PF+13)}, {s(S_T)}")
    A(f"global_store_dword {v(PF+13)}, {v(PF+12)}, {s(S_DBG,2)} offset:4 sc0 sc1")
    if PDBG:
        A(f"v_mov_b32 {v(PF+14)}, {s(S_US)}"); A(f"v_mov_b32 {v(PF+15)}, {s(S_PS)}")
        A(f"global_store_dwordx2 {v(V_Z)}, {v(PF+14,2)}, {s(S_DBG,2)} offset:16")
    A("s_mov_b64 exec, -1")
    A("s_waitcnt vmcnt(0)")
    A.label(sk)

def self_init(A):
    npg = (POISON_END - WS_MB + 4095)//4096
    for i in range(4): A(f"v_mov_b32 {v(PF+i)}, -1")
    A(f"s_lshl_b32 {s(S_T)}, {s(S_WAVE)}, 10")
    A(f"v_add_u32 {v(PF+4)}, {s(S_T)}, {v(V_L16)}")
    skp = A.newlabel("F_skip")
    A(f"s_sub_u32 {s(S_OS)}, {s(S_ID)}, 2")
    A(f"s_cbranch_scc1 {skp}")
    A(f"s_lshl_b32 {s(S_T)}, {s(S_OS)}, 12")
    A(f"s_add_u32 {s(S_T)}, {s(S_T)}, {WS_MB}")
    lp = A.newlabel("F_po")
    A.label(lp)
    A(f"buffer_store_dwordx4 {v(PF,4)}, {v(PF+4)}, {s(S_WS,4)}, {s(S_T)} offen sc0 sc1")
    A(f"s_add_u32 {s(S_T)}, {s(S_T)}, {(NF-2)*4096}")
    A(f"s_cmp_lt_u32 {s(S_T)}, {POISON_END}")
    A(f"s_cbranch_scc1 {lp}")
    lp = A.newlabel("F_pr")
    A(f"s_mov_b32 {s(S_T2)}, {s(S_OS)}")
    A.label(lp)
    A(f"s_mul_i32 {s(S_US)}, {s(S_T2)}, 6554"); A(f"s_lshr_b32 {s(S_US)}, {s(S_US)}, 16")
    A(f"s_mul_i32 {s(S_PS)}, {s(S_US)}, 10"); A(f"s_sub_u32 {s(S_PS)}, {s(S_T2)}, {s(S_PS)}")
    A(f"s_cmp_eq_u32 {s(S_PS)}, 9"); A(f"s_cselect_b32 {s(S_PS)}, 10, {s(S_PS)}")
    A(f"s_lshl_b32 {s(S_PS)}, {s(S_PS)}, 12")
    A(f"s_mul_i32 {s(S_T)}, {s(S_US)}, {RSTEP}")
    A(f"s_cmp_ge_u32 {s(S_US)}, {RPP}"); A(f"s_cselect_b32 {s(S_US)}, {(2<<20) - RPP*RSTEP}, 0")
    A(f"s_add_u32 {s(S_T)}, {s(S_T)}, {s(S_US)}"); A(f"s_add_u32 {s(S_T)}, {s(S_T)}, {s(S_PS)}"); A(f"s_add_u32 {s(S_T)}, {s(S_T)}, {MB_R}")
    A(f"buffer_store_dwordx4 {v(PF,4)}, {v(PF+4)}, {s(S_WS,4)}, {s(S_T)} offen sc0 sc1")
    A(f"s_cmp_ge_u32 {s(S_PS)}, {8<<12}"); A("s_cselect_b32 exec_lo, 0xffff, 0"); A("s_mov_b32 exec_hi, 0")
    A(f"s_add_u32 {s(S_T)}, {s(S_T)}, 4096")
    A(f"buffer_store_dwordx4 {v(PF,4)}, {v(V_L16)}, {s(S_WS,4)}, {s(S_T)} offen sc0 sc1")
    A("s_mov_b64 exec, -1")
    A(f"s_add_u32 {s(S_T2)}, {s(S_T2)}, {NF-2}")
    A(f"s_cmp_lt_u32 {s(S_T2)}, 630")
    A(f"s_cbranch_scc1 {lp}")
    sk = A.newlabel("F_nz")
    A(f"s_cmp_ge_u32 {s(S_OS)}, {(FLAGS_END-FLAGS)//4096}"); A(f"s_cbranch_scc1 {sk}")
    for i in range(4): A(f"v_mov_b32 {v(PF+8+i)}, 0")
    A(f"s_lshl_b32 {s(S_T)}, {s(S_OS)}, 12")
    A(f"s_add_u32 {s(S_T)}, {s(S_T)}, {FLAGS}")
    A(f"buffer_store_dwordx4 {v(PF+8,4)}, {v(PF+4)}, {s(S_WS,4)}, {s(S_T)} offen sc0 sc1")
    A.label(sk)
    A.label(skp)
    A("s_waitcnt vmcnt(0)")
    if NUMA: probe(A)
    A("s_barrier")
    sk = A.newlabel("F_na")
    A(f"s_cmp_lg_u32 {s(S_WAVE)}, 0"); A(f"s_cbranch_scc1 {sk}")
    A(f"v_mov_b32 {v(PF)}, 1")
    A("s_mov_b64 exec, 1")
    A(f"global_atomic_add {v(V_Z)}, {v(PF)}, {s(S_DBG,2)} sc1")
    A("s_mov_b64 exec, -1")
    A.label(sk)
    init_sync(A, PF+5, PF+6)
    assert POISON_END % 4096 == 0 and FLAGS == POISON_END

def role_f(A, flags=False):
    A.c("================ role F ================")
    A(f"s_load_dwordx2 {s(S_W2,2)}, s[0:1], {KA['out']}")
    A(f"v_lshlrev_b32 {v(V_L16)}, 4, {v(V_LANE)}")
    A(f"v_add_u32 {v(V_P2)}, 40960, {v(V_L16)}")
    A(f"v_and_b32 v9, 31, {v(V_LANE)}")
    A(f"v_mul_u32_u24 v9, 2560, v9")
    A(f"v_lshrrev_b32 v10, 5, {v(V_LANE)}")
    A(f"v_lshl_add_u32 {v(V_OST)}, v10, 4, v9")
    A(f"v_mov_b32 {v(V_Z)}, 0")
    A("s_mov_b32 s37, 0"); A("s_mov_b32 s38, 0"); A("s_mov_b32 s39, 0")
    A(f"s_mul_i32 {s(S_M0)}, {s(S_WAVE)}, 20480")
    A("s_waitcnt lgkmcnt(0)")
    srd_finish(A, S_W2, 2048*1280*2)
    if flags and WARM:
        sw = A.newlabel('F_nw'); A(f's_cmp_lt_u32 {s(S_ID)}, 2'); A(f's_cbranch_scc1 {sw}'); warm(A); A.label(sw)
    if flags: self_init(A)
    A(f"s_mov_b32 {s(S_T2)}, {s(S_ID)}")
    issue_u(A, 0, flags)
    loop = A.newlabel("F_loop"); done = A.newlabel("F_done")
    A.label(loop)
    for par in range(2):
        A(f"s_mov_b32 {s(S_T2)}, {s(S_ID)}")
        decode(A, S_T2)
        A(f"s_mul_i32 {s(S_PS)}, {s(S_SEGC)}, 81920")
        A(f"s_add_u32 {s(S_PS)}, {s(S_PS)}, {s(S_M0)}")
        A(f"s_add_u32 {s(S_PS)}, {s(S_PS)}, {WS_P}")
        A(f"s_mul_i32 {s(S_ZS)}, {s(S_SEGC)}, 327680")
        A(f"s_lshl_b32 {s(S_T)}, {s(S_CB)}, 13")
        A(f"s_add_u32 {s(S_ZS)}, {s(S_ZS)}, {s(S_T)}")
        A(f"s_add_u32 {s(S_ZS)}, {s(S_ZS)}, {WS_Z}")
        A(f"s_mul_i32 {s(S_OS)}, {s(S_SEGC)}, {32*2560}")
        A(f"s_lshl_b32 {s(S_T)}, {s(S_CB)}, 5")
        A(f"s_add_u32 {s(S_OS)}, {s(S_OS)}, {s(S_T)}")
        if flags:
            wait_cnt(A, RD_Q, 1, 38, sleep=3)
            A(f"s_lshl_b32 {s(S_FB)}, {s(S_SEGC)}, 7"); A(f"s_add_u32 {s(S_FB)}, {s(S_FB)}, {CN_Z}")
            flag_load(A, V_FP, V_Z, S_FB)
        A("s_barrier")
        for j in range(20):
            if j % 4 == 0:
                A(f"s_add_u32 m0, {s(S_M0)}, {j*1024}")
                A(f"s_add_u32 {s(S_T)}, {s(S_PS)}, {j*1024}")
            A(f"buffer_load_dwordx4 {v(V_L16)}, {s(S_WS,4)}, {s(S_T)} offen offset:{(j%4)*1024} sc1 lds")
        if flags:
            A("s_waitcnt vmcnt(20)")
            A(f"s_mov_b32 {s(S_NEED)}, 64")
            flag_wait(A, V_FP, V_Z, S_FB, S_NEED, S_T, S_CNT, sleep=3)
        for j in range(8):
            if j == 4: A(f"s_add_u32 {s(S_ZS)}, {s(S_ZS)}, 4096")
            A(f"buffer_load_dwordx4 {v(ZF+4*j,4)}, {v(V_L16)}, {s(S_WS,4)}, {s(S_ZS)} offen offset:{(j%4)*1024} sc1")
        A(f"s_add_u32 {s(S_T2)}, {s(S_ID)}, {s(S_STR)}")
        A(f"s_min_u32 {s(S_T2)}, {s(S_T2)}, {NTASK-1}")
        if flags:
            pass
        issue_u(A, 128*(1-par), flags)
        A("s_waitcnt vmcnt(32)")
        A("s_barrier")
        def rd(j):
            sl = j % 4
            A(f"ds_read_b128 {v(PF+sl*8,4)}, {v(V_L16)} offset:{j*1024}")
            A(f"ds_read_b128 {v(PF+sl*8+4,4)}, {v(V_P2)} offset:{j*1024}")
        for j in range(3): rd(j)
        for j in range(40):
            if j+3 < 40:
                rd(j+3); A("s_waitcnt lgkmcnt(6)")
            else: A(f"s_waitcnt lgkmcnt({2*(39-j)})")
            a_ = a(128*par+4*j,4) if j < 32 else v(ZF+4*(j-32),4)
            for q in range(2):
                A(f"v_mfma_f32_16x16x32_bf16 {v(D+4*q,4)}, {a_}, {v(PF+(j%4)*8+4*q,4)}, {'0' if j==0 else v(D+4*q,4)}")
        A("s_nop 7")
        A(f"v_cvt_pk_bf16_f32 {v(D+8)}, {v(D)}, {v(D+1)}")
        A(f"v_cvt_pk_bf16_f32 {v(D+9)}, {v(D+2)}, {v(D+3)}")
        A(f"v_cvt_pk_bf16_f32 {v(D+10)}, {v(D+4)}, {v(D+5)}")
        A(f"v_cvt_pk_bf16_f32 {v(D+11)}, {v(D+6)}, {v(D+7)}")
        A("s_nop 1")
        A(f"v_permlane16_swap_b32 {v(D+8)}, {v(D+10)}")
        A(f"v_permlane16_swap_b32 {v(D+9)}, {v(D+11)}")
        A(f"buffer_store_dwordx4 {v(D+8,4)}, {v(V_OST)}, {s(S_W2,4)}, {s(S_OS)} offen {OUTF}")
        A(f"s_add_u32 {s(S_ID)}, {s(S_ID)}, {s(S_STR)}")
        A(f"s_cmp_ge_u32 {s(S_ID)}, {NTASK}")
        A(f"s_cbranch_scc1 {done}")
    A(f"s_branch {loop}")
    A.label(done)
    A("s_waitcnt vmcnt(0)")
```

```python
from common import *
import common
STAMP=False
EXP=2
NSLOT=6
KLATE=0
LEAD=0
EARLY=4

def load_w_rows384(A, srds, s_colbyte, dest_of, rowmap="dense", tiles=None, pfx="lw", vt=200, st=40, after_read=None):
    NS = NSLOT; CH = 24576
    if isinstance(srds, int): srds = [srds]
    nchunk = 10*len(srds)
    vo = [vt, vt+1, vt+2]; vb0 = vt+3; vb1 = vt+4; t0 = vt+5; t1 = vt+6; t2 = vt+7
    sOff = st; sT = st+1; sM = st+2
    A.c("---- weight load: DMA source offsets")
    for j in range(3):
        A(f"v_add_u32 {v(t0)}, {64*j}, {v(V_LANE)}")
        div24(A, t1, t2, t0, sT)
        A(f"v_mul_u32_u24 {v(t1)}, 12288, {v(t1)}")
        A(f"v_lshl_add_u32 {v(vo[j])}, {v(t2)}, 4, {v(t1)}")
    A(f"s_mul_i32 {s(sT)}, {s(S_WAVE)}, {16*12288}")
    A(f"s_add_u32 {s(sOff)}, {s(s_colbyte)}, {s(sT)}")
    A(f"s_mul_i32 {s(sM)}, {s(S_WAVE)}, 6144")
    A(f"v_lshrrev_b32 {v(t0)}, 4, {v(V_LANE)}")
    A(f"v_bfe_u32 {v(t1)}, {v(V_LANE)}, 2, 2")
    if rowmap == "dense":
        A(f"v_lshl_add_u32 {v(t0)}, {v(t0)}, 3, {v(t1)}")
    else:
        A(f"v_lshrrev_b32 {v(t2)}, 1, {v(t0)}")
        A(f"v_and_b32 {v(t0)}, 1, {v(t0)}")
        A(f"v_lshlrev_b32 {v(t0)}, 2, {v(t0)}")
        A(f"v_lshl_add_u32 {v(t0)}, {v(t2)}, 4, {v(t0)}")
        A(f"v_lshrrev_b32 {v(t2)}, 1, {v(t1)}")
        A(f"v_lshl_add_u32 {v(t0)}, {v(t2)}, 3, {v(t0)}")
        A(f"v_and_b32 {v(t1)}, 1, {v(t1)}")
        A(f"v_add_u32 {v(t0)}, {v(t0)}, {v(t1)}")
    A(f"v_mul_u32_u24 {v(t0)}, 384, {v(t0)}")
    A(f"v_and_b32 {v(t1)}, 3, {v(V_LANE)}")
    A(f"v_lshl_add_u32 {v(t0)}, {v(t1)}, 3, {v(t0)}")
    A(f"s_mul_i32 {s(sT)}, {s(S_WAVE)}, 96")
    A(f"v_add_u32 {v(vb0)}, {s(sT)}, {v(t0)}")
    A(f"v_add_u32 {v(vb1)}, {2*CH+CH}, {v(vb0)}")
    def issue(c):
        slot = c % NS
        for j in range(6):
            A(f"s_add_u32 m0, {s(sM)}, {slot*CH + j*1024}")
            A(f"s_add_u32 {s(sT)}, {s(sOff)}, {(c%10)*64*12288 + (j//3)*8*12288}")
            A(f"buffer_load_dwordx4 {v(vo[j%3])}, {s(srds[c//10],4)}, {s(sT)} offen {common.WFL} lds")
    for c in range(min(NS-1, nchunk)):
        issue(c)
    for c in range(nchunk):
        later = min(nchunk-1, c+NS-2) - c
        A(f"s_waitcnt vmcnt({6*later})")
        A("s_barrier")
        if c+NS-1 < nchunk:
            issue(c+NS-1)
        slot = c % NS
        vb = vb0 if slot < 3 else vb1
        sb = (slot if slot < 3 else slot-3)*CH
        n = 0
        for kk in range(2):
            for t in range(3):
                for half in range(2):
                    if rowmap == "dense":
                        off = kk*32*384 + half*4*384 + t*32
                    else:
                        off = kk*32*384 + half*2*384 + t*32
                    A(f"ds_read_b64_tr_b16 {dest_of(c,kk,t,half)}, {v(vb)} offset:{sb+off}")
                    n += 1
        A("s_waitcnt lgkmcnt(0)")
        if after_read: after_read(c)
    A("s_barrier")

XF = 8
ACC = 32
PK = 80
V_XSRC = 2; V_XRD = 3; V_ST0 = 4; V_ST1 = 5
S_SEG = 22; S_XOFF = 23; S_DST = 24; S_M0X = 25; S_T = 26; S_FLAG = 27; S_NSEG = 28

def wreg(t, k):
    return (t*20 + k)*4

def setup_x_stream(A):
    A(f"v_lshrrev_b32 v6, 3, {v(V_LANE)}")
    A(f"s_and_b32 {s(S_T)}, {s(S_WAVE)}, 1")
    A(f"s_lshl_b32 {s(S_T)}, {s(S_T)}, 2")
    A(f"v_lshrrev_b32 v7, 4, {v(V_LANE)}")
    A(f"v_add_u32 v7, {s(S_T)}, v7")
    A(f"v_and_b32 {v(V_XSRC)}, 7, {v(V_LANE)}")
    A(f"v_xor_b32 v7, v7, {v(V_XSRC)}")
    A(f"v_mul_u32_u24 v6, 1280, v6")
    A(f"v_lshl_add_u32 v6, v7, 4, v6")
    A(f"s_mul_i32 {s(S_T)}, {s(S_WAVE)}, {8*1280}")
    A(f"v_add_u32 {v(V_XSRC)}, {s(S_T)}, v6")
    A(f"s_mul_i32 {s(S_M0X)}, {s(S_WAVE)}, 10240")
    A(f"v_and_b32 v6, 15, {v(V_LANE)}")
    A(f"v_lshrrev_b32 v7, 1, v6")
    A(f"v_lshrrev_b32 {v(V_XRD)}, 4, {v(V_LANE)}")
    A(f"v_xor_b32 v7, v7, {v(V_XRD)}")
    A(f"v_lshlrev_b32 v7, 4, v7")
    A(f"v_lshrrev_b32 {v(V_XRD)}, 3, v6")
    A(f"v_mul_u32_u24 {v(V_XRD)}, 10240, {v(V_XRD)}")
    A(f"v_and_b32 v6, 7, v6")
    A(f"v_lshl_add_u32 v6, v6, 7, v7")
    A(f"v_add_u32 {v(V_XRD)}, {v(V_XRD)}, v6")
    A(f"v_xor_b32 {v(XB+1)}, 64, {v(V_XRD)}")
    A(f"v_mov_b32 {v(XB)}, {v(V_XRD)}")
    A(f"v_add_u32 {v(XB+2)}, 40960, {v(XB)}")
    A(f"v_add_u32 {v(XB+3)}, 40960, {v(XB+1)}")

XB = 92
V_PFO = 96; V_PFD = 97; PFD = 3
def setup_pf(A):
    A(f"s_mul_i32 {s(S_T)}, {s(S_HEAD)}, 13108")
    A(f"s_lshr_b32 {s(S_T)}, {s(S_T)}, 16")
    A(f"s_mul_i32 {s(S_T)}, {s(S_T)}, 5")
    A(f"s_sub_u32 {s(S_T)}, {s(S_HEAD)}, {s(S_T)}")
    A(f"s_lshl_b32 {s(S_T)}, {s(S_T)}, 2")
    A(f"s_add_u32 {s(S_T)}, {s(S_T)}, {s(S_WAVE)}")
    A(f"s_lshl_b32 {s(S_T)}, {s(S_T)}, 11")
    A(f"s_add_u32 {s(S_T)}, {s(S_T)}, {PFD*40960}")
    A(f"v_lshl_add_u32 {v(V_PFO)}, {v(V_LANE)}, 7, {s(S_T)}")
def first_pf(A):
    A(f"v_subrev_u32 {v(V_PFO)}, {(PFD-1)*40960}, {v(V_PFO)}")
    for d in range(PFD):
        issue_pf(A)
        if d < PFD-1: A(f"v_add_u32 {v(V_PFO)}, 40960, {v(V_PFO)}")
def issue_pf(A):
    A("s_mov_b64 exec, 0xffff")
    A(f"buffer_load_dword {v(V_PFD)}, {v(V_PFO)}, {s(S_X,4)}, {s(S_XOFF)} offen")
    A("s_mov_b64 exec, -1")

XSRD = S_X; XFL = ""
def x_dma(A, buf, j, nop=True):
    A(f"s_add_u32 m0, {s(S_M0X)}, {buf*40960 + j*1024 - j*128}")
    if nop: A("s_nop 0")
    A(f"buffer_load_dwordx4 {v(V_XSRC)}, {s(XSRD,4)}, {s(S_XOFF)} offen offset:{j*128} {XFL} lds")

def issue_x(A, buf):
    for j in range(10):
        x_dma(A, buf, j)

def xread(A, buf, k):
    sl = k % 3
    for tau in range(2):
        A(f"ds_read_b128 {v(XF+sl*8+tau*4,4)}, {v(XB+buf*2+(k&1))} offset:{tau*20480+(k>>1)*1024}")

def kv_epilogue(accset, srd, sflags):
    L = []
    ac = lambda t, tau: ACC + accset*24 + (t*2+tau)*4
    for tau in range(2):
        for t in range(2):
            L.append(f"v_cvt_pk_bf16_f32 {v(PK+tau*4+t*2)}, {v(ac(t,tau))}, {v(ac(t,tau)+1)}")
            L.append(f"v_cvt_pk_bf16_f32 {v(PK+tau*4+t*2+1)}, {v(ac(t,tau)+2)}, {v(ac(t,tau)+3)}")
    for tau in range(2):
        L.append(f"v_cvt_pk_bf16_f32 {v(PK+8+tau*2)}, {v(ac(2,tau))}, {v(ac(2,tau)+1)}")
        L.append(f"v_cvt_pk_bf16_f32 {v(PK+8+tau*2+1)}, {v(ac(2,tau)+2)}, {v(ac(2,tau)+3)}")
    L.append(f"buffer_store_dwordx4 {v(PK,4)}, {v(V_ST0)}, {s(srd,4)}, {s(S_DST)} offen {sflags}")
    L.append(f"buffer_store_dwordx4 {v(PK+4,4)}, {v(V_ST0+2)}, {s(srd,4)}, {s(S_DST)} offen {sflags}")
    L.append(f"v_permlane16_swap_b32 {v(PK+8)}, {v(PK+10)}")
    L.append(f"v_permlane16_swap_b32 {v(PK+9)}, {v(PK+11)}")
    L.append(f"buffer_store_dwordx4 {v(PK+8,4)}, {v(V_ST1)}, {s(srd,4)}, {s(S_DST)} offen {sflags}")
    return L

def setup_kv_store(A):
    A(f"s_lshl_b32 {s(S_T)}, {s(S_WAVE)}, 10")
    A(f"v_lshl_add_u32 {v(V_ST0)}, {v(V_LANE)}, 4, {s(S_T)}")
    A(f"v_lshrrev_b32 v7, 4, {v(V_LANE)}")
    A(f"v_and_b32 v6, 1, v7")
    A(f"v_mul_u32_u24 v6, 6144, v6")
    A(f"v_lshrrev_b32 v7, 1, v7")
    A(f"v_lshl_add_u32 v6, v7, 8, v6")
    A(f"v_and_b32 v7, 15, {v(V_LANE)}")
    A(f"v_lshl_add_u32 v6, v7, 4, v6")
    A(f"s_lshr_b32 {s(S_T)}, {s(S_WAVE)}, 1")
    A(f"s_lshl_b32 {s(S_T)}, {s(S_T)}, 10")
    A(f"s_add_u32 {s(S_T)}, {s(S_T)}, 4096")
    A(f"v_add_u32 v6, {s(S_T)}, v6")
    A(f"s_and_b32 {s(S_T)}, {s(S_WAVE)}, 1")
    A(f"s_lshl_b32 {s(S_T)}, {s(S_T)}, 9")
    A(f"v_add_u32 {v(V_ST1)}, {s(S_T)}, v6")

def role_kv(A, flags=False):
    global V_XRD
    A.c("================ role K/V ================")
    srd_finish(A, S_W1, W_BYTES)
    A(f"s_load_dwordx2 {s(S_X,2)}, s[0:1], {KA['A_x']}")
    A(f"s_mul_i32 s30, {s(S_HEAD)}, 384")
    A(f"s_mul_i32 {s(S_T)}, {s(S_HEAD)}, 12288")
    A(f"s_add_u32 {s(S_DST)}, {s(S_DST)}, {s(S_T)}")
    A("s_waitcnt lgkmcnt(0)")
    srd_finish(A, S_X, X_BYTES)
    if flags and KLATE:
        kl = A.newlabel("KV_kl")
        A(f"s_cmp_ge_u32 {s(S_DST)}, {WS_V}"); A(f"s_cbranch_scc1 {kl}")
        init_sync(A)
        A.label(kl)
    load_w_rows384(A, S_W1, 30, lambda c, kk, t, half: a(wreg(t, 2*c+kk)+2*half, 2))
    if STAMP: stamp(A,1)
    if flags: init_sync(A)
    setup_x_stream(A)
    setup_kv_store(A)
    setup_pf(A)
    A(f"v_add_u32 v6, 6144, {v(V_ST0)}")
    A(f"v_add_u32 v7, 0, {v(V_LANE)}")
    A(f"s_mov_b32 {s(S_XOFF)}, 0")
    A(f"s_mov_b32 {s(S_SEG)}, 0")
    issue_x(A, 0)
    A(f"s_sub_u32 {s(S_DST)}, {s(S_DST)}, {NH*12288}")
    loop = A.newlabel("KV_loop")
    first_pf(A)
    A("v_mov_b32 v100, 0"); A("v_mov_b32 v101, 0")
    A(f"s_lshl_b32 s32, {s(S_HEAD)}, 7"); A(f"s_add_u32 s32, s32, {FL_KM}")
    kinit(A)
    A.label(loop)
    for par in range(2):
        ktick(A, 0)
        if common.KST: A("s_waitcnt vmcnt(11)"); ktick(A, 1)
        A("s_waitcnt vmcnt(1)")
        ktick(A, 2)
        A("s_barrier")
        ktick(A, 3)
        for k in range(2):
            xread(A, par, k)
        fill = []
        skip = A.newlabel("KV_skip")
        if par == 0:
            A(f"s_cmp_eq_u32 {s(S_SEG)}, 0")
            A(f"s_cbranch_scc1 {skip}")
        if flags:
            l2 = A.newlabel("KV_np")
            A(f"s_cmp_le_u32 {s(S_SEG)}, {EARLY+1}"); A(f"s_cbranch_scc1 {l2}")
            publish_flag(A)
            A.label(l2)
        A("s_nop 4")
        for ins in kv_epilogue(1-par, S_WS, "sc0 sc1"):
            if "permlane" in ins and PK+8 == int(ins.split()[1][1:-1]): A("s_nop 1")
            A(ins)
        A.label(skip)
        if flags and LEAD:
            A(f"s_sub_u32 s31, {s(S_SEG)}, {LEAD}"); A("s_max_i32 s31, s31, 0")
            flag_wait(A, 100, 101, 32, 31, 0, 0, sleep=24)
        A(f"s_add_u32 {s(S_DST)}, {s(S_DST)}, {NH*12288}")
        A(f"s_add_u32 {s(S_XOFF)}, {s(S_XOFF)}, {32*1280}")
        if EXP == 0:
            issue_x(A, 1-par)
            gemm_seg(A, par)
        elif EXP == 1:
            gemm_seg(A, par)
        elif EXP == 2:
            gemm_seg(A, par, dma=1-par)
        A(f"s_add_u32 {s(S_SEG)}, {s(S_SEG)}, 1")
        if flags:
            l2 = A.newlabel("KV_ne")
            A(f"s_cmp_gt_u32 {s(S_SEG)}, {EARLY}"); A(f"s_cbranch_scc1 {l2}")
            A("s_nop 5")
            for ins in kv_epilogue(par, S_WS, "sc0 sc1"): A(ins)
            A("s_waitcnt vmcnt(0)"); A("s_barrier")
            publish(A, S_SEG, S_FLAG)
            A.label(l2)
    A(f"s_cmp_lt_u32 {s(S_SEG)}, {NSEG}")
    A(f"s_cbranch_scc1 {loop}")
    A("s_waitcnt vmcnt(0)")
    A("s_barrier")
    if flags: publish_flag(A)
    A("s_nop 7")
    for ins in kv_epilogue(1, S_WS, "sc0 sc1"):
        if "permlane" in ins and PK+8 == int(ins.split()[1][1:-1]): A("s_nop 1")
        A(ins)
    A("s_waitcnt vmcnt(0)")
    kdump(A)
    if flags:
        A("s_barrier")
        A(f"s_add_u32 {s(S_SEG)}, {s(S_SEG)}, 1")
        publish_flag(A)

def gemm_seg(A, par, dma=None, accset=None):
    if accset is None: accset = par
    for k in range(20):
        if dma is not None and k < 10:
            A(f"s_add_u32 m0, {s(S_M0X)}, {dma*40960 + k*1024 - k*128}")
        if k+2 < 20:
            xread(A, par, k+2)
            A("s_waitcnt lgkmcnt(4)")
        elif k+1 < 20:
            A("s_waitcnt lgkmcnt(2)")
        else:
            A("s_waitcnt lgkmcnt(0)")
        sl = k % 3
        for t in range(3):
            for tau in range(2):
                acc = ACC + accset*24 + (t*2+tau)*4
                c = "0" if k == 0 else v(acc,4)
                A(f"v_mfma_f32_16x16x32_bf16 {v(acc,4)}, {a(wreg(t,k),4)}, {v(XF+sl*8+tau*4,4)}, {c}")
                if dma is not None and k == 11 and t == 1 and tau == 0: issue_pf(A)
                if dma is not None and k < 10 and t == 1 and tau == 0:
                    A(f"buffer_load_dwordx4 {v(V_XSRC)}, {s(XSRD,4)}, {s(S_XOFF)} offen offset:{k*128} {XFL} lds")

def publish_flag(A):
    lab = A.newlabel("pf")
    A(f"s_cmp_lg_u32 {s(S_WAVE)}, 0")
    A(f"s_cbranch_scc1 {lab}")
    A(f"s_sub_u32 {s(S_T)}, {s(S_SEG)}, 1")
    A(f"v_mov_b32 v98, {s(S_T)}")
    A(f"v_mov_b32 v99, 0")
    A(f"s_mov_b64 exec, 1")
    A(f"buffer_store_dword v98, v99, {s(S_WS,4)}, {s(S_FLAG)} offen sc0 sc1")
    A(f"s_mov_b64 exec, -1")
    A.label(lab)
```

```python
from common import *
import role_kv as kv
from role_kv import XF, ACC, PK, V_ST0, V_ST1, S_SEG, S_XOFF, S_M0X, S_T, wreg
from role_chain import f32bits
import math
QLATE = 1
L_Q = 81920; L_KM = L_Q + 12288
KF = 100
QF = 148
MF = 172
SC = 196
MK = 208
V_TRA = 212; V_TRB = 213; V_L16 = 214; V_QW0 = 215; V_QW1 = 216; V_QW2 = 217; V_QR = 218; V_PM = 219; V_FL = 220; V_Z = 221; V_FA = 222
T0 = 224
S_KS = 30; S_KMS = 31; S_PD = 32; S_PDM = 33; S_C = 34; S_NEED = 35; S_CNT = 36; S_FLO = 37; S_FKM = 38; S_FK = 39; S_MB = 50

def xlane(A, op, r, t, which):
    A(f"v_mov_b32 {v(t)}, {v(r)}"); A("s_nop 1"); A(f"v_permlane{which}_swap_b32 {v(r)}, {v(t)}"); A(f"{op} {v(r)}, {v(r)}, {v(t)}")

def attention(A, qt):
    for ks in range(6):
        A(f"ds_read_b128 {v(QF+4*ks,4)}, {v(V_QR)} offset:{ks*1024}")
    for ks in range(6):
        if ks < 4: vb, o0, o1 = V_TRA, 48*ks*16, (48*ks+16)*16
        else: vb, o0, o1 = V_TRB, (96*(ks-4)+32)*16, (96*(ks-4)+36)*16
        if ks == 4: A("s_waitcnt lgkmcnt(8)")
        A(f"ds_read_b64_tr_b16 {v(MF+4*ks,2)}, {v(vb)} offset:{o0}")
        A(f"ds_read_b64_tr_b16 {v(MF+4*ks+2,2)}, {v(vb)} offset:{o1}")
    nt = 1 + qt
    for ks in range(6):
        for t in range(nt):
            c = (v(MK,4) if t == qt else "0") if ks == 0 else v(SC+4+4*t,4)
            A(f"v_mfma_f32_16x16x32_bf16 {v(SC+4+4*t,4)}, {v(KF+(t*6+ks)*4,4)}, {v(QF+4*ks,4)}, {c}")
    A("s_waitcnt lgkmcnt(0)")
    for ks in range(6):
        A(f"v_mfma_f32_16x16x32_bf16 {v(SC,4)}, {v(MF+4*ks,4)}, {v(QF+4*ks,4)}, {'0' if ks==0 else v(SC,4)}")
    n = 4 + 4*nt
    m, t0, sm = T0, T0+1, T0+2
    A(f"v_max3_f32 {v(m)}, {v(SC+4)}, {v(SC+5)}, {v(SC+6)}")
    if nt == 2:
        A(f"v_max3_f32 {v(m)}, {v(m)}, {v(SC+8)}, {v(SC+9)}")
        A(f"v_max3_f32 {v(m)}, {v(m)}, {v(SC+10)}, {v(SC+11)}")
    A("s_nop 6")
    A(f"v_max3_f32 {v(m)}, {v(m)}, {v(SC+7)}, {v(SC)}")
    A(f"v_max3_f32 {v(t0)}, {v(SC+1)}, {v(SC+2)}, {v(SC+3)}")
    A(f"v_max_f32 {v(m)}, {v(m)}, {v(t0)}")
    xlane(A, "v_max_f32", m, t0, 16); xlane(A, "v_max_f32", m, t0, 32)
    A(f"v_mul_f32 {v(m)}, {s(S_C)}, {v(m)}")
    for i in range(n): A(f"v_fma_f32 {v(SC+i)}, {v(SC+i)}, {s(S_C)}, -{v(m)}")
    for i in range(n): A(f"v_exp_f32 {v(SC+i)}, {v(SC+i)}")
    A(f"v_add_f32 {v(sm)}, {v(SC)}, {v(SC+1)}")
    A(f"v_add_f32 {v(t0)}, {v(SC+2)}, {v(SC+3)}")
    A(f"v_add_f32 {v(sm)}, {v(sm)}, {v(t0)}")
    A(f"v_mul_f32 {v(sm)}, 0.5, {v(sm)}")
    for i in range(4, n): A(f"v_add_f32 {v(sm)}, {v(sm)}, {v(SC+i)}")
    xlane(A, "v_add_f32", sm, t0, 16); xlane(A, "v_add_f32", sm, t0, 32)
    A(f"v_rcp_f32 {v(sm)}, {v(sm)}")
    A("s_nop 0")
    for i in range(n): A(f"v_mul_f32 {v(SC+i)}, {v(SC+i)}, {v(sm)}")
    o = T0+4
    for i in range(2): A(f"v_cvt_pk_bf16_f32 {v(o+4+i)}, {v(SC+2*i)}, {v(SC+2*i+1)}")
    for i in range(2*nt): A(f"v_cvt_pk_bf16_f32 {v(o+i)}, {v(SC+4+2*i)}, {v(SC+5+2*i)}")
    if nt == 1: A(f"v_mov_b64 {v(o+2,2)}, 0")
    A(f"buffer_store_dwordx4 {v(o,4)}, {v(V_L16)}, {s(S_WS,4)}, {s(S_PD)} offen sc0 sc1")
    A(f"s_mov_b64 exec, {s(S_MB,2)}")
    A(f"buffer_store_dwordx2 {v(o+4,2)}, {v(V_PM)}, {s(S_WS,4)}, {s(S_PDM)} offen sc0 sc1")
    A("s_mov_b64 exec, -1")

def role_q(A, flags=False):
    A.c("================ role Q ================")
    A(f"s_load_dwordx2 {s(S_W1,2)}, s[0:1], {KA['Wq']}")
    A(f"s_load_dwordx2 {s(S_X,2)}, s[0:1], {KA['A_x']}")
    A(f"s_mul_i32 s30, {s(S_HEAD)}, 384")
    A("s_waitcnt lgkmcnt(0)")
    srd_finish(A, S_W1, W_BYTES); srd_finish(A, S_X, X_BYTES)
    if flags:
        if QLATE: wait_k_started(A, S_HEAD)
    kv.load_w_rows384(A, S_W1, 30, lambda c, kk, t, half: a(wreg(t, 2*c+kk)+2*half, 2))
    if flags and not QLATE: init_sync(A)
    kv.setup_x_stream(A)
    kv.setup_kv_store(A)
    kv.setup_pf(A)
    A(f"v_add_u32 {v(V_QW0)}, {L_Q}, {v(V_ST0)}")
    A(f"v_add_u32 {v(V_QW2)}, {L_Q}, {v(V_ST1)}")
    A(f"v_lshlrev_b32 {v(V_L16)}, 4, {v(V_LANE)}")
    A(f"s_and_b32 {s(S_T)}, {s(S_WAVE)}, 1")
    A(f"s_mul_i32 {s(S_PD)}, {s(S_T)}, 40960")
    A(f"s_mul_i32 {s(S_T)}, {s(S_T)}, 6144")
    A(f"s_add_u32 {s(S_T)}, {s(S_T)}, {L_Q}")
    A(f"v_add_u32 {v(V_QR)}, {s(S_T)}, {v(V_L16)}")
    n_, g_, r_, c_, t_ = T0, T0+1, T0+2, T0+3, T0+4
    A(f"v_and_b32 {v(n_)}, 15, {v(V_LANE)}")
    A(f"v_lshrrev_b32 {v(g_)}, 4, {v(V_LANE)}")
    A(f"v_bfe_u32 {v(r_)}, {v(V_LANE)}, 2, 2")
    A(f"v_and_b32 {v(c_)}, 1, {v(V_LANE)}")
    A(f"v_lshlrev_b32 {v(c_)}, 3, {v(c_)}")
    A(f"v_add_u32 {v(c_)}, {L_KM}, {v(c_)}")
    A(f"v_lshl_add_u32 {v(V_TRA)}, {v(g_)}, 2, {v(r_)}")
    A(f"v_lshl_add_u32 {v(V_TRA)}, {v(V_TRA)}, 4, {v(c_)}")
    A(f"v_lshrrev_b32 {v(t_)}, 1, {v(g_)}")
    A(f"v_mul_u32_u24 {v(t_)}, 48, {v(t_)}")
    A(f"v_and_b32 {v(V_TRB)}, 1, {v(g_)}")
    A(f"v_lshl_add_u32 {v(V_TRB)}, {v(V_TRB)}, 3, {v(t_)}")
    A(f"v_add_u32 {v(V_TRB)}, {v(V_TRB)}, {v(r_)}")
    A(f"v_lshl_add_u32 {v(V_TRB)}, {v(V_TRB)}, 4, {v(c_)}")
    A(f"v_lshlrev_b32 {v(V_PM)}, 4, {v(n_)}")
    A(f"v_lshl_add_u32 {v(V_PM)}, {v(g_)}, 3, {v(V_PM)}")
    A(f"v_lshlrev_b32 {v(t_)}, 2, {v(g_)}")
    A(f"v_mov_b32 {v(c_)}, {f32bits(-1e30)}")
    for r in range(4):
        A(f"v_add_u32 {v(r_)}, {r}, {v(t_)}")
        A(f"v_cmp_gt_u32 vcc, {v(r_)}, {v(n_)}")
        A("s_nop 1")
        A(f"v_cndmask_b32 {v(MK+r)}, 0, {v(c_)}, vcc")
    A(f"s_mov_b32 {s(S_MB)}, -1"); A(f"s_mov_b32 {s(S_MB+1)}, 0")
    A(f"v_mov_b32 {v(V_Z)}, 0"); A(f"v_mov_b32 {v(V_FL)}, 0"); A(f"v_mov_b32 {v(V_FA)}, 0")
    A(f"s_mov_b32 {s(S_C)}, {f32bits(192**-0.5*math.log2(math.e))}")
    A(f"s_mul_i32 {s(S_KS)}, {s(S_HEAD)}, 12288")
    A(f"s_add_u32 {s(S_KS)}, {s(S_KS)}, {WS_K}")
    A(f"s_mul_i32 {s(S_KMS)}, {s(S_HEAD)}, 3072")
    A(f"s_add_u32 {s(S_KMS)}, {s(S_KMS)}, {WS_KM}")
    A(f"s_add_u32 {s(S_PD)}, {s(S_PD)}, {WS_P}")
    A(f"s_lshl_b32 {s(S_T)}, {s(S_HEAD)}, 8")
    A(f"s_add_u32 {s(S_PDM)}, {s(S_PD)}, {s(S_T)}")
    A(f"s_add_u32 {s(S_PDM)}, {s(S_PDM)}, {32*1024}")
    A(f"s_lshl_b32 {s(S_T)}, {s(S_HEAD)}, 10")
    A(f"s_add_u32 {s(S_PD)}, {s(S_PD)}, {s(S_T)}")
    A(f"s_lshl_b32 {s(S_T)}, {s(S_HEAD)}, 7")
    A(f"s_mov_b32 {s(S_FLO)}, {CN_Q}")
    A(f"s_add_u32 {s(S_FKM)}, {s(S_T)}, {FL_KM}")
    A(f"s_add_u32 {s(S_FK)}, {s(S_T)}, {FL_K}")
    A(f"s_mov_b32 {s(S_XOFF)}, 0")
    A(f"s_mov_b32 {s(S_SEG)}, 0")
    kv.issue_x(A, 0)
    kv.first_pf(A)
    loop = A.newlabel("Q_loop")
    A.label(loop)
    for par in range(2):
        A("s_waitcnt vmcnt(0)")
        A("s_barrier")
        for k in range(2): kv.xread(A, par, k)
        if flags:
            l2 = A.newlabel("Q_s0")
            if par == 0: A(f"s_cmp_eq_u32 {s(S_SEG)}, 0"); A(f"s_cbranch_scc1 {l2}")
            arrive_last(A, S_FLO, RD_Q-CN_Q, 32, vt=T0)
            A(f"s_add_u32 {s(S_FLO)}, {s(S_FLO)}, 128")
            A.label(l2)
        A(f"s_add_u32 {s(S_NEED)}, {s(S_SEG)}, 1")
        sk = A.newlabel("Q_nok")
        A(f"s_cmp_ge_u32 {s(S_WAVE)}, 2"); A(f"s_cbranch_scc1 {sk}")
        if flags: flag_wait(A, V_FA, V_Z, S_FK, S_NEED, S_T, S_CNT)
        for f in range(12):
            if f % 4 == 0: A(f"s_add_u32 {s(S_T)}, {s(S_KS)}, {f*1024}")
            A(f"buffer_load_dwordx4 {v(KF+4*f,4)}, {v(V_L16)}, {s(S_WS,4)}, {s(S_T)} offen offset:{(f%4)*1024} sc1")
        A.label(sk)
        A(f"s_add_u32 {s(S_XOFF)}, {s(S_XOFF)}, {32*1280}")
        kv.gemm_seg(A, par, dma=1-par, accset=0)
        sk = A.newlabel("Q_nom")
        A(f"s_cmp_lg_u32 {s(S_WAVE)}, 3"); A(f"s_cbranch_scc1 {sk}")
        if flags: flag_wait(A, V_FL, V_Z, S_FKM, S_NEED, S_T, S_CNT)
        A(f"s_mov_b32 m0, {L_KM}")
        A("s_nop 0")
        for j in range(3):
            A(f"buffer_load_dwordx4 {v(V_L16)}, {s(S_WS,4)}, {s(S_KMS)} offen offset:{j*1024} sc1 lds")
        A.label(sk)
        A("s_nop 7")
        for ins in kv.kv_epilogue(0, S_WS, ""):
            if ins.startswith("buffer_store"):
                d = ins.split()[1].rstrip(",")
                ins = {v(PK,4): f"ds_write_b128 {v(V_QW0)}, {d}", v(PK+4,4): f"ds_write_b128 {v(V_QW0)}, {d} offset:6144", v(PK+8,4): f"ds_write_b128 {v(V_QW2)}, {d}"}[d]
            A(ins)
        sk = A.newlabel("Q_w3");
        A(f"s_cmp_lg_u32 {s(S_WAVE)}, 3"); A(f"s_cbranch_scc1 {sk}")
        A("s_waitcnt vmcnt(0)")
        A.label(sk)
        A("s_waitcnt vmcnt(11) lgkmcnt(0)")
        A("s_barrier")
        l0 = A.newlabel("Q_a0"); l1 = A.newlabel("Q_done")
        A(f"s_cmp_ge_u32 {s(S_WAVE)}, 2"); A(f"s_cbranch_scc1 {l1}")
        A(f"s_cmp_eq_u32 {s(S_WAVE)}, 0"); A(f"s_cbranch_scc1 {l0}")
        attention(A, 1)
        A(f"s_branch {l1}")
        A.label(l0)
        attention(A, 0)
        A.label(l1)
        A(f"s_add_u32 {s(S_KS)}, {s(S_KS)}, {NH*12288}")
        A(f"s_add_u32 {s(S_KMS)}, {s(S_KMS)}, {NH*3072}")
        A(f"s_add_u32 {s(S_PD)}, {s(S_PD)}, 81920")
        A(f"s_add_u32 {s(S_PDM)}, {s(S_PDM)}, 81920")
        A(f"s_add_u32 {s(S_SEG)}, {s(S_SEG)}, 1")
    A(f"s_cmp_lt_u32 {s(S_SEG)}, {NSEG}")
    A(f"s_cbranch_scc1 {loop}")
    A("s_waitcnt vmcnt(0)")
    if flags:
        A("s_barrier")
        arrive_last(A, S_FLO, RD_Q-CN_Q, 32, vt=T0)
```

```python
from common import *
import common
import role_kv, role_u, role_chain, role_init, role_q, role_f, role_b, hazard, sys
NAME = "concat_heads__memory_aug_recurrent_mem_tr__sliding_block__prompt"
out = sys.argv[1]
rc = role_chain
rc.PBMODE = 2; role_f.WARM = 2
for k_, x_ in dict(DELAYL=0, DELAYLV=0, HINTB=6, HINTA=5, K2W=0, WDEL=4, PBSTEP=4, PBSTEP0=4, PBSTEPV=3, PBSTG=1, DELAY0=2, DELAY0V=2, PREU=0,
                   XHINT=1, XEARLY=1, XLATE=20, PL_K='B', PL_P='W', DELAYBS=2, TB=30, TA=96, ZPRE2=0).items(): setattr(rc, k_, x_)
NTC = 0; NTB = 0; TS = 0; DBGT = 0; OFF = ''; BUD = None; PLAIN = 0; UX = 0
for kv in sys.argv[2:]:
    k, x = kv.split('=')
    if k == "TS": TS = int(x)
    elif k == "DBGT": DBGT = int(x)
    elif k == "OFF": OFF = x
    elif k == "NTC": NTC = int(x)
    elif k == "NTB": NTB = int(x)
    elif k == "QLATE": role_q.QLATE = int(x)
    elif k == "KLATE": role_kv.KLATE = int(x)
    elif k == "OUTF": role_f.OUTF = role_b.OUTF = x.replace("_", " ")
    elif k == "LEAD": role_kv.LEAD = int(x)
    elif k == "PDBG": role_f.PDBG = int(x)
    elif k == "NUMA": rc.NUMA = int(x); role_f.NUMA = int(x)
    elif k == "ULATE": role_u.ULATE = int(x)
    elif k == "KSTART": common.KSTART = int(x)
    elif k == "WARM": role_f.WARM = int(x)
    elif k == "LATE": role_b.LATE = int(x)
    elif k == "UX": UX = int(x)
    elif k == "KST": common.KST = int(x)
    elif k == "BUD": BUD = int(x)
    elif k == "PLAIN": PLAIN = int(x)
    else: setattr(rc, k, x if k.startswith('PL_') else int(x))
ref = open("cdna_kernels/" + NAME + ".s.ref").read().split("\n")
head = [l for l in ref if l.startswith(";") and "@launch" not in l and "Override launch" not in l and "grid=ceil" not in l]
MAIN = NAME + "_kernel"
hdr = "\n".join(head) + "\n"
hdr += f"; @launch grid=(256,1,1) block=(256,1,1) lds=163840\n"
hdr += ".amdgcn_target \"amdgcn-amd-amdhsa--gfx950\"\n.text\n"
body = ""

common.TS = TS
A = Asm(); A.uid = 100
A("s_cmp_ge_u32 s2, 256"); A("s_cbranch_scc1 L_exit")
prologue(A)
tstamp(A, 0)
if DBGT: A("s_memrealtime s[96:97]"); A("s_waitcnt lgkmcnt(0)")
A("s_and_b32 s23, s2, 7"); A("s_lshr_b32 s24, s2, 3")
if BUD is not None: A(f"s_mov_b32 s100, {BUD}"); rc.SPIN_MAX = BUD
A("s_cmp_ge_u32 s23, 2"); A("s_cbranch_scc1 L_bulk")
if "C" in OFF: A("s_branch L_end")
A("s_cmp_ge_u32 s24, 16"); A("s_cbranch_scc1 L_chV")
common.WFL = 'nt' if NTC else ''
rc.role_chain(A, False, "L_end", flags=True)
A.label("L_exit"); A("s_endpgm")
A.label("L_chV")
rc.role_chain(A, True, "L_end", flags=True)
common.WFL = 'nt' if NTB else ''
A.label("L_bulk")
A("s_mul_i32 s25, s24, 6"); A("s_add_u32 s25, s25, s23"); A("s_sub_u32 s25, s25, 2")
A(f"s_and_b32 {s(S_HEAD)}, s25, 31")
A("s_cmp_ge_u32 s25, 64"); A("s_cbranch_scc1 L_notkv")
A(f"s_load_dwordx2 s[8:9], s[0:1], {KA['Wk']}")
A(f"s_load_dwordx2 s[10:11], s[0:1], {KA['Wv']}")
A(f"s_lshl_b32 s3, {s(S_HEAD)}, 7")
A("s_waitcnt lgkmcnt(0)")
A("s_cmp_ge_u32 s25, 32")
A("s_cselect_b32 s8, s10, s8"); A("s_cselect_b32 s9, s11, s9")
A(f"s_cselect_b32 {s(role_kv.S_DST)}, {WS_V}, {WS_K}")
A(f"s_cselect_b32 {s(role_kv.S_FLAG)}, {FL_V-FL_K}, 0")
A(f"s_add_u32 s3, s3, {FL_K}")
A(f"s_add_u32 {s(role_kv.S_FLAG)}, {s(role_kv.S_FLAG)}, s3")
if "K" not in OFF: role_kv.role_kv(A, flags=True)
A("s_branch L_end")
A.label("L_notkv")
A("s_cmp_ge_u32 s25, 96"); A("s_cbranch_scc1 L_notu")
A(f"s_lshl_b32 s3, {s(S_HEAD)}, 7")
A(f"s_mov_b32 {s(role_u.S_FLAG)}, {CN_U}"); A(f"s_add_u32 {s(role_u.S_FIN)}, s3, {FL_V}")
n0 = len(A.lines)
if "U" not in OFF: role_u.role_u(A, flags=True)
if UX:
    i0 = [i for i, l in enumerate(A.lines) if l.startswith("U_loop")][0]
    def keep(l):
        if UX & 1 and "buffer_store_dwordx4" in l: return False
        if UX & 2 and l.rstrip().endswith(" lds"): return False
        if UX & 4 and ("buffer_load_dword " in l or "buffer_store_dword " in l): return False
        if UX & 8 and "v_mfma" in l: return False
        return True
    A.lines = A.lines[:i0] + [l for l in A.lines[i0:] if keep(l)]
A("s_branch L_end")
A.label("L_notu")
A("s_cmp_ge_u32 s25, 128"); A("s_cbranch_scc1 L_notq")
if "Q" not in OFF: role_q.role_q(A, flags=True)
A("s_branch L_end")
A.label("L_notq")
A("s_cmp_ge_u32 s25, 160"); A("s_cbranch_scc1 L_notb")
if "B" not in OFF: role_b.role_b(A, flags=True)
A("s_branch L_end")
A.label("L_notb")
A("s_cmp_ge_u32 s25, 165"); A("s_cbranch_scc1 L_f")
A(f"s_sub_u32 {s(role_b.S_J)}, s25, 160")
if "3" not in OFF: role_b.role_b3(A, flags=True)
A("s_branch L_end")
A.label("L_f")
A(f"s_sub_u32 {s(role_f.S_ID)}, s25, 165"); A(f"s_mov_b32 {s(role_f.S_STR)}, {NF}")
if "F" not in OFF: role_f.role_f(A, flags=True)
A.label("L_end")
tstamp(A, 1)
if DBGT:
    for k, wg in enumerate((0, 128, 2, 58, 98+0, 170+2, 218, 255)):
        lab = A.newlabel("dt")
        A(f"s_cmp_lg_u32 s2, {wg}"); A(f"s_cbranch_scc1 {lab}")
        A("s_memrealtime s[92:93]"); A("s_waitcnt lgkmcnt(0)"); A("s_sub_u32 s92, s92, s96")
        A("v_mov_b32 v252, s92"); A(f"v_mov_b32 v253, {4*(k+1)}")
        A(f"global_store_dword v253, v252, {s(S_DBG,2)}"); A("s_waitcnt vmcnt(0)")
        A.label(lab)
A("s_endpgm")
body += kernel_header(MAIN) + A.text()
txt = hdr + body + '.section .rodata,"a"\n.p2align 6\n' + kernel_desc(MAIN)
if PLAIN: txt = txt.replace(" sc0 sc1", "")
open(out, "w").write(txt)
print(len(txt), "bytes")
hazard.check(txt)
```

```python
from common import *
import common
import role_kv, role_u, role_chain, role_init, role_q, role_f, role_b, hazard, sys
NAME = "concat_heads__memory_aug_recurrent_mem_tr__sliding_block__prompt"
out = sys.argv[1]
rc = role_chain
rc.PBMODE = 2; role_f.WARM = 2
for k_, x_ in dict(DELAYL=0, DELAYLV=0, HINTB=6, HINTA=5, K2W=0, WDEL=4, PBSTEP=4, PBSTEP0=4, PBSTEPV=3, PBSTG=1, DELAY0=2, DELAY0V=2, PREU=0,
                   XHINT=1, XEARLY=1, XLATE=20, PL_K='B', PL_P='W', DELAYBS=2, TB=30, TA=96, ZPRE2=0).items(): setattr(rc, k_, x_)
CPF = 1; NTC = 0; NTB = 0; TS = 0; DBGT = 0; OFF = ''; BUD = None; PLAIN = 0; UX = 0
for kv in sys.argv[2:]:
    k, x = kv.split('=')
    if k == "TS": TS = int(x)
    elif k == "DBGT": DBGT = int(x)
    elif k == "OFF": OFF = x
    elif k == "CPF": CPF = int(x)
    elif k == "NTC": NTC = int(x)
    elif k == "NTB": NTB = int(x)
    elif k == "QLATE": role_q.QLATE = int(x)
    elif k == "KLATE": role_kv.KLATE = int(x)
    elif k == "OUTF": role_f.OUTF = role_b.OUTF = x.replace("_", " ")
    elif k == "LEAD": role_kv.LEAD = int(x)
    elif k == "PDBG": role_f.PDBG = int(x)
    elif k == "NUMA": rc.NUMA = int(x); role_f.NUMA = int(x)
    elif k == "ULATE": role_u.ULATE = int(x)
    elif k == "KSTART": common.KSTART = int(x)
    elif k == "WARM": role_f.WARM = int(x)
    elif k == "LATE": role_b.LATE = int(x)
    elif k == "UX": UX = int(x)
    elif k == "KST": common.KST = int(x)
    elif k == "BUD": BUD = int(x)
    elif k == "PLAIN": PLAIN = int(x)
    else: setattr(rc, k, x if k.startswith('PL_') else int(x))
ref = open("cdna_kernels/" + NAME + ".s.ref").read().split("\n")
head = [l for l in ref if l.startswith(";") and "@launch" not in l and "Override launch" not in l and "grid=ceil" not in l]
MAIN = NAME + "_kernel"
hdr = "\n".join(head) + "\n"
hdr += f"; @launch grid=(256,1,1) block=(256,1,1) lds=163840\n"
hdr += ".amdgcn_target \"amdgcn-amd-amdhsa--gfx950\"\n.text\n"
body = ""

common.TS = TS
A = Asm(); A.uid = 100
A("s_cmp_ge_u32 s2, 256"); A("s_cbranch_scc1 L_exit")
prologue(A)
tstamp(A, 0)
if CPF:
    A.c("pull the kernel's own instructions into this die's L2 (read only): 256 threads x 3 lines of 128 B")
    A("s_getpc_b64 s[30:31]")
    A.label("L_pc")
    A("v_lshlrev_b32 v4, 7, v0")
    A("v_min_u32 v4, L_codeend-L_pc-4, v4")
    A("v_mov_b32 v5, s31")
    A("v_add_co_u32 v6, vcc, s30, v4")
    A("s_nop 1")
    A("v_addc_co_u32 v7, vcc, 0, v5, vcc")
    A("global_load_dword v249, v[6:7], off")
    for j in (1, 2):
        A(f"v_lshl_add_u32 v4, v0, 7, s3") if False else None
        A(f"v_lshlrev_b32 v4, 7, v0"); A(f"v_add_u32 v4, {j*32768}, v4")
        A("v_min_u32 v4, L_codeend-L_pc-4, v4")
        A("v_add_co_u32 v6, vcc, s30, v4")
        A("s_nop 1")
        A("v_addc_co_u32 v7, vcc, 0, v5, vcc")
        A("global_load_dword v249, v[6:7], off")
if DBGT: A("s_memrealtime s[96:97]"); A("s_waitcnt lgkmcnt(0)")
A("s_and_b32 s23, s2, 7"); A("s_lshr_b32 s24, s2, 3")
if BUD is not None: A(f"s_mov_b32 s100, {BUD}"); rc.SPIN_MAX = BUD
A("s_cmp_ge_u32 s23, 2"); A("s_cbranch_scc1 L_bulk")
if "C" in OFF: A("s_branch L_end")
A("s_cmp_ge_u32 s24, 16"); A("s_cbranch_scc1 L_chV")
common.WFL = 'nt' if NTC else ''
rc.role_chain(A, False, "L_end", flags=True)
A.label("L_exit"); A("s_endpgm")
A.label("L_chV")
rc.role_chain(A, True, "L_end", flags=True)
common.WFL = 'nt' if NTB else ''
A.label("L_bulk")
A("s_mul_i32 s25, s24, 6"); A("s_add_u32 s25, s25, s23"); A("s_sub_u32 s25, s25, 2")
A(f"s_and_b32 {s(S_HEAD)}, s25, 31")
A("s_cmp_ge_u32 s25, 64"); A("s_cbranch_scc1 L_notkv")
A(f"s_load_dwordx2 s[8:9], s[0:1], {KA['Wk']}")
A(f"s_load_dwordx2 s[10:11], s[0:1], {KA['Wv']}")
A(f"s_lshl_b32 s3, {s(S_HEAD)}, 7")
A("s_waitcnt lgkmcnt(0)")
A("s_cmp_ge_u32 s25, 32")
A("s_cselect_b32 s8, s10, s8"); A("s_cselect_b32 s9, s11, s9")
A(f"s_cselect_b32 {s(role_kv.S_DST)}, {WS_V}, {WS_K}")
A(f"s_cselect_b32 {s(role_kv.S_FLAG)}, {FL_V-FL_K}, 0")
A(f"s_add_u32 s3, s3, {FL_K}")
A(f"s_add_u32 {s(role_kv.S_FLAG)}, {s(role_kv.S_FLAG)}, s3")
if "K" not in OFF: role_kv.role_kv(A, flags=True)
A("s_branch L_end")
A.label("L_notkv")
A("s_cmp_ge_u32 s25, 96"); A("s_cbranch_scc1 L_notu")
A(f"s_lshl_b32 s3, {s(S_HEAD)}, 7")
A(f"s_mov_b32 {s(role_u.S_FLAG)}, {CN_U}"); A(f"s_add_u32 {s(role_u.S_FIN)}, s3, {FL_V}")
n0 = len(A.lines)
if "U" not in OFF: role_u.role_u(A, flags=True)
if UX:
    i0 = [i for i, l in enumerate(A.lines) if l.startswith("U_loop")][0]
    def keep(l):
        if UX & 1 and "buffer_store_dwordx4" in l: return False
        if UX & 2 and l.rstrip().endswith(" lds"): return False
        if UX & 4 and ("buffer_load_dword " in l or "buffer_store_dword " in l): return False
        if UX & 8 and "v_mfma" in l: return False
        return True
    A.lines = A.lines[:i0] + [l for l in A.lines[i0:] if keep(l)]
A("s_branch L_end")
A.label("L_notu")
A("s_cmp_ge_u32 s25, 128"); A("s_cbranch_scc1 L_notq")
if "Q" not in OFF: role_q.role_q(A, flags=True)
A("s_branch L_end")
A.label("L_notq")
A("s_cmp_ge_u32 s25, 160"); A("s_cbranch_scc1 L_notb")
if "B" not in OFF: role_b.role_b(A, flags=True)
A("s_branch L_end")
A.label("L_notb")
A("s_cmp_ge_u32 s25, 165"); A("s_cbranch_scc1 L_f")
A(f"s_sub_u32 {s(role_b.S_J)}, s25, 160")
if "3" not in OFF: role_b.role_b3(A, flags=True)
A("s_branch L_end")
A.label("L_f")
A(f"s_sub_u32 {s(role_f.S_ID)}, s25, 165"); A(f"s_mov_b32 {s(role_f.S_STR)}, {NF}")
if "F" not in OFF: role_f.role_f(A, flags=True)
A.label("L_end")
tstamp(A, 1)
if DBGT:
    for k, wg in enumerate((0, 128, 2, 58, 98+0, 170+2, 218, 255)):
        lab = A.newlabel("dt")
        A(f"s_cmp_lg_u32 s2, {wg}"); A(f"s_cbranch_scc1 {lab}")
        A("s_memrealtime s[92:93]"); A("s_waitcnt lgkmcnt(0)"); A("s_sub_u32 s92, s92, s96")
        A("v_mov_b32 v252, s92"); A(f"v_mov_b32 v253, {4*(k+1)}")
        A(f"global_store_dword v253, v252, {s(S_DBG,2)}"); A("s_waitcnt vmcnt(0)")
        A.label(lab)
A.label("L_codeend")
A("s_endpgm")
body += kernel_header(MAIN) + A.text()
txt = hdr + body + '.section .rodata,"a"\n.p2align 6\n' + kernel_desc(MAIN)
if PLAIN: txt = txt.replace(" sc0 sc1", "")
open(out, "w").write(txt)
print(len(txt), "bytes")
hazard.check(txt)
```

```python
from asmlib import *
from layout import *

KA = dict(A_x=0, mem0=8, Wq=16, Wk=24, Wv=32, Wo=40, seg=48, B_x=56, wqkv=64, wo=72, out=80, dbg=88, ws=96)
W_BYTES = 640*6144*2
X_BYTES = 2048*640*2

S_WS = 4; S_W1 = 8; S_X = 12; S_W2 = 16
S_WAVE = 20; S_HEAD = 21
V_LANE = 1
S_DBG = 98
NF = 27

def srd_finish(A, base, nbytes):
    A(f"s_and_b32 {s(base+1)}, {s(base+1)}, 0xffff")
    A(f"s_mov_b32 {s(base+2)}, {nbytes}")
    A(f"s_mov_b32 {s(base+3)}, 0x20000")

def prologue(A):
    A(f"s_load_dwordx2 {s(S_WS,2)}, s[0:1], {KA['ws']}")
    A(f"v_lshrrev_b32 v2, 6, v0")
    A(f"v_and_b32 v{V_LANE}, 63, v0")
    A(f"v_readfirstlane_b32 {s(S_WAVE)}, v2")
    A(f"s_load_dwordx2 {s(S_DBG,2)}, s[0:1], {KA['dbg']}")
    A(f"s_mov_b32 s100, 60000")
    A("s_waitcnt lgkmcnt(0)")
    srd_finish(A, S_WS, WS_SIZE)

def mul_const(A, dst, src, const, stmp):
    A(f"s_mov_b32 {s(stmp)}, {const}")
    A(f"v_mul_lo_u32 {v(dst)}, {v(src)}, {s(stmp)}")

def div24(A, q, r, u, stmp):
    A(f"v_mul_u32_u24 {v(q)}, 2731, {v(u)}")
    A(f"v_lshrrev_b32 {v(q)}, 16, {v(q)}")
    A(f"v_mul_u32_u24 {v(r)}, 24, {v(q)}")
    A(f"v_sub_u32 {v(r)}, {v(u)}, {v(r)}")

def stamp(A, idx, cond_wg=0, stmp=90):
    lab = A.newlabel("st")
    A(f"s_cmp_lg_u32 s2, {cond_wg}")
    A(f"s_cbranch_scc1 {lab}")
    A(f"s_cmp_lg_u32 {s(S_WAVE)}, 0")
    A(f"s_cbranch_scc1 {lab}")
    A(f"s_load_dwordx2 {s(stmp,2)}, s[0:1], {KA['dbg']}")
    A(f"s_memrealtime {s(stmp+2,2)}")
    A(f"s_memtime {s(stmp+4,2)}")
    A("s_waitcnt lgkmcnt(0)")
    A(f"v_mov_b32 v252, {s(stmp+2)}")
    A(f"v_mov_b32 v253, {s(stmp+4)}")
    A(f"v_mov_b32 v255, {idx*8}")
    A(f"global_store_dwordx2 v255, v[252:253], {s(stmp,2)}")
    A.label(lab)

SPIN_MAX = 60000
S_BUD = 100
def flag_load(A, vdst, vzero, s_off):
    A(f"buffer_load_dword {v(vdst)}, {v(vzero)}, {s(S_WS,4)}, {s(s_off)} offen sc1")

def flag_wait(A, vflag, vzero, s_off, s_need, s_tmp, s_cnt, sleep=2):
    ok = A.newlabel("fw_ok"); lp = A.newlabel("fw_lp")
    A.label(lp)
    A(f"v_cmp_gt_u32 vcc, {s(s_need)}, {v(vflag)}")
    A(f"s_cbranch_vccz {ok}")
    A(f"s_cmp_eq_u32 {s(S_BUD)}, 0")
    A(f"s_cbranch_scc1 {ok}")
    A(f"s_sub_u32 {s(S_BUD)}, {s(S_BUD)}, 1")
    if sleep: A(f"s_sleep {sleep}")
    flag_load(A, vflag, vzero, s_off)
    A("s_waitcnt vmcnt(0)")
    A(f"s_branch {lp}")
    A.label(ok)

def publish(A, s_val, s_off, vt=98):
    lab = A.newlabel("pf")
    A(f"s_cmp_lg_u32 {s(S_WAVE)}, 0")
    A(f"s_cbranch_scc1 {lab}")
    A(f"v_mov_b32 {v(vt)}, {s(s_val)}")
    A(f"v_mov_b32 {v(vt+1)}, 0")
    A(f"s_mov_b64 exec, 1")
    A(f"buffer_store_dword {v(vt)}, {v(vt+1)}, {s(S_WS,4)}, {s(s_off)} offen sc0 sc1")
    A(f"s_mov_b64 exec, -1")
    A.label(lab)

def init_load(A, vd, vz):
    A(f"v_mov_b32 {v(vz)}, 0")
    A(f"global_load_dword {v(vd)}, {v(vz)}, {s(S_DBG,2)} sc1")

def init_wait(A, vd, vz):
    ok = A.newlabel("iw_ok"); lp = A.newlabel("iw_lp")
    A.label(lp)
    A(f"v_cmp_gt_u32 vcc, {NF}, {v(vd)}")
    A(f"s_cbranch_vccz {ok}")
    A(f"s_cmp_eq_u32 {s(S_BUD)}, 0")
    A(f"s_cbranch_scc1 {ok}")
    A(f"s_sub_u32 {s(S_BUD)}, {s(S_BUD)}, 1")
    A("s_sleep 2")
    A(f"global_load_dword {v(vd)}, {v(vz)}, {s(S_DBG,2)} sc1")
    A("s_waitcnt vmcnt(0)")
    A(f"s_branch {lp}")
    A.label(ok)

def init_sync(A, vd=250, vz=251):
    tstamp(A, 2)
    init_load(A, vd, vz); A("s_waitcnt vmcnt(0)"); init_wait(A, vd, vz)

KST = 0
def ktick(A, k):
    if not KST: return
    A("s_memtime s[88:89]"); A("s_waitcnt lgkmcnt(0)")
    A("s_sub_u32 s87, s88, s86"); A(f"s_add_u32 s{70+k}, s{70+k}, s87"); A("s_mov_b32 s86, s88")
def kinit(A):
    if not KST: return
    for k in range(8): A(f"s_mov_b32 s{70+k}, 0")
    A("s_memtime s[88:89]"); A("s_waitcnt lgkmcnt(0)"); A("s_mov_b32 s86, s88")
def kdump(A):
    if not KST: return
    A(f"s_lshl_b32 s94, s2, 2"); A(f"s_add_u32 s94, s94, {s(S_WAVE)}"); A("s_lshl_b32 s94, s94, 5"); A(f"s_add_u32 s94, s94, {WS_SCR + 3*1048576}")
    A("v_mov_b32 v253, 0")
    for k in range(8):
        A(f"v_mov_b32 v252, s{70+k}"); A(f"buffer_store_dword v252, v253, {s(S_WS,4)}, s94 offen offset:{4*k}")
    A("s_waitcnt vmcnt(0)")

def arrive(A, s_off, vt=98):
    lab = A.newlabel("ar")
    A(f"s_cmp_lg_u32 {s(S_WAVE)}, 0")
    A(f"s_cbranch_scc1 {lab}")
    A(f"v_mov_b32 {v(vt)}, 1")
    A(f"v_mov_b32 {v(vt+1)}, 0")
    A(f"s_mov_b64 exec, 1")
    A(f"buffer_atomic_add {v(vt)}, {v(vt+1)}, {s(S_WS,4)}, {s(s_off)} offen sc1")
    A(f"s_mov_b64 exec, -1")
    A.label(lab)

TS = 0
def tstamp(A, k):
    if not TS: return
    lab = A.newlabel("ts")
    A(f"s_cmp_lg_u32 {s(S_WAVE)}, 0"); A(f"s_cbranch_scc1 {lab}")
    A("s_memrealtime s[92:93]"); A("s_lshl_b32 s94, s2, 4"); A(f"s_add_u32 s94, s94, {WS_SCR + 2097152 + 4*k}")
    A("s_waitcnt lgkmcnt(0)"); A("v_mov_b32 v118, s92"); A("v_mov_b32 v119, 0")
    A(f"buffer_store_dword v118, v119, {s(S_WS,4)}, s94 offen"); A("s_waitcnt vmcnt(0)")
    A.label(lab)

def arrive_last(A, s_off, delta, n, vt=98):
    lab = A.newlabel("al")
    A(f"s_cmp_lg_u32 {s(S_WAVE)}, 0")
    A(f"s_cbranch_scc1 {lab}")
    A(f"v_mov_b32 {v(vt)}, 1")
    A(f"v_mov_b32 {v(vt+1)}, 0")
    A(f"v_mov_b32 {v(vt+2)}, {delta}")
    A(f"s_mov_b64 exec, 1")
    A(f"buffer_atomic_add {v(vt)}, {v(vt+1)}, {s(S_WS,4)}, {s(s_off)} offen sc0 sc1")
    A("s_waitcnt vmcnt(0)")
    A(f"v_cmp_eq_u32 vcc, {n-1}, {v(vt)}")
    A(f"s_cbranch_vccz {lab}_x")
    A(f"buffer_store_dword {v(vt)}, {v(vt+2)}, {s(S_WS,4)}, {s(s_off)} offen sc0 sc1")
    A.label(lab + "_x")
    A(f"s_mov_b64 exec, -1")
    A.label(lab)

KSTART = 4
def wait_k_started(A, s_head, s0=88):
    init_sync(A)
    A(f"s_lshl_b32 {s(s0)}, {s(s_head)}, 7"); A(f"s_add_u32 {s(s0)}, {s(s0)}, {FL_K}")
    A(f"s_mov_b32 {s(s0+1)}, {KSTART}"); A("v_mov_b32 v250, 0")
    flag_wait(A, 250, 251, s0, s0+1, 0, 0, sleep=16)

WFL = ''

DBGT = 0
def dstamp(A, k, wg):
    if not DBGT: return
    lab = A.newlabel("dt")
    A(f"s_cmp_lg_u32 s2, {wg}"); A(f"s_cbranch_scc1 {lab}")
    A(f"s_cmp_lg_u32 {s(S_WAVE)}, 0"); A(f"s_cbranch_scc1 {lab}")
    A(f"s_load_dwordx2 s[94:95], s[0:1], {KA['dbg']}"); A("s_memrealtime s[92:93]"); A("s_waitcnt lgkmcnt(0)")
    A("v_mov_b32 v118, s92"); A(f"v_mov_b32 v119, {4*k}")
    A("global_store_dword v119, v118, s[94:95]"); A("s_waitcnt vmcnt(0)")
    A.label(lab)
```

```python
from common import *
import common
import role_kv, role_u, role_chain, role_init, role_q, role_f, role_b, hazard, sys
NAME = "concat_heads__memory_aug_recurrent_mem_tr__sliding_block__prompt"
out = sys.argv[1]
rc = role_chain
rc.PBMODE = 2; role_f.WARM = 2
for k_, x_ in dict(DELAYL=0, DELAYLV=0, HINTB=6, HINTA=5, K2W=0, WDEL=4, PBSTEP=4, PBSTEP0=4, PBSTEPV=3, PBSTG=1, DELAY0=2, DELAY0V=2, PREU=0,
                   XHINT=1, XEARLY=1, XLATE=20, PL_K='B', PL_P='W', DELAYBS=2, TB=30, TA=96, ZPRE2=0).items(): setattr(rc, k_, x_)
CPF = 0; NTC = 0; NTB = 0; TS = 0; DBGT = 0; OFF = ''; BUD = None; PLAIN = 0; UX = 0
for kv in sys.argv[2:]:
    k, x = kv.split('=')
    if k == "TS": TS = int(x)
    elif k == "DBGT": DBGT = int(x)
    elif k == "OFF": OFF = x
    elif k == "CPF": CPF = int(x)
    elif k == "NTC": NTC = int(x)
    elif k == "NTB": NTB = int(x)
    elif k == "QLATE": role_q.QLATE = int(x)
    elif k == "KLATE": role_kv.KLATE = int(x)
    elif k == "OUTF": role_f.OUTF = role_b.OUTF = x.replace("_", " ")
    elif k == "LEAD": role_kv.LEAD = int(x)
    elif k == "PDBG": role_f.PDBG = int(x)
    elif k == "NUMA": rc.NUMA = int(x); role_f.NUMA = int(x)
    elif k == "ULATE": role_u.ULATE = int(x)
    elif k == "KSTART": common.KSTART = int(x)
    elif k == "WARM": role_f.WARM = int(x)
    elif k == "LATE": role_b.LATE = int(x)
    elif k == "UX": UX = int(x)
    elif k == "KST": common.KST = int(x)
    elif k == "BUD": BUD = int(x)
    elif k == "PLAIN": PLAIN = int(x)
    else: setattr(rc, k, x if k.startswith('PL_') else int(x))
ref = open("cdna_kernels/" + NAME + ".s.ref").read().split("\n")
head = [l for l in ref if l.startswith(";") and "@launch" not in l and "Override launch" not in l and "grid=ceil" not in l]
MAIN = NAME + "_kernel"
hdr = "\n".join(head) + "\n"
hdr += f"; @launch grid=(256,1,1) block=(256,1,1) lds=163840\n"
hdr += ".amdgcn_target \"amdgcn-amd-amdhsa--gfx950\"\n.text\n"
body = ""

common.TS = TS
A = Asm(); A.uid = 100
A("s_cmp_ge_u32 s2, 256"); A("s_cbranch_scc1 L_exit")
prologue(A)
tstamp(A, 0)
if CPF:
    A.c("pull the kernel's own instructions into this die's L2 (read only): 256 threads x 3 lines of 128 B")
    A("s_getpc_b64 s[30:31]")
    A.label("L_pc")
    A("v_lshlrev_b32 v4, 7, v0")
    A("v_min_u32 v4, L_codeend-L_pc-4, v4")
    A("v_mov_b32 v5, s31")
    A("v_add_co_u32 v6, vcc, s30, v4")
    A("s_nop 1")
    A("v_addc_co_u32 v7, vcc, 0, v5, vcc")
    A("global_load_dword v249, v[6:7], off")
    for j in (1, 2):
        A(f"v_lshl_add_u32 v4, v0, 7, s3") if False else None
        A(f"v_lshlrev_b32 v4, 7, v0"); A(f"v_add_u32 v4, {j*32768}, v4")
        A("v_min_u32 v4, L_codeend-L_pc-4, v4")
        A("v_add_co_u32 v6, vcc, s30, v4")
        A("s_nop 1")
        A("v_addc_co_u32 v7, vcc, 0, v5, vcc")
        A("global_load_dword v249, v[6:7], off")
common.DBGT = DBGT
dstamp(A, 3, 0); dstamp(A, 4, 255)
A("s_and_b32 s23, s2, 7"); A("s_lshr_b32 s24, s2, 3")
if BUD is not None: A(f"s_mov_b32 s100, {BUD}"); rc.SPIN_MAX = BUD
A("s_cmp_ge_u32 s23, 2"); A("s_cbranch_scc1 L_bulk")
if "C" in OFF: A("s_branch L_end")
A("s_cmp_ge_u32 s24, 16"); A("s_cbranch_scc1 L_chV")
common.WFL = 'nt' if NTC else ''
rc.role_chain(A, False, "L_end", flags=True)
A.label("L_exit"); A("s_endpgm")
A.label("L_chV")
rc.role_chain(A, True, "L_end", flags=True)
common.WFL = 'nt' if NTB else ''
A.label("L_bulk")
A("s_mul_i32 s25, s24, 6"); A("s_add_u32 s25, s25, s23"); A("s_sub_u32 s25, s25, 2")
A(f"s_and_b32 {s(S_HEAD)}, s25, 31")
A("s_cmp_ge_u32 s25, 64"); A("s_cbranch_scc1 L_notkv")
A(f"s_load_dwordx2 s[8:9], s[0:1], {KA['Wk']}")
A(f"s_load_dwordx2 s[10:11], s[0:1], {KA['Wv']}")
A(f"s_lshl_b32 s3, {s(S_HEAD)}, 7")
A("s_waitcnt lgkmcnt(0)")
A("s_cmp_ge_u32 s25, 32")
A("s_cselect_b32 s8, s10, s8"); A("s_cselect_b32 s9, s11, s9")
A(f"s_cselect_b32 {s(role_kv.S_DST)}, {WS_V}, {WS_K}")
A(f"s_cselect_b32 {s(role_kv.S_FLAG)}, {FL_V-FL_K}, 0")
A(f"s_add_u32 s3, s3, {FL_K}")
A(f"s_add_u32 {s(role_kv.S_FLAG)}, {s(role_kv.S_FLAG)}, s3")
if "K" not in OFF: role_kv.role_kv(A, flags=True)
A("s_branch L_end")
A.label("L_notkv")
A("s_cmp_ge_u32 s25, 96"); A("s_cbranch_scc1 L_notu")
A(f"s_lshl_b32 s3, {s(S_HEAD)}, 7")
A(f"s_mov_b32 {s(role_u.S_FLAG)}, {CN_U}"); A(f"s_add_u32 {s(role_u.S_FIN)}, s3, {FL_V}")
n0 = len(A.lines)
if "U" not in OFF: role_u.role_u(A, flags=True)
if UX:
    i0 = [i for i, l in enumerate(A.lines) if l.startswith("U_loop")][0]
    def keep(l):
        if UX & 1 and "buffer_store_dwordx4" in l: return False
        if UX & 2 and l.rstrip().endswith(" lds"): return False
        if UX & 4 and ("buffer_load_dword " in l or "buffer_store_dword " in l): return False
        if UX & 8 and "v_mfma" in l: return False
        return True
    A.lines = A.lines[:i0] + [l for l in A.lines[i0:] if keep(l)]
A("s_branch L_end")
A.label("L_notu")
A("s_cmp_ge_u32 s25, 128"); A("s_cbranch_scc1 L_notq")
if "Q" not in OFF: role_q.role_q(A, flags=True)
A("s_branch L_end")
A.label("L_notq")
A("s_cmp_ge_u32 s25, 160"); A("s_cbranch_scc1 L_notb")
if "B" not in OFF: role_b.role_b(A, flags=True)
A("s_branch L_end")
A.label("L_notb")
A("s_cmp_ge_u32 s25, 165"); A("s_cbranch_scc1 L_f")
A(f"s_sub_u32 {s(role_b.S_J)}, s25, 160")
if "3" not in OFF: role_b.role_b3(A, flags=True)
A("s_branch L_end")
A.label("L_f")
A(f"s_sub_u32 {s(role_f.S_ID)}, s25, 165"); A(f"s_mov_b32 {s(role_f.S_STR)}, {NF}")
if "F" not in OFF: role_f.role_f(A, flags=True)
A.label("L_end")
tstamp(A, 1)
for k_, wg_ in ((8, 0), (9, 2), (10, 98), (11, 130), (12, 218), (13, 255), (14, 237)): dstamp(A, k_, wg_)
A.label("L_codeend")
A("s_endpgm")
body += kernel_header(MAIN) + A.text()
txt = hdr + body + '.section .rodata,"a"\n.p2align 6\n' + kernel_desc(MAIN)
if PLAIN: txt = txt.replace(" sc0 sc1", "")
open(out, "w").write(txt)
print(len(txt), "bytes")
hazard.check(txt)
```

```python
from common import *
import common
STAMP=False
EXP=2
NSLOT=6
KLATE=0
LEAD=0
EARLY=4

def load_w_rows384(A, srds, s_colbyte, dest_of, rowmap="dense", tiles=None, pfx="lw", vt=200, st=40, after_read=None):
    NS = NSLOT; CH = 24576
    if isinstance(srds, int): srds = [srds]
    nchunk = 10*len(srds)
    vo = [vt, vt+1, vt+2]; vb0 = vt+3; vb1 = vt+4; t0 = vt+5; t1 = vt+6; t2 = vt+7
    sOff = st; sT = st+1; sM = st+2
    A.c("---- weight load: DMA source offsets")
    for j in range(3):
        A(f"v_add_u32 {v(t0)}, {64*j}, {v(V_LANE)}")
        div24(A, t1, t2, t0, sT)
        A(f"v_mul_u32_u24 {v(t1)}, 12288, {v(t1)}")
        A(f"v_lshl_add_u32 {v(vo[j])}, {v(t2)}, 4, {v(t1)}")
    A(f"s_mul_i32 {s(sT)}, {s(S_WAVE)}, {16*12288}")
    A(f"s_add_u32 {s(sOff)}, {s(s_colbyte)}, {s(sT)}")
    A(f"s_mul_i32 {s(sM)}, {s(S_WAVE)}, 6144")
    A(f"v_lshrrev_b32 {v(t0)}, 4, {v(V_LANE)}")
    A(f"v_bfe_u32 {v(t1)}, {v(V_LANE)}, 2, 2")
    if rowmap == "dense":
        A(f"v_lshl_add_u32 {v(t0)}, {v(t0)}, 3, {v(t1)}")
    else:
        A(f"v_lshrrev_b32 {v(t2)}, 1, {v(t0)}")
        A(f"v_and_b32 {v(t0)}, 1, {v(t0)}")
        A(f"v_lshlrev_b32 {v(t0)}, 2, {v(t0)}")
        A(f"v_lshl_add_u32 {v(t0)}, {v(t2)}, 4, {v(t0)}")
        A(f"v_lshrrev_b32 {v(t2)}, 1, {v(t1)}")
        A(f"v_lshl_add_u32 {v(t0)}, {v(t2)}, 3, {v(t0)}")
        A(f"v_and_b32 {v(t1)}, 1, {v(t1)}")
        A(f"v_add_u32 {v(t0)}, {v(t0)}, {v(t1)}")
    A(f"v_mul_u32_u24 {v(t0)}, 384, {v(t0)}")
    A(f"v_and_b32 {v(t1)}, 3, {v(V_LANE)}")
    A(f"v_lshl_add_u32 {v(t0)}, {v(t1)}, 3, {v(t0)}")
    A(f"s_mul_i32 {s(sT)}, {s(S_WAVE)}, 96")
    A(f"v_add_u32 {v(vb0)}, {s(sT)}, {v(t0)}")
    A(f"v_add_u32 {v(vb1)}, {2*CH+CH}, {v(vb0)}")
    def issue(c):
        slot = c % NS
        for j in range(6):
            A(f"s_add_u32 m0, {s(sM)}, {slot*CH + j*1024}")
            A(f"s_add_u32 {s(sT)}, {s(sOff)}, {(c%10)*64*12288 + (j//3)*8*12288}")
            A(f"buffer_load_dwordx4 {v(vo[j%3])}, {s(srds[c//10],4)}, {s(sT)} offen {common.WFL} lds")
    for c in range(min(NS-1, nchunk)):
        issue(c)
    for c in range(nchunk):
        later = min(nchunk-1, c+NS-2) - c
        A(f"s_waitcnt vmcnt({6*later})")
        A("s_barrier")
        if c+NS-1 < nchunk:
            issue(c+NS-1)
        slot = c % NS
        vb = vb0 if slot < 3 else vb1
        sb = (slot if slot < 3 else slot-3)*CH
        n = 0
        for kk in range(2):
            for t in range(3):
                for half in range(2):
                    if rowmap == "dense":
                        off = kk*32*384 + half*4*384 + t*32
                    else:
                        off = kk*32*384 + half*2*384 + t*32
                    A(f"ds_read_b64_tr_b16 {dest_of(c,kk,t,half)}, {v(vb)} offset:{sb+off}")
                    n += 1
        A("s_waitcnt lgkmcnt(0)")
        if after_read: after_read(c)
    A("s_barrier")

XF = 8
ACC = 32
PK = 80
V_XSRC = 2; V_XRD = 3; V_ST0 = 4; V_ST1 = 5
S_SEG = 22; S_XOFF = 23; S_DST = 24; S_M0X = 25; S_T = 26; S_FLAG = 27; S_NSEG = 28

def wreg(t, k):
    return (t*20 + k)*4

def setup_x_stream(A):
    A(f"v_lshrrev_b32 v6, 3, {v(V_LANE)}")
    A(f"s_and_b32 {s(S_T)}, {s(S_WAVE)}, 1")
    A(f"s_lshl_b32 {s(S_T)}, {s(S_T)}, 2")
    A(f"v_lshrrev_b32 v7, 4, {v(V_LANE)}")
    A(f"v_add_u32 v7, {s(S_T)}, v7")
    A(f"v_and_b32 {v(V_XSRC)}, 7, {v(V_LANE)}")
    A(f"v_xor_b32 v7, v7, {v(V_XSRC)}")
    A(f"v_mul_u32_u24 v6, 1280, v6")
    A(f"v_lshl_add_u32 v6, v7, 4, v6")
    A(f"s_mul_i32 {s(S_T)}, {s(S_WAVE)}, {8*1280}")
    A(f"v_add_u32 {v(V_XSRC)}, {s(S_T)}, v6")
    A(f"s_mul_i32 {s(S_M0X)}, {s(S_WAVE)}, 10240")
    A(f"v_and_b32 v6, 15, {v(V_LANE)}")
    A(f"v_lshrrev_b32 v7, 1, v6")
    A(f"v_lshrrev_b32 {v(V_XRD)}, 4, {v(V_LANE)}")
    A(f"v_xor_b32 v7, v7, {v(V_XRD)}")
    A(f"v_lshlrev_b32 v7, 4, v7")
    A(f"v_lshrrev_b32 {v(V_XRD)}, 3, v6")
    A(f"v_mul_u32_u24 {v(V_XRD)}, 10240, {v(V_XRD)}")
    A(f"v_and_b32 v6, 7, v6")
    A(f"v_lshl_add_u32 v6, v6, 7, v7")
    A(f"v_add_u32 {v(V_XRD)}, {v(V_XRD)}, v6")
    A(f"v_xor_b32 {v(XB+1)}, 64, {v(V_XRD)}")
    A(f"v_mov_b32 {v(XB)}, {v(V_XRD)}")
    A(f"v_add_u32 {v(XB+2)}, 40960, {v(XB)}")
    A(f"v_add_u32 {v(XB+3)}, 40960, {v(XB+1)}")

XB = 92
V_PFO = 96; V_PFD = 97; PFD = 3
def setup_pf(A):
    A(f"s_mul_i32 {s(S_T)}, {s(S_HEAD)}, 13108")
    A(f"s_lshr_b32 {s(S_T)}, {s(S_T)}, 16")
    A(f"s_mul_i32 {s(S_T)}, {s(S_T)}, 5")
    A(f"s_sub_u32 {s(S_T)}, {s(S_HEAD)}, {s(S_T)}")
    A(f"s_lshl_b32 {s(S_T)}, {s(S_T)}, 2")
    A(f"s_add_u32 {s(S_T)}, {s(S_T)}, {s(S_WAVE)}")
    A(f"s_lshl_b32 {s(S_T)}, {s(S_T)}, 11")
    A(f"s_add_u32 {s(S_T)}, {s(S_T)}, {PFD*40960}")
    A(f"v_lshl_add_u32 {v(V_PFO)}, {v(V_LANE)}, 7, {s(S_T)}")
def first_pf(A, start=1):
    A(f"v_subrev_u32 {v(V_PFO)}, {(PFD-start)*40960}, {v(V_PFO)}")
    for d in range(start, PFD+1):
        issue_pf(A)
        if d < PFD: A(f"v_add_u32 {v(V_PFO)}, 40960, {v(V_PFO)}")
def issue_pf(A):
    A("s_mov_b64 exec, 0xffff")
    A(f"buffer_load_dword {v(V_PFD)}, {v(V_PFO)}, {s(S_X,4)}, {s(S_XOFF)} offen")
    A("s_mov_b64 exec, -1")

XSRD = S_X; XFL = ""
def x_dma(A, buf, j, nop=True):
    A(f"s_add_u32 m0, {s(S_M0X)}, {buf*40960 + j*1024 - j*128}")
    if nop: A("s_nop 0")
    A(f"buffer_load_dwordx4 {v(V_XSRC)}, {s(XSRD,4)}, {s(S_XOFF)} offen offset:{j*128} {XFL} lds")

def issue_x(A, buf):
    for j in range(10):
        x_dma(A, buf, j)

def xread(A, buf, k):
    sl = k % 3
    for tau in range(2):
        A(f"ds_read_b128 {v(XF+sl*8+tau*4,4)}, {v(XB+buf*2+(k&1))} offset:{tau*20480+(k>>1)*1024}")

def kv_epilogue(accset, srd, sflags):
    L = []
    ac = lambda t, tau: ACC + accset*24 + (t*2+tau)*4
    for tau in range(2):
        for t in range(2):
            L.append(f"v_cvt_pk_bf16_f32 {v(PK+tau*4+t*2)}, {v(ac(t,tau))}, {v(ac(t,tau)+1)}")
            L.append(f"v_cvt_pk_bf16_f32 {v(PK+tau*4+t*2+1)}, {v(ac(t,tau)+2)}, {v(ac(t,tau)+3)}")
    for tau in range(2):
        L.append(f"v_cvt_pk_bf16_f32 {v(PK+8+tau*2)}, {v(ac(2,tau))}, {v(ac(2,tau)+1)}")
        L.append(f"v_cvt_pk_bf16_f32 {v(PK+8+tau*2+1)}, {v(ac(2,tau)+2)}, {v(ac(2,tau)+3)}")
    L.append(f"buffer_store_dwordx4 {v(PK,4)}, {v(V_ST0)}, {s(srd,4)}, {s(S_DST)} offen {sflags}")
    L.append(f"buffer_store_dwordx4 {v(PK+4,4)}, {v(V_ST0+2)}, {s(srd,4)}, {s(S_DST)} offen {sflags}")
    L.append(f"v_permlane16_swap_b32 {v(PK+8)}, {v(PK+10)}")
    L.append(f"v_permlane16_swap_b32 {v(PK+9)}, {v(PK+11)}")
    L.append(f"buffer_store_dwordx4 {v(PK+8,4)}, {v(V_ST1)}, {s(srd,4)}, {s(S_DST)} offen {sflags}")
    return L

def setup_kv_store(A):
    A(f"s_lshl_b32 {s(S_T)}, {s(S_WAVE)}, 10")
    A(f"v_lshl_add_u32 {v(V_ST0)}, {v(V_LANE)}, 4, {s(S_T)}")
    A(f"v_lshrrev_b32 v7, 4, {v(V_LANE)}")
    A(f"v_and_b32 v6, 1, v7")
    A(f"v_mul_u32_u24 v6, 6144, v6")
    A(f"v_lshrrev_b32 v7, 1, v7")
    A(f"v_lshl_add_u32 v6, v7, 8, v6")
    A(f"v_and_b32 v7, 15, {v(V_LANE)}")
    A(f"v_lshl_add_u32 v6, v7, 4, v6")
    A(f"s_lshr_b32 {s(S_T)}, {s(S_WAVE)}, 1")
    A(f"s_lshl_b32 {s(S_T)}, {s(S_T)}, 10")
    A(f"s_add_u32 {s(S_T)}, {s(S_T)}, 4096")
    A(f"v_add_u32 v6, {s(S_T)}, v6")
    A(f"s_and_b32 {s(S_T)}, {s(S_WAVE)}, 1")
    A(f"s_lshl_b32 {s(S_T)}, {s(S_T)}, 9")
    A(f"v_add_u32 {v(V_ST1)}, {s(S_T)}, v6")

def role_kv(A, flags=False):
    global V_XRD
    A.c("================ role K/V ================")
    srd_finish(A, S_W1, W_BYTES)
    A(f"s_load_dwordx2 {s(S_X,2)}, s[0:1], {KA['A_x']}")
    A(f"s_mul_i32 s30, {s(S_HEAD)}, 384")
    A(f"s_mul_i32 {s(S_T)}, {s(S_HEAD)}, 12288")
    A(f"s_add_u32 {s(S_DST)}, {s(S_DST)}, {s(S_T)}")
    A("s_waitcnt lgkmcnt(0)")
    srd_finish(A, S_X, X_BYTES)
    if flags and KLATE:
        kl = A.newlabel("KV_kl")
        A(f"s_cmp_ge_u32 {s(S_DST)}, {WS_V}"); A(f"s_cbranch_scc1 {kl}")
        init_sync(A)
        A.label(kl)
    setup_pf(A)
    A(f"s_mov_b32 {s(S_XOFF)}, 0")
    first_pf(A, 0)
    def hook(c):
        if flags and c == 6: init_load(A, 250, 251)
    load_w_rows384(A, S_W1, 30, lambda c, kk, t, half: a(wreg(t, 2*c+kk)+2*half, 2), after_read=hook)
    tstamp(A, 2)
    if flags: init_wait(A, 250, 251)
    setup_x_stream(A)
    setup_kv_store(A)
    A(f"v_add_u32 v6, 6144, {v(V_ST0)}")
    A(f"v_add_u32 v7, 0, {v(V_LANE)}")
    A(f"s_mov_b32 {s(S_XOFF)}, 0")
    A(f"s_mov_b32 {s(S_SEG)}, 0")
    issue_x(A, 0)
    A(f"s_sub_u32 {s(S_DST)}, {s(S_DST)}, {NH*12288}")
    loop = A.newlabel("KV_loop")
    issue_pf(A)
    A("v_mov_b32 v100, 0"); A("v_mov_b32 v101, 0")
    A(f"s_lshl_b32 s32, {s(S_HEAD)}, 7"); A(f"s_add_u32 s32, s32, {FL_KM}")
    kinit(A)
    A.label(loop)
    for par in range(2):
        ktick(A, 0)
        if common.KST: A("s_waitcnt vmcnt(11)"); ktick(A, 1)
        A("s_waitcnt vmcnt(1)")
        ktick(A, 2)
        A("s_barrier")
        ktick(A, 3)
        for k in range(2):
            xread(A, par, k)
        fill = []
        skip = A.newlabel("KV_skip")
        if par == 0:
            A(f"s_cmp_eq_u32 {s(S_SEG)}, 0")
            A(f"s_cbranch_scc1 {skip}")
        if flags:
            l2 = A.newlabel("KV_np")
            A(f"s_cmp_le_u32 {s(S_SEG)}, {EARLY+1}"); A(f"s_cbranch_scc1 {l2}")
            publish_flag(A)
            A.label(l2)
        A("s_nop 4")
        for ins in kv_epilogue(1-par, S_WS, "sc0 sc1"):
            if "permlane" in ins and PK+8 == int(ins.split()[1][1:-1]): A("s_nop 1")
            A(ins)
        A.label(skip)
        if flags and LEAD:
            A(f"s_sub_u32 s31, {s(S_SEG)}, {LEAD}"); A("s_max_i32 s31, s31, 0")
            flag_wait(A, 100, 101, 32, 31, 0, 0, sleep=24)
        A(f"s_add_u32 {s(S_DST)}, {s(S_DST)}, {NH*12288}")
        A(f"s_add_u32 {s(S_XOFF)}, {s(S_XOFF)}, {32*1280}")
        if EXP == 0:
            issue_x(A, 1-par)
            gemm_seg(A, par)
        elif EXP == 1:
            gemm_seg(A, par)
        elif EXP == 2:
            gemm_seg(A, par, dma=1-par)
        A(f"s_add_u32 {s(S_SEG)}, {s(S_SEG)}, 1")
        if flags:
            l2 = A.newlabel("KV_ne")
            A(f"s_cmp_gt_u32 {s(S_SEG)}, {EARLY}"); A(f"s_cbranch_scc1 {l2}")
            A("s_nop 5")
            for ins in kv_epilogue(par, S_WS, "sc0 sc1"): A(ins)
            A("s_waitcnt vmcnt(0)"); A("s_barrier")
            publish(A, S_SEG, S_FLAG)
            A.label(l2)
    A(f"s_cmp_lt_u32 {s(S_SEG)}, {NSEG}")
    A(f"s_cbranch_scc1 {loop}")
    A("s_waitcnt vmcnt(0)")
    A("s_barrier")
    if flags: publish_flag(A)
    A("s_nop 7")
    for ins in kv_epilogue(1, S_WS, "sc0 sc1"):
        if "permlane" in ins and PK+8 == int(ins.split()[1][1:-1]): A("s_nop 1")
        A(ins)
    A("s_waitcnt vmcnt(0)")
    kdump(A)
    if flags:
        A("s_barrier")
        A(f"s_add_u32 {s(S_SEG)}, {s(S_SEG)}, 1")
        publish_flag(A)

def gemm_seg(A, par, dma=None, accset=None):
    if accset is None: accset = par
    for k in range(20):
        if dma is not None and k < 10:
            A(f"s_add_u32 m0, {s(S_M0X)}, {dma*40960 + k*1024 - k*128}")
        if k+2 < 20:
            xread(A, par, k+2)
            A("s_waitcnt lgkmcnt(4)")
        elif k+1 < 20:
            A("s_waitcnt lgkmcnt(2)")
        else:
            A("s_waitcnt lgkmcnt(0)")
        sl = k % 3
        for t in range(3):
            for tau in range(2):
                acc = ACC + accset*24 + (t*2+tau)*4
                c = "0" if k == 0 else v(acc,4)
                A(f"v_mfma_f32_16x16x32_bf16 {v(acc,4)}, {a(wreg(t,k),4)}, {v(XF+sl*8+tau*4,4)}, {c}")
                if dma is not None and k == 11 and t == 1 and tau == 0: issue_pf(A)
                if dma is not None and k < 10 and t == 1 and tau == 0:
                    A(f"buffer_load_dwordx4 {v(V_XSRC)}, {s(XSRD,4)}, {s(S_XOFF)} offen offset:{k*128} {XFL} lds")

def publish_flag(A):
    lab = A.newlabel("pf")
    A(f"s_cmp_lg_u32 {s(S_WAVE)}, 0")
    A(f"s_cbranch_scc1 {lab}")
    A(f"s_sub_u32 {s(S_T)}, {s(S_SEG)}, 1")
    A(f"v_mov_b32 v98, {s(S_T)}")
    A(f"v_mov_b32 v99, 0")
    A(f"s_mov_b64 exec, 1")
    A(f"buffer_store_dword v98, v99, {s(S_WS,4)}, {s(S_FLAG)} offen sc0 sc1")
    A(f"s_mov_b64 exec, -1")
    A.label(lab)
```

```python
from common import *
import common
STAMP=False
EARLY=3
ULATE=0

def load_wo(A, srd, s_base, dest_of, sparse=False, vt=200, st=40, after_read=None):
    NS = 4; CH = 40960
    vo = vt; vbA = vt+1; vbB = vt+2; t0 = vt+5; t1 = vt+6; t2 = vt+7; vb2 = vt+3; vb3 = vt+4
    sOff = st; sT = st+1; sM = st+2; sOff2 = st+3
    A(f"v_lshlrev_b32 {v(vo)}, 4, {v(V_LANE)}")
    A(f"s_mul_i32 {s(sM)}, {s(S_WAVE)}, 10240")
    A(f"s_add_u32 {s(sOff)}, {s(s_base)}, {s(sM)}")
    A(f"s_lshr_b32 {s(sT)}, {s(S_WAVE)}, 1")
    A(f"s_mul_i32 {s(sT)}, {s(sT)}, {32*1280}")
    A(f"s_add_u32 {s(sOff2)}, {s(sOff)}, {s(sT)}")
    A(f"v_lshrrev_b32 {v(t0)}, 4, {v(V_LANE)}")
    A(f"v_bfe_u32 {v(t1)}, {v(V_LANE)}, 2, 2")
    A(f"v_and_b32 {v(t2)}, 3, {v(V_LANE)}")
    A(f"v_lshlrev_b32 {v(t2)}, 3, {v(t2)}")
    A(f"s_mul_i32 {s(sT)}, {s(S_WAVE)}, 320")
    A(f"v_add_u32 {v(t2)}, {s(sT)}, {v(t2)}")
    if not sparse:
        A(f"v_lshl_add_u32 {v(vbA)}, {v(t0)}, 2, {v(t1)}")
        A(f"v_lshl_add_u32 {v(vbB)}, {v(t0)}, 3, {v(t1)}")
        A(f"v_mul_u32_u24 {v(vbA)}, 1280, {v(vbA)}")
        A(f"v_mul_u32_u24 {v(vbB)}, 1280, {v(vbB)}")
        A(f"v_add_u32 {v(vbA)}, {v(vbA)}, {v(t2)}")
        A(f"v_add_u32 {v(vbB)}, {v(vbB)}, {v(t2)}")
    else:
        A(f"v_lshrrev_b32 {v(vbA)}, 1, {v(t0)}")
        A(f"v_and_b32 {v(t0)}, 1, {v(t0)}")
        A(f"v_lshlrev_b32 {v(t0)}, 2, {v(t0)}")
        A(f"v_lshl_add_u32 {v(t0)}, {v(vbA)}, 4, {v(t0)}")
        A(f"v_lshrrev_b32 {v(vbA)}, 1, {v(t1)}")
        A(f"v_lshl_add_u32 {v(t0)}, {v(vbA)}, 3, {v(t0)}")
        A(f"v_and_b32 {v(t1)}, 1, {v(t1)}")
        A(f"v_add_u32 {v(t0)}, {v(t0)}, {v(t1)}")
        A(f"v_mul_u32_u24 {v(vbA)}, 1280, {v(t0)}")
        A(f"v_add_u32 {v(vbA)}, {v(vbA)}, {v(t2)}")
        A(f"v_mov_b32 {v(vbB)}, {v(vbA)}")
    def issue(c):
        slot = c % NS
        if c < 4: src, so = 48*c*1280, sOff
        else: src, so = (96*(c-4)+32)*1280, sOff2
        A(f"s_add_u32 {s(sT)}, {s(so)}, {src}")
        for j in range(10):
            if j % 4 == 0:
                A(f"s_add_u32 m0, {s(sM)}, {slot*CH + j*1024}")
                if j: A(f"s_add_u32 {s(sT)}, {s(sT)}, 4096")
                else: A("s_nop 0")
            A(f"buffer_load_dwordx4 {v(vo)}, {s(srd,4)}, {s(sT)} offen offset:{(j%4)*1024} {common.WFL} lds")
    for c in range(NS-1): issue(c)
    for c in range(6):
        later = min(5, c+NS-2) - c
        A(f"s_waitcnt vmcnt({10*later})")
        A("s_barrier")
        if c+NS-1 < 6: issue(c+NS-1)
        slot = c % NS
        vb = vbA if (c < 4) else vbB
        A(f"v_add_u32 {v(vb2)}, {slot*CH}, {v(vb)}")
        for t in range(10):
            for half in range(2):
                if sparse: off = half*2*1280
                else: off = half*(16*1280 if c < 4 else 4*1280)
                A(f"ds_read_b64_tr_b16 {dest_of(c,t,half)}, {v(vb2)} offset:{off + t*32}")
            if t == 6: A("s_waitcnt lgkmcnt(0)")
        A("s_waitcnt lgkmcnt(0)")
        if after_read: after_read(c)
    A("s_barrier")

VF = 8
ACC = 56
PK = 72
V_SRC = 2; V_RD = 3; V_ST = 4; V_FL = 5; V_Z = 6
S_SEG = 22; S_SRC = 23; S_DST = 24; S_M0 = 25; S_T = 26; S_FLAG = 27; S_FIN = 28; S_NEED = 29; S_CNT = 30; S_D2 = 31

def wreg(t, ks): return (t*6+ks)*4

def v_dma(A, buf):
    A(f"s_add_u32 m0, {s(S_M0)}, {buf*12288}")
    A("s_nop 0")
    for j in range(3):
        A(f"buffer_load_dwordx4 {v(V_SRC)}, {s(S_WS,4)}, {s(S_SRC)} offen offset:{j*1024} sc1 lds")

def epi(T, st):
    ac = ACC + st*8; pk = PK + st*4
    L = [f"v_cvt_pk_bf16_f32 {v(pk)}, {v(ac)}, {v(ac+1)}", f"v_cvt_pk_bf16_f32 {v(pk+1)}, {v(ac+2)}, {v(ac+3)}",
         f"v_cvt_pk_bf16_f32 {v(pk+2)}, {v(ac+4)}, {v(ac+5)}", f"v_cvt_pk_bf16_f32 {v(pk+3)}, {v(ac+6)}, {v(ac+7)}",
         f"s_add_u32 {s(S_D2)}, {s(S_DST)}, {T*1024}",
         f"buffer_store_dwordx4 {v(pk,4)}, {v(V_ST)}, {s(S_WS,4)}, {s(S_D2)} offen sc0 sc1"]
    return L

def role_u(A, flags=False):
    A.c("================ role U ================")
    A(f"s_load_dwordx2 {s(S_W1,2)}, s[0:1], {KA['Wo']}")
    A(f"s_mul_i32 s32, {s(S_HEAD)}, 245760")
    A("s_waitcnt lgkmcnt(0)")
    srd_finish(A, S_W1, W_BYTES)
    if STAMP: stamp(A,0)
    if flags and ULATE: init_sync(A)
    def hook(c):
        if flags and c == 3: init_load(A, 250, 251)
    load_wo(A, S_W1, 32, lambda c, t, half: a(wreg(t, c)+2*half, 2), after_read=hook)
    if ULATE: tstamp(A, 2)
    if STAMP: stamp(A,1)
    tstamp(A, 2)
    if flags: init_wait(A, 250, 251)
    A(f"s_mul_i32 {s(S_M0)}, {s(S_WAVE)}, 3072")
    A(f"v_lshlrev_b32 {v(V_RD)}, 4, {v(V_LANE)}")
    A(f"v_add_u32 {v(V_SRC)}, {s(S_M0)}, {v(V_RD)}")
    A(f"s_mul_i32 {s(S_T)}, {s(S_WAVE)}, {10*1024}")
    A(f"v_add_u32 {v(V_ST)}, {s(S_T)}, {v(V_RD)}")
    A(f"v_mov_b32 {v(V_Z)}, 0")
    A(f"s_mul_i32 {s(S_SRC)}, {s(S_HEAD)}, 12288")
    A(f"s_add_u32 {s(S_SRC)}, {s(S_SRC)}, {WS_V}")
    A(f"s_mul_i32 {s(S_DST)}, {s(S_HEAD)}, 40960")
    A(f"s_add_u32 {s(S_DST)}, {s(S_DST)}, {WS_U - 40*32768}")
    A(f"s_mov_b32 {s(S_SEG)}, 0")
    if flags:
        A(f"v_mov_b32 {v(V_FL)}, 0")
        A(f"s_mov_b32 {s(S_NEED)}, 1")
        flag_wait(A, V_FL, V_Z, S_FIN, S_NEED, S_T, S_CNT)
    v_dma(A, 0)
    loop = A.newlabel("U_loop")
    A("s_waitcnt vmcnt(0)")
    A.label(loop)
    for par in range(2):
        A("s_waitcnt vmcnt(9)")
        A("s_barrier")
        for ks in range(6):
            for tau in range(2):
                A(f"ds_read_b128 {v(VF+(ks*2+tau)*4,4)}, {v(V_RD)} offset:{par*12288 + (tau*6+ks)*1024}")
        skip = A.newlabel("U_skip")
        if par == 0:
            A(f"s_cmp_eq_u32 {s(S_SEG)}, 0")
            A(f"s_cbranch_scc1 {skip}")
        if flags:
            l2 = A.newlabel("U_s2")
            A(f"s_cmp_lt_u32 {s(S_SEG)}, {2+EARLY}"); A(f"s_cbranch_scc1 {l2}")
            arrive(A, S_FLAG)
            A(f"s_add_u32 {s(S_FLAG)}, {s(S_FLAG)}, 128")
            A.label(l2)
        for ins in epi(9, 1): A(ins)
        A.label(skip)
        A(f"s_add_u32 {s(S_DST)}, {s(S_DST)}, {40*32768}")
        A(f"s_add_u32 {s(S_SRC)}, {s(S_SRC)}, {NH*12288}")
        def next_v():
            if flags:
                A(f"s_add_u32 {s(S_NEED)}, {s(S_SEG)}, 2")
                A(f"s_min_u32 {s(S_NEED)}, {s(S_NEED)}, {NSEG}")
                flag_wait(A, V_FL, V_Z, S_FIN, S_NEED, S_T, S_CNT)
                flag_load(A, V_FL, V_Z, S_FIN)
            v_dma(A, 1-par)
        l3 = A.newlabel("U_lt")
        if flags: A(f"s_cmp_lt_u32 {s(S_SEG)}, {EARLY}"); A(f"s_cbranch_scc1 {l3}")
        next_v()
        A.label(l3)
        for T in range(10):
            st = T & 1
            fill = epi(T-1, 1-st) if T > 0 else []
            n = 0
            for ks in range(6):
                if T == 0:
                    A(f"s_waitcnt lgkmcnt({10-2*ks})")
                for tau in range(2):
                    acc = ACC + st*8 + tau*4
                    c = "0" if ks == 0 else v(acc,4)
                    A(f"v_mfma_f32_16x16x32_bf16 {v(acc,4)}, {v(VF+(ks*2+tau)*4,4)}, {a(wreg(T,ks),4)}, {c}")
                    n += 1
                    if n >= 4 and fill: A(fill.pop(0))
        A(f"s_add_u32 {s(S_SEG)}, {s(S_SEG)}, 1")
        if flags:
            l2 = A.newlabel("U_ne")
            A(f"s_cmp_gt_u32 {s(S_SEG)}, {EARLY}"); A(f"s_cbranch_scc1 {l2}")
            A("s_nop 5")
            for ins in epi(9, 1): A(ins)
            A("s_waitcnt vmcnt(0)"); A("s_barrier")
            arrive(A, S_FLAG)
            A(f"s_add_u32 {s(S_FLAG)}, {s(S_FLAG)}, 128")
            A(f"s_sub_u32 {s(S_SEG)}, {s(S_SEG)}, 1")
            next_v()
            A(f"s_add_u32 {s(S_SEG)}, {s(S_SEG)}, 1")
            A("s_waitcnt vmcnt(0)")
            A.label(l2)
    A(f"s_cmp_lt_u32 {s(S_SEG)}, {NSEG}")
    A(f"s_cbranch_scc1 {loop}")
    A("s_nop 7")
    for ins in epi(9, 1): A(ins)
    A("s_waitcnt vmcnt(0)")
    if STAMP: stamp(A,2)
    if flags:
        A("s_barrier")
        arrive(A, S_FLAG)
        A(f"s_add_u32 {s(S_FLAG)}, {s(S_FLAG)}, 128")
        arrive(A, S_FLAG)
```

```python
from common import *
import common
import role_kv, role_u, role_chain, role_init, role_q, role_f, role_b, hazard, sys
NAME = "concat_heads__memory_aug_recurrent_mem_tr__sliding_block__prompt"
out = sys.argv[1]
rc = role_chain
rc.PBMODE = 2; role_f.WARM = 2
for k_, x_ in dict(DELAYL=0, DELAYLV=0, HINTB=6, HINTA=5, K2W=0, WDEL=4, PBSTEP=4, PBSTEP0=4, PBSTEPV=3, PBSTG=1, DELAY0=2, DELAY0V=2, PREU=0,
                   XHINT=1, XEARLY=1, XLATE=20, PL_K='B', PL_P='W', DELAYBS=2, TB=30, TA=96, ZPRE2=0).items(): setattr(rc, k_, x_)
CPF = 0; NTC = 0; NTB = 0; TS = 0; DBGT = 0; OFF = ''; BUD = None; PLAIN = 0; UX = 0
for kv in sys.argv[2:]:
    k, x = kv.split('=')
    if k == "TS": TS = int(x)
    elif k == "DBGT": DBGT = int(x)
    elif k == "OFF": OFF = x
    elif k == "CPF": CPF = int(x)
    elif k == "NTC": NTC = int(x)
    elif k == "NTB": NTB = int(x)
    elif k == "QLATE": role_q.QLATE = int(x)
    elif k == "KLATE": role_kv.KLATE = int(x)
    elif k == "OUTF": role_f.OUTF = role_b.OUTF = x.replace("_", " ")
    elif k == "LEAD": role_kv.LEAD = int(x)
    elif k == "PDBG": role_f.PDBG = int(x)
    elif k == "NUMA": rc.NUMA = int(x); role_f.NUMA = int(x)
    elif k == "ULATE": role_u.ULATE = int(x)
    elif k == "KSTART": common.KSTART = int(x)
    elif k == "WARM": role_f.WARM = int(x)
    elif k == "LATE": role_b.LATE = int(x)
    elif k == "UX": UX = int(x)
    elif k == "KST": common.KST = int(x)
    elif k == "BUD": BUD = int(x)
    elif k == "PLAIN": PLAIN = int(x)
    else: setattr(rc, k, x if k.startswith('PL_') else int(x))
ref = open("cdna_kernels/" + NAME + ".s.ref").read().split("\n")
head = [l for l in ref if l.startswith(";") and "@launch" not in l and "Override launch" not in l and "grid=ceil" not in l]
MAIN = NAME + "_kernel"
hdr = "\n".join(head) + "\n"
hdr += f"; @launch grid=(256,1,1) block=(256,1,1) lds=163840\n"
hdr += ".amdgcn_target \"amdgcn-amd-amdhsa--gfx950\"\n.text\n"
body = ""

common.TS = TS
A = Asm(); A.uid = 100
A("s_cmp_ge_u32 s2, 256"); A("s_cbranch_scc1 L_exit")
prologue(A)
tstamp(A, 0)
if CPF:
    A.c("pull the kernel's own instructions into this die's L2 (read only): 256 threads x 3 lines of 128 B")
    A("s_getpc_b64 s[30:31]")
    A.label("L_pc")
    A("v_lshlrev_b32 v4, 7, v0")
    A("v_min_u32 v4, L_codeend-L_pc-4, v4")
    A("v_mov_b32 v5, s31")
    A("v_add_co_u32 v6, vcc, s30, v4")
    A("s_nop 1")
    A("v_addc_co_u32 v7, vcc, 0, v5, vcc")
    A("global_load_dword v249, v[6:7], off")
    for j in (1, 2):
        A(f"v_lshl_add_u32 v4, v0, 7, s3") if False else None
        A(f"v_lshlrev_b32 v4, 7, v0"); A(f"v_add_u32 v4, {j*32768}, v4")
        A("v_min_u32 v4, L_codeend-L_pc-4, v4")
        A("v_add_co_u32 v6, vcc, s30, v4")
        A("s_nop 1")
        A("v_addc_co_u32 v7, vcc, 0, v5, vcc")
        A("global_load_dword v249, v[6:7], off")
common.DBGT = DBGT
dstamp(A, 3, 0); dstamp(A, 4, 255)
if DBGT:
    A("s_cmp_lg_u32 s2, 0"); A("s_cbranch_scc1 L_nox")
    A("s_getreg_b32 s92, hwreg(HW_REG_XCC_ID, 0, 4)"); A("v_mov_b32 v118, s92"); A("v_mov_b32 v119, 60")
    A(f"global_store_dword v119, v118, {s(S_DBG,2)}"); A("s_waitcnt vmcnt(0)")
    A.label("L_nox")
A("s_and_b32 s23, s2, 7"); A("s_lshr_b32 s24, s2, 3")
if BUD is not None: A(f"s_mov_b32 s100, {BUD}"); rc.SPIN_MAX = BUD
A("s_cmp_ge_u32 s23, 2"); A("s_cbranch_scc1 L_bulk")
if "C" in OFF: A("s_branch L_end")
A("s_cmp_ge_u32 s24, 16"); A("s_cbranch_scc1 L_chV")
common.WFL = 'nt' if NTC else ''
rc.role_chain(A, False, "L_end", flags=True)
A.label("L_exit"); A("s_endpgm")
A.label("L_chV")
rc.role_chain(A, True, "L_end", flags=True)
common.WFL = 'nt' if NTB else ''
A.label("L_bulk")
A("s_mul_i32 s25, s24, 6"); A("s_add_u32 s25, s25, s23"); A("s_sub_u32 s25, s25, 2")
A(f"s_and_b32 {s(S_HEAD)}, s25, 31")
A("s_cmp_ge_u32 s25, 64"); A("s_cbranch_scc1 L_notkv")
A(f"s_load_dwordx2 s[8:9], s[0:1], {KA['Wk']}")
A(f"s_load_dwordx2 s[10:11], s[0:1], {KA['Wv']}")
A(f"s_lshl_b32 s3, {s(S_HEAD)}, 7")
A("s_waitcnt lgkmcnt(0)")
A("s_cmp_ge_u32 s25, 32")
A("s_cselect_b32 s8, s10, s8"); A("s_cselect_b32 s9, s11, s9")
A(f"s_cselect_b32 {s(role_kv.S_DST)}, {WS_V}, {WS_K}")
A(f"s_cselect_b32 {s(role_kv.S_FLAG)}, {FL_V-FL_K}, 0")
A(f"s_add_u32 s3, s3, {FL_K}")
A(f"s_add_u32 {s(role_kv.S_FLAG)}, {s(role_kv.S_FLAG)}, s3")
if "K" not in OFF: role_kv.role_kv(A, flags=True)
A("s_branch L_end")
A.label("L_notkv")
A("s_cmp_ge_u32 s25, 96"); A("s_cbranch_scc1 L_notu")
A(f"s_lshl_b32 s3, {s(S_HEAD)}, 7")
A(f"s_mov_b32 {s(role_u.S_FLAG)}, {CN_U}"); A(f"s_add_u32 {s(role_u.S_FIN)}, s3, {FL_V}")
n0 = len(A.lines)
if "U" not in OFF: role_u.role_u(A, flags=True)
if UX:
    i0 = [i for i, l in enumerate(A.lines) if l.startswith("U_loop")][0]
    def keep(l):
        if UX & 1 and "buffer_store_dwordx4" in l: return False
        if UX & 2 and l.rstrip().endswith(" lds"): return False
        if UX & 4 and ("buffer_load_dword " in l or "buffer_store_dword " in l): return False
        if UX & 8 and "v_mfma" in l: return False
        return True
    A.lines = A.lines[:i0] + [l for l in A.lines[i0:] if keep(l)]
A("s_branch L_end")
A.label("L_notu")
A("s_cmp_ge_u32 s25, 128"); A("s_cbranch_scc1 L_notq")
if "Q" not in OFF: role_q.role_q(A, flags=True)
A("s_branch L_end")
A.label("L_notq")
A("s_cmp_ge_u32 s25, 160"); A("s_cbranch_scc1 L_notb")
if "B" not in OFF: role_b.role_b(A, flags=True)
A("s_branch L_end")
A.label("L_notb")
A("s_cmp_ge_u32 s25, 165"); A("s_cbranch_scc1 L_f")
A(f"s_sub_u32 {s(role_b.S_J)}, s25, 160")
if "3" not in OFF: role_b.role_b3(A, flags=True)
A("s_branch L_end")
A.label("L_f")
A(f"s_sub_u32 {s(role_f.S_ID)}, s25, 165"); A(f"s_mov_b32 {s(role_f.S_STR)}, {NF}")
if "F" not in OFF: role_f.role_f(A, flags=True)
A.label("L_end")
tstamp(A, 1)
for k_, wg_ in ((8, 0), (9, 2), (10, 98), (11, 130), (12, 218), (13, 255), (14, 237)): dstamp(A, k_, wg_)
A.label("L_codeend")
A("s_endpgm")
body += kernel_header(MAIN) + A.text()
txt = hdr + body + '.section .rodata,"a"\n.p2align 6\n' + kernel_desc(MAIN)
if PLAIN: txt = txt.replace(" sc0 sc1", "")
open(out, "w").write(txt)
print(len(txt), "bytes")
hazard.check(txt)
```

```python
from asmlib import *
from layout import *

KA = dict(A_x=0, mem0=8, Wq=16, Wk=24, Wv=32, Wo=40, seg=48, B_x=56, wqkv=64, wo=72, out=80, dbg=88, ws=96)
W_BYTES = 640*6144*2
X_BYTES = 2048*640*2

S_WS = 4; S_W1 = 8; S_X = 12; S_W2 = 16
S_WAVE = 20; S_HEAD = 21
V_LANE = 1
S_DBG = 98
NF = 27

def srd_finish(A, base, nbytes):
    A(f"s_and_b32 {s(base+1)}, {s(base+1)}, 0xffff")
    A(f"s_mov_b32 {s(base+2)}, {nbytes}")
    A(f"s_mov_b32 {s(base+3)}, 0x20000")

def prologue(A):
    A(f"s_load_dwordx2 {s(S_WS,2)}, s[0:1], {KA['ws']}")
    A(f"v_lshrrev_b32 v2, 6, v0")
    A(f"v_and_b32 v{V_LANE}, 63, v0")
    A(f"v_readfirstlane_b32 {s(S_WAVE)}, v2")
    A(f"s_load_dwordx2 {s(S_DBG,2)}, s[0:1], {KA['dbg']}")
    A(f"s_mov_b32 s100, 60000")
    A("s_waitcnt lgkmcnt(0)")
    srd_finish(A, S_WS, WS_SIZE)

def mul_const(A, dst, src, const, stmp):
    A(f"s_mov_b32 {s(stmp)}, {const}")
    A(f"v_mul_lo_u32 {v(dst)}, {v(src)}, {s(stmp)}")

def div24(A, q, r, u, stmp):
    A(f"v_mul_u32_u24 {v(q)}, 2731, {v(u)}")
    A(f"v_lshrrev_b32 {v(q)}, 16, {v(q)}")
    A(f"v_mul_u32_u24 {v(r)}, 24, {v(q)}")
    A(f"v_sub_u32 {v(r)}, {v(u)}, {v(r)}")

def stamp(A, idx, cond_wg=0, stmp=90):
    lab = A.newlabel("st")
    A(f"s_cmp_lg_u32 s2, {cond_wg}")
    A(f"s_cbranch_scc1 {lab}")
    A(f"s_cmp_lg_u32 {s(S_WAVE)}, 0")
    A(f"s_cbranch_scc1 {lab}")
    A(f"s_load_dwordx2 {s(stmp,2)}, s[0:1], {KA['dbg']}")
    A(f"s_memrealtime {s(stmp+2,2)}")
    A(f"s_memtime {s(stmp+4,2)}")
    A("s_waitcnt lgkmcnt(0)")
    A(f"v_mov_b32 v252, {s(stmp+2)}")
    A(f"v_mov_b32 v253, {s(stmp+4)}")
    A(f"v_mov_b32 v255, {idx*8}")
    A(f"global_store_dwordx2 v255, v[252:253], {s(stmp,2)}")
    A.label(lab)

SPIN_MAX = 60000
S_BUD = 100
def flag_load(A, vdst, vzero, s_off):
    A(f"buffer_load_dword {v(vdst)}, {v(vzero)}, {s(S_WS,4)}, {s(s_off)} offen sc1")

def flag_wait(A, vflag, vzero, s_off, s_need, s_tmp, s_cnt, sleep=2):
    ok = A.newlabel("fw_ok"); lp = A.newlabel("fw_lp")
    A.label(lp)
    A(f"v_cmp_gt_u32 vcc, {s(s_need)}, {v(vflag)}")
    A(f"s_cbranch_vccz {ok}")
    A(f"s_cmp_eq_u32 {s(S_BUD)}, 0")
    A(f"s_cbranch_scc1 {ok}")
    A(f"s_sub_u32 {s(S_BUD)}, {s(S_BUD)}, 1")
    if sleep: A(f"s_sleep {sleep}")
    flag_load(A, vflag, vzero, s_off)
    A("s_waitcnt vmcnt(0)")
    A(f"s_branch {lp}")
    A.label(ok)

def publish(A, s_val, s_off, vt=98):
    lab = A.newlabel("pf")
    A(f"s_cmp_lg_u32 {s(S_WAVE)}, 0")
    A(f"s_cbranch_scc1 {lab}")
    A(f"v_mov_b32 {v(vt)}, {s(s_val)}")
    A(f"v_mov_b32 {v(vt+1)}, 0")
    A(f"s_mov_b64 exec, 1")
    A(f"buffer_store_dword {v(vt)}, {v(vt+1)}, {s(S_WS,4)}, {s(s_off)} offen sc0 sc1")
    A(f"s_mov_b64 exec, -1")
    A.label(lab)

S_KROT = 101
def init_load(A, vd, vz):
    A(f"v_lshrrev_b32 {v(vz)}, 5, {v(V_LANE)}")
    A(f"v_mul_u32_u24 {v(vz)}, 12, {v(vz)}")
    A(f"global_load_dword {v(vd)}, {v(vz)}, {s(S_DBG,2)} sc1")

def rot_check(A, vd):
    ok = A.newlabel("rc_ok")
    A(f"v_readlane_b32 s3, {v(vd)}, 32")
    A("s_nop 0")
    A("s_sub_u32 s3, s3, 1")
    A(f"s_cbranch_scc1 {ok}")
    A("s_and_b32 s3, s3, 7")
    A(f"s_cmp_eq_u32 s3, {s(S_KROT)}")
    A(f"s_cbranch_scc1 {ok}")
    A(f"s_mov_b32 {s(S_KROT)}, s3")
    A("s_waitcnt vmcnt(0) lgkmcnt(0)")
    A("s_barrier")
    A("s_branch L_dispatch")
    A.label(ok)

def init_wait(A, vd, vz):
    ok = A.newlabel("iw_ok"); lp = A.newlabel("iw_lp")
    A.label(lp)
    rot_check(A, vd)
    A(f"v_cmp_gt_u32 vcc, {NF}, {v(vd)}")
    A("s_cmp_eq_u32 vcc_lo, 0")
    A(f"s_cbranch_scc1 {ok}")
    A(f"s_cmp_eq_u32 {s(S_BUD)}, 0")
    A(f"s_cbranch_scc1 {ok}")
    A(f"s_sub_u32 {s(S_BUD)}, {s(S_BUD)}, 1")
    A("s_sleep 2")
    A(f"global_load_dword {v(vd)}, {v(vz)}, {s(S_DBG,2)} sc1")
    A("s_waitcnt vmcnt(0)")
    A(f"s_branch {lp}")
    A.label(ok)

def init_sync(A, vd=250, vz=251):
    tstamp(A, 2)
    init_load(A, vd, vz); A("s_waitcnt vmcnt(0)"); init_wait(A, vd, vz)

KST = 0
def ktick(A, k):
    if not KST: return
    A("s_memtime s[88:89]"); A("s_waitcnt lgkmcnt(0)")
    A("s_sub_u32 s87, s88, s86"); A(f"s_add_u32 s{70+k}, s{70+k}, s87"); A("s_mov_b32 s86, s88")
def kinit(A):
    if not KST: return
    for k in range(8): A(f"s_mov_b32 s{70+k}, 0")
    A("s_memtime s[88:89]"); A("s_waitcnt lgkmcnt(0)"); A("s_mov_b32 s86, s88")
def kdump(A):
    if not KST: return
    A(f"s_lshl_b32 s94, s2, 2"); A(f"s_add_u32 s94, s94, {s(S_WAVE)}"); A("s_lshl_b32 s94, s94, 5"); A(f"s_add_u32 s94, s94, {WS_SCR + 3*1048576}")
    A("v_mov_b32 v253, 0")
    for k in range(8):
        A(f"v_mov_b32 v252, s{70+k}"); A(f"buffer_store_dword v252, v253, {s(S_WS,4)}, s94 offen offset:{4*k}")
    A("s_waitcnt vmcnt(0)")

def arrive(A, s_off, vt=98):
    lab = A.newlabel("ar")
    A(f"s_cmp_lg_u32 {s(S_WAVE)}, 0")
    A(f"s_cbranch_scc1 {lab}")
    A(f"v_mov_b32 {v(vt)}, 1")
    A(f"v_mov_b32 {v(vt+1)}, 0")
    A(f"s_mov_b64 exec, 1")
    A(f"buffer_atomic_add {v(vt)}, {v(vt+1)}, {s(S_WS,4)}, {s(s_off)} offen sc1")
    A(f"s_mov_b64 exec, -1")
    A.label(lab)

TS = 0
def tstamp(A, k):
    if not TS: return
    lab = A.newlabel("ts")
    A(f"s_cmp_lg_u32 {s(S_WAVE)}, 0"); A(f"s_cbranch_scc1 {lab}")
    A("s_memrealtime s[92:93]"); A("s_lshl_b32 s94, s2, 4"); A(f"s_add_u32 s94, s94, {WS_SCR + 2097152 + 4*k}")
    A("s_waitcnt lgkmcnt(0)"); A("v_mov_b32 v118, s92"); A("v_mov_b32 v119, 0")
    A(f"buffer_store_dword v118, v119, {s(S_WS,4)}, s94 offen"); A("s_waitcnt vmcnt(0)")
    A.label(lab)

def arrive_last(A, s_off, delta, n, vt=98):
    lab = A.newlabel("al")
    A(f"s_cmp_lg_u32 {s(S_WAVE)}, 0")
    A(f"s_cbranch_scc1 {lab}")
    A(f"v_mov_b32 {v(vt)}, 1")
    A(f"v_mov_b32 {v(vt+1)}, 0")
    A(f"v_mov_b32 {v(vt+2)}, {delta}")
    A(f"s_mov_b64 exec, 1")
    A(f"buffer_atomic_add {v(vt)}, {v(vt+1)}, {s(S_WS,4)}, {s(s_off)} offen sc0 sc1")
    A("s_waitcnt vmcnt(0)")
    A(f"v_cmp_eq_u32 vcc, {n-1}, {v(vt)}")
    A(f"s_cbranch_vccz {lab}_x")
    A(f"buffer_store_dword {v(vt)}, {v(vt+2)}, {s(S_WS,4)}, {s(s_off)} offen sc0 sc1")
    A.label(lab + "_x")
    A(f"s_mov_b64 exec, -1")
    A.label(lab)

KSTART = 4
def wait_k_started(A, s_head, s0=88):
    init_sync(A)
    A(f"s_lshl_b32 {s(s0)}, {s(s_head)}, 7"); A(f"s_add_u32 {s(s0)}, {s(s0)}, {FL_K}")
    A(f"s_mov_b32 {s(s0+1)}, {KSTART}"); A("v_mov_b32 v250, 0"); A("v_mov_b32 v251, 0")
    flag_wait(A, 250, 251, s0, s0+1, 0, 0, sleep=16)

WFL = ''

DBGT = 0
def dstamp(A, k, wg):
    if not DBGT: return
    lab = A.newlabel("dt")
    A(f"s_cmp_lg_u32 s2, {wg}"); A(f"s_cbranch_scc1 {lab}")
    A(f"s_cmp_lg_u32 {s(S_WAVE)}, 0"); A(f"s_cbranch_scc1 {lab}")
    A(f"s_load_dwordx2 s[94:95], s[0:1], {KA['dbg']}"); A("s_memrealtime s[92:93]"); A("s_waitcnt lgkmcnt(0)")
    A("v_mov_b32 v118, s92"); A(f"v_mov_b32 v119, {4*k}")
    A("global_store_dword v119, v118, s[94:95]"); A("s_waitcnt vmcnt(0)")
    A.label(lab)
```

```python
from common import *
V_L16 = 2; V_OST = 3; V_Z = 4; V_FA = 5; V_FU = 6; V_FP = 7; V_P2 = 8
PF = 12
ZF = 44
D = 76
S_ID = 22; S_SEGC = 23; S_CB = 24; S_T = 26; S_T2 = 27; S_NEED = 28; S_CNT = 29; S_US = 30; S_PS = 31; S_ZS = 32; S_OS = 33; S_M0 = 34; S_FB = 35; S_STR = 36
NTASK = 640
OUTF = 'nt'
WARM = 1

def lanes_wait(A, vfl, s_need):
    pass

def wait_cnt(A, base, need, s_known, sleep=6):
    sk = A.newlabel("F_kn")
    A(f"s_cmp_lt_u32 {s(S_SEGC)}, {s(s_known)}"); A(f"s_cbranch_scc1 {sk}")
    A(f"s_lshl_b32 {s(S_FB)}, {s(S_SEGC)}, 7")
    A(f"s_add_u32 {s(S_FB)}, {s(S_FB)}, {base}")
    A(f"s_mov_b32 {s(S_NEED)}, {need}")
    A(f"v_mov_b32 {v(V_FU)}, 0")
    flag_wait(A, V_FU, V_Z, S_FB, S_NEED, S_T, S_CNT, sleep=sleep)
    A(f"s_add_u32 {s(s_known)}, {s(S_SEGC)}, 1")
    A.label(sk)

def decode(A, s_id):
    A(f"s_mul_i32 {s(S_SEGC)}, {s(s_id)}, 6554")
    A(f"s_lshr_b32 {s(S_SEGC)}, {s(S_SEGC)}, 16")
    A(f"s_mul_i32 {s(S_T)}, {s(S_SEGC)}, 10")
    A(f"s_sub_u32 {s(S_CB)}, {s(s_id)}, {s(S_T)}")
    A(f"s_lshl_b32 {s(S_CB)}, {s(S_CB)}, 2")
    A(f"s_add_u32 {s(S_CB)}, {s(S_CB)}, {s(S_WAVE)}")

def issue_u(A, base, flags):
    decode(A, S_T2)
    if flags: wait_cnt(A, CN_U, 32, 37)
    A(f"s_mul_i32 {s(S_US)}, {s(S_SEGC)}, {40*32768}")
    A(f"s_lshl_b32 {s(S_T)}, {s(S_CB)}, 10")
    A(f"s_add_u32 {s(S_US)}, {s(S_US)}, {s(S_T)}")
    A(f"s_add_u32 {s(S_US)}, {s(S_US)}, {WS_U}")
    for h in range(32):
        if h: A(f"s_add_u32 {s(S_US)}, {s(S_US)}, 40960")
        A(f"buffer_load_dwordx4 {a(base+4*h,4)}, {v(V_L16)}, {s(S_WS,4)}, {s(S_US)} offen sc1")

def warm(A):
    A(f"s_load_dwordx2 {s(S_X,2)}, s[0:1], {KA['A_x']}")
    A(f"s_load_dwordx2 {s(S_W1,2)}, s[0:1], {KA['B_x']}")
    A(f"s_sub_u32 {s(S_T)}, {s(S_ID)}, 2")
    A(f"s_lshl_b32 {s(S_T)}, {s(S_T)}, 2")
    A(f"s_add_u32 {s(S_T)}, {s(S_T)}, {s(S_WAVE)}")
    A(f"s_lshl_b32 {s(S_T)}, {s(S_T)}, 13")
    A(f"v_lshlrev_b32 {v(PF+16)}, 7, {v(V_LANE)}")
    A("s_waitcnt lgkmcnt(0)")
    srd_finish(A, S_X, X_BYTES); srd_finish(A, S_W1, X_BYTES)
    for j in range(3 if WARM == 1 else 1):
        A(f"buffer_load_dword {v(PF+17)}, {v(PF+16)}, {s(S_X,4)}, {s(S_T)} offen")
        if WARM == 1: A(f"buffer_load_dword {v(PF+18)}, {v(PF+16)}, {s(S_W1,4)}, {s(S_T)} offen")
        A(f"s_add_u32 {s(S_T)}, {s(S_T)}, {NF*4*8192}")

NUMA = 1
PDBG = 0
def probe(A):
    sk = A.newlabel("F_np")
    A(f"s_lshr_b32 {s(S_T)}, {s(S_ID)}, 1"); A(f"s_or_b32 {s(S_T)}, {s(S_T)}, {s(S_WAVE)}"); A(f"s_cbranch_scc1 {sk}")
    A(f"s_lshl_b32 {s(S_T)}, {s(S_ID)}, 21")
    for j in range(8): A(f"s_add_u32 s{44+j}, {s(S_T)}, {MB_R + RPP*RSTEP + j*4096}")
    A("s_mov_b64 exec, 0xffff")
    for j in range(8): A(f"buffer_store_dwordx4 {v(PF,4)}, {v(V_L16)}, {s(S_WS,4)}, s{44+j} offen sc0 sc1")
    A("s_mov_b64 exec, 1")
    A("s_waitcnt vmcnt(0)")
    A(f"s_mov_b32 {s(S_US)}, -1"); A(f"s_mov_b32 {s(S_PS)}, -1")
    for i in range(16):
        j = [0, 2, 1, 3, 4, 6, 5, 7][i & 7]
        acc = S_PS if j & 2 else S_US
        A("s_memtime s[40:41]"); A("s_waitcnt lgkmcnt(0)")
        A(f"buffer_load_dword {v(PF+13)}, {v(V_Z)}, {s(S_WS,4)}, s{44+j} offen offset:{(i>>3)*128} sc1")
        A("s_waitcnt vmcnt(0)")
        A("s_memtime s[42:43]"); A("s_waitcnt lgkmcnt(0)")
        A("s_sub_u32 s42, s42, s40"); A(f"s_min_u32 {s(acc)}, {s(acc)}, s42")
    A(f"s_getreg_b32 {s(S_T2)}, hwreg(HW_REG_XCC_ID, 2, 1)")
    A(f"s_cmp_gt_u32 {s(S_US)}, {s(S_PS)}")
    A(f"s_cselect_b32 {s(S_T)}, 1, 0")
    A(f"s_xor_b32 {s(S_T)}, {s(S_T)}, {s(S_T2)}")
    A(f"v_mov_b32 {v(PF+12)}, {s(S_T)}")
    A(f"s_lshl_b32 {s(S_T)}, {s(S_ID)}, 2"); A(f"v_mov_b32 {v(PF+13)}, {s(S_T)}")
    A(f"global_store_dword {v(PF+13)}, {v(PF+12)}, {s(S_DBG,2)} offset:4 sc0 sc1")
    if PDBG:
        A(f"v_mov_b32 {v(PF+14)}, {s(S_US)}"); A(f"v_mov_b32 {v(PF+15)}, {s(S_PS)}")
        A(f"global_store_dwordx2 {v(V_Z)}, {v(PF+14,2)}, {s(S_DBG,2)} offset:16")
    A("s_mov_b64 exec, -1")
    A("s_waitcnt vmcnt(0)")
    A.label(sk)

def self_init(A):
    npg = (POISON_END - WS_MB + 4095)//4096
    for i in range(4): A(f"v_mov_b32 {v(PF+i)}, -1")
    A(f"s_lshl_b32 {s(S_T)}, {s(S_WAVE)}, 10")
    A(f"v_add_u32 {v(PF+4)}, {s(S_T)}, {v(V_L16)}")
    skp = A.newlabel("F_skip")
    A(f"s_sub_u32 {s(S_OS)}, {s(S_ID)}, 2")
    A(f"s_cbranch_scc1 {skp}")
    A(f"s_lshl_b32 {s(S_T)}, {s(S_OS)}, 12")
    A(f"s_add_u32 {s(S_T)}, {s(S_T)}, {WS_MB}")
    lp = A.newlabel("F_po")
    A.label(lp)
    A(f"buffer_store_dwordx4 {v(PF,4)}, {v(PF+4)}, {s(S_WS,4)}, {s(S_T)} offen sc0 sc1")
    A(f"s_add_u32 {s(S_T)}, {s(S_T)}, {(NF-2)*4096}")
    A(f"s_cmp_lt_u32 {s(S_T)}, {POISON_END}")
    A(f"s_cbranch_scc1 {lp}")
    lp = A.newlabel("F_pr")
    A(f"s_mov_b32 {s(S_T2)}, {s(S_OS)}")
    A.label(lp)
    A(f"s_mul_i32 {s(S_US)}, {s(S_T2)}, 6554"); A(f"s_lshr_b32 {s(S_US)}, {s(S_US)}, 16")
    A(f"s_mul_i32 {s(S_PS)}, {s(S_US)}, 10"); A(f"s_sub_u32 {s(S_PS)}, {s(S_T2)}, {s(S_PS)}")
    A(f"s_cmp_eq_u32 {s(S_PS)}, 9"); A(f"s_cselect_b32 {s(S_PS)}, 10, {s(S_PS)}")
    A(f"s_lshl_b32 {s(S_PS)}, {s(S_PS)}, 12")
    A(f"s_mul_i32 {s(S_T)}, {s(S_US)}, {RSTEP}")
    A(f"s_cmp_ge_u32 {s(S_US)}, {RPP}"); A(f"s_cselect_b32 {s(S_US)}, {(2<<20) - RPP*RSTEP}, 0")
    A(f"s_add_u32 {s(S_T)}, {s(S_T)}, {s(S_US)}"); A(f"s_add_u32 {s(S_T)}, {s(S_T)}, {s(S_PS)}"); A(f"s_add_u32 {s(S_T)}, {s(S_T)}, {MB_R}")
    A(f"buffer_store_dwordx4 {v(PF,4)}, {v(PF+4)}, {s(S_WS,4)}, {s(S_T)} offen sc0 sc1")
    A(f"s_cmp_ge_u32 {s(S_PS)}, {8<<12}"); A("s_cselect_b32 exec_lo, 0xffff, 0"); A("s_mov_b32 exec_hi, 0")
    A(f"s_add_u32 {s(S_T)}, {s(S_T)}, 4096")
    A(f"buffer_store_dwordx4 {v(PF,4)}, {v(V_L16)}, {s(S_WS,4)}, {s(S_T)} offen sc0 sc1")
    A("s_mov_b64 exec, -1")
    A(f"s_add_u32 {s(S_T2)}, {s(S_T2)}, {NF-2}")
    A(f"s_cmp_lt_u32 {s(S_T2)}, 630")
    A(f"s_cbranch_scc1 {lp}")
    sk = A.newlabel("F_nz")
    A(f"s_cmp_ge_u32 {s(S_OS)}, {(FLAGS_END-FLAGS)//4096}"); A(f"s_cbranch_scc1 {sk}")
    for i in range(4): A(f"v_mov_b32 {v(PF+8+i)}, 0")
    A(f"s_lshl_b32 {s(S_T)}, {s(S_OS)}, 12")
    A(f"s_add_u32 {s(S_T)}, {s(S_T)}, {FLAGS}")
    A(f"buffer_store_dwordx4 {v(PF+8,4)}, {v(PF+4)}, {s(S_WS,4)}, {s(S_T)} offen sc0 sc1")
    A.label(sk)
    A.label(skp)
    A("s_waitcnt vmcnt(0)")
    if NUMA: probe(A)
    A("s_barrier")
    sk = A.newlabel("F_na")
    A(f"s_cmp_lg_u32 {s(S_WAVE)}, 0"); A(f"s_cbranch_scc1 {sk}")
    A(f"v_mov_b32 {v(PF)}, 1")
    A("s_mov_b64 exec, 1")
    A(f"global_atomic_add {v(V_Z)}, {v(PF)}, {s(S_DBG,2)} sc1")
    A("s_mov_b64 exec, -1")
    A.label(sk)
    init_sync(A, PF+5, PF+6)
    assert POISON_END % 4096 == 0 and FLAGS == POISON_END

def role_f(A, flags=False):
    A.c("================ role F ================")
    A(f"s_load_dwordx2 {s(S_W2,2)}, s[0:1], {KA['out']}")
    A(f"v_lshlrev_b32 {v(V_L16)}, 4, {v(V_LANE)}")
    A(f"v_add_u32 {v(V_P2)}, 40960, {v(V_L16)}")
    A(f"v_and_b32 v9, 31, {v(V_LANE)}")
    A(f"v_mul_u32_u24 v9, 2560, v9")
    A(f"v_lshrrev_b32 v10, 5, {v(V_LANE)}")
    A(f"v_lshl_add_u32 {v(V_OST)}, v10, 4, v9")
    A(f"v_mov_b32 {v(V_Z)}, 0")
    A("s_mov_b32 s37, 0"); A("s_mov_b32 s38, 0"); A("s_mov_b32 s39, 0")
    A(f"s_mul_i32 {s(S_M0)}, {s(S_WAVE)}, 20480")
    A("s_waitcnt lgkmcnt(0)")
    srd_finish(A, S_W2, 2048*1280*2)
    if flags:
        lp = A.newlabel("F_rw"); ok = A.newlabel("F_rwo")
        A.label(lp)
        init_load(A, PF, PF+1)
        A("s_waitcnt vmcnt(0)")
        A(f"v_cmp_eq_u32 vcc, 0, {v(PF)}")
        A("s_cmp_eq_u32 vcc_hi, 0"); A(f"s_cbranch_scc1 {ok}")
        A(f"s_sub_u32 {s(S_BUD)}, {s(S_BUD)}, 1"); A(f"s_cbranch_scc0 {lp}")
        A(f"s_mov_b32 {s(S_BUD)}, 0")
        A.label(ok)
        rot_check(A, PF)
    if flags and WARM:
        sw = A.newlabel('F_nw'); A(f's_cmp_lt_u32 {s(S_ID)}, 2'); A(f's_cbranch_scc1 {sw}'); warm(A); A.label(sw)
    if flags: self_init(A)
    A(f"s_mov_b32 {s(S_T2)}, {s(S_ID)}")
    issue_u(A, 0, flags)
    loop = A.newlabel("F_loop"); done = A.newlabel("F_done")
    A.label(loop)
    for par in range(2):
        A(f"s_mov_b32 {s(S_T2)}, {s(S_ID)}")
        decode(A, S_T2)
        A(f"s_mul_i32 {s(S_PS)}, {s(S_SEGC)}, 81920")
        A(f"s_add_u32 {s(S_PS)}, {s(S_PS)}, {s(S_M0)}")
        A(f"s_add_u32 {s(S_PS)}, {s(S_PS)}, {WS_P}")
        A(f"s_mul_i32 {s(S_ZS)}, {s(S_SEGC)}, 327680")
        A(f"s_lshl_b32 {s(S_T)}, {s(S_CB)}, 13")
        A(f"s_add_u32 {s(S_ZS)}, {s(S_ZS)}, {s(S_T)}")
        A(f"s_add_u32 {s(S_ZS)}, {s(S_ZS)}, {WS_Z}")
        A(f"s_mul_i32 {s(S_OS)}, {s(S_SEGC)}, {32*2560}")
        A(f"s_lshl_b32 {s(S_T)}, {s(S_CB)}, 5")
        A(f"s_add_u32 {s(S_OS)}, {s(S_OS)}, {s(S_T)}")
        if flags:
            wait_cnt(A, RD_Q, 1, 38, sleep=3)
            A(f"s_lshl_b32 {s(S_FB)}, {s(S_SEGC)}, 7"); A(f"s_add_u32 {s(S_FB)}, {s(S_FB)}, {CN_Z}")
            flag_load(A, V_FP, V_Z, S_FB)
        A("s_barrier")
        for j in range(20):
            if j % 4 == 0:
                A(f"s_add_u32 m0, {s(S_M0)}, {j*1024}")
                A(f"s_add_u32 {s(S_T)}, {s(S_PS)}, {j*1024}")
            A(f"buffer_load_dwordx4 {v(V_L16)}, {s(S_WS,4)}, {s(S_T)} offen offset:{(j%4)*1024} sc1 lds")
        if flags:
            A("s_waitcnt vmcnt(20)")
            A(f"s_mov_b32 {s(S_NEED)}, 64")
            flag_wait(A, V_FP, V_Z, S_FB, S_NEED, S_T, S_CNT, sleep=3)
        for j in range(8):
            if j == 4: A(f"s_add_u32 {s(S_ZS)}, {s(S_ZS)}, 4096")
            A(f"buffer_load_dwordx4 {v(ZF+4*j,4)}, {v(V_L16)}, {s(S_WS,4)}, {s(S_ZS)} offen offset:{(j%4)*1024} sc1")
        A(f"s_add_u32 {s(S_T2)}, {s(S_ID)}, {s(S_STR)}")
        A(f"s_min_u32 {s(S_T2)}, {s(S_T2)}, {NTASK-1}")
        if flags:
            pass
        issue_u(A, 128*(1-par), flags)
        A("s_waitcnt vmcnt(32)")
        A("s_barrier")
        def rd(j):
            sl = j % 4
            A(f"ds_read_b128 {v(PF+sl*8,4)}, {v(V_L16)} offset:{j*1024}")
            A(f"ds_read_b128 {v(PF+sl*8+4,4)}, {v(V_P2)} offset:{j*1024}")
        for j in range(3): rd(j)
        for j in range(40):
            if j+3 < 40:
                rd(j+3); A("s_waitcnt lgkmcnt(6)")
            else: A(f"s_waitcnt lgkmcnt({2*(39-j)})")
            a_ = a(128*par+4*j,4) if j < 32 else v(ZF+4*(j-32),4)
            for q in range(2):
                A(f"v_mfma_f32_16x16x32_bf16 {v(D+4*q,4)}, {a_}, {v(PF+(j%4)*8+4*q,4)}, {'0' if j==0 else v(D+4*q,4)}")
        A("s_nop 7")
        A(f"v_cvt_pk_bf16_f32 {v(D+8)}, {v(D)}, {v(D+1)}")
        A(f"v_cvt_pk_bf16_f32 {v(D+9)}, {v(D+2)}, {v(D+3)}")
        A(f"v_cvt_pk_bf16_f32 {v(D+10)}, {v(D+4)}, {v(D+5)}")
        A(f"v_cvt_pk_bf16_f32 {v(D+11)}, {v(D+6)}, {v(D+7)}")
        A("s_nop 1")
        A(f"v_permlane16_swap_b32 {v(D+8)}, {v(D+10)}")
        A(f"v_permlane16_swap_b32 {v(D+9)}, {v(D+11)}")
        A(f"buffer_store_dwordx4 {v(D+8,4)}, {v(V_OST)}, {s(S_W2,4)}, {s(S_OS)} offen {OUTF}")
        A(f"s_add_u32 {s(S_ID)}, {s(S_ID)}, {s(S_STR)}")
        A(f"s_cmp_ge_u32 {s(S_ID)}, {NTASK}")
        A(f"s_cbranch_scc1 {done}")
    A(f"s_branch {loop}")
    A.label(done)
    A("s_waitcnt vmcnt(0)")
```

```python
from common import *
import common
import role_kv, role_u, role_chain, role_init, role_q, role_f, role_b, hazard, sys
NAME = "concat_heads__memory_aug_recurrent_mem_tr__sliding_block__prompt"
out = sys.argv[1]
rc = role_chain
rc.PBMODE = 2; role_f.WARM = 2
for k_, x_ in dict(DELAYL=0, DELAYLV=0, HINTB=6, HINTA=5, K2W=0, WDEL=4, PBSTEP=4, PBSTEP0=4, PBSTEPV=3, PBSTG=1, DELAY0=2, DELAY0V=2, PREU=0,
                   XHINT=1, XEARLY=1, XLATE=20, PL_K='B', PL_P='W', DELAYBS=2, TB=30, TA=96, ZPRE2=0).items(): setattr(rc, k_, x_)
ROT = 1; CPF = 0; NTC = 0; NTB = 0; TS = 0; DBGT = 0; OFF = ''; BUD = None; PLAIN = 0; UX = 0
for kv in sys.argv[2:]:
    k, x = kv.split('=')
    if k == "TS": TS = int(x)
    elif k == "DBGT": DBGT = int(x)
    elif k == "OFF": OFF = x
    elif k == "ROT": ROT = int(x)
    elif k == "CPF": CPF = int(x)
    elif k == "NTC": NTC = int(x)
    elif k == "NTB": NTB = int(x)
    elif k == "QLATE": role_q.QLATE = int(x)
    elif k == "KLATE": role_kv.KLATE = int(x)
    elif k == "OUTF": role_f.OUTF = role_b.OUTF = x.replace("_", " ")
    elif k == "LEAD": role_kv.LEAD = int(x)
    elif k == "PDBG": role_f.PDBG = int(x)
    elif k == "NUMA": rc.NUMA = int(x); role_f.NUMA = int(x)
    elif k == "ULATE": role_u.ULATE = int(x)
    elif k == "KSTART": common.KSTART = int(x)
    elif k == "WARM": role_f.WARM = int(x)
    elif k == "LATE": role_b.LATE = int(x)
    elif k == "UX": UX = int(x)
    elif k == "KST": common.KST = int(x)
    elif k == "BUD": BUD = int(x)
    elif k == "PLAIN": PLAIN = int(x)
    else: setattr(rc, k, x if k.startswith('PL_') else int(x))
ref = open("cdna_kernels/" + NAME + ".s.ref").read().split("\n")
head = [l for l in ref if l.startswith(";") and "@launch" not in l and "Override launch" not in l and "grid=ceil" not in l]
MAIN = NAME + "_kernel"
hdr = "\n".join(head) + "\n"
hdr += f"; @launch grid=(256,1,1) block=(256,1,1) lds=163840\n"
hdr += ".amdgcn_target \"amdgcn-amd-amdhsa--gfx950\"\n.text\n"
body = ""

common.TS = TS
A = Asm(); A.uid = 100
A("s_cmp_ge_u32 s2, 256"); A("s_cbranch_scc1 L_exit")
prologue(A)
tstamp(A, 0)
if CPF:
    A.c("pull the kernel's own instructions into this die's L2 (read only): 256 threads x 3 lines of 128 B")
    A("s_getpc_b64 s[30:31]")
    A.label("L_pc")
    A("v_lshlrev_b32 v4, 7, v0")
    A("v_min_u32 v4, L_codeend-L_pc-4, v4")
    A("v_mov_b32 v5, s31")
    A("v_add_co_u32 v6, vcc, s30, v4")
    A("s_nop 1")
    A("v_addc_co_u32 v7, vcc, 0, v5, vcc")
    A("global_load_dword v249, v[6:7], off")
    for j in (1, 2):
        A(f"v_lshl_add_u32 v4, v0, 7, s3") if False else None
        A(f"v_lshlrev_b32 v4, 7, v0"); A(f"v_add_u32 v4, {j*32768}, v4")
        A("v_min_u32 v4, L_codeend-L_pc-4, v4")
        A("v_add_co_u32 v6, vcc, s30, v4")
        A("s_nop 1")
        A("v_addc_co_u32 v7, vcc, 0, v5, vcc")
        A("global_load_dword v249, v[6:7], off")
common.DBGT = DBGT
dstamp(A, 4, 0)
if DBGT:
    A("s_cmp_lg_u32 s2, 0"); A("s_cbranch_scc1 L_nox")
    A("s_getreg_b32 s92, hwreg(HW_REG_XCC_ID, 0, 4)"); A("v_mov_b32 v118, s92"); A("v_mov_b32 v119, 60")
    A(f"global_store_dword v119, v118, {s(S_DBG,2)}"); A("s_waitcnt vmcnt(0)")
    A.label("L_nox")
A.c("role numbering: rotate the workgroup id so that class = die under round-robin placement (speed only; checked against workgroup 0)")
A(f"s_getreg_b32 {s(S_KROT)}, hwreg(HW_REG_XCC_ID, 0, 3)")
A(f"s_sub_u32 {s(S_KROT)}, {s(S_KROT)}, s2"); A(f"s_and_b32 {s(S_KROT)}, {s(S_KROT)}, 7")
if not ROT: A(f"s_mov_b32 {s(S_KROT)}, 0")
A(f"s_or_b32 s3, s2, {s(S_WAVE)}"); A("s_cbranch_scc1 L_dispatch")
A(f"s_add_u32 s3, {s(S_KROT)}, 1"); A("v_mov_b32 v4, s3"); A("v_mov_b32 v5, 0"); A("s_mov_b64 exec, 1")
A(f"global_store_dword v5, v4, {s(S_DBG,2)} offset:12 sc0 sc1"); A("s_mov_b64 exec, -1")
A.label("L_dispatch")
A(f"s_add_u32 s23, s2, {s(S_KROT)}"); A("s_and_b32 s23, s23, 7"); A("s_lshr_b32 s24, s2, 3")
if BUD is not None: A(f"s_mov_b32 s100, {BUD}"); rc.SPIN_MAX = BUD
A("s_cmp_ge_u32 s23, 2"); A("s_cbranch_scc1 L_bulk")
if "C" in OFF: A("s_branch L_end")
A("s_cmp_ge_u32 s24, 16"); A("s_cbranch_scc1 L_chV")
common.WFL = 'nt' if NTC else ''
rc.role_chain(A, False, "L_end", flags=True)
A.label("L_exit"); A("s_endpgm")
A.label("L_chV")
rc.role_chain(A, True, "L_end", flags=True)
common.WFL = 'nt' if NTB else ''
A.label("L_bulk")
A("s_mul_i32 s25, s24, 6"); A("s_add_u32 s25, s25, s23"); A("s_sub_u32 s25, s25, 2")
A(f"s_and_b32 {s(S_HEAD)}, s25, 31")
A("s_cmp_ge_u32 s25, 64"); A("s_cbranch_scc1 L_notkv")
A(f"s_load_dwordx2 s[8:9], s[0:1], {KA['Wk']}")
A(f"s_load_dwordx2 s[10:11], s[0:1], {KA['Wv']}")
A(f"s_lshl_b32 s3, {s(S_HEAD)}, 7")
A("s_waitcnt lgkmcnt(0)")
A("s_cmp_ge_u32 s25, 32")
A("s_cselect_b32 s8, s10, s8"); A("s_cselect_b32 s9, s11, s9")
A(f"s_cselect_b32 {s(role_kv.S_DST)}, {WS_V}, {WS_K}")
A(f"s_cselect_b32 {s(role_kv.S_FLAG)}, {FL_V-FL_K}, 0")
A(f"s_add_u32 s3, s3, {FL_K}")
A(f"s_add_u32 {s(role_kv.S_FLAG)}, {s(role_kv.S_FLAG)}, s3")
if "K" not in OFF: role_kv.role_kv(A, flags=True)
A("s_branch L_end")
A.label("L_notkv")
A("s_cmp_ge_u32 s25, 96"); A("s_cbranch_scc1 L_notu")
A(f"s_lshl_b32 s3, {s(S_HEAD)}, 7")
A(f"s_mov_b32 {s(role_u.S_FLAG)}, {CN_U}"); A(f"s_add_u32 {s(role_u.S_FIN)}, s3, {FL_V}")
n0 = len(A.lines)
if "U" not in OFF: role_u.role_u(A, flags=True)
if UX:
    i0 = [i for i, l in enumerate(A.lines) if l.startswith("U_loop")][0]
    def keep(l):
        if UX & 1 and "buffer_store_dwordx4" in l: return False
        if UX & 2 and l.rstrip().endswith(" lds"): return False
        if UX & 4 and ("buffer_load_dword " in l or "buffer_store_dword " in l): return False
        if UX & 8 and "v_mfma" in l: return False
        return True
    A.lines = A.lines[:i0] + [l for l in A.lines[i0:] if keep(l)]
A("s_branch L_end")
A.label("L_notu")
A("s_cmp_ge_u32 s25, 128"); A("s_cbranch_scc1 L_notq")
if "Q" not in OFF: role_q.role_q(A, flags=True)
A("s_branch L_end")
A.label("L_notq")
A("s_cmp_ge_u32 s25, 160"); A("s_cbranch_scc1 L_notb")
if "B" not in OFF: role_b.role_b(A, flags=True)
A("s_branch L_end")
A.label("L_notb")
A("s_cmp_ge_u32 s25, 165"); A("s_cbranch_scc1 L_f")
A(f"s_sub_u32 {s(role_b.S_J)}, s25, 160")
if "3" not in OFF: role_b.role_b3(A, flags=True)
A("s_branch L_end")
A.label("L_f")
A(f"s_sub_u32 {s(role_f.S_ID)}, s25, 165"); A(f"s_mov_b32 {s(role_f.S_STR)}, {NF}")
if "F" not in OFF: role_f.role_f(A, flags=True)
A.label("L_end")
tstamp(A, 1)
for k_, wg_ in ((8, 0), (9, 2), (10, 98), (11, 130), (12, 218), (13, 255), (14, 237)): dstamp(A, k_, wg_)
A.label("L_codeend")
A("s_endpgm")
body += kernel_header(MAIN) + A.text()
txt = hdr + body + '.section .rodata,"a"\n.p2align 6\n' + kernel_desc(MAIN)
if PLAIN: txt = txt.replace(" sc0 sc1", "")
open(out, "w").write(txt)
print(len(txt), "bytes")
hazard.check(txt)
```

```python
from common import *
from sched import *
from role_kv import load_w_rows384
from role_u import load_wo
import math, struct
STAMP = False
DELAY0 = 3
PBMODE = 0
DELAYL = 0
XBLOCK = 1
TLBW = 0
TLBO = 0
UGS = 0
UGV = 0
UGLATE = 1
CB = 150
TWIN = 0
TWD = 2
HW3 = 1
LRGAP = 0
XEARLY = 0
PREU = 2
NUMA = 1
TS3 = 0
TB = 44
TA = 135
XLATE = 30
TICKC = 363
XDELTA = 130
CVADJ = 150
DBVADJ = 2
CWAIT = 2100
TWSTEP = 28
S_TD = 98
PBSTEP0 = 10
PROBEW = 3
GIDX = 57
GIDXV = 3
DFAILB = 18
WIDE = 1
POLLW = 3
DELAY0V = 2
HBIDX = 44
XHINT = 1
DELAYH = 0
TAILW = 0
KMW = 0
RFIRST = 0
ZPRE2 = 1
HINTB = 0
HINTA = 0
HGAP = 1
PL_X = 'G'; PL_M = 'W'; K2W = 1; PL_P = 'T'; PL_K = 'T'
PBSTEPV = 4
PBSTG = 0
VAR = 1
SPEC = 1
WDEL = 9
DROP = 0
DELAYLV = 0
ZPRE = 1
DELAYZV = 2
DELAYZS = 2
PBSTEP = 4
VCAP = 2
DELAYBS = 0
TSTEP = 30
ORDER = 1
DELAYB = 0
NSTEP = 64

def f32bits(x): return struct.unpack("<I", struct.pack("<f", x))[0]

S_STEP=22; S_GRP=23; S_C=24; S_FAST=25; S_T=26; S_T2=27; S_CNT=28; S_DEAD=29
S_Z=30; S_ZN=31; S_P=32; S_PN=33; S_L=34; S_LN=35; S_RR=36; S_RW=37; S_US=38; S_US2=39
S_KS=44; S_EXP=45; S_ZP=46; S_PP=47; S_SC=48; S_KNOWN=49; S_KMX=67; S_ARR=57; S_KN=42
S_MA=50; S_MB=52
S_MU=54; S_MK=55; S_FLO=56; S_T3=58; S_T4=43; S_PST=59; S_PSM=60; S_PLX=61; S_PLM=62; S_ZL=63; S_ZL2=64; S_M3=68; S_G3=65
S_OLO = 40; S_OHI = 41; S_TGT = 66; S_EXN = 29; S_R3 = 29;  S_KMY = 39
S_TS=70
V_ZERO=0; V_IDX=2; V_L16=3; V_HI=4; V_WL=5; V_PW=6; V_T7=7; V_TRA=8; V_TRB=18; V_PLD=10; V_PM=11
V_FINR=12; V_TW=13; V_FINRM=14; V_UR=15; V_RW=16; V_KR=17; V_UH=17; V_UHR=18; V_GA=19
AF=20; ACC=60; TMP=76; XS=100; V_POI=120; V_ZH=124; V_FK=111; V_ZS4=125; V_ZS2=126; V_FL=127
V_G3W=9; V_FINRR=110; V_FINRT=111; V_PW2=111; V_SXR=13; V_PX=16; V_FKS=124; V_TMP1=125; V_TMPV=11
L_MEM=98304; HI=L_MEM
S_LK=114688; S_LU=143360; S_LQ=108544; S_LKM=111616; S_LRED=126976; S_LSX=159744
V_LU=108544; V_LVX=133120; V_LRED=136192

ORD_S = [t*10+k for k in range(10) for t in range(2)] + list(range(20,40)) + [t*10+k for k in range(10) for t in (4,5)]
ORD_V2 = [(t,k) for t in range(6) for k in (0,1)] + [(0,2),(1,2),(2,2),(3,2),(6,0),(6,1),(4,2),(7,0),(7,1),(5,2),(8,0),(8,1),(6,2),(9,0),(9,1),(7,2),(8,2),(9,2)]
ORD_V = [t*10+k for k in range(10) for t in (0,1)] + list(range(20,30)) + [30+3*t+k for t,k in ORD_V2]
CUR_ORD = ORD_S
def wfrag(f):
    p = CUR_ORD.index(f)
    if p % 5 == 4: return ("lds", p//5)
    r = p - p//5
    return ("reg", 256 + 8*r if r < 32 else 128 + 8*(r-32))
def wdest(f, q):
    kind, x = wfrag(f)
    return reg(x + 2*q, 2) if kind == "reg" else v(AF + 8*x + 2*q, 2)

STUBS = []
def dual_text(A, lines):
    sl = A.newlabel("ds_s"); en = A.newlabel("ds_e")
    STUBS.append([sl + ":"] + [l + (" sc0 sc1" if l.startswith("buffer_store") else "") for l in lines] + [f"s_branch {en}"])
    return "\n".join([f"s_cmp_eq_u32 {s(S_FAST)}, 0", f"s_cbranch_scc1 {sl}"] + lines + [en + ":"])
def dual(A, lines): A(dual_text(A, lines))
def flush_stubs(A):
    for st in STUBS:
        for l in st: A(l)
    STUBS.clear()

def tick(A, k):
    if not STAMP or STAMP == 3: return
    if STAMP == 2:
        A(f"s_memrealtime {s(88,2)}")
        A("s_waitcnt lgkmcnt(0)")
        A(f"s_cmp_eq_u32 {s(S_STEP)}, {TSTEP + (1 if k >= 4 else 0)}")
        A(f"s_cselect_b32 {s(S_TS+k)}, {s(88)}, {s(S_TS+k)}")
        return
    A(f"s_memtime {s(88,2)}")
    A("s_waitcnt lgkmcnt(0)")
    A(f"s_sub_u32 {s(87)}, {s(88)}, {s(86)}")
    A(f"s_add_u32 {s(S_TS+k)}, {s(S_TS+k)}, {s(87)}")
    A(f"s_mov_b32 {s(86)}, {s(88)}")

TRACE = 0
def tr(A, k):
    if TRACE == 2: A(f"s_memrealtime {s(70+2*k,2)}")
    elif TRACE: A(f"s_memtime {s(70+2*k,2)}")
def trace_task():
    if not TRACE: return []
    L = [f"v_writelane_b32 {v(V_TRC)}, {s(70+2*k)}, {k}" for k in range(10)]
    L += [f"s_lshl_b32 s94, {s(S_STEP)}, 8", "s_add_u32 s94, s94, s95"]
    L.append("\n".join(["s_mov_b64 exec, 0x3ff", f"buffer_store_dword {v(V_TRC)}, {v(V_L16)}, {s(S_WS,4)}, s94 offen", "s_mov_b64 exec, -1"]))
    return [[1, 18, L]]
V_TRC = 125; V_TRA4 = 110
S_HP = 90; S_HN = 91; V_HA = 118
def hint_store(A, off, vt):
    A(f"s_add_u32 {s(S_HN)}, {s(S_STEP)}, 1")
    A(f"s_lshl_b32 {s(S_T)}, {s(S_C)}, 2")
    A(f"s_add_u32 {s(S_T)}, {s(S_T)}, {s(S_HP)}")
    A(f"v_mov_b32 {v(vt)}, {s(S_HN)}")
    dual(A, ["s_mov_b64 exec, 1", f"buffer_store_dword {v(vt)}, {v(V_ZERO)}, {s(S_WS,4)}, {s(S_T)} offen offset:{off}", "s_mov_b64 exec, -1"])
S_XW = 100; S_XR = 99
def hint_first(A, off, nw, va, a_, cross=False):
    A(f"s_add_u32 {s(S_HN)}, {s(S_STEP)}, 1")
    A(f"v_and_b32 {v(va)}, {nw-1}, {v(V_LANE)}")
    A(f"v_lshlrev_b32 {v(va)}, 2, {v(va)}")
    if cross and nw == 1: A(f"v_mov_b32 {v(va)}, {s(S_XR)}")
    elif cross: A(f"v_writelane_b32 {v(va)}, {s(S_XR)}, 32"); nw = 33
    A(f"s_mov_b64 exec, {hex((1<<nw)-1)}" if nw <= 32 else "s_mov_b32 exec_hi, 1")
    A(f"buffer_load_dword {v(a_)}, {v(va)}, {s(S_WS,4)}, {s(S_HP)} offen offset:{off} sc1")
def hint_poll(A, off, nw, va, a_, b_, ctr, cross=False, first=True):
    lp = A.newlabel("HP"); dn = A.newlabel("HPd")
    ld = lambda r: f"buffer_load_dword {v(r)}, {v(va)}, {s(S_WS,4)}, {s(S_HP)} offen offset:{off} sc1"
    if first:
        hint_first(A, off, nw, va, a_, cross)
        if HGAP: A(f"s_sleep {HGAP}")
    else:
        A(f"s_mov_b64 exec, {hex((1<<nw)-1)}" if (not cross or nw == 1) else "s_mov_b32 exec_hi, 1")
    A(ld(b_))
    A.label(lp)
    A("s_waitcnt vmcnt(1)")
    A(f"v_cmp_gt_i32 vcc, {s(S_HN)}, {v(a_)}")
    A(f"s_cbranch_vccz {dn}")
    A(ld(a_))
    A("s_waitcnt vmcnt(1)")
    A(f"v_cmp_gt_i32 vcc, {s(S_HN)}, {v(b_)}")
    A(f"s_cbranch_vccz {dn}")
    A(ld(b_))
    if STAMP: A(f"s_add_u32 {s(S_TS+ctr)}, {s(S_TS+ctr)}, 1")
    A(f"s_sub_u32 {s(S_CNT)}, {s(S_CNT)}, 1")
    A(f"s_cbranch_scc0 {lp}")
    A(f"s_mov_b32 {s(S_CNT)}, 0")
    A.label(dn)
    A("s_mov_b64 exec, -1")
def gate(A, off, nw, va, a_, b_, ctr, younger, d_pass, d_fail, cross=False):
    fl = A.newlabel("GTf"); bk = A.newlabel("GTb")
    A(f"s_waitcnt vmcnt({younger})")
    A(f"s_mov_b64 exec, {hex((1<<nw)-1)}")
    A(f"v_cmp_gt_i32 vcc, {s(S_HN)}, {v(a_)}")
    A("s_mov_b64 exec, -1")
    A(f"s_cbranch_vccnz {fl}")
    if d_pass: A(f"s_sleep {d_pass}")
    A.label(bk)
    B = Asm(); B.uid = A.uid + 600000; A.uid += 10
    B.label(fl)
    hint_poll(B, off, nw, va, a_, b_, ctr, cross=cross)
    if d_fail: B(f"s_sleep {d_fail}")
    B(f"s_branch {bk}")
    STUBS.append(B.lines)
def first_text(A, off, nw, va, a_):
    B = Asm(); hint_first(B, off, nw, va, a_); B("s_mov_b64 exec, -1")
    L = [l.strip() for l in B.lines]
    return L[:3] + ["\n".join(L[3:])]
def RTMP(): return 76 if not (TRACE or STAMP) else 92
def ts_hint_read(A):
    r = RTMP()
    A(f"s_memrealtime {s(r,2)}")
    A(f"s_add_u32 {s(S_HN)}, {s(S_STEP)}, 1")
    A(f"s_lshl_b32 {s(S_HN)}, {s(S_HN)}, 24")
    A(f"s_lshl_b32 {s(S_T)}, {s(S_C)}, 2")
    A(f"s_add_u32 {s(S_T)}, {s(S_T)}, {s(S_HP)}")
def ts_hint_store(A, E, vt, pre=False):
    r = RTMP()
    if not pre:
        ts_hint_read(A)
        E.drain()
    A(f"s_and_b32 {s(r)}, {s(r)}, 0xffffff")
    A(f"s_or_b32 {s(r)}, {s(r)}, {s(S_HN)}")
    A(f"v_mov_b32 {v(vt)}, {s(r)}")
    dual(A, ["s_mov_b64 exec, 1", f"buffer_store_dword {v(vt)}, {v(V_ZERO)}, {s(S_WS,4)}, {s(S_T)} offen", "s_mov_b64 exec, -1"])
def ts_wait(A, E, s_t, ticks, pre=False):
    r = RTMP(); lp = A.newlabel("TW")
    if not pre: A(f"s_memrealtime {s(r,2)}")
    A("s_waitcnt lgkmcnt(0)"); E.reset()
    A(f"s_add_u32 {s(r+1)}, {s(s_t)}, {ticks}")
    A(f"s_sub_u32 {s(r+1)}, {s(r+1)}, {s(r)}")
    A(f"s_and_b32 {s(r+1)}, {s(r+1)}, 0xffffff")
    A(f"s_cmp_gt_u32 {s(r+1)}, 120"); A(f"s_cselect_b32 {s(r+1)}, 0, {s(r+1)}")
    A(f"s_mul_i32 {s(r+1)}, {s(r+1)}, {TICKC}")
    A.label(lp)
    A(f"s_sub_u32 {s(r+1)}, {s(r+1)}, {44*16}")
    A(f"s_cmp_gt_i32 {s(r+1)}, 0")
    A(f"s_cbranch_scc1 {lp}")
S_A1_ = 11
def xstore(A):
    if HINTB < 6: A(f"s_add_u32 {s(S_HN)}, {s(S_STEP)}, 1")
    A(f"v_lshrrev_b32 {v(59)}, 2, {v(V_L16)}")
    A(f"s_cmp_eq_u32 {s(S_C)}, 16")
    A(f"v_mov_b32 {v(57)}, {s(S_HN if HINTB < 6 else S_TD)}")
    A("s_cselect_b32 exec_lo, -1, 0"); A("s_mov_b32 exec_hi, 0")
    A(f"s_add_u32 {s(S_A1_)}, {s(S_RW)}, {s(S_XW)}")
    A(f"buffer_store_dword {v(57)}, {v(59)}, {s(S_WS,4)}, {s(S_A1_)} offen sc0 sc1")
    A("s_mov_b64 exec, -1")
def ph_issue(A):
    A(f"s_add_u32 {s(S_HN)}, {s(S_STEP)}, 1")
    A(f"s_lshl_b32 {s(S_HN)}, {s(S_HN)}, 24")
    A(f"v_and_b32 {v(57)}, 15, {v(V_LANE)}")
    A(f"v_lshlrev_b32 {v(57)}, 2, {v(57)}")
    A(f"buffer_load_dword {v(58)}, {v(57)}, {s(S_WS,4)}, {s(S_HP)} offen sc1")
def ph_eval(A, younger):
    lp = A.newlabel("PH"); ok = A.newlabel("PHo")
    A(f"s_waitcnt vmcnt({younger})")
    A(f"v_cmp_gt_i32 vcc, {s(S_HN)}, {v(58)}")
    A(f"s_cbranch_vccnz {lp}")
    A.label(ok)
    STUBS.append([lp + ":", f"buffer_load_dword {v(58)}, {v(57)}, {s(S_WS,4)}, {s(S_HP)} offen sc1",
                  f"s_sub_u32 {s(S_CNT)}, {s(S_CNT)}, 1", f"s_cbranch_scc1 {lp}_d", "s_waitcnt vmcnt(0)",
                  f"v_cmp_gt_i32 vcc, {s(S_HN)}, {v(58)}", f"s_cbranch_vccnz {lp}", f"s_branch {ok}",
                  lp + "_d:", f"s_mov_b32 {s(S_CNT)}, 0", "s_waitcnt vmcnt(0)", f"s_branch {ok}"])
    for sh in (1, 2, 4, 8):
        A("s_nop 1")
        A(f"v_max_i32_dpp {v(58)}, {v(58)}, {v(58)} row_ror:{sh} row_mask:0xf bank_mask:0xf")
    A("s_nop 0")
    A(f"v_readfirstlane_b32 {s(S_TD)}, {v(58)}")
def ts_poll(A, va, a_, b_, ctr):
    lp = A.newlabel("HP"); dn = A.newlabel("HPd"); d2 = A.newlabel("HPe")
    ld = lambda r: f"buffer_load_dword {v(r)}, {v(va)}, {s(S_WS,4)}, {s(S_HP)} offen sc1"
    A(f"s_add_u32 {s(S_HN)}, {s(S_STEP)}, 1")
    A(f"s_lshl_b32 {s(S_HN)}, {s(S_HN)}, 24")
    A(f"v_and_b32 {v(va)}, 15, {v(V_LANE)}")
    A(f"v_lshlrev_b32 {v(va)}, 2, {v(va)}")
    A("s_mov_b64 exec, 0xffff")
    A.label(lp)
    A(ld(a_))
    if STAMP: A(f"s_add_u32 {s(S_TS+ctr)}, {s(S_TS+ctr)}, 1")
    A(f"s_sub_u32 {s(S_CNT)}, {s(S_CNT)}, 1")
    A(f"s_cbranch_scc1 {d2}")
    A("s_waitcnt vmcnt(0)")
    A(f"v_cmp_gt_i32 vcc, {s(S_HN)}, {v(a_)}")
    A(f"s_cbranch_vccnz {lp}")
    A.label(dn)
    STUBS.append([d2 + ":", f"s_mov_b32 {s(S_CNT)}, 0", "s_waitcnt vmcnt(0)", f"s_branch {dn}"])
    A(f"s_memrealtime {s(RTMP(),2)}")
    for sh in (1, 2, 4, 8):
        A("s_nop 1")
        A(f"v_max_i32_dpp {v(a_)}, {v(a_)}, {v(a_)} row_ror:{sh} row_mask:0xf bank_mask:0xf")
    A("s_nop 0")
    A(f"v_readfirstlane_b32 {s(S_TD)}, {v(a_)}")
    A("s_mov_b64 exec, -1")
def wait_poison(A, extra=0, fin=False):
    key = f"{v(V_POI,2)}, {v(V_FINRM)}" if fin else f"{v(V_POI,2)}, "
    idx = max(i for i, l in enumerate(A.lines) if "buffer_store" in l and (key in l))
    n = sum(1 for l in A.lines[idx+1:] if l.strip().startswith("buffer_"))
    return f"s_waitcnt vmcnt({max(n - extra, 0)})"
def loop_top(A, lab, ctr=15):
    A.label(lab)
    if STAMP: A(f"s_add_u32 {s(S_TS+ctr)}, {s(S_TS+ctr)}, 1")
    A(f"s_sub_u32 {s(S_CNT)}, {s(S_CNT)}, 1")
    A(f"s_cbranch_scc1 {lab}_dead")
def retry(A, lab, ctr=15):
    A(f"s_cbranch_vccnz {lab}")
    A.label(lab + "_ok")
    STUBS.append([lab + "_dead:", f"s_mov_b32 {s(S_CNT)}, 0", "s_mov_b64 exec, -1" if ctr in (11, 12, 15) else "s_nop 0", f"s_branch {lab}_ok"])

def mp_init(A, masks, base=0):
    for i, m in enumerate(masks): A(f"s_mov_b64 {s(FPS[base+i],2)}, {m}")
def mp_issue(A, loads, base=0):
    for i, (r, ld) in enumerate(loads):
        A(f"s_mov_b64 exec, {s(FPS[base+i],2)}"); A(ld)
    A("s_mov_b64 exec, -1")
def mp_check(loads, mt, base=0):
    L = []
    for i, (r, _) in enumerate(loads):
        L += [f"v_max_u32 {v(mt+i)}, {v(r)}, {v(r+2)}"]
    L += [f"v_cmp_eq_u32 {s(FPS[base+i],2)}, -1, {v(mt+i)}" for i in range(len(loads))]
    return L
def mp_close(A, n, lab, base=0):
    A(f"s_or_b64 vcc, {s(FPS[base],2)}, {s(FPS[base+1],2)}")
    for i in range(2, n): A(f"s_or_b64 vcc, vcc, {s(FPS[base+i],2)}")
    A(f"s_cbranch_scc1 {lab}")
    A.label(lab + "_ok")
    STUBS.append([lab + "_dead:", f"s_mov_b32 {s(S_CNT)}, 0", f"s_branch {lab}_ok"])
FPS = [12, 14, 16, 18, 8, 96]

def maxtree(regs_, t):
    L = []; r = list(regs_)
    L.append(f"v_max3_u32 {v(t)}, {v(r[0])}, {v(r[1])}, {v(r[2])}"); r = r[3:]
    while len(r) >= 2:
        L.append(f"v_max3_u32 {v(t)}, {v(t)}, {v(r[0])}, {v(r[1])}"); r = r[2:]
    if r: L.append(f"v_max_u32 {v(t)}, {v(t)}, {v(r[0])}")
    return L

def post(sa, out=None):
    o = sa if out is None else out
    return [f"v_add_f32 {v(sa)}, {v(sa)}, {v(sa+1)}", f"v_add_f32 {v(sa+2)}, {v(sa+2)}, {v(sa+3)}",
            f"v_cvt_pk_bf16_f32 {v(o)}, {v(sa)}, {v(sa+2)}"]
def post_s(sa, off, tag):
    return post(sa) + [ds(tag, f"ds_write_b32 {v(V_PW)}, {v(sa)} offset:{off}")]
def post_v(sa, off, tag):
    return post(sa) + [ds(tag, f"ds_write_b16 {v(V_PW)}, {v(sa)} offset:{off}"), ds(tag, f"ds_write_b16_d16_hi {v(V_PW)}, {v(sa)} offset:{off+4}")]
def zero(sa): return [f"v_mov_b64 {v(sa,2)}, 0", f"v_mov_b64 {v(sa+2,2)}, 0"]
def wl_read(j):
    r = TMP + 8*(j % 3)
    return [ds(f"W{j}", f"ds_read_b128 {v(r,4)}, {v(V_WL)} offset:{j*2048}"),
            ds(f"W{j}", f"ds_read_b128 {v(r+4,4)}, {v(V_WL)} offset:{j*2048+1024}")]
def smf(f, acc, afrag):
    kind, x = wfrag(f)
    it = []
    if kind == "lds":
        it.append(need(f"W{x}")); b = v(TMP + 8*(x % 3), 8)
    else: b = reg(x, 8)
    it.append(f"v_smfmac_f32_16x16x64_bf16 {v(acc,4)}, {v(afrag,4)}, {b}, {v(V_IDX)}")
    return it
def refill_tasks():
    return [[5*j+4, 5*(j+3)+4-5, wl_read(j+3)] for j in range(9)]

def setup_common(A, isV):
    LU = V_LU if isV else S_LU; LRED = V_LRED if isV else S_LRED
    t0, t1, t2 = 112, 113, 114
    A(f"v_mov_b32 {v(V_ZERO)}, 0")
    A(f"v_and_b32 {v(t0)}, 15, {v(V_LANE)}")
    A(f"v_lshrrev_b32 {v(t1)}, 4, {v(V_LANE)}")
    A(f"v_mov_b32 {v(V_IDX)}, 0x4444")
    A(f"v_mov_b32 {v(t2)}, 0xeeee")
    A(f"v_and_b32 {v(V_L16)}, 1, {v(V_LANE)}")
    A(f"v_cmp_eq_u32 vcc, 1, {v(V_L16)}")
    A("s_nop 1")
    A(f"v_cndmask_b32 {v(V_IDX)}, {v(V_IDX)}, {v(t2)}, vcc")
    A(f"v_lshlrev_b32 {v(V_L16)}, 4, {v(V_LANE)}")
    A(f"v_add_u32 {v(V_HI)}, {HI}, {v(V_L16)}")
    A(f"s_mul_i32 {s(S_T)}, {s(S_WAVE)}, 24576")
    A(f"v_add_u32 {v(V_WL)}, {s(S_T)}, {v(V_L16)}")
    if isV:
        A(f"v_and_b32 {v(t2)}, 7, {v(t0)}")
        A(f"v_lshlrev_b32 {v(t2)}, 5, {v(t2)}")
        A(f"v_lshl_add_u32 {v(t2)}, {v(t1)}, 3, {v(t2)}")
        A(f"v_lshrrev_b32 {v(V_PW)}, 3, {v(t0)}")
        A(f"v_lshl_add_u32 {v(t2)}, {v(V_PW)}, 1, {v(t2)}")
    else:
        A(f"v_lshlrev_b32 {v(t2)}, 2, {v(t1)}")
        A(f"v_lshl_add_u32 {v(t2)}, {v(t0)}, 4, {v(t2)}")
    A(f"s_mul_i32 {s(S_T)}, {s(S_WAVE)}, {512 if isV else 768}")
    A(f"s_add_u32 {s(S_T)}, {s(S_T)}, {V_LVX if isV else S_LQ}")
    A(f"v_add_u32 {v(V_PW)}, {s(S_T)}, {v(t2)}")
    if isV:
        A(f"s_lshl_b32 {s(S_T)}, {s(S_WAVE)}, 8")
        A(f"s_add_u32 {s(S_T)}, {s(S_T)}, {V_LVX + 2048}")
        A(f"v_add_u32 {v(V_PW2)}, {s(S_T)}, {v(t2)}")
    A(f"v_and_b32 {v(t2)}, 7, {v(t0)}")
    A(f"v_lshl_add_u32 {v(V_PLD)}, {v(t1)}, 3, {v(t2)}")
    A(f"v_lshlrev_b32 {v(V_PLD)}, 4, {v(V_PLD)}")
    A(f"v_lshl_add_u32 {v(V_FINR)}, {v(t1)}, 4, {v(t2)}")
    A(f"v_lshlrev_b32 {v(V_FINR)}, 4, {v(V_FINR)}")
    if isV:
        A(f"s_and_b32 {s(S_T)}, {s(S_C)}, 1")
        A(f"s_lshl_b32 {s(S_T)}, {s(S_T)}, 7")
        A(f"v_add_u32 {v(V_ZH)}, {s(S_T)}, {v(V_FINR)}")
        A(f"v_lshrrev_b32 {v(V_UH)}, 3, {v(t0)}")
        A(f"v_mul_u32_u24 {v(V_UH)}, 40960, {v(V_UH)}")
        A(f"v_add_u32 {v(V_UH)}, {v(V_UH)}, {v(V_ZH)}")
        A(f"s_mul_i32 {s(S_T)}, {s(S_WAVE)}, 6144")
        A(f"s_add_u32 {s(S_T)}, {s(S_T)}, {LU+4096}")
        A(f"v_add_u32 {v(V_UHR)}, {s(S_T)}, {v(V_FINR)}")
        A(f"v_mov_b32 {v(V_FINR)}, {v(V_L16)}")
    A(f"v_add_u32 {v(V_FINR)}, {LRED}, {v(V_FINR)}")
    A(f"s_mul_i32 {s(S_MU)}, {s(S_WAVE)}, {6144 if isV else 4096}")
    A(f"s_add_u32 {s(S_MU)}, {s(S_MU)}, {LU}")
    A(f"v_add_u32 {v(V_UR)}, {s(S_MU)}, {v(V_L16)}")
    if isV:
        A(f"s_mul_i32 {s(S_T)}, {s(S_WAVE)}, 1024")
        A(f"s_add_u32 {s(S_T)}, {s(S_T)}, {LRED}")
        A(f"v_add_u32 {v(V_RW)}, {s(S_T)}, {v(V_L16)}")
    A(f"v_lshrrev_b32 {v(V_FINRM)}, 1, {v(t1)}")
    A(f"s_lshl_b32 {s(S_T)}, {s(S_C)}, 1")
    A(f"v_add_u32 {v(V_FINRM)}, {s(S_T)}, {v(V_FINRM)}")
    if isV:
        A(f"s_add_u32 {s(S_T)}, {s(S_C)}, {64-16}")
        A(f"v_mov_b32 {v(V_TW)}, {s(S_T)}")
        A(f"v_cmp_lt_u32 vcc, 7, {v(t0)}")
        A("s_nop 1")
        A(f"v_cndmask_b32 {v(V_FINRM)}, {v(V_FINRM)}, {v(V_TW)}, vcc")
        A(f"v_lshrrev_b32 {v(V_TW)}, 3, {v(t0)}")
        A(f"v_lshl_add_u32 {v(V_TW)}, {v(V_TW)}, 9, {v(V_PLD)}")
    A(f"v_lshlrev_b32 {v(V_FINRM)}, 7, {v(V_FINRM)}")
    A(f"v_lshl_add_u32 {v(V_FINRM)}, {v(t2)}, 4, {v(V_FINRM)}")
    A(f"v_and_b32 {v(t2)}, 1, {v(t1)}")
    A(f"v_lshl_add_u32 {v(V_FINRM)}, {v(t2)}, 3, {v(V_FINRM)}")
    A(f"s_mov_b32 {s(S_MA)}, 0x00ff00ff")
    A(f"s_mov_b32 {s(S_MA+1)}, 0x00ff00ff")
    A(f"s_mov_b32 {s(S_MB)}, {'0xffffffff' if isV else '0x00ff00ff'}")
    A(f"s_mov_b32 {s(S_MB+1)}, {'0x00ff00ff' if isV else '0'}")
    A(f"s_lshl_b32 {s(S_T)}, {s(S_WAVE)}, 10")
    A(f"v_add_u32 {v(V_T7)}, {s(S_T)}, {v(V_L16)}")
    if not isV: A(f"v_add_u32 {v(126)}, {HI}, {v(V_T7)}")
    A(f"s_lshr_b32 {s(S_G3)}, {s(S_WAVE)}, 1")
    A(f"s_add_u32 {s(S_G3)}, {s(S_G3)}, 8")
    A(f"s_sub_u32 {s(S_G3)}, {s(S_G3)}, {s(S_WAVE)}")
    A(f"s_lshl_b32 {s(S_G3)}, {s(S_G3)}, 10")
    A(f"s_and_b32 {s(S_T2)}, {s(S_WAVE)}, 1")
    A(f"s_sub_u32 {s(S_M3)}, {s(S_T2)}, 1")
    A(f"s_sub_u32 {s(S_M3+1)}, 0, {s(S_T2)}")
    A(f"v_and_b32 {v(V_GA)}, 7, {v(V_LANE)}")
    A(f"v_lshlrev_b32 {v(V_GA)}, 5, {v(V_GA)}")
    A(f"v_lshl_add_u32 {v(V_GA)}, {v(t1)}, 8, {v(V_GA)}")
    A(f"v_bfe_u32 {v(115)}, {v(V_LANE)}, 3, 1")
    A(f"v_lshl_add_u32 {v(V_GA)}, {v(115)}, 4, {v(V_GA)}")
    A(f"s_add_u32 {s(S_T)}, {s(S_T)}, {HI}")
    A(f"v_add_u32 {v(V_GA)}, {s(S_T)}, {v(V_GA)}")
    A(f"v_add_u32 {v(V_G3W)}, {s(S_G3)}, {v(V_GA)}")
    for i in range(4): A(f"v_mov_b32 {v(V_POI+i)}, -1")
    r_, c_ = 115, 116
    A(f"v_bfe_u32 {v(r_)}, {v(V_LANE)}, 2, 2")
    A(f"v_and_b32 {v(c_)}, 1, {v(V_LANE)}")
    A(f"v_lshlrev_b32 {v(c_)}, 3, {v(c_)}")
    if not isV:
        A(f"v_add_u32 {v(c_)}, {S_LQ}, {v(c_)}")
        A(f"v_lshl_add_u32 {v(V_TRA)}, {v(t1)}, 2, {v(r_)}")
        A(f"v_lshl_add_u32 {v(V_TRA)}, {v(V_TRA)}, 4, {v(c_)}")
        A(f"v_lshrrev_b32 {v(t2)}, 1, {v(t1)}")
        A(f"v_mul_u32_u24 {v(t2)}, 48, {v(t2)}")
        A(f"v_and_b32 {v(V_TRB)}, 1, {v(t1)}")
        A(f"v_lshl_add_u32 {v(V_TRB)}, {v(V_TRB)}, 3, {v(t2)}")
        A(f"v_add_u32 {v(V_TRB)}, {v(V_TRB)}, {v(r_)}")
        A(f"v_lshl_add_u32 {v(V_TRB)}, {v(V_TRB)}, 4, {v(c_)}")
        A(f"v_and_b32 {v(t2)}, 7, {v(t0)}")
        A(f"v_lshl_add_u32 {v(t2)}, {v(t1)}, 4, {v(t2)}")
        A(f"v_lshlrev_b32 {v(t2)}, 4, {v(t2)}")
        A(f"v_lshrrev_b32 {v(V_PX)}, 3, {v(t0)}")
        A(f"v_lshl_add_u32 {v(V_SXR)}, {v(V_PX)}, 11, {v(t2)}")
        A(f"v_add_u32 {v(V_SXR)}, {S_LSX}, {v(V_SXR)}")
        A(f"v_lshl_add_u32 {v(V_PX)}, {v(V_PX)}, 3, {v(t2)}")
        A(f"v_lshlrev_b32 {v(V_PM)}, 4, {v(t0)}")
        A(f"v_lshl_add_u32 {v(V_PM)}, {v(t1)}, 3, {v(V_PM)}")
        A(f"s_sub_u32 {s(S_T)}, {s(S_WAVE)}, 1")
        A(f"s_and_b32 {s(S_T)}, {s(S_T)}, 3")
        A(f"s_lshr_b32 {s(S_T2)}, {s(S_WAVE)}, 1")
        A(f"s_mul_i32 {s(S_T2)}, {s(S_T2)}, 6144")
        A(f"s_add_u32 {s(S_T2)}, {s(S_T2)}, {S_LK}")
        A(f"v_add_u32 {v(V_KR)}, {s(S_T2)}, {v(V_L16)}")
        A(f"s_mul_i32 {s(S_MK)}, {s(S_T)}, {6144 if K2W else 4096}")
        A(f"s_mul_i32 {s(S_KS)}, {s(S_HEAD)}, 12288")
        A(f"s_add_u32 {s(S_KS)}, {s(S_KS)}, {s(S_MK)}")
        A(f"s_add_u32 {s(S_KS)}, {s(S_KS)}, {WS_K}")
        A(f"s_add_u32 {s(S_MK)}, {s(S_MK)}, {S_LK}")
        A(f"s_lshr_b32 {s(S_PST)}, {s(S_HEAD)}, 1")
        A(f"s_lshl_b32 {s(S_PST)}, {s(S_PST)}, 10")
        A(f"s_and_b32 {s(S_PSM)}, {s(S_HEAD)}, 1")
        A(f"s_lshl_b32 {s(S_PSM)}, {s(S_PSM)}, 7")
        A(f"s_add_u32 {s(S_PST)}, {s(S_PST)}, {s(S_PSM)}")
        A(f"s_lshl_b32 {s(S_PSM)}, {s(S_HEAD)}, 7")
        A(f"s_add_u32 {s(S_PSM)}, {s(S_PSM)}, 16384")
    else:
        A(f"v_lshl_add_u32 {v(t2)}, {v(t1)}, 3, {v(r_)}")
        A(f"v_and_b32 {v(c_)}, 3, {v(V_LANE)}")
        A(f"v_lshlrev_b32 {v(c_)}, 3, {v(c_)}")
        A(f"v_lshl_add_u32 {v(V_TRA)}, {v(t2)}, 5, {v(c_)}")
        A(f"v_add_u32 {v(V_TRA)}, {V_LVX}, {v(V_TRA)}")
        A(f"v_lshlrev_b32 {v(V_ZS4)}, 13, {v(t1)}")
        A(f"v_and_b32 {v(t2)}, 1, {v(t1)}")
        A(f"v_lshlrev_b32 {v(V_ZS2)}, 13, {v(t2)}")
        A(f"v_lshrrev_b32 {v(t2)}, 1, {v(t1)}")
        A(f"v_lshl_add_u32 {v(V_ZS2)}, {v(t2)}, 3, {v(V_ZS2)}")
        A(f"s_mul_i32 {s(S_T)}, {s(S_WAVE)}, {10*8192}")
        A(f"s_lshl_b32 {s(S_T2)}, {s(S_HEAD)}, 8")
        A(f"s_add_u32 {s(S_T)}, {s(S_T)}, {s(S_T2)}")
        A(f"v_lshl_add_u32 {v(t2)}, {v(t0)}, 4, {s(S_T)}")
        A(f"v_add_u32 {v(V_ZS4)}, {v(V_ZS4)}, {v(t2)}")
        A(f"v_add_u32 {v(V_ZS2)}, {v(V_ZS2)}, {v(t2)}")
        A(f"v_add_u32 {v(V_ZS2)}, {8*8192}, {v(V_ZS2)}")
    A(f"s_mov_b32 {s(S_Z)}, {MB_Z}")
    A(f"s_mov_b32 {s(S_ZN)}, {MB_Z+327680}")
    A(f"s_mov_b32 {s(S_P)}, {MB_P}")
    A(f"s_mov_b32 {s(S_PN)}, {MB_P+20480}")
    A(f"s_mov_b32 {s(S_ZP)}, {MB_Z+2*327680}")
    A(f"s_mov_b32 {s(S_PP)}, {MB_P+2*20480}")
    A(f"s_mul_i32 {s(S_T)}, {s(S_GRP)}, 10240")
    A(f"s_add_u32 {s(S_L)}, {s(S_T)}, {MB_L}")
    A(f"s_add_u32 {s(S_LN)}, {s(S_T)}, {MB_L+20480}")
    if True:
        A(f"s_lshl_b32 {s(S_T)}, {s(S_GRP)}, 14")
        A(f"s_add_u32 {s(S_RW)}, {s(S_T)}, {MB_R}")
        A(f"s_sub_u32 {s(S_RR)}, {MB_R + 16384}, {s(S_T)}")
        A(f"s_mul_i32 {s(S_T)}, {s(S_GRP)}, 14336")
        A(f"s_add_u32 {s(S_R3)}, {s(S_T)}, {32768 + 2048 - 8192 - 16384}")
        A(f"s_add_u32 {s(S_R3)}, {s(S_R3)}, {s(S_G3)}")
        if isV:
            A(f"s_sub_u32 {s(S_T)}, {32768 - 8192}, {s(S_T)}")
            A(f"v_add_u32 {v(V_FINRR)}, {s(S_T)}, {v(V_FINRM)}")
            A(f"v_cmp_lt_u32 vcc, 7, {v(t0)}")
            A("s_nop 1")
            A(f"v_cndmask_b32 {v(V_FINRR)}, {v(V_FINRM)}, {v(V_FINRR)}, vcc")
        A(f"s_mov_b32 {s(S_OLO)}, 0x00003f80"); A(f"s_mov_b32 {s(S_OHI)}, 0x3f800000"); A(f"s_mov_b32 {s(S_TGT)}, 0")
    A(f"s_lshl_b32 {s(S_T)}, {s(S_GRP)}, 2")
    A(f"s_add_u32 {s(S_T)}, {s(S_T)}, {s(S_WAVE)}")
    A(f"s_lshl_b32 {s(S_PLX)}, {s(S_T)}, 11")
    A(f"s_lshl_b32 {s(S_PLM)}, {s(S_T)}, 9")
    A(f"s_add_u32 {s(S_PLM)}, {s(S_PLM)}, 16384")
    A(f"s_lshl_b32 {s(S_ZL)}, {s(S_T)}, 10")
    A(f"s_mul_i32 {s(S_US)}, {s(S_T)}, {4*40960}")
    A(f"s_add_u32 {s(S_US)}, {s(S_US)}, {WS_U}")
    if isV:
        A(f"s_sub_u32 {s(S_T2)}, {s(S_C)}, 16")
        A(f"s_lshr_b32 {s(S_T2)}, {s(S_T2)}, 1")
        A(f"s_add_u32 {s(S_T2)}, {s(S_T2)}, 32")
        A(f"s_lshl_b32 {s(S_T3)}, {s(S_T2)}, 13")
        A(f"s_add_u32 {s(S_ZL2)}, {s(S_ZL)}, {s(S_T3)}")
        A(f"s_lshl_b32 {s(S_T3)}, {s(S_T2)}, 10")
        A(f"s_add_u32 {s(S_US2)}, {s(S_US)}, {s(S_T3)}")
    A(f"s_lshl_b32 {s(S_T3)}, {s(S_C)}, 13")
    A(f"s_add_u32 {s(S_ZL)}, {s(S_ZL)}, {s(S_T3)}")
    A(f"s_lshl_b32 {s(S_T3)}, {s(S_C)}, 10")
    A(f"s_add_u32 {s(S_US)}, {s(S_US)}, {s(S_T3)}")
    A(f"s_mov_b32 {s(S_ARR)}, {CN_Z - 256}")
    A(f"s_lshl_b32 {s(S_HP)}, {s(S_GRP)}, 8")
    A(f"s_add_u32 {s(S_HP)}, {s(S_HP)}, {MB_H}")
    A(f"s_mul_i32 {s(S_T2)}, {s(S_GRP)}, {16384-128}")
    A(f"s_sub_u32 {s(S_XW)}, {32768+4096}, {s(S_T2)}")
    A(f"s_add_u32 {s(S_XR)}, {s(S_T2)}, {32768+4096+128-16384}")
    A(f"s_lshl_b32 {s(S_FLO)}, {s(S_HEAD)}, 7")
    A(f"s_mov_b32 {s(S_KNOWN)}, 0")
    if HINTB == 7: A(f"s_mov_b32 {s(S_TD)}, 0")
    A(f"s_mov_b32 {s(S_KN)}, 1")
    A(f"v_mov_b32 {v(V_FL)}, 0")
    if not isV: A(f"v_mov_b32 {v(V_FKS)}, 0")
    A(f"s_mov_b32 {s(S_SC)}, {f32bits(192**-0.5*math.log2(math.e))}")
    A(f"s_mov_b32 {s(S_STEP)}, 0")
    A(f"s_mov_b32 {s(S_CNT)}, {SPIN_MAX + 1000 if SPIN_MAX else 0}")
    A(f"s_mov_b32 {s(S_EXP)}, {WS_Z if (VAR == 2 or PL_X != 'S') else WS_SCR}")
    if PL_X == 'S': A(f"s_mov_b32 {s(S_EXN)}, {WS_Z}")
    A(f"s_mul_i32 {s(S_KMX)}, {s(S_HEAD)}, 3072")
    A(f"s_add_u32 {s(S_KMX)}, {s(S_KMX)}, {WS_KM - 1024}")
    if not isV: A(f"s_mov_b32 {s(S_KMY)}, {WS_SCR}")
    if STAMP:
        for k in range(16): A(f"s_mov_b32 {s(S_TS+k)}, 0")

LOOKA = 0
def spin(lines_load, cond, ok):
    pass

def u_check(A, seg_off):
    sl = A.newlabel("uc_s"); ok = A.newlabel("uc_ok"); lp = A.newlabel("uc_lp"); g1 = A.newlabel("uc_g")
    A(f"s_add_u32 {s(S_T3)}, {s(S_STEP)}, {seg_off}")
    A(f"s_cmp_ge_u32 {s(S_T3)}, {s(S_KNOWN)}")
    A(f"s_cbranch_scc1 {sl}")
    A.label(ok)
    ld = f"buffer_load_dword {v(V_FL)}, {v(V_ZERO)}, {s(S_WS,4)}, {s(S_T4)} offen sc1"
    STUBS.append([sl + ":",
        f"s_add_u32 {s(S_KNOWN)}, {s(S_T3)}, {LOOKA}", f"s_min_u32 {s(S_KNOWN)}, {s(S_KNOWN)}, {NSEG-1}",
        f"s_lshl_b32 {s(S_T4)}, {s(S_KNOWN)}, 7", f"s_add_u32 {s(S_T4)}, {s(S_T4)}, {CN_U}", f"s_add_u32 {s(S_KNOWN)}, {s(S_KNOWN)}, 1",
        ld, "s_waitcnt vmcnt(0)", f"v_cmp_gt_u32 vcc, 32, {v(V_FL)}", f"s_cbranch_vccz {ok}",
        f"s_add_u32 {s(S_KNOWN)}, {s(S_T3)}, 1", f"s_min_u32 {s(S_T3)}, {s(S_T3)}, {NSEG-1}",
        f"s_lshl_b32 {s(S_T4)}, {s(S_T3)}, 7", f"s_add_u32 {s(S_T4)}, {s(S_T4)}, {CN_U}",
        lp + ":", "s_sleep 3", ld, "s_waitcnt vmcnt(0)", f"v_cmp_gt_u32 vcc, 32, {v(V_FL)}", f"s_cbranch_vccz {ok}",
        f"s_sub_u32 {s(S_CNT)}, {s(S_CNT)}, 1", f"s_cbranch_scc0 {lp}", f"s_mov_b32 {s(S_CNT)}, 0", f"s_branch {ok}"])

def k_check(A):
    sl = A.newlabel("kc_s"); ok = A.newlabel("kc_ok"); lp = A.newlabel("kc_lp")
    A.label(lp)
    A(f"v_cmp_gt_u32 vcc, {s(S_KN)}, {v(V_FKS)}")
    A(f"s_cbranch_vccnz {sl}")
    A.label(ok)
    STUBS.append([sl + ":", f"s_sub_u32 {s(S_CNT)}, {s(S_CNT)}, 1", f"s_cbranch_scc1 {sl}_d", f"s_add_u32 {s(S_T3)}, {s(S_FLO)}, {FL_K}",
                  f"buffer_load_dword {v(V_FKS)}, {v(V_ZERO)}, {s(S_WS,4)}, {s(S_T3)} offen sc1", "s_waitcnt vmcnt(0)", f"s_branch {lp}",
                  sl + "_d:", f"s_mov_b32 {s(S_CNT)}, 0", f"s_branch {ok}"])

def k_dma(A, cls=12):
    if K2W:
        if cls == 12:
            A(f"s_mov_b32 m0, {s(S_MK)}")
            A(f"s_add_u32 {s(S_T)}, {s(S_KS)}, 3072")
            for j in range(3):
                A(f"buffer_load_dwordx4 {v(V_L16)}, {s(S_WS,4)}, {s(S_KS)} offen offset:{j*1024} sc1 lds")
            A(f"s_add_u32 m0, {s(S_MK)}, 3072")
            A("s_nop 0")
            for j in range(3):
                A(f"buffer_load_dwordx4 {v(V_L16)}, {s(S_WS,4)}, {s(S_T)} offen offset:{j*1024} sc1 lds")
    else:
        A(f"s_mov_b32 m0, {s(S_MK)}")
        A("s_nop 0")
        for j in range(4):
            A(f"buffer_load_dwordx4 {v(V_L16)}, {s(S_WS,4)}, {s(S_KS)} offen offset:{j*1024} sc1 lds")
    A(f"s_add_u32 {s(S_KS)}, {s(S_KS)}, {NH*12288}")
    A(f"s_add_u32 {s(S_KN)}, {s(S_KN)}, 1")
    A(f"s_min_u32 {s(S_KN)}, {s(S_KN)}, {NSEG}")

def u_dma_items(isV, lo, hi):
    L = []
    for j in range(lo, min(hi, 6 if isV else 4)):
        if j < 4:
            if j == lo: L.append(f"s_mov_b32 m0, {s(S_MU)}")
            L.append(f"s_add_u32 {s(S_T4)}, {s(S_US)}, {j*(40960-1024)}")
            L.append(f"buffer_load_dwordx4 {v(V_L16)}, {s(S_WS,4)}, {s(S_T4)} offen offset:{j*1024} sc1 lds")
        else:
            if j == lo or j == 4: L.append(f"s_add_u32 m0, {s(S_MU)}, 4096")
            L.append(f"s_add_u32 {s(S_T4)}, {s(S_US2)}, {(j-4)*(2*40960-1024)}")
            L.append(f"buffer_load_dwordx4 {v(V_UH)}, {s(S_WS,4)}, {s(S_T4)} offen offset:{(j-4)*1024} sc1 lds")
    return L

def phaseB_items(A, isV, cls, flags):
    L = u_dma_items(isV, UGV if isV else UGS, 99)
    if flags and cls == 0:
        if isV:
            an = A.newlabel("an"); ab = A.newlabel("ab")
            STUBS.append([an + ":", f"s_cmp_lt_u32 {s(S_STEP)}, 2", f"s_cbranch_scc1 {ab}", f"v_mov_b32 {v(V_TMPV)}, 32", "s_mov_b64 exec, 1",
                          f"buffer_atomic_add {v(V_TMPV)}, {v(V_ZERO)}, {s(S_WS,4)}, {s(S_ARR)} offen sc1", "s_mov_b64 exec, -1", f"s_branch {ab}"])
            L.append("\n".join([f"s_cmp_eq_u32 {s(S_C)}, 16", f"s_cbranch_scc1 {an}", ab + ":"]))
        else:
            L += [f"s_add_u32 {s(S_T)}, {s(S_FLO)}, {FL_KM}", f"s_sub_u32 {s(S_T2)}, {s(S_STEP)}, 0", f"s_max_i32 {s(S_T2)}, {s(S_T2)}, 0", f"v_mov_b32 {v(V_FL)}, {s(S_T2)}"]
            L.append("\n".join(["s_mov_b64 exec, 1", f"buffer_store_dword {v(V_FL)}, {v(V_ZERO)}, {s(S_WS,4)}, {s(S_T)} offen sc0 sc1", "s_mov_b64 exec, -1"]))
    return L

def km_export(A, E, tmp):
    E(ds("KX", f"ds_read_b128 {v(tmp,4)}, {v(126)} offset:{S_LKM-HI-1024}"))
    E(need("KX"))
    A(f"buffer_store_dwordx4 {v(tmp,4)}, {v(V_T7)}, {s(S_WS,4)}, {s(S_KMX)} offen sc0 sc1")

ZF = 48
def z_poison(A):
    A(f"s_add_u32 {s(S_T2)}, {s(S_ZP)}, {4*8192}")
    dual(A, [f"buffer_store_dwordx4 {v(V_POI,4)}, {v(V_ZS4)}, {s(S_WS,4)}, {s(S_ZP)} offen",
             f"buffer_store_dwordx4 {v(V_POI,4)}, {v(V_ZS4)}, {s(S_WS,4)}, {s(S_T2)} offen",
             f"buffer_store_dwordx2 {v(V_POI,2)}, {v(V_ZS2)}, {s(S_WS,4)}, {s(S_ZP)} offen"])
def p_poison(A, slot):
    A(f"s_add_u32 {s(S_T)}, {s(slot)}, {s(S_PST)}"); A(f"s_add_u32 {s(S_T2)}, {s(slot)}, {s(S_PSM)}")
    dual(A, [f"s_mov_b64 exec, {s(S_MA,2)}",
             f"buffer_store_dwordx4 {v(V_POI,4)}, {v(V_L16)}, {s(S_WS,4)}, {s(S_T)} offen",
             f"s_mov_b64 exec, {s(S_MB,2)}",
             f"buffer_store_dwordx2 {v(V_POI,2)}, {v(V_PM)}, {s(S_WS,4)}, {s(S_T2)} offen",
             "s_mov_b64 exec, -1"])
def z_export(A, isV, zf, woff):
    A(f"s_add_u32 {s(S_T)}, {s(S_EXP)}, {s(S_ZL)}")
    if woff: A(f"s_sub_u32 {s(S_T)}, {s(S_T)}, {s(woff)}")
    A(f"buffer_store_dwordx4 {v(zf,4)}, {v(V_L16)}, {s(S_WS,4)}, {s(S_T)} offen sc0 sc1")
    if isV:
        A(f"s_add_u32 {s(S_T)}, {s(S_EXP)}, {s(S_ZL2)}")
        if woff: A(f"s_sub_u32 {s(S_T)}, {s(S_T)}, {s(woff)}")
        A(f"s_mov_b64 exec, {s(S_MA,2)}")
        A(f"buffer_store_dwordx4 {v(zf+4,4)}, {v(V_ZH)}, {s(S_WS,4)}, {s(S_T)} offen sc0 sc1")
        A("s_mov_b64 exec, -1")
def window(A, E, isV, cls, flags):
    LZ = (V_LVX if isV else S_LK + 12288) - HI
    last = A.newlabel("wz")
    if WDEL: A(f"s_sleep {WDEL}")
    z_export(A, isV, ZF, None)
    if cls != 3:
        A(f"s_cmp_lg_u32 {s(S_WAVE)}, {3 if isV else 1}"); A(f"s_cbranch_scc1 {last}")
        for t in range(2 if isV else 1): E(ds("zs", f"ds_read_b128 {v(AF+4*t,4)}, {v(V_HI)} offset:{LZ+t*1024}"))
        E(need("zs"))
        A(f"s_lshl_b32 {s(S_T2)}, {s(S_WAVE)}, 10")
        z_export(A, isV, AF, S_T2)
        A.label(last)
    if flags:
        u_check(A, 1)
        if not isV: k_check(A)

def qk_tr(isq, ks, dst, tag):
    b = 0 if isq else 3072
    if ks < 4: vb, o0, o1 = V_TRA, 48*ks*16, (48*ks+16)*16
    else: vb, o0, o1 = V_TRB, (96*(ks-4)+32)*16, (96*(ks-4)+36)*16
    return [ds(tag, f"ds_read_b64_tr_b16 {v(dst,2)}, {v(vb)} offset:{b+o0}"),
            ds(tag, f"ds_read_b64_tr_b16 {v(dst+2,2)}, {v(vb)} offset:{b+o1}")]

def xlane(op, r, t, which):
    return [f"v_mov_b32 {v(t)}, {v(r)}", "s_nop 1", f"v_permlane{which}_swap_b32 {v(r)}, {v(t)}", f"{op} {v(r)}, {v(r)}, {v(t)}"]

def pb_tasks(items, e, d, span, step=4):
    if PBMODE == 0: return [[e, d, items]]
    if PBMODE == 1:
        STUBS.clear()
        return [[e, d, [it for it in items if isinstance(it, str) and 'buffer_' not in it]]]
    if DROP & 1: items = [it for it in items if not (isinstance(it, str) and it.endswith(" lds"))]
    if DROP & 2: items = [it for it in items if not (isinstance(it, str) and it.startswith("buffer_store") and "sc1" in it)]
    groups = []; cur = []
    for it in items:
        cur.append(it)
        if isinstance(it, str) and 'buffer_' in it: groups.append(cur); cur = []
    if cur: groups.append(cur)
    n = len(groups); out = []
    for i, g in enumerate(groups):
        st = e + i*step
        out.append([st, st+step, g])
    return out

def s_stage(A, E, cls, flags):
    S0, S1, S2, S3 = ACC, ACC+4, ACC+8, ACC+12
    accs = [S0, S1, S2, S3, S0, S1]
    ard = lambda k: ds(f"A{k}", f"ds_read_b128 {v(AF+4*k,4)}, {v(V_HI)} offset:{k*1024}")
    for k in range(3): E(ard(k))
    main = []
    for f in ORD_S:
        t, k = divmod(f, 10)
        main.append(([need(f"A{k}")] if t == 0 else []) + smf(f, accs[t], AF+4*k))
    T = refill_tasks() + [[max(k-3, 4 if (k >= 7 and PL_X == 'S') else 0), max(k-1, 2*k-5), [ard(k)]] for k in range(3, 10)]
    pb = phaseB_items(A, False, cls, flags)
    if PL_K == 'S' and cls != 0:
        pb += [f"s_xor_b32 {s(S_MK)}, {s(S_MK)}, {S_LK ^ (S_LK + 16384)}", f"s_mov_b32 m0, {s(S_MK)}", f"s_add_u32 {s(S_KN)}, {s(S_KN)}, 1"]
        pb += [f"buffer_load_dwordx4 {v(V_L16)}, {s(S_WS,4)}, {s(S_KS)} offen offset:{j*1024} sc1 lds" for j in range(4)]
        pb += [f"s_add_u32 {s(S_KS)}, {s(S_KS)}, {NH*12288}", f"s_min_u32 {s(S_KN)}, {s(S_KN)}, {NSEG}"]
    T += pb_tasks(pb, 2 + PBSTG*{0:0,12:1,3:2}[cls], 22, 56, PBSTEP if cls else PBSTEP0)
    T.append([0, 28, zero(S3)])
    if HINTB == 4 and cls == 3: T.append([GIDX-3, GIDX+1, first_text(A, 0, 16, XS, XS+1)])
    if HINTB in (3, 4) and cls == 0:
        B = Asm(); B.uid = A.uid + 500000; A.uid += 10
        hint_store(B, 0, V_TMP1 if not TRACE else 127)
        T.append([HBIDX-3, HBIDX+1, [l.strip() for l in B.lines[:4]] + ["\n".join(B.lines[4:])]])
    T += stage_side(A, False, cls)
    T += trace_task()
    T.append([21, 33, post_s(S0, 0, "qw") + post_s(S1, 256, "qw") + zero(S0) + zero(S1)])
    T.append([32, 36, post_s(S2, 512, "qw")])
    T.append([37, 38, [need("qw"), "s_barrier"]])
    T.append([42, 58, post_s(S3, 3072, "kw")])
    SA = S2
    kss = (3, 4, 5) if cls == 12 else (0, 1, 2)
    def mm(ks, q_, k_): return [need(f"X{ks}"), f"v_mfma_f32_16x16x32_bf16 {v(SA,4)}, {v(k_,4)}, {v(q_,4)}, {'0' if ks == kss[0] else v(SA,4)}"]
    krd = lambda ks, r: ds(f"X{ks}", f"ds_read_b128 {v(r,4)}, {v(V_KR)} offset:{ks*1024}")
    if cls == 0:
        for ks in range(3): T.append([38, 41+2*ks, qk_tr(True, ks, XS+4*ks, f"X{ks}")])
        for ks in range(3): T.append([44+2*ks, 46+2*ks, [krd(ks, AF+4+4*ks)]])
        for ks in (3, 4): T.append([38, 50+2*ks, qk_tr(True, ks, XS+4*ks, f"m{ks}")])
        T.append([42, 59, qk_tr(True, 5, AF, "m5")])
        for ks in range(3): T.append([51+2*ks, 52+2*ks, mm(ks, XS+4*ks, AF+4+4*ks)])
    else:
        R = [(XS, XS+4), (XS+8, XS+12), (XS+16, AF)]
        for i, ks in enumerate(kss):
            T.append([38 if i < 2 else 42, 42+3*i, qk_tr(True, ks, R[i][0], f"X{ks}") + [krd(ks, R[i][1])]])
            T.append([48+3*i, 49+3*i, mm(ks, *R[i])])
    schedule(E, main, T, maxn=4)
    E(ds("sx", f"ds_write_b128 {v(126)}, {v(SA,4)} offset:{S_LSX-HI}"))
    A(f"v_xor_b32 {v(V_KR)}, {S_LK ^ (S_LK + 16384)}, {v(V_KR)}")
    A("s_nop 2")
    pa = post_s(S0, 3072+256, "kw"); pb_ = post_s(S1, 3072+512, "kw")
    for it in pa + pb_: E(it)
    if HINTB == 5 and cls == 0: hint_store(A, 0, 72)
    if HINTB == 6 and cls == 0 and not HW3: ts_hint_store(A, E, 72)
    tr(A, 1)
    if HINTB >= 6 and cls == 3 and HW3:
        ts_hint_read(A); E.drain()
        if HW3 == 2: ts_hint_store(A, E, 72, True)
    else: E.drain()
    A("s_barrier")

def dppadd(r): return f"v_add_f32_dpp {v(r)}, {v(r)}, {v(r)} row_ror:8 row_mask:0xf bank_mask:0xf"

def s_tail(A, E):
    KF, SX, SM, t0, t1 = TMP, 44, 52, 56, 57
    mx, sm, m = 58, 59, 62
    dpp = " row_ror:8 row_mask:0xf bank_mask:0xf"
    E(ds("sx", f"ds_read_b128 {v(SX,4)}, {v(V_SXR)}"))
    E(ds("sx", f"ds_read_b128 {v(SX+4,4)}, {v(V_SXR)} offset:1024"))
    for ks in range(6):
        for it in qk_tr(False, ks, KF+4*ks, f"m{ks}"): E(it)
    if HINTB == 2: hint_store(A, 0, 60)
    X = [need("sx")] + [f"v_add_f32 {v(SX+i)}, {v(SX+i)}, {v(SX+4+i)}" for i in range(4)] + [
         f"v_max3_f32 {v(mx)}, {v(SX)}, {v(SX+1)}, {v(SX+2)}",
         f"v_max_f32 {v(mx)}, {v(mx)}, {v(SX+3)}", "s_nop 1",
         f"v_max_f32_dpp {v(mx)}, {v(mx)}, {v(mx)}" + dpp]
    X += xlane("v_max_f32", mx, t0, 16) + xlane("v_max_f32", mx, t0, 32)
    main = [[]] + [[need(f"m{ks}"), f"v_mfma_f32_16x16x32_bf16 {v(SM,4)}, {v(KF+4*ks,4)}, {v(XS+4*ks if ks < 5 else AF,4)}, {'0' if ks==0 else v(SM,4)}"] for ks in range(6)]
    for it in X[:9]: E(it)
    schedule(E, main, [[0, 99, X[9:]]])
    A(f"s_add_u32 {s(S_T)}, {s(S_P)}, {s(S_PST)}")
    A(f"s_add_u32 {s(S_T2)}, {s(S_P)}, {s(S_PSM)}")
    A("s_waitcnt vmcnt(0)" if TAILW or VAR == 2 else wait_poison(A))
    tr(A, 9)
    A("s_nop 4")
    A(f"v_max3_f32 {v(m)}, {v(SM)}, {v(SM+1)}, {v(SM+2)}")
    A(f"v_max3_f32 {v(m)}, {v(m)}, {v(SM+3)}, {v(mx)}")
    for l in xlane("v_max_f32", m, t0, 16): A(l)
    A(f"v_mul_f32 {v(m)}, {s(S_SC)}, {v(m)}")
    R = [SX, SX+1, SX+2, SX+3, SM, SM+1, SM+2, SM+3]
    for r in R: A(f"v_fma_f32 {v(r)}, {v(r)}, {s(S_SC)}, -{v(m)}")
    for r in R: A(f"v_exp_f32 {v(r)}, {v(r)}")
    A(f"v_add_f32 {v(sm)}, {v(SX)}, {v(SX+1)}")
    A(f"v_add_f32 {v(t0)}, {v(SX+2)}, {v(SX+3)}")
    A(f"v_add_f32 {v(t1)}, {v(SM)}, {v(SM+1)}")
    A(f"v_add_f32 {v(m)}, {v(SM+2)}, {v(SM+3)}")
    A(f"v_add_f32 {v(sm)}, {v(sm)}, {v(t0)}")
    A(f"v_add_f32 {v(t1)}, {v(t1)}, {v(m)}")
    A(f"v_fmac_f32 {v(sm)}, 0x3e800000, {v(t1)}")
    A("s_nop 1")
    A(f"v_add_f32_dpp {v(sm)}, {v(sm)}, {v(sm)}" + dpp)
    for l in xlane("v_add_f32", sm, t0, 16) + xlane("v_add_f32", sm, t0, 32): A(l)
    A(f"v_rcp_f32 {v(sm)}, {v(sm)}")
    A(f"s_cmp_eq_u32 {s(S_FAST)}, 0")
    for r in R[:4]: A(f"v_mul_f32 {v(r)}, {v(r)}, {v(sm)}")
    for i in range(2): A(f"v_cvt_pk_bf16_f32 {v(64+i)}, {v(SX+2*i)}, {v(SX+2*i+1)}")
    dual(A, [f"buffer_store_dwordx2 {v(64,2)}, {v(V_PX)}, {s(S_WS,4)}, {s(S_T)} offen"])
    for r in R[4:]: A(f"v_mul_f32 {v(r)}, {v(r)}, {v(sm)}")
    for i in range(2): A(f"v_cvt_pk_bf16_f32 {v(SM+i)}, {v(SM+2*i)}, {v(SM+2*i+1)}")
    dual(A, [f"s_mov_b64 exec, {s(S_MB,2)}",
             f"buffer_store_dwordx2 {v(SM,2)}, {v(V_PM)}, {s(S_WS,4)}, {s(S_T2)} offen",
             "s_mov_b64 exec, -1"])
    if HINTB == 1: hint_store(A, 0, 56)

def v_stage(A, E, cls, flags):
    S = [ACC, ACC+4, ACC+8, ACC+12, 112, 116]
    ard = lambda k: ds(f"A{k}", f"ds_read_b128 {v(AF+4*k,4)}, {v(V_HI)} offset:{k*1024}")
    for k in range(3): E(ard(k))
    main = []
    for f in ORD_V[:30]:
        t, k = divmod(f, 10)
        main.append(([need(f"A{k}")] if t == 0 else []) + smf(f, S[t], AF+4*k))
    SS = [S[3], S[4], S[5], S[0], S[1], AF+12, AF+16, AF+20, AF+24, S[2]]
    sa = lambda t: SS[t]
    seen = set()
    for t, kk in ORD_V2:
        main.append(([need(f"B{kk}")] if kk not in seen else []) + smf(30 + 3*t + kk, sa(t), AF+4*kk)); seen.add(kk)
    brd = lambda kk: [ds(f"B{kk}", f"ds_read_b64_tr_b16 {v(AF+4*kk+2*h,2)}, {v(V_TRA)} offset:{(32*kk+4*h)*32}") for h in range(2)]
    T = refill_tasks() + [[k-3, max(k-1, 2*k-5), [ard(k)]] for k in range(3, 10)]
    T += pb_tasks(phaseB_items(A, True, cls, flags), 2 + PBSTG*{0:0,12:1,3:2}[cls], 24, 58, PBSTEPV)
    T.append([0, 19, zero(S[3]) + zero(S[4]) + zero(S[5])])
    T += trace_task()
    T.append([20, 26, post_v(S[0], 0, "vw") + post_v(S[1], 256, "vw")])
    T.append([26, 29, [need("vw"), "s_barrier"] + brd(0) + brd(1)])
    T.append([26, 34, zero(S[0]) + zero(S[1])])
    T.append([32, 36, post(S[2]) + [ds("vw2", f"ds_write_b16 {v(V_PW2)}, {v(S[2])}"), ds("vw2", f"ds_write_b16_d16_hi {v(V_PW2)}, {v(S[2])} offset:4")]])
    T.append([37, 40, [need("vw2"), "s_barrier"] + brd(2)])
    T.append([27, 38, zero(AF+12)])
    T.append([27, 44, zero(AF+16) + zero(AF+20) + zero(AF+24)])
    T.append([37, 50, zero(S[2])])
    def fin(t):
        L = post(sa(t), XS+t)
        if t in (3, 7):
            q = XS + t - 3
            L += ["s_nop 0"]
            L += [f"v_permlane32_swap_b32 {v(q)}, {v(q+2)}", f"v_permlane32_swap_b32 {v(q+1)}, {v(q+3)}", "s_nop 1",
                  f"v_permlane16_swap_b32 {v(q)}, {v(q+1)}", f"v_permlane16_swap_b32 {v(q+2)}, {v(q+3)}"]
            L += [f"s_add_u32 {s(S_T)}, {s(S_Z)}, {(t//4)*4*8192}\n" + dual_text(A, [f"buffer_store_dwordx4 {v(q,4)}, {v(V_ZS4)}, {s(S_WS,4)}, {s(S_T)} offen"])]
        if t == 9:
            L += ["s_nop 1", f"v_permlane16_swap_b32 {v(XS+8)}, {v(XS+9)}"]
            L += [dual_text(A, [f"buffer_store_dwordx2 {v(XS+8,2)}, {v(V_ZS2)}, {s(S_WS,4)}, {s(S_Z)} offen"])]
        return L
    done = {t: 30 + ORD_V2.index((t, 2)) for t in range(10)}
    for t in range(7):
        T.append([done[t]+3, 70+t, fin(t)])
    schedule(E, main, T, cap=VCAP)
    f7 = fin(7)
    for it in f7[:3] + fin(8): E(it)
    for it in f7[4:]: E(it)
    A(wait_poison(A, fin=True) if (cls == 0 and VAR == 1) else "s_nop 0")
    for it in fin(9): E(it)
    tr(A, 1)

S_A1 = 10; S_B1_ = 3
def reduce_stage(A, E, isV, cls, flags):
    PF, mt = AF, 56
    UL = [76,80,84,88,92,96,60,64] if isV else [100,104,108,112]
    D = [68, 72]; DO = [40, 44]
    nt = 2 if isV else 1
    if VAR == 1 and PL_K == 'T' and not isV: side_ops(A, E, isV, cls, flags, 'T')
    A(f"s_add_u32 {s(S_T)}, {s(S_P)}, {s(S_PLX)}")
    A(f"s_add_u32 {s(S_T2)}, {s(S_P)}, {s(S_PLM)}")
    A(f"s_add_u32 {s(S_T3)}, {s(S_Z)}, {s(S_ZL)}")
    if isV: A(f"s_add_u32 {s(S_T4)}, {s(S_Z)}, {s(S_ZL2)}")
    for l in zero(PF+8) + (zero(ZF+4) if isV else []): A(l)
    if PL_K == 'B' and not isV and cls != 0: A(f"s_xor_b32 {s(S_MK)}, {s(S_MK)}, {S_LK ^ (S_LK + 16384)}")
    mp_init(A, ["-1", "-1", s(S_MA,2), "-1"] + ([s(S_MA,2)] if isV else []))
    zl = [(ZF, f"buffer_load_dwordx4 {v(ZF,4)}, {v(V_L16)}, {s(S_WS,4)}, {s(S_T3)} offen sc1")]
    if isV: zl.append((ZF+4, f"buffer_load_dwordx4 {v(ZF+4,4)}, {v(V_ZH)}, {s(S_WS,4)}, {s(S_T4)} offen sc1"))
    def u_reads():
        for j in range(4): E(ds("U", f"ds_read_b128 {v(UL[j],4)}, {v(V_UR)} offset:{j*1024}"))
        if isV:
            for j in range(4): E(ds("U", f"ds_read_b128 {v(UL[4+j],4)}, {v(V_UHR)} offset:{(j>>1)*1024+(j&1)*128}"))
    def zpoi():
        A(f"s_add_u32 {s(S_A1)}, {s(S_ZP)}, {4*8192}")
        dual(A, [f"buffer_store_dwordx4 {v(V_POI,4)}, {v(V_ZS4)}, {s(S_WS,4)}, {s(S_ZP)} offen",
                 f"buffer_store_dwordx4 {v(V_POI,4)}, {v(V_ZS4)}, {s(S_WS,4)}, {s(S_A1)} offen",
                 f"buffer_store_dwordx2 {v(V_POI,2)}, {v(V_ZS2)}, {s(S_WS,4)}, {s(S_ZP)} offen"])
    early = False
    if PREU and cls != 3:
        if isV: zpoi()
        A(f"s_waitcnt vmcnt({5 if isV else (2 if cls == 0 else 0)})")
        u_reads()
    if PL_K == 'B' and flags and cls == 3 and not isV:
        A(f"s_mov_b32 {s(S_B1_)}, {s(S_T3)}"); k_check(A); A(f"s_mov_b32 {s(S_T3)}, {s(S_B1_)}")
    tr(A, 2)
    if HINTB == 7:
        if cls == 3: ts_wait(A, E, S_TD, CB)
        if cls == 0 and not isV and DELAYBS: A(f"s_sleep {DELAYBS}")
        A("s_barrier")
    elif HINTB == 6:
        if cls == 3:
            ts_poll(A, 57, 58, 59, 10)
            if XHINT and isV and XEARLY: xstore(A)
            if PREU == 1:
                u_reads()
                if isV: zpoi()
            ts_wait(A, E, S_TD, TB, True)
        if cls == 0 and not isV and DELAYBS: A(f"s_sleep {DELAYBS}")
        A("s_barrier")
    elif HINTB == 4:
        if cls == 3:
            if isV: gate(A, 0, 16, 110, 11 if TRACE else 111, 59, 10, 3 if GIDXV < 12 else 2, DELAYB, DFAILB)
            else: gate(A, 0, 16, XS, XS+1, XS+2, 10, 0, 0, DFAILB)
        if cls == 0 and not isV and DELAYBS: A(f"s_sleep {DELAYBS}")
        A("s_barrier")
    elif HINTB:
        if cls == (0 if HINTB == 1 else 3):
            hint_poll(A, 0, 16, 57, 58, 59, 10)
            if HINTA == 4:
                A(f"s_memtime {s(FPS[5],2)}"); A("s_waitcnt lgkmcnt(0)"); E.reset()
                A(f"s_add_u32 {s(S_TD)}, {s(FPS[5])}, {CWAIT - (CVADJ if isV else 0)}")
            db = DELAYB - (DBVADJ if isV else 0)
            if db > 0: A(f"s_sleep {db}")
        if cls == 0 and not isV and DELAYBS: A(f"s_sleep {DELAYBS}")
        A("s_barrier")
    elif not isV:
        A("s_barrier")
        if DELAYBS: A(f"s_sleep {DELAYBS}")
    elif DELAYB: A(f"s_sleep {DELAYB}")
    if STAMP == 1: tick(A, 8)
    tr(A, 3)
    gl = [(PF+4*j, f"buffer_load_dwordx4 {v(PF+4*j,4)}, {v(V_L16)}, {s(S_WS,4)}, {s(S_T)} offen offset:{j*1024} sc1") for j in range(2)]
    gl.append((PF+8, f"buffer_load_dwordx4 {v(PF+8,4)}, {v(V_PLD)}, {s(S_WS,4)}, {s(S_T2)} offen sc1"))
    gl += zl
    lab = A.newlabel("GB")
    loop_top(A, lab, 11)
    mp_issue(A, gl)
    nz = 0
    if HINTB == 7 and cls == 3:
        ph_issue(A); nz += 1
    if XHINT and cls == 3 and isV and HINTB != 7 and (HINTB != 6 or not XEARLY):
        xstore(A); nz += 1
    if not PREU or (PREU == 2 and cls == 3):
        A(f"s_waitcnt vmcnt({len(gl)+nz})")
        u_reads()
        if isV and PL_P != 'W': zpoi(); nz += 3
    if PL_K == 'B' and not isV and cls != 0:
        A(f"s_mov_b32 m0, {s(S_MK)}")
        A("s_nop 0")
        for j in range(4): A(f"buffer_load_dwordx4 {v(V_L16)}, {s(S_WS,4)}, {s(S_KS)} offen offset:{j*1024} sc1 lds")
        nz += 4
    if XHINT == 2 and cls == 3:
        hint_first(A, 128, 1, 57, 58, True); A("s_mov_b64 exec, -1"); nz += 1
    def mm(d, a_, b_, first): return f"v_mfma_f32_16x16x32_bf16 {v(d,4)}, {v(a_,4)}, {v(b_,4)}, {'0' if first else v(d,4)}"
    chk = mp_check(gl, 32); n_ = len(gl)
    A(f"s_waitcnt vmcnt({nz + n_ - 2}) lgkmcnt(0)"); E.reset()
    xs = []
    for t in range(nt):
        for j in range(2): xs += [mm(DO[t], UL[4*t+2*j+1], PF+4*j, j == 0), mm(D[t], UL[4*t+2*j], PF+4*j, j == 0)]
    fill = [chk[0], chk[1], chk[n_], chk[n_+1]]
    for m_ in xs:
        A(m_)
        if fill: A(fill.pop(0))
    A(f"s_waitcnt vmcnt({nz})")
    A(mm(D[0], ZF, PF+8, False))
    rest = chk[2:n_] + chk[n_+2:]
    for l in rest[:2]: A(l)
    if isV: A(mm(D[1], ZF+4, PF+8, False))
    for l in rest[2:]: A(l)
    mp_close(A, len(gl), lab)
    main = []
    tr(A, 4)
    if PL_K == 'B' and not isV and cls != 0:
        A(f"s_add_u32 {s(S_KS)}, {s(S_KS)}, {NH*12288}"); A(f"s_add_u32 {s(S_KN)}, {s(S_KN)}, 1"); A(f"s_min_u32 {s(S_KN)}, {s(S_KN)}, {NSEG}")
    add0 = [f"v_add_f32_dpp {v(D[0]+i)}, {v(DO[0]+i)}, {v(D[0]+i)} row_ror:8 row_mask:0xf bank_mask:0xf" for i in range(4)]
    for k_, m_ in enumerate(main[5:]):
        A(m_[0])
        if k_ >= 3:
            A(add0.pop(0)); A(add0.pop(0))
    if HINTA == 2 and cls == 0: hint_store(A, 128, 57)
    if HINTA == 5 and cls == 3 and XHINT and HINTB != 7:
        A(f"s_add_u32 {s(S_A1_)}, {s(S_RR)}, {s(S_XR)}"); A("s_mov_b64 exec, 1")
        A(f"buffer_load_dword {v(58)}, {v(V_ZERO)}, {s(S_WS,4)}, {s(S_A1_)} offen sc1"); A("s_mov_b64 exec, -1")
    if HINTA in (2, 3, 4) and cls == 3 and XHINT == 1:
        hint_first(A, 128, 32 if HINTA == 2 else 1, 57, 58, True); A("s_mov_b64 exec, -1")
    A("s_nop 0")
    for l in add0: A(l)
    if isV:
        for i in range(4):
            A(f"v_add_f32_dpp {v(D[0]+i)}, {v(D[1]+i)}, {v(DO[1]+i)} row_ror:8 row_mask:0xf bank_mask:0xc")
    E(ds("r", f"ds_write_b128 {v(V_RW if isV else 126)}, {v(D[0],4)} offset:{0 if isV else S_LRED-HI}"))
    E.drain()
    A("s_barrier")
    if HINTB == 7 and cls == 3:
        ph_eval(A, 0 if isV else 4)
        if XHINT and isV: xstore(A)

def preload(A, E, z=True):
    for j in range(3):
        for it in wl_read(j): E(it)
    for k in range(3 if z else 0):
        for l in zero(ACC+4*k): A(l)

def gatherA(A, E, isV, cls, lab, flags):
    mt = 72
    vtw = V_TW if isV else V_PLD
    def advance():
        A(f"s_add_u32 {s(S_STEP)}, {s(S_STEP)}, 1")
        for c_, n_, p_ in ((S_Z,S_ZN,S_ZP),(S_P,S_PN,S_PP)):
            A(f"s_mov_b32 {s(S_T)}, {s(c_)}"); A(f"s_mov_b32 {s(c_)}, {s(n_)}"); A(f"s_mov_b32 {s(n_)}, {s(p_)}"); A(f"s_mov_b32 {s(p_)}, {s(S_T)}")
        A(f"s_mov_b32 {s(S_T)}, {s(S_L)}"); A(f"s_mov_b32 {s(S_L)}, {s(S_LN)}"); A(f"s_mov_b32 {s(S_LN)}, {s(S_T)}")
        A(f"s_add_u32 {s(S_US)}, {s(S_US)}, {40*32768}")
        if isV: A(f"s_add_u32 {s(S_US2)}, {s(S_US2)}, {40*32768}")
        A(f"s_add_u32 {s(S_EXP)}, {s(S_EXP)}, 327680")
        A(f"s_add_u32 {s(S_ARR)}, {s(S_ARR)}, 128")
        if not isV: A(f"s_add_u32 {s(S_KMX)}, {s(S_KMX)}, {NH*3072}")
        preload(A, E)
    if cls == 0:
        st = 1024
        for w in range(4): E(ds("f", f"ds_read_b128 {v(AF+4*w,4)}, {v(V_FINR)} offset:{w*st}"))
        E.drain()
        for i in range(4): A(f"v_add_f32 {v(AF+i)}, {v(AF+i)}, {v(AF+4+i)}")
        for i in range(4): A(f"v_add_f32 {v(AF+8+i)}, {v(AF+8+i)}, {v(AF+12+i)}")
        for i in range(4): A(f"v_add_f32 {v(AF+i)}, {v(AF+i)}, {v(AF+8+i)}")
        A(f"s_mov_b64 exec, {s(S_MB if isV else S_MA,2)}")
        A(f"buffer_store_dwordx4 {v(AF,4)}, {v(vtw)}, {s(S_WS,4)}, {s(S_RW)} offen sc0 sc1")
        A("s_mov_b64 exec, -1")
        tick(A, 3)
        advance()
        if DELAY0: A(f"s_sleep {DELAY0}")
        A(f"s_mov_b64 exec, {s(S_MB if isV else S_MA,2)}")
        labt = A.newlabel("GT")
        loop_top(A, labt, 13)
        A(f"buffer_load_dwordx4 {v(AF+4,4)}, {v(vtw)}, {s(S_WS,4)}, {s(S_RR)} offen sc1")
        A("s_waitcnt vmcnt(0)")
        for l in maxtree(range(AF+4, AF+8), mt): A(l)
        for i in range(4): A(f"v_add_f32 {v(AF+8+i)}, {v(AF+i)}, {v(AF+4+i)}")
        A(f"v_cmp_eq_u32 vcc, -1, {v(mt)}")
        for i in range(2): A(f"v_cvt_pk_bf16_f32 {v(AF+8+i)}, {v(AF+8+2*i)}, {v(AF+9+2*i)}")
        retry(A, labt, 13)
        dual(A, [f"buffer_store_dwordx2 {v(AF+8,2)}, {v(V_FINRM)}, {s(S_WS,4)}, {s(S_L)} offen",
                 f"buffer_store_dwordx2 {v(V_POI,2)}, {v(V_FINRM)}, {s(S_WS,4)}, {s(S_LN)} offen"])
        A("s_mov_b64 exec, -1")
        if not isV: p_poison(A, S_PN)
        A(f"s_add_u32 {s(S_RR)}, {s(S_RR)}, 40960")
        A(f"s_add_u32 {s(S_RW)}, {s(S_RW)}, 40960")
    else:
        tick(A, 3)
        window(A, E, isV, cls, flags)
        advance()
    A("s_barrier")
    tick(A, 4)
    if (DELAYLV if isV else DELAYL): A(f"s_sleep {DELAYLV if isV else DELAYL}")
    G = AF + 12
    A(f"s_add_u32 {s(S_T)}, {s(S_L)}, 4096")
    A(f"s_add_u32 {s(S_T2)}, {s(S_L)}, {s(S_G3)}")
    A(f"v_mov_b64 {v(G+8,2)}, 0"); A(f"v_mov_b64 {v(G+10,2)}, 0")
    if STAMP == 1: tick(A, 8)
    loop_top(A, lab, 12)
    A(f"buffer_load_dwordx4 {v(G,4)}, {v(V_T7)}, {s(S_WS,4)}, {s(S_L)} offen sc1")
    A(f"buffer_load_dwordx4 {v(G+4,4)}, {v(V_T7)}, {s(S_WS,4)}, {s(S_T)} offen sc1")
    A(f"s_mov_b64 exec, {s(S_M3,2)}")
    A(f"buffer_load_dwordx4 {v(G+8,4)}, {v(V_T7)}, {s(S_WS,4)}, {s(S_T2)} offen sc1")
    return lab

def gatherA2(A, E, lab):
    G = AF + 12; mt = 72
    A("s_waitcnt vmcnt(0)")
    if STAMP == 1: tick(A, 9)
    A("s_mov_b64 exec, -1")
    mtree = maxtree(range(G, G+12), mt)
    E(ds("g", f"ds_write_b128 {v(V_GA)}, {v(G,4)}"))
    for l in mtree: A(l)
    A(f"v_cmp_eq_u32 vcc, -1, {v(mt)}")
    retry(A, lab, 12)
    E(ds("g", f"ds_write_b128 {v(V_GA)}, {v(G+4,4)} offset:4096"))
    A(f"s_mov_b64 exec, {s(S_M3,2)}")
    E(ds("g", f"ds_write_b128 {v(V_G3W)}, {v(G+8,4)}"))
    A("s_mov_b64 exec, -1")
    tick(A, 5)
    E.drain()

S_OLO = 40; S_OHI = 41; S_TGT = 66
def probes(A, isV, ahead):
    A(f"v_cmp_le_u32 vcc, 32, {v(V_FL)}")
    A(f"s_add_u32 {s(S_T)}, {s(S_TGT)}, 1")
    A(f"s_max_u32 {s(S_T)}, {s(S_T)}, {s(S_KNOWN)}")
    A("s_cmp_lg_u64 vcc, 0")
    A(f"s_cselect_b32 {s(S_KNOWN)}, {s(S_T)}, {s(S_KNOWN)}")
    A(f"s_cselect_b32 {s(S_TGT)}, 2, 0")
    u_check(A, ahead)
    if not isV and PL_K != 'B': k_check(A)
    A(f"s_add_u32 {s(S_TGT)}, {s(S_KNOWN)}, {s(S_TGT)}")
    A(f"s_min_u32 {s(S_TGT)}, {s(S_TGT)}, {NSEG-1}")
    A(f"s_lshl_b32 {s(S_T)}, {s(S_TGT)}, 7")
    A(f"s_add_u32 {s(S_T)}, {s(S_T)}, {CN_U}")
    A(f"buffer_load_dword {v(V_FL)}, {v(V_ZERO)}, {s(S_WS,4)}, {s(S_T)} offen sc1")
    if not isV:
        A(f"s_add_u32 {s(S_T)}, {s(S_FLO)}, {FL_K}")
        A(f"buffer_load_dword {v(V_FKS)}, {v(V_ZERO)}, {s(S_WS,4)}, {s(S_T)} offen sc1")

def probes_text(A, isV):
    B = Asm(); B.uid = A.uid + 400000; A.uid += 10
    probes(B, isV, 1)
    return "\n".join(B.lines)
LR = 20; RR_ = 32; UP = list(range(100, 110)) + list(range(112, 120)) + [56, 57, 58, 59, 73, 74]
def ld3_list(dst, sbase, t1, t2):
    return [(dst, f"buffer_load_dwordx4 {v(dst,4)}, {v(V_T7)}, {s(S_WS,4)}, {s(sbase)} offen sc1"),
            (dst+4, f"buffer_load_dwordx4 {v(dst+4,4)}, {v(V_T7)}, {s(S_WS,4)}, {s(t1)} offen sc1"),
            (dst+8, f"buffer_load_dwordx4 {v(dst+8,4)}, {v(V_T7)}, {s(S_WS,4)}, {s(t2)} offen sc1")]
S_A1 = 10; S_A2 = 11; S_B1 = 3; S_B2 = 101
LIST_L = lambda: ld3_list(LR, S_L, S_A1, S_A2)
LIST_R = lambda: ld3_list(RR_, S_RR, S_B1, S_B2)

GSIDE = []
def advance1(A, E, isV, pre=True):
    A(f"s_add_u32 {s(S_STEP)}, {s(S_STEP)}, 1")
    for c_, n_, p_ in ((S_Z,S_ZN,S_ZP),(S_P,S_PN,S_PP)):
        A(f"s_mov_b32 {s(S_T)}, {s(c_)}"); A(f"s_mov_b32 {s(c_)}, {s(n_)}"); A(f"s_mov_b32 {s(n_)}, {s(p_)}"); A(f"s_mov_b32 {s(p_)}, {s(S_T)}")
    A(f"s_mov_b32 {s(S_T)}, {s(S_L)}"); A(f"s_mov_b32 {s(S_L)}, {s(S_LN)}"); A(f"s_mov_b32 {s(S_LN)}, {s(S_T)}")
    A(f"s_add_u32 {s(S_US)}, {s(S_US)}, {40*32768}")
    if isV: A(f"s_add_u32 {s(S_US2)}, {s(S_US2)}, {40*32768}")
    A(f"s_add_u32 {s(S_ARR)}, {s(S_ARR)}, 128")
    if pre: preload(A, E, False)

def side_ops(A, E, isV, cls, flags, where):
    n = 0
    adv = where == 'G'
    if PL_X == where:
        z_export(A, isV, ZF, None); n += 2 if isV else 1
    if isV and PL_P == where:
        zs = S_ZN if adv else S_ZP
        A(f"s_add_u32 {s(S_T2)}, {s(zs)}, {4*8192}")
        dual(A, [f"buffer_store_dwordx4 {v(V_POI,4)}, {v(V_ZS4)}, {s(S_WS,4)}, {s(zs)} offen",
                 f"buffer_store_dwordx4 {v(V_POI,4)}, {v(V_ZS4)}, {s(S_WS,4)}, {s(S_T2)} offen",
                 f"buffer_store_dwordx2 {v(V_POI,2)}, {v(V_ZS2)}, {s(S_WS,4)}, {s(zs)} offen"])
        n += 3
    if cls == 0 and adv and PL_X != 'S':
        A(f"s_mov_b64 exec, {s(S_MB if isV else S_MA,2)}")
        dual(A, [f"buffer_store_dwordx2 {v(V_POI,2)}, {v(V_FINRM)}, {s(S_WS,4)}, {s(S_LN)} offen"])
        A("s_mov_b64 exec, -1")
        n += 1
        if not isV: p_poison(A, S_PN); n += 2
    if cls != 0 and not isV and PL_K == where:
        A(f"s_xor_b32 {s(S_MK)}, {s(S_MK)}, {S_LK ^ (S_LK + 16384)}")
        k_dma(A, cls); n += (6 if cls == 12 else 0) if K2W else 4
    if cls != 0 and not isV and PL_M == where:
        km_export(A, E, 44); n += 1
        A(f"s_add_u32 {s(S_KMX)}, {s(S_KMX)}, {NH*3072}")
    if flags and cls == PROBEW and PL_M == where:
        probes(A, isV, {'T': 2, 'W': 1, 'G': 1}[where]); n += 1 if isV else 2
    return n

def g1_bottom(A, E, isV, cls, flags):
    if cls == 0:
        st = 1024
        for w in range(4): E(ds(f"f{w}", f"ds_read_b128 {v(AF+4*w,4)}, {v(V_FINR)} offset:{w*st}"))
        for w in range(1, 4):
            E(need(f"f{w}"))
            for i in range(4): A(f"v_add_f32 {v(AF+i)}, {v(AF+i)}, {v(AF+4*w+i)}")
        for i in range(2): A(f"v_cvt_pk_bf16_f32 {v(AF+24+i)}, {v(AF+2*i)}, {v(AF+1+2*i)}")
        if TWIN:
            msk = s(S_MB if isV else S_MA, 2)
            A(f"s_mov_b64 exec, {msk}")
            A(f"buffer_store_dwordx2 {v(AF+24,2)}, {v(V_FINRR if isV else V_FINRM)}, {s(S_WS,4)}, {s(S_RW)} offen sc0 sc1")
            A("s_mov_b64 exec, -1")
            tr(A, 5)
            preload(A, E, True)
            if TWD: A(f"s_sleep {TWD}")
            A(f"s_mov_b64 exec, {msk}")
            lt = A.newlabel("GT")
            loop_top(A, lt, 13)
            A(f"buffer_load_dwordx2 {v(AF+4,2)}, {v(V_FINRT if isV else V_FINRM)}, {s(S_WS,4)}, {s(S_RR)} offen sc1")
            A("s_waitcnt vmcnt(0)")
            for j in range(2):
                A(f"v_dot2_f32_bf16 {v(AF+8+2*j)}, {v(AF+4+j)}, {s(S_OLO)}, {v(AF+2*j)}")
                A(f"v_dot2_f32_bf16 {v(AF+9+2*j)}, {v(AF+4+j)}, {s(S_OHI)}, {v(AF+1+2*j)}")
            A(f"v_cmp_eq_u32 vcc, -1, {v(AF+4)}")
            A("s_nop 0")
            for j in range(2): A(f"v_cvt_pk_bf16_f32 {v(AF+24+j)}, {v(AF+8+2*j)}, {v(AF+9+2*j)}")
            retry(A, lt, 13)
            dual(A, [f"buffer_store_dwordx2 {v(AF+24,2)}, {v(V_FINRM)}, {s(S_WS,4)}, {s(S_LN)} offen"])
        elif WIDE:
            A(f"v_mov_b64 {v(AF+26,2)}, {v(AF+24,2)}")
            A("s_nop 1")
            A(f"v_permlane16_swap_b32 {v(AF+24)}, {v(AF+26)}")
            A(f"v_permlane16_swap_b32 {v(AF+25)}, {v(AF+27)}")
            A(f"s_mov_b32 exec_lo, {'0x0000ffff' if isV else '0x000000ff'}")
            A("s_mov_b32 exec_hi, 0x000000ff")
            A(f"buffer_store_dwordx4 {v(AF+24,4)}, {v(V_FINRR if isV else V_FINRM)}, {s(S_WS,4)}, {s(S_RW)} offen sc0 sc1")
            dual(A, [f"buffer_store_dwordx4 {v(AF+24,4)}, {v(V_FINRM)}, {s(S_WS,4)}, {s(S_LN)} offen"])
        else:
            A(f"s_mov_b64 exec, {s(S_MB if isV else S_MA,2)}")
            A(f"buffer_store_dwordx2 {v(AF+24,2)}, {v(V_FINRR if isV else V_FINRM)}, {s(S_WS,4)}, {s(S_RW)} offen sc0 sc1")
            dual(A, [f"buffer_store_dwordx2 {v(AF+24,2)}, {v(V_FINRM)}, {s(S_WS,4)}, {s(S_LN)} offen"])
        A("s_mov_b64 exec, -1")
        if HINTA == 1: hint_store(A, 128, 56)
        if not HINTA: A("s_barrier")
    nw_ = 0
    if (cls != 0 and (not isV or cls == PROBEW)) or (isV and PL_P == 'W'):
        if WDEL and cls != 0: A(f"s_sleep {WDEL}")
        if HINTB == 7 and cls == 3 and XHINT:
            A(f"s_add_u32 {s(S_A1_)}, {s(S_RR)}, {s(S_XR)}"); A("s_mov_b64 exec, 1")
            A(f"buffer_load_dword {v(58)}, {v(V_ZERO)}, {s(S_WS,4)}, {s(S_A1_)} offen sc1"); A("s_mov_b64 exec, -1")
        nw_ = side_ops(A, E, isV, cls, flags, 'W')
    tick(A, 3)
    if not (TWIN and cls == 0): tr(A, 5)
    if HINTA and HINTA != 5 and cls == 3 and (HINTA < 3 or XHINT == 1):
        preload(A, E, False)
        if HINTA >= 3: gate(A, 128, 1, 57, 58, 59, 9, nw_, 0, DELAYH, cross=True)
        else:
            hint_poll(A, 128, 32, 57, 58, 59, 9, cross=XHINT, first=not XHINT)
            if DELAYH: A(f"s_sleep {DELAYH}")
    advance1(A, E, isV, not (HINTA and HINTA != 5 and cls == 3 and (HINTA < 3 or XHINT == 1)) and not TWIN)
    if TWIN and cls != 0: preload(A, E, True)
    for r in (LR+8, LR+10, RR_+8, RR_+10): A(f"v_mov_b64 {v(r,2)}, 0")
    A(f"s_add_u32 {s(S_A1)}, {s(S_L)}, 4096"); A(f"s_add_u32 {s(S_A2)}, {s(S_L)}, {s(S_G3)}")
    mp_init(A, ["-1", "-1", s(S_M3,2)]); mp_init(A, ["-1", "-1", s(S_M3,2)], 3)
    A(f"s_add_u32 {s(S_B1)}, {s(S_RR)}, 4096"); A(f"s_add_u32 {s(S_B2)}, {s(S_RR)}, {s(S_R3)}")
    if cls == 0 and HINTA == 2 and DELAY0: A(f"s_sleep {DELAY0}")
    if cls == 3 and HINTA == 5:
        if XHINT:
            A(f"s_waitcnt vmcnt({nw_})")
            A(f"v_readfirstlane_b32 {s(S_T2)}, {v(58)}")
            if XBLOCK:
                xl = A.newlabel("XL"); xo = A.newlabel("XLo")
                A(f"s_cmp_lt_i32 {s(S_T2)}, {s(S_HN)}")
                A(f"s_cbranch_scc1 {xl}")
                A.label(xo)
                STUBS.append([xl + ":", f"s_add_u32 {s(S_T)}, {s(S_RR)}, {s(S_XR)}", xl + "_l:"] + ([f"s_add_u32 {s(S_TS+9)}, {s(S_TS+9)}, 1"] if STAMP else []) +
                             [f"buffer_load_dword {v(58)}, {v(V_ZERO)}, {s(S_WS,4)}, {s(S_T)} offen sc1",
                              f"s_sub_u32 {s(S_CNT)}, {s(S_CNT)}, 1", f"s_cbranch_scc1 {xl}_d", "s_waitcnt vmcnt(0)",
                              f"v_readfirstlane_b32 {s(S_T2)}, {v(58)}", "s_nop 0", f"s_cmp_lt_i32 {s(S_T2)}, {s(S_HN)}", f"s_cbranch_scc1 {xl}_l", f"s_branch {xo}",
                              xl + "_d:", f"s_mov_b32 {s(S_CNT)}, 0", "s_waitcnt vmcnt(0)", f"s_branch {xo}"])
            else:
                A(f"s_add_u32 {s(S_T)}, {s(S_TD)}, {XLATE}")
                A(f"s_cmp_lt_i32 {s(S_T2)}, {s(S_HN)}")
                A(f"s_cselect_b32 {s(S_T2)}, {s(S_T)}, {s(S_T2)}")
                if STAMP: A(f"s_addc_u32 {s(S_TS+9)}, {s(S_TS+9)}, 0")
            A(f"s_max_i32 {s(S_TD)}, {s(S_TD)}, {s(S_T2)}")
        ts_wait(A, E, S_TD, TA)
        if HINTB == 7: A(f"s_add_u32 {s(S_TD)}, {s(S_TD)}, {TA}")
    if cls == 3 and HINTA == 4:
        lp = A.newlabel("TW"); dn = A.newlabel("TWd")
        if XHINT == 2:
            A(f"s_waitcnt vmcnt({nw_})")
            A(f"v_readfirstlane_b32 {s(S_T)}, {v(58)}")
            A(f"s_cmp_lt_i32 {s(S_T)}, {s(S_HN)}")
            A(f"s_cselect_b32 {s(S_T2)}, {XDELTA}, 0")
            A(f"s_add_u32 {s(S_TD)}, {s(S_TD)}, {s(S_T2)}")
            if STAMP: A(f"s_cmp_lt_i32 {s(S_T)}, {s(S_HN)}"); A(f"s_addc_u32 {s(S_TS+9)}, {s(S_TS+9)}, 0")
        A(f"s_memtime {s(76 if not (TRACE or STAMP) else 92,2)}"); A("s_waitcnt lgkmcnt(0)"); E.reset()
        A(f"s_sub_u32 {s(S_T)}, {s(S_TD)}, {s(76 if not (TRACE or STAMP) else 92)}")
        A(f"s_cmp_gt_i32 {s(S_T)}, 4000"); A(f"s_cselect_b32 {s(S_T)}, 0, {s(S_T)}")
        A.label(lp)
        A(f"s_sub_u32 {s(S_T)}, {s(S_T)}, {TWSTEP}")
        A(f"s_cmp_gt_i32 {s(S_T)}, 0")
        A(f"s_cbranch_scc1 {lp}")
    if cls == 0 and HINTA >= 3 and (DELAY0V if isV else DELAY0): A(f"s_sleep {DELAY0V if isV else DELAY0}")
    if cls != 0 or isV: tr(A, 9)
    if cls != 0 or HINTA: A("s_barrier")
    tick(A, 4)
    d = (DELAYLV if isV else DELAYL) - (2 if cls == 0 and not HINTA else 0)
    if d: A(f"s_sleep {d}")
    if STAMP == 1: tick(A, 8)
    tr(A, 6)

def nside(isV, cls, flags):
    B = Asm(); n0 = len(STUBS)
    n = side_ops(B, Emit(B), isV, cls, flags, 'G')
    del STUBS[n0:]
    return n

def g1_top(A, E, isV, cls, flags):
    mt = 72
    if TWIN:
        lab = A.newlabel("GA")
        loop_top(A, lab, 12)
        mp_issue(A, LIST_L())
        nx = side_ops(A, E, isV, cls, flags, 'G')
        for f in range(3):
            A(f"s_waitcnt vmcnt({2-f+nx})")
            if f == 0: tr(A, 7)
            if f == 2: tr(A, 8); A(f"s_mov_b64 exec, {s(S_M3,2)}")
            E(ds("g", f"ds_write_b128 {v(V_GA if f < 2 else V_G3W)}, {v(LR+4*f,4)} offset:{4096 if f == 1 else 0}"))
        A("s_mov_b64 exec, -1")
        for l in mp_check(LIST_L(), 72): A(l)
        mp_close(A, 3, lab)
        A(f"s_add_u32 {s(S_EXP)}, {s(S_EXP)}, 327680")
        A(f"s_cmp_eq_u32 {s(S_STEP)}, {RPP}")
        A(f"s_cselect_b32 {s(S_T)}, {s(55 if isV else 64)}, {RSTEP}")
        A(f"s_add_u32 {s(S_RR)}, {s(S_RR)}, {s(S_T)}")
        A(f"s_add_u32 {s(S_RW)}, {s(S_RW)}, {s(S_T)}")
        tr(A, 0)
        E.drain()
        return
    unp = []
    for j in range(12):
        unp += [f"v_lshlrev_b32 {v(UP[2*j])}, 16, {v(LR+j)}", f"v_and_b32 {v(UP[2*j+1])}, 0xffff0000, {v(LR+j)}"]
    TM = [60, 61, 62, 63, 64, 65, 66, 67]; OUT = 68
    lab = A.newlabel("GA")
    loop_top(A, lab, 12)
    if LRGAP:
        mp_issue(A, LIST_L())
        A(f"s_sleep {LRGAP}")
        mp_issue(A, LIST_R(), 3)
    else: mp_issue(A, LIST_L() + LIST_R())
    ng = UGV if isV else UGS
    if not UGLATE:
        for l in u_dma_items(isV, 0, ng): A(l)
    nx = side_ops(A, E, isV, cls, flags, 'G')
    if UGLATE:
        for l in u_dma_items(isV, 0, ng): A(l)
    nx += ng
    A(f"s_waitcnt vmcnt({3+nx})")
    tr(A, 7)
    for l in mp_check(LIST_L(), 72) + unp: A(l)
    for f in range(3):
        A(f"s_waitcnt vmcnt({2-f+nx})")
        if f == 2: tr(A, 8)
        A(f"v_max_u32 {v(72)}, {v(RR_+4*f)}, {v(RR_+4*f+2)}")
        for j in range(4):
            A(f"v_dot2_f32_bf16 {v(TM[2*j])}, {v(RR_+4*f+j)}, {s(S_OLO)}, {v(UP[8*f+2*j])}")
            A(f"v_dot2_f32_bf16 {v(TM[2*j+1])}, {v(RR_+4*f+j)}, {s(S_OHI)}, {v(UP[8*f+2*j+1])}")
        A(f"v_cmp_eq_u32 {s(FPS[3+f],2)}, -1, {v(72)}")
        o = OUT if f != 1 else 44
        for j in range(4):
            A(f"v_cvt_pk_bf16_f32 {v(o+j)}, {v(TM[2*j])}, {v(TM[2*j+1])}")
        if f == 2: A(f"s_mov_b64 exec, {s(S_M3,2)}")
        E(ds("g", f"ds_write_b128 {v(V_GA if f < 2 else V_G3W)}, {v(o,4)} offset:{4096 if f == 1 else 0}"))
    A("s_mov_b64 exec, -1")
    if STAMP == 3:
        A(f"s_or_b64 vcc, {s(FPS[0],2)}, {s(FPS[1],2)}"); A(f"s_or_b64 vcc, vcc, {s(FPS[2],2)}"); A(f"s_addc_u32 {s(S_TS+8)}, {s(S_TS+8)}, 0")
        A(f"s_or_b64 vcc, {s(FPS[3],2)}, {s(FPS[4],2)}"); A(f"s_or_b64 vcc, vcc, {s(FPS[5],2)}"); A(f"s_addc_u32 {s(S_TS+13)}, {s(S_TS+13)}, 0")
    mp_close(A, 6, lab)
    for k in range(3):
        for l in zero(ACC+4*k): A(l)
    if PL_X == 'G': A(f"s_add_u32 {s(S_EXP)}, {s(S_EXP)}, 327680")
    A(f"s_cmp_eq_u32 {s(S_STEP)}, {RPP}")
    A(f"s_cselect_b32 {s(S_T)}, {s(55 if isV else 64)}, {RSTEP}")
    A(f"s_add_u32 {s(S_RR)}, {s(S_RR)}, {s(S_T)}")
    A(f"s_add_u32 {s(S_RW)}, {s(S_RW)}, {s(S_T)}")
    tick(A, 5)
    tr(A, 0)
    E.drain()

def stage_side(A, isV, cls):
    if VAR != 1 or PL_X != 'S': return []
    L = [f"s_add_u32 {s(S_T)}, {s(S_EXP)}, {s(S_ZL)}",
         f"buffer_store_dwordx4 {v(ZF,4)}, {v(V_L16)}, {s(S_WS,4)}, {s(S_T)} offen sc0 sc1"]
    if isV:
        L += [f"s_add_u32 {s(S_T)}, {s(S_EXP)}, {s(S_ZL2)}",
              "\n".join([f"s_mov_b64 exec, {s(S_MA,2)}", f"buffer_store_dwordx4 {v(ZF+4,4)}, {v(V_ZH)}, {s(S_WS,4)}, {s(S_T)} offen sc0 sc1", "s_mov_b64 exec, -1"])]
    L += [f"s_mov_b32 {s(S_EXP)}, {s(S_EXN)}", f"s_add_u32 {s(S_EXN)}, {s(S_EXN)}, 327680"]
    T = [[0, 4, L]]
    if cls == 0:
        B = Asm(); B.uid = A.uid + 300000; A.uid += 10
        B(f"s_mov_b64 exec, {s(S_MB if isV else S_MA,2)}")
        dual(B, [f"buffer_store_dwordx2 {v(V_POI,2)}, {v(V_FINRM)}, {s(S_WS,4)}, {s(S_LN)} offen"])
        B("s_mov_b64 exec, -1")
        T.append([8, 12, ["\n".join(B.lines)]])
        if not isV:
            B = Asm(); B.uid = A.uid + 310000; A.uid += 10
            p_poison(B, S_PN)
            T.append([10, 14, ["\n".join(B.lines)]])
    return T

def chain_loop(A, isV, cls, flags):
    E = Emit(A)
    top = A.newlabel("CH_top"); fin = A.newlabel("CH_fin"); ent = A.newlabel("CH_ent"); galab = A.newlabel("GAx")
    preload(A, E); E.drain()
    if TRACE:
        global V_TRC, V_TRA4
        V_TRC, V_TRA4 = (13, 110) if isV else (125, 110)
        A(f"s_lshl_b32 s95, {s(S_GRP)}, 5"); A(f"s_add_u32 s95, s95, {s(S_C)}"); A("s_lshl_b32 s95, s95, 2"); A(f"s_add_u32 s95, s95, {s(S_WAVE)}")
        A("s_lshl_b32 s95, s95, 14"); A(f"s_add_u32 s95, s95, {WS_SCR + 4*1048576}")
        A("s_memrealtime s[88:89]"); A("s_memtime s[70:71]"); A("s_waitcnt lgkmcnt(0)")
    if STAMP:
        A(f"s_memtime {s(88,2)}"); A(f"s_memrealtime {s(92,2)}"); A("s_waitcnt lgkmcnt(0)"); A(f"s_mov_b32 {s(86)}, {s(88)}"); A(f"s_mov_b32 {s(87)}, {s(92)}")
    A(f"s_branch {ent}")
    A.label(top)
    if VAR == 2: gatherA2(A, E, galab)
    else: g1_top(A, E, isV, cls, flags)
    A.label(ent)
    A("s_barrier")
    tick(A, 6)
    if STAMP == 3 and cls == 3:
        A(f"s_memrealtime {s(92,2)}"); A(f"s_lshl_b32 s94, {s(S_STEP)}, 2"); A(f"s_lshl_b32 s95, {s(S_HEAD)}, 8"); A("s_add_u32 s94, s94, s95")
        A(f"s_add_u32 s94, s94, {WS_SCR + 3*1048576 + 65536}"); A("s_waitcnt lgkmcnt(0)"); A(f"v_mov_b32 {v(XS+19)}, s92")
        A(f"buffer_store_dword {v(XS+19)}, {v(V_ZERO)}, {s(S_WS,4)}, s94 offen")
    if STAMP in (1, 3):
        rs = A.newlabel("rs"); rb = A.newlabel("rb")
        A(f"s_cmp_eq_u32 {s(S_STEP)}, 8"); A(f"s_cbranch_scc1 {rs}"); A.label(rb)
        B = Asm(); B.uid = A.uid + 50000
        if not TS3: tstamp(B, 3)
        STUBS.append([rs + ":"] + B.lines + [f"s_memtime {s(88,2)}", f"s_memrealtime {s(92,2)}", "s_waitcnt lgkmcnt(0)", f"s_mov_b32 {s(86)}, {s(88)}", f"s_mov_b32 {s(87)}, {s(92)}"] +
                     [f"s_mov_b32 {s(S_TS+k)}, 0" for k in range(16)] + [f"s_branch {rb}"])
    if STAMP == 2:
        A(f"s_memrealtime {s(88,2)}"); A("s_waitcnt lgkmcnt(0)")
        A(f"s_cmp_eq_u32 {s(S_STEP)}, {TSTEP}"); A(f"s_cselect_b32 {s(S_TS+7)}, {s(88)}, {s(S_TS+7)}")
    if isV: v_stage(A, E, cls, flags)
    else: s_stage(A, E, cls, flags)
    tick(A, 0)
    A(f"s_cmp_eq_u32 {s(S_STEP)}, {NSTEP-1}")
    A(f"s_cbranch_scc1 {fin}")
    if not isV and cls == 3 and HINTB >= 6 and HW3 == 1: ts_hint_store(A, E, 72, True)
    if not isV and cls == 0: s_tail(A, E)
    tick(A, 1)
    reduce_stage(A, E, isV, cls, flags)
    tick(A, 2)
    if VAR == 2: gatherA(A, E, isV, cls, galab, flags)
    else: g1_bottom(A, E, isV, cls, flags)
    A(f"s_branch {top}")
    flush_stubs(A)
    A.label(fin)
    E.reset()
    if STAMP == 3:
        A(f"s_memtime {s(88,2)}"); A(f"s_memrealtime {s(92,2)}"); A("s_waitcnt lgkmcnt(0)")
        A(f"s_sub_u32 {s(S_TS)}, {s(88)}, {s(86)}"); A(f"s_sub_u32 {s(S_TS+1)}, {s(92)}, {s(87)}")
    if isV:
        A(f"s_add_u32 {s(S_T2)}, {s(S_EXP)}, {4*8192}")
        A(f"buffer_store_dwordx4 {v(XS,4)}, {v(V_ZS4)}, {s(S_WS,4)}, {s(S_EXP)} offen sc0 sc1")
        A(f"buffer_store_dwordx4 {v(XS+4,4)}, {v(V_ZS4)}, {s(S_WS,4)}, {s(S_T2)} offen sc0 sc1")
        A(f"buffer_store_dwordx2 {v(XS+8,2)}, {v(V_ZS2)}, {s(S_WS,4)}, {s(S_EXP)} offen sc0 sc1")
    elif cls != 0:
        km_export(A, E, XS)
    A("s_waitcnt vmcnt(0)")
    A("s_barrier")
    if flags and cls == 0:
        A(f"v_mov_b32 v56, 1"); A(f"v_mov_b32 v57, {NSEG}")
        A(f"s_add_u32 {s(S_T)}, {s(S_FLO)}, {FL_KM}")
        A("s_mov_b64 exec, 1")
        if not isV: A(f"buffer_store_dword v57, {v(V_ZERO)}, {s(S_WS,4)}, {s(S_T)} offen sc0 sc1")
        A(f"buffer_atomic_add v56, {v(V_ZERO)}, {s(S_WS,4)}, {s(S_ARR)} offen offset:128 sc1")
        A(f"buffer_atomic_add v56, {v(V_ZERO)}, {s(S_WS,4)}, {s(S_ARR)} offen offset:256 sc1")
        A("s_mov_b64 exec, -1")
    if STAMP:
        A(f"s_lshl_b32 {s(S_T)}, {s(S_GRP)}, 5")
        A(f"s_add_u32 {s(S_T)}, {s(S_T)}, {s(S_C)}")
        A(f"s_lshl_b32 {s(S_T)}, {s(S_T)}, 2")
        A(f"s_add_u32 {s(S_T)}, {s(S_T)}, {s(S_WAVE)}")
        A(f"s_lshl_b32 {s(S_T)}, {s(S_T)}, 6")
        A(f"s_add_u32 {s(S_T)}, {s(S_T)}, {WS_SCR + 1048576}")
        for k in range(16):
            A(f"v_mov_b32 v21, {s(S_TS+k) if k != 14 else s(S_FAST)}")
            A(f"buffer_store_dword v21, {v(V_ZERO)}, {s(S_WS,4)}, {s(S_T)} offen offset:{4*k}")
        A("s_waitcnt vmcnt(0)")

def role_chain(A, isV, end_label, flags=False):
    global CUR_ORD
    CUR_ORD = ORD_V if isV else ORD_S
    A.c("================ role chain %s ================" % ("V" if isV else "S"))
    A(f"s_load_dwordx2 {s(S_W1,2)}, s[0:1], {KA['Wv' if isV else 'Wq']}")
    A(f"s_load_dwordx2 {s(S_W2,2)}, s[0:1], {KA['Wo' if isV else 'Wk']}")
    A(f"s_load_dwordx2 {s(S_X,2)}, s[0:1], {KA['mem0']}")
    A(f"s_and_b32 {s(S_HEAD)}, {s(S_C)}, 15")
    A(f"s_lshl_b32 {s(S_T)}, {s(S_GRP)}, 4")
    A(f"s_add_u32 {s(S_HEAD)}, {s(S_HEAD)}, {s(S_T)}")
    A(f"s_getreg_b32 {s(S_FAST)}, hwreg(HW_REG_XCC_ID, 0, 4)")
    A(f"s_lshl_b32 {s(S_T)}, {s(S_GRP)}, 5")
    A(f"s_add_u32 {s(S_T)}, {s(S_T)}, {s(S_C)}")
    A(f"s_lshl_b32 {s(S_T)}, {s(S_T)}, 2")
    A(f"s_add_u32 {s(S_T2)}, {s(S_T)}, {MB_X}")
    if not flags: publish(A, S_FAST, S_T2)
    A("s_waitcnt lgkmcnt(0)")
    srd_finish(A, S_W1, W_BYTES); srd_finish(A, S_W2, W_BYTES); srd_finish(A, S_X, 10240)
    A(f"s_mul_i32 s66, {s(S_HEAD)}, 384")
    def hook(c1, c2):
        def f(c):
            if not flags: return
            if c == c1: init_load(A, 124, 125)
            if c == c2:
                init_wait(A, 124, 125)
                publish(A, S_FAST, S_T2, vt=126)
        return f
    if not isV:
        load_w_rows384(A, [S_W1, S_W2], 66, lambda c, kk, t, half: wdest(((c//10)*3+t)*10 + c%10, 2*kk+half), rowmap="sparse", vt=116, after_read=hook(8, 14))
    else:
        load_w_rows384(A, [S_W1], 66, lambda c, kk, t, half: wdest(t*10 + c, 2*kk+half), rowmap="sparse", vt=116, after_read=hook(8, -1))
        A(f"s_mul_i32 s66, {s(S_HEAD)}, 245760")
        load_wo(A, S_W2, 66, lambda c, t, half: wdest(30 + 3*t + c//2, 2*(c&1)+half), sparse=True, vt=116, after_read=hook(-1, 1))
    tstamp(A, 2)
    dstamp(A, 5, 0); dstamp(A, 6, 128)
    A(f"v_bfe_u32 v116, {v(V_LANE)}, 1, 3")
    A(f"v_mul_u32_u24 v116, 1280, v116")
    A(f"v_lshrrev_b32 v117, 4, {v(V_LANE)}")
    A(f"v_lshl_add_u32 v116, v117, 5, v116")
    A(f"v_and_b32 v117, 1, {v(V_LANE)}")
    A(f"v_lshl_add_u32 v116, v117, 4, v116")
    A(f"s_lshl_b32 {s(S_T)}, {s(S_WAVE)}, 7")
    A(f"s_lshl_b32 {s(S_T2)}, {s(S_WAVE)}, 10")
    for j in range(3):
        sk = A.newlabel("m0s")
        if j == 2:
            A(f"s_cmp_ge_u32 {s(S_WAVE)}, 2"); A(f"s_cbranch_scc1 {sk}")
        A(f"s_add_u32 m0, {s(S_T2)}, {L_MEM + j*4096 - j*512}")
        A("s_nop 0")
        A(f"buffer_load_dwordx4 v116, {s(S_X,4)}, {s(S_T)} offen offset:{j*512} lds")
        if j == 2: A.label(sk)
    A("v_mov_b32 v118, 0"); A(f"global_load_dwordx2 v[118:119], v118, {s(S_DBG,2)} offset:4 sc1")
    A(f"s_mul_i32 {s(S_T)}, {s(S_WAVE)}, 24576")
    A(f"v_lshl_add_u32 {v(V_WL)}, {v(V_LANE)}, 4, {s(S_T)}")
    for j in range(12):
        A(f"ds_write_b128 {v(V_WL)}, {v(AF+8*j,4)} offset:{j*2048}")
        A(f"ds_write_b128 {v(V_WL)}, {v(AF+8*j+4,4)} offset:{j*2048+1024}")
    A("s_waitcnt lgkmcnt(0)")
    A(f"v_lshlrev_b32 v20, 2, {v(V_LANE)}"); A("v_mov_b32 v22, 0")
    A(f"s_mov_b32 {s(S_T)}, {MB_X}")
    A(f"buffer_load_dword v21, v20, {s(S_WS,4)}, {s(S_T)} offen sc1")
    A(f"s_lshl_b32 {s(S_T)}, {s(S_HEAD)}, 7"); A(f"s_add_u32 {s(S_T)}, {s(S_T)}, {FL_K}")
    A(f"buffer_load_dword v23, v22, {s(S_WS,4)}, {s(S_T)} offen sc1")
    A(f"s_mov_b32 {s(S_T)}, {CN_U}")
    A(f"s_cmp_eq_u32 {s(S_WAVE)}, 3"); A("s_cselect_b64 exec, -1, 0")
    A(f"buffer_load_dword v28, v22, {s(S_WS,4)}, {s(S_T)} offen sc1")
    A(f"buffer_load_dword v29, v22, {s(S_WS,4)}, {s(S_T)} offen offset:128 sc1")
    A("s_mov_b64 exec, -1")
    setup_common(A, isV)
    nt_ = 0
    for zs, ps in ((S_Z, S_P), (S_ZN, S_PN), (S_ZP, S_PP)):
        A(f"s_add_u32 {s(S_T)}, {s(zs)}, {s(S_ZL)}")
        A(f"buffer_load_dwordx4 v[24:27], {v(V_L16)}, {s(S_WS,4)}, {s(S_T)} offen sc1")
        if isV:
            A(f"s_add_u32 {s(S_T)}, {s(zs)}, {s(S_ZL2)}")
            A(f"buffer_load_dwordx4 v[24:27], {v(V_ZH)}, {s(S_WS,4)}, {s(S_T)} offen sc1")
        A(f"s_add_u32 {s(S_T)}, {s(ps)}, {s(S_PLX)}")
        A(f"buffer_load_dwordx4 v[24:27], {v(V_L16)}, {s(S_WS,4)}, {s(S_T)} offen sc1")
        A(f"buffer_load_dwordx4 v[24:27], {v(V_L16)}, {s(S_WS,4)}, {s(S_T)} offen offset:1024 sc1")
        A(f"s_add_u32 {s(S_T)}, {s(ps)}, {s(S_PLM)}")
        A(f"buffer_load_dwordx4 v[24:27], {v(V_PLD)}, {s(S_WS,4)}, {s(S_T)} offen sc1")
        nt_ += 5 if isV else 4
    for ls in (S_L, S_LN):
        for o in (0, 4096, 6144):
            A(f"s_add_u32 {s(S_T)}, {s(ls)}, {o}")
            A(f"buffer_load_dwordx4 v[24:27], {v(V_T7)}, {s(S_WS,4)}, {s(S_T)} offen sc1")
            nt_ += 1
    A(f"s_waitcnt vmcnt({nt_})")
    if not isV:
        A(f"v_mov_b32 {v(V_FKS)}, v23")
        sk = A.newlabel("k0s")
        A(f"s_cmp_eq_u32 {s(S_WAVE)}, 0"); A(f"s_cbranch_scc1 {sk}")
        k_check(A)
        k_dma(A)
        A.label(sk)
    su = A.newlabel("u0s")
    A(f"s_cmp_lg_u32 {s(S_WAVE)}, 3"); A(f"s_cbranch_scc1 {su}")
    A(f"v_mov_b32 {v(V_FL)}, v29"); A(f"s_mov_b32 {s(S_TGT)}, 1")
    A("v_cmp_le_u32 vcc, 32, v28")
    A("s_cmp_lg_u64 vcc, 0"); A(f"s_cselect_b32 {s(S_KNOWN)}, 1, 0")
    A(f"v_mov_b32 v28, {v(V_FL)}")
    u_check(A, 0)
    A(f"v_mov_b32 {v(V_FL)}, v28")
    A.label(su)
    lab = A.newlabel("XH"); xo = A.newlabel("XHo")
    A("v_cmp_eq_u32 vcc, -1, v21")
    A(f"s_cbranch_vccz {xo}")
    A(f"s_mov_b32 {s(S_T)}, {MB_X}")
    loop_top(A, lab)
    A(f"buffer_load_dword v21, v20, {s(S_WS,4)}, {s(S_T)} offen sc1")
    A("s_waitcnt vmcnt(0)")
    A("v_cmp_eq_u32 vcc, -1, v21")
    retry(A, lab)
    A.label(xo)
    A(f"v_cmp_ne_u32 vcc, {s(S_FAST)}, v21")
    A(f"v_readfirstlane_b32 {s(S_T3)}, v21"); A(f"v_readfirstlane_b32 {s(S_T)}, v118"); A(f"v_readfirstlane_b32 {s(S_T2)}, v119")
    A(f"s_cmp_eq_u32 {s(S_GRP)}, 0"); A(f"s_cselect_b32 {s(S_FAST)}, vcc_lo, vcc_hi")
    A(f"s_cmp_eq_u32 {s(S_FAST)}, 0"); A(f"s_cselect_b32 {s(S_FAST)}, 1, 0")
    A(f"s_bfe_u32 {s(S_T3)}, {s(S_T3)}, 0x10002")
    A(f"s_xor_b32 {s(S_T)}, {s(S_T)}, {s(S_T3)}"); A(f"s_xor_b32 {s(S_T2)}, {s(S_T2)}, {s(S_T3)}")
    A(f"s_and_b32 {s(S_T)}, {s(S_T)}, 1"); A(f"s_lshl_b32 {s(S_T)}, {s(S_T)}, 13")
    A(f"s_and_b32 {s(S_T2)}, {s(S_T2)}, 1"); A(f"s_lshl_b32 {s(S_T2)}, {s(S_T2)}, 13")
    A(f"s_add_u32 {s(S_RR)}, {s(S_RR)}, {s(S_T)}"); A(f"s_add_u32 {s(S_RW)}, {s(S_RW)}, {s(S_T)}")
    A(f"s_sub_u32 {s(S_T2)}, {s(S_T2)}, {s(S_T)}")
    A(f"s_add_u32 {s(55 if isV else 64)}, {s(S_T2)}, {(2<<20) - (RPP-1)*RSTEP}")
    A("s_waitcnt vmcnt(0)")
    jx = A.newlabel("XJ"); A(f"s_branch {jx}"); flush_stubs(A); A.label(jx)
    A("s_barrier")
    dstamp(A, 7, 0)
    classes = [0, 12, 3]
    labs = {c: A.newlabel("CLS") for c in classes}
    A(f"s_cmp_eq_u32 {s(S_WAVE)}, 0")
    A(f"s_cbranch_scc1 {labs[0]}")
    A(f"s_cmp_eq_u32 {s(S_WAVE)}, 3")
    A(f"s_cbranch_scc1 {labs[3]}")
    for c in [12, 3, 0]:
        A.label(labs[c])
        chain_loop(A, isV, c, flags)
        A(f"s_branch {end_label}")
```

```python
from common import *
import common
import role_kv, role_u, role_chain, role_init, role_q, role_f, role_b, hazard, sys
NAME = "concat_heads__memory_aug_recurrent_mem_tr__sliding_block__prompt"
out = sys.argv[1]
rc = role_chain
rc.PBMODE = 2; role_f.WARM = 2
for k_, x_ in dict(DELAYL=0, DELAYLV=0, HINTB=6, HINTA=5, K2W=0, WDEL=4, PBSTEP=4, PBSTEP0=4, PBSTEPV=3, PBSTG=1, DELAY0=2, DELAY0V=2, PREU=0,
                   XHINT=1, XEARLY=1, XLATE=20, PL_K='B', PL_P='W', DELAYBS=2, TB=30, TA=96, ZPRE2=0).items(): setattr(rc, k_, x_)
TLBG = 0; ROT = 1; CPF = 0; NTC = 0; NTB = 0; TS = 0; DBGT = 0; OFF = ''; BUD = None; PLAIN = 0; UX = 0
for kv in sys.argv[2:]:
    k, x = kv.split('=')
    if k == "TS": TS = int(x)
    elif k == "DBGT": DBGT = int(x)
    elif k == "OFF": OFF = x
    elif k == "TLBG": TLBG = int(x)
    elif k == "ROT": ROT = int(x)
    elif k == "CPF": CPF = int(x)
    elif k == "NTC": NTC = int(x)
    elif k == "NTB": NTB = int(x)
    elif k == "QLATE": role_q.QLATE = int(x)
    elif k == "KLATE": role_kv.KLATE = int(x)
    elif k == "OUTF": role_f.OUTF = role_b.OUTF = x.replace("_", " ")
    elif k == "LEAD": role_kv.LEAD = int(x)
    elif k == "PDBG": role_f.PDBG = int(x)
    elif k == "NUMA": rc.NUMA = int(x); role_f.NUMA = int(x)
    elif k == "ULATE": role_u.ULATE = int(x)
    elif k == "KSTART": common.KSTART = int(x)
    elif k == "WARM": role_f.WARM = int(x)
    elif k == "LATE": role_b.LATE = int(x)
    elif k == "UX": UX = int(x)
    elif k == "KST": common.KST = int(x)
    elif k == "BUD": BUD = int(x)
    elif k == "PLAIN": PLAIN = int(x)
    else: setattr(rc, k, x if k.startswith('PL_') else int(x))
ref = open("cdna_kernels/" + NAME + ".s.ref").read().split("\n")
head = [l for l in ref if l.startswith(";") and "@launch" not in l and "Override launch" not in l and "grid=ceil" not in l]
MAIN = NAME + "_kernel"
hdr = "\n".join(head) + "\n"
hdr += f"; @launch grid=(256,1,1) block=(256,1,1) lds=163840\n"
hdr += ".amdgcn_target \"amdgcn-amd-amdhsa--gfx950\"\n.text\n"
body = ""

common.TS = TS
A = Asm(); A.uid = 100
A("s_cmp_ge_u32 s2, 256"); A("s_cbranch_scc1 L_exit")
prologue(A)
tstamp(A, 0)
if CPF:
    A.c("pull the kernel's own instructions into this die's L2 (read only): 256 threads x 3 lines of 128 B")
    A("s_getpc_b64 s[30:31]")
    A.label("L_pc")
    A("v_lshlrev_b32 v4, 7, v0")
    A("v_min_u32 v4, L_codeend-L_pc-4, v4")
    A("v_mov_b32 v5, s31")
    A("v_add_co_u32 v6, vcc, s30, v4")
    A("s_nop 1")
    A("v_addc_co_u32 v7, vcc, 0, v5, vcc")
    A("global_load_dword v249, v[6:7], off")
    for j in (1, 2):
        A(f"v_lshl_add_u32 v4, v0, 7, s3") if False else None
        A(f"v_lshlrev_b32 v4, 7, v0"); A(f"v_add_u32 v4, {j*32768}, v4")
        A("v_min_u32 v4, L_codeend-L_pc-4, v4")
        A("v_add_co_u32 v6, vcc, s30, v4")
        A("s_nop 1")
        A("v_addc_co_u32 v7, vcc, 0, v5, vcc")
        A("global_load_dword v249, v[6:7], off")
common.DBGT = DBGT
dstamp(A, 4, 0)
if DBGT:
    A("s_cmp_lg_u32 s2, 0"); A("s_cbranch_scc1 L_nox")
    A("s_getreg_b32 s92, hwreg(HW_REG_XCC_ID, 0, 4)"); A("v_mov_b32 v118, s92"); A("v_mov_b32 v119, 60")
    A(f"global_store_dword v119, v118, {s(S_DBG,2)}"); A("s_waitcnt vmcnt(0)")
    A.label("L_nox")
if TLBG:
    A.c("walk the translations of the workspace's 2MB pages once, at the start")
    A(f"s_cmp_lg_u32 {s(S_WAVE)}, 1"); A("s_cbranch_scc1 L_notlb")
    A(f"v_lshlrev_b32 v4, 21, {v(V_LANE)}")
    A(f"buffer_load_dword v249, v4, {s(S_WS,4)}, 0 offen")
    A(f"s_mov_b32 s3, {128<<20}")
    A("s_mov_b64 exec, 0xffffffff")
    A(f"buffer_load_dword v249, v4, {s(S_WS,4)}, s3 offen")
    A("s_mov_b64 exec, -1")
    A.label("L_notlb")
A.c("role numbering: rotate the workgroup id so that class = die under round-robin placement (speed only; checked against workgroup 0)")
A(f"s_getreg_b32 {s(S_KROT)}, hwreg(HW_REG_XCC_ID, 0, 3)")
A(f"s_sub_u32 {s(S_KROT)}, {s(S_KROT)}, s2"); A(f"s_and_b32 {s(S_KROT)}, {s(S_KROT)}, 7")
if not ROT: A(f"s_mov_b32 {s(S_KROT)}, 0")
A(f"s_or_b32 s3, s2, {s(S_WAVE)}"); A("s_cbranch_scc1 L_dispatch")
A(f"s_add_u32 s3, {s(S_KROT)}, 1"); A("v_mov_b32 v4, s3"); A("v_mov_b32 v5, 0"); A("s_mov_b64 exec, 1")
A(f"global_store_dword v5, v4, {s(S_DBG,2)} offset:12 sc0 sc1"); A("s_mov_b64 exec, -1")
A.label("L_dispatch")
A(f"s_add_u32 s23, s2, {s(S_KROT)}"); A("s_and_b32 s23, s23, 7"); A("s_lshr_b32 s24, s2, 3")
if BUD is not None: A(f"s_mov_b32 s100, {BUD}"); rc.SPIN_MAX = BUD
A("s_cmp_ge_u32 s23, 2"); A("s_cbranch_scc1 L_bulk")
if "C" in OFF: A("s_branch L_end")
A("s_cmp_ge_u32 s24, 16"); A("s_cbranch_scc1 L_chV")
common.WFL = 'nt' if NTC else ''
rc.role_chain(A, False, "L_end", flags=True)
A.label("L_exit"); A("s_endpgm")
A.label("L_chV")
rc.role_chain(A, True, "L_end", flags=True)
common.WFL = 'nt' if NTB else ''
A.label("L_bulk")
A("s_mul_i32 s25, s24, 6"); A("s_add_u32 s25, s25, s23"); A("s_sub_u32 s25, s25, 2")
A(f"s_and_b32 {s(S_HEAD)}, s25, 31")
A("s_cmp_ge_u32 s25, 64"); A("s_cbranch_scc1 L_notkv")
A(f"s_load_dwordx2 s[8:9], s[0:1], {KA['Wk']}")
A(f"s_load_dwordx2 s[10:11], s[0:1], {KA['Wv']}")
A(f"s_lshl_b32 s3, {s(S_HEAD)}, 7")
A("s_waitcnt lgkmcnt(0)")
A("s_cmp_ge_u32 s25, 32")
A("s_cselect_b32 s8, s10, s8"); A("s_cselect_b32 s9, s11, s9")
A(f"s_cselect_b32 {s(role_kv.S_DST)}, {WS_V}, {WS_K}")
A(f"s_cselect_b32 {s(role_kv.S_FLAG)}, {FL_V-FL_K}, 0")
A(f"s_add_u32 s3, s3, {FL_K}")
A(f"s_add_u32 {s(role_kv.S_FLAG)}, {s(role_kv.S_FLAG)}, s3")
if "K" not in OFF: role_kv.role_kv(A, flags=True)
A("s_branch L_end")
A.label("L_notkv")
A("s_cmp_ge_u32 s25, 96"); A("s_cbranch_scc1 L_notu")
A(f"s_lshl_b32 s3, {s(S_HEAD)}, 7")
A(f"s_mov_b32 {s(role_u.S_FLAG)}, {CN_U}"); A(f"s_add_u32 {s(role_u.S_FIN)}, s3, {FL_V}")
n0 = len(A.lines)
if "U" not in OFF: role_u.role_u(A, flags=True)
if UX:
    i0 = [i for i, l in enumerate(A.lines) if l.startswith("U_loop")][0]
    def keep(l):
        if UX & 1 and "buffer_store_dwordx4" in l: return False
        if UX & 2 and l.rstrip().endswith(" lds"): return False
        if UX & 4 and ("buffer_load_dword " in l or "buffer_store_dword " in l): return False
        if UX & 8 and "v_mfma" in l: return False
        return True
    A.lines = A.lines[:i0] + [l for l in A.lines[i0:] if keep(l)]
A("s_branch L_end")
A.label("L_notu")
A("s_cmp_ge_u32 s25, 128"); A("s_cbranch_scc1 L_notq")
if "Q" not in OFF: role_q.role_q(A, flags=True)
A("s_branch L_end")
A.label("L_notq")
A("s_cmp_ge_u32 s25, 160"); A("s_cbranch_scc1 L_notb")
if "B" not in OFF: role_b.role_b(A, flags=True)
A("s_branch L_end")
A.label("L_notb")
A("s_cmp_ge_u32 s25, 165"); A("s_cbranch_scc1 L_f")
A(f"s_sub_u32 {s(role_b.S_J)}, s25, 160")
if "3" not in OFF: role_b.role_b3(A, flags=True)
A("s_branch L_end")
A.label("L_f")
A(f"s_sub_u32 {s(role_f.S_ID)}, s25, 165"); A(f"s_mov_b32 {s(role_f.S_STR)}, {NF}")
if "F" not in OFF: role_f.role_f(A, flags=True)
A.label("L_end")
tstamp(A, 1)
for k_, wg_ in ((8, 0), (9, 2), (10, 98), (11, 130), (12, 218), (13, 255), (14, 237)): dstamp(A, k_, wg_)
A.label("L_codeend")
A("s_endpgm")
body += kernel_header(MAIN) + A.text()
txt = hdr + body + '.section .rodata,"a"\n.p2align 6\n' + kernel_desc(MAIN)
if PLAIN: txt = txt.replace(" sc0 sc1", "")
open(out, "w").write(txt)
print(len(txt), "bytes")
hazard.check(txt)
```
